```python
import torch

def _softmax(x, axis=-1):
    return torch.softmax(x, dim=axis)
def _gelu(x):
    return torch.nn.functional.gelu(x, approximate="tanh")
def _silu(x):
    return torch.nn.functional.silu(x)
def _sigmoid(x):
    return torch.sigmoid(x)
def _layernorm(x, axis=-1, eps=1e-5):
    m = x.mean(dim=axis, keepdim=True)
    v = x.var(dim=axis, keepdim=True, unbiased=False)
    return (x - m) / torch.sqrt(v + eps)
def _scatter_add(tgt, idx, src, axis=0):
    return tgt.clone().index_add_(axis, idx, src)
def _segment_sum(src, seg, n):
    out = torch.zeros((n,) + src.shape[1:], dtype=src.dtype)
    return out.index_add_(0, seg, src)
def _pad(x, pw):
    flat = tuple(v for pair in reversed(pw) for v in pair)
    return torch.nn.functional.pad(x, flat)

kernel_name = 'recurrent_scan__linear_kernel_hedgehog__glu_gated_bilinear__prompt'

def setup_inputs():

    _w = (lambda a: (lambda t: t.to(torch.bfloat16) if t.is_floating_point() else t)(torch.as_tensor(a)))
    def _A_setup():
        B, S, D, H = 1, 2048, 512, 32
        Dh = D // H
        return {
            "x": _w((lambda *s: torch.randn(*s, dtype=torch.bfloat16) * 0.05)(B, S, D)),
            "wqkv": _w((lambda *s: torch.randn(*s, dtype=torch.bfloat16) * 0.8)(D, 3 * D)),
            "w_phi": _w((lambda *s: torch.randn(*s, dtype=torch.bfloat16) * 0.8)(H, Dh, Dh) * (Dh ** -0.5)),
            "wo": _w((lambda *s: torch.randn(*s, dtype=torch.bfloat16) * 0.8)(D, D)),
        }
    _A_in = _A_setup()

    def _B_setup():
        B, S, D, F = 1, 2048, 512, 1792
        return {
            "x": _w((lambda *s: torch.randn(*s, dtype=torch.bfloat16) * 0.05)(B, S, D)),
            "w_gate": _w((lambda *s: torch.randn(*s, dtype=torch.bfloat16) * 0.2)(D, F) * (D ** -0.5)),
            "w_up": _w((lambda *s: torch.randn(*s, dtype=torch.bfloat16) * 0.2)(D, F) * (D ** -0.5)),
            "w_down": _w((lambda *s: torch.randn(*s, dtype=torch.bfloat16) * 0.2)(F, D) * (F ** -0.5)),
        }
    _B_in = _B_setup()

    return {
        "A_x": _A_in["x"],
        "A_wqkv": _A_in["wqkv"],
        "A_w_phi": _A_in["w_phi"],
        "A_wo": _A_in["wo"],
        "B_x": _B_in["x"],
        "B_w_gate": _B_in["w_gate"],
        "B_w_up": _B_in["w_up"],
        "B_w_down": _B_in["w_down"],
    }

def reference(A_x, A_wqkv, A_w_phi, A_wo, B_x, B_w_gate, B_w_up, B_w_down):
    def _A_ref(x, wqkv, w_phi, wo):
        B, S, D = x.shape
        H = 32; Dh = D // H
        qkv = (lambda x, *d: x.permute(*d))((x @ wqkv).reshape(B, S, 3, H, Dh), 2, 0, 3, 1, 4)
        q, k, v = qkv[0], qkv[1], qkv[2]
        pq = torch.einsum("bhsd,hdf->bhsf", q, w_phi)
        pk = torch.einsum("bhsd,hdf->bhsf", k, w_phi)
        phi_q = torch.concatenate([_softmax(pq, axis=-1), _softmax(-pq, axis=-1)], axis=-1)
        phi_k = torch.concatenate([_softmax(pk, axis=-1), _softmax(-pk, axis=-1)], axis=-1)
        kv = torch.einsum("bhsf,bhsd->bhfd", phi_k, v)
        z  = torch.einsum("bhsf->bhf", phi_k)
        num = torch.einsum("bhqf,bhfd->bhqd", phi_q, kv)
        den = torch.einsum("bhqf,bhf->bhq", phi_q, z)[..., None] + 1e-6
        o = num / den
        return (lambda x, *d: x.permute(*d))(o, 0, 2, 1, 3).reshape(B, S, D) @ wo

    def _B_ref(x, w_gate, w_up, w_down):
        g = torch.einsum("bsd,df->bsf", x, w_gate)
        u = torch.einsum("bsd,df->bsf", x, w_up)
        h = g * u
        return torch.einsum("bsf,fd->bsd", h, w_down)

    x = A_x
    xn = _layernorm(x, axis=-1)
    s = _A_ref(xn, A_wqkv, A_w_phi, A_wo)
    g = _silu(_B_ref(xn, B_w_gate, B_w_up, B_w_down))
    return x + s * g
```

```python
import re

class I:
    __slots__ = ("t", "tag")
    def __init__(self, t, tag=None):
        self.t = t; self.tag = tag
class W:
    __slots__ = ("vm", "lg")
    def __init__(self, vm=None, lg=None):
        self.vm = vm; self.lg = lg
class L:
    __slots__ = ("t",)
    def __init__(self, t): self.t = t

def v(a, n=1):
    return "v%d" % a if n == 1 else "v[%d:%d]" % (a, a + n - 1)
def s(a, n=1):
    return "s%d" % a if n == 1 else "s[%d:%d]" % (a, a + n - 1)

_reg = re.compile(r"\b([vs])(\d+)\b|\b([vs])\[(\d+):(\d+)\]|\b(vcc|exec|m0|scc)\b")
def regs_of(op):
    out = []
    for m in _reg.finditer(op):
        if m.group(1): out.append((m.group(1), int(m.group(2))))
        elif m.group(3): out += [(m.group(3), k) for k in range(int(m.group(4)), int(m.group(5)) + 1)]
        else: out.append((m.group(6), 0))
    return out

TRANS = ("v_exp_f32", "v_rcp_f32", "v_rsq_f32", "v_sqrt_f32", "v_log_f32")
def classify(t):
    t = t.split(";")[0].strip()
    mn, _, rest = t.partition(" ")
    ops = [o.strip() for o in rest.split(",")] if rest else []
    d = dict(mn=mn, kind="other", dst=[], src=[], passes=0, srcc=[], ab=[])
    if mn.startswith("v_mfma"):
        d["kind"] = "mfma"; d["passes"] = 8 if "32x32" in mn else 4
        d["dst"] = regs_of(ops[0]); d["ab"] = regs_of(ops[1]) + regs_of(ops[2]); d["srcc"] = regs_of(ops[3])
        d["src"] = d["ab"] + d["srcc"]
    elif mn.startswith("v_"):
        d["kind"] = "valu"
        if mn.startswith("v_cmp"):
            d["dst"] = regs_of(ops[0]); d["src"] = sum((regs_of(o) for o in ops[1:]), [])
        elif mn.startswith("v_permlane"):
            d["dst"] = regs_of(ops[0]) + regs_of(ops[1]); d["src"] = list(d["dst"])
        else:
            d["dst"] = regs_of(ops[0]); d["src"] = sum((regs_of(o) for o in ops[1:]), [])
            if mn.startswith(("v_fmac", "v_dot2c")) or "_dpp" in mn or "row_" in t or "quad_perm" in t:
                d["src"] += d["dst"]
            if mn.startswith(("v_add_co", "v_addc_co", "v_sub_co")):
                d["dst"] += regs_of(ops[1])
    elif mn.startswith("ds_"):
        d["kind"] = "ds"
        if mn.startswith("ds_read"):
            d["dst"] = regs_of(ops[0]); d["src"] = regs_of(ops[1])
        else:
            d["src"] = sum((regs_of(o) for o in ops), [])
    elif mn.startswith(("buffer_", "global_")):
        d["kind"] = "vmem"
        if " lds" in (" " + rest + " ").replace(",", " ") and mn.startswith("buffer_load"):
            d["src"] = sum((regs_of(o) for o in ops), []) + [("m0", 0)]; d["dma"] = True
        elif "load" in mn:
            d["dst"] = regs_of(ops[0]); d["src"] = sum((regs_of(o) for o in ops[1:]), [])
            if "d16" in mn: d["src"] += d["dst"]
        else:
            d["src"] = sum((regs_of(o) for o in ops), [])
            d["data"] = regs_of(ops[0]) if mn.startswith("buffer_") else regs_of(ops[1])
            if "atomic" in mn and " sc0" in rest: d["dst"] = regs_of(ops[0])
    elif mn.startswith("s_"):
        d["kind"] = "salu"
        if mn.startswith(("s_cmp", "s_cbranch", "s_branch", "s_barrier", "s_waitcnt", "s_nop", "s_sleep", "s_setprio", "s_endpgm", "s_bitcmp")):
            d["src"] = sum((regs_of(o) for o in ops), [])
        elif mn.startswith(("s_load", "s_memtime", "s_memrealtime")):
            d["kind"] = "smem"; d["dst"] = regs_of(ops[0]); d["src"] = sum((regs_of(o) for o in ops[1:]), [])
        else:
            d["dst"] = regs_of(ops[0]); d["src"] = sum((regs_of(o) for o in ops[1:]), [])
            if "saveexec" in mn: d["dst"] += [("exec", 0)]
    d["trans"] = mn.startswith(TRANS)
    d["dot"] = mn.startswith("v_dot")
    d["perm"] = mn.startswith("v_permlane")
    d["dpp"] = ("row_" in t or "quad_perm" in t) and d["kind"] == "valu"
    d["rl"] = mn.startswith(("v_readfirstlane", "v_readlane"))
    return d

XDL_RAW = {4: 8, 8: 12}
XDL_CPART = {4: 6, 8: 10}
XDL_WARC = {4: 3, 8: 7}

def need(p, c):
    n = 0
    pd = set(p["dst"]); cs = set(c["src"]); cd = set(c["dst"])
    vv = lambda S: set(r for r in S if r[0] == "v")
    sg = lambda S: set(r for r in S if r[0] in ("s", "vcc"))
    if p["kind"] == "valu":
        raw = vv(pd) & cs
        if raw:
            if c["kind"] == "mfma": n = max(n, 2)
            if c["perm"] or c["dpp"]: n = max(n, 2)
            if c["rl"]: n = max(n, 1)
            if p["trans"] and c["kind"] == "valu" and not c["trans"]: n = max(n, 1)
            if p["trans"] and c["kind"] in ("valu", "mfma", "vmem", "ds"): n = max(n, 1)
        if p["dot"]:
            if (vv(pd) & (cs | cd)):
                if c["mn"] == p["mn"]:
                    n = max(n, 0 if c.get("chain_ok") else 0)
                    if c["dot"]:
                        ab = set(c["src"][:2]) if len(c["src"]) >= 2 else set()
                        if vv(pd) & ab: n = max(n, 3)
                else: n = max(n, 3)
        sraw = sg(pd) & cs
        if sraw:
            if c["kind"] == "valu": n = max(n, 4 if c["rl"] else 2)
            if c["kind"] == "vmem": n = max(n, 5)
            if c["kind"] in ("salu", "smem"): n = max(n, 1)
        if ("exec", 0) in pd: n = max(n, 5)
    if p["kind"] == "mfma":
        ps = p["passes"]
        if c["kind"] == "mfma":
            if pd & set(c["ab"]): n = max(n, XDL_RAW[ps])
            if pd & set(c["srcc"]):
                if not (p["dst"] == c["srcc"] and c["passes"] == ps): n = max(n, XDL_CPART[ps])
            elif pd & cd and p["dst"] != c["dst"]: n = max(n, XDL_RAW[ps])
        elif c["kind"] in ("valu", "vmem", "ds"):
            if pd & (cs | cd): n = max(n, XDL_RAW[ps])
            if c["kind"] == "valu" and set(p["srcc"]) & cd: n = max(n, XDL_WARC[ps])
    if p["kind"] == "salu":
        if ("m0", 0) in pd and c.get("dma"): n = max(n, 1)
    if p["kind"] == "vmem" and len(p.get("data", [])) >= 3:
        if set(p["data"]) & cd: n = max(n, 2)
    return n

class State:
    def __init__(self):
        self.vm = []; self.lg = []; self.hist = []; self.pos = 0; self.seen = set(); self.nops = 0
    def clone(self):
        n = State(); n.vm = list(self.vm); n.lg = list(self.lg); n.hist = list(self.hist[-20:]); n.pos = self.pos
        n.seen = set(self.seen); return n

def finalize(items, st=None, window=14):
    st = st or State()
    out = []
    def emit(t):
        c = classify(t)
        req = 0
        for p, ppos in st.hist[-window:]:
            n = need(p, c)
            if n:
                have = st.pos - ppos - 1
                if have < n: req = max(req, n - have)
        while req > 0:
            k = min(req, 16)
            out.append("    s_nop %d" % (k - 1)); st.pos += k; req -= k; st.nops += 1
        out.append("    " + t)
        st.hist.append((c, st.pos))
        if c["mn"] == "s_nop": st.pos += int(t.split()[1]) + 1
        else: st.pos += 1
        return c
    for it in items:
        if isinstance(it, L):
            out.append(it.t)
        elif isinstance(it, I):
            c = emit(it.t)
            if it.tag is not None:
                assert c["kind"] in ("vmem", "ds"), it.t
                st.seen.add(it.tag)
            if c["kind"] == "vmem": st.vm.append(it.tag)
            elif c["kind"] == "ds": st.lg.append(it.tag)
            elif c["kind"] == "smem": st.lg.append("__smem__")
        else:
            parts = []
            for name, seq, tag, cap in (("vmcnt", st.vm, it.vm, 63), ("lgkmcnt", st.lg, it.lg, 15)):
                if tag is None: continue
                if tag == "all":
                    parts.append("%s(0)" % name); del seq[:]; continue
                tags = tag if isinstance(tag, (list, set)) else [tag]
                for x in tags: assert x in st.seen, ("wait on a tag never issued", x)
                idx = [k for k, x in enumerate(seq) if x in tags]
                if not idx: continue
                last = idx[-1]
                n = len(seq) - 1 - last
                if name == "lgkmcnt" and "__smem__" in seq: n = 0; last = len(seq) - 1
                if n > cap: n = cap; last = len(seq) - 1 - cap
                parts.append("%s(%d)" % (name, n))
                del seq[:last + 1]
            if parts: emit("s_waitcnt " + " ".join(parts))
    return out, st
```

```python
import sys, os, json
sys.path.insert(0, os.path.dirname(os.path.abspath(__file__)))
from asmir import I, W, L, v, s, finalize, State

NAME = "recurrent_scan__linear_kernel_hedgehog__glu_gated_bilinear__prompt"
CFG = dict(stamps=0, LA=6, chunk=70, chunk2=40, h2wait=25, feed=(16, 16, 17, 17, 18, 19), ahead2=6)
for a in sys.argv[2:]:
    k, x = a.split("="); CFG[k] = json.loads(x)

WS_CNT = 0
WS_KV = 0x10000
WS_Z = 0x120000
WS_ST = 0x140000
WS_HO = 0x200000
WS_BYTES = WS_HO + 64 * 144 * 1024
C_H1Q, C_H1KV, C_H2, C_O = 0, 1, 2, 3
SLOT = 16384; STG = 32768; EX = 131072
SX, SQKV, SPHI, SWO, SG, SU, SWD, SOUT, SDBG, SWS, SA, SB = 8, 12, 16, 20, 24, 28, 32, 36, 40, 44, 48, 52
sW, sW3, sI, sGR, sTY, sR1, sXR, sTT, sCT, sR2 = range(56, 66)
sT0, sT1, sT2, sT3, sT4, sT5 = range(66, 72)
sL2E = 72; sSTR = 73; sCA = 74; sCB = 75; sKS = 76
sSPIN = 80; sEX = 82
sPH = 84
sTM = 90
srd = lambda b: s(b, 4)
LOG2E = 0x3fb8aa3b

def prologue():
    P = []; a = lambda t, tag=None: P.append(I(t, tag))
    a("s_cmp_ge_u32 s2, 256")
    a("s_cbranch_scc1 L_exit")
    for b, off in ((SX, 0), (SQKV, 8), (SPHI, 16), (SWO, 24), (SG, 40), (SU, 48), (SWD, 56), (SOUT, 64), (SDBG, 72), (SWS, 80)):
        a("s_load_dwordx2 %s, s[0:1], %d" % (s(b, 2), off))
    if CFG["stamps"]:
        a("s_memtime %s" % s(sTM, 2))
    for b, n in ((SX, 2097152), (SQKV, 1572864), (SPHI, 16384), (SWO, 524288), (SG, 1835008), (SU, 1835008),
                 (SWD, 1835008), (SOUT, 2097152), (SDBG, 256), (SWS, WS_BYTES)):
        a("s_mov_b32 s%d, %d" % (b + 2, n)); a("s_mov_b32 s%d, 0x20000" % (b + 3))
    a("s_mov_b32 s%d, 0x20000" % (SA + 3)); a("s_mov_b32 s%d, 0x20000" % (SB + 3))
    a("v_lshrrev_b32 v2, 6, v0")
    a("v_and_b32 v1, 63, v0")
    a("v_readfirstlane_b32 s%d, v2" % sW)
    a("s_and_b32 s%d, s2, 7" % sT0)
    a("s_lshr_b32 s%d, s2, 3" % sT1)
    a("s_and_b32 s%d, s%d, 3" % (sR1, sT1))
    a("s_lshr_b32 s%d, s%d, 1" % (sT2, sT0)); a("s_lshl_b32 s%d, s%d, 2" % (sT2, sT2)); a("s_add_u32 s%d, s%d, s%d" % (sI, sT2, sR1))
    a("s_lshr_b32 s%d, s%d, 2" % (sCT, sT1))
    a("s_and_b32 s%d, s%d, 3" % (sXR, sCT))
    a("s_lshr_b32 s%d, s%d, 2" % (sTY, sCT))
    a("s_and_b32 s%d, s%d, 1" % (sT2, sT0)); a("s_lshl_b32 s%d, s%d, 2" % (sT2, sT2)); a("s_add_u32 s%d, s%d, s%d" % (sGR, sT2, sXR))
    a("s_lshl_b32 s%d, s%d, 2" % (sT2, sT0)); a("s_add_u32 s%d, s%d, s%d" % (sTT, sT2, sR1))
    a("s_lshl_b32 s%d, s%d, 1" % (sT2, sR1)); a("s_add_u32 s%d, s%d, s%d" % (sR2, sT2, sCT))
    a("s_and_b32 s%d, s%d, 3" % (sW3, sW))
    a("s_mov_b32 s%d, 0x%x" % (sL2E, LOG2E))
    a("v_lshrrev_b32 v4, 4, v1")
    a("v_and_b32 v5, 15, v1")
    a("s_lshl_b32 s%d, s%d, 7" % (sT0, sI)); a("s_lshl_b32 s%d, s%d, 4" % (sT1, sW)); a("s_add_u32 s%d, s%d, s%d" % (sT0, sT0, sT1))
    a("v_add_u32 v3, s%d, v4" % sT0); a("v_lshlrev_b32 v3, 10, v3"); a("v_lshl_add_u32 v3, v5, 4, v3")
    a("s_cmp_eq_u32 s%d, 0" % sTY)
    a("s_cselect_b32 s%d, s%d, s%d" % (SA + 2, SQKV + 2, SG + 2)); a("s_mov_b32 s%d, s%d" % (SB + 2, SA + 2))
    a("s_cselect_b32 s%d, 6, 7" % sSTR)
    a("s_cselect_b32 s%d, 7, 8" % sT0)
    a("s_cselect_b32 s%d, 1024, 0" % sT1)
    a("s_cselect_b32 s%d, 2048, 0" % sT2)
    a("s_lshl_b32 s%d, s%d, 9" % (sSTR, sSTR))
    a("s_lshl_b32 s%d, s%d, s%d" % (sT0, sGR, sT0))
    a("s_add_u32 s%d, s%d, s%d" % (sCA, sT0, sT1)); a("s_add_u32 s%d, s%d, s%d" % (sCB, sT0, sT2))
    p4_voffs(a, 6, 7, "s%d" % sSTR, 8)
    P.append(W(lg="all"))
    a("s_cmp_eq_u32 s%d, 0" % sTY)
    a("s_cselect_b64 %s, %s, %s" % (s(SA, 2), s(SQKV, 2), s(SG, 2)))
    a("s_cselect_b64 %s, %s, %s" % (s(SB, 2), s(SQKV, 2), s(SU, 2)))
    for b in range(4):
        a("s_add_u32 s%d, s%d, %d" % (sT0, sXR, b)); a("s_and_b32 s%d, s%d, 3" % (sT0, sT0)); a("s_lshl_b32 s%d, s%d, 12" % (sT0, sT0))
        for q in range(4):
            a("s_add_u32 s%d, s%d, %d" % (sT1, sR1, q)); a("s_and_b32 s%d, s%d, 3" % (sT1, sT1)); a("s_lshl_b32 s%d, s%d, 8" % (sT1, sT1))
            a("s_add_u32 s%d, s%d, s%d" % (sT1, sT1, sT0))
            a("buffer_load_dwordx4 %s, v3, %s, s%d offen" % (v(128 + 16 * b + 4 * q, 4), srd(SX), sT1), ("x", b))
        if b == 0:
            a("s_lshr_b32 s%d, s%d, 2" % (sT2, sW))
            a("s_lshl_b32 s%d, s%d, 1" % (sT3, sR1)); a("s_add_u32 s%d, s%d, s%d" % (sT3, sT3, sT2)); a("s_and_b32 s%d, s%d, 7" % (sT3, sT3))
            a("s_lshl_b32 s%d, s%d, 2" % (sT3, sT3)); a("s_add_u32 s%d, s%d, s%d" % (sT3, sT3, sW3)); a("s_lshl_b32 s%d, s%d, 4" % (sT3, sT3))
            a("s_mul_i32 s%d, s%d, s%d" % (sT3, sT3, sSTR))
            a("s_lshl_b32 s%d, s%d, 12" % (sT4, sW))
            for p in range(4):
                a("s_add_u32 m0, s%d, %d" % (sT4, p * 1024))
                if p == 2:
                    a("s_lshl_b32 s%d, s%d, 3" % (sT5, sSTR)); a("s_add_u32 s%d, s%d, s%d" % (sT3, sT3, sT5))
                a("s_add_u32 s%d, s%d, s%d" % (sT5, sT3, sCB if p & 1 else sCA))
                a("buffer_load_dwordx4 v%d, %s, s%d offen lds" % (7 if p & 1 else 6, srd(SB if p & 1 else SA), sT5), "slab01")
    a("s_lshr_b32 s%d, s%d, 1" % (sT0, sW)); a("s_lshl_b32 s%d, s%d, 15" % (sT0, sT0))
    a("s_and_b32 s%d, s%d, 1" % (sT1, sW)); a("s_lshl_b32 s%d, s%d, 8" % (sT1, sT1)); a("s_add_u32 s%d, s%d, s%d" % (sT0, sT0, sT1))
    a("s_add_u32 s%d, s%d, %d" % (sT0, sT0, STG))
    a("v_lshlrev_b32 v8, 9, v5"); a("v_add_u32 v8, s%d, v8" % sT0)
    a("v_and_b32 v9, 7, v5")
    a("v_mov_b32 v10, 0x3f803f80")
    for b in range(4):
        D = 128 + 16 * b
        a("s_add_u32 s%d, s%d, %d" % (sT0, sXR, b)); a("s_and_b32 s%d, s%d, 3" % (sT0, sT0)); a("s_lshl_b32 s%d, s%d, 2" % (sT0, sT0))
        a("v_add_u32 v11, s%d, v4" % sT0); a("v_xor_b32 v11, v11, v9"); a("v_lshl_add_u32 v11, v11, 4, v8")
        P.append(W(vm=[("x", b)]))
        for r in range(16):
            a("v_dot2_f32_bf16 v%d, v%d, v10, %s" % (16 + (r & 1), D + r, "0" if r < 2 else "v%d" % (16 + (r & 1))))
            a("v_dot2_f32_bf16 v%d, v%d, v%d, %s" % (18 + (r & 1), D + r, D + r, "0" if r < 2 else "v%d" % (18 + (r & 1))))
        a("v_add_f32 v16, v16, v17"); a("v_add_f32 v18, v18, v19")
        for k in (8, 4, 2, 1):
            a("v_add_f32_dpp v16, v16, v16 row_ror:%d row_mask:0xf bank_mask:0xf" % k)
            a("v_add_f32_dpp v18, v18, v18 row_ror:%d row_mask:0xf bank_mask:0xf" % k)
        a("v_mul_f32 v16, 0x3b000000, v16")
        a("v_mul_f32 v18, 0x3b000000, v18")
        a("v_fma_f32 v18, -v16, v16, v18")
        a("v_max_f32 v18, 0, v18")
        a("v_cvt_pk_bf16_f32 v17, v16, v18")
        a("v_and_b32 v18, 0xffff0000, v17")
        a("v_lshlrev_b32 v16, 16, v17")
        a("v_add_f32 v18, 0x3727c5ac, v18")
        a("v_cvt_pk_bf16_f32 v18, v18, v18"); a("v_lshlrev_b32 v18, 16, v18")
        a("v_sqrt_f32 v18, v18")
        a("v_cvt_pk_bf16_f32 v18, v18, v18"); a("v_lshlrev_b32 v18, 16, v18")
        a("v_rcp_f32 v20, v18")
        a("v_mul_f32 v21, v16, v20"); a("v_sub_f32 v21, 0, v21")
        for q in range(4):
            for r in range(4):
                x = D + 4 * q + r; t = 24 + 2 * r
                a("v_lshlrev_b32 v%d, 16, v%d" % (t, x)); a("v_and_b32 v%d, 0xffff0000, v%d" % (t + 1, x))
            for r in range(4):
                t = 24 + 2 * r
                a("v_pk_fma_f32 %s, %s, v[20:21], v[20:21] op_sel:[0,0,1] op_sel_hi:[1,0,1]" % (v(t, 2), v(t, 2)))
            for r in range(4):
                a("v_cvt_pk_bf16_f32 v%d, v%d, v%d" % (D + 4 * q + r, 24 + 2 * r, 25 + 2 * r))
            a("ds_write_b128 v11, %s offset:%d" % (v(D + 4 * q, 4), q * 8192))
    P.append(W(vm="all", lg="all"))
    a("s_barrier")
    a("s_cmp_ge_u32 s%d, 4" % sW)
    a("s_cbranch_scc1 L_helper")
    return P

def p4_voffs(a, va, vb, stride, t):
    a("v_lshrrev_b32 v%d, 3, v1" % t)
    a("v_and_b32 v%d, 2, v%d" % (t + 1, t)); a("v_lshlrev_b32 v%d, 1, v%d" % (t + 1, t + 1))
    a("v_and_b32 v%d, 7, v1" % (t + 2)); a("v_xor_b32 v%d, v%d, v%d" % (t + 2, t + 2, t + 1))
    a("v_mul_lo_u32 v%d, v%d, %s" % (t, t, stride))
    a("v_lshl_add_u32 v%d, v%d, 4, v%d" % (va, t + 2, t))
    a("v_xor_b32 v%d, 32, v%d" % (vb, va))
def p2_voffs(a, va, vb, stride, t):
    a("v_lshrrev_b32 v%d, 2, v1" % t)
    a("v_and_b32 v%d, 3, v1" % (t + 2))
    a("v_mul_lo_u32 v%d, v%d, %s" % (t, t, stride))
    a("v_lshl_add_u32 v%d, v%d, 4, v%d" % (va, t + 2, t))
    a("v_xor_b32 v%d, 32, v%d" % (vb, va))

PH = {0: [("P4", "kv"), ("P4", "gu"), ("P2", "gu")], 1: [("P4", "gu"), ("P2", "q"), ("P4", "gu")]}
def slabs_of(ty):
    out = []
    for pi, (k, e) in enumerate(PH[ty]):
        for sg in range(8 if k == "P4" else 4): out.append((pi, k, sg))
    return out

def fcols(a, ty):
    if ty == 1:
        a("s_lshl_b32 s%d, s%d, 7" % (sKS, sGR)); a("s_add_u32 s%d, s%d, 64" % (sKS + 1, sKS))
    else:
        a("s_mul_i32 s%d, s%d, 96" % (sT0, sGR)); a("s_add_u32 s%d, s%d, 1024" % (sT0, sT0))
        a("s_and_b32 s%d, s%d, 1" % (sT1, sGR)); a("s_lshl_b32 s%d, s%d, 5" % (sT2, sT1))
        a("s_add_u32 s%d, s%d, s%d" % (sKS, sT0, sT2))
        a("s_xor_b32 s%d, s%d, 1" % (sT1, sT1)); a("s_lshl_b32 s%d, s%d, 6" % (sT1, sT1))
        a("s_add_u32 s%d, s%d, s%d" % (sKS + 1, sT0, sT1))

XR = 128; ACC = 64; WF = 32
def compute(ty):
    P = []; a = lambda t, tag=None: P.append(I(t, tag))
    a("v_and_b32 v16, 31, v1"); a("v_lshrrev_b32 v17, 5, v1")
    a("s_lshl_b32 s%d, s%d, 15" % (sT0, sW)); a("s_add_u32 s%d, s%d, %d" % (sT0, sT0, STG))
    a("v_lshlrev_b32 v18, 9, v17"); a("v_add_u32 v18, s%d, v18" % sT0)
    a("v_xor_b32 v19, v16, v17")
    for k in range(4):
        a("v_xor_b32 v%d, %d, v19" % (20 + k, 2 * k)); a("v_lshl_add_u32 v%d, v%d, 4, v18" % (20 + k, 20 + k))
    for sl in range(32):
        a("ds_read_b128 %s, v%d offset:%d" % (v(XR + 4 * sl, 4), 20 + (sl & 3), sl * 1024), ("xn", sl))
    a("v_bfe_u32 v24, v1, 2, 2"); a("v_and_b32 v25, 3, v1"); a("v_bfe_u32 v26, v1, 4, 1")
    a("v_lshlrev_b32 v27, 3, v25"); a("v_lshl_add_u32 v27, v26, 10, v27")
    a("v_lshl_add_u32 v28, v17, 11, v27"); a("v_lshl_add_u32 v28, v24, 7, v28")
    a("v_and_b32 v29, 2, v24"); a("v_xor_b32 v29, v29, v26")
    for t in range(4):
        a("v_xor_b32 v30, %d, v29" % t); a("v_lshl_add_u32 v%d, v30, 5, v28" % (2 + t)); a("v_add_u32 v%d, 0x10000, v%d" % (6 + t, 2 + t))
    a("v_lshl_add_u32 v28, v17, 9, v27"); a("v_lshl_add_u32 v28, v24, 6, v28")
    for t in range(2):
        a("v_xor_b32 v30, %d, v26" % t); a("v_lshl_add_u32 v%d, v30, 5, v28" % (10 + t)); a("v_add_u32 v%d, 0x10000, v%d" % (12 + t, 10 + t))
    a("s_lshl_b32 s%d, s%d, 2" % (sT0, sI)); a("s_add_u32 s%d, s%d, s%d" % (sT0, sT0, sW)); a("s_mul_i32 s%d, s%d, %d" % (sT0, sT0, 147456))
    a("s_add_u32 s%d, s%d, %d" % (sT0, sT0, WS_HO))
    a("v_lshlrev_b32 v15, 4, v1"); a("v_add_u32 v14, s%d, v15" % sT0)
    a("s_lshl_b32 s%d, s%d, 13" % (sT0, sW)); a("s_add_u32 s%d, s%d, %d" % (sT0, sT0, EX)); a("v_add_u32 v15, s%d, v15" % sT0)
    fcols(a, ty)
    a("s_lshl_b32 s%d, s%d, 6" % (sKS, sKS)); a("s_lshl_b32 s%d, s%d, 6" % (sKS + 1, sKS + 1))
    ops = []
    fill = {}
    pre = {}
    sl = slabs_of(ty); gu_seen = 0
    for n, (pi, kind, sg) in enumerate(sl):
        slot = n & 7; win = slot >> 2; base = (slot & 3) * SLOT
        nt, nk = (4, 4) if kind == "P4" else (2, 8)
        order = list(range(nt))
        if sg == 0 and pi > 0 and PH[ty][pi - 1][0] == "P2" and kind == "P4": order = [2, 3, 0, 1]
        last = sg == (7 if kind == "P4" else 3)
        for t in order:
            for u in range(nk):
                m = len(ops); fb = WF + 4 * (m & 7)
                if kind == "P4": ar, off, dq, xs = 2 + 4 * win + t, base + u * 4096, 512, sg * 4 + u
                else: ar, off, dq, xs = 10 + 2 * win + t, base + u * 2048, 256, sg * 8 + u
                acc = v(ACC + 16 * t, 16)
                ops.append(dict(slab=n, reads=[("ds_read_b64_tr_b16 %s, v%d offset:%d" % (v(fb, 2), ar, off), ("f", m)),
                                               ("ds_read_b64_tr_b16 %s, v%d offset:%d" % (v(fb + 2, 2), ar, off + dq), ("f", m))],
                                waits=[("f", m)] + ([("xn", xs)] if pi == 0 else []), la=CFG["LA"],
                                mfma="v_mfma_f32_32x32x16_bf16 %s, %s, %s, %s" % (acc, v(fb, 4), v(XR + 4 * xs, 4), "0" if (sg == 0 and u == 0) else acc)))
            if last:
                e = PH[ty][pi][1]; A = ACC + 16 * t; T = 16 + 8 * (t & 1); E = []
                if e == "gu":
                    for j in range(8): E.append(I("v_mul_f32 v%d, v%d, v%d" % (A + j, A + j, A + j + 8)))
                    for j in range(4): E.append(I("v_cvt_pk_bf16_f32 v%d, v%d, v%d" % (T + j, A + 2 * j, A + 2 * j + 1)))
                    E.append(I("buffer_store_dwordx4 %s, v14, %s, s%d offen offset:%d sc1" % (v(T, 4), srd(SWS), sKS + gu_seen, t * 1024), ("h", gu_seen)))
                else:
                    for j in range(8): E.append(I("v_cvt_pk_bf16_f32 v%d, v%d, v%d" % (T + j, A + 2 * j, A + 2 * j + 1)))
                    E.append(I("ds_write_b128 v15, %s offset:%d" % (v(T, 4), t * 2048), "ex"))
                    E.append(I("ds_write_b128 v15, %s offset:%d" % (v(T + 4, 4), t * 2048 + 1024), "ex"))
                e0 = len(ops) - 1 + 2
                for j, it in enumerate(E): fill.setdefault(e0 + j * 4 // len(E), []).append(it)
        if last:
            e = PH[ty][pi][1]
            if e == "gu":
                pre.setdefault(n + 4 if gu_seen == 0 else CFG["h2wait"], []).append(W(vm=[("h", gu_seen)])); gu_seen += 1
            else: pre.setdefault(n + 2, []).append(W(lg=["ex"]))
    n1 = len(ops)
    HB = XR
    AD = XR + 32
    Y, S_ = (ACC + 32, ACC + 48) if ty == 0 else (XR + 48, XR + 64)
    setup = []; b = lambda t, tag=None: setup.append(I(t, tag))
    b("s_lshr_b32 s%d, s%d, 1" % (sT0, sW)); b("s_and_b32 s%d, s%d, 1" % (sT1, sW))
    b("s_lshl_b32 s%d, s%d, 12" % (sT2, sT0))
    b("v_lshlrev_b32 v%d, 4, v1" % AD); b("v_add_u32 v%d, s%d, v%d" % (AD, sT2, AD)); b("v_add_u32 v%d, 0x10000, v%d" % (AD + 1, AD))
    t0, t1 = AD + 13, AD + 14
    b("v_bfe_u32 v%d, v1, 3, 1" % t0); b("v_xor_b32 v%d, s%d, v%d" % (t0, sT1, t0)); b("v_lshlrev_b32 v%d, 6, v%d" % (AD + 2, t0))
    b("v_bfe_u32 v%d, v1, 2, 2" % t0); b("v_lshl_add_u32 v%d, v%d, 7, v%d" % (AD + 2, t0, AD + 2))
    b("v_lshrrev_b32 v%d, 5, v1" % t1); b("v_lshl_add_u32 v%d, v%d, 9, v%d" % (AD + 2, t1, AD + 2))
    b("v_and_b32 v%d, 1, v1" % t0); b("v_lshl_add_u32 v%d, v%d, 5, v%d" % (AD + 2, t0, AD + 2))
    b("v_bfe_u32 v%d, v1, 4, 1" % t0); b("v_lshl_add_u32 v%d, v%d, 4, v%d" % (AD + 2, t0, AD + 2))
    b("v_bfe_u32 v%d, v1, 1, 1" % t0); b("v_lshl_add_u32 v%d, v%d, 3, v%d" % (AD + 2, t0, AD + 2))
    b("v_add_u32 v%d, 0x2000, v%d" % (AD + 2, AD + 2)); b("v_add_u32 v%d, 0x10000, v%d" % (AD + 3, AD + 2))
    b("s_lshl_b32 s%d, s%d, 16" % (sT2, sTT)); b("s_lshl_b32 s%d, s%d, 15" % (sT3, sT0)); b("s_add_u32 s%d, s%d, s%d" % (sT2, sT2, sT3))
    b("s_lshl_b32 s%d, s%d, 7" % (sT3, sCT)); b("s_add_u32 s%d, s%d, s%d" % (sT2, sT2, sT3))
    b("s_lshl_b32 s%d, s%d, 6" % (sT3, sT1)); b("s_add_u32 s%d, s%d, s%d" % (sT2, sT2, sT3))
    b("v_and_b32 v%d, 31, v1" % t0); b("v_lshlrev_b32 v%d, 10, v%d" % (t0, t0)); b("v_lshl_add_u32 v%d, v%d, 5, v%d" % (t0, t1, t0))
    b("v_add_u32 v%d, s%d, v%d" % (AD + 12, sT2, t0))
    b("buffer_load_dwordx4 %s, v%d, %s, 0 offen" % (v(AD + 4, 4), AD + 12, srd(SX)), "res")
    b("buffer_load_dwordx4 %s, v%d, %s, 0 offen offset:16" % (v(AD + 8, 4), AD + 12, srd(SX)), "res")
    s0 = n1 - 16
    for j, it in enumerate(setup): fill.setdefault(s0 - 1 + j * 10 // len(setup), []).insert(0, it) if False else None
    pos2 = [s0 + j * 10 // len(setup) for j in range(len(setup))]
    su = {}
    for p_, it in zip(pos2, setup): su.setdefault(p_, []).append(it)
    for p_, its in su.items(): fill[p_] = its + fill.get(p_, [])
    for n in range(20, 56):
        slot = n & 7; win = slot >> 2; base = (slot & 3) * SLOT
        acc = v(Y if n < 48 else S_, 16)
        for kk in range(4):
            m = len(ops); fb = WF + 4 * (m & 7); hb = HB + 4 * (m & 7)
            ops.append(dict(slab=n, reads=[("ds_read_b64_tr_b16 %s, v%d offset:%d" % (v(fb, 2), AD + 2 + win, base + kk * 2048), ("f", m)),
                                           ("ds_read_b64_tr_b16 %s, v%d offset:%d" % (v(fb + 2, 2), AD + 2 + win, base + kk * 2048 + 1024), ("f", m)),
                                           ("ds_read_b128 %s, v%d offset:%d" % (v(hb, 4), AD + win, base + kk * 1024), ("f", m))],
                            waits=[("f", m)], la=4,
                            mfma="v_mfma_f32_32x32x16_bf16 %s, %s, %s, %s" % (acc, v(fb, 4), v(hb, 4), "0" if (n in (20, 48) and kk == 0) else acc)))
    G = XR + 80; XF = XR + 96; E = []
    for j in range(16): E.append(I("v_mul_f32 v%d, s%d, v%d" % (G + j, sL2E, Y + j)))
    for j in range(16): E.append(I("v_exp_f32 v%d, -v%d" % (G + j, G + j)))
    for j in range(16): E.append(I("v_add_f32 v%d, 1.0, v%d" % (G + j, G + j)))
    for j in range(16): E.append(I("v_rcp_f32 v%d, v%d" % (G + j, G + j)))
    for j in range(16): E.append(I("v_mul_f32 v%d, v%d, v%d" % (G + j, G + j, Y + j)))
    E.append(W(vm=["res"]))
    for j in range(8):
        E.append(I("v_lshlrev_b32 v%d, 16, v%d" % (XF + 2 * j, AD + 4 + j))); E.append(I("v_and_b32 v%d, 0xffff0000, v%d" % (XF + 2 * j + 1, AD + 4 + j)))
    e0 = n1 + 28 * 4 + 1
    for j, it in enumerate(E): fill.setdefault(e0 + j * 24 // len(E), []).append(it)
    issued = 0; bar_done = 0
    def issue_reads(upto_fn):
        nonlocal issued, bar_done
        while issued < len(ops) and upto_fn(issued):
            o = ops[issued]
            if o["slab"] > bar_done:
                bar_done = o["slab"]
                for it in pre.get(bar_done, []): P.append(it)
                a("s_barrier")
            for t, tag in o["reads"]: a(t, tag)
            issued += 1
    P.append(W(lg=[("xn", 31)]))
    a("s_barrier")
    issue_reads(lambda m: m < ops[m]["la"])
    for m, o in enumerate(ops):
        P.append(W(lg=o["waits"]))
        a(o["mfma"])
        issue_reads(lambda k: k - ops[k]["la"] <= m)
        for it in fill.get(m, []): P.append(it)
    for j in range(16): a("v_fma_f32 v%d, v%d, v%d, v%d" % (G + j, S_ + j, G + j, XF + j))
    for j in range(8): a("v_cvt_pk_bf16_f32 v%d, v%d, v%d" % (XF + j, G + 2 * j, G + 2 * j + 1))
    a("buffer_store_dwordx4 %s, v%d, %s, 0 offen" % (v(XF, 4), AD + 12, srd(SOUT)))
    a("buffer_store_dwordx4 %s, v%d, %s, 0 offen offset:16" % (v(XF + 4, 4), AD + 12, srd(SOUT)))
    a("s_endpgm")
    return P

_lbl = [0]
def gate(P, vaddr, srdb, off, tag, vdst, want):
    _lbl[0] += 1; n = _lbl[0]
    P.append(W(vm=[tag]))
    P.append(I("v_readfirstlane_b32 s%d, v%d" % (sT5, vdst)))
    P.append(I("s_cmp_eq_u32 s%d, %d" % (sT5, want)))
    P.append(I("s_cbranch_scc1 L_ok%d" % n))
    P.append(L("    s_mov_b32 s%d, 0" % sSPIN))
    P.append(L("L_spin%d:" % n))
    P.append(L("    s_sleep 1"))
    P.append(L("    buffer_load_dword v%d, v%d, %s, 0 offen offset:%d sc1" % (vdst, vaddr, srd(srdb), off)))
    P.append(L("    s_add_u32 s%d, s%d, 1" % (sSPIN, sSPIN)))
    P.append(L("    s_waitcnt vmcnt(0)"))
    P.append(L("    v_readfirstlane_b32 s%d, v%d" % (sT5, vdst)))
    P.append(L("    s_cmp_ge_u32 s%d, 0x40000" % sSPIN))
    P.append(L("    s_cbranch_scc1 L_ok%d" % n))
    P.append(L("    s_cmp_eq_u32 s%d, %d" % (sT5, want)))
    P.append(L("    s_cbranch_scc0 L_spin%d" % n))
    P.append(L("L_ok%d:" % n))

def signal(B, vaddr, off):
    B.append(I("s_mov_b64 exec, 1"))
    B.append(I("buffer_atomic_add v%d, v%d, %s, 0 offen offset:%d sc1" % (H_ONE, vaddr, srd(SWS), off)))
    B.append(I("s_mov_b64 exec, -1"))

H_P = 6
H_A, H_B, H_B2 = 12, 13, 14
H_ONE, H_ZERO, H_CMINE, H_CCONS, H_CKV, H_POLL, H_STAMP = 15, 16, 17, 18, 19, 20, 21
H_WPHI = 22
H_RK, H_RV, H_WP, H_RP, H_ST, H_ZA = 24, 25, 26, 27, 28, 29
H_ONES = 32
H_KF = 36
H_T = 52
H_ACC = 100
H_PHI = 116
def softmax_unit(B, u, dst):
    b = lambda t, tag=None: B.append(I(t, tag))
    Pm = H_T; R = H_T + 8; Ev = H_T + 16
    for t in range(2):
        b("v_mfma_f32_16x16x16_bf16 %s, %s, %s, 0" % (v(Pm + 4 * t, 4), v(H_WPHI, 2), v(H_KF + 4 * u + 2 * t, 2)))
    for t in range(2):
        p = Pm + 4 * t
        b("v_max3_f32 v%d, v%d, v%d, v%d" % (R + 2 * t, p, p + 1, p + 2))
        b("v_max3_f32 v%d, -v%d, -v%d, -v%d" % (R + 2 * t + 1, p, p + 1, p + 2))
    for t in range(2):
        p = Pm + 4 * t
        b("v_max_f32 v%d, v%d, v%d" % (R + 2 * t, R + 2 * t, p + 3))
        b("v_max_f32_e64 v%d, v%d, -v%d" % (R + 2 * t + 1, R + 2 * t + 1, p + 3))
    def allred(op, mid):
        b("v_permlane32_swap_b32 v%d, v%d" % (R, R + 1)); b("v_permlane32_swap_b32 v%d, v%d" % (R + 2, R + 3))
        b("%s v%d, v%d, v%d" % (op, R, R, R + 1)); b("%s v%d, v%d, v%d" % (op, R + 2, R + 2, R + 3))
        b("v_permlane16_swap_b32 v%d, v%d" % (R, R + 2))
        b("%s v%d, v%d, v%d" % (op, R, R, R + 2))
        b(mid)
        b("v_mov_b32 v%d, v%d" % (R + 2, R))
        b("v_permlane16_swap_b32 v%d, v%d" % (R, R + 2))
        b("v_mov_b32 v%d, v%d" % (R + 1, R)); b("v_mov_b32 v%d, v%d" % (R + 3, R + 2))
        b("v_permlane32_swap_b32 v%d, v%d" % (R, R + 1)); b("v_permlane32_swap_b32 v%d, v%d" % (R + 2, R + 3))
    allred("v_max_f32", "v_mul_f32 v%d, s%d, v%d" % (R, sL2E, R))
    for t in range(2):
        for j in range(4):
            b("v_fma_f32 v%d, v%d, s%d, -v%d" % (Ev + 8 * t + j, Pm + 4 * t + j, sL2E, R + 2 * t))
            b("v_fma_f32 v%d, -v%d, s%d, -v%d" % (Ev + 8 * t + 4 + j, Pm + 4 * t + j, sL2E, R + 2 * t + 1))
    for j in range(16): b("v_exp_f32 v%d, v%d" % (Ev + j, Ev + j))
    for q in range(4): b("v_add_f32 v%d, v%d, v%d" % (R + q, Ev + 4 * q, Ev + 4 * q + 1))
    for q in range(4): b("v_add_f32 v%d, v%d, v%d" % (R + 4 + q, Ev + 4 * q + 2, Ev + 4 * q + 3))
    for q in range(4): b("v_add_f32 v%d, v%d, v%d" % (R + q, R + q, R + 4 + q))
    allred("v_add_f32", "v_rcp_f32 v%d, v%d" % (R, R))
    for j in range(16): b("v_mul_f32 v%d, v%d, v%d" % (Ev + j, Ev + j, R + j // 4))
    for j in range(8): b("v_cvt_pk_bf16_f32 v%d, v%d, v%d" % (dst + j, Ev + 2 * j, Ev + 2 * j + 1))

def helper(ty):
    P = []; a = lambda t, tag=None: P.append(I(t, tag))
    def stamp(k):
        if CFG["stamps"]:
            a("s_memtime %s" % s(sTM + 2, 2)); P.append(W(lg="all"))
            a("s_sub_u32 s%d, s%d, s%d" % (sTM + 2, sTM + 2, sTM)); a("v_writelane_b32 v%d, s%d, %d" % (H_STAMP, sTM + 2, k))
    if CFG["stamps"]: a("v_mov_b32 v%d, 0" % H_STAMP)
    stamp(60)
    fcols(a, ty)
    a("s_mov_b32 s%d, 3584" % sT3); a("s_mov_b32 s%d, 3072" % sT4)
    ph = PH[ty]; gu = 0; info = []
    for pi, (kind, e) in enumerate(ph):
        stride = 3584 if e == "gu" else 3072
        rows = 16 if kind == "P4" else 32
        a("s_mul_i32 s%d, s%d, %d" % (sT0, sW3, rows * stride))
        ca, cb = sPH + 2 * pi, sPH + 2 * pi + 1
        if e == "gu":
            a("s_lshl_b32 s%d, s%d, 1" % (sT1, sKS + gu)); a("s_add_u32 s%d, s%d, s%d" % (ca, sT0, sT1)); a("s_mov_b32 s%d, s%d" % (cb, ca)); gu += 1
            sa, sb = SG, SU
        elif e == "kv":
            a("s_add_u32 s%d, s%d, s%d" % (ca, sT0, sCA)); a("s_add_u32 s%d, s%d, s%d" % (cb, sT0, sCB)); sa = sb = SQKV
        else:
            a("s_lshl_b32 s%d, s%d, 7" % (sT1, sGR)); a("s_add_u32 s%d, s%d, s%d" % (ca, sT0, sT1)); a("s_add_u32 s%d, s%d, 64" % (cb, ca)); sa = sb = SQKV
        if pi > 0:
            (p4_voffs if kind == "P4" else p2_voffs)(a, H_P + 2 * pi, H_P + 2 * pi + 1, "s%d" % (sT3 if e == "gu" else sT4), H_T)
        info.append((kind, stride, sa, sb))
    a("s_lshl_b32 s%d, s%d, 12" % (sCA, sW3))
    a("s_lshl_b32 s%d, s%d, 11" % (sCB, sW3))
    sl = slabs_of(ty)
    def dma(n):
        slot = (n & 7) * SLOT
        if n < 20:
            pi, kind, sg = sl[n]; _, stride, sa, sb = info[pi]
            if kind == "P4":
                a("s_lshl_b32 s%d, s%d, 1" % (sT0, sR1)); a("s_add_u32 s%d, s%d, %d" % (sT0, sT0, sg)); a("s_and_b32 s%d, s%d, 7" % (sT0, sT0))
                a("s_mul_i32 s%d, s%d, %d" % (sT0, sT0, 64 * stride)); step = 8 * stride
            else:
                a("s_add_u32 s%d, s%d, %d" % (sT0, sR1, sg)); a("s_and_b32 s%d, s%d, 3" % (sT0, sT0))
                a("s_mul_i32 s%d, s%d, %d" % (sT0, sT0, 128 * stride)); step = 16 * stride
            for p in range(4):
                a("s_add_u32 m0, s%d, %d" % (sCA, slot + p * 1024))
                if p == 2: a("s_add_u32 s%d, s%d, %d" % (sT0, sT0, step))
                a("s_add_u32 s%d, s%d, s%d" % (sT1, sT0, sPH + 2 * pi + (p & 1)))
                a("buffer_load_dwordx4 v%d, %s, s%d offen lds" % (H_P + 2 * pi + (p & 1), srd(sb if p & 1 else sa), sT1), ("slab", n))
        else:
            k = n - 20
            if k < 24 or k >= 28:
                a("s_add_u32 s%d, s%d, %d" % (sT0, sR2, k)); a("s_and_b32 s%d, s%d, 7" % (sT0, sT0))
            if k < 8: a("s_lshl_b32 s%d, s%d, 1" % (sT0, sT0))
            elif k < 16:
                a("s_lshr_b32 s%d, s%d, 1" % (sT1, sT0)); a("s_and_b32 s%d, s%d, 1" % (sT0, sT0)); a("s_mul_i32 s%d, s%d, 3" % (sT1, sT1))
                a("s_lshl_b32 s%d, s%d, 1" % (sT0, sT0)); a("s_add_u32 s%d, s%d, s%d" % (sT0, sT0, sT1)); a("s_add_u32 s%d, s%d, 16" % (sT0, sT0))
            elif k < 24:
                a("s_lshl_b32 s%d, s%d, 1" % (sT0, sT0)); a("s_add_u32 s%d, s%d, 1" % (sT0, sT0))
            elif k < 28:
                a("s_add_u32 s%d, s%d, %d" % (sT0, sR2, k)); a("s_and_b32 s%d, s%d, 3" % (sT0, sT0)); a("s_mul_i32 s%d, s%d, 3" % (sT0, sT0)); a("s_add_u32 s%d, s%d, 17" % (sT0, sT0))
            a("s_lshl_b32 s%d, s%d, 16" % (sT1, sT0))
            a("s_lshl_b32 s%d, s%d, 12" % (sT0, sT0))
            if k >= 28: a("s_add_u32 s%d, s%d, %d" % (sT0, sT0, 28 * 4096))
            wb = srd(SWD if k < 28 else SWO)
            a("s_add_u32 m0, s%d, %d" % (sCB, slot + 8192))
            a("buffer_load_dwordx4 v%d, %s, s%d offen lds" % (H_B, wb, sT1), ("slab", n))
            a("buffer_load_dwordx4 v%d, %s, s%d offen offset:1024 lds" % (H_B2, wb, sT1), ("slab", n))
            a("s_add_u32 m0, s%d, %d" % (sCB, slot))
            a("buffer_load_dwordx4 v%d, %s, s%d offen sc1 lds" % (H_A, srd(SWS), sT0), ("slab", n))
            a("buffer_load_dwordx4 v%d, %s, s%d offen offset:1024 sc1 lds" % (H_A, srd(SWS), sT0), ("slab", n))
    def init():
        a("v_mov_b32 v%d, 1" % H_ONE); a("v_mov_b32 v%d, 0" % H_ZERO)
        a("v_lshlrev_b32 v%d, 8, v1" % H_T)
        a("s_add_u32 s%d, s2, s%d" % (sT0, sW3)); a("s_cmp_lg_u32 s%d, 0" % sT0); a("s_cbranch_scc1 L_noinit%d" % ty)
        P.append(L("    buffer_store_dword v%d, v%d, %s, 0 offen sc1" % (H_ZERO, H_T, srd(SWS))))
        P.append(L("    s_movk_i32 s%d, 0x4000" % sT0))
        P.append(L("    buffer_store_dword v%d, v%d, %s, s%d offen sc1" % (H_ZERO, H_T, srd(SWS), sT0)))
        P.append(L("L_noinit%d:" % ty))
    def init2():
        a("s_add_u32 s%d, s2, s%d" % (sT0, sW3)); a("s_cmp_lg_u32 s%d, 0" % sT0); a("s_cbranch_scc1 L_noinitb%d" % ty)
        P.append(L("    buffer_store_dword v%d, v%d, %s, 0 offen sc1" % (H_ONE, H_ZERO, srd(SDBG))))
        P.append(L("L_noinitb%d:" % ty))
    B0 = []; b = lambda t, tag=None: B0.append(I(t, tag))
    t0, t1, t2 = H_T, H_T + 1, H_T + 2
    b("s_lshl_b32 s%d, s%d, 1" % (sT0, sTT)); b("s_lshr_b32 s%d, s%d, 1" % (sT1, sW3)); b("s_add_u32 s%d, s%d, s%d" % (sT0, sT0, sT1))
    b("s_mul_i32 s%d, s%d, 147456" % (sT0, sT0)); b("s_and_b32 s%d, s%d, 1" % (sT1, sW3)); b("s_lshl_b32 s%d, s%d, 11" % (sT1, sT1))
    b("s_add_u32 s%d, s%d, s%d" % (sT0, sT0, sT1)); b("s_add_u32 s%d, s%d, %d" % (sT0, sT0, WS_HO))
    b("v_lshlrev_b32 v%d, 4, v1" % H_A); b("v_add_u32 v%d, s%d, v%d" % (H_A, sT0, H_A))
    b("v_lshrrev_b32 v%d, 3, v1" % t0); b("v_and_b32 v%d, 2, v%d" % (t1, t0)); b("v_lshlrev_b32 v%d, 1, v%d" % (t1, t1))
    b("v_and_b32 v%d, 7, v1" % t2); b("v_xor_b32 v%d, v%d, v%d" % (t2, t2, t1))
    b("v_lshlrev_b32 v%d, 10, v%d" % (t0, t0)); b("v_lshl_add_u32 v%d, v%d, 4, v%d" % (H_B, t2, t0))
    b("s_lshl_b32 s%d, s%d, 14" % (sT0, sW3)); b("s_lshl_b32 s%d, s%d, 7" % (sT1, sCT)); b("s_add_u32 s%d, s%d, s%d" % (sT0, sT0, sT1))
    b("v_add_u32 v%d, s%d, v%d" % (H_B, sT0, H_B)); b("v_add_u32 v%d, %d, v%d" % (H_B2, 8192 - 1024, H_B))
    b("s_lshl_b32 s%d, s%d, 10" % (sT0, sI)); b("v_mov_b32 v%d, s%d" % (H_CMINE, sT0))
    b("s_lshr_b32 s%d, s%d, 1" % (sT0, sTT)); b("s_lshl_b32 s%d, s%d, 10" % (sT0, sT0)); b("v_mov_b32 v%d, s%d" % (H_CCONS, sT0))
    b("s_lshl_b32 s%d, s%d, 2" % (sT2, sGR)); b("s_add_u32 s%d, s%d, s%d" % (sT2, sT2, sW3))
    b("s_lshl_b32 s%d, s%d, 8" % (sT0, sT2)); b("s_add_u32 s%d, s%d, 0x4000" % (sT0, sT0)); b("v_mov_b32 v%d, s%d" % (H_CKV, sT0))
    b("v_lshrrev_b32 v%d, 4, v1" % t0); b("v_and_b32 v%d, 15, v1" % t1)
    b("v_lshlrev_b32 v%d, 7, v%d" % (t2, t0)); b("v_lshl_add_u32 v%d, v%d, 1, v%d" % (t2, t2 - 1, t2))
    b("s_lshl_b32 s%d, s%d, 9" % (sT0, sT2))
    for j in range(4):
        b("buffer_load_ushort v%d, v%d, %s, s%d offen offset:%d" % (H_ACC + j, t2, srd(SPHI), sT0, 32 * j), "wphi")
    B0a = B0; B0 = []
    if ty == 0: b("s_lshl_b32 s%d, s%d, 11" % (sT0, sW3))
    else:
        b("s_and_b32 s%d, s%d, 1" % (sT0, sW3)); b("s_lshl_b32 s%d, s%d, 11" % (sT0, sT0)); b("s_lshr_b32 s%d, s%d, 1" % (sT1, sW3))
        b("s_lshl_b32 s%d, s%d, 10" % (sT1, sT1)); b("s_add_u32 s%d, s%d, s%d" % (sT0, sT0, sT1))
    b("s_add_u32 s%d, s%d, %d" % (sT0, sT0, EX))
    t3 = H_T + 3
    b("v_and_b32 v%d, 1, v%d" % (t3, t0)); b("v_lshlrev_b32 v%d, 9, v%d" % (H_RK, t3)); b("v_lshl_add_u32 v%d, v%d, 4, v%d" % (H_RK, t1, H_RK))
    b("v_lshrrev_b32 v%d, 5, v1" % t3); b("v_lshl_add_u32 v%d, v%d, 3, v%d" % (H_RK, t3, H_RK)); b("v_add_u32 v%d, s%d, v%d" % (H_RK, sT0, H_RK))
    if ty == 0:
        b("v_and_b32 v%d, 1, v1" % t3); b("v_lshlrev_b32 v%d, 9, v%d" % (H_RV, t3)); b("v_lshl_add_u32 v%d, v%d, 7, v%d" % (H_RV, t0, H_RV))
        b("v_bfe_u32 v%d, v1, 2, 2" % t3); b("v_lshl_add_u32 v%d, v%d, 4, v%d" % (H_RV, t3, H_RV))
        b("v_bfe_u32 v%d, v1, 1, 1" % t2); b("v_lshl_add_u32 v%d, v%d, 3, v%d" % (H_RV, t2, H_RV)); b("v_add_u32 v%d, s%d, v%d" % (H_RV, sT0, H_RV))
        b("v_lshlrev_b32 v%d, 4, v1" % H_WP); b("v_add_u32 v%d, s%d, v%d" % (H_WP, sT0, H_WP))
        b("v_lshrrev_b32 v%d, 5, v1" % t2); b("v_lshlrev_b32 v%d, 13, v%d" % (H_RP, t2)); b("v_lshl_add_u32 v%d, v%d, 4, v%d" % (H_RP, t3, H_RP))
        b("v_and_b32 v%d, 3, v1" % t2); b("v_lshl_add_u32 v%d, v%d, 8, v%d" % (H_RP, t2, H_RP))
        b("v_bfe_u32 v%d, v1, 4, 1" % t2); b("v_lshl_add_u32 v%d, v%d, 7, v%d" % (H_RP, t2, H_RP)); b("v_add_u32 v%d, s%d, v%d" % (H_RP, sT0, H_RP))
        for j in range(4): b("v_mov_b32 v%d, 0x3f803f80" % (H_ONES + j))
        b("s_lshl_b32 s%d, s%d, 4" % (sT0, sT2)); b("s_add_u32 s%d, s%d, s%d" % (sT0, sT0, sI))
        b("s_lshl_b32 s%d, s%d, 11" % (sT1, sT0)); b("s_add_u32 s%d, s%d, %d" % (sT1, sT1, WS_KV))
        b("v_lshlrev_b32 v%d, 4, v1" % H_ST); b("v_add_u32 v%d, s%d, v%d" % (H_ST, sT1, H_ST))
        b("s_lshl_b32 s%d, s%d, 7" % (sT1, sT0)); b("s_add_u32 s%d, s%d, %d" % (sT1, sT1, WS_Z))
        b("v_lshlrev_b32 v%d, 6, v%d" % (H_ZA, t1)); b("v_lshl_add_u32 v%d, v%d, 4, v%d" % (H_ZA, t0, H_ZA)); b("v_add_u32 v%d, s%d, v%d" % (H_ZA, sT1, H_ZA))
    else:
        b("s_lshl_b32 s%d, s%d, 15" % (sT1, sT2)); b("s_add_u32 s%d, s%d, %d" % (sT1, sT1, WS_KV))
        b("v_lshlrev_b32 v%d, 4, v1" % H_RV); b("v_add_u32 v%d, s%d, v%d" % (H_RV, sT1, H_RV))
        b("s_lshl_b32 s%d, s%d, 11" % (sT1, sT2)); b("s_add_u32 s%d, s%d, %d" % (sT1, sT1, WS_Z))
        b("v_lshlrev_b32 v%d, 7, v%d" % (H_ZA, t1)); b("v_lshl_add_u32 v%d, v%d, 4, v%d" % (H_ZA, t0, H_ZA)); b("v_add_u32 v%d, s%d, v%d" % (H_ZA, sT1, H_ZA))
        b("s_mul_i32 s%d, s%d, 576" % (sT1, sI)); b("s_add_u32 s%d, s%d, s%d" % (sT1, sT1, sT2)); b("s_add_u32 s%d, s%d, 112" % (sT1, sT1))
        b("s_lshl_b32 s%d, s%d, 10" % (sT1, sT1)); b("s_add_u32 s%d, s%d, %d" % (sT1, sT1, WS_HO))
        b("v_and_b32 v%d, 1, v%d" % (t2, t0)); b("v_lshlrev_b32 v%d, 9, v%d" % (H_ST, t2)); b("v_lshl_add_u32 v%d, v%d, 8, v%d" % (H_ST, t3, H_ST))
        b("v_lshl_add_u32 v%d, v%d, 4, v%d" % (H_ST, t1, H_ST)); b("v_add_u32 v%d, s%d, v%d" % (H_ST, sT1, H_ST))
    B = []; b = lambda t, tag=None: B.append(I(t, tag))
    for u in range(4):
        for t in range(2):
            b("ds_read_b64 %s, v%d offset:%d" % (v(H_KF + 4 * u + 2 * t, 2), H_RK, u * 8192 + t * 256), "kf")
    B.append(W(vm=["wphi"], lg=["kf"]))
    for j in range(2): b("v_lshl_or_b32 v%d, v%d, 16, v%d" % (H_WPHI + j, H_ACC + 2 * j + 1, H_ACC + 2 * j))
    if ty == 0:
        bg_start = 9
        PHI = H_T + 32; FR = H_PHI
        for u in range(4):
            softmax_unit(B, u, PHI)
            so = (u & 1) * 16384
            b("ds_write_b128 v%d, %s offset:%d" % (H_WP, v(PHI, 4), so), ("pw", u)); b("ds_write_b128 v%d, %s offset:%d" % (H_WP, v(PHI + 4, 4), so + 8192), ("pw", u))
            for q in range(2): b("ds_read_b64_tr_b16 %s, v%d offset:%d" % (v(FR + 2 * q, 2), H_RV, u * 8192 + 1024 + q * 64), ("pr", u))
            for sg in range(2):
                for q in range(2): b("ds_read_b64_tr_b16 %s, v%d offset:%d" % (v(FR + 4 + 4 * sg + 2 * q, 2), H_RP, so + q * 64 + sg * 8), ("pr", u))
            B.append(W(lg=[("pr", u)]))
            for sg in range(2):
                c = v(H_ACC + 4 * sg, 4); z = v(H_ACC + 8 + 4 * sg, 4)
                b("v_mfma_f32_16x16x32_bf16 %s, %s, %s, %s" % (c, v(FR + 4 + 4 * sg, 4), v(FR, 4), "0" if u == 0 else c))
                b("v_mfma_f32_16x16x32_bf16 %s, %s, %s, %s" % (z, v(FR + 4 + 4 * sg, 4), v(H_ONES, 4), "0" if u == 0 else z))
        b("v_and_b32 v%d, 15, v1" % H_T); b("v_cmp_eq_u32 vcc, 1, v%d" % H_T)
        for j in range(4): b("v_cndmask_b32 v%d, v%d, v%d, vcc" % (H_ACC + 8 + j, H_ACC + 8 + j, H_ACC + 12 + j))
        b("buffer_store_dwordx4 %s, v%d, %s, 0 offen sc1" % (v(H_ACC, 4), H_ST, srd(SWS)), "part")
        b("buffer_store_dwordx4 %s, v%d, %s, 0 offen offset:1024 sc1" % (v(H_ACC + 4, 4), H_ST, srd(SWS)), "part")
        B.append([I("s_mov_b32 exec_lo, 0x00030003"), I("s_mov_b32 exec_hi, 0x00030003"),
                  I("buffer_store_dwordx4 %s, v%d, %s, 0 offen sc1" % (v(H_ACC + 8, 4), H_ZA, srd(SWS)), "part"), I("s_mov_b64 exec, -1")])
        B.append("step"); B.append("step")
        g = [W(vm=["part"])]; signal(g, H_CKV, 0); B.append(g)
    else:
        bg_start = 13
        for u in range(4): softmax_unit(B, u, H_PHI + 8 * u)
        b("buffer_load_dword v%d, v%d, %s, 0 offen sc1" % (H_POLL + 10, H_CKV, srd(SWS)), "pollkv")
        B.append("step")
        g = []; gate(g, H_CKV, SWS, 0, "pollkv", H_POLL + 10, 16); B.append(g)
        LD = 148; Z = H_ACC + 8
        b("buffer_load_dwordx4 %s, v%d, %s, 0 offen sc1" % (v(Z, 4), H_ZA, srd(SWS)), "zl")
        b("buffer_load_dwordx4 %s, v%d, %s, 0 offen offset:64 sc1" % (v(Z + 4, 4), H_ZA, srd(SWS)), "zl")
        def ld(m):
            d = H_ACC if m == 0 else LD + 8 * ((m - 1) % 12)
            B.append([I("s_movk_i32 s%d, %d" % (sT5, (m >> 1) * 4096)),
                      I("buffer_load_dwordx4 %s, v%d, %s, s%d offen offset:%d sc1" % (v(d, 4), H_RV, srd(SWS), sT5, (m & 1) * 2048), ("pl", m)),
                      I("buffer_load_dwordx4 %s, v%d, %s, s%d offen offset:%d sc1" % (v(d + 4, 4), H_RV, srd(SWS), sT5, (m & 1) * 2048 + 1024), ("pl", m))])
        for m in range(13): ld(m)
        B.append("step")
        B.append(W(vm=["zl"]))
        for k in (8, 4, 2, 1):
            for j in range(8): b("v_add_f32_dpp v%d, v%d, v%d row_ror:%d row_mask:0xf bank_mask:0xf" % (Z + j, Z + j, Z + j, k))
        for m in range(1, 16):
            B.append(W(vm=[("pl", m)]))
            d = LD + 8 * ((m - 1) % 12)
            for j in range(8): b("v_add_f32 v%d, v%d, v%d" % (H_ACC + j, H_ACC + j, d + j))
            if m + 12 < 16: ld(m + 12)
        KV = H_KF; ZB = H_KF + 4
        for j in range(4): b("v_cvt_pk_bf16_f32 v%d, v%d, v%d" % (KV + j, H_ACC + 2 * j, H_ACC + 2 * j + 1))
        for j in range(4): b("v_cvt_pk_bf16_f32 v%d, v%d, v%d" % (ZB + j, Z + 2 * j, Z + 2 * j + 1))
        for u in range(4):
            N = LD + 24 * u
            for t in range(2):
                b("v_mfma_f32_16x16x32_bf16 %s, %s, %s, 0" % (v(N + 8 * t, 4), v(KV, 4), v(H_PHI + 8 * u + 4 * t, 4)))
                b("v_mfma_f32_16x16x32_bf16 %s, %s, %s, 0" % (v(N + 8 * t + 4, 4), v(ZB, 4), v(H_PHI + 8 * u + 4 * t, 4)))
        for u in range(4):
            N = LD + 24 * u; O = N + 16
            for t in range(2): b("v_add_f32 v%d, 0x358637bd, v%d" % (N + 8 * t + 4, N + 8 * t + 4))
            for t in range(2): b("v_rcp_f32 v%d, v%d" % (N + 8 * t + 4, N + 8 * t + 4))
            for t in range(2):
                for j in range(4): b("v_mul_f32 v%d, v%d, v%d" % (N + 8 * t + j, N + 8 * t + j, N + 8 * t + 4))
            for t in range(2):
                for j in range(2): b("v_cvt_pk_bf16_f32 v%d, v%d, v%d" % (O + 2 * t + j, N + 8 * t + 2 * j, N + 8 * t + 2 * j + 1))
            b("v_permlane32_swap_b32 v%d, v%d" % (O, O + 2)); b("v_permlane32_swap_b32 v%d, v%d" % (O + 1, O + 3))
            B.append([I("s_mov_b32 s%d, %d" % (sT5, u * 147456)),
                      I("buffer_store_dwordx4 %s, v%d, %s, s%d offen sc1" % (v(O, 4), H_ST, srd(SWS), sT5), "ost")])
        for _ in range(3): B.append("step")
        g = [W(vm=["ost"])]; signal(g, H_CMINE, C_O * 256); B.append(g)
    issue = {}
    for n in range(7, 20): issue.setdefault(n - 6, []).append(n)
    for k, st in enumerate(CFG["feed"]): issue.setdefault(st, []).append(20 + k)
    for n in range(20 + len(CFG["feed"]), 56): issue.setdefault(n - CFG["ahead2"], []).append(n)
    gates = {20: (C_H1Q, 8), 28: (C_H1KV, 8), 36: (C_H2, 16), 48: (C_O, 32)}
    step_of = {n: st for st, l in issue.items() for n in l}
    polls = {step_of[n] - 1: n for n in gates}
    first_gu_end = [n for n, (pi, k, sg) in enumerate(sl) if PH[ty][pi][1] == "gu" and sg == 7][0]
    sig = {first_gu_end + 4: C_H1Q if ty == 1 else C_H1KV, CFG["h2wait"]: C_H2}
    assert CFG["h2wait"] <= step_of[36] and 19 <= step_of[28] and 11 <= step_of[20]
    init()
    a("s_barrier")
    stamp(61)
    for n in range(2, 7): dma(n)
    bi = 0
    for n in range(1, 56):
        if n >= 2: P.append(W(vm=[("slab", n)]))
        a("s_barrier")
        stamp(n)
        if n in sig:
            a("s_cmp_lg_u32 s%d, 0" % sW3); a("s_cselect_b64 exec, 0, 1")
            a("s_cbranch_scc1 L_nosig%d_%d" % (ty, n))
            P.append(L("    buffer_atomic_add v%d, v%d, %s, 0 offen offset:%d sc1" % (H_ONE, H_CMINE, srd(SWS), sig[n] * 256)))
            P.append(L("L_nosig%d_%d:" % (ty, n)))
            a("s_mov_b64 exec, -1")
        for m in issue.get(n, []):
            if m in gates: gate(P, H_CCONS, SWS, gates[m][0] * 256, ("poll", m), H_POLL, gates[m][1])
            dma(m)
        if n in polls:
            a("buffer_load_dword v%d, v%d, %s, 0 offen offset:%d sc1" % (H_POLL, H_CCONS, srd(SWS), gates[polls[n]][0] * 256), ("poll", polls[n]))
        if n == 1: P += B0a
        if n == 2: init2(); P += B0
        if n == 5: a("buffer_load_dword v%d, v%d, %s, 0 offen sc1" % (H_POLL, H_ZERO, srd(SDBG)), "pollinit")
        if n == 7: gate(P, H_ZERO, SDBG, 0, "pollinit", H_POLL, 1)
        if n >= bg_start:
            budget = CFG["chunk"] if n < 20 else CFG["chunk2"]
            while bi < len(B) and budget > 0:
                it = B[bi]; bi += 1
                if it == "step": break
                if isinstance(it, list): P += it; budget -= len(it)
                else: P.append(it); budget -= 1
            if bi == len(B) and budget > -9999:
                sys.stderr.write("type %d: background done in step %d\n" % (ty, n)); bi += 1
                assert n < step_of[48]
    assert bi > len(B)
    if CFG["stamps"]:
        stamp(62)
        a("s_lshl_b32 s%d, s2, 8" % sT0); a("s_add_u32 s%d, s%d, %d" % (sT0, sT0, WS_ST))
        a("v_lshlrev_b32 v%d, 2, v1" % H_T)
        a("s_cmp_lg_u32 s%d, 0" % sW3); a("s_cbranch_scc1 L_exit")
        a("buffer_store_dword v%d, v%d, %s, s%d offen" % (H_STAMP, H_T, srd(SWS), sT0))
    a("s_endpgm")
    return P

def main():
    hdr = open("cdna_kernels/%s.s.ref" % NAME).read().split("; Override launch geometry")[0]
    out = [hdr.rstrip(), "; @launch grid=(256,1,1) block=(512,1,1) lds=163840",
           '.amdgcn_target "amdgcn-amd-amdhsa--gfx950"', ".text", ".globl %s_kernel" % NAME, ".p2align 8",
           ".type %s_kernel,@function" % NAME, "%s_kernel:" % NAME]
    t, st = finalize(prologue()); out += t
    def branch_ty(lbl): return [I("s_cmp_eq_u32 s%d, 1" % sTY), I("s_cbranch_scc1 %s" % lbl)]
    t, _ = finalize(branch_ty("L_comp1") + compute(0), st.clone()); out += t
    out.append("L_comp1:"); t, _ = finalize(compute(1), st.clone()); out += t
    out.append("L_helper:"); t, _ = finalize(branch_ty("L_help1") + helper(0), st.clone()); out += t
    out.append("L_help1:"); t, _ = finalize(helper(1), st.clone()); out += t
    out += ["L_exit:", "    s_endpgm", '.section .rodata,"a"', ".p2align 6", ".amdhsa_kernel %s_kernel" % NAME,
            "  .amdhsa_next_free_vgpr 256", "  .amdhsa_next_free_sgpr 96", "  .amdhsa_accum_offset 256",
            "  .amdhsa_group_segment_fixed_size 0", "  .amdhsa_kernarg_size 88", "  .amdhsa_user_sgpr_count 2",
            "  .amdhsa_user_sgpr_kernarg_segment_ptr 1", "  .amdhsa_system_sgpr_workgroup_id_x 1", ".end_amdhsa_kernel"]
    open(sys.argv[1], "w").write("\n".join(out) + "\n")
main()
```

```python
import re

class I:
    __slots__ = ("t", "tag")
    def __init__(self, t, tag=None):
        self.t = t; self.tag = tag
class W:
    __slots__ = ("vm", "lg")
    def __init__(self, vm=None, lg=None):
        self.vm = vm; self.lg = lg
class M:
    __slots__ = ("tag",)
    def __init__(self, tag): self.tag = tag
class L:
    __slots__ = ("t",)
    def __init__(self, t): self.t = t

def v(a, n=1):
    return "v%d" % a if n == 1 else "v[%d:%d]" % (a, a + n - 1)
def s(a, n=1):
    return "s%d" % a if n == 1 else "s[%d:%d]" % (a, a + n - 1)

_reg = re.compile(r"\b([vs])(\d+)\b|\b([vs])\[(\d+):(\d+)\]|\b(vcc|exec|m0|scc)\b")
def regs_of(op):
    out = []
    for m in _reg.finditer(op):
        if m.group(1): out.append((m.group(1), int(m.group(2))))
        elif m.group(3): out += [(m.group(3), k) for k in range(int(m.group(4)), int(m.group(5)) + 1)]
        else: out.append((m.group(6), 0))
    return out

TRANS = ("v_exp_f32", "v_rcp_f32", "v_rsq_f32", "v_sqrt_f32", "v_log_f32")
def classify(t):
    t = t.split(";")[0].strip()
    mn, _, rest = t.partition(" ")
    ops = [o.strip() for o in rest.split(",")] if rest else []
    d = dict(mn=mn, kind="other", dst=[], src=[], passes=0, srcc=[], ab=[])
    if mn.startswith("v_mfma"):
        d["kind"] = "mfma"; d["passes"] = 8 if "32x32" in mn else (2 if "4x4x4" in mn else 4)
        d["dst"] = regs_of(ops[0]); d["ab"] = regs_of(ops[1]) + regs_of(ops[2]); d["srcc"] = regs_of(ops[3])
        d["src"] = d["ab"] + d["srcc"]
    elif mn.startswith("v_"):
        d["kind"] = "valu"
        if mn.startswith("v_cmp"):
            d["dst"] = regs_of(ops[0]); d["src"] = sum((regs_of(o) for o in ops[1:]), [])
        elif mn.startswith("v_permlane"):
            d["dst"] = regs_of(ops[0]) + regs_of(ops[1]); d["src"] = list(d["dst"])
        else:
            d["dst"] = regs_of(ops[0]); d["src"] = sum((regs_of(o) for o in ops[1:]), [])
            if mn.startswith(("v_fmac", "v_dot2c")) or "_dpp" in mn or "row_" in t or "quad_perm" in t:
                d["src"] += d["dst"]
            if mn.startswith(("v_add_co", "v_addc_co", "v_sub_co")):
                d["dst"] += regs_of(ops[1])
    elif mn.startswith("ds_"):
        d["kind"] = "ds"
        if mn.startswith("ds_read"):
            d["dst"] = regs_of(ops[0]); d["src"] = regs_of(ops[1])
        else:
            d["src"] = sum((regs_of(o) for o in ops), [])
    elif mn.startswith(("buffer_", "global_")):
        d["kind"] = "vmem"
        if (" lds" in (" " + rest + " ").replace(",", " ") and mn.startswith("buffer_load")) or mn.startswith("global_load_lds"):
            d["src"] = sum((regs_of(o) for o in ops), []) + [("m0", 0)]; d["dma"] = True
        elif "load" in mn:
            d["dst"] = regs_of(ops[0]); d["src"] = sum((regs_of(o) for o in ops[1:]), [])
            if "d16" in mn: d["src"] += d["dst"]
        else:
            d["src"] = sum((regs_of(o) for o in ops), [])
            d["data"] = regs_of(ops[0]) if mn.startswith("buffer_") else regs_of(ops[1])
            if "atomic" in mn and " sc0" in rest: d["dst"] = regs_of(ops[0])
    elif mn.startswith("s_"):
        d["kind"] = "salu"
        if mn.startswith(("s_cmp", "s_cbranch", "s_branch", "s_barrier", "s_waitcnt", "s_nop", "s_sleep", "s_setprio", "s_endpgm", "s_bitcmp")):
            d["src"] = sum((regs_of(o) for o in ops), [])
        elif mn.startswith(("s_load", "s_memtime", "s_memrealtime")):
            d["kind"] = "smem"; d["dst"] = regs_of(ops[0]); d["src"] = sum((regs_of(o) for o in ops[1:]), [])
        else:
            d["dst"] = regs_of(ops[0]); d["src"] = sum((regs_of(o) for o in ops[1:]), [])
            if "saveexec" in mn: d["dst"] += [("exec", 0)]
    d["trans"] = mn.startswith(TRANS)
    d["dot"] = mn.startswith("v_dot")
    d["perm"] = mn.startswith("v_permlane")
    d["dpp"] = ("row_" in t or "quad_perm" in t) and d["kind"] == "valu"
    d["rl"] = mn.startswith(("v_readfirstlane", "v_readlane"))
    return d

XDL_RAW = {2: 5, 4: 8, 8: 12}
XDL_CPART = {2: 4, 4: 6, 8: 10}
XDL_WARC = {2: 1, 4: 3, 8: 7}

def need(p, c):
    n = 0
    pd = set(p["dst"]); cs = set(c["src"]); cd = set(c["dst"])
    vv = lambda S: set(r for r in S if r[0] == "v")
    sg = lambda S: set(r for r in S if r[0] in ("s", "vcc"))
    if p["kind"] == "valu":
        raw = vv(pd) & cs
        if raw:
            if c["kind"] == "mfma": n = max(n, 2)
            if c["perm"] or c["dpp"]: n = max(n, 2)
            if c["rl"]: n = max(n, 1)
            if p["trans"] and c["kind"] == "valu" and not c["trans"]: n = max(n, 1)
            if p["trans"] and c["kind"] in ("valu", "mfma", "vmem", "ds"): n = max(n, 1)
        if p["dot"]:
            if (vv(pd) & (cs | cd)):
                if c["mn"] == p["mn"]:
                    n = max(n, 0 if c.get("chain_ok") else 0)
                    if c["dot"]:
                        ab = set(c["src"][:2]) if len(c["src"]) >= 2 else set()
                        if vv(pd) & ab: n = max(n, 3)
                else: n = max(n, 3)
        sraw = sg(pd) & cs
        if sraw:
            if c["kind"] == "valu": n = max(n, 4 if c["rl"] else 2)
            if c["kind"] == "vmem": n = max(n, 5)
            if c["kind"] in ("salu", "smem"): n = max(n, 1)
        if ("exec", 0) in pd: n = max(n, 5)
    if p["kind"] == "mfma":
        ps = p["passes"]
        if c["kind"] == "mfma":
            if pd & set(c["ab"]): n = max(n, XDL_RAW[ps])
            if pd & set(c["srcc"]):
                if not (p["dst"] == c["srcc"] and c["passes"] == ps): n = max(n, XDL_CPART[ps])
                elif ps == 2: n = max(n, 2)
            elif pd & cd and p["dst"] != c["dst"]: n = max(n, XDL_RAW[ps])
        elif c["kind"] in ("valu", "vmem", "ds"):
            if pd & (cs | cd): n = max(n, XDL_RAW[ps])
            if c["kind"] == "valu" and set(p["srcc"]) & cd: n = max(n, XDL_WARC[ps])
    if p["kind"] == "salu":
        if ("m0", 0) in pd and c.get("dma"): n = max(n, 1)
    if p["kind"] == "vmem" and len(p.get("data", [])) >= 3:
        if set(p["data"]) & cd: n = max(n, 2)
    return n

class State:
    def __init__(self):
        self.vm = []; self.lg = []; self.hist = []; self.pos = 0; self.seen = set(); self.nops = 0; self.marks = set()
    def clone(self):
        n = State(); n.vm = list(self.vm); n.lg = list(self.lg); n.hist = list(self.hist[-20:]); n.pos = self.pos
        n.seen = set(self.seen); n.marks = set(self.marks); return n

def finalize(items, st=None, window=14):
    st = st or State()
    out = []
    def emit(t):
        c = classify(t)
        req = 0
        for p, ppos in st.hist[-window:]:
            n = need(p, c)
            if n:
                have = st.pos - ppos - 1
                if have < n: req = max(req, n - have)
        while req > 0:
            k = min(req, 16)
            out.append("    s_nop %d" % (k - 1)); st.pos += k; req -= k; st.nops += 1
        out.append("    " + t)
        st.hist.append((c, st.pos))
        if c["mn"] == "s_nop": st.pos += int(t.split()[1]) + 1
        else: st.pos += 1
        return c
    for it in items:
        if isinstance(it, L):
            out.append(it.t)
        elif isinstance(it, M):
            st.seen.add(it.tag); st.vm.append(it.tag); st.marks.add(it.tag)
        elif isinstance(it, I):
            c = emit(it.t)
            if it.tag is not None:
                assert c["kind"] in ("vmem", "ds"), it.t
                st.seen.add(it.tag)
            if c["kind"] == "vmem": st.vm.append(it.tag)
            elif c["kind"] == "ds": st.lg.append(it.tag)
            elif c["kind"] == "smem": st.lg.append("__smem__")
        else:
            parts = []
            for name, seq, tag, cap in (("vmcnt", st.vm, it.vm, 63), ("lgkmcnt", st.lg, it.lg, 15)):
                if tag is None: continue
                if tag == "all":
                    parts.append("%s(0)" % name); del seq[:]; continue
                tags = tag if isinstance(tag, (list, set)) else [tag]
                for x in tags: assert x in st.seen, ("wait on a tag never issued", x)
                idx = [k for k, x in enumerate(seq) if x in tags]
                if not idx: continue
                last = idx[-1]
                n = sum(1 for x in seq[last + 1:] if x not in st.marks)
                if name == "lgkmcnt" and "__smem__" in seq: n = 0; last = len(seq) - 1
                if n > cap: n = cap
                parts.append("%s(%d)" % (name, n))
                del seq[:last + 1]
            if parts: emit("s_waitcnt " + " ".join(parts))
    return out, st
```

```python
import sys, os, json
sys.path.insert(0, os.path.dirname(os.path.abspath(__file__)))
from asmir import I, W, L, M, v, s, finalize, State

NAME = "recurrent_scan__linear_kernel_hedgehog__glu_gated_bilinear__prompt"
CFG = dict(stamps=0, LA=6, chunk=50, chunk2=40, h2wait=25, feed=(16, 16, 17, 17, 18, 19), ahead2=6, espan=4, prio=0, sigdelay=2, sigdelay2=3, kvgate=22, plstep=4, touch=3)
for a in sys.argv[2:]:
    k, x = a.split("="); CFG[k] = json.loads(x)

WS_CNT = 0
WS_KV = 0x10000
WS_Z = 0x120000
WS_ST = 0x140000
WS_HO = 0x200000
WS_BYTES = WS_HO + 64 * 144 * 1024
C_H1Q, C_H1KV, C_H2, C_O = 0, 1, 2, 3
SLOT = 16384; STG = 32768; EX = 131072
SX, SQKV, SPHI, SWO, SG, SU, SWD, SOUT, SDBG, SWS, SA, SB = 8, 12, 16, 20, 24, 28, 32, 36, 40, 44, 48, 52
sW, sW3, sI, sGR, sTY, sR1, sXR, sTT, sCT, sR2 = range(56, 66)
sT0, sT1, sT2, sT3, sT4, sT5 = range(66, 72)
sL2E = 72; sSTR = 73; sCA = 74; sCB = 75; sKS = 76
sSPIN = 80; sEX = 82
sPH = 84
sMK = 94
sTM = 90
srd = lambda b: s(b, 4)
LOG2E = 0x3fb8aa3b
XR = 128; ACC = 64; WF = 32

H_STAMP = 255; H_STAMP2 = 254
def stamp_to(P, k, reg=H_STAMP):
    if CFG["stamps"]:
        P.append(I("s_memtime %s" % s(sTM + 2, 2))); P.append(W(lg="all"))
        P.append(I("s_sub_u32 s%d, s%d, s%d" % (sTM + 2, sTM + 2, sTM))); P.append(I("v_writelane_b32 v%d, s%d, %d" % (reg, sTM + 2, k)))

def prologue():
    P = []; a = lambda t, tag=None: P.append(I(t, tag))
    a("s_cmp_ge_u32 s2, 256")
    a("s_cbranch_scc1 L_exit")
    for b, off in ((SX, 0), (SQKV, 8), (SPHI, 16), (SWO, 24), (SG, 40), (SU, 48), (SWD, 56), (SOUT, 64), (SDBG, 72), (SWS, 80)):
        a("s_load_dwordx2 %s, s[0:1], %d" % (s(b, 2), off))
    if CFG["stamps"]:
        a("s_memtime %s" % s(sTM, 2))
    for b, n in ((SX, 2097152), (SQKV, 1572864), (SPHI, 16384), (SWO, 524288), (SG, 1835008), (SU, 1835008),
                 (SWD, 1835008), (SOUT, 2097152), (SDBG, 256), (SWS, WS_BYTES)):
        a("s_mov_b32 s%d, %d" % (b + 2, n)); a("s_mov_b32 s%d, 0x20000" % (b + 3))
    a("s_mov_b32 s%d, 0x20000" % (SA + 3)); a("s_mov_b32 s%d, 0x20000" % (SB + 3))
    a("v_lshrrev_b32 v2, 6, v0")
    a("v_and_b32 v1, 63, v0")
    a("v_readfirstlane_b32 s%d, v2" % sW)
    a("s_and_b32 s%d, s2, 7" % sT0)
    a("s_lshr_b32 s%d, s2, 3" % sT1)
    a("s_and_b32 s%d, s%d, 3" % (sR1, sT1))
    a("s_lshr_b32 s%d, s%d, 1" % (sT2, sT0)); a("s_lshl_b32 s%d, s%d, 2" % (sT2, sT2)); a("s_add_u32 s%d, s%d, s%d" % (sI, sT2, sR1))
    a("s_lshr_b32 s%d, s%d, 2" % (sCT, sT1))
    a("s_and_b32 s%d, s%d, 3" % (sXR, sCT))
    a("s_lshr_b32 s%d, s%d, 2" % (sTY, sCT))
    a("s_and_b32 s%d, s%d, 1" % (sT2, sT0)); a("s_lshl_b32 s%d, s%d, 2" % (sT2, sT2)); a("s_add_u32 s%d, s%d, s%d" % (sGR, sT2, sXR))
    a("s_lshl_b32 s%d, s%d, 2" % (sT2, sT0)); a("s_add_u32 s%d, s%d, s%d" % (sTT, sT2, sR1))
    a("s_lshl_b32 s%d, s%d, 1" % (sT2, sR1)); a("s_add_u32 s%d, s%d, s%d" % (sR2, sT2, sCT))
    a("s_and_b32 s%d, s%d, 3" % (sW3, sW))
    a("s_mov_b32 s%d, 0x%x" % (sL2E, LOG2E))
    a("v_lshrrev_b32 v4, 4, v1")
    a("v_and_b32 v5, 15, v1")
    a("s_lshl_b32 s%d, s%d, 7" % (sT0, sI)); a("s_lshl_b32 s%d, s%d, 4" % (sT1, sW)); a("s_add_u32 s%d, s%d, s%d" % (sT0, sT0, sT1))
    a("v_add_u32 v3, s%d, v4" % sT0); a("v_lshlrev_b32 v3, 10, v3"); a("v_lshl_add_u32 v3, v5, 4, v3")
    a("s_cmp_eq_u32 s%d, 0" % sTY)
    a("s_cselect_b32 s%d, s%d, s%d" % (SA + 2, SQKV + 2, SG + 2)); a("s_mov_b32 s%d, s%d" % (SB + 2, SA + 2))
    a("s_cselect_b32 s%d, 6, 7" % sSTR)
    a("s_cselect_b32 s%d, 7, 8" % sT0)
    a("s_cselect_b32 s%d, 1024, 0" % sT1)
    a("s_cselect_b32 s%d, 2048, 0" % sT2)
    a("s_lshl_b32 s%d, s%d, 9" % (sSTR, sSTR))
    a("s_lshl_b32 s%d, s%d, s%d" % (sT0, sGR, sT0))
    a("s_add_u32 s%d, s%d, s%d" % (sCA, sT0, sT1)); a("s_add_u32 s%d, s%d, s%d" % (sCB, sT0, sT2))
    p4_voffs(a, 6, 7, "s%d" % sSTR, 8)
    P.append(W(lg="all"))
    if CFG["stamps"]: a("v_mov_b32 v%d, 0" % H_STAMP); a("v_mov_b32 v%d, 0" % H_STAMP2)
    stamp_to(P, 0, H_STAMP2)
    a("s_cmp_eq_u32 s%d, 0" % sTY)
    a("s_cselect_b64 %s, %s, %s" % (s(SA, 2), s(SQKV, 2), s(SG, 2)))
    a("s_cselect_b64 %s, %s, %s" % (s(SB, 2), s(SQKV, 2), s(SU, 2)))
    def xload(b, qs):
        a("s_add_u32 s%d, s%d, %d" % (sT0, sXR, b)); a("s_and_b32 s%d, s%d, 3" % (sT0, sT0)); a("s_lshl_b32 s%d, s%d, 12" % (sT0, sT0))
        for q in qs:
            a("s_add_u32 s%d, s%d, %d" % (sT1, sR1, q)); a("s_and_b32 s%d, s%d, 3" % (sT1, sT1)); a("s_lshl_b32 s%d, s%d, 8" % (sT1, sT1))
            a("s_add_u32 s%d, s%d, s%d" % (sT1, sT1, sT0))
            a("buffer_load_dwordx4 %s, v3, %s, s%d offen" % (v(128 + 16 * b + 4 * q, 4), srd(SX), sT1), ("x", b))
    def slabload(sg):
        a("s_lshl_b32 s%d, s%d, 1" % (sT3, sR1)); a("s_add_u32 s%d, s%d, %d" % (sT3, sT3, sg))
        a("s_lshl_b32 s%d, s%d, 3" % (sT3, sT3)); a("s_add_u32 s%d, s%d, s%d" % (sT3, sT3, sW)); a("s_lshl_b32 s%d, s%d, 3" % (sT3, sT3))
        a("s_mul_i32 s%d, s%d, s%d" % (sT3, sT3, sSTR))
        a("s_lshl_b32 s%d, s%d, 11" % (sT4, sW))
        for p in range(2):
            a("s_add_u32 m0, s%d, %d" % (sT4, sg * SLOT + p * 1024))
            a("s_add_u32 s%d, s%d, s%d" % (sT5, sT3, sCB if p else sCA))
            a("buffer_load_dwordx4 v%d, %s, s%d offen lds" % (7 if p else 6, srd(SB if p else SA), sT5), ("slab", sg))
    a("s_cmp_eq_u32 s%d, 0" % sTY); a("s_cbranch_scc1 L_xa")
    alt = []; keep = P[:]
    del P[:]; xload(0, (2, 3)); slabload(0); xload(0, (0, 1)); a("s_branch L_xb")
    alt, _ = finalize(P); del P[:]; P.extend(keep)
    for t in alt: P.append(L(t))
    P.append(L("L_xa:"))
    xload(0, (0, 1)); slabload(0); xload(0, (2, 3))
    P.append(L("L_xb:"))
    a("s_lshr_b32 s%d, s%d, 1" % (sT0, sW)); a("s_lshl_b32 s%d, s%d, 15" % (sT0, sT0))
    a("s_and_b32 s%d, s%d, 1" % (sT1, sW)); a("s_lshl_b32 s%d, s%d, 8" % (sT1, sT1)); a("s_add_u32 s%d, s%d, s%d" % (sT0, sT0, sT1))
    a("s_add_u32 s%d, s%d, %d" % (sT0, sT0, STG))
    a("v_lshlrev_b32 v8, 9, v5"); a("v_add_u32 v8, s%d, v8" % sT0)
    a("v_and_b32 v9, 7, v5")
    SEL, ID, SM, CM, SQ, DL, T = 12, 16, 20, 24, 96, 112, 32
    a("v_lshrrev_b32 v10, 2, v5"); a("v_cmp_eq_u32 vcc, v10, v4"); a("v_mov_b32 v11, 0x3f803f80")
    for j in range(4): a("v_cndmask_b32 v%d, 0, v11, vcc" % (SEL + j))
    a("v_and_b32 v10, 3, v1")
    for j in range(3): a("v_cmp_eq_u32 %s, %d, v10" % (s(sMK + 2 * j, 2), j + 1))
    a("v_and_b32 v11, 1, v1"); a("v_lshlrev_b32 v11, 4, v11"); a("v_mov_b32 v18, 0x3f80"); a("v_lshlrev_b32 v11, v11, v18")
    a("v_cmp_gt_u32 vcc, 2, v10")
    a("v_cndmask_b32 v%d, 0, v11, vcc" % ID); a("v_sub_u32 v%d, v11, v%d" % (ID + 1, ID))
    xload(1, range(4))
    for b in range(4):
        D = 128 + 16 * b
        a("s_add_u32 s%d, s%d, %d" % (sT0, sXR, b)); a("s_and_b32 s%d, s%d, 3" % (sT0, sT0)); a("s_lshl_b32 s%d, s%d, 2" % (sT0, sT0))
        a("v_add_u32 v11, s%d, v4" % sT0); a("v_xor_b32 v11, v11, v9"); a("v_lshl_add_u32 v11, v11, 4, v8")
        stamp_to(P, 1 + 2 * b, H_STAMP2)
        P.append(W(vm=[("x", b)]))
        stamp_to(P, 2 + 2 * b, H_STAMP2)
        for q in range(4):
            a("v_mfma_f32_16x16x32_bf16 %s, %s, %s, %s" % (v(SM, 4), v(SEL, 4), v(D + 4 * q, 4), "0" if q == 0 else v(SM, 4)))
        if b < 2: xload(b + 2, range(4))
        if b == 2: slabload(1)
        for k in (8, 4, 2, 1): a("v_add_f32_dpp v%d, v%d, v%d row_ror:%d row_mask:0xf bank_mask:0xf" % (SM, SM, SM, k))
        a("v_mul_f32 v%d, 0xbb000000, v%d" % (SM, SM))
        a("v_cvt_pk_bf16_f32 v%d, v%d, v%d" % (SM + 1, SM, SM))
        for j in range(4): a("v_and_b32 v%d, 0xffff0000, v%d" % (CM + j, SM + 1))
        a("v_sub_f32 v%d, v%d, v%d" % (DL + b, SM, CM))
        for p in range(8):
            a("v_mfma_f32_4x4x4_16b_bf16 %s, %s, %s, %s" % (v(T + 4 * p, 4), v(ID, 2), v(D + 2 * p, 2), v(CM, 4)))
        def sq(p): a("v_mfma_f32_4x4x4_16b_bf16 %s, %s, %s, %s" % (v(SQ + 4 * b, 4), v(D + 2 * p, 2), v(D + 2 * p, 2), "0" if p == 0 else v(SQ + 4 * b, 4)))
        for p in range(8):
            a("v_cvt_pk_bf16_f32 v%d, v%d, v%d" % (D + 2 * p, T + 4 * p, T + 4 * p + 1))
            a("v_cvt_pk_bf16_f32 v%d, v%d, v%d" % (D + 2 * p + 1, T + 4 * p + 2, T + 4 * p + 3))
            if p & 1: a("ds_write_b128 v11, %s offset:%d" % (v(D + 2 * p - 2, 4), (p >> 1) * 8192))
            if p: sq(p - 1)
        sq(7)
    stamp_to(P, 9, H_STAMP2)
    P.append(W(vm=[("slab", 0)], lg="all"))
    stamp_to(P, 10, H_STAMP2)
    a("s_barrier")
    a("s_cmp_ge_u32 s%d, 4" % sW); a("s_cbranch_scc1 L_nofrag")
    a("v_and_b32 v16, 31, v1"); a("v_lshrrev_b32 v17, 5, v1")
    a("s_lshl_b32 s%d, s%d, 15" % (sT0, sW)); a("s_add_u32 s%d, s%d, %d" % (sT0, sT0, STG))
    a("v_lshlrev_b32 v18, 9, v17"); a("v_add_u32 v18, s%d, v18" % sT0)
    a("v_xor_b32 v19, v16, v17")
    for k in range(4):
        a("v_xor_b32 v%d, %d, v19" % (20 + k, 2 * k)); a("v_lshl_add_u32 v%d, v%d, 4, v18" % (20 + k, 20 + k))
    for sl in range(32):
        a("ds_read_b128 %s, v%d offset:%d" % (v(XR + 4 * sl, 4), 20 + (sl & 3), sl * 1024), ("xn", sl))
    P.append(L("L_nofrag:"))
    for j in range(3):
        for b in range(4): a("v_cndmask_b32 v%d, v%d, v%d, %s" % (SQ + 4 * b, SQ + 4 * b, SQ + 4 * b + j + 1, s(sMK + 2 * j, 2)))
    for k in (8, 4, 2, 1):
        for b in range(4): a("v_add_f32_dpp v%d, v%d, v%d row_ror:%d row_mask:0xf bank_mask:0xf" % (SQ + 4 * b, SQ + 4 * b, SQ + 4 * b, k))
    for j in range(3):
        a("v_cndmask_b32 v%d, v%d, v%d, %s" % (SQ, SQ, SQ + 4 * j + 4, s(sMK + 2 * j, 2)))
        a("v_cndmask_b32 v%d, v%d, v%d, %s" % (DL, DL, DL + j + 1, s(sMK + 2 * j, 2)))
    a("v_mul_f32 v%d, 0x3b000000, v%d" % (SQ, SQ))
    a("v_fma_f32 v%d, -v%d, v%d, v%d" % (SQ, DL, DL, SQ))
    a("v_max_f32 v%d, 0, v%d" % (SQ, SQ))
    def rnd(): a("v_cvt_pk_bf16_f32 v%d, v%d, v%d" % (SQ, SQ, SQ)); a("v_and_b32 v%d, 0xffff0000, v%d" % (SQ, SQ))
    rnd(); a("v_add_f32 v%d, 0x3727c5ac, v%d" % (SQ, SQ)); rnd(); a("v_sqrt_f32 v%d, v%d" % (SQ, SQ)); rnd()
    a("v_rcp_f32 v%d, v%d" % (SQ, SQ))
    a("v_add_u32 v%d, s%d, v1" % (DL, sXR)); a("v_and_b32 v%d, 3, v%d" % (DL, DL)); a("v_lshl_add_u32 v%d, v%d, 2, v4" % (DL, DL))
    a("s_lshl_b32 s%d, s%d, 6" % (sT0, sW)); a("s_add_u32 s%d, s%d, %d" % (sT0, sT0, EX))
    a("v_lshlrev_b32 v%d, 2, v%d" % (DL, DL)); a("v_add_u32 v%d, s%d, v%d" % (DL, sT0, DL))
    a("s_cmp_ge_u32 s%d, 4" % sW)
    a("s_cbranch_scc1 L_helper")
    return P
RS_VAL, RS_ADDR = 96, 112

def p4_voffs(a, va, vb, stride, t):
    a("v_lshrrev_b32 v%d, 3, v1" % t)
    a("v_and_b32 v%d, 2, v%d" % (t + 1, t)); a("v_lshlrev_b32 v%d, 1, v%d" % (t + 1, t + 1))
    a("v_and_b32 v%d, 7, v1" % (t + 2)); a("v_xor_b32 v%d, v%d, v%d" % (t + 2, t + 2, t + 1))
    a("v_mul_lo_u32 v%d, v%d, %s" % (t, t, stride))
    a("v_lshl_add_u32 v%d, v%d, 4, v%d" % (va, t + 2, t))
    a("v_xor_b32 v%d, 32, v%d" % (vb, va))
def p2_voffs(a, va, vb, stride, t):
    a("v_lshrrev_b32 v%d, 2, v1" % t)
    a("v_and_b32 v%d, 3, v1" % (t + 2))
    a("v_mul_lo_u32 v%d, v%d, %s" % (t, t, stride))
    a("v_lshl_add_u32 v%d, v%d, 4, v%d" % (va, t + 2, t))
    a("v_xor_b32 v%d, 32, v%d" % (vb, va))

PH = {0: [("P4", "kv"), ("P4", "gu"), ("P2", "gu")], 1: [("P4", "gu"), ("P2", "q"), ("P4", "gu")]}
def slabs_of(ty):
    out = []
    for pi, (k, e) in enumerate(PH[ty]):
        for sg in range(8 if k == "P4" else 4): out.append((pi, k, sg))
    return out

def fcols(a, ty):
    if ty == 1:
        a("s_lshl_b32 s%d, s%d, 7" % (sKS, sGR)); a("s_add_u32 s%d, s%d, 64" % (sKS + 1, sKS))
    else:
        a("s_mul_i32 s%d, s%d, 96" % (sT0, sGR)); a("s_add_u32 s%d, s%d, 1024" % (sT0, sT0))
        a("s_and_b32 s%d, s%d, 1" % (sT1, sGR)); a("s_lshl_b32 s%d, s%d, 5" % (sT2, sT1))
        a("s_add_u32 s%d, s%d, s%d" % (sKS, sT0, sT2))
        a("s_xor_b32 s%d, s%d, 1" % (sT1, sT1)); a("s_lshl_b32 s%d, s%d, 6" % (sT1, sT1))
        a("s_add_u32 s%d, s%d, s%d" % (sKS + 1, sT0, sT1))

C_R, C_R2 = 0, 31
def compute(ty):
    P = []; a = lambda t, tag=None: P.append(I(t, tag))
    a("v_bfe_u32 v24, v1, 2, 2"); a("v_and_b32 v25, 3, v1"); a("v_bfe_u32 v26, v1, 4, 1")
    a("v_lshlrev_b32 v27, 3, v25"); a("v_lshl_add_u32 v27, v26, 10, v27")
    a("v_lshl_add_u32 v28, v17, 11, v27"); a("v_lshl_add_u32 v28, v24, 7, v28")
    a("v_and_b32 v29, 2, v24"); a("v_xor_b32 v29, v29, v26")
    for t in range(4):
        a("v_xor_b32 v30, %d, v29" % t); a("v_lshl_add_u32 v%d, v30, 5, v28" % (2 + t)); a("v_add_u32 v%d, 0x10000, v%d" % (6 + t, 2 + t))
    a("v_lshl_add_u32 v28, v17, 9, v27"); a("v_lshl_add_u32 v28, v24, 6, v28")
    for t in range(2):
        a("v_xor_b32 v30, %d, v26" % t); a("v_lshl_add_u32 v%d, v30, 5, v28" % (10 + t)); a("v_add_u32 v%d, 0x10000, v%d" % (12 + t, 10 + t))
    a("s_lshl_b32 s%d, s%d, 2" % (sT0, sI)); a("s_add_u32 s%d, s%d, s%d" % (sT0, sT0, sW)); a("s_mul_i32 s%d, s%d, %d" % (sT0, sT0, 147456))
    a("s_add_u32 s%d, s%d, %d" % (sT0, sT0, WS_HO))
    a("v_lshlrev_b32 v15, 4, v1"); a("v_add_u32 v14, s%d, v15" % sT0)
    a("s_lshl_b32 s%d, s%d, 13" % (sT0, sW)); a("s_add_u32 s%d, s%d, %d" % (sT0, sT0, EX)); a("v_add_u32 v15, s%d, v15" % sT0)
    a("s_lshl_b32 s%d, s%d, 7" % (sT0, sW)); a("s_add_u32 s%d, s%d, %d" % (sT0, sT0, EX))
    a("v_lshlrev_b32 v%d, 2, v16" % C_R2); a("v_add_u32 v%d, s%d, v%d" % (C_R2, sT0, C_R2))
    fcols(a, ty)
    a("s_lshl_b32 s%d, s%d, 6" % (sKS, sKS)); a("s_lshl_b32 s%d, s%d, 6" % (sKS + 1, sKS + 1))
    ops = []
    fill = {}
    pre = {}
    sl = slabs_of(ty); gu_seen = 0
    for n, (pi, kind, sg) in enumerate(sl):
        slot = n & 7; win = slot >> 2; base = (slot & 3) * SLOT
        nt, nk = (4, 4) if kind == "P4" else (2, 8)
        order = list(range(nt))
        if sg == 0 and pi > 0 and PH[ty][pi - 1][0] == "P2" and kind == "P4": order = [2, 3, 0, 1]
        last = sg == (7 if kind == "P4" else 3)
        for t in order:
            for u in range(nk):
                m = len(ops); fb = WF + 4 * (m & 7)
                if kind == "P4": ar, off, dq, xs = 2 + 4 * win + t, base + u * 4096, 512, sg * 4 + u
                else: ar, off, dq, xs = 10 + 2 * win + t, base + u * 2048, 256, sg * 8 + u
                acc = v(ACC + 16 * t, 16)
                ops.append(dict(slab=n, reads=[("ds_read_b64_tr_b16 %s, v%d offset:%d" % (v(fb, 2), ar, off), ("f", m)),
                                               ("ds_read_b64_tr_b16 %s, v%d offset:%d" % (v(fb + 2, 2), ar, off + dq), ("f", m))],
                                waits=[("f", m)] + ([("xn", xs)] if pi == 0 else []), la=CFG["LA"],
                                mfma="v_mfma_f32_32x32x16_bf16 %s, %s, %s, %s" % (acc, v(fb, 4), v(XR + 4 * xs, 4), "0" if (sg == 0 and u == 0) else acc)))
            if last:
                e = PH[ty][pi][1]; A = ACC + 16 * t; T = A; E = []
                if e == "gu":
                    for j in range(8): E.append(I("v_mul_f32 v%d, v%d, v%d" % (A + j, A + j, A + j + 8)))
                    for j in range(8): E.append(I("v_mul_f32 v%d, v%d, v%d" % (A + j, A + j, C_R2)))
                    for j in range(4): E.append(I("v_cvt_pk_bf16_f32 v%d, v%d, v%d" % (T + j, A + 2 * j, A + 2 * j + 1)))
                    E.append(I("buffer_store_dwordx4 %s, v14, %s, s%d offen offset:%d sc1" % (v(T, 4), srd(SWS), sKS + gu_seen, t * 1024), ("h", gu_seen)))
                else:
                    for j in range(16): E.append(I("v_mul_f32 v%d, v%d, v%d" % (A + j, A + j, C_R)))
                    for j in range(8): E.append(I("v_cvt_pk_bf16_f32 v%d, v%d, v%d" % (T + j, A + 2 * j, A + 2 * j + 1)))
                    E.append(I("ds_write_b128 v15, %s offset:%d" % (v(T, 4), t * 2048), "ex"))
                    E.append(I("ds_write_b128 v15, %s offset:%d" % (v(T + 4, 4), t * 2048 + 1024), "ex"))
                e0 = len(ops) - 1 + 2
                for j, it in enumerate(E): fill.setdefault(e0 + j * CFG["espan"] // len(E), []).append(it)
        if last:
            e = PH[ty][pi][1]
            if e == "gu":
                pre.setdefault(n + 4 if gu_seen == 0 else CFG["h2wait"], []).append(W(vm=[("h", gu_seen)])); gu_seen += 1
            else: pre.setdefault(n + 2, []).append(W(lg=["ex"]))
    n1 = len(ops)
    HB = XR
    AD = XR + 32
    Y, S_ = (ACC + 32, ACC + 48) if ty == 0 else (XR + 48, XR + 64)
    setup = []; b = lambda t, tag=None: setup.append(I(t, tag))
    b("s_lshr_b32 s%d, s%d, 1" % (sT0, sW)); b("s_and_b32 s%d, s%d, 1" % (sT1, sW))
    b("s_lshl_b32 s%d, s%d, 12" % (sT2, sT0))
    b("v_lshlrev_b32 v%d, 4, v1" % AD); b("v_add_u32 v%d, s%d, v%d" % (AD, sT2, AD)); b("v_add_u32 v%d, 0x10000, v%d" % (AD + 1, AD))
    t0, t1 = AD + 13, AD + 14
    b("v_bfe_u32 v%d, v1, 3, 1" % t0); b("v_xor_b32 v%d, s%d, v%d" % (t0, sT1, t0)); b("v_lshlrev_b32 v%d, 6, v%d" % (AD + 2, t0))
    b("v_bfe_u32 v%d, v1, 2, 2" % t0); b("v_lshl_add_u32 v%d, v%d, 7, v%d" % (AD + 2, t0, AD + 2))
    b("v_lshrrev_b32 v%d, 5, v1" % t1); b("v_lshl_add_u32 v%d, v%d, 9, v%d" % (AD + 2, t1, AD + 2))
    b("v_and_b32 v%d, 1, v1" % t0); b("v_lshl_add_u32 v%d, v%d, 5, v%d" % (AD + 2, t0, AD + 2))
    b("v_bfe_u32 v%d, v1, 4, 1" % t0); b("v_lshl_add_u32 v%d, v%d, 4, v%d" % (AD + 2, t0, AD + 2))
    b("v_bfe_u32 v%d, v1, 1, 1" % t0); b("v_lshl_add_u32 v%d, v%d, 3, v%d" % (AD + 2, t0, AD + 2))
    b("v_add_u32 v%d, 0x2000, v%d" % (AD + 2, AD + 2)); b("v_add_u32 v%d, 0x10000, v%d" % (AD + 3, AD + 2))
    b("s_lshl_b32 s%d, s%d, 16" % (sT2, sTT)); b("s_lshl_b32 s%d, s%d, 15" % (sT3, sT0)); b("s_add_u32 s%d, s%d, s%d" % (sT2, sT2, sT3))
    b("s_lshl_b32 s%d, s%d, 7" % (sT3, sCT)); b("s_add_u32 s%d, s%d, s%d" % (sT2, sT2, sT3))
    b("s_lshl_b32 s%d, s%d, 6" % (sT3, sT1)); b("s_add_u32 s%d, s%d, s%d" % (sT2, sT2, sT3))
    b("v_and_b32 v%d, 31, v1" % t0); b("v_lshlrev_b32 v%d, 10, v%d" % (t0, t0)); b("v_lshl_add_u32 v%d, v%d, 5, v%d" % (t0, t1, t0))
    b("v_add_u32 v%d, s%d, v%d" % (AD + 12, sT2, t0))
    b("buffer_load_dwordx4 %s, v%d, %s, 0 offen" % (v(AD + 4, 4), AD + 12, srd(SX)), "res")
    b("buffer_load_dwordx4 %s, v%d, %s, 0 offen offset:16" % (v(AD + 8, 4), AD + 12, srd(SX)), "res")
    s0 = n1 - 16
    for j, it in enumerate(setup): fill.setdefault(s0 - 1 + j * 10 // len(setup), []).insert(0, it) if False else None
    pos2 = [s0 + j * 10 // len(setup) for j in range(len(setup))]
    su = {}
    for p_, it in zip(pos2, setup): su.setdefault(p_, []).append(it)
    for p_, its in su.items(): fill[p_] = its + fill.get(p_, [])
    for n in range(20, 56):
        slot = n & 7; win = slot >> 2; base = (slot & 3) * SLOT
        acc = v(Y if n < 48 else S_, 16)
        for kk in range(4):
            m = len(ops); fb = WF + 4 * (m & 7); hb = HB + 4 * (m & 7)
            ops.append(dict(slab=n, reads=[("ds_read_b64_tr_b16 %s, v%d offset:%d" % (v(fb, 2), AD + 2 + win, base + kk * 2048), ("f", m)),
                                           ("ds_read_b64_tr_b16 %s, v%d offset:%d" % (v(fb + 2, 2), AD + 2 + win, base + kk * 2048 + 1024), ("f", m)),
                                           ("ds_read_b128 %s, v%d offset:%d" % (v(hb, 4), AD + win, base + kk * 1024), ("f", m))],
                            waits=[("f", m)], la=4,
                            mfma="v_mfma_f32_32x32x16_bf16 %s, %s, %s, %s" % (acc, v(fb, 4), v(hb, 4), "0" if (n in (20, 48) and kk == 0) else acc)))
    G = XR + 80; XF = XR + 96; E = []
    for j in range(16): E.append(I("v_mul_f32 v%d, s%d, v%d" % (G + j, sL2E, Y + j)))
    for j in range(16): E.append(I("v_exp_f32 v%d, -v%d" % (G + j, G + j)))
    for j in range(16): E.append(I("v_add_f32 v%d, 1.0, v%d" % (G + j, G + j)))
    for j in range(16): E.append(I("v_rcp_f32 v%d, v%d" % (G + j, G + j)))
    for j in range(16): E.append(I("v_mul_f32 v%d, v%d, v%d" % (G + j, G + j, Y + j)))
    E.append(W(vm=["res"]))
    for j in range(8):
        E.append(I("v_lshlrev_b32 v%d, 16, v%d" % (XF + 2 * j, AD + 4 + j))); E.append(I("v_and_b32 v%d, 0xffff0000, v%d" % (XF + 2 * j + 1, AD + 4 + j)))
    e0 = n1 + 28 * 4 + 1
    for j, it in enumerate(E): fill.setdefault(e0 + j * 24 // len(E), []).append(it)
    issued = 0; bar_done = 0
    def issue_reads(upto_fn):
        nonlocal issued, bar_done
        while issued < len(ops) and upto_fn(issued):
            o = ops[issued]
            if o["slab"] > bar_done:
                bar_done = o["slab"]
                for it in pre.get(bar_done, []): P.append(it)
                a("s_barrier")
            for t, tag in o["reads"]: a(t, tag)
            issued += 1
    P.append(W(lg=[("xn", 31)]))
    a("s_barrier")
    a("ds_write_b32 v%d, v%d" % (RS_ADDR, RS_VAL), "rsw")
    pre.setdefault(1, []).append(W(vm=[("slab", 1)], lg=["rsw"]))
    fill.setdefault(16, []).append(I("ds_read_b32 v%d, v%d" % (C_R, C_R2), "rsr"))
    fill.setdefault(24, []).extend([W(lg=["rsr"]), I("v_mul_f32 v%d, v%d, v%d" % (C_R2, C_R, C_R))])
    issue_reads(lambda m: m < ops[m]["la"])
    for m, o in enumerate(ops):
        P.append(W(lg=o["waits"]))
        a(o["mfma"])
        issue_reads(lambda k: k - ops[k]["la"] <= m)
        for it in fill.get(m, []): P.append(it)
    for j in range(16): a("v_fma_f32 v%d, v%d, v%d, v%d" % (G + j, S_ + j, G + j, XF + j))
    for j in range(8): a("v_cvt_pk_bf16_f32 v%d, v%d, v%d" % (XF + j, G + 2 * j, G + 2 * j + 1))
    a("buffer_store_dwordx4 %s, v%d, %s, 0 offen" % (v(XF, 4), AD + 12, srd(SOUT)))
    a("buffer_store_dwordx4 %s, v%d, %s, 0 offen offset:16" % (v(XF + 4, 4), AD + 12, srd(SOUT)))
    a("s_endpgm")
    return P

_lbl = [0]
def gate(P, vaddr, srdb, off, tag, vdst, want, skip=None):
    _lbl[0] += 1; n = _lbl[0]
    P.append(W(vm=[tag]))
    if skip is not None:
        P.append(I("s_cmp_lg_u32 s%d, 0" % skip)); P.append(I("s_cbranch_scc1 L_ok%d" % n))
    P.append(I("v_readfirstlane_b32 s%d, v%d" % (sT5, vdst)))
    P.append(I("s_cmp_eq_u32 s%d, %d" % (sT5, want)))
    P.append(I("s_cbranch_scc1 L_ok%d" % n))
    P.append(L("    s_mov_b32 s%d, 0" % sSPIN))
    P.append(L("L_spin%d:" % n))
    P.append(L("    s_sleep 1"))
    P.append(L("    buffer_load_dword v%d, v%d, %s, 0 offen offset:%d sc1" % (vdst, vaddr, srd(srdb), off)))
    P.append(L("    s_add_u32 s%d, s%d, 1" % (sSPIN, sSPIN)))
    P.append(L("    s_waitcnt vmcnt(0)"))
    P.append(L("    v_readfirstlane_b32 s%d, v%d" % (sT5, vdst)))
    P.append(L("    s_cmp_ge_u32 s%d, 0x40000" % sSPIN))
    P.append(L("    s_cbranch_scc1 L_ok%d" % n))
    P.append(L("    s_cmp_eq_u32 s%d, %d" % (sT5, want)))
    P.append(L("    s_cbranch_scc0 L_spin%d" % n))
    P.append(L("L_ok%d:" % n))

def signal(B, vaddr, off):
    B.append(I("s_mov_b64 exec, 1"))
    B.append(I("buffer_atomic_add v%d, v%d, %s, 0 offen offset:%d sc1" % (H_ONE, vaddr, srd(SWS), off)))
    B.append(I("s_mov_b64 exec, -1"))

H_P = 6
H_A, H_B, H_B2 = 12, 13, 14
H_ONE, H_ZERO, H_CMINE, H_CCONS, H_CKV, H_POLL, H_POLL2, H_L2E = 15, 16, 17, 18, 19, 20, 21, 22
H_RK, H_RV, H_RP, H_ST, H_ZA, H_TCH = 24, 25, 26, 27, 28, 29
H_ONES = 32
H_WPHI = 36
H_KF = 40
H_ACC = 56
H_T = 72
H_PHI = 128
H_LD = 160
def softmax_unit(u, dst, Pm, R):
    B = []; b = lambda t, tag=None: B.append(I(t, tag))
    b("v_mfma_f32_32x32x16_bf16 %s, %s, %s, 0" % (v(Pm, 16), v(H_WPHI, 4), v(H_KF + 4 * u, 4)))
    for g in range(2): b("v_max3_f32 v%d, v%d, v%d, v%d" % (R + g, Pm + 8 * g, Pm + 8 * g + 1, Pm + 8 * g + 2))
    for g in range(2): b("v_max3_f32 v%d, v%d, v%d, v%d" % (R + 2 + g, Pm + 8 * g + 3, Pm + 8 * g + 4, Pm + 8 * g + 5))
    for g in range(2): b("v_max3_f32 v%d, v%d, v%d, v%d" % (R + g, R + g, Pm + 8 * g + 6, Pm + 8 * g + 7))
    for g in range(2): b("v_max_f32 v%d, v%d, v%d" % (R + g, R + g, R + 2 + g))
    def allred(op, mid):
        b("v_permlane32_swap_b32 v%d, v%d" % (R, R + 1))
        b("%s v%d, v%d, v%d" % (op, R, R, R + 1))
        b(mid)
        b("v_mov_b32 v%d, v%d" % (R + 1, R))
        b("v_permlane32_swap_b32 v%d, v%d" % (R, R + 1))
    allred("v_max_f32", "v_mul_f32 v%d, v%d, v%d" % (R, H_L2E, R))
    for j in range(16): b("v_fma_f32 v%d, v%d, v%d, -v%d" % (Pm + j, Pm + j, H_L2E, R + j // 8))
    for j in range(16): b("v_exp_f32 v%d, v%d" % (Pm + j, Pm + j))
    for g in range(2):
        b("v_add_f32 v%d, v%d, v%d" % (R + g, Pm + 8 * g, Pm + 8 * g + 1)); b("v_add_f32 v%d, v%d, v%d" % (R + 2 + g, Pm + 8 * g + 2, Pm + 8 * g + 3))
    for k in (4, 6):
        for g in range(2):
            b("v_add_f32 v%d, v%d, v%d" % (R + g, R + g, Pm + 8 * g + k)); b("v_add_f32 v%d, v%d, v%d" % (R + 2 + g, R + 2 + g, Pm + 8 * g + k + 1))
    for g in range(2): b("v_add_f32 v%d, v%d, v%d" % (R + g, R + g, R + 2 + g))
    allred("v_add_f32", "v_rcp_f32 v%d, v%d" % (R, R))
    for j in range(16): b("v_mul_f32 v%d, v%d, v%d" % (Pm + j, Pm + j, R + j // 8))
    for j in range(8): b("v_cvt_pk_bf16_f32 v%d, v%d, v%d" % (dst + j, Pm + 2 * j, Pm + 2 * j + 1))
    return B

def zipper(x, y, lag=0):
    out = list(x[:lag]); x = x[lag:]
    for i in range(max(len(x), len(y))):
        if i < len(y): out.append(y[i])
        if i < len(x): out.append(x[i])
    return out

def helper(ty):
    P = []; a = lambda t, tag=None: P.append(I(t, tag))
    stamp = lambda k: stamp_to(P, k)
    stamp(60)
    fcols(a, ty)
    a("s_mov_b32 s%d, 3584" % sT3); a("s_mov_b32 s%d, 3072" % sT4)
    ph = PH[ty]; gu = 0; info = []
    for pi, (kind, e) in enumerate(ph):
        stride = 3584 if e == "gu" else 3072
        rows = 16 if kind == "P4" else 32
        a("s_mul_i32 s%d, s%d, %d" % (sT0, sW3, rows * stride))
        ca, cb = sPH + 2 * pi, sPH + 2 * pi + 1
        if e == "gu":
            a("s_lshl_b32 s%d, s%d, 1" % (sT1, sKS + gu)); a("s_add_u32 s%d, s%d, s%d" % (ca, sT0, sT1)); a("s_mov_b32 s%d, s%d" % (cb, ca)); gu += 1
            sa, sb = SG, SU
        elif e == "kv":
            a("s_add_u32 s%d, s%d, s%d" % (ca, sT0, sCA)); a("s_add_u32 s%d, s%d, s%d" % (cb, sT0, sCB)); sa = sb = SQKV
        else:
            a("s_lshl_b32 s%d, s%d, 7" % (sT1, sGR)); a("s_add_u32 s%d, s%d, s%d" % (ca, sT0, sT1)); a("s_add_u32 s%d, s%d, 64" % (cb, ca)); sa = sb = SQKV
        if pi > 0:
            (p4_voffs if kind == "P4" else p2_voffs)(a, H_P + 2 * pi, H_P + 2 * pi + 1, "s%d" % (sT3 if e == "gu" else sT4), H_T)
        info.append((kind, stride, sa, sb))
    a("s_lshl_b32 s%d, s%d, 12" % (sCA, sW3))
    a("s_lshl_b32 s%d, s%d, 11" % (sCB, sW3))
    sl = slabs_of(ty)
    def dma(n):
        slot = (n & 7) * SLOT
        if n < 20:
            pi, kind, sg = sl[n]; _, stride, sa, sb = info[pi]
            if kind == "P4":
                a("s_lshl_b32 s%d, s%d, 1" % (sT0, sR1)); a("s_add_u32 s%d, s%d, %d" % (sT0, sT0, sg)); a("s_and_b32 s%d, s%d, 7" % (sT0, sT0))
                a("s_mul_i32 s%d, s%d, %d" % (sT0, sT0, 64 * stride)); step = 8 * stride
            else:
                a("s_add_u32 s%d, s%d, %d" % (sT0, sR1, sg)); a("s_and_b32 s%d, s%d, 3" % (sT0, sT0))
                a("s_mul_i32 s%d, s%d, %d" % (sT0, sT0, 128 * stride)); step = 16 * stride
            for p in range(4):
                a("s_add_u32 m0, s%d, %d" % (sCA, slot + p * 1024))
                if p == 2: a("s_add_u32 s%d, s%d, %d" % (sT0, sT0, step))
                a("s_add_u32 s%d, s%d, s%d" % (sT1, sT0, sPH + 2 * pi + (p & 1)))
                a("buffer_load_dwordx4 v%d, %s, s%d offen lds" % (H_P + 2 * pi + (p & 1), srd(sb if p & 1 else sa), sT1), ("slab", n))
        else:
            k = n - 20
            if k < 24 or k >= 28:
                a("s_add_u32 s%d, s%d, %d" % (sT0, sR2, k)); a("s_and_b32 s%d, s%d, 7" % (sT0, sT0))
            if k < 8: a("s_lshl_b32 s%d, s%d, 1" % (sT0, sT0))
            elif k < 16:
                a("s_lshr_b32 s%d, s%d, 1" % (sT1, sT0)); a("s_and_b32 s%d, s%d, 1" % (sT0, sT0)); a("s_mul_i32 s%d, s%d, 3" % (sT1, sT1))
                a("s_lshl_b32 s%d, s%d, 1" % (sT0, sT0)); a("s_add_u32 s%d, s%d, s%d" % (sT0, sT0, sT1)); a("s_add_u32 s%d, s%d, 16" % (sT0, sT0))
            elif k < 24:
                a("s_lshl_b32 s%d, s%d, 1" % (sT0, sT0)); a("s_add_u32 s%d, s%d, 1" % (sT0, sT0))
            elif k < 28:
                a("s_add_u32 s%d, s%d, %d" % (sT0, sR2, k)); a("s_and_b32 s%d, s%d, 3" % (sT0, sT0)); a("s_mul_i32 s%d, s%d, 3" % (sT0, sT0)); a("s_add_u32 s%d, s%d, 17" % (sT0, sT0))
            a("s_lshl_b32 s%d, s%d, 16" % (sT1, sT0))
            a("s_lshl_b32 s%d, s%d, 12" % (sT0, sT0))
            if k >= 28: a("s_add_u32 s%d, s%d, %d" % (sT0, sT0, 28 * 4096))
            wb = srd(SWD if k < 28 else SWO)
            a("s_add_u32 m0, s%d, %d" % (sCB, slot + 8192))
            a("buffer_load_dwordx4 v%d, %s, s%d offen lds" % (H_B, wb, sT1), ("slab", n))
            a("buffer_load_dwordx4 v%d, %s, s%d offen offset:1024 lds" % (H_B2, wb, sT1), ("slab", n))
            a("s_add_u32 m0, s%d, %d" % (sCB, slot))
            a("buffer_load_dwordx4 v%d, %s, s%d offen sc1 lds" % (H_A, srd(SWS), sT0), ("slab", n))
            a("buffer_load_dwordx4 v%d, %s, s%d offen offset:1024 sc1 lds" % (H_A, srd(SWS), sT0), ("slab", n))
    def init():
        a("v_mov_b32 v%d, 1" % H_ONE); a("v_mov_b32 v%d, 0" % H_ZERO)
        a("v_lshlrev_b32 v%d, 8, v1" % H_T)
        a("s_add_u32 s%d, s2, s%d" % (sT0, sW3)); a("s_cmp_lg_u32 s%d, 0" % sT0); a("s_cbranch_scc1 L_noinit%d" % ty)
        P.append(L("    buffer_store_dword v%d, v%d, %s, 0 offen sc1" % (H_ZERO, H_T, srd(SWS))))
        P.append(L("    s_movk_i32 s%d, 0x4000" % sT0))
        P.append(L("    buffer_store_dword v%d, v%d, %s, s%d offen sc1" % (H_ZERO, H_T, srd(SWS), sT0)))
        P.append(L("L_noinit%d:" % ty))
    def init2():
        a("s_add_u32 s%d, s2, s%d" % (sT0, sW3)); a("s_cmp_lg_u32 s%d, 0" % sT0); a("s_cbranch_scc1 L_noinitb%d" % ty)
        P.append(L("    buffer_store_dword v%d, v%d, %s, 0 offen sc1" % (H_ONE, H_ZERO, srd(SDBG))))
        P.append(L("L_noinitb%d:" % ty))
    B0 = []; b = lambda t, tag=None: B0.append(I(t, tag))
    t0, t1, t2, t3 = H_T, H_T + 1, H_T + 2, H_T + 3
    b("s_lshl_b32 s%d, s%d, 2" % (sT2, sGR)); b("s_add_u32 s%d, s%d, s%d" % (sT2, sT2, sW3))
    b("v_lshrrev_b32 v%d, 5, v1" % t3); b("v_and_b32 v%d, 15, v1" % t1); b("v_lshrrev_b32 v%d, 4, v1" % t0)
    b("v_lshlrev_b32 v%d, 7, v%d" % (t2, t3)); b("v_lshl_add_u32 v%d, v%d, 1, v%d" % (t2, t1, t2))
    b("s_lshl_b32 s%d, s%d, 9" % (sT0, sT2))
    for j in range(8):
        b("buffer_load_ushort v%d, v%d, %s, s%d offen offset:%d" % (H_ACC + j, t2, srd(SPHI), sT0, 32 * ((j & 3) + 8 * (j >> 2))), "wphi")
    b("s_lshl_b32 s%d, s%d, 1" % (sT0, sTT)); b("s_lshr_b32 s%d, s%d, 1" % (sT1, sW3)); b("s_add_u32 s%d, s%d, s%d" % (sT0, sT0, sT1))
    b("s_mul_i32 s%d, s%d, 147456" % (sT0, sT0)); b("s_and_b32 s%d, s%d, 1" % (sT1, sW3)); b("s_lshl_b32 s%d, s%d, 11" % (sT1, sT1))
    b("s_add_u32 s%d, s%d, s%d" % (sT0, sT0, sT1)); b("s_add_u32 s%d, s%d, %d" % (sT0, sT0, WS_HO))
    b("v_lshlrev_b32 v%d, 4, v1" % H_A); b("v_add_u32 v%d, s%d, v%d" % (H_A, sT0, H_A))
    u0, u1, u2 = H_T + 4, H_T + 5, H_T + 6
    b("v_lshrrev_b32 v%d, 3, v1" % u0); b("v_and_b32 v%d, 2, v%d" % (u1, u0)); b("v_lshlrev_b32 v%d, 1, v%d" % (u1, u1))
    b("v_and_b32 v%d, 7, v1" % u2); b("v_xor_b32 v%d, v%d, v%d" % (u2, u2, u1))
    b("v_lshlrev_b32 v%d, 10, v%d" % (u0, u0)); b("v_lshl_add_u32 v%d, v%d, 4, v%d" % (H_B, u2, u0))
    b("s_lshl_b32 s%d, s%d, 14" % (sT0, sW3)); b("s_lshl_b32 s%d, s%d, 7" % (sT1, sCT)); b("s_add_u32 s%d, s%d, s%d" % (sT0, sT0, sT1))
    b("v_add_u32 v%d, s%d, v%d" % (H_B, sT0, H_B)); b("v_add_u32 v%d, %d, v%d" % (H_B2, 8192 - 1024, H_B))
    B0a = B0; B0 = []
    b("s_lshl_b32 s%d, s%d, 10" % (sT0, sI)); b("v_mov_b32 v%d, s%d" % (H_CMINE, sT0))
    b("s_lshr_b32 s%d, s%d, 1" % (sT0, sTT)); b("s_lshl_b32 s%d, s%d, 10" % (sT0, sT0)); b("v_mov_b32 v%d, s%d" % (H_CCONS, sT0))
    b("s_lshl_b32 s%d, s%d, 8" % (sT0, sT2)); b("s_add_u32 s%d, s%d, 0x4000" % (sT0, sT0)); b("v_mov_b32 v%d, s%d" % (H_CKV, sT0))
    b("v_mov_b32 v%d, s%d" % (H_L2E, sL2E))
    b("s_lshl_b32 s%d, s2, 2" % sT0); b("s_add_u32 s%d, s%d, s%d" % (sT0, sT0, sW3)); b("s_mul_i32 s%d, s%d, 14" % (sT1, sT0))
    b("v_add_u32 v%d, s%d, v1" % (H_TCH, sT1)); b("v_lshlrev_b32 v%d, 7, v%d" % (H_TCH, H_TCH))
    b("s_lshl_b32 s%d, s%d, 2" % (sT1, sT0)); b("v_add_u32 v%d, s%d, v1" % (H_TCH + 1, sT1)); b("v_lshlrev_b32 v%d, 7, v%d" % (H_TCH + 1, H_TCH + 1))
    if ty == 0: b("s_lshl_b32 s%d, s%d, 11" % (sT0, sW3))
    else:
        b("s_and_b32 s%d, s%d, 1" % (sT0, sW3)); b("s_lshl_b32 s%d, s%d, 11" % (sT0, sT0)); b("s_lshr_b32 s%d, s%d, 1" % (sT1, sW3))
        b("s_lshl_b32 s%d, s%d, 10" % (sT1, sT1)); b("s_add_u32 s%d, s%d, s%d" % (sT0, sT0, sT1))
    b("s_add_u32 s%d, s%d, %d" % (sT0, sT0, EX))
    b("v_lshlrev_b32 v%d, 4, v1" % u0); b("v_add_u32 v%d, s%d, v%d" % (H_RK, sT0, u0))
    if ty == 0:
        b("v_and_b32 v%d, 1, v1" % t2); b("v_lshlrev_b32 v%d, 9, v%d" % (H_RV, t2)); b("v_lshl_add_u32 v%d, v%d, 7, v%d" % (H_RV, t0, H_RV))
        b("v_bfe_u32 v%d, v1, 2, 2" % t2); b("v_lshl_add_u32 v%d, v%d, 4, v%d" % (H_RV, t2, H_RV))
        b("v_bfe_u32 v%d, v1, 1, 1" % t2); b("v_lshl_add_u32 v%d, v%d, 3, v%d" % (H_RV, t2, H_RV)); b("v_add_u32 v%d, s%d, v%d" % (H_RV, sT0, H_RV))
        for j in range(4): b("v_mov_b32 v%d, 0x3f803f80" % (H_ONES + j))
        b("s_lshl_b32 s%d, s%d, 4" % (sT0, sT2)); b("s_add_u32 s%d, s%d, s%d" % (sT0, sT0, sI))
        b("s_lshl_b32 s%d, s%d, 11" % (sT1, sT0)); b("s_add_u32 s%d, s%d, %d" % (sT1, sT1, WS_KV))
        b("v_add_u32 v%d, s%d, v%d" % (H_ST, sT1, u0))
        b("s_lshl_b32 s%d, s%d, 7" % (sT1, sT0)); b("s_add_u32 s%d, s%d, %d" % (sT1, sT1, WS_Z))
        b("v_lshlrev_b32 v%d, 6, v%d" % (H_ZA, t1)); b("v_lshl_add_u32 v%d, v%d, 4, v%d" % (H_ZA, t0, H_ZA)); b("v_add_u32 v%d, s%d, v%d" % (H_ZA, sT1, H_ZA))
    else:
        b("s_lshl_b32 s%d, s%d, 15" % (sT1, sT2)); b("s_add_u32 s%d, s%d, %d" % (sT1, sT1, WS_KV))
        b("v_add_u32 v%d, s%d, v%d" % (H_RV, sT1, u0))
        b("s_lshl_b32 s%d, s%d, 11" % (sT1, sT2)); b("s_add_u32 s%d, s%d, %d" % (sT1, sT1, WS_Z))
        b("v_lshlrev_b32 v%d, 7, v%d" % (H_ZA, t1)); b("v_lshl_add_u32 v%d, v%d, 4, v%d" % (H_ZA, t0, H_ZA)); b("v_add_u32 v%d, s%d, v%d" % (H_ZA, sT1, H_ZA))
        b("s_mul_i32 s%d, s%d, 576" % (sT1, sI)); b("s_add_u32 s%d, s%d, s%d" % (sT1, sT1, sT2)); b("s_add_u32 s%d, s%d, 112" % (sT1, sT1))
        b("s_lshl_b32 s%d, s%d, 10" % (sT1, sT1)); b("s_add_u32 s%d, s%d, %d" % (sT1, sT1, WS_HO))
        b("v_add_u32 v%d, s%d, v%d" % (H_ST, sT1, u0))
    B0b = B0; B0 = []
    B0.append(W(vm=["wphi"]))
    b("v_and_b32 v%d, 1, v%d" % (t2, t0)); b("v_mul_u32_u24 v%d, 0x8000, v%d" % (t2, t2)); b("v_lshl_or_b32 v%d, v%d, 16, v%d" % (t2, t2, t2))
    for j in range(4): b("v_lshl_or_b32 v%d, v%d, 16, v%d" % (H_WPHI + j, H_ACC + 2 * j + 1, H_ACC + 2 * j))
    for j in range(4): b("v_xor_b32 v%d, v%d, v%d" % (H_WPHI + j, H_WPHI + j, t2))
    B0c = B0
    B = []; b = lambda t, tag=None: B.append(I(t, tag))
    bstamp = lambda k: (lambda g: (stamp_to(g, k, H_STAMP2), B.append(g)))([])
    if CFG["prio"]: b("s_setprio %d" % CFG["prio"])
    for u in range(4): b("ds_read_b128 %s, v%d offset:%d" % (v(H_KF + 4 * u, 4), H_RK, u * 8192), "kf")
    B.append(W(lg=["kf"]))
    PM = (H_T, H_T + 16); RR = (H_T + 32, H_T + 36)
    if ty == 0:
        bg_start = 9
        def tail(u):
            X = []; x = lambda t, tag=None: X.append(I(t, tag))
            PHI = H_PHI + 8 * (u & 1); FR = H_PHI + 16 + 12 * (u & 1); so = (u & 1) * 16384
            for sg in range(2): x("ds_write_b128 v%d, %s offset:%d" % (H_RK, v(PHI + 4 * sg, 4), so + sg * 8192), ("pw", u))
            for q in range(2): x("ds_read_b64_tr_b16 %s, v%d offset:%d" % (v(FR + 2 * q, 2), H_RV, u * 8192 + 1024 + q * 64), ("pr", u))
            for sg in range(2):
                for q in range(2): x("ds_read_b64_tr_b16 %s, v%d offset:%d" % (v(FR + 4 + 4 * sg + 2 * q, 2), H_RV, so + sg * 8192 + q * 64), ("pr", u))
            return X
        def kvm(u):
            X = [W(lg=[("pr", u)])]; FR = H_PHI + 16 + 12 * (u & 1)
            for sg in range(2):
                c = v(H_ACC + 4 * sg, 4); z = v(H_ACC + 8 + 4 * sg, 4)
                X.append(I("v_mfma_f32_16x16x32_bf16 %s, %s, %s, %s" % (c, v(FR + 4 + 4 * sg, 4), v(FR, 4), "0" if u == 0 else c)))
                X.append(I("v_mfma_f32_16x16x32_bf16 %s, %s, %s, %s" % (z, v(FR + 4 + 4 * sg, 4), v(H_ONES, 4), "0" if u == 0 else z)))
            return X
        for pr in range(2):
            z = zipper(softmax_unit(2 * pr + 1, H_PHI + 8, PM[1], RR[1]), softmax_unit(2 * pr, H_PHI, PM[0], RR[0]))
            if pr == 1: z = z[:2] + kvm(0) + kvm(1) + z[2:]
            B += z + tail(2 * pr) + tail(2 * pr + 1)
        b("v_and_b32 v%d, 15, v1" % H_T); b("v_cmp_eq_u32 vcc, 1, v%d" % H_T)
        B += kvm(2) + kvm(3)
        for j in range(4): b("v_cndmask_b32 v%d, v%d, v%d, vcc" % (H_ACC + 8 + j, H_ACC + 8 + j, H_ACC + 12 + j))
        b("buffer_store_dwordx4 %s, v%d, %s, 0 offen sc1" % (v(H_ACC, 4), H_ST, srd(SWS)), "part")
        b("buffer_store_dwordx4 %s, v%d, %s, 0 offen offset:1024 sc1" % (v(H_ACC + 4, 4), H_ST, srd(SWS)), "part")
        B.append([I("s_mov_b32 exec_lo, 0x00030003"), I("s_mov_b32 exec_hi, 0x00030003"),
                  I("buffer_store_dwordx4 %s, v%d, %s, 0 offen sc1" % (v(H_ACC + 8, 4), H_ZA, srd(SWS)), "part"), I("s_mov_b64 exec, -1")])
        if CFG["prio"]: b("s_setprio 0")
        bstamp(12)
        for _ in range(CFG["sigdelay"]): B.append("step")
        g = [W(vm=["part"])]; signal(g, H_CKV, 0); B.append(g)
        bstamp(13)
    else:
        bg_start = 13
        for pr in range(2):
            B += zipper(softmax_unit(2 * pr + 1, H_PHI + 16 * pr + 8, PM[1], RR[1]), softmax_unit(2 * pr, H_PHI + 16 * pr, PM[0], RR[0]))
        if CFG["prio"]: b("s_setprio 0")
        bstamp(12)
        B.append(("until", CFG["kvgate"] - 1))
        b("buffer_load_dword v%d, v%d, %s, 0 offen sc1" % (H_POLL2, H_CKV, srd(SWS)), "pollkv")
        B.append("step")
        bstamp(13)
        g = []; gate(g, H_CKV, SWS, 0, "pollkv", H_POLL2, 16); B.append(g)
        bstamp(14)
        Z = H_ACC + 8
        b("buffer_load_dwordx4 %s, v%d, %s, 0 offen sc1" % (v(Z, 4), H_ZA, srd(SWS)), "zl")
        b("buffer_load_dwordx4 %s, v%d, %s, 0 offen offset:64 sc1" % (v(Z + 4, 4), H_ZA, srd(SWS)), "zl")
        dreg = lambda m: H_ACC if m == 0 else (H_LD + 8 * (m - 1) if m <= 11 else H_T + 8 * (m - 12))
        for m in range(16):
            d = dreg(m)
            B.append([I("s_movk_i32 s%d, %d" % (sT5, (m >> 1) * 4096)),
                      I("buffer_load_dwordx4 %s, v%d, %s, s%d offen offset:%d sc1" % (v(d, 4), H_RV, srd(SWS), sT5, (m & 1) * 2048), ("pl", m)),
                      I("buffer_load_dwordx4 %s, v%d, %s, s%d offen offset:%d sc1" % (v(d + 4, 4), H_RV, srd(SWS), sT5, (m & 1) * 2048 + 1024), ("pl", m))])
            if m % CFG["plstep"] == CFG["plstep"] - 1: B.append("step")
        B.append(W(vm=["zl"]))
        for k in (8, 4, 2, 1):
            for j in range(8): b("v_add_f32_dpp v%d, v%d, v%d row_ror:%d row_mask:0xf bank_mask:0xf" % (Z + j, Z + j, Z + j, k))
        for m in range(1, 16):
            B.append(W(vm=[("pl", m)]))
            for j in range(8): b("v_add_f32 v%d, v%d, v%d" % (H_ACC + j, H_ACC + j, dreg(m) + j))
        KV = H_KF
        for sg in range(2):
            for j in range(2):
                b("v_cvt_pk_bf16_f32 v%d, v%d, v%d" % (KV + 4 * sg + j, H_ACC + 4 * sg + 2 * j, H_ACC + 4 * sg + 2 * j + 1))
                b("v_cvt_pk_bf16_f32 v%d, v%d, v%d" % (KV + 4 * sg + 2 + j, Z + 4 * sg + 2 * j, Z + 4 * sg + 2 * j + 1))
        for w in ("16", "32"):
            for sg in range(2):
                for j in range(2): b("v_permlane%s_swap_b32 v%d, v%d" % (w, KV + 4 * sg + j, KV + 4 * sg + 2 + j))
        for u in range(4):
            N = v(H_LD + 16 * u, 16)
            b("v_mfma_f32_32x32x16_bf16 %s, %s, %s, 0" % (N, v(KV, 4), v(H_PHI + 8 * u, 4)))
            b("v_mfma_f32_32x32x16_bf16 %s, %s, %s, %s" % (N, v(KV + 4, 4), v(H_PHI + 8 * u + 4, 4), N))
        for u in range(4): b("v_add_f32 v%d, 0x358637bd, v%d" % (H_LD + 16 * u + 8, H_LD + 16 * u + 8))
        for u in range(4): b("v_rcp_f32 v%d, v%d" % (H_LD + 16 * u + 8, H_LD + 16 * u + 8))
        for u in range(4):
            N = H_LD + 16 * u
            for j in range(8): b("v_mul_f32 v%d, v%d, v%d" % (N + j, N + j, N + 8))
            for j in range(4): b("v_cvt_pk_bf16_f32 v%d, v%d, v%d" % (N + j, N + 2 * j, N + 2 * j + 1))
            B.append([I("s_mov_b32 s%d, %d" % (sT5, u * 147456)),
                      I("buffer_store_dwordx4 %s, v%d, %s, s%d offen sc1" % (v(N, 4), H_ST, srd(SWS), sT5), "ost")])
        bstamp(15)
        for _ in range(CFG["sigdelay2"]): B.append("step")
        g = [W(vm=["ost"])]; signal(g, H_CMINE, C_O * 256); B.append(g)
        bstamp(16)
    issue = {0: [2, 3], 1: [4, 5], 2: [6, 7], 3: [8, 9]}
    for n in range(10, 20): issue.setdefault(n - 6, []).append(n)
    for k, st in enumerate(CFG["feed"]): issue.setdefault(st, []).append(20 + k)
    for n in range(20 + len(CFG["feed"]), 56): issue.setdefault(n - CFG["ahead2"], []).append(n)
    gates = {20: (C_H1Q, 8), 28: (C_H1KV, 8), 36: (C_H2, 16), 48: (C_O, 32)}
    step_of = {n: st for st, l in issue.items() for n in l}
    for n, st in step_of.items(): assert n <= st + 6 and n > st
    gate_at = {step_of[n]: n for n in gates}
    first_gu_end = [n for n, (pi, k, sg) in enumerate(sl) if PH[ty][pi][1] == "gu" and sg == 7][0]
    sig = {first_gu_end + 4: C_H1Q if ty == 1 else C_H1KV, CFG["h2wait"]: C_H2}
    assert CFG["h2wait"] < step_of[36] and 19 < step_of[28] and 11 < step_of[20]
    def only_w0(n, nm, items):
        a("s_cmp_lg_u32 s%d, 0" % sW3); a("s_cbranch_scc1 L_%s%d_%d" % (nm, ty, n))
        t, _ = finalize(items)
        for x in t: P.append(L(x))
        P.append(L("L_%s%d_%d:" % (nm, ty, n)))
    init()
    a("s_barrier")
    stamp(61)
    a("ds_write_b32 v%d, v%d" % (RS_ADDR, RS_VAL), "rsw")
    for m in issue[0]: dma(m)
    bi = 0
    for n in range(1, 56):
        P.append(W(vm=[("slab", n)], lg=["rsw"] if n == 1 else None))
        if n in gate_at:
            m = gate_at[n]; g = []
            stamp_to(P, 20 + 2 * list(gates).index(m), H_STAMP2)
            gate(P, H_CCONS, SWS, gates[m][0] * 256, ("poll", m), H_POLL, gates[m][1], sW3)
            stamp_to(P, 21 + 2 * list(gates).index(m), H_STAMP2)
        if n == 8: gate(P, H_ZERO, SDBG, 0, "pollinit", H_POLL, 1, sW3)
        a("s_barrier")
        stamp(n)
        if n in sig:
            g = []; signal(g, H_CMINE, sig[n] * 256); only_w0(n, "nosig", g)
        if n + 1 in gate_at or n == 7:
            if n == 7: t, tag = "buffer_load_dword v%d, v%d, %s, 0 offen sc1" % (H_POLL, H_ZERO, srd(SDBG)), "pollinit"
            else: t, tag = "buffer_load_dword v%d, v%d, %s, 0 offen offset:%d sc1" % (H_POLL, H_CCONS, srd(SWS), gates[gate_at[n + 1]][0] * 256), ("poll", gate_at[n + 1])
            only_w0(n, "nopoll", [I(t)]); P.append(M(tag))
        for m in issue.get(n, []): dma(m)
        if n == 1: P += B0a
        if n == 2: init2(); P += B0b
        if n == CFG["touch"]:
            a("s_mov_b64 exec, 0x3fff"); a("buffer_load_dword v%d, v%d, %s, 0 offen" % (H_POLL2, H_TCH, srd(SWD)))
            a("s_mov_b64 exec, 0xf"); a("buffer_load_dword v%d, v%d, %s, 0 offen" % (H_POLL2, H_TCH + 1, srd(SWO)))
            a("s_mov_b64 exec, -1")
        if n == 6: P += B0c
        if n >= bg_start:
            budget = CFG["chunk"] if n < 20 else CFG["chunk2"]
            while bi < len(B) and budget > 0:
                it = B[bi]
                if isinstance(it, tuple):
                    if n < it[1]: break
                    bi += 1; continue
                bi += 1
                if it == "step": break
                if isinstance(it, list): P += it; budget -= len(it)
                else: P.append(it); budget -= 1
            if bi == len(B):
                sys.stderr.write("type %d: background done in step %d\n" % (ty, n)); bi += 1
                assert n < step_of[48]
    assert bi > len(B)
    if CFG["stamps"]:
        stamp(62)
        a("s_lshl_b32 s%d, s2, 8" % sT0); a("s_add_u32 s%d, s%d, %d" % (sT0, sT0, WS_ST))
        a("v_lshlrev_b32 v%d, 2, v1" % H_T)
        a("s_cmp_lg_u32 s%d, 0" % sW3); a("s_cbranch_scc1 L_exit")
        a("buffer_store_dword v%d, v%d, %s, s%d offen" % (H_STAMP, H_T, srd(SWS), sT0))
        a("s_add_u32 s%d, s%d, 0x10000" % (sT0, sT0))
        a("buffer_store_dword v%d, v%d, %s, s%d offen" % (H_STAMP2, H_T, srd(SWS), sT0))
    a("s_endpgm")
    return P

def main():
    hdr = open("cdna_kernels/%s.s.ref" % NAME).read().split("; Override launch geometry")[0]
    out = [hdr.rstrip(), "; @launch grid=(256,1,1) block=(512,1,1) lds=163840",
           '.amdgcn_target "amdgcn-amd-amdhsa--gfx950"', ".text", ".globl %s_kernel" % NAME, ".p2align 8",
           ".type %s_kernel,@function" % NAME, "%s_kernel:" % NAME]
    t, st = finalize(prologue()); out += t
    def branch_ty(lbl): return [I("s_cmp_eq_u32 s%d, 1" % sTY), I("s_cbranch_scc1 %s" % lbl)]
    t, _ = finalize(branch_ty("L_comp1") + compute(0), st.clone()); out += t
    out.append("L_comp1:"); t, _ = finalize(compute(1), st.clone()); out += t
    out.append("L_helper:"); t, _ = finalize(branch_ty("L_help1") + helper(0), st.clone()); out += t
    out.append("L_help1:"); t, _ = finalize(helper(1), st.clone()); out += t
    out += ["L_exit:", "    s_endpgm", '.section .rodata,"a"', ".p2align 6", ".amdhsa_kernel %s_kernel" % NAME,
            "  .amdhsa_next_free_vgpr 256", "  .amdhsa_next_free_sgpr 100", "  .amdhsa_accum_offset 256",
            "  .amdhsa_group_segment_fixed_size 0", "  .amdhsa_kernarg_size 88", "  .amdhsa_user_sgpr_count 2",
            "  .amdhsa_user_sgpr_kernarg_segment_ptr 1", "  .amdhsa_system_sgpr_workgroup_id_x 1", ".end_amdhsa_kernel"]
    open(sys.argv[1], "w").write("\n".join(out) + "\n")
main()
```

```python
import sys, os, json
sys.path.insert(0, os.path.dirname(os.path.abspath(__file__)))
from asmir import I, W, L, M, v, s, finalize, State

NAME = "recurrent_scan__linear_kernel_hedgehog__glu_gated_bilinear__prompt"
CFG = dict(stamps=0, LA=6, chunk=50, chunk2=40, h2wait=25, feed=(16, 16, 17, 17, 18, 19), ahead2=6, espan=4, prio=0, sigdelay=2, sigdelay2=3, kvgate=22, plstep=4, touch=3)
for a in sys.argv[2:]:
    k, x = a.split("="); CFG[k] = json.loads(x)

WS_CNT = 0
WS_KV = 0x10000
WS_Z = 0x120000
WS_ST = 0x140000
WS_HO = 0x200000
WS_BYTES = WS_HO + 64 * 144 * 1024
C_H1Q, C_H1KV, C_H2, C_O = 0, 1, 2, 3
SLOT = 16384; STG = 32768; EX = 131072
SX, SQKV, SPHI, SWO, SG, SU, SWD, SOUT, SDBG, SWS, SA, SB = 8, 12, 16, 20, 24, 28, 32, 36, 40, 44, 48, 52
sW, sW3, sI, sGR, sTY, sR1, sXR, sTT, sCT, sR2 = range(56, 66)
sT0, sT1, sT2, sT3, sT4, sT5 = range(66, 72)
sL2E = 72; sSTR = 73; sCA = 74; sCB = 75; sKS = 76
sSPIN = 80; sEX = 82
sPH = 84
sMK = 94
sTM = 90
srd = lambda b: s(b, 4)
LOG2E = 0x3fb8aa3b
XR = 128; ACC = 64; WF = 32

H_STAMP = 255; H_STAMP2 = 254
def stamp_to(P, k, reg=H_STAMP):
    if CFG["stamps"]:
        P.append(I("s_memtime %s" % s(sTM + 2, 2))); P.append(W(lg="all"))
        P.append(I("s_sub_u32 s%d, s%d, s%d" % (sTM + 2, sTM + 2, sTM))); P.append(I("v_writelane_b32 v%d, s%d, %d" % (reg, sTM + 2, k)))

def prologue():
    P = []; a = lambda t, tag=None: P.append(I(t, tag))
    a("s_cmp_ge_u32 s2, 256")
    a("s_cbranch_scc1 L_exit")
    for b, off in ((SX, 0), (SQKV, 8), (SPHI, 16), (SWO, 24), (SG, 40), (SU, 48), (SWD, 56), (SOUT, 64), (SDBG, 72), (SWS, 80)):
        a("s_load_dwordx2 %s, s[0:1], %d" % (s(b, 2), off))
    if CFG["stamps"]:
        a("s_memtime %s" % s(sTM, 2))
    for b, n in ((SX, 2097152), (SQKV, 1572864), (SPHI, 16384), (SWO, 524288), (SG, 1835008), (SU, 1835008),
                 (SWD, 1835008), (SOUT, 2097152), (SDBG, 256), (SWS, WS_BYTES)):
        a("s_mov_b32 s%d, %d" % (b + 2, n)); a("s_mov_b32 s%d, 0x20000" % (b + 3))
    a("s_mov_b32 s%d, 0x20000" % (SA + 3)); a("s_mov_b32 s%d, 0x20000" % (SB + 3))
    a("v_lshrrev_b32 v2, 6, v0")
    a("v_and_b32 v1, 63, v0")
    a("v_readfirstlane_b32 s%d, v2" % sW)
    a("s_and_b32 s%d, s2, 7" % sT0)
    a("s_lshr_b32 s%d, s2, 3" % sT1)
    a("s_and_b32 s%d, s%d, 3" % (sR1, sT1))
    a("s_lshr_b32 s%d, s%d, 1" % (sT2, sT0)); a("s_lshl_b32 s%d, s%d, 2" % (sT2, sT2)); a("s_add_u32 s%d, s%d, s%d" % (sI, sT2, sR1))
    a("s_lshr_b32 s%d, s%d, 2" % (sCT, sT1))
    a("s_and_b32 s%d, s%d, 3" % (sXR, sCT))
    a("s_lshr_b32 s%d, s%d, 2" % (sTY, sCT))
    a("s_and_b32 s%d, s%d, 1" % (sT2, sT0)); a("s_lshl_b32 s%d, s%d, 2" % (sT2, sT2)); a("s_add_u32 s%d, s%d, s%d" % (sGR, sT2, sXR))
    a("s_lshl_b32 s%d, s%d, 2" % (sT2, sT0)); a("s_add_u32 s%d, s%d, s%d" % (sTT, sT2, sR1))
    a("s_lshl_b32 s%d, s%d, 1" % (sT2, sR1)); a("s_add_u32 s%d, s%d, s%d" % (sR2, sT2, sCT))
    a("s_and_b32 s%d, s%d, 3" % (sW3, sW))
    a("s_mov_b32 s%d, 0x%x" % (sL2E, LOG2E))
    a("v_lshrrev_b32 v4, 4, v1")
    a("v_and_b32 v5, 15, v1")
    a("s_lshl_b32 s%d, s%d, 7" % (sT0, sI)); a("s_lshl_b32 s%d, s%d, 4" % (sT1, sW)); a("s_add_u32 s%d, s%d, s%d" % (sT0, sT0, sT1))
    a("v_add_u32 v3, s%d, v4" % sT0); a("v_lshlrev_b32 v3, 10, v3"); a("v_lshl_add_u32 v3, v5, 4, v3")
    a("s_cmp_eq_u32 s%d, 0" % sTY)
    a("s_cselect_b32 s%d, s%d, s%d" % (SA + 2, SQKV + 2, SG + 2)); a("s_mov_b32 s%d, s%d" % (SB + 2, SA + 2))
    a("s_cselect_b32 s%d, 6, 7" % sSTR)
    a("s_cselect_b32 s%d, 7, 8" % sT0)
    a("s_cselect_b32 s%d, 1024, 0" % sT1)
    a("s_cselect_b32 s%d, 2048, 0" % sT2)
    a("s_lshl_b32 s%d, s%d, 9" % (sSTR, sSTR))
    a("s_lshl_b32 s%d, s%d, s%d" % (sT0, sGR, sT0))
    a("s_add_u32 s%d, s%d, s%d" % (sCA, sT0, sT1)); a("s_add_u32 s%d, s%d, s%d" % (sCB, sT0, sT2))
    p4_voffs(a, 6, 7, "s%d" % sSTR, 8)
    P.append(W(lg="all"))
    if CFG["stamps"]: a("v_mov_b32 v%d, 0" % H_STAMP); a("v_mov_b32 v%d, 0" % H_STAMP2)
    stamp_to(P, 0, H_STAMP2)
    a("s_cmp_eq_u32 s%d, 0" % sTY)
    a("s_cselect_b64 %s, %s, %s" % (s(SA, 2), s(SQKV, 2), s(SG, 2)))
    a("s_cselect_b64 %s, %s, %s" % (s(SB, 2), s(SQKV, 2), s(SU, 2)))
    def xload(b, qs):
        a("s_add_u32 s%d, s%d, %d" % (sT0, sXR, b)); a("s_and_b32 s%d, s%d, 3" % (sT0, sT0)); a("s_lshl_b32 s%d, s%d, 12" % (sT0, sT0))
        for q in qs:
            a("s_add_u32 s%d, s%d, %d" % (sT1, sR1, q)); a("s_and_b32 s%d, s%d, 3" % (sT1, sT1)); a("s_lshl_b32 s%d, s%d, 8" % (sT1, sT1))
            a("s_add_u32 s%d, s%d, s%d" % (sT1, sT1, sT0))
            a("buffer_load_dwordx4 %s, v3, %s, s%d offen" % (v(128 + 16 * b + 4 * q, 4), srd(SX), sT1), ("x", b))
    def slabload(sg):
        a("s_lshl_b32 s%d, s%d, 1" % (sT3, sR1)); a("s_add_u32 s%d, s%d, %d" % (sT3, sT3, sg))
        a("s_lshl_b32 s%d, s%d, 3" % (sT3, sT3)); a("s_add_u32 s%d, s%d, s%d" % (sT3, sT3, sW)); a("s_lshl_b32 s%d, s%d, 3" % (sT3, sT3))
        a("s_mul_i32 s%d, s%d, s%d" % (sT3, sT3, sSTR))
        a("s_lshl_b32 s%d, s%d, 11" % (sT4, sW))
        for p in range(2):
            a("s_add_u32 m0, s%d, %d" % (sT4, sg * SLOT + p * 1024))
            a("s_add_u32 s%d, s%d, s%d" % (sT5, sT3, sCB if p else sCA))
            a("buffer_load_dwordx4 v%d, %s, s%d offen lds" % (7 if p else 6, srd(SB if p else SA), sT5), ("slab", sg))
    a("s_cmp_eq_u32 s%d, 0" % sTY); a("s_cbranch_scc1 L_xa")
    alt = []; keep = P[:]
    del P[:]; xload(0, (2, 3)); slabload(0); xload(0, (0, 1)); a("s_branch L_xb")
    alt, _ = finalize(P); del P[:]; P.extend(keep)
    for t in alt: P.append(L(t))
    P.append(L("L_xa:"))
    xload(0, (0, 1)); slabload(0); xload(0, (2, 3))
    P.append(L("L_xb:"))
    a("s_lshr_b32 s%d, s%d, 1" % (sT0, sW)); a("s_lshl_b32 s%d, s%d, 15" % (sT0, sT0))
    a("s_and_b32 s%d, s%d, 1" % (sT1, sW)); a("s_lshl_b32 s%d, s%d, 8" % (sT1, sT1)); a("s_add_u32 s%d, s%d, s%d" % (sT0, sT0, sT1))
    a("s_add_u32 s%d, s%d, %d" % (sT0, sT0, STG))
    a("v_lshlrev_b32 v8, 9, v5"); a("v_add_u32 v8, s%d, v8" % sT0)
    a("v_and_b32 v9, 7, v5")
    SEL, ID, SM, CM, SQ, DL, T = 12, 16, 20, 24, 96, 112, 32
    a("v_lshrrev_b32 v10, 2, v5"); a("v_cmp_eq_u32 vcc, v10, v4"); a("v_mov_b32 v11, 0x3f803f80")
    for j in range(4): a("v_cndmask_b32 v%d, 0, v11, vcc" % (SEL + j))
    a("v_and_b32 v10, 3, v1")
    for j in range(3): a("v_cmp_eq_u32 %s, %d, v10" % (s(sMK + 2 * j, 2), j + 1))
    a("v_and_b32 v11, 1, v1"); a("v_lshlrev_b32 v11, 4, v11"); a("v_mov_b32 v18, 0x3f80"); a("v_lshlrev_b32 v11, v11, v18")
    a("v_cmp_gt_u32 vcc, 2, v10")
    a("v_cndmask_b32 v%d, 0, v11, vcc" % ID); a("v_sub_u32 v%d, v11, v%d" % (ID + 1, ID))
    xload(1, range(4))
    for b in range(4):
        D = 128 + 16 * b
        a("s_add_u32 s%d, s%d, %d" % (sT0, sXR, b)); a("s_and_b32 s%d, s%d, 3" % (sT0, sT0)); a("s_lshl_b32 s%d, s%d, 2" % (sT0, sT0))
        a("v_add_u32 v11, s%d, v4" % sT0); a("v_xor_b32 v11, v11, v9"); a("v_lshl_add_u32 v11, v11, 4, v8")
        stamp_to(P, 1 + 2 * b, H_STAMP2)
        P.append(W(vm=[("x", b)]))
        stamp_to(P, 2 + 2 * b, H_STAMP2)
        for q in range(4):
            a("v_mfma_f32_16x16x32_bf16 %s, %s, %s, %s" % (v(SM, 4), v(SEL, 4), v(D + 4 * q, 4), "0" if q == 0 else v(SM, 4)))
        if b < 2: xload(b + 2, range(4))
        if b == 2: slabload(1)
        for k in (8, 4, 2, 1): a("v_add_f32_dpp v%d, v%d, v%d row_ror:%d row_mask:0xf bank_mask:0xf" % (SM, SM, SM, k))
        a("v_mul_f32 v%d, 0xbb000000, v%d" % (SM, SM))
        a("v_cvt_pk_bf16_f32 v%d, v%d, v%d" % (SM + 1, SM, SM))
        for j in range(4): a("v_and_b32 v%d, 0xffff0000, v%d" % (CM + j, SM + 1))
        a("v_sub_f32 v%d, v%d, v%d" % (DL + b, SM, CM))
        for p in range(8):
            a("v_mfma_f32_4x4x4_16b_bf16 %s, %s, %s, %s" % (v(T + 4 * p, 4), v(ID, 2), v(D + 2 * p, 2), v(CM, 4)))
        def sq(p): a("v_mfma_f32_4x4x4_16b_bf16 %s, %s, %s, %s" % (v(SQ + 4 * b, 4), v(D + 2 * p, 2), v(D + 2 * p, 2), "0" if p == 0 else v(SQ + 4 * b, 4)))
        for p in range(8):
            a("v_cvt_pk_bf16_f32 v%d, v%d, v%d" % (D + 2 * p, T + 4 * p, T + 4 * p + 1))
            a("v_cvt_pk_bf16_f32 v%d, v%d, v%d" % (D + 2 * p + 1, T + 4 * p + 2, T + 4 * p + 3))
            if p & 1: a("ds_write_b128 v11, %s offset:%d" % (v(D + 2 * p - 2, 4), (p >> 1) * 8192))
            if p: sq(p - 1)
        sq(7)
    stamp_to(P, 9, H_STAMP2)
    P.append(W(vm=[("slab", 0)], lg="all"))
    stamp_to(P, 10, H_STAMP2)
    a("s_barrier")
    a("s_cmp_ge_u32 s%d, 4" % sW); a("s_cbranch_scc1 L_nofrag")
    a("v_and_b32 v16, 31, v1"); a("v_lshrrev_b32 v17, 5, v1")
    a("s_lshl_b32 s%d, s%d, 15" % (sT0, sW)); a("s_add_u32 s%d, s%d, %d" % (sT0, sT0, STG))
    a("v_lshlrev_b32 v18, 9, v17"); a("v_add_u32 v18, s%d, v18" % sT0)
    a("v_xor_b32 v19, v16, v17")
    for k in range(4):
        a("v_xor_b32 v%d, %d, v19" % (20 + k, 2 * k)); a("v_lshl_add_u32 v%d, v%d, 4, v18" % (20 + k, 20 + k))
    for sl in range(32):
        a("ds_read_b128 %s, v%d offset:%d" % (v(XR + 4 * sl, 4), 20 + (sl & 3), sl * 1024), ("xn", sl))
    P.append(L("L_nofrag:"))
    for j in range(3):
        for b in range(4): a("v_cndmask_b32 v%d, v%d, v%d, %s" % (SQ + 4 * b, SQ + 4 * b, SQ + 4 * b + j + 1, s(sMK + 2 * j, 2)))
    for k in (8, 4, 2, 1):
        for b in range(4): a("v_add_f32_dpp v%d, v%d, v%d row_ror:%d row_mask:0xf bank_mask:0xf" % (SQ + 4 * b, SQ + 4 * b, SQ + 4 * b, k))
    for j in range(3):
        a("v_cndmask_b32 v%d, v%d, v%d, %s" % (SQ, SQ, SQ + 4 * j + 4, s(sMK + 2 * j, 2)))
        a("v_cndmask_b32 v%d, v%d, v%d, %s" % (DL, DL, DL + j + 1, s(sMK + 2 * j, 2)))
    a("v_mul_f32 v%d, 0x3b000000, v%d" % (SQ, SQ))
    a("v_fma_f32 v%d, -v%d, v%d, v%d" % (SQ, DL, DL, SQ))
    a("v_max_f32 v%d, 0, v%d" % (SQ, SQ))
    def rnd(): a("v_cvt_pk_bf16_f32 v%d, v%d, v%d" % (SQ, SQ, SQ)); a("v_and_b32 v%d, 0xffff0000, v%d" % (SQ, SQ))
    rnd(); a("v_add_f32 v%d, 0x3727c5ac, v%d" % (SQ, SQ)); rnd(); a("v_sqrt_f32 v%d, v%d" % (SQ, SQ)); rnd()
    a("v_rcp_f32 v%d, v%d" % (SQ, SQ))
    a("v_add_u32 v%d, s%d, v1" % (DL, sXR)); a("v_and_b32 v%d, 3, v%d" % (DL, DL)); a("v_lshl_add_u32 v%d, v%d, 2, v4" % (DL, DL))
    a("s_lshl_b32 s%d, s%d, 6" % (sT0, sW)); a("s_add_u32 s%d, s%d, %d" % (sT0, sT0, EX))
    a("v_lshlrev_b32 v%d, 2, v%d" % (DL, DL)); a("v_add_u32 v%d, s%d, v%d" % (DL, sT0, DL))
    a("s_cmp_ge_u32 s%d, 4" % sW)
    a("s_cbranch_scc1 L_helper")
    return P
RS_VAL, RS_ADDR = 96, 112

def p4_voffs(a, va, vb, stride, t):
    a("v_lshrrev_b32 v%d, 3, v1" % t)
    a("v_and_b32 v%d, 2, v%d" % (t + 1, t)); a("v_lshlrev_b32 v%d, 1, v%d" % (t + 1, t + 1))
    a("v_and_b32 v%d, 7, v1" % (t + 2)); a("v_xor_b32 v%d, v%d, v%d" % (t + 2, t + 2, t + 1))
    a("v_mul_lo_u32 v%d, v%d, %s" % (t, t, stride))
    a("v_lshl_add_u32 v%d, v%d, 4, v%d" % (va, t + 2, t))
    a("v_xor_b32 v%d, 32, v%d" % (vb, va))
def p2_voffs(a, va, vb, stride, t):
    a("v_lshrrev_b32 v%d, 2, v1" % t)
    a("v_and_b32 v%d, 3, v1" % (t + 2))
    a("v_mul_lo_u32 v%d, v%d, %s" % (t, t, stride))
    a("v_lshl_add_u32 v%d, v%d, 4, v%d" % (va, t + 2, t))
    a("v_xor_b32 v%d, 32, v%d" % (vb, va))

PH = {0: [("P4", "kv"), ("P4", "gu"), ("P2", "gu")], 1: [("P4", "gu"), ("P2", "q"), ("P4", "gu")]}
def slabs_of(ty):
    out = []
    for pi, (k, e) in enumerate(PH[ty]):
        for sg in range(8 if k == "P4" else 4): out.append((pi, k, sg))
    return out

def fcols(a, ty):
    if ty == 1:
        a("s_lshl_b32 s%d, s%d, 7" % (sKS, sGR)); a("s_add_u32 s%d, s%d, 64" % (sKS + 1, sKS))
    else:
        a("s_mul_i32 s%d, s%d, 96" % (sT0, sGR)); a("s_add_u32 s%d, s%d, 1024" % (sT0, sT0))
        a("s_and_b32 s%d, s%d, 1" % (sT1, sGR)); a("s_lshl_b32 s%d, s%d, 5" % (sT2, sT1))
        a("s_add_u32 s%d, s%d, s%d" % (sKS, sT0, sT2))
        a("s_xor_b32 s%d, s%d, 1" % (sT1, sT1)); a("s_lshl_b32 s%d, s%d, 6" % (sT1, sT1))
        a("s_add_u32 s%d, s%d, s%d" % (sKS + 1, sT0, sT1))

C_R, C_R2 = 0, 31
def compute(ty):
    P = []; a = lambda t, tag=None: P.append(I(t, tag))
    a("v_bfe_u32 v24, v1, 2, 2"); a("v_and_b32 v25, 3, v1"); a("v_bfe_u32 v26, v1, 4, 1")
    a("v_lshlrev_b32 v27, 3, v25"); a("v_lshl_add_u32 v27, v26, 10, v27")
    a("v_lshl_add_u32 v28, v17, 11, v27"); a("v_lshl_add_u32 v28, v24, 7, v28")
    a("v_and_b32 v29, 2, v24"); a("v_xor_b32 v29, v29, v26")
    for t in range(4):
        a("v_xor_b32 v30, %d, v29" % t); a("v_lshl_add_u32 v%d, v30, 5, v28" % (2 + t)); a("v_add_u32 v%d, 0x10000, v%d" % (6 + t, 2 + t))
    a("v_lshl_add_u32 v28, v17, 9, v27"); a("v_lshl_add_u32 v28, v24, 6, v28")
    for t in range(2):
        a("v_xor_b32 v30, %d, v26" % t); a("v_lshl_add_u32 v%d, v30, 5, v28" % (10 + t)); a("v_add_u32 v%d, 0x10000, v%d" % (12 + t, 10 + t))
    a("s_lshl_b32 s%d, s%d, 2" % (sT0, sI)); a("s_add_u32 s%d, s%d, s%d" % (sT0, sT0, sW)); a("s_mul_i32 s%d, s%d, %d" % (sT0, sT0, 147456))
    a("s_add_u32 s%d, s%d, %d" % (sT0, sT0, WS_HO))
    a("v_lshlrev_b32 v15, 4, v1"); a("v_add_u32 v14, s%d, v15" % sT0)
    a("s_lshl_b32 s%d, s%d, 13" % (sT0, sW)); a("s_add_u32 s%d, s%d, %d" % (sT0, sT0, EX)); a("v_add_u32 v15, s%d, v15" % sT0)
    a("s_lshl_b32 s%d, s%d, 7" % (sT0, sW)); a("s_add_u32 s%d, s%d, %d" % (sT0, sT0, EX))
    a("v_lshlrev_b32 v%d, 2, v16" % C_R2); a("v_add_u32 v%d, s%d, v%d" % (C_R2, sT0, C_R2))
    fcols(a, ty)
    a("s_lshl_b32 s%d, s%d, 6" % (sKS, sKS)); a("s_lshl_b32 s%d, s%d, 6" % (sKS + 1, sKS + 1))
    ops = []
    fill = {}
    pre = {}
    sl = slabs_of(ty); gu_seen = 0
    for n, (pi, kind, sg) in enumerate(sl):
        slot = n & 7; win = slot >> 2; base = (slot & 3) * SLOT
        nt, nk = (4, 4) if kind == "P4" else (2, 8)
        order = list(range(nt))
        if sg == 0 and pi > 0 and PH[ty][pi - 1][0] == "P2" and kind == "P4": order = [2, 3, 0, 1]
        last = sg == (7 if kind == "P4" else 3)
        for t in order:
            for u in range(nk):
                m = len(ops); fb = WF + 4 * (m & 7)
                if kind == "P4": ar, off, dq, xs = 2 + 4 * win + t, base + u * 4096, 512, sg * 4 + u
                else: ar, off, dq, xs = 10 + 2 * win + t, base + u * 2048, 256, sg * 8 + u
                acc = v(ACC + 16 * t, 16)
                ops.append(dict(slab=n, reads=[("ds_read_b64_tr_b16 %s, v%d offset:%d" % (v(fb, 2), ar, off), ("f", m)),
                                               ("ds_read_b64_tr_b16 %s, v%d offset:%d" % (v(fb + 2, 2), ar, off + dq), ("f", m))],
                                waits=[("f", m)] + ([("xn", xs)] if pi == 0 else []), la=CFG["LA"],
                                mfma="v_mfma_f32_32x32x16_bf16 %s, %s, %s, %s" % (acc, v(fb, 4), v(XR + 4 * xs, 4), "0" if (sg == 0 and u == 0) else acc)))
            if last:
                e = PH[ty][pi][1]; A = ACC + 16 * t; T = A; E = []
                if e == "gu":
                    for j in range(8): E.append(I("v_mul_f32 v%d, v%d, v%d" % (A + j, A + j, A + j + 8)))
                    for j in range(8): E.append(I("v_mul_f32 v%d, v%d, v%d" % (A + j, A + j, C_R2)))
                    for j in range(4): E.append(I("v_cvt_pk_bf16_f32 v%d, v%d, v%d" % (T + j, A + 2 * j, A + 2 * j + 1)))
                    E.append(I("buffer_store_dwordx4 %s, v14, %s, s%d offen offset:%d sc1" % (v(T, 4), srd(SWS), sKS + gu_seen, t * 1024), ("h", gu_seen)))
                else:
                    for j in range(16): E.append(I("v_mul_f32 v%d, v%d, v%d" % (A + j, A + j, C_R)))
                    for j in range(8): E.append(I("v_cvt_pk_bf16_f32 v%d, v%d, v%d" % (T + j, A + 2 * j, A + 2 * j + 1)))
                    E.append(I("ds_write_b128 v15, %s offset:%d" % (v(T, 4), t * 2048), "ex"))
                    E.append(I("ds_write_b128 v15, %s offset:%d" % (v(T + 4, 4), t * 2048 + 1024), "ex"))
                e0 = len(ops) - 1 + 2
                for j, it in enumerate(E): fill.setdefault(e0 + j * CFG["espan"] // len(E), []).append(it)
        if last:
            e = PH[ty][pi][1]
            if e == "gu":
                pre.setdefault(n + 4 if gu_seen == 0 else CFG["h2wait"], []).append(W(vm=[("h", gu_seen)])); gu_seen += 1
            else: pre.setdefault(n + 2, []).append(W(lg=["ex"]))
    n1 = len(ops)
    HB = XR
    AD = XR + 32
    Y, S_ = (ACC + 32, ACC + 48) if ty == 0 else (XR + 48, XR + 64)
    setup = []; b = lambda t, tag=None: setup.append(I(t, tag))
    b("s_lshr_b32 s%d, s%d, 1" % (sT0, sW)); b("s_and_b32 s%d, s%d, 1" % (sT1, sW))
    b("s_lshl_b32 s%d, s%d, 12" % (sT2, sT0))
    b("v_lshlrev_b32 v%d, 4, v1" % AD); b("v_add_u32 v%d, s%d, v%d" % (AD, sT2, AD)); b("v_add_u32 v%d, 0x10000, v%d" % (AD + 1, AD))
    t0, t1 = AD + 13, AD + 14
    b("v_bfe_u32 v%d, v1, 3, 1" % t0); b("v_xor_b32 v%d, s%d, v%d" % (t0, sT1, t0)); b("v_lshlrev_b32 v%d, 6, v%d" % (AD + 2, t0))
    b("v_bfe_u32 v%d, v1, 2, 2" % t0); b("v_lshl_add_u32 v%d, v%d, 7, v%d" % (AD + 2, t0, AD + 2))
    b("v_lshrrev_b32 v%d, 5, v1" % t1); b("v_lshl_add_u32 v%d, v%d, 9, v%d" % (AD + 2, t1, AD + 2))
    b("v_and_b32 v%d, 1, v1" % t0); b("v_lshl_add_u32 v%d, v%d, 5, v%d" % (AD + 2, t0, AD + 2))
    b("v_bfe_u32 v%d, v1, 4, 1" % t0); b("v_lshl_add_u32 v%d, v%d, 4, v%d" % (AD + 2, t0, AD + 2))
    b("v_bfe_u32 v%d, v1, 1, 1" % t0); b("v_lshl_add_u32 v%d, v%d, 3, v%d" % (AD + 2, t0, AD + 2))
    b("v_add_u32 v%d, 0x2000, v%d" % (AD + 2, AD + 2)); b("v_add_u32 v%d, 0x10000, v%d" % (AD + 3, AD + 2))
    b("s_lshl_b32 s%d, s%d, 16" % (sT2, sTT)); b("s_lshl_b32 s%d, s%d, 15" % (sT3, sT0)); b("s_add_u32 s%d, s%d, s%d" % (sT2, sT2, sT3))
    b("s_lshl_b32 s%d, s%d, 7" % (sT3, sCT)); b("s_add_u32 s%d, s%d, s%d" % (sT2, sT2, sT3))
    b("s_lshl_b32 s%d, s%d, 6" % (sT3, sT1)); b("s_add_u32 s%d, s%d, s%d" % (sT2, sT2, sT3))
    b("v_and_b32 v%d, 31, v1" % t0); b("v_lshlrev_b32 v%d, 10, v%d" % (t0, t0)); b("v_lshl_add_u32 v%d, v%d, 5, v%d" % (t0, t1, t0))
    b("v_add_u32 v%d, s%d, v%d" % (AD + 12, sT2, t0))
    b("buffer_load_dwordx4 %s, v%d, %s, 0 offen" % (v(AD + 4, 4), AD + 12, srd(SX)), "res")
    b("buffer_load_dwordx4 %s, v%d, %s, 0 offen offset:16" % (v(AD + 8, 4), AD + 12, srd(SX)), "res")
    s0 = n1 - 16
    for j, it in enumerate(setup): fill.setdefault(s0 - 1 + j * 10 // len(setup), []).insert(0, it) if False else None
    pos2 = [s0 + j * 10 // len(setup) for j in range(len(setup))]
    su = {}
    for p_, it in zip(pos2, setup): su.setdefault(p_, []).append(it)
    for p_, its in su.items(): fill[p_] = its + fill.get(p_, [])
    for n in range(20, 56):
        slot = n & 7; win = slot >> 2; base = (slot & 3) * SLOT
        acc = v(Y if n < 48 else S_, 16)
        for kk in range(4):
            m = len(ops); fb = WF + 4 * (m & 7); hb = HB + 4 * (m & 7)
            ops.append(dict(slab=n, reads=[("ds_read_b64_tr_b16 %s, v%d offset:%d" % (v(fb, 2), AD + 2 + win, base + kk * 2048), ("f", m)),
                                           ("ds_read_b64_tr_b16 %s, v%d offset:%d" % (v(fb + 2, 2), AD + 2 + win, base + kk * 2048 + 1024), ("f", m)),
                                           ("ds_read_b128 %s, v%d offset:%d" % (v(hb, 4), AD + win, base + kk * 1024), ("f", m))],
                            waits=[("f", m)], la=4,
                            mfma="v_mfma_f32_32x32x16_bf16 %s, %s, %s, %s" % (acc, v(fb, 4), v(hb, 4), "0" if (n in (20, 48) and kk == 0) else acc)))
    G = XR + 80; XF = XR + 96; E = []
    for j in range(16): E.append(I("v_mul_f32 v%d, s%d, v%d" % (G + j, sL2E, Y + j)))
    for j in range(16): E.append(I("v_exp_f32 v%d, -v%d" % (G + j, G + j)))
    for j in range(16): E.append(I("v_add_f32 v%d, 1.0, v%d" % (G + j, G + j)))
    for j in range(16): E.append(I("v_rcp_f32 v%d, v%d" % (G + j, G + j)))
    for j in range(16): E.append(I("v_mul_f32 v%d, v%d, v%d" % (G + j, G + j, Y + j)))
    E.append(W(vm=["res"]))
    for j in range(8):
        E.append(I("v_lshlrev_b32 v%d, 16, v%d" % (XF + 2 * j, AD + 4 + j))); E.append(I("v_and_b32 v%d, 0xffff0000, v%d" % (XF + 2 * j + 1, AD + 4 + j)))
    e0 = n1 + 28 * 4 + 1
    for j, it in enumerate(E): fill.setdefault(e0 + j * 24 // len(E), []).append(it)
    issued = 0; bar_done = 0
    def issue_reads(upto_fn):
        nonlocal issued, bar_done
        while issued < len(ops) and upto_fn(issued):
            o = ops[issued]
            if o["slab"] > bar_done:
                bar_done = o["slab"]
                for it in pre.get(bar_done, []): P.append(it)
                a("s_barrier")
            for t, tag in o["reads"]: a(t, tag)
            issued += 1
    P.append(W(lg=[("xn", 31)]))
    a("s_barrier")
    a("ds_write_b32 v%d, v%d" % (RS_ADDR, RS_VAL), "rsw")
    pre.setdefault(1, []).append(W(vm=[("slab", 1)], lg=["rsw"]))
    fill.setdefault(16, []).append(I("ds_read_b32 v%d, v%d" % (C_R, C_R2), "rsr"))
    fill.setdefault(24, []).extend([W(lg=["rsr"]), I("v_mul_f32 v%d, v%d, v%d" % (C_R2, C_R, C_R))])
    issue_reads(lambda m: m < ops[m]["la"])
    for m, o in enumerate(ops):
        P.append(W(lg=o["waits"]))
        a(o["mfma"])
        issue_reads(lambda k: k - ops[k]["la"] <= m)
        for it in fill.get(m, []): P.append(it)
    for j in range(16): a("v_fma_f32 v%d, v%d, v%d, v%d" % (G + j, S_ + j, G + j, XF + j))
    for j in range(8): a("v_cvt_pk_bf16_f32 v%d, v%d, v%d" % (XF + j, G + 2 * j, G + 2 * j + 1))
    a("buffer_store_dwordx4 %s, v%d, %s, 0 offen" % (v(XF, 4), AD + 12, srd(SOUT)))
    a("buffer_store_dwordx4 %s, v%d, %s, 0 offen offset:16" % (v(XF + 4, 4), AD + 12, srd(SOUT)))
    a("s_endpgm")
    return P

_lbl = [0]
def gate(P, vaddr, srdb, off, tag, vdst, want, skip=None):
    _lbl[0] += 1; n = _lbl[0]
    P.append(W(vm=[tag]))
    if skip is not None:
        P.append(I("s_cmp_lg_u32 s%d, 0" % skip)); P.append(I("s_cbranch_scc1 L_ok%d" % n))
    P.append(I("v_readfirstlane_b32 s%d, v%d" % (sT5, vdst)))
    P.append(I("s_cmp_eq_u32 s%d, %d" % (sT5, want)))
    P.append(I("s_cbranch_scc1 L_ok%d" % n))
    P.append(L("    s_mov_b32 s%d, 0" % sSPIN))
    P.append(L("L_spin%d:" % n))
    P.append(L("    s_sleep 1"))
    P.append(L("    buffer_load_dword v%d, v%d, %s, 0 offen offset:%d sc1" % (vdst, vaddr, srd(srdb), off)))
    P.append(L("    s_add_u32 s%d, s%d, 1" % (sSPIN, sSPIN)))
    P.append(L("    s_waitcnt vmcnt(0)"))
    P.append(L("    v_readfirstlane_b32 s%d, v%d" % (sT5, vdst)))
    P.append(L("    s_cmp_ge_u32 s%d, 0x40000" % sSPIN))
    P.append(L("    s_cbranch_scc1 L_ok%d" % n))
    P.append(L("    s_cmp_eq_u32 s%d, %d" % (sT5, want)))
    P.append(L("    s_cbranch_scc0 L_spin%d" % n))
    P.append(L("L_ok%d:" % n))

def signal(B, vaddr, off):
    B.append(I("s_mov_b64 exec, 1"))
    B.append(I("buffer_atomic_add v%d, v%d, %s, 0 offen offset:%d sc1" % (H_ONE, vaddr, srd(SWS), off)))
    B.append(I("s_mov_b64 exec, -1"))

H_P = 6
H_A, H_B, H_B2 = 12, 13, 14
H_ONE, H_ZERO, H_CMINE, H_CCONS, H_CKV, H_POLL, H_POLL2, H_L2E = 15, 16, 17, 18, 19, 20, 21, 22
H_RK, H_RV, H_RP, H_ST, H_ZA, H_TCH = 24, 25, 26, 27, 28, 29
H_ONES = 32
H_WPHI = 36
H_KF = 40
H_ACC = 56
H_T = 72
H_PHI = 128
H_LD = 160
def softmax_unit(u, dst, Pm, R):
    B = []; b = lambda t, tag=None: B.append(I(t, tag))
    b("v_mfma_f32_32x32x16_bf16 %s, %s, %s, 0" % (v(Pm, 16), v(H_WPHI, 4), v(H_KF + 4 * u, 4)))
    for g in range(2): b("v_max3_f32 v%d, v%d, v%d, v%d" % (R + g, Pm + 8 * g, Pm + 8 * g + 1, Pm + 8 * g + 2))
    for g in range(2): b("v_max3_f32 v%d, v%d, v%d, v%d" % (R + 2 + g, Pm + 8 * g + 3, Pm + 8 * g + 4, Pm + 8 * g + 5))
    for g in range(2): b("v_max3_f32 v%d, v%d, v%d, v%d" % (R + g, R + g, Pm + 8 * g + 6, Pm + 8 * g + 7))
    for g in range(2): b("v_max_f32 v%d, v%d, v%d" % (R + g, R + g, R + 2 + g))
    def allred(op, mid):
        b("v_permlane32_swap_b32 v%d, v%d" % (R, R + 1))
        b("%s v%d, v%d, v%d" % (op, R, R, R + 1))
        b(mid)
        b("v_mov_b32 v%d, v%d" % (R + 1, R))
        b("v_permlane32_swap_b32 v%d, v%d" % (R, R + 1))
    allred("v_max_f32", "v_mul_f32 v%d, v%d, v%d" % (R, H_L2E, R))
    for j in range(16): b("v_fma_f32 v%d, v%d, v%d, -v%d" % (Pm + j, Pm + j, H_L2E, R + j // 8))
    for j in range(16): b("v_exp_f32 v%d, v%d" % (Pm + j, Pm + j))
    for g in range(2):
        b("v_add_f32 v%d, v%d, v%d" % (R + g, Pm + 8 * g, Pm + 8 * g + 1)); b("v_add_f32 v%d, v%d, v%d" % (R + 2 + g, Pm + 8 * g + 2, Pm + 8 * g + 3))
    for k in (4, 6):
        for g in range(2):
            b("v_add_f32 v%d, v%d, v%d" % (R + g, R + g, Pm + 8 * g + k)); b("v_add_f32 v%d, v%d, v%d" % (R + 2 + g, R + 2 + g, Pm + 8 * g + k + 1))
    for g in range(2): b("v_add_f32 v%d, v%d, v%d" % (R + g, R + g, R + 2 + g))
    allred("v_add_f32", "v_rcp_f32 v%d, v%d" % (R, R))
    for j in range(16): b("v_mul_f32 v%d, v%d, v%d" % (Pm + j, Pm + j, R + j // 8))
    for j in range(8): b("v_cvt_pk_bf16_f32 v%d, v%d, v%d" % (dst + j, Pm + 2 * j, Pm + 2 * j + 1))
    return B

def zipper(x, y, lag=0):
    out = list(x[:lag]); x = x[lag:]
    for i in range(max(len(x), len(y))):
        if i < len(y): out.append(y[i])
        if i < len(x): out.append(x[i])
    return out

def helper(ty):
    P = []; a = lambda t, tag=None: P.append(I(t, tag))
    stamp = lambda k: stamp_to(P, k)
    stamp(60)
    fcols(a, ty)
    a("s_mov_b32 s%d, 3584" % sT3); a("s_mov_b32 s%d, 3072" % sT4)
    ph = PH[ty]; gu = 0; info = []
    for pi, (kind, e) in enumerate(ph):
        stride = 3584 if e == "gu" else 3072
        rows = 16 if kind == "P4" else 32
        a("s_mul_i32 s%d, s%d, %d" % (sT0, sW3, rows * stride))
        ca, cb = sPH + 2 * pi, sPH + 2 * pi + 1
        if e == "gu":
            a("s_lshl_b32 s%d, s%d, 1" % (sT1, sKS + gu)); a("s_add_u32 s%d, s%d, s%d" % (ca, sT0, sT1)); a("s_mov_b32 s%d, s%d" % (cb, ca)); gu += 1
            sa, sb = SG, SU
        elif e == "kv":
            a("s_add_u32 s%d, s%d, s%d" % (ca, sT0, sCA)); a("s_add_u32 s%d, s%d, s%d" % (cb, sT0, sCB)); sa = sb = SQKV
        else:
            a("s_lshl_b32 s%d, s%d, 7" % (sT1, sGR)); a("s_add_u32 s%d, s%d, s%d" % (ca, sT0, sT1)); a("s_add_u32 s%d, s%d, 64" % (cb, ca)); sa = sb = SQKV
        if pi > 0:
            (p4_voffs if kind == "P4" else p2_voffs)(a, H_P + 2 * pi, H_P + 2 * pi + 1, "s%d" % (sT3 if e == "gu" else sT4), H_T)
        info.append((kind, stride, sa, sb))
    a("s_lshl_b32 s%d, s%d, 12" % (sCA, sW3))
    a("s_lshl_b32 s%d, s%d, 11" % (sCB, sW3))
    sl = slabs_of(ty)
    def dma(n):
        slot = (n & 7) * SLOT
        if n < 20:
            pi, kind, sg = sl[n]; _, stride, sa, sb = info[pi]
            if kind == "P4":
                a("s_lshl_b32 s%d, s%d, 1" % (sT0, sR1)); a("s_add_u32 s%d, s%d, %d" % (sT0, sT0, sg)); a("s_and_b32 s%d, s%d, 7" % (sT0, sT0))
                a("s_mul_i32 s%d, s%d, %d" % (sT0, sT0, 64 * stride)); step = 8 * stride
            else:
                a("s_add_u32 s%d, s%d, %d" % (sT0, sR1, sg)); a("s_and_b32 s%d, s%d, 3" % (sT0, sT0))
                a("s_mul_i32 s%d, s%d, %d" % (sT0, sT0, 128 * stride)); step = 16 * stride
            for p in range(4):
                a("s_add_u32 m0, s%d, %d" % (sCA, slot + p * 1024))
                if p == 2: a("s_add_u32 s%d, s%d, %d" % (sT0, sT0, step))
                a("s_add_u32 s%d, s%d, s%d" % (sT1, sT0, sPH + 2 * pi + (p & 1)))
                a("buffer_load_dwordx4 v%d, %s, s%d offen lds" % (H_P + 2 * pi + (p & 1), srd(sb if p & 1 else sa), sT1), ("slab", n))
        else:
            k = n - 20
            if k < 24 or k >= 28:
                a("s_add_u32 s%d, s%d, %d" % (sT0, sR2, k)); a("s_and_b32 s%d, s%d, 7" % (sT0, sT0))
            if k < 8: a("s_lshl_b32 s%d, s%d, 1" % (sT0, sT0))
            elif k < 16:
                a("s_lshr_b32 s%d, s%d, 1" % (sT1, sT0)); a("s_and_b32 s%d, s%d, 1" % (sT0, sT0)); a("s_mul_i32 s%d, s%d, 3" % (sT1, sT1))
                a("s_lshl_b32 s%d, s%d, 1" % (sT0, sT0)); a("s_add_u32 s%d, s%d, s%d" % (sT0, sT0, sT1)); a("s_add_u32 s%d, s%d, 16" % (sT0, sT0))
            elif k < 24:
                a("s_lshl_b32 s%d, s%d, 1" % (sT0, sT0)); a("s_add_u32 s%d, s%d, 1" % (sT0, sT0))
            elif k < 28:
                a("s_add_u32 s%d, s%d, %d" % (sT0, sR2, k)); a("s_and_b32 s%d, s%d, 3" % (sT0, sT0)); a("s_mul_i32 s%d, s%d, 3" % (sT0, sT0)); a("s_add_u32 s%d, s%d, 17" % (sT0, sT0))
            a("s_lshl_b32 s%d, s%d, 16" % (sT1, sT0))
            a("s_lshl_b32 s%d, s%d, 12" % (sT0, sT0))
            if k >= 28: a("s_add_u32 s%d, s%d, %d" % (sT0, sT0, 28 * 4096))
            wb = srd(SWD if k < 28 else SWO)
            a("s_add_u32 m0, s%d, %d" % (sCB, slot + 8192))
            a("buffer_load_dwordx4 v%d, %s, s%d offen lds" % (H_B, wb, sT1), ("slab", n))
            a("buffer_load_dwordx4 v%d, %s, s%d offen offset:1024 lds" % (H_B2, wb, sT1), ("slab", n))
            a("s_add_u32 m0, s%d, %d" % (sCB, slot))
            a("buffer_load_dwordx4 v%d, %s, s%d offen sc1 lds" % (H_A, srd(SWS), sT0), ("slab", n))
            a("buffer_load_dwordx4 v%d, %s, s%d offen offset:1024 sc1 lds" % (H_A, srd(SWS), sT0), ("slab", n))
    def init():
        a("v_mov_b32 v%d, 1" % H_ONE); a("v_mov_b32 v%d, 0" % H_ZERO)
        a("v_lshlrev_b32 v%d, 8, v1" % H_T)
        a("s_add_u32 s%d, s2, s%d" % (sT0, sW3)); a("s_cmp_lg_u32 s%d, 0" % sT0); a("s_cbranch_scc1 L_noinit%d" % ty)
        P.append(L("    buffer_store_dword v%d, v%d, %s, 0 offen sc1" % (H_ZERO, H_T, srd(SWS))))
        P.append(L("    s_movk_i32 s%d, 0x4000" % sT0))
        P.append(L("    buffer_store_dword v%d, v%d, %s, s%d offen sc1" % (H_ZERO, H_T, srd(SWS), sT0)))
        P.append(L("L_noinit%d:" % ty))
    def init2():
        a("s_add_u32 s%d, s2, s%d" % (sT0, sW3)); a("s_cmp_lg_u32 s%d, 0" % sT0); a("s_cbranch_scc1 L_noinitb%d" % ty)
        P.append(L("    buffer_store_dword v%d, v%d, %s, 0 offen sc1" % (H_ONE, H_ZERO, srd(SDBG))))
        P.append(L("L_noinitb%d:" % ty))
    B0 = []; b = lambda t, tag=None: B0.append(I(t, tag))
    t0, t1, t2, t3 = H_T, H_T + 1, H_T + 2, H_T + 3
    b("s_lshl_b32 s%d, s%d, 2" % (sT2, sGR)); b("s_add_u32 s%d, s%d, s%d" % (sT2, sT2, sW3))
    b("v_lshrrev_b32 v%d, 5, v1" % t3); b("v_and_b32 v%d, 15, v1" % t1); b("v_lshrrev_b32 v%d, 4, v1" % t0)
    b("v_lshlrev_b32 v%d, 7, v%d" % (t2, t3)); b("v_lshl_add_u32 v%d, v%d, 1, v%d" % (t2, t1, t2))
    b("s_lshl_b32 s%d, s%d, 9" % (sT0, sT2))
    for j in range(8):
        b("buffer_load_ushort v%d, v%d, %s, s%d offen offset:%d" % (H_ACC + j, t2, srd(SPHI), sT0, 32 * ((j & 3) + 8 * (j >> 2))), "wphi")
    b("s_lshl_b32 s%d, s%d, 1" % (sT0, sTT)); b("s_lshr_b32 s%d, s%d, 1" % (sT1, sW3)); b("s_add_u32 s%d, s%d, s%d" % (sT0, sT0, sT1))
    b("s_mul_i32 s%d, s%d, 147456" % (sT0, sT0)); b("s_and_b32 s%d, s%d, 1" % (sT1, sW3)); b("s_lshl_b32 s%d, s%d, 11" % (sT1, sT1))
    b("s_add_u32 s%d, s%d, s%d" % (sT0, sT0, sT1)); b("s_add_u32 s%d, s%d, %d" % (sT0, sT0, WS_HO))
    b("v_lshlrev_b32 v%d, 4, v1" % H_A); b("v_add_u32 v%d, s%d, v%d" % (H_A, sT0, H_A))
    u0, u1, u2 = H_T + 4, H_T + 5, H_T + 6
    b("v_lshrrev_b32 v%d, 3, v1" % u0); b("v_and_b32 v%d, 2, v%d" % (u1, u0)); b("v_lshlrev_b32 v%d, 1, v%d" % (u1, u1))
    b("v_and_b32 v%d, 7, v1" % u2); b("v_xor_b32 v%d, v%d, v%d" % (u2, u2, u1))
    b("v_lshlrev_b32 v%d, 10, v%d" % (u0, u0)); b("v_lshl_add_u32 v%d, v%d, 4, v%d" % (H_B, u2, u0))
    b("s_lshl_b32 s%d, s%d, 14" % (sT0, sW3)); b("s_lshl_b32 s%d, s%d, 7" % (sT1, sCT)); b("s_add_u32 s%d, s%d, s%d" % (sT0, sT0, sT1))
    b("v_add_u32 v%d, s%d, v%d" % (H_B, sT0, H_B)); b("v_add_u32 v%d, %d, v%d" % (H_B2, 8192 - 1024, H_B))
    B0a = B0; B0 = []
    b("s_lshl_b32 s%d, s%d, 10" % (sT0, sI)); b("v_mov_b32 v%d, s%d" % (H_CMINE, sT0))
    b("s_lshr_b32 s%d, s%d, 1" % (sT0, sTT)); b("s_lshl_b32 s%d, s%d, 10" % (sT0, sT0)); b("v_mov_b32 v%d, s%d" % (H_CCONS, sT0))
    b("s_lshl_b32 s%d, s%d, 8" % (sT0, sT2)); b("s_add_u32 s%d, s%d, 0x4000" % (sT0, sT0)); b("v_mov_b32 v%d, s%d" % (H_CKV, sT0))
    b("v_mov_b32 v%d, s%d" % (H_L2E, sL2E))
    b("s_lshl_b32 s%d, s2, 2" % sT0); b("s_add_u32 s%d, s%d, s%d" % (sT0, sT0, sW3)); b("s_mul_i32 s%d, s%d, 14" % (sT1, sT0))
    b("v_add_u32 v%d, s%d, v1" % (H_TCH, sT1)); b("v_lshlrev_b32 v%d, 7, v%d" % (H_TCH, H_TCH))
    b("s_lshl_b32 s%d, s%d, 2" % (sT1, sT0)); b("v_add_u32 v%d, s%d, v1" % (H_TCH + 1, sT1)); b("v_lshlrev_b32 v%d, 7, v%d" % (H_TCH + 1, H_TCH + 1))
    if ty == 0: b("s_lshl_b32 s%d, s%d, 11" % (sT0, sW3))
    else:
        b("s_and_b32 s%d, s%d, 1" % (sT0, sW3)); b("s_lshl_b32 s%d, s%d, 11" % (sT0, sT0)); b("s_lshr_b32 s%d, s%d, 1" % (sT1, sW3))
        b("s_lshl_b32 s%d, s%d, 10" % (sT1, sT1)); b("s_add_u32 s%d, s%d, s%d" % (sT0, sT0, sT1))
    b("s_add_u32 s%d, s%d, %d" % (sT0, sT0, EX))
    b("v_lshlrev_b32 v%d, 4, v1" % u0); b("v_add_u32 v%d, s%d, v%d" % (H_RK, sT0, u0))
    if ty == 0:
        b("v_and_b32 v%d, 1, v1" % t2); b("v_lshlrev_b32 v%d, 9, v%d" % (H_RV, t2)); b("v_lshl_add_u32 v%d, v%d, 7, v%d" % (H_RV, t0, H_RV))
        b("v_bfe_u32 v%d, v1, 2, 2" % t2); b("v_lshl_add_u32 v%d, v%d, 4, v%d" % (H_RV, t2, H_RV))
        b("v_bfe_u32 v%d, v1, 1, 1" % t2); b("v_lshl_add_u32 v%d, v%d, 3, v%d" % (H_RV, t2, H_RV)); b("v_add_u32 v%d, s%d, v%d" % (H_RV, sT0, H_RV))
        for j in range(4): b("v_mov_b32 v%d, 0x3f803f80" % (H_ONES + j))
        b("s_lshl_b32 s%d, s%d, 4" % (sT0, sT2)); b("s_add_u32 s%d, s%d, s%d" % (sT0, sT0, sI))
        b("s_lshl_b32 s%d, s%d, 11" % (sT1, sT0)); b("s_add_u32 s%d, s%d, %d" % (sT1, sT1, WS_KV))
        b("v_add_u32 v%d, s%d, v%d" % (H_ST, sT1, u0))
        b("s_lshl_b32 s%d, s%d, 7" % (sT1, sT0)); b("s_add_u32 s%d, s%d, %d" % (sT1, sT1, WS_Z))
        b("v_lshlrev_b32 v%d, 6, v%d" % (H_ZA, t1)); b("v_lshl_add_u32 v%d, v%d, 4, v%d" % (H_ZA, t0, H_ZA)); b("v_add_u32 v%d, s%d, v%d" % (H_ZA, sT1, H_ZA))
    else:
        b("s_lshl_b32 s%d, s%d, 15" % (sT1, sT2)); b("s_add_u32 s%d, s%d, %d" % (sT1, sT1, WS_KV))
        b("v_add_u32 v%d, s%d, v%d" % (H_RV, sT1, u0))
        b("s_lshl_b32 s%d, s%d, 11" % (sT1, sT2)); b("s_add_u32 s%d, s%d, %d" % (sT1, sT1, WS_Z))
        b("v_lshlrev_b32 v%d, 7, v%d" % (H_ZA, t1)); b("v_lshl_add_u32 v%d, v%d, 4, v%d" % (H_ZA, t0, H_ZA)); b("v_add_u32 v%d, s%d, v%d" % (H_ZA, sT1, H_ZA))
        b("s_mul_i32 s%d, s%d, 576" % (sT1, sI)); b("s_add_u32 s%d, s%d, s%d" % (sT1, sT1, sT2)); b("s_add_u32 s%d, s%d, 112" % (sT1, sT1))
        b("s_lshl_b32 s%d, s%d, 10" % (sT1, sT1)); b("s_add_u32 s%d, s%d, %d" % (sT1, sT1, WS_HO))
        b("v_add_u32 v%d, s%d, v%d" % (H_ST, sT1, u0))
    B0b = B0; B0 = []
    B0.append(W(vm=["wphi"]))
    b("v_and_b32 v%d, 1, v%d" % (t2, t0)); b("v_mul_u32_u24 v%d, 0x8000, v%d" % (t2, t2)); b("v_lshl_or_b32 v%d, v%d, 16, v%d" % (t2, t2, t2))
    for j in range(4): b("v_lshl_or_b32 v%d, v%d, 16, v%d" % (H_WPHI + j, H_ACC + 2 * j + 1, H_ACC + 2 * j))
    for j in range(4): b("v_xor_b32 v%d, v%d, v%d" % (H_WPHI + j, H_WPHI + j, t2))
    B0c = B0
    B = []; b = lambda t, tag=None: B.append(I(t, tag))
    bstamp = lambda k: (lambda g: (stamp_to(g, k, H_STAMP2), B.append(g)))([])
    if CFG["prio"]: b("s_setprio %d" % CFG["prio"])
    for u in range(4): b("ds_read_b128 %s, v%d offset:%d" % (v(H_KF + 4 * u, 4), H_RK, u * 8192), "kf")
    B.append(W(lg=["kf"]))
    PM = (H_T, H_T + 16); RR = (H_T + 32, H_T + 36)
    if ty == 0:
        bg_start = 9
        def tail(u):
            X = []; x = lambda t, tag=None: X.append(I(t, tag))
            PHI = H_PHI + 8 * (u & 1); FR = H_PHI + 16 + 12 * (u & 1); so = (u & 1) * 16384
            for sg in range(2): x("ds_write_b128 v%d, %s offset:%d" % (H_RK, v(PHI + 4 * sg, 4), so + sg * 8192), ("pw", u))
            for q in range(2): x("ds_read_b64_tr_b16 %s, v%d offset:%d" % (v(FR + 2 * q, 2), H_RV, u * 8192 + 1024 + q * 64), ("pr", u))
            for sg in range(2):
                for q in range(2): x("ds_read_b64_tr_b16 %s, v%d offset:%d" % (v(FR + 4 + 4 * sg + 2 * q, 2), H_RV, so + sg * 8192 + q * 64), ("pr", u))
            return X
        def kvm(u):
            X = [W(lg=[("pr", u)])]; FR = H_PHI + 16 + 12 * (u & 1)
            for sg in range(2):
                c = v(H_ACC + 4 * sg, 4); z = v(H_ACC + 8 + 4 * sg, 4)
                X.append(I("v_mfma_f32_16x16x32_bf16 %s, %s, %s, %s" % (c, v(FR + 4 + 4 * sg, 4), v(FR, 4), "0" if u == 0 else c)))
                X.append(I("v_mfma_f32_16x16x32_bf16 %s, %s, %s, %s" % (z, v(FR + 4 + 4 * sg, 4), v(H_ONES, 4), "0" if u == 0 else z)))
            return X
        for pr in range(2):
            z = zipper(softmax_unit(2 * pr + 1, H_PHI + 8, PM[1], RR[1]), softmax_unit(2 * pr, H_PHI, PM[0], RR[0]))
            if pr == 1: z = z[:2] + kvm(0) + kvm(1) + z[2:]
            B += z + tail(2 * pr) + tail(2 * pr + 1)
        b("v_and_b32 v%d, 15, v1" % H_T); b("v_cmp_eq_u32 vcc, 1, v%d" % H_T)
        B += kvm(2) + kvm(3)
        for j in range(4): b("v_cndmask_b32 v%d, v%d, v%d, vcc" % (H_ACC + 8 + j, H_ACC + 8 + j, H_ACC + 12 + j))
        b("buffer_store_dwordx4 %s, v%d, %s, 0 offen sc1" % (v(H_ACC, 4), H_ST, srd(SWS)), "part")
        b("buffer_store_dwordx4 %s, v%d, %s, 0 offen offset:1024 sc1" % (v(H_ACC + 4, 4), H_ST, srd(SWS)), "part")
        B.append([I("s_mov_b32 exec_lo, 0x00030003"), I("s_mov_b32 exec_hi, 0x00030003"),
                  I("buffer_store_dwordx4 %s, v%d, %s, 0 offen sc1" % (v(H_ACC + 8, 4), H_ZA, srd(SWS)), "part"), I("s_mov_b64 exec, -1")])
        if CFG["prio"]: b("s_setprio 0")
        bstamp(12)
        for _ in range(CFG["sigdelay"]): B.append("step")
        g = [W(vm=["part"])]; signal(g, H_CKV, 0); B.append(g)
        bstamp(13)
    else:
        bg_start = 13
        for pr in range(2):
            B += zipper(softmax_unit(2 * pr + 1, H_PHI + 16 * pr + 8, PM[1], RR[1]), softmax_unit(2 * pr, H_PHI + 16 * pr, PM[0], RR[0]))
        if CFG["prio"]: b("s_setprio 0")
        bstamp(12)
        B.append(("until", CFG["kvgate"] - 1))
        b("buffer_load_dword v%d, v%d, %s, 0 offen sc1" % (H_POLL2, H_CKV, srd(SWS)), "pollkv")
        B.append("step")
        bstamp(13)
        g = []; gate(g, H_CKV, SWS, 0, "pollkv", H_POLL2, 16); B.append(g)
        bstamp(14)
        Z = H_ACC + 8
        b("buffer_load_dwordx4 %s, v%d, %s, 0 offen sc1" % (v(Z, 4), H_ZA, srd(SWS)), "zl")
        b("buffer_load_dwordx4 %s, v%d, %s, 0 offen offset:64 sc1" % (v(Z + 4, 4), H_ZA, srd(SWS)), "zl")
        dreg = lambda m: H_ACC if m == 0 else (H_LD + 8 * (m - 1) if m <= 11 else H_T + 8 * (m - 12))
        for m in range(16):
            d = dreg(m)
            B.append([I("s_movk_i32 s%d, %d" % (sT5, (m >> 1) * 4096)),
                      I("buffer_load_dwordx4 %s, v%d, %s, s%d offen offset:%d sc1" % (v(d, 4), H_RV, srd(SWS), sT5, (m & 1) * 2048), ("pl", m)),
                      I("buffer_load_dwordx4 %s, v%d, %s, s%d offen offset:%d sc1" % (v(d + 4, 4), H_RV, srd(SWS), sT5, (m & 1) * 2048 + 1024), ("pl", m))])
            if m % CFG["plstep"] == CFG["plstep"] - 1: B.append("step")
        B.append(W(vm=["zl"]))
        for k in (8, 4, 2, 1):
            for j in range(8): b("v_add_f32_dpp v%d, v%d, v%d row_ror:%d row_mask:0xf bank_mask:0xf" % (Z + j, Z + j, Z + j, k))
        for m in range(1, 16):
            B.append(W(vm=[("pl", m)]))
            for j in range(8): b("v_add_f32 v%d, v%d, v%d" % (H_ACC + j, H_ACC + j, dreg(m) + j))
        KV = H_KF
        for sg in range(2):
            for j in range(2):
                b("v_cvt_pk_bf16_f32 v%d, v%d, v%d" % (KV + 4 * sg + j, H_ACC + 4 * sg + 2 * j, H_ACC + 4 * sg + 2 * j + 1))
                b("v_cvt_pk_bf16_f32 v%d, v%d, v%d" % (KV + 4 * sg + 2 + j, Z + 4 * sg + 2 * j, Z + 4 * sg + 2 * j + 1))
        for w in ("16", "32"):
            for sg in range(2):
                for j in range(2): b("v_permlane%s_swap_b32 v%d, v%d" % (w, KV + 4 * sg + j, KV + 4 * sg + 2 + j))
        for u in range(4):
            N = v(H_LD + 16 * u, 16)
            b("v_mfma_f32_32x32x16_bf16 %s, %s, %s, 0" % (N, v(KV, 4), v(H_PHI + 8 * u, 4)))
            b("v_mfma_f32_32x32x16_bf16 %s, %s, %s, %s" % (N, v(KV + 4, 4), v(H_PHI + 8 * u + 4, 4), N))
        for u in range(4): b("v_add_f32 v%d, 0x358637bd, v%d" % (H_LD + 16 * u + 8, H_LD + 16 * u + 8))
        for u in range(4): b("v_rcp_f32 v%d, v%d" % (H_LD + 16 * u + 8, H_LD + 16 * u + 8))
        for u in range(4):
            N = H_LD + 16 * u
            for j in range(8): b("v_mul_f32 v%d, v%d, v%d" % (N + j, N + j, N + 8))
            for j in range(4): b("v_cvt_pk_bf16_f32 v%d, v%d, v%d" % (N + j, N + 2 * j, N + 2 * j + 1))
            B.append([I("s_mov_b32 s%d, %d" % (sT5, u * 147456)),
                      I("buffer_store_dwordx4 %s, v%d, %s, s%d offen sc1" % (v(N, 4), H_ST, srd(SWS), sT5), "ost")])
        bstamp(15)
        for _ in range(CFG["sigdelay2"]): B.append("step")
        g = [W(vm=["ost"])]; signal(g, H_CMINE, C_O * 256); B.append(g)
        bstamp(16)
    issue = {0: [2, 3], 1: [4, 5], 2: [6, 7], 3: [8, 9]}
    for n in range(10, 20): issue.setdefault(n - 6, []).append(n)
    for k, st in enumerate(CFG["feed"]): issue.setdefault(st, []).append(20 + k)
    for n in range(20 + len(CFG["feed"]), 56): issue.setdefault(n - CFG["ahead2"], []).append(n)
    gates = {20: (C_H1Q, 8), 28: (C_H1KV, 8), 36: (C_H2, 16), 48: (C_O, 32)}
    step_of = {n: st for st, l in issue.items() for n in l}
    for n, st in step_of.items(): assert n <= st + 6 and n > st
    gate_at = {step_of[n]: n for n in gates}
    first_gu_end = [n for n, (pi, k, sg) in enumerate(sl) if PH[ty][pi][1] == "gu" and sg == 7][0]
    sig = {first_gu_end + 4: C_H1Q if ty == 1 else C_H1KV, CFG["h2wait"]: C_H2}
    assert CFG["h2wait"] < step_of[36] and 19 < step_of[28] and 11 < step_of[20]
    def only_w0(n, nm, items):
        a("s_cmp_lg_u32 s%d, 0" % sW3); a("s_cbranch_scc1 L_%s%d_%d" % (nm, ty, n))
        t, _ = finalize(items)
        for x in t: P.append(L(x))
        P.append(L("L_%s%d_%d:" % (nm, ty, n)))
    init()
    a("s_barrier")
    stamp(61)
    a("ds_write_b32 v%d, v%d" % (RS_ADDR, RS_VAL), "rsw")
    for m in issue[0]: dma(m)
    bi = 0
    for n in range(1, 56):
        P.append(W(vm=[("slab", n)], lg=["rsw"] if n == 1 else None))
        if n in gate_at:
            m = gate_at[n]; g = []
            stamp_to(P, 20 + 2 * list(gates).index(m), H_STAMP2)
            gate(P, H_CCONS, SWS, gates[m][0] * 256, ("poll", m), H_POLL, gates[m][1], sW3)
            stamp_to(P, 21 + 2 * list(gates).index(m), H_STAMP2)
        if n == 8: gate(P, H_ZERO, SDBG, 0, "pollinit", H_POLL, 1, sW3)
        a("s_barrier")
        stamp(n)
        if n in sig:
            g = []; signal(g, H_CMINE, sig[n] * 256); only_w0(n, "nosig", g)
        if n + 1 in gate_at or n == 7:
            if n == 7: t, tag = "buffer_load_dword v%d, v%d, %s, 0 offen sc1" % (H_POLL, H_ZERO, srd(SDBG)), "pollinit"
            else: t, tag = "buffer_load_dword v%d, v%d, %s, 0 offen offset:%d sc1" % (H_POLL, H_CCONS, srd(SWS), gates[gate_at[n + 1]][0] * 256), ("poll", gate_at[n + 1])
            only_w0(n, "nopoll", [I(t)]); P.append(M(tag))
        for m in issue.get(n, []): dma(m)
        if n == 1: P += B0a
        if n == 2: init2(); P += B0b
        if n == CFG["touch"]:
            a("s_mov_b64 exec, 0x3fff"); a("buffer_load_dword v%d, v%d, %s, 0 offen" % (H_POLL2, H_TCH, srd(SWD)))
            a("s_mov_b64 exec, 0xf"); a("buffer_load_dword v%d, v%d, %s, 0 offen" % (H_POLL2, H_TCH + 1, srd(SWO)))
            a("s_mov_b64 exec, -1")
        if n == 6: P += B0c
        if n >= bg_start:
            budget = CFG["chunk"] if n < 20 else CFG["chunk2"]
            while bi < len(B) and budget > 0:
                it = B[bi]
                if isinstance(it, tuple):
                    if n < it[1]: break
                    bi += 1; continue
                bi += 1
                if it == "step": break
                if isinstance(it, list): P += it; budget -= len(it)
                else: P.append(it); budget -= 1
            if bi == len(B):
                sys.stderr.write("type %d: background done in step %d\n" % (ty, n)); bi += 1
                assert n < step_of[48]
    assert bi > len(B)
    if CFG["stamps"]:
        stamp(62)
        a("s_lshl_b32 s%d, s2, 8" % sT0); a("s_add_u32 s%d, s%d, %d" % (sT0, sT0, WS_ST))
        a("v_lshlrev_b32 v%d, 2, v1" % H_T)
        a("s_cmp_lg_u32 s%d, 0" % sW3); a("s_cbranch_scc1 L_exit")
        a("buffer_store_dword v%d, v%d, %s, s%d offen" % (H_STAMP, H_T, srd(SWS), sT0))
        a("s_add_u32 s%d, s%d, 0x10000" % (sT0, sT0))
        a("buffer_store_dword v%d, v%d, %s, s%d offen" % (H_STAMP2, H_T, srd(SWS), sT0))
        if CFG["stamps"] == 2:
            a("s_cmp_lg_u32 s2, %d" % (5 if ty == 0 else 133)); a("s_cbranch_scc1 L_exit")
            for j, (reg, lane) in enumerate(((H_STAMP2, 0), (H_STAMP2, 2), (H_STAMP2, 10), (H_STAMP, 61), (H_STAMP, 8), (H_STAMP, 20), (H_STAMP, 62))):
                a("v_readlane_b32 s%d, v%d, %d" % (sT1, reg, lane)); a("v_mov_b32 v%d, s%d" % (H_T + 1, sT1))
                a("buffer_store_dword v%d, v%d, %s, 0 offen offset:%d" % (H_T + 1, H_ZERO, srd(SDBG), 4 + 4 * j + 32 * ty))
    a("s_endpgm")
    return P

def main():
    hdr = open("cdna_kernels/%s.s.ref" % NAME).read().split("; Override launch geometry")[0]
    out = [hdr.rstrip(), "; @launch grid=(256,1,1) block=(512,1,1) lds=163840",
           '.amdgcn_target "amdgcn-amd-amdhsa--gfx950"', ".text", ".globl %s_kernel" % NAME, ".p2align 8",
           ".type %s_kernel,@function" % NAME, "%s_kernel:" % NAME]
    t, st = finalize(prologue()); out += t
    def branch_ty(lbl): return [I("s_cmp_eq_u32 s%d, 1" % sTY), I("s_cbranch_scc1 %s" % lbl)]
    t, _ = finalize(branch_ty("L_comp1") + compute(0), st.clone()); out += t
    out.append("L_comp1:"); t, _ = finalize(compute(1), st.clone()); out += t
    out.append("L_helper:"); t, _ = finalize(branch_ty("L_help1") + helper(0), st.clone()); out += t
    out.append("L_help1:"); t, _ = finalize(helper(1), st.clone()); out += t
    out += ["L_exit:", "    s_endpgm", '.section .rodata,"a"', ".p2align 6", ".amdhsa_kernel %s_kernel" % NAME,
            "  .amdhsa_next_free_vgpr 256", "  .amdhsa_next_free_sgpr 100", "  .amdhsa_accum_offset 256",
            "  .amdhsa_group_segment_fixed_size 0", "  .amdhsa_kernarg_size 88", "  .amdhsa_user_sgpr_count 2",
            "  .amdhsa_user_sgpr_kernarg_segment_ptr 1", "  .amdhsa_system_sgpr_workgroup_id_x 1", ".end_amdhsa_kernel"]
    open(sys.argv[1], "w").write("\n".join(out) + "\n")
main()
```

```python
import sys, os, json
sys.path.insert(0, os.path.dirname(os.path.abspath(__file__)))
from asmir import I, W, L, M, v, s, finalize, State

NAME = "recurrent_scan__linear_kernel_hedgehog__glu_gated_bilinear__prompt"
CFG = dict(stamps=0, stampw=0, zoom=0, LA=6, LAF=5, erate=3, codepf=1, sleep=2, cnap=1, map=84, map2=84, h2now=1, chk2=1,
           cap1=112, cap2=128, capsw=36, awin=-1, pollat=2, hwait1=24, hwait2=0, nb0=28, nb1=40, ahead2=4,
           bfirst=6, p2chk=1,
           tplan0={"1": "g0", "7": "g1 o", "10": "d0 d1", "14": "d2 d3"},
           tplan1={"1": "q g0", "9": "d0 d1", "12": "g1 o", "15": "d2 d3"})
for a_ in sys.argv[2:]:
    k_, x_ = a_.split("="); assert k_ in CFG, k_; CFG[k_] = json.loads(x_)

WS_RS = 0x8000
WS_KV = 0x10000
WS_Z = 0x120000
WS_ST = 0x140000
WS_HO = 0x200000
WS_BYTES = WS_HO + 64 * 144 * 1024
C_H1A, C_H1B, C_H2, C_O = 0, 1, 2, 3
SLOT = 16384; STG = 32768; EX = 131072; FL = 7 * SLOT; LRS = FL + 1024; LSD = LRS + 512
F_LAND, F_DONE, F_EX, F_RS, F_H, F_EXF, F_END = 0, 16, 32, 40, 44, 52, 56
SX, SQKV, SPHI, SWO, SG, SU, SWD, SOUT, SDBG, SWS = 8, 12, 16, 20, 24, 28, 32, 36, 40, 44
sW, sW1, sI, sGR, sTY, sR1, sXR, sTT, sCT, sR2 = range(56, 66)
sT0, sT1, sT2, sT3, sT4, sT5 = range(66, 72)
sL2E = 72; sKC = 73; sSH = 74; sXL = 75; sKS = 76; sLA = 78; sXB = 79
sSPIN = 80; sRET = 82; sPH = 84; sTM = 90; sMK = 94
srd = lambda b: s(b, 4)
LOG2E = 0x3fb8aa3b
XR = 128; ACC = 64; WF = 32
L_T, L_SEL, L_ID, L_SM, L_CM, L_SQ = 192, 224, 228, 232, 236, 240
L_XO, L_RR, L_C, L_SB, L_C7, L_WA, L_VA, L_VB = 124, 245, 246, 247, 248, 249, 251, 252
L_TR = 244
K_SQ, K_DL, K_RA = 16, 20, 24
H_STAMP = 255; H_STAMP2 = 254
_lbl = [0]
def newlbl():
    _lbl[0] += 1; return _lbl[0]
STUBS = []

PH = {0: [("P2", "kv", (0, 1)), ("P4", "gu", (2, 3, 0, 1)), ("P4", "gu", (0, 1, 2, 3))],
      1: [("P2", "kv", (0, 1)), ("P2", "q", (2, 3)), ("P4", "gu", (0, 1, 2, 3)), ("P2", "gu", (0, 1))]}
def slabs_of(ty):
    return [(pi, k, sg) for pi, (k, e, _) in enumerate(PH[ty]) for sg in range(8 if k == "P4" else 4)]
def slot_of(n):
    return n % 7 if n < 20 else (6, 0, 1, 2, 8, 9, 3, 4, 5)[(n - 20) % 9]
def prev_user(n):
    p = [m for m in range(n) if slot_of(m) == slot_of(n)]
    return p[-1] if p else -1
def checks(ty):
    c = {1: 1}
    for n in range(2, CFG["nb%d" % ty], 2):
        if (CFG["chk2"] if n < 20 else CFG["p2chk"] == 2): c[n] = n + 1
        else: c[n] = n; c[n + 1] = n + 1
    return c

def stamp_to(P, k, reg=H_STAMP):
    if CFG["stamps"]:
        P.append(I("s_memtime %s" % s(sTM + 2, 2))); P.append(W(lg="all"))
        P.append(I("s_sub_u32 s%d, s%d, s%d" % (sTM + 2, sTM + 2, sTM))); P.append(I("v_writelane_b32 v%d, s%d, %d" % (reg, sTM + 2, k)))
def raw(P, items):
    for x in finalize(items)[0]: P.append(L(x))
def only(P, cond, items):
    n = newlbl()
    for t in cond: P.append(I(t))
    P.append(I("s_cbranch_scc1 L_sk%d" % n)); raw(P, items); P.append(L("L_sk%d:" % n))
def one_lane(X, t, tag=None):
    X.append(I("s_mov_b64 exec, 1")); X.append(I(t, tag)); X.append(I("s_mov_b64 exec, -1"))

def p4_voffs(a, va, vb, stride, t):
    a("v_lshrrev_b32 v%d, 3, v1" % t)
    a("v_and_b32 v%d, 2, v%d" % (t + 1, t)); a("v_lshlrev_b32 v%d, 1, v%d" % (t + 1, t + 1))
    a("v_and_b32 v%d, 7, v1" % (t + 2)); a("v_xor_b32 v%d, v%d, v%d" % (t + 2, t + 2, t + 1))
    a("v_mul_u32_u24 v%d, %d, v%d" % (t, stride, t))
    a("v_lshl_add_u32 v%d, v%d, 4, v%d" % (va, t + 2, t))
    a("v_xor_b32 v%d, 32, v%d" % (vb, va))
def p2_voffs(a, va, vb, stride, t):
    a("v_lshrrev_b32 v%d, 2, v1" % t)
    a("v_and_b32 v%d, 3, v1" % (t + 2))
    a("v_mul_u32_u24 v%d, %d, v%d" % (t, stride, t))
    a("v_lshl_add_u32 v%d, v%d, 4, v%d" % (va, t + 2, t))
    a("v_xor_b32 v%d, 32, v%d" % (vb, va))
def ident(a, dst, t):
    a("v_and_b32 v%d, 3, v1" % t)
    a("v_and_b32 v%d, 1, v1" % (t + 1)); a("v_lshlrev_b32 v%d, 4, v%d" % (t + 1, t + 1)); a("v_mov_b32 v%d, 0x3f80" % (t + 2))
    a("v_lshlrev_b32 v%d, v%d, v%d" % (t + 1, t + 1, t + 2))
    a("v_cmp_gt_u32 vcc, 2, v%d" % t)
    a("v_cndmask_b32 v%d, 0, v%d, vcc" % (dst, t + 1)); a("v_sub_u32 v%d, v%d, v%d" % (dst + 1, t + 1, dst))

X_V = 48
def prologue():
    P = []; a = lambda t, tag=None: P.append(I(t, tag))
    a("s_cmp_ge_u32 s2, 256")
    a("s_cbranch_scc1 L_exit")
    a("s_load_dwordx2 %s, s[0:1], 0" % s(SX, 2)); a("s_load_dwordx2 %s, s[0:1], 8" % s(SQKV, 2))
    if CFG["stamps"]:
        a("s_memtime %s" % s(sTM, 2)); a("s_memrealtime s[4:5]")
    a("s_lshr_b32 s%d, s2, 3" % sSH)
    if CFG["codepf"]:
        a("s_getpc_b64 s[6:7]"); P.append(L("L_pc:"))
        a("s_mul_i32 s%d, s%d, 24" % (sT0, sSH))
        a("v_add_u32 v3, s%d, v0" % sT0); a("v_lshlrev_b32 v3, 7, v3"); a("v_min_u32 v3, L_exit-L_pc, v3")
        a("v_cmp_gt_u32 vcc, 24, v0"); a("s_and_saveexec_b64 s[48:49], vcc"); a("s_cbranch_execz L_nopf")
        P.append(L("    global_load_dword v%d, v3, s[6:7]" % (X_V + 5)))
        P.append(L("L_nopf:")); a("s_mov_b64 exec, -1")
    a("v_lshrrev_b32 v2, 6, v0")
    a("v_and_b32 v1, 63, v0")
    a("v_readfirstlane_b32 s%d, v2" % sW)
    a("s_and_b32 s%d, s2, 7" % sT5)
    a("s_lshr_b32 s%d, s%d, 4" % (sTY, sSH))
    if CFG["map"] == 48:
        a("s_and_b32 s%d, s%d, 3" % (sT3, sSH)); a("s_lshl_b32 s%d, s%d, 1" % (sXR, sT3))
        a("s_lshr_b32 s%d, s%d, 1" % (sT2, sT5)); a("s_lshl_b32 s%d, s%d, 2" % (sT2, sT2)); a("s_add_u32 s%d, s%d, s%d" % (sI, sT2, sT3))
        a("s_lshr_b32 s%d, s%d, 2" % (sR1, sSH))
        a("s_and_b32 s%d, s%d, 1" % (sT2, sT5)); a("s_lshl_b32 s%d, s%d, 2" % (sT2, sT2)); a("s_and_b32 s%d, s%d, 3" % (sT3, sR1)); a("s_add_u32 s%d, s%d, s%d" % (sGR, sT2, sT3))
    else:
        a("s_and_b32 s%d, s%d, 7" % (sXR, sSH))
        a("s_lshr_b32 s%d, s%d, 2" % (sT2, sT5)); a("s_lshl_b32 s%d, s%d, 3" % (sT2, sT2)); a("s_add_u32 s%d, s%d, s%d" % (sI, sT2, sXR))
        a("s_lshr_b32 s%d, s%d, 3" % (sT3, sSH)); a("s_lshl_b32 s%d, s%d, 1" % (sR1, sT3))
        a("s_and_b32 s%d, s%d, 3" % (sT2, sT5)); a("s_lshl_b32 s%d, s%d, 1" % (sT2, sT2)); a("s_and_b32 s%d, s%d, 1" % (sT3, sT3)); a("s_add_u32 s%d, s%d, s%d" % (sGR, sT2, sT3))
    a("s_mov_b32 s%d, 2097152" % (SX + 2)); a("s_mov_b32 s%d, 0x20000" % (SX + 3))
    X = []; x = lambda t, tag=None: X.append(I(t, tag))
    x("v_lshrrev_b32 v4, 3, v1"); x("v_lshrrev_b32 v5, 4, v1"); x("v_and_b32 v6, 7, v1"); x("v_xor_b32 v5, v5, v6")
    x("v_lshlrev_b32 v4, 10, v4"); x("v_lshl_add_u32 v%d, v5, 4, v4" % X_V)
    x("v_xor_b32 v4, 64, v%d" % X_V)
    x("v_add_u32 v%d, 7168, v4" % (X_V + 1)); x("v_add_u32 v%d, 14336, v%d" % (X_V + 2, X_V)); x("v_add_u32 v%d, 21504, v4" % (X_V + 3))
    x("s_and_b32 s%d, s%d, 3" % (sT0, sW)); x("s_lshl_b32 s%d, s%d, 12" % (sXL, sT0)); x("s_add_u32 s%d, s%d, %d" % (sXL, sXL, STG))
    x("s_lshl_b32 s%d, s%d, 15" % (sT0, sT0)); x("s_lshl_b32 s%d, s%d, 17" % (sXB, sI)); x("s_add_u32 s%d, s%d, s%d" % (sXB, sXB, sT0))
    x("s_cmp_lt_u32 s%d, 4" % sW); x("s_cbranch_scc1 L_nox")
    x("s_waitcnt lgkmcnt(0)")
    xline(x, 0); xline(x, 1)
    raw(P, X); P.append(L("L_nox:"))
    if CFG["stamps"]:
        a("v_mov_b32 v%d, 0" % H_STAMP); a("v_mov_b32 v%d, 0" % H_STAMP2); P.append(W(lg="all"))
    stamp_to(P, 0, H_STAMP2)
    for b, off in ((SPHI, 16), (SWS, 80), (SG, 40), (SU, 48), (SWO, 24), (SWD, 56), (SOUT, 64), (SDBG, 72)):
        a("s_load_dwordx2 %s, s[0:1], %d" % (s(b, 2), off))
    for b, n in ((SQKV, 1572864), (SPHI, 16384), (SWO, 524288), (SG, 1835008), (SU, 1835008), (SWD, 1835008), (SOUT, 2097152), (SDBG, 256), (SWS, WS_BYTES)):
        a("s_mov_b32 s%d, %d" % (b + 2, n)); a("s_mov_b32 s%d, 0x20000" % (b + 3))
    a("s_lshl_b32 s%d, s%d, 7" % (sKC, sGR)); a("s_lshl_b32 s%d, s%d, 6" % (sT0, sTY)); a("s_add_u32 s%d, s%d, s%d" % (sKC, sKC, sT0)); a("s_add_u32 s%d, s%d, 1024" % (sKC, sKC))
    if CFG["map2"] == 48:
        a("s_lshr_b32 s%d, s%d, 2" % (sCT, sSH)); a("s_and_b32 s%d, s%d, 3" % (sT3, sSH))
        a("s_lshl_b32 s%d, s%d, 2" % (sT2, sT5)); a("s_add_u32 s%d, s%d, s%d" % (sTT, sT2, sT3))
        a("s_lshl_b32 s%d, s%d, 1" % (sT3, sT3)); a("s_add_u32 s%d, s%d, s%d" % (sR2, sT3, sCT))
    else:
        a("s_lshr_b32 s%d, s%d, 3" % (sT3, sSH)); a("s_and_b32 s%d, s%d, 1" % (sT2, sT5)); a("s_lshl_b32 s%d, s%d, 2" % (sT2, sT2)); a("s_add_u32 s%d, s%d, s%d" % (sCT, sT2, sT3))
        a("s_and_b32 s%d, s%d, 7" % (sT1, sSH)); a("s_lshr_b32 s%d, s%d, 1" % (sT2, sT5)); a("s_lshl_b32 s%d, s%d, 3" % (sT2, sT2)); a("s_add_u32 s%d, s%d, s%d" % (sTT, sT2, sT1))
        a("s_lshl_b32 s%d, s%d, 1" % (sT3, sT3)); a("s_add_u32 s%d, s%d, s%d" % (sR2, sT3, sT1))
    a("s_and_b32 s%d, s%d, 1" % (sW1, sW))
    a("s_mov_b32 s%d, 0x%x" % (sL2E, LOG2E))
    P.append(W(lg="all"))
    a("s_cmp_lt_u32 s%d, 4" % sW); a("s_cbranch_scc1 L_comp")
    a("s_cmp_lt_u32 s%d, 6" % sW); a("s_cbranch_scc1 L_dma")
    return P

def xline(a, j):
    a("s_add_u32 s%d, s%d, %d" % (sT0, sR1, j)); a("s_and_b32 s%d, s%d, 7" % (sT0, sT0)); a("s_lshl_b32 s%d, s%d, 7" % (sT0, sT0)); a("s_add_u32 s%d, s%d, s%d" % (sT0, sT0, sXB))
    a("s_add_u32 m0, s%d, %d" % (sXL, j * 16384))
    for p in range(4): a("buffer_load_dwordx4 v%d, %s, s%d offen offset:%d lds" % (X_V + p, srd(SX), sT0, p * 1024), ("x", j))
def xstages(P, extra):
    a = lambda t, tag=None: P.append(I(t, tag))
    xline(a, 2); xline(a, 3)
    for j in range(4):
        P.append(W(vm=[("x", 2 * j + 1)]))
        a("s_barrier")
        if j == 0: stamp_to(P, 2, H_STAMP2)
        if j < 2: xline(a, 2 * j + 4); xline(a, 2 * j + 5)
        if j in extra: extra[j]()

def fcols(a, ty):
    if ty == 0:
        a("s_lshl_b32 s%d, s%d, 7" % (sKS, sGR)); a("s_add_u32 s%d, s%d, 64" % (sKS + 1, sKS))
    else:
        a("s_mul_i32 s%d, s%d, 96" % (sT0, sGR)); a("s_add_u32 s%d, s%d, 1024" % (sT0, sT0))
        a("s_and_b32 s%d, s%d, 1" % (sT1, sGR)); a("s_lshl_b32 s%d, s%d, 5" % (sT2, sT1))
        a("s_add_u32 s%d, s%d, s%d" % (sKS, sT0, sT2))
        a("s_xor_b32 s%d, s%d, 1" % (sT1, sT1)); a("s_lshl_b32 s%d, s%d, 6" % (sT1, sT1))
        a("s_add_u32 s%d, s%d, s%d" % (sKS + 1, sT0, sT1))

def clear_low(a, used):
    for k in range(2, 64):
        if k not in used: a("v_mov_b32 v%d, 0" % k)

def lds_spin(nm, vfl, off, nw, vd, nap):
    rd = {1: "ds_read_b32 v%d" % vd, 2: "ds_read_b64 %s" % v(vd, 2), 4: "ds_read_b128 %s" % v(vd, 4)}[nw]
    X = ["L_spin_%s:" % nm, "    s_mov_b32 s%d, 0" % sSPIN, "L_spl_%s:" % nm]
    if nap: X.append("    s_sleep %d" % nap)
    X += ["    %s, v%d offset:%d" % (rd, vfl, off), "    s_add_u32 s%d, s%d, 1" % (sSPIN, sSPIN), "    s_waitcnt lgkmcnt(0)"]
    if nw == 4: X.append("    v_min3_u32 v%d, v%d, v%d, v%d" % (vd, vd, vd + 2, vd + 3))
    if nw >= 2: X.append("    v_min_u32 v%d, v%d, v%d" % (vd, vd, vd + 1))
    X += ["    s_cmp_ge_u32 s%d, 0x1000000" % sSPIN, "    s_cbranch_scc1 L_spr_%s" % nm,
          "    v_cmp_gt_u32 vcc, s%d, v%d" % (sSPIN + 1, vd), "    s_cbranch_vccnz L_spl_%s" % nm, "L_spr_%s:" % nm, "    s_setpc_b64 %s" % s(sRET, 2)]
    return X
def count_wait(P, vfl, vd, off, want):
    n = newlbl()
    P.append(W(lg="all"))
    for t in ["    s_mov_b32 s%d, 0" % sSPIN, "L_cw%d:" % n, "    ds_read_b32 v%d, v%d offset:%d" % (vd, vfl, off), "    s_add_u32 s%d, s%d, 1" % (sSPIN, sSPIN),
              "    s_waitcnt lgkmcnt(0)", "    v_cmp_le_u32 vcc, %d, v%d" % (want, vd), "    s_cbranch_vccnz L_cx%d" % n, "    s_sleep 1",
              "    s_cmp_lt_u32 s%d, 0x1000000" % sSPIN, "    s_cbranch_scc1 L_cw%d" % n, "L_cx%d:" % n]: P.append(L(t))

def gate(P, vaddr, srdb, off, tag, vdst, want, slow=None):
    n = newlbl()
    P.append(W(vm=[tag]))
    P.append(I("v_cmp_eq_u32 vcc, %d, v%d" % (want, vdst)))
    P.append(I("s_cbranch_vccnz L_ok%d" % n))
    if slow: raw(P, slow)
    X = ["    s_mov_b32 s%d, 0" % sSPIN, "L_spin%d:" % n]
    if CFG["sleep"]: X.append("    s_sleep %d" % CFG["sleep"])
    X += ["    buffer_load_dword v%d, v%d, %s, 0 offen offset:%d sc1" % (vdst, vaddr, srd(srdb), off), "    s_add_u32 s%d, s%d, 1" % (sSPIN, sSPIN),
          "    s_waitcnt vmcnt(0)", "    v_cmp_eq_u32 vcc, %d, v%d" % (want, vdst), "    s_cbranch_vccnz L_ok%d" % n,
          "    s_cmp_lt_u32 s%d, 0x80000" % sSPIN, "    s_cbranch_scc1 L_spin%d" % n, "L_ok%d:" % n]
    for t in X: P.append(L(t))

C_XA = ACC + 16
N_ONES = ACC + 24
N_T, N_CM, N_SQ, N_ID, N_DL, N_TK = ACC + 32, ACC + 48, ACC + 52, ACC + 60, ACC + 62, ACC + 63
C_A2, C_B2, C_OUT, C_RO = 25, 28, 31, 0
C_FV, C_HC, C_FL, C_ONE, C_DV, C_CM = 16, 20, 21, 22, 23, 24
def compute_setup(ty):
    P = []; a = lambda t, tag=None: P.append(I(t, tag))
    t = list(range(32, 48))
    tok, hi, r, c, mat = t[0:5]
    a("v_and_b32 v%d, 31, v1" % tok); a("v_lshrrev_b32 v%d, 5, v1" % hi)
    a("s_lshl_b32 s%d, s%d, 12" % (sT1, sW)); a("s_add_u32 s%d, s%d, %d" % (sT1, sT1, STG))
    a("v_lshlrev_b32 v%d, 7, v%d" % (t[5], tok)); a("v_add_u32 v%d, s%d, v%d" % (t[5], sT1, t[5]))
    a("v_bfe_u32 v%d, v1, 1, 3" % t[6]); a("v_xor_b32 v%d, v%d, v%d" % (t[6], t[6], hi))
    for k in range(4):
        a("v_xor_b32 v%d, %d, v%d" % (C_XA + k, 2 * k, t[6])); a("v_lshl_add_u32 v%d, v%d, 4, v%d" % (C_XA + k, C_XA + k, t[5]))
        a("v_add_u32 v%d, 0x10000, v%d" % (C_XA + 4 + k, C_XA + k))
    for k in range(4): a("v_mov_b32 v%d, 0x3f803f80" % (N_ONES + k))
    ident(a, N_ID, t[13])
    for j in range(3): a("v_cmp_eq_u32 %s, %d, v%d" % (s(sMK + 2 * j, 2), j + 1, t[13]))
    a("v_mov_b32 v%d, %d" % (C_FL, FL)); a("v_mov_b32 v%d, 1" % C_ONE); a("s_lshl_b32 s%d, s%d, 10" % (sT4, sI)); a("v_mov_b32 v%d, s%d" % (C_CM, sT4))
    a("s_lshl_b32 s%d, s%d, 2" % (sT4, sW)); a("v_add_u32 v18, s%d, v%d" % (sT4, C_FL))
    a("s_lshl_b32 s%d, s%d, 5" % (sT4, sW)); a("v_add_u32 v%d, s%d, v%d" % (N_TK, sT4, tok))
    a("s_lshl_b32 s%d, s%d, 13" % (sT0, sW))
    a("v_bfe_u32 v%d, v1, 2, 2" % r); a("v_and_b32 v%d, 3, v1" % c); a("v_bfe_u32 v%d, v1, 4, 1" % mat)
    a("v_lshlrev_b32 v%d, 3, v%d" % (t[7], c)); a("v_lshl_add_u32 v%d, v%d, 10, v%d" % (t[7], mat, t[7]))
    a("v_lshl_add_u32 v%d, v%d, 11, v%d" % (t[8], hi, t[7])); a("v_lshl_add_u32 v%d, v%d, 7, v%d" % (t[8], r, t[8]))
    a("v_and_b32 v%d, 2, v%d" % (t[9], r)); a("v_xor_b32 v%d, v%d, v%d" % (t[9], t[9], mat))
    for k in range(4):
        a("v_xor_b32 v%d, %d, v%d" % (t[10], k, t[9])); a("v_lshl_add_u32 v%d, v%d, 5, v%d" % (2 + k, t[10], t[8])); a("v_add_u32 v%d, 0x10000, v%d" % (6 + k, 2 + k))
    a("v_lshl_add_u32 v%d, v%d, 9, v%d" % (t[8], hi, t[7])); a("v_lshl_add_u32 v%d, v%d, 6, v%d" % (t[8], r, t[8]))
    for k in range(2):
        a("v_xor_b32 v%d, %d, v%d" % (t[10], k, mat)); a("v_lshl_add_u32 v%d, v%d, 5, v%d" % (10 + k, t[10], t[8])); a("v_add_u32 v%d, 0x10000, v%d" % (12 + k, 10 + k))
    a("v_lshlrev_b32 v%d, 4, v1" % t[11])
    a("s_add_u32 s%d, s%d, %d" % (sT0, sT0, EX)); a("v_add_u32 v15, s%d, v%d" % (sT0, t[11]))
    a("s_lshl_b32 s%d, s%d, 2" % (sT0, sI)); a("s_add_u32 s%d, s%d, s%d" % (sT0, sT0, sW)); a("s_mul_i32 s%d, s%d, %d" % (sT0, sT0, 147456))
    a("s_add_u32 s%d, s%d, %d" % (sT0, sT0, WS_HO)); a("v_add_u32 v14, s%d, v%d" % (sT0, t[11]))
    fcols(a, ty)
    a("s_lshl_b32 s%d, s%d, 6" % (sKS, sKS)); a("s_lshl_b32 s%d, s%d, 6" % (sKS + 1, sKS + 1))
    a("s_lshr_b32 s%d, s%d, 1" % (sT0, sW))
    a("s_lshl_b32 s%d, s%d, 13" % (sT2, sT0)); a("s_add_u32 s%d, s%d, 2048" % (sT2, sT2))
    a("v_add_u32 v%d, s%d, v%d" % (C_A2, sT2, t[11])); a("v_add_u32 v%d, 0x10000, v%d" % (C_A2 + 1, C_A2)); a("v_add_u32 v%d, 0x20000, v%d" % (C_A2 + 2, C_A2))
    u = t[12]
    a("v_bfe_u32 v%d, v1, 3, 1" % u); a("v_xor_b32 v%d, s%d, v%d" % (u, sW1, u)); a("v_lshlrev_b32 v%d, 6, v%d" % (C_B2, u))
    a("v_lshl_add_u32 v%d, v%d, 7, v%d" % (C_B2, r, C_B2)); a("v_lshl_add_u32 v%d, v%d, 9, v%d" % (C_B2, hi, C_B2))
    a("v_and_b32 v%d, 1, v1" % u); a("v_lshl_add_u32 v%d, v%d, 5, v%d" % (C_B2, u, C_B2))
    a("v_lshl_add_u32 v%d, v%d, 4, v%d" % (C_B2, mat, C_B2))
    a("v_bfe_u32 v%d, v1, 1, 1" % u); a("v_lshl_add_u32 v%d, v%d, 3, v%d" % (C_B2, u, C_B2))
    a("v_add_u32 v%d, 0x10000, v%d" % (C_B2 + 1, C_B2)); a("v_add_u32 v%d, 0x20000, v%d" % (C_B2 + 2, C_B2))
    a("s_lshl_b32 s%d, s%d, 6" % (sT2, sTT)); a("s_lshl_b32 s%d, s%d, 5" % (sT3, sT0)); a("s_add_u32 s%d, s%d, s%d" % (sT2, sT2, sT3))
    a("v_add_u32 v%d, s%d, v%d" % (u, sT2, tok))
    a("v_lshlrev_b32 v%d, 2, v%d" % (C_RO, u)); a("v_add_u32 v%d, %d, v%d" % (C_RO, WS_RS, C_RO))
    a("s_lshl_b32 s%d, s%d, 7" % (sT3, sCT)); a("s_lshl_b32 s%d, s%d, 6" % (sT4, sW1)); a("s_add_u32 s%d, s%d, s%d" % (sT3, sT3, sT4))
    a("v_lshlrev_b32 v%d, 10, v%d" % (u, u)); a("v_lshl_add_u32 v%d, v%d, 5, v%d" % (u, hi, u)); a("v_add_u32 v%d, s%d, v%d" % (C_OUT, sT3, u))
    return P

def compute(ty):
    P = compute_setup(ty); a = lambda t, tag=None: P.append(I(t, tag))
    NB = CFG["nb%d" % ty]; CH = checks(ty)
    ops = []; queue = []
    sl = slabs_of(ty); gu_seen = 0; ex_seen = 0
    firstuse = {}; epi = []
    for n, (pi, kind, sg) in enumerate(sl):
        slot = slot_of(n); win = slot >> 2; base = (slot & 3) * SLOT
        e, tiles = PH[ty][pi][1:]
        order = tiles if sg == 0 else sorted(tiles)
        nk = 4 if kind == "P4" else 8
        last = sg == (7 if kind == "P4" else 3)
        seq = [(t, u) for t in order for u in range(nk)]
        for t, u in seq:
            if sg == 0 and u == 0: firstuse[(pi, t)] = len(ops)
            if True:
                m = len(ops); fb = WF + 4 * (m & 7)
                if kind == "P4": ar, off, dq, xs = 2 + 4 * win + t, base + u * 4096, 512, sg * 4 + u
                else: ar, off, dq, xs = 10 + 2 * win + (t & 1), base + u * 2048, 256, sg * 8 + u
                acc = v(ACC + 16 * t, 16)
                ops.append(dict(slab=n, reads=[("ds_read_b64_tr_b16 %s, v%d offset:%d" % (v(fb, 2), ar, off), ("f", m)),
                                               ("ds_read_b64_tr_b16 %s, v%d offset:%d" % (v(fb + 2, 2), ar, off + dq), ("f", m))],
                                waits=[("f", m)], la=CFG["LA"],
                                mfma="v_mfma_f32_32x32x16_bf16 %s, %s, %s, %s" % (acc, v(fb, 4), v(XR + 4 * xs, 4), "0" if (sg == 0 and u == 0) else acc)))
            if last and u == nk - 1:
                A = ACC + 16 * t; E = []
                if e == "gu":
                    for j in range(8): E.append(I("v_mul_f32 v%d, v%d, v%d" % (A + j, A + j, A + j + 8)))
                    for j in range(4): E.append(I("v_cvt_pk_bf16_f32 v%d, v%d, v%d" % (A + j, A + 2 * j, A + 2 * j + 1)))
                    E.append(I("buffer_store_dwordx4 %s, v14, %s, s%d offen offset:%d sc1" % (v(A, 4), srd(SWS), sKS + gu_seen, t * 1024), ("h", gu_seen)))
                else:
                    for j in range(4):
                        for k in (2 * j, 2 * j + 1): E.append(I("v_cvt_pk_bf16_f32 v%d, v%d, v%d" % (A + k, A + 2 * k, A + 2 * k + 1)))
                        E.append(I("ds_write_b64 v15, %s offset:%d" % (v(A + 2 * j, 2), t * 2048 + (j >> 1) * 1024 + (j & 1) * 8)))
                    if t == order[-1]:
                        g = []; one_lane(g, "ds_add_u32 v%d, v%d offset:%d" % (C_FL, C_ONE, F_EX + 4 * ex_seen)); E.append(g); ex_seen += 1
                epi.append((len(ops) + 1, pi, t, E))
        if last and e == "gu":
            lb = newlbl(); kind_ = (C_H1B if ty else C_H1A) if gu_seen == 0 else C_H2
            g1 = [W(vm=[("h", gu_seen)])]; one_lane(g1, "ds_add_rtn_u32 v%d, v%d, v%d offset:%d" % (C_HC, C_FL, C_ONE, F_H + 4 * gu_seen), ("hc", gu_seen))
            g2 = [W(lg=[("hc", gu_seen)]), I("v_readfirstlane_b32 s%d, v%d" % (sT4, C_HC)), I("s_cmp_lg_u32 s%d, %d" % (sT4, 4 if gu_seen == 0 else 3)),
                  I("s_cbranch_scc1 L_hs%d" % lb), L("    s_mov_b64 exec, 1"),
                  L("    buffer_atomic_add v%d, v%d, %s, 0 offen offset:%d sc1" % (C_ONE, C_CM, srd(SWS), kind_ * 256)), L("    s_mov_b64 exec, -1"), L("L_hs%d:" % lb)]
            w0 = len(ops) + 6 + CFG["hwait1" if gu_seen == 0 else "hwait2"]
            epi.append((w0, 99, 0, [g1])); epi.append((w0 + 4, 99, 0, [g2]))
            gu_seen += 1
    n1 = len(ops)
    HB = XR; RES = XR + 32; R2 = XR + 40
    Y, S_ = (ACC + 32, ACC + 48) if ty == 1 else (XR + 48, XR + 64)
    for n in range(20, 56):
        slot = slot_of(n); win = slot >> 2; base = (slot & 3) * SLOT
        acc = v(Y if n < 48 else S_, 16)
        for kk in range(4):
            m = len(ops); fb = WF + 4 * (m & 7); hb = HB + 4 * (m & 7)
            ops.append(dict(slab=n, reads=[("ds_read_b64_tr_b16 %s, v%d offset:%d" % (v(fb, 2), C_B2 + win, base + kk * 4096), ("f", m)),
                                           ("ds_read_b64_tr_b16 %s, v%d offset:%d" % (v(fb + 2, 2), C_B2 + win, base + kk * 4096 + 1024), ("f", m)),
                                           ("ds_read_b128 %s, v%d offset:%d" % (v(hb, 4), C_A2 + win, base + (kk >> 1) * 4096 + (kk & 1) * 1024), ("f", m))],
                            waits=[("f", m)], la=4 if not (CFG["h2now"] and n == 20) else kk + 1,
                            mfma="v_mfma_f32_32x32x16_bf16 %s, %s, %s, %s" % (acc, v(fb, 4), v(hb, 4), "0" if (n in (20, 48) and kk == 0) else acc)))
    X = []; x = lambda t: X.append(I(t)); r = N_SQ
    for j in range(4): x("v_add_f32 v%d, v%d, v%d" % (r + j, r + j, r + j + 4))
    for j in range(3): x("v_cndmask_b32 v%d, v%d, v%d, %s" % (r, r, r + j + 1, s(sMK + 2 * j, 2)))
    x("v_mov_b32 v%d, v%d" % (r + 1, r)); x("v_permlane32_swap_b32 v%d, v%d" % (r, r + 1)); x("v_add_f32 v%d, v%d, v%d" % (r, r, r + 1))
    x("v_mul_f32 v%d, 0x3b000000, v%d" % (r, r)); x("v_fma_f32 v%d, -v%d, v%d, v%d" % (r, N_DL, N_DL, r)); x("v_max_f32 v%d, 0, v%d" % (r, r))
    def rnd(): x("v_cvt_pk_bf16_f32 v%d, v%d, v%d" % (r + 1, r, r)); x("v_and_b32 v%d, 0xffff0000, v%d" % (r, r + 1))
    rnd(); x("v_add_f32 v%d, 0x3727c5ac, v%d" % (r, r)); rnd(); x("v_sqrt_f32 v%d, v%d" % (r, r)); rnd()
    x("v_rcp_f32 v%d, v%d" % (r, r))
    x("v_lshl_add_u32 v%d, v%d, 1, v%d" % (r + 2, N_TK, C_FL)); x("v_lshl_add_u32 v%d, v%d, 2, v%d" % (r + 3, N_TK, C_FL))
    x("ds_write_b16 v%d, v%d offset:%d" % (r + 2, r + 1, LSD - FL)); x("ds_write_b32 v%d, v%d offset:%d" % (r + 3, r, LRS - FL))
    for it in X: queue.append((18, 50, it))
    for e0, pi, t, E in epi:
        dl = min([x for (p2, t2), x in firstuse.items() if p2 > pi and t2 == t] + [10 ** 9]) - 1
        for it in E: queue.append((e0, dl, it))
    G = XR + 80; XF = XR + 96; E = []
    E.append(I("buffer_load_dwordx4 %s, v%d, %s, 0 offen" % (v(RES, 4), C_OUT, srd(SX)), "res"))
    E.append(I("buffer_load_dwordx4 %s, v%d, %s, 0 offen offset:16" % (v(RES + 4, 4), C_OUT, srd(SX)), "res"))
    E.append(I("buffer_load_dword v%d, v%d, %s, 0 offen sc1" % (R2, C_RO, srd(SWS)), "res"))
    for it in E: queue.append((n1 + 48, 10 ** 9, it))
    E = [W(vm=["res"]), I("v_mul_f32 v%d, v%d, v%d" % (R2, R2, R2)), I("v_mul_f32 v%d, s%d, v%d" % (R2 + 1, sL2E, R2))]
    for j in range(8):
        E.append(I("v_lshlrev_b32 v%d, 16, v%d" % (XF + 2 * j, RES + j))); E.append(I("v_and_b32 v%d, 0xffff0000, v%d" % (XF + 2 * j + 1, RES + j)))
    for it in E: queue.append((n1 + 24 * 4, 10 ** 9, it))
    E = []
    for j in range(16): E.append(I("v_mul_f32 v%d, v%d, v%d" % (G + j, R2 + 1, Y + j)))
    for j in range(16): E.append(I("v_exp_f32 v%d, -v%d" % (G + j, G + j)))
    for j in range(16): E.append(I("v_mul_f32 v%d, v%d, v%d" % (Y + j, R2, Y + j)))
    for j in range(16): E.append(I("v_add_f32 v%d, 1.0, v%d" % (G + j, G + j)))
    for j in range(16): E.append(I("v_rcp_f32 v%d, v%d" % (G + j, G + j)))
    for j in range(16): E.append(I("v_mul_f32 v%d, v%d, v%d" % (G + j, G + j, Y + j)))
    for it in E: queue.append((n1 + 28 * 4 + 1, 10 ** 9, it))
    queue.sort(key=lambda x: x[0])
    first = {}
    for m, o in enumerate(ops): first.setdefault(o["slab"], m)
    fread = {first[n] - ops[first[n]]["la"] - (CFG["LAF"] if n <= 20 else 3): n for n in CH}
    lastdone = prev_user(min(NB + CFG["ahead2"], 56) - 1)
    def done(n):
        a("v_mov_b32 v%d, %d" % (C_DV, n + 1)); one_lane(P, "ds_write_b32 v18, v%d offset:%d" % (C_DV, F_DONE))
    issued = 0; cur = 0
    def issue_reads(upto_fn):
        nonlocal issued, cur
        while issued < len(ops) and upto_fn(issued):
            o = ops[issued]
            if o["slab"] > cur:
                cur = o["slab"]
                if cur > 20 and cur - 1 <= lastdone: done(cur - 1)
                if cur >= NB: a("s_barrier")
                elif cur in CH:
                    lb = newlbl()
                    a("s_cbranch_vccnz L_cs%d" % lb); P.append(L("L_cb%d:" % lb))
                    STUBS.extend(["L_cs%d:" % lb, "    s_movk_i32 s%d, %d" % (sSPIN + 1, CH[cur] + 1),
                                  "    s_call_b64 %s, L_spin_c" % s(sRET, 2), "    s_branch L_cb%d" % lb])
            for t, tag in o["reads"]: a(t, tag)
            issued += 1
    def cstamp(k):
        r = sPH + 2 * (k & 1)
        if k > 2:
            a("s_sub_u32 s%d, s%d, s%d" % (r, r, sTM)); a("v_writelane_b32 v19, s%d, %d" % (r, k - 2))
        elif k == 1: a("v_mov_b32 v19, 0")
        P.append(L("    s_memtime %s" % s(r, 2)))
    SM = ACC
    for j in range(4):
        a("s_barrier")
        for k in range(8 * j, 8 * j + 8):
            a("ds_read_b128 %s, v%d offset:%d" % (v(XR + 4 * k, 4), C_XA + (k & 3) + 4 * (k >> 4), ((k >> 2) & 3) * 16384), ("xn", k))
        for k in range(8 * j, 8 * j + 8):
            P.append(W(lg=[("xn", k)]))
            if k == 31: a("s_barrier")
            for h in range(2):
                xx = v(XR + 4 * k + 2 * h, 2); c = v(SM + 4 * h, 4); q = v(N_SQ + 4 * h, 4)
                a("v_mfma_f32_4x4x4_16b_bf16 %s, %s, %s, %s" % (c, v(N_ONES, 2), xx, "0" if k == 0 else c))
                a("v_mfma_f32_4x4x4_16b_bf16 %s, %s, %s, %s" % (q, xx, xx, "0" if k == 0 else q))
    a("s_waitcnt vmcnt(0)")
    issue_reads(lambda m: m < CFG["LA"])
    a("v_add_f32 v%d, v%d, v%d" % (SM, SM, SM + 4)); a("v_mov_b32 v%d, v%d" % (SM + 1, SM)); a("v_permlane32_swap_b32 v%d, v%d" % (SM, SM + 1))
    a("v_add_f32 v%d, v%d, v%d" % (SM, SM, SM + 1))
    a("v_mul_f32 v%d, 0xbb000000, v%d" % (N_DL, SM))
    a("v_cvt_pk_bf16_f32 v%d, v%d, v%d" % (SM, N_DL, N_DL))
    for j in range(4): a("v_and_b32 v%d, 0xffff0000, v%d" % (N_CM + j, SM))
    def cen(k, h): a("v_mfma_f32_4x4x4_16b_bf16 %s, %s, %s, %s" % (v(N_T + 8 * (k & 1) + 4 * h, 4), v(N_ID, 2), v(XR + 4 * k + 2 * h, 2), v(N_CM, 4)))
    def cvt(k, h):
        for j in (2 * h, 2 * h + 1): a("v_cvt_pk_bf16_f32 v%d, v%d, v%d" % (XR + 4 * k + j, N_T + 8 * (k & 1) + 2 * j, N_T + 8 * (k & 1) + 2 * j + 1))
    cen(0, 0); cen(0, 1); cen(1, 0)
    for k in range(32):
        for h in range(2):
            kn, hn = k + (h + 3) // 2, (h + 3) & 1
            if kn < 32: cen(kn, hn)
            cvt(k, h)
    qi = 0
    for m, o in enumerate(ops):
        P.append(W(lg=o["waits"]))
        a(o["mfma"])
        if m == n1 - 1 and CFG["h2now"]:
            lim = n1 + 1 if CFG["h2now"] == 1 else n1 + 40
            while queue[qi][0] <= lim:
                it = queue[qi][2]; P += it if isinstance(it, list) else [it]; qi += 1
        issue_reads(lambda k: k - ops[k]["la"] <= m)
        for n in range(1, 56):
            d = m - (first[n] - ops[first[n]]["la"])
            if d == -1 and n in CH:
                P.append(W(lg=[("fl", n)])); a("v_min_u32 v%d, v%d, v%d" % (C_FV, C_FV, C_FV + 1)); a("v_cmp_ge_u32 vcc, %d, v%d" % (CH[n], C_FV))
            if d == 1 and n <= 20: done(n - 1)
            if d == (2 if n <= 20 else 0) and CFG["stamps"] and not CFG["zoom"]: cstamp(n)
            if CFG["zoom"] and m == CFG["zoom"] + n: cstamp(n)
        if m in fread: a("ds_read_b64 %s, v%d offset:%d" % (v(C_FV, 2), C_FL, F_LAND), ("fl", fread[m]))
        rate = CFG["erate"] if m < n1 else 5
        cnt = 0
        while qi < len(queue) and queue[qi][0] <= m and cnt < rate:
            assert m <= queue[qi][1], ("filler past its deadline", ty, m, queue[qi][1])
            it = queue[qi][2]
            if isinstance(it, list): P += it; cnt += 2
            else: P.append(it)
            qi += 1; cnt += 1
    assert qi == len(queue)
    for j in range(16): a("v_fma_f32 v%d, v%d, v%d, v%d" % (G + j, S_ + j, G + j, XF + j))
    for j in range(8): a("v_cvt_pk_bf16_f32 v%d, v%d, v%d" % (XF + j, G + 2 * j, G + 2 * j + 1))
    a("buffer_store_dwordx4 %s, v%d, %s, 0 offen" % (v(XF, 4), C_OUT, srd(SOUT)))
    a("buffer_store_dwordx4 %s, v%d, %s, 0 offen offset:16" % (v(XF + 4, 4), C_OUT, srd(SOUT)))
    if CFG["stamps"]:
        one_lane(P, "ds_add_u32 v%d, v%d offset:%d" % (C_FL, C_ONE, F_END))
        cstamp(56); cstamp(57); P.append(W(lg="all")); cstamp(58)
        a("s_lshl_b32 s%d, s2, 8" % sT0); a("s_add_u32 s%d, s%d, %d" % (sT0, sT0, WS_ST + 0x20000))
        a("v_lshlrev_b32 v18, 2, v1")
        a("s_cmp_lg_u32 s%d, %d" % (sW, CFG["stampw"])); a("s_cbranch_scc1 L_exit")
        a("buffer_store_dword v19, v18, %s, s%d offen" % (srd(SWS), sT0))
    a("s_endpgm")
    return P

D_P = 32
D_A, D_B, D_B2, D_TAB, D_FL, D_LA, D_ONE, D_ZERO, D_CC, D_POLL, D_LV = range(2, 13)
D_DV = 28
D_TCH = 20
def phase_info(ty):
    return [(kind, 3584, SG, SU) if e == "gu" else (kind, 3072, SQKV, SQKV) for kind, e, _ in PH[ty]]
def dma_setup(ty):
    P = []; b = lambda t, tag=None: P.append(I(t, tag))
    t0, t1, t2, t3, u0, u1, u2 = range(64, 71)
    b("v_mov_b32 v%d, 0" % D_ZERO); b("v_mov_b32 v%d, 0" % D_TAB)
    b("v_mov_b32 v%d, 1" % D_ONE); b("v_mov_b32 v%d, %d" % (D_FL, FL))
    b("s_lshl_b32 s%d, s%d, 2" % (sT0, sW1)); b("v_add_u32 v%d, s%d, v%d" % (D_LA, sT0, D_FL))
    b("s_lshr_b32 s%d, s%d, 1" % (sT0, sTT)); b("s_lshl_b32 s%d, s%d, 10" % (sT0, sT0)); b("v_mov_b32 v%d, s%d" % (D_CC, sT0))
    b("s_lshl_b32 s%d, s%d, 1" % (sT0, sTT)); b("s_add_u32 s%d, s%d, s%d" % (sT0, sT0, sW1))
    b("s_mul_i32 s%d, s%d, 147456" % (sT0, sT0)); b("s_add_u32 s%d, s%d, %d" % (sT0, sT0, WS_HO - 2048))
    b("v_lshlrev_b32 v%d, 4, v1" % u0); b("v_add_u32 v%d, s%d, v%d" % (D_A, sT0, u0))
    b("v_lshrrev_b32 v%d, 3, v1" % u0); b("v_and_b32 v%d, 2, v%d" % (u1, u0)); b("v_lshlrev_b32 v%d, 1, v%d" % (u1, u1))
    b("v_and_b32 v%d, 7, v1" % u2); b("v_xor_b32 v%d, v%d, v%d" % (u2, u2, u1))
    b("v_lshlrev_b32 v%d, 10, v%d" % (u0, u0)); b("v_lshl_add_u32 v%d, v%d, 4, v%d" % (D_B, u2, u0))
    b("s_lshl_b32 s%d, s%d, 15" % (sT0, sW1)); b("s_lshl_b32 s%d, s%d, 7" % (sT1, sCT)); b("s_add_u32 s%d, s%d, s%d" % (sT0, sT0, sT1))
    b("v_add_u32 v%d, s%d, v%d" % (D_B, sT0, D_B)); b("v_add_u32 v%d, %d, v%d" % (D_B2, 8192 - 1024, D_B))
    fcols(b, ty)
    gu = 0
    for pi, (kind, e, _) in enumerate(PH[ty]):
        stride = 3584 if e == "gu" else 3072
        (p4_voffs if kind == "P4" else p2_voffs)(b, u0, u1, stride, t0)
        if e == "gu": b("s_lshl_b32 s%d, s%d, 1" % (sT1, sKS + gu)); db = 0; gu += 1
        elif e == "kv": b("s_mov_b32 s%d, s%d" % (sT1, sKC)); db = 1024
        else: b("s_lshl_b32 s%d, s%d, 7" % (sT1, sGR)); db = 64
        step = (8 if kind == "P4" else 16) * stride
        b("v_add_u32 v%d, s%d, v%d" % (u0, sT1, u0)); b("v_add_u32 v%d, s%d, v%d" % (u1, sT1, u1))
        for p in range(4):
            b("v_add_u32 v%d, %d, v%d" % (D_P + 4 * pi + p, 4096 + (p >> 1) * step - p * 1024 + (db if p & 1 else 0), u1 if p & 1 else u0))
    b("s_lshl_b32 s%d, s%d, 13" % (sLA, sW1))
    nr = 32 if CFG["map"] == 84 else 64
    b("s_lshl_b32 s%d, s%d, 6" % (sT0, sXR)); b("s_mul_i32 s%d, s%d, %d" % (sT1, sW1, nr)); b("s_add_u32 s%d, s%d, s%d" % (sT0, sT0, sT1))
    b("v_add_u32 v%d, s%d, v1" % (t2, sT0)); b("v_mul_u32_u24 v%d, 3072, v%d" % (D_TCH + 3, t2)); b("v_mul_u32_u24 v%d, 3584, v%d" % (D_TCH + 2, t2))
    b("s_lshl_b32 s%d, s%d, 7" % (sT0, sGR)); b("s_add_u32 s%d, s%d, 4096" % (sT0, sT0)); b("v_add_u32 v%d, s%d, v%d" % (D_TCH + 3, sT0, D_TCH + 3))
    b("v_add_u32 v%d, 4096, v%d" % (D_TCH + 2, D_TCH + 2))
    b("s_lshl_b32 s%d, s%d, 1" % (sKS, sKS)); b("s_lshl_b32 s%d, s%d, 1" % (sKS + 1, sKS + 1))
    b("s_lshl_b32 s%d, s%d, 1" % (sT0, sSH)); b("s_add_u32 s%d, s%d, s%d" % (sT0, sT0, sW1))
    if CFG["map2"] == 48: b("v_lshlrev_b32 v%d, 7, v1" % t2)
    else:
        b("v_lshrrev_b32 v%d, 2, v1" % t2); b("v_lshlrev_b32 v%d, 10, v%d" % (t2, t2)); b("v_and_b32 v%d, 3, v1" % t3); b("v_lshl_add_u32 v%d, v%d, 7, v%d" % (t2, t3, t2))
        b("s_and_b32 s%d, s%d, 4" % (sT1, sCT)); b("s_lshl_b32 s%d, s%d, 7" % (sT1, sT1)); b("v_add_u32 v%d, s%d, v%d" % (t2, sT1, t2))
    b("s_mul_i32 s%d, s%d, %d" % (sT1, sT0, 28 * 1024)); b("v_add_u32 v%d, s%d, v%d" % (D_TCH, sT1, t2))
    b("s_lshl_b32 s%d, s%d, 13" % (sT1, sT0)); b("v_add_u32 v%d, s%d, v%d" % (D_TCH + 1, sT1, t2))
    def seg(lo, items):
        for t in items: b(t)
        b("v_cmp_le_u32 vcc, %d, v1" % lo); b("v_cndmask_b32 v%d, v%d, v%d, vcc" % (D_TAB, D_TAB, t1))
    b("s_add_u32 s%d, s%d, s%d" % (sT0, sR1, sW1))
    n0 = 0
    for pi, (kind, e, _) in enumerate(PH[ty]):
        stride = 3584 if e == "gu" else 3072
        if kind == "P4":
            seg(n0, ["v_add_u32 v%d, s%d, v1" % (t1, sR1), "v_add_u32 v%d, %d, v%d" % (t1, (-n0) & 7, t1), "v_and_b32 v%d, 7, v%d" % (t1, t1),
                     "v_lshlrev_b32 v%d, 1, v%d" % (t1, t1), "v_add_u32 v%d, s%d, v%d" % (t1, sW1, t1), "v_mul_u32_u24 v%d, %d, v%d" % (t1, 32 * stride, t1)]); n0 += 8
        else:
            seg(n0, ["v_lshlrev_b32 v%d, 1, v1" % t1, "v_add_u32 v%d, s%d, v%d" % (t1, sT0, t1), "v_and_b32 v%d, 7, v%d" % (t1, t1),
                     "v_mul_u32_u24 v%d, %d, v%d" % (t1, 64 * stride, t1)]); n0 += 4
    b("v_add_u32 v%d, s%d, v1" % (t0, sR2)); b("v_and_b32 v%d, 7, v%d" % (t2, t0))
    seg(20, ["v_lshlrev_b32 v%d, 13, v%d" % (t1, t2)])
    seg(28, ["v_lshrrev_b32 v%d, 1, v%d" % (t3, t2), "v_lshlrev_b32 v%d, 1, v%d" % (t1, t2), "v_sub_u32 v%d, v%d, v%d" % (t1, t1, t3),
             "v_add_u32 v%d, 16, v%d" % (t1, t1), "v_lshlrev_b32 v%d, 12, v%d" % (t1, t1)])
    seg(36, ["v_lshlrev_b32 v%d, 13, v%d" % (t1, t2), "v_add_u32 v%d, 4096, v%d" % (t1, t1)])
    seg(44, ["v_and_b32 v%d, 3, v%d" % (t1, t0), "v_mul_u32_u24 v%d, 3, v%d" % (t1, t1), "v_add_u32 v%d, 17, v%d" % (t1, t1), "v_lshlrev_b32 v%d, 12, v%d" % (t1, t1)])
    seg(48, ["v_lshlrev_b32 v%d, 12, v%d" % (t1, t2)])
    return P

def dma_wave(ty):
    P = [M(("x", 1))] + dma_setup(ty); a = lambda t, tag=None: P.append(I(t, tag))
    stamp = lambda k: stamp_to(P, k)
    stamp_to(P, 1, H_STAMP2)
    NB = CFG["nb%d" % ty]; CH = checks(ty)
    sl = slabs_of(ty); info = phase_info(ty)
    def look(n):
        if n < 56: a("v_readlane_b32 s%d, v%d, %d" % (sPH + 2 * (n & 1), D_TAB, n))
    def part(n, which, nxt):
        so = sPH + 2 * (n & 1); cap = CFG["cap1"]
        if which == "B": a("s_lshl_b32 s%d, s%d, 4" % (so, so))
        for h in range(2):
            a("s_add_u32 m0, s%d, %d" % (sLA, slot_of(n) * SLOT + h * 4096))
            if h: a("s_add_u32 s%d, s%d, %d" % (so, so, 16384 if which == "B" else 2048))
            elif (nxt ^ n) & 1: look(nxt)
            room(16, cap)
            if which == "B":
                vm("buffer_load_dwordx4 v%d, %s, s%d offen lds" % (D_B, srd(SWD), so), 8)
                vm("buffer_load_dwordx4 v%d, %s, s%d offen offset:1024 lds" % (D_B2, srd(SWD), so), 8)
            else:
                vm("buffer_load_dwordx4 v%d, %s, s%d offen offset:2048 sc1 lds" % (D_A, srd(SWS), so), 8, ("slab", n))
                vm("buffer_load_dwordx4 v%d, %s, s%d offen offset:3072 sc1 lds" % (D_A, srd(SWS), so), 8, ("slab", n))
        if not (nxt ^ n) & 1: look(nxt)
    hist = []
    def room(w, cap):
        tot = w; k = 0
        while k < len(hist) and tot + hist[-1 - k] <= cap: tot += hist[-1 - k]; k += 1
        if k < len(hist): a("s_waitcnt vmcnt(%d)" % min(k, 63))
    def vm(t, w, tag=None): a(t, tag); hist.append(w)
    def dma(n):
        so = sPH + 2 * (n & 1); cap = CFG["cap1"] if n < CFG["capsw"] else CFG["cap2"]
        for h in range(2):
            a("s_add_u32 m0, s%d, %d" % (sLA, slot_of(n) * SLOT + h * 4096))
            if n < 20:
                pi, kind, sg = sl[n]; _, stride, sa, sb = info[pi]
                w = 16 if (kind == "P2" and PH[ty][pi][1] != "q") else 8
                if h: a("s_add_u32 s%d, s%d, %d" % (so, so, (16 if kind == "P4" else 32) * stride))
                else: look(n + 1)
                for p in range(4):
                    if p % 2 == 0: room(2 * w, cap)
                    vm("buffer_load_dwordx4 v%d, %s, s%d offen offset:%d lds" % (D_P + 4 * pi + p, srd(sb if p & 1 else sa), so, p * 1024), w, ("slab", n))
            else:
                if h: a("s_add_u32 s%d, s%d, 2048" % (so, so)); a("s_add_u32 s%d, s%d, 16384" % (so + 1, so + 1))
                else:
                    a("s_lshl_b32 s%d, s%d, 4" % (so + 1, so)); look(n + 1)
                    if n == 48: a("v_add_u32 v%d, %d, v%d" % (D_A, 28 * 4096, D_A))
                wb = srd(SWD if n < 48 else SWO)
                room(16, cap)
                vm("buffer_load_dwordx4 v%d, %s, s%d offen lds" % (D_B, wb, so + 1), 8, ("slab", n))
                vm("buffer_load_dwordx4 v%d, %s, s%d offen offset:1024 lds" % (D_B2, wb, so + 1), 8, ("slab", n))
                room(16, cap)
                vm("buffer_load_dwordx4 v%d, %s, s%d offen offset:2048 sc1 lds" % (D_A, srd(SWS), so), 8, ("slab", n))
                vm("buffer_load_dwordx4 v%d, %s, s%d offen offset:3072 sc1 lds" % (D_A, srd(SWS), so), 8, ("slab", n))
    def touch(which):
        nr = 32 if CFG["map"] == 84 else 64; dst = D_TCH + 4; cap = CFG["cap1"]
        for w in which:
            if w in ("q", "g0", "g1"):
                if nr == 32: a("s_mov_b32 exec_hi, 0")
                if w == "q": room(nr, cap); vm("buffer_load_dword v%d, v%d, %s, 0 offen" % (dst, D_TCH + 3, srd(SQKV)), nr)
                else:
                    for d in (SG, SU): room(nr, cap); vm("buffer_load_dword v%d, v%d, %s, s%d offen" % (dst, D_TCH + 2, srd(d), sKS + int(w[1])), nr)
            elif w == "o":
                if CFG["map2"] == 84: a("s_mov_b32 exec_hi, 0")
                k = 64 if CFG["map2"] == 48 else 32
                room(k, cap); vm("buffer_load_dword v%d, v%d, %s, 0 offen" % (dst, D_TCH + 1, srd(SWO)), k)
            else:
                j = int(w[1])
                if j >= (4 if CFG["map2"] == 48 else 2): continue
                a("s_mov_b32 exec_hi, 0xffffff"); a("s_mov_b32 s%d, %d" % (sT0, j * 56 * (128 if CFG["map2"] == 48 else 256)))
                room(56, cap); vm("buffer_load_dword v%d, v%d, %s, s%d offen" % (dst, D_TCH, srd(SWD), sT0), 56)
            a("s_mov_b64 exec, -1")
    def mark(X, m):
        X.append(I("v_mov_b32 v%d, %d" % (D_LV, m + 1))); one_lane(X, "ds_max_u32 v%d, v%d offset:%d" % (D_LA, D_LV, F_LAND))
    def publish(m):
        if m in CH.values():
            P.append(W(vm=[("slab", m)])); mark(P, m)
            if CFG["stamps"] == 2 or m % 4 == 3: stamp(m)
    def flush(n):
        g = [I("s_waitcnt vmcnt(0)")]; mark(g, n - 1); return g
    for d in (SQKV, SG, SU):
        a("s_sub_u32 s%d, s%d, 4096" % (d, d)); a("s_subb_u32 s%d, s%d, 0" % (d + 1, d + 1)); a("s_add_u32 s%d, s%d, 4096" % (d + 2, d + 2))
    gates = {20: (C_H1A, 8), 28: (C_H1B, 8), 36: (C_H2, 16), 48: (C_O, 16)}
    def do_gate(n):
        stamp_to(P, 20 + 2 * list(gates).index(n), H_STAMP2)
        gate(P, D_CC, SWS, gates[n][0] * 256, ("poll", n), D_POLL, gates[n][1], slow=flush(n) if n <= NB + CFG["ahead2"] else None)
        stamp_to(P, 21 + 2 * list(gates).index(n), H_STAMP2)
    def poll(gn): vm("buffer_load_dword v%d, v%d, %s, 0 offen offset:%d sc1" % (D_POLL, D_CC, srd(SWS), gates[gn][0] * 256), 1, ("poll", gn))
    nbf = CFG["bfirst"]
    def issue(n):
        if n in gates and not (n == 20 and nbf): do_gate(n)
        if n + CFG["pollat"] in gates and not (n + CFG["pollat"] == 20 and nbf): poll(n + CFG["pollat"])
        dma(n)
    def do_touch(n):
        tp = CFG["tplan%d" % ty].get(str(n))
        if tp:
            touch(tp.split()[:1])
            if n > 1: P.append(W(vm=[("slab", n)])); mark(P, n)
            touch(tp.split()[1:])
    look(0)
    hist += [16] * 8
    xstages(P, {2: lambda: dma(0), 3: lambda: (dma(1), do_touch(1))})
    stamp(60)
    P.append(W(vm=[("slab", 0)]))
    a("s_barrier")
    stamp(61)
    publish(1)
    for n in range(2, min(NB + CFG["ahead2"], 56)):
        pu = prev_user(n)
        if pu >= 0:
            lb = newlbl()
            P.append(W(lg=[("dn", n)]))
            a("v_min3_u32 v%d, v%d, v%d, v%d" % (D_DV, D_DV, D_DV + 2, D_DV + 3)); a("v_min_u32 v%d, v%d, v%d" % (D_DV, D_DV, D_DV + 1))
            a("v_cmp_ge_u32 vcc, %d, v%d" % (pu, D_DV)); a("s_cbranch_vccz L_fr%d" % lb)
            raw(P, flush(min(n, 20) if n < 20 + nbf else n) + [I("s_movk_i32 s%d, %d" % (sSPIN + 1, pu + 1)), I("s_call_b64 %s, L_spin_d" % s(sRET, 2))]); P.append(L("L_fr%d:" % lb))
        if n == 24:
            count_wait(P, D_FL, D_DV, F_EXF, 2)
        if n == 12: vm("buffer_load_dword v%d, v%d, %s, 0 offen sc1" % (D_POLL, D_ZERO, srd(SDBG)), 1, "pollinit")
        if n == 15: gate(P, D_ZERO, SDBG, 0, "pollinit", D_POLL, 1)
        if n + 1 < NB + CFG["ahead2"] and prev_user(n + 1) >= 0: a("ds_read_b128 %s, v%d offset:%d" % (v(D_DV, 4), D_FL, F_DONE), ("dn", n + 1))
        if 20 <= n < 20 + nbf:
            lastb = n == 20 + nbf - 1
            if lastb: poll(20)
            part(n, "B", 20 if lastb else n + 1)
            if n < 22: publish(n - 2)
            if lastb:
                do_gate(20)
                for m in range(20, n + 1):
                    if m + CFG["pollat"] in gates: poll(m + CFG["pollat"])
                    part(m, "A", m + 1)
                    if m - 3 >= 20: publish(m - 3)
                publish(n - 2)
        else:
            issue(n)
            publish(n - 2 if n > 4 else n - 1)
        do_touch(n)
    for m in range(n - 1, NB): publish(m)
    for nb in range(NB, 56):
        n = nb + CFG["ahead2"]
        P.append(W(vm=[("slab", nb)]))
        a("s_barrier")
        if CFG["stamps"] == 2 or nb % 4 == 3: stamp(nb)
        if n < 56:
            assert prev_user(n) <= nb - 2
            issue(n)
    if CFG["stamps"]:
        count_wait(P, D_FL, D_DV, F_END, 4)
        stamp(62)
        a("s_memrealtime s[6:7]"); P.append(W(lg="all"))
        a("v_writelane_b32 v%d, s4, 62" % H_STAMP2); a("v_writelane_b32 v%d, s6, 63" % H_STAMP2)
        a("s_lshl_b32 s%d, s2, 8" % sT0); a("s_add_u32 s%d, s%d, %d" % (sT0, sT0, WS_ST))
        a("v_lshlrev_b32 v64, 2, v1")
        a("s_cmp_lg_u32 s%d, %d" % (sW1, CFG["stampw"] & 1)); a("s_cbranch_scc1 L_exit")
        a("buffer_store_dword v%d, v64, %s, s%d offen" % (H_STAMP, srd(SWS), sT0))
        a("s_add_u32 s%d, s%d, 0x10000" % (sT0, sT0))
        a("buffer_store_dword v%d, v64, %s, s%d offen" % (H_STAMP2, srd(SWS), sT0))
    a("s_endpgm")
    return P

A_ONE, A_ZERO, A_CM, A_CK, A_CQ, A_FL, A_RK, A_RV, A_ST, A_ZA, A_PL, A_ZL, A_OS, A_SGN = range(2, 16)
A_POLL, A_FV, A_TCH = 25, 27, 28
A_ID = 32
A_WP = 36
A_R = 16
A_ACC = 56
A_RAW = 72
A_T = 72
A_KF = 112
A_SD = 128; A_PHI = 144
A_PQ = 128
A_LD = 192
def softmax_unit(wp, kf, u, dst, Pm, R, scale_r):
    B = []; b = lambda t, tag=None: B.append(I(t, tag))
    C = A_R + 4 + u
    b("v_mfma_f32_32x32x16_bf16 %s, %s, %s, 0" % (v(Pm, 16), v(wp, 4), v(kf, 4)))
    for g in range(2): b("v_max3_f32 v%d, v%d, v%d, v%d" % (R + g, Pm + 8 * g, Pm + 8 * g + 1, Pm + 8 * g + 2))
    for g in range(2): b("v_max3_f32 v%d, v%d, v%d, v%d" % (R + 2 + g, Pm + 8 * g + 3, Pm + 8 * g + 4, Pm + 8 * g + 5))
    for g in range(2): b("v_max3_f32 v%d, v%d, v%d, v%d" % (R + g, R + g, Pm + 8 * g + 6, Pm + 8 * g + 7))
    for g in range(2): b("v_max_f32 v%d, v%d, v%d" % (R + g, R + g, R + 2 + g))
    def allred(op, mid):
        b("v_permlane32_swap_b32 v%d, v%d" % (R, R + 1))
        b("%s v%d, v%d, v%d" % (op, R, R, R + 1))
        for t in mid: b(t)
        b("v_mov_b32 v%d, v%d" % (R + 1, R))
        b("v_permlane32_swap_b32 v%d, v%d" % (R, R + 1))
    allred("v_max_f32", ["v_mul_f32 v%d, v%d, v%d" % (R, C, R)])
    for j in range(16): b("v_fma_f32 v%d, v%d, v%d, -v%d" % (Pm + j, Pm + j, C, R + j // 8))
    for j in range(16): b("v_exp_f32 v%d, v%d" % (Pm + j, Pm + j))
    for g in range(2):
        b("v_add_f32 v%d, v%d, v%d" % (R + g, Pm + 8 * g, Pm + 8 * g + 1)); b("v_add_f32 v%d, v%d, v%d" % (R + 2 + g, Pm + 8 * g + 2, Pm + 8 * g + 3))
    for k in (4, 6):
        for g in range(2):
            b("v_add_f32 v%d, v%d, v%d" % (R + g, R + g, Pm + 8 * g + k)); b("v_add_f32 v%d, v%d, v%d" % (R + 2 + g, R + 2 + g, Pm + 8 * g + k + 1))
    for g in range(2): b("v_add_f32 v%d, v%d, v%d" % (R + g, R + g, R + 2 + g))
    allred("v_add_f32", ["v_rcp_f32 v%d, v%d" % (R, R)] + (["v_mul_f32 v%d, v%d, v%d" % (R, R, A_R + u)] if scale_r else []))
    for j in range(16): b("v_mul_f32 v%d, v%d, v%d" % (Pm + j, Pm + j, R + j // 8))
    for j in range(8): b("v_cvt_pk_bf16_f32 v%d, v%d, v%d" % (dst + j, Pm + 2 * j, Pm + 2 * j + 1))
    return B
def zipper(x, y):
    out = []
    for i in range(max(len(x), len(y))):
        if i < len(x): out.append(x[i])
        if i < len(y): out.append(y[i])
    return out
def mprio(B):
    out = []; hi = False
    for it in B:
        m_ = isinstance(it, I) and it.t.startswith("v_mfma")
        if m_ and not hi: out.append(I("s_setprio 3")); hi = True
        if hi and not m_: out.append(I("s_setprio 0")); hi = False
        out.append(it)
    return out

def attn_setup(ty):
    P = []; b = lambda t, tag=None: P.append(I(t, tag))
    t0, t1, t2, t3, u0 = range(100, 105)
    hk, hq = sT2, sT3
    nr = 32 if CFG["map"] == 84 else 64
    b("s_lshl_b32 s%d, s%d, 6" % (sT0, sXR)); b("s_mul_i32 s%d, s%d, %d" % (sT1, sW1, nr)); b("s_add_u32 s%d, s%d, s%d" % (sT0, sT0, sT1))
    b("v_add_u32 v%d, s%d, v1" % (A_TCH + 2, sT0)); b("v_mul_u32_u24 v%d, 3072, v%d" % (A_TCH + 3, A_TCH + 2)); b("v_mul_u32_u24 v%d, 3584, v%d" % (A_TCH + 2, A_TCH + 2))
    if nr == 32: b("s_mov_b32 exec_hi, 0")
    b("buffer_load_dword v%d, v%d, %s, s%d offen offset:%d" % (A_POLL + 1, A_TCH + 3, srd(SQKV), sKC, 1024 * ty)); b("s_mov_b64 exec, -1")
    b("s_lshl_b32 s%d, s%d, 2" % (hq, sGR)); b("s_add_u32 s%d, s%d, s%d" % (hq, hq, sW1))
    b("s_add_u32 s%d, s%d, %d" % (hk, hq, 2 * ty))
    b("v_lshrrev_b32 v%d, 5, v1" % t3); b("v_and_b32 v%d, 15, v1" % t1); b("v_lshrrev_b32 v%d, 4, v1" % t0)
    b("v_lshlrev_b32 v%d, 7, v%d" % (t2, t3)); b("v_lshl_add_u32 v%d, v%d, 1, v%d" % (t2, t1, t2))
    b("s_lshl_b32 s%d, s%d, 9" % (sT0, hq))
    for hh in range(1 + ty):
        for j in range(8):
            b("buffer_load_ushort v%d, v%d, %s, s%d offen offset:%d" % (A_RAW + 8 * hh + j, t2, srd(SPHI), sT0, 1024 * hh + 32 * ((j & 3) + 8 * (j >> 2))), "wphi")
    b("v_mov_b32 v%d, 0" % A_ZERO); b("v_mov_b32 v34, 0")
    b("v_mov_b32 v%d, 1" % A_ONE); b("v_mov_b32 v%d, %d" % (A_FL, FL))
    if ty == 0:
        b("v_lshlrev_b32 v%d, 8, v1" % u0)
        b("s_add_u32 s%d, s2, s%d" % (sT0, sW1)); b("s_cmp_lg_u32 s%d, 0" % sT0); b("s_cbranch_scc1 L_noinit")
        raw(P, [I("buffer_store_dword v%d, v%d, %s, 0 offen sc1" % (A_ZERO, u0, srd(SWS))), I("s_movk_i32 s%d, 0x4000" % sT0),
                I("buffer_store_dword v%d, v%d, %s, s%d offen sc1" % (A_ZERO, u0, srd(SWS), sT0))])
        P.append(L("L_noinit:"))
    b("v_and_b32 v%d, 1, v%d" % (t2, t0)); b("v_mul_u32_u24 v%d, 0x8000, v%d" % (t2, t2)); b("v_lshl_or_b32 v%d, v%d, 16, v%d" % (A_SGN, t2, t2))
    b("s_lshl_b32 s%d, s%d, 10" % (sT0, sI)); b("v_mov_b32 v%d, s%d" % (A_CM, sT0))
    b("s_lshl_b32 s%d, s%d, 8" % (sT0, hk)); b("s_add_u32 s%d, s%d, 0x4000" % (sT0, sT0)); b("v_mov_b32 v%d, s%d" % (A_CK, sT0))
    b("s_lshl_b32 s%d, s%d, 8" % (sT0, hq)); b("s_add_u32 s%d, s%d, 0x4000" % (sT0, sT0)); b("v_mov_b32 v%d, s%d" % (A_CQ, sT0))
    b("s_lshl_b32 s%d, s%d, 11" % (sT0, sW1)); b("s_add_u32 s%d, s%d, %d" % (sT0, sT0, EX))
    b("v_lshlrev_b32 v%d, 4, v1" % u0); b("v_add_u32 v%d, s%d, v%d" % (A_RK, sT0, u0))
    b("v_and_b32 v%d, 1, v1" % t2); b("v_lshlrev_b32 v%d, 9, v%d" % (A_RV, t2)); b("v_lshl_add_u32 v%d, v%d, 7, v%d" % (A_RV, t0, A_RV))
    b("v_bfe_u32 v%d, v1, 2, 2" % t2); b("v_lshl_add_u32 v%d, v%d, 4, v%d" % (A_RV, t2, A_RV))
    b("v_bfe_u32 v%d, v1, 1, 1" % t2); b("v_lshl_add_u32 v%d, v%d, 3, v%d" % (A_RV, t2, A_RV)); b("v_add_u32 v%d, s%d, v%d" % (A_RV, sT0, A_RV))
    b("s_lshl_b32 s%d, s%d, 4" % (sT0, hk)); b("s_add_u32 s%d, s%d, s%d" % (sT0, sT0, sI))
    b("s_lshl_b32 s%d, s%d, 10" % (sT1, sT0)); b("s_add_u32 s%d, s%d, %d" % (sT1, sT1, WS_KV)); b("v_add_u32 v%d, s%d, v%d" % (A_ST, sT1, u0))
    b("s_lshl_b32 s%d, s%d, 7" % (sT1, sT0)); b("s_add_u32 s%d, s%d, %d" % (sT1, sT1, WS_Z))
    b("v_lshlrev_b32 v%d, 6, v%d" % (A_ZA, t1)); b("v_lshl_add_u32 v%d, v%d, 4, v%d" % (A_ZA, t0, A_ZA)); b("v_add_u32 v%d, s%d, v%d" % (A_ZA, sT1, A_ZA))
    if ty == 1:
        b("s_lshl_b32 s%d, s%d, 14" % (sT1, hq)); b("s_add_u32 s%d, s%d, %d" % (sT1, sT1, WS_KV)); b("v_add_u32 v%d, s%d, v%d" % (A_PL, sT1, u0))
        b("s_lshl_b32 s%d, s%d, 11" % (sT1, hq)); b("s_add_u32 s%d, s%d, %d" % (sT1, sT1, WS_Z))
        b("v_lshlrev_b32 v%d, 7, v%d" % (A_ZL, t1)); b("v_lshl_add_u32 v%d, v%d, 4, v%d" % (A_ZL, t0, A_ZL)); b("v_add_u32 v%d, s%d, v%d" % (A_ZL, sT1, A_ZL))
        b("s_mul_i32 s%d, s%d, 576" % (sT1, sI)); b("s_add_u32 s%d, s%d, s%d" % (sT1, sT1, hq)); b("s_add_u32 s%d, s%d, 112" % (sT1, sT1))
        b("s_lshl_b32 s%d, s%d, 10" % (sT1, sT1)); b("s_add_u32 s%d, s%d, %d" % (sT1, sT1, WS_HO)); b("v_add_u32 v%d, s%d, v%d" % (A_OS, sT1, u0))
        ident(b, A_ID, t1)
    return P

def attn_wave(ty):
    P = [M(("x", 1))] + attn_setup(ty); a = lambda t, tag=None: P.append(I(t, tag))
    stamp = lambda k: stamp_to(P, k, 34)
    def signal(vaddr, off): one_lane(P, "buffer_atomic_add v%d, v%d, %s, 0 offen offset:%d sc1" % (A_ONE, vaddr, srd(SWS), off))
    def after3():
        a("v_lshl_add_u32 v%d, v1, 2, v%d" % (A_FV, A_FL)); a("ds_write_b32 v%d, v%d" % (A_FV, A_ZERO))
        if ty == 0:
            only(P, ["s_add_u32 s%d, s2, s%d" % (sT0, sW1), "s_cmp_lg_u32 s%d, 0" % sT0],
                 [I("buffer_store_dword v%d, v%d, %s, 0 offen sc1" % (A_ONE, A_ZERO, srd(SDBG)))])
        P.append(W(lg="all"))
    xstages(P, {3: after3})
    a("s_barrier")
    P.append(W(vm=["wphi"]))
    for hh in range(1 + ty):
        for j in range(4): a("v_lshl_or_b32 v%d, v%d, 16, v%d" % (A_WP + 4 * hh + j, A_RAW + 8 * hh + 2 * j + 1, A_RAW + 8 * hh + 2 * j))
        for j in range(4): a("v_xor_b32 v%d, v%d, v%d" % (A_WP + 4 * hh + j, A_WP + 4 * hh + j, A_SGN))
    WK = A_WP + 4 * ty
    count_wait(P, A_FL, A_FV, F_EX, 4)
    stamp(11)
    T = A_T
    a("v_and_b32 v%d, 31, v1" % T); a("v_lshlrev_b32 v%d, 2, v%d" % (T, T)); a("v_add_u32 v%d, %d, v%d" % (T, LRS, T))
    for u in range(4): a("ds_read_b32 v%d, v%d offset:%d" % (A_R + u, T, u * 128))
    a("v_lshrrev_b32 v%d, 4, v1" % (T + 1)); a("v_lshlrev_b32 v%d, 4, v%d" % (T + 1, T + 1)); a("v_add_u32 v%d, %d, v%d" % (T + 1, LSD, T + 1))
    for u in range(4): a("ds_read_b128 %s, v%d offset:%d" % (v(A_SD + 4 * u, 4), T + 1, u * 64))
    if ty == 0:
        a("v_lshlrev_b32 v%d, 3, v1" % (T + 2)); a("v_add_u32 v%d, %d, v%d" % (T + 3, LRS, T + 2)); a("ds_read_b64 %s, v%d" % (v(T + 4, 2), T + 3))
    P.append(W(lg="all"))
    for u in range(4): a("v_mul_f32 v%d, s%d, v%d" % (A_R + 4 + u, sL2E, A_R + u))
    if ty == 0:
        only(P, ["s_add_u32 s%d, s%d, s%d" % (sT0, sGR, sW1), "s_cmp_lg_u32 s%d, 0" % sT0],
             [I("s_lshl_b32 s%d, s%d, 9" % (sT0, sI)), I("s_add_u32 s%d, s%d, %d" % (sT0, sT0, WS_RS)),
              I("buffer_store_dwordx2 %s, v%d, %s, s%d offen sc1" % (v(T + 4, 2), T + 2, srd(SWS), sT0))])
    a("buffer_load_dword v%d, v%d, %s, 0 offen sc1" % (A_POLL, A_ZERO, srd(SDBG)), "pollinit")
    B = []; b = lambda t, tag=None: B.append(I(t, tag))
    for u in range(4): b("ds_read_b128 %s, v%d offset:%d" % (v(A_KF + 4 * u, 4), A_RK, u * 8192), "kf")
    B.append(W(lg=["kf"]))
    PM = (T, T + 16); RR = (T + 32, T + 36)
    def tail(u):
        X = []; x = lambda t, tag=None: X.append(I(t, tag))
        PHI = A_PHI + 8 * (u & 1); FR = A_PHI + 16 + 12 * (u & 1); so = (u & 1) * 16384
        for sg in range(2): x("ds_write_b128 v%d, %s offset:%d" % (A_RK, v(PHI + 4 * sg, 4), so + sg * 8192))
        for q in range(2): x("ds_read_b64_tr_b16 %s, v%d offset:%d" % (v(FR + 2 * q, 2), A_RV, u * 8192 + 1024 + q * 64), ("pr", u))
        for sg in range(2):
            for q in range(2): x("ds_read_b64_tr_b16 %s, v%d offset:%d" % (v(FR + 4 + 4 * sg + 2 * q, 2), A_RV, so + sg * 8192 + q * 64), ("pr", u))
        return X
    def kvm(us):
        X = [W(lg=[("pr", us[-1])])]
        for u in us:
            FR = A_PHI + 16 + 12 * (u & 1)
            for sg in range(2):
                c = v(A_ACC + 4 * sg, 4); z = v(A_ACC + 8 + 4 * sg, 4)
                X.append(I("v_mfma_f32_16x16x32_bf16 %s, %s, %s, %s" % (c, v(FR + 4 + 4 * sg, 4), v(FR, 4), "0" if u == 0 else c)))
                X.append(I("v_mfma_f32_16x16x32_bf16 %s, %s, %s, %s" % (z, v(FR + 4 + 4 * sg, 4), v(A_SD + 4 * u, 4), "0" if u == 0 else z)))
        return X
    for pr in range(2):
        z = zipper(softmax_unit(WK, A_KF + 8 * pr, 2 * pr, A_PHI, PM[0], RR[0], True), softmax_unit(WK, A_KF + 8 * pr + 4, 2 * pr + 1, A_PHI + 8, PM[1], RR[1], True))
        if pr == 1: z = z[:2] + kvm((0, 1)) + z[2:]
        B += z + tail(2 * pr) + tail(2 * pr + 1)
    b("v_and_b32 v%d, 15, v1" % T); b("v_cmp_eq_u32 vcc, 1, v%d" % T)
    if ty == 0: one_lane(B, "ds_add_u32 v%d, v%d offset:%d" % (A_FL, A_ONE, F_EXF))
    B += kvm((2, 3))
    for j in range(4): b("v_cvt_pk_bf16_f32 v%d, v%d, v%d" % (A_ACC + j, A_ACC + 2 * j, A_ACC + 2 * j + 1))
    for j in range(4): b("v_cndmask_b32 v%d, v%d, v%d, vcc" % (A_ACC + 8 + j, A_ACC + 8 + j, A_ACC + 12 + j))
    b("buffer_store_dwordx4 %s, v%d, %s, 0 offen sc1" % (v(A_ACC, 4), A_ST, srd(SWS)), "part")
    b("s_mov_b32 exec_lo, 0x00030003"); b("s_mov_b32 exec_hi, 0x00030003")
    b("buffer_store_dwordx4 %s, v%d, %s, 0 offen sc1" % (v(A_ACC + 8, 4), A_ZA, srd(SWS)), "part"); b("s_mov_b64 exec, -1")
    P += mprio(B)
    stamp(12)
    def publish_k():
        gate(P, A_ZERO, SDBG, 0, "pollinit", A_POLL, 1)
        P.append(W(vm=["part"])); signal(A_CK, 0)
        lb = newlbl()
        only(P, ["s_cmp_lg_u32 s%d, 0" % sW1],
             [I("s_mov_b64 exec, 1"), I("ds_add_rtn_u32 v%d, v%d, v%d offset:%d" % (A_FV, A_FL, A_ONE, F_H)), W(lg="all"),
              I("v_readfirstlane_b32 s%d, v%d" % (sT5, A_FV)), I("s_cmp_lg_u32 s%d, 4" % sT5), I("s_cbranch_scc1 L_hh%d" % lb),
              I("buffer_atomic_add v%d, v%d, %s, 0 offen offset:%d sc1" % (A_ONE, A_CM, srd(SWS), (C_H1B if ty else C_H1A) * 256)),
              L("L_hh%d:" % lb), I("s_mov_b64 exec, -1")])
        stamp(13)
    if ty == 0: publish_k()
    else:
        count_wait(P, A_FL, A_FV, F_EX + 4, 4)
        QF = A_LD
        for hh in range(2):
            for u in range(4): a("ds_read_b128 %s, v%d offset:%d" % (v(QF + 16 * hh + 4 * u, 4), A_RK, u * 8192 + 4096 + hh * 1024), "qf")
        one_lane(P, "ds_add_u32 v%d, v%d offset:%d" % (A_FL, A_ONE, F_EXF))
        P.append(W(lg=["qf"]))
        def qpair(hh, pr):
            return mprio(zipper(softmax_unit(A_WP + 4 * hh, QF + 16 * hh + 8 * pr, 2 * pr, A_PQ + 32 * hh + 16 * pr, PM[0], RR[0], False),
                                softmax_unit(A_WP + 4 * hh, QF + 16 * hh + 8 * pr + 4, 2 * pr + 1, A_PQ + 32 * hh + 16 * pr + 8, PM[1], RR[1], False)))
        z = qpair(0, 0); P += z[:100]; publish_k(); P += z[100:]
        P += qpair(0, 1)
        z = qpair(1, 0); P += z[:100]
        for hh in range(2): a("buffer_load_dword v%d, v%d, %s, 0 offen offset:%d sc1" % (A_POLL + hh, A_CQ, srd(SWS), 512 * hh), ("pollkv", hh))
        P += z[100:]
        Z = (A_ACC, A_ACC + 8); KVA = (A_WP, A_R)
        free0 = list(range(A_LD, A_LD + 24, 4)) + list(range(A_LD + 32, A_LD + 64, 4)) + [A_KF, A_KF + 4]
        free1 = list(range(A_LD, A_LD + 64, 4))
        def loads(hh, dst):
            gate(P, A_CQ, SWS, 512 * hh, ("pollkv", hh), A_POLL + hh, 16)
            a("s_movk_i32 s%d, %d" % (sT4, 4096 * hh))
            a("buffer_load_dwordx4 %s, v%d, %s, s%d offen sc1" % (v(Z[hh], 4), A_ZL, srd(SWS), sT4), ("zl", hh))
            a("buffer_load_dwordx4 %s, v%d, %s, s%d offen offset:64 sc1" % (v(Z[hh] + 4, 4), A_ZL, srd(SWS), sT4), ("zl", hh))
            for m in range(16):
                if m % 4 == 0:
                    a("s_add_u32 s%d, s%d, %d" % (sT5, sI, m // 4)); a("s_and_b32 s%d, s%d, 3" % (sT5, sT5)); a("s_lshl_b32 s%d, s%d, 12" % (sT5, sT5))
                    if hh: a("s_add_u32 s%d, s%d, 32768" % (sT5, sT5))
                if CFG["awin"] >= 0: a("s_waitcnt vmcnt(%d)" % CFG["awin"])
                a("buffer_load_dwordx4 %s, v%d, %s, s%d offen offset:%d sc1" % (v(dst[m], 4), A_PL, srd(SWS), sT5, (m & 3) * 1024), ("pl", hh, m))
        S = A_KF + 8
        def reduce_(hh, src):
            B = []; b = lambda t, tag=None: B.append(I(t, tag))
            for m in range(16):
                if m % 4 == 0: B.append(W(vm=[("pl", hh, m + 3)]))
                for sg in range(2):
                    c = v(S + 4 * sg, 4)
                    b("v_mfma_f32_4x4x4_16b_bf16 %s, %s, %s, %s" % (c, v(A_ID, 2), v(src[m] + 2 * sg, 2), "0" if m == 0 else c))
            P.extend(mprio(B + [I("s_nop 0")]))
        def finish(hh):
            B = []; b = lambda t, tag=None: B.append(I(t, tag))
            for k in (8, 4, 2, 1):
                for j in range(8): b("v_add_f32_dpp v%d, v%d, v%d row_ror:%d row_mask:0xf bank_mask:0xf" % (Z[hh] + j, Z[hh] + j, Z[hh] + j, k))
            KV = KVA[hh]; PQ = A_PQ + 32 * hh
            for sg in range(2):
                for j in range(2): b("v_cvt_pk_bf16_f32 v%d, v%d, v%d" % (KV + 4 * sg + 2 + j, Z[hh] + 4 * sg + 2 * j, Z[hh] + 4 * sg + 2 * j + 1))
            for sg in range(2):
                for j in range(2): b("v_cvt_pk_bf16_f32 v%d, v%d, v%d" % (KV + 4 * sg + j, S + 4 * sg + 2 * j, S + 4 * sg + 2 * j + 1))
            for w in ("16", "32"):
                for sg in range(2):
                    for j in range(2): b("v_permlane%s_swap_b32 v%d, v%d" % (w, KV + 4 * sg + j, KV + 4 * sg + 2 + j))
            for pr in range(2):
                for u in (2 * pr, 2 * pr + 1):
                    N = v(T + 16 * (u & 1), 16)
                    b("v_mfma_f32_32x32x16_bf16 %s, %s, %s, 0" % (N, v(KV, 4), v(PQ + 8 * u, 4)))
                    b("v_mfma_f32_32x32x16_bf16 %s, %s, %s, %s" % (N, v(KV + 4, 4), v(PQ + 8 * u + 4, 4), N))
                for u in range(2): b("v_add_f32 v%d, 0x358637bd, v%d" % (T + 16 * u + 8, T + 16 * u + 8))
                for u in range(2): b("v_rcp_f32 v%d, v%d" % (T + 16 * u + 8, T + 16 * u + 8))
                for u in (2 * pr, 2 * pr + 1):
                    N = T + 16 * (u & 1); O = PQ + 8 * u
                    for j in range(8): b("v_mul_f32 v%d, v%d, v%d" % (N + j, N + j, N + 8))
                    for j in range(4): b("v_cvt_pk_bf16_f32 v%d, v%d, v%d" % (O + j, N + 2 * j, N + 2 * j + 1))
                    b("s_mov_b32 s%d, %d" % (sT5, u * 147456))
                    b("buffer_store_dwordx4 %s, v%d, %s, s%d offen offset:%d sc1" % (v(O, 4), A_OS, srd(SWS), sT5, 2048 * hh), "ost")
            P.extend(mprio(B))
        stamp(14)
        loads(0, free0)
        stamp(15)
        P += qpair(1, 1)
        reduce_(0, free0); loads(1, free1); finish(0); reduce_(1, free1); finish(1)
        stamp(16)
        P.append(W(vm=["ost"])); signal(A_CM, C_O * 256)
        stamp(17)
    if CFG["stamps"]:
        a("s_lshl_b32 s%d, s2, 8" % sT0); a("s_add_u32 s%d, s%d, %d" % (sT0, sT0, WS_ST + 0x30000))
        a("v_lshlrev_b32 v64, 2, v1")
        a("s_cmp_lg_u32 s%d, %d" % (sW1, CFG["stampw"] & 1)); a("s_cbranch_scc1 L_exit")
        a("buffer_store_dword v34, v64, %s, s%d offen" % (srd(SWS), sT0))
    a("s_endpgm")
    return P

def main():
    hdr = open("cdna_kernels/%s.s.ref" % NAME).read().split("; Override launch geometry")[0]
    out = [hdr.rstrip(), "; @launch grid=(256,1,1) block=(512,1,1) lds=163840",
           '.amdgcn_target "amdgcn-amd-amdhsa--gfx950"', ".text", ".globl %s_kernel" % NAME, ".p2align 8",
           ".type %s_kernel,@function" % NAME, "%s_kernel:" % NAME]
    t, st = finalize(prologue()); out += t
    for nm, fn in (("attn", attn_wave), ("dma", dma_wave), ("comp", compute)):
        out.append("L_%s:" % nm)
        out += finalize([I("s_cmp_eq_u32 s%d, 1" % sTY), I("s_cbranch_scc1 L_%s1" % nm)] + fn(0), st.clone())[0]
        out.append("L_%s1:" % nm); out += finalize(fn(1), st.clone())[0]
    out += STUBS
    out += lds_spin("c", C_FL, F_LAND, 2, C_FV, CFG["cnap"]) + lds_spin("d", D_FL, F_DONE, 4, D_DV, 1)
    out += ["L_exit:", "    s_endpgm", '.section .rodata,"a"', ".p2align 6", ".amdhsa_kernel %s_kernel" % NAME,
            "  .amdhsa_next_free_vgpr 256", "  .amdhsa_next_free_sgpr 100", "  .amdhsa_accum_offset 256",
            "  .amdhsa_group_segment_fixed_size 0", "  .amdhsa_kernarg_size 88", "  .amdhsa_user_sgpr_count 2",
            "  .amdhsa_user_sgpr_kernarg_segment_ptr 1", "  .amdhsa_system_sgpr_workgroup_id_x 1", ".end_amdhsa_kernel"]
    open(sys.argv[1], "w").write("\n".join(out) + "\n")
main()
```

```python
import sys, os, json
sys.path.insert(0, os.path.dirname(os.path.abspath(__file__)))
from asmir import I, W, L, M, v, s, finalize, State

NAME = "recurrent_scan__linear_kernel_hedgehog__glu_gated_bilinear__prompt"
CFG = dict(stamps=0, probe=0, outfl="", stampw=0, zoom=0, LA=6, LAF=5, erate=3, codepf=1, sleep=2, cnap=1, map=84, map2=84, h2now=1, chk2=1,
           cap1=128, cap2=128, capsw=36, awin=-1, pollat=2, hwait1=24, hwait2=0, nb0=28, nb1=32, ahead2=4,
           bfirst=6, p2chk=1,
           tplan0={"1": "g0", "7": "g1 o", "10": "d0 d1", "14": "d2 d3"},
           tplan1={"1": "q g0", "9": "d0 d1", "12": "g1 o", "15": "d2 d3"})
for a_ in sys.argv[2:]:
    k_, x_ = a_.split("="); assert k_ in CFG, k_; CFG[k_] = json.loads(x_)

WS_RS = 0x8000
WS_KV = 0x10000
WS_Z = 0x120000
WS_ST = 0x140000
WS_HO = 0x200000
WS_BYTES = WS_HO + 64 * 144 * 1024
C_H1A, C_H1B, C_H2, C_O = 0, 1, 2, 3
SLOT = 16384; STG = 32768; EX = 131072; FL = 7 * SLOT; LRS = FL + 1024; LSD = LRS + 512
F_LAND, F_DONE, F_EX, F_RS, F_H, F_EXF, F_END = 0, 16, 32, 40, 44, 52, 56
SX, SQKV, SPHI, SWO, SG, SU, SWD, SOUT, SDBG, SWS = 8, 12, 16, 20, 24, 28, 32, 36, 40, 44
sW, sW1, sI, sGR, sTY, sR1, sXR, sTT, sCT, sR2 = range(56, 66)
sT0, sT1, sT2, sT3, sT4, sT5 = range(66, 72)
sL2E = 72; sKC = 73; sSH = 74; sXL = 75; sKS = 76; sLA = 78; sXB = 79
sSPIN = 80; sRET = 82; sPH = 84; sTM = 90; sMK = 94
srd = lambda b: s(b, 4)
LOG2E = 0x3fb8aa3b
XR = 128; ACC = 64; WF = 32
L_T, L_SEL, L_ID, L_SM, L_CM, L_SQ = 192, 224, 228, 232, 236, 240
L_XO, L_RR, L_C, L_SB, L_C7, L_WA, L_VA, L_VB = 124, 245, 246, 247, 248, 249, 251, 252
L_TR = 244
K_SQ, K_DL, K_RA = 16, 20, 24
H_STAMP = 255; H_STAMP2 = 254
_lbl = [0]
def newlbl():
    _lbl[0] += 1; return _lbl[0]
STUBS = []

PH = {0: [("P2", "kv", (0, 1)), ("P4", "gu", (2, 3, 0, 1)), ("P4", "gu", (0, 1, 2, 3))],
      1: [("P2", "kv", (0, 1)), ("P2", "q", (2, 3)), ("P4", "gu", (0, 1, 2, 3)), ("P2", "gu", (0, 1))]}
def slabs_of(ty):
    return [(pi, k, sg) for pi, (k, e, _) in enumerate(PH[ty]) for sg in range(8 if k == "P4" else 4)]
def slot_of(n):
    return n % 7 if n < 20 else (6, 0, 1, 2, 8, 9, 3, 4, 5)[(n - 20) % 9]
def prev_user(n):
    p = [m for m in range(n) if slot_of(m) == slot_of(n)]
    return p[-1] if p else -1
def checks(ty):
    c = {1: 1}
    for n in range(2, CFG["nb%d" % ty], 2):
        if (CFG["chk2"] if n < 20 else CFG["p2chk"] == 2): c[n] = n + 1
        else: c[n] = n; c[n + 1] = n + 1
    return c

def stamp_to(P, k, reg=H_STAMP):
    if CFG["stamps"]:
        P.append(I("s_memtime %s" % s(sTM + 2, 2))); P.append(W(lg="all"))
        P.append(I("s_sub_u32 s%d, s%d, s%d" % (sTM + 2, sTM + 2, sTM))); P.append(I("v_writelane_b32 v%d, s%d, %d" % (reg, sTM + 2, k)))
def raw(P, items):
    for x in finalize(items)[0]: P.append(L(x))
def only(P, cond, items):
    n = newlbl()
    for t in cond: P.append(I(t))
    P.append(I("s_cbranch_scc1 L_sk%d" % n)); raw(P, items); P.append(L("L_sk%d:" % n))
def one_lane(X, t, tag=None):
    X.append(I("s_mov_b64 exec, 1")); X.append(I(t, tag)); X.append(I("s_mov_b64 exec, -1"))

def p4_voffs(a, va, vb, stride, t):
    a("v_lshrrev_b32 v%d, 3, v1" % t)
    a("v_and_b32 v%d, 2, v%d" % (t + 1, t)); a("v_lshlrev_b32 v%d, 1, v%d" % (t + 1, t + 1))
    a("v_and_b32 v%d, 7, v1" % (t + 2)); a("v_xor_b32 v%d, v%d, v%d" % (t + 2, t + 2, t + 1))
    a("v_mul_u32_u24 v%d, %d, v%d" % (t, stride, t))
    a("v_lshl_add_u32 v%d, v%d, 4, v%d" % (va, t + 2, t))
    a("v_xor_b32 v%d, 32, v%d" % (vb, va))
def p2_voffs(a, va, vb, stride, t):
    a("v_lshrrev_b32 v%d, 2, v1" % t)
    a("v_and_b32 v%d, 3, v1" % (t + 2))
    a("v_mul_u32_u24 v%d, %d, v%d" % (t, stride, t))
    a("v_lshl_add_u32 v%d, v%d, 4, v%d" % (va, t + 2, t))
    a("v_xor_b32 v%d, 32, v%d" % (vb, va))
def ident(a, dst, t):
    a("v_and_b32 v%d, 3, v1" % t)
    a("v_and_b32 v%d, 1, v1" % (t + 1)); a("v_lshlrev_b32 v%d, 4, v%d" % (t + 1, t + 1)); a("v_mov_b32 v%d, 0x3f80" % (t + 2))
    a("v_lshlrev_b32 v%d, v%d, v%d" % (t + 1, t + 1, t + 2))
    a("v_cmp_gt_u32 vcc, 2, v%d" % t)
    a("v_cndmask_b32 v%d, 0, v%d, vcc" % (dst, t + 1)); a("v_sub_u32 v%d, v%d, v%d" % (dst + 1, t + 1, dst))

X_V = 48
def prologue():
    P = []; a = lambda t, tag=None: P.append(I(t, tag))
    a("s_cmp_ge_u32 s2, 256")
    a("s_cbranch_scc1 L_exit")
    a("s_load_dwordx2 %s, s[0:1], 0" % s(SX, 2)); a("s_load_dwordx2 %s, s[0:1], 8" % s(SQKV, 2))
    if CFG["probe"]: a("s_memrealtime s[4:5]")
    if CFG["stamps"]:
        a("s_memtime %s" % s(sTM, 2)); a("s_memrealtime s[4:5]")
    a("s_lshr_b32 s%d, s2, 3" % sSH)
    if CFG["codepf"]:
        a("s_getpc_b64 s[6:7]"); P.append(L("L_pc:"))
        a("s_mul_i32 s%d, s%d, 24" % (sT0, sSH))
        a("v_add_u32 v3, s%d, v0" % sT0); a("v_lshlrev_b32 v3, 7, v3"); a("v_min_u32 v3, L_exit-L_pc, v3")
        a("v_cmp_gt_u32 vcc, 24, v0"); a("s_and_saveexec_b64 s[48:49], vcc"); a("s_cbranch_execz L_nopf")
        P.append(L("    global_load_dword v%d, v3, s[6:7]" % (X_V + 5)))
        P.append(L("L_nopf:")); a("s_mov_b64 exec, -1")
    a("v_lshrrev_b32 v2, 6, v0")
    a("v_and_b32 v1, 63, v0")
    a("v_readfirstlane_b32 s%d, v2" % sW)
    a("s_and_b32 s%d, s2, 7" % sT5)
    a("s_lshr_b32 s%d, s%d, 4" % (sTY, sSH))
    if CFG["map"] == 48:
        a("s_and_b32 s%d, s%d, 3" % (sT3, sSH)); a("s_lshl_b32 s%d, s%d, 1" % (sXR, sT3))
        a("s_lshr_b32 s%d, s%d, 1" % (sT2, sT5)); a("s_lshl_b32 s%d, s%d, 2" % (sT2, sT2)); a("s_add_u32 s%d, s%d, s%d" % (sI, sT2, sT3))
        a("s_lshr_b32 s%d, s%d, 2" % (sR1, sSH))
        a("s_and_b32 s%d, s%d, 1" % (sT2, sT5)); a("s_lshl_b32 s%d, s%d, 2" % (sT2, sT2)); a("s_and_b32 s%d, s%d, 3" % (sT3, sR1)); a("s_add_u32 s%d, s%d, s%d" % (sGR, sT2, sT3))
    else:
        a("s_and_b32 s%d, s%d, 7" % (sXR, sSH))
        a("s_lshr_b32 s%d, s%d, 2" % (sT2, sT5)); a("s_lshl_b32 s%d, s%d, 3" % (sT2, sT2)); a("s_add_u32 s%d, s%d, s%d" % (sI, sT2, sXR))
        a("s_lshr_b32 s%d, s%d, 3" % (sT3, sSH)); a("s_lshl_b32 s%d, s%d, 1" % (sR1, sT3))
        a("s_and_b32 s%d, s%d, 3" % (sT2, sT5)); a("s_lshl_b32 s%d, s%d, 1" % (sT2, sT2)); a("s_and_b32 s%d, s%d, 1" % (sT3, sT3)); a("s_add_u32 s%d, s%d, s%d" % (sGR, sT2, sT3))
    a("s_mov_b32 s%d, 2097152" % (SX + 2)); a("s_mov_b32 s%d, 0x20000" % (SX + 3))
    X = []; x = lambda t, tag=None: X.append(I(t, tag))
    x("v_lshrrev_b32 v4, 3, v1"); x("v_lshrrev_b32 v5, 4, v1"); x("v_and_b32 v6, 7, v1"); x("v_xor_b32 v5, v5, v6")
    x("v_lshlrev_b32 v4, 10, v4"); x("v_lshl_add_u32 v%d, v5, 4, v4" % X_V)
    x("v_xor_b32 v4, 64, v%d" % X_V)
    x("v_add_u32 v%d, 7168, v4" % (X_V + 1)); x("v_add_u32 v%d, 14336, v%d" % (X_V + 2, X_V)); x("v_add_u32 v%d, 21504, v4" % (X_V + 3))
    x("s_and_b32 s%d, s%d, 3" % (sT0, sW)); x("s_lshl_b32 s%d, s%d, 12" % (sXL, sT0)); x("s_add_u32 s%d, s%d, %d" % (sXL, sXL, STG))
    x("s_lshl_b32 s%d, s%d, 15" % (sT0, sT0)); x("s_lshl_b32 s%d, s%d, 17" % (sXB, sI)); x("s_add_u32 s%d, s%d, s%d" % (sXB, sXB, sT0))
    x("s_cmp_lt_u32 s%d, 4" % sW); x("s_cbranch_scc1 L_nox")
    x("s_waitcnt lgkmcnt(0)")
    xline(x, 0); xline(x, 1)
    raw(P, X); P.append(L("L_nox:"))
    if CFG["stamps"]:
        a("v_mov_b32 v%d, 0" % H_STAMP); a("v_mov_b32 v%d, 0" % H_STAMP2); P.append(W(lg="all"))
    stamp_to(P, 0, H_STAMP2)
    for b, off in ((SPHI, 16), (SWS, 80), (SG, 40), (SU, 48), (SWO, 24), (SWD, 56), (SOUT, 64), (SDBG, 72)):
        a("s_load_dwordx2 %s, s[0:1], %d" % (s(b, 2), off))
    for b, n in ((SQKV, 1572864), (SPHI, 16384), (SWO, 524288), (SG, 1835008), (SU, 1835008), (SWD, 1835008), (SOUT, 2097152), (SDBG, 256), (SWS, WS_BYTES)):
        a("s_mov_b32 s%d, %d" % (b + 2, n)); a("s_mov_b32 s%d, 0x20000" % (b + 3))
    a("s_lshl_b32 s%d, s%d, 7" % (sKC, sGR)); a("s_lshl_b32 s%d, s%d, 6" % (sT0, sTY)); a("s_add_u32 s%d, s%d, s%d" % (sKC, sKC, sT0)); a("s_add_u32 s%d, s%d, 1024" % (sKC, sKC))
    if CFG["map2"] == 48:
        a("s_lshr_b32 s%d, s%d, 2" % (sCT, sSH)); a("s_and_b32 s%d, s%d, 3" % (sT3, sSH))
        a("s_lshl_b32 s%d, s%d, 2" % (sT2, sT5)); a("s_add_u32 s%d, s%d, s%d" % (sTT, sT2, sT3))
        a("s_lshl_b32 s%d, s%d, 1" % (sT3, sT3)); a("s_add_u32 s%d, s%d, s%d" % (sR2, sT3, sCT))
    else:
        a("s_lshr_b32 s%d, s%d, 3" % (sT3, sSH)); a("s_and_b32 s%d, s%d, 1" % (sT2, sT5)); a("s_lshl_b32 s%d, s%d, 2" % (sT2, sT2)); a("s_add_u32 s%d, s%d, s%d" % (sCT, sT2, sT3))
        a("s_and_b32 s%d, s%d, 7" % (sT1, sSH)); a("s_lshr_b32 s%d, s%d, 1" % (sT2, sT5)); a("s_lshl_b32 s%d, s%d, 3" % (sT2, sT2)); a("s_add_u32 s%d, s%d, s%d" % (sTT, sT2, sT1))
        a("s_lshl_b32 s%d, s%d, 1" % (sT3, sT3)); a("s_add_u32 s%d, s%d, s%d" % (sR2, sT3, sT1))
    a("s_and_b32 s%d, s%d, 1" % (sW1, sW))
    a("s_mov_b32 s%d, 0x%x" % (sL2E, LOG2E))
    P.append(W(lg="all"))
    a("s_cmp_lt_u32 s%d, 4" % sW); a("s_cbranch_scc1 L_comp")
    a("s_cmp_lt_u32 s%d, 6" % sW); a("s_cbranch_scc1 L_dma")
    return P

def xline(a, j):
    a("s_add_u32 s%d, s%d, %d" % (sT0, sR1, j)); a("s_and_b32 s%d, s%d, 7" % (sT0, sT0)); a("s_lshl_b32 s%d, s%d, 7" % (sT0, sT0)); a("s_add_u32 s%d, s%d, s%d" % (sT0, sT0, sXB))
    a("s_add_u32 m0, s%d, %d" % (sXL, j * 16384))
    for p in range(4): a("buffer_load_dwordx4 v%d, %s, s%d offen offset:%d lds" % (X_V + p, srd(SX), sT0, p * 1024), ("x", j))
def xstages(P, extra):
    a = lambda t, tag=None: P.append(I(t, tag))
    xline(a, 2); xline(a, 3)
    for j in range(4):
        P.append(W(vm=[("x", 2 * j + 1)]))
        a("s_barrier")
        if j == 0: stamp_to(P, 2, H_STAMP2)
        if j < 2: xline(a, 2 * j + 4); xline(a, 2 * j + 5)
        if j in extra: extra[j]()

def fcols(a, ty):
    if ty == 0:
        a("s_lshl_b32 s%d, s%d, 7" % (sKS, sGR)); a("s_add_u32 s%d, s%d, 64" % (sKS + 1, sKS))
    else:
        a("s_mul_i32 s%d, s%d, 96" % (sT0, sGR)); a("s_add_u32 s%d, s%d, 1024" % (sT0, sT0))
        a("s_and_b32 s%d, s%d, 1" % (sT1, sGR)); a("s_lshl_b32 s%d, s%d, 5" % (sT2, sT1))
        a("s_add_u32 s%d, s%d, s%d" % (sKS, sT0, sT2))
        a("s_xor_b32 s%d, s%d, 1" % (sT1, sT1)); a("s_lshl_b32 s%d, s%d, 6" % (sT1, sT1))
        a("s_add_u32 s%d, s%d, s%d" % (sKS + 1, sT0, sT1))

def clear_low(a, used):
    for k in range(2, 64):
        if k not in used: a("v_mov_b32 v%d, 0" % k)

def lds_spin(nm, vfl, off, nw, vd, nap):
    rd = {1: "ds_read_b32 v%d" % vd, 2: "ds_read_b64 %s" % v(vd, 2), 4: "ds_read_b128 %s" % v(vd, 4)}[nw]
    X = ["L_spin_%s:" % nm, "    s_mov_b32 s%d, 0" % sSPIN, "L_spl_%s:" % nm]
    if nap: X.append("    s_sleep %d" % nap)
    X += ["    %s, v%d offset:%d" % (rd, vfl, off), "    s_add_u32 s%d, s%d, 1" % (sSPIN, sSPIN), "    s_waitcnt lgkmcnt(0)"]
    if nw == 4: X.append("    v_min3_u32 v%d, v%d, v%d, v%d" % (vd, vd, vd + 2, vd + 3))
    if nw >= 2: X.append("    v_min_u32 v%d, v%d, v%d" % (vd, vd, vd + 1))
    X += ["    s_cmp_ge_u32 s%d, 0x1000000" % sSPIN, "    s_cbranch_scc1 L_spr_%s" % nm,
          "    v_cmp_gt_u32 vcc, s%d, v%d" % (sSPIN + 1, vd), "    s_cbranch_vccnz L_spl_%s" % nm, "L_spr_%s:" % nm, "    s_setpc_b64 %s" % s(sRET, 2)]
    return X
def count_wait(P, vfl, vd, off, want):
    n = newlbl()
    P.append(W(lg="all"))
    for t in ["    s_mov_b32 s%d, 0" % sSPIN, "L_cw%d:" % n, "    ds_read_b32 v%d, v%d offset:%d" % (vd, vfl, off), "    s_add_u32 s%d, s%d, 1" % (sSPIN, sSPIN),
              "    s_waitcnt lgkmcnt(0)", "    v_cmp_le_u32 vcc, %d, v%d" % (want, vd), "    s_cbranch_vccnz L_cx%d" % n, "    s_sleep 1",
              "    s_cmp_lt_u32 s%d, 0x1000000" % sSPIN, "    s_cbranch_scc1 L_cw%d" % n, "L_cx%d:" % n]: P.append(L(t))

def gate(P, vaddr, srdb, off, tag, vdst, want, slow=None):
    n = newlbl()
    P.append(W(vm=[tag]))
    P.append(I("v_cmp_eq_u32 vcc, %d, v%d" % (want, vdst)))
    P.append(I("s_cbranch_vccnz L_ok%d" % n))
    if slow: raw(P, slow)
    X = ["    s_mov_b32 s%d, 0" % sSPIN, "L_spin%d:" % n]
    if CFG["sleep"]: X.append("    s_sleep %d" % CFG["sleep"])
    X += ["    buffer_load_dword v%d, v%d, %s, 0 offen offset:%d sc1" % (vdst, vaddr, srd(srdb), off), "    s_add_u32 s%d, s%d, 1" % (sSPIN, sSPIN),
          "    s_waitcnt vmcnt(0)", "    v_cmp_eq_u32 vcc, %d, v%d" % (want, vdst), "    s_cbranch_vccnz L_ok%d" % n,
          "    s_cmp_lt_u32 s%d, 0x80000" % sSPIN, "    s_cbranch_scc1 L_spin%d" % n, "L_ok%d:" % n]
    for t in X: P.append(L(t))

C_XA = ACC + 16
N_ONES = ACC + 24
N_T, N_CM, N_SQ, N_ID, N_DL, N_TK = ACC + 32, ACC + 48, ACC + 52, ACC + 60, ACC + 62, ACC + 63
C_A2, C_B2, C_OUT, C_RO = 25, 28, 31, 0
C_FV, C_HC, C_FL, C_ONE, C_DV, C_CM = 16, 20, 21, 22, 23, 24
def compute_setup(ty):
    P = []; a = lambda t, tag=None: P.append(I(t, tag))
    t = list(range(32, 48))
    tok, hi, r, c, mat = t[0:5]
    a("v_and_b32 v%d, 31, v1" % tok); a("v_lshrrev_b32 v%d, 5, v1" % hi)
    a("s_lshl_b32 s%d, s%d, 12" % (sT1, sW)); a("s_add_u32 s%d, s%d, %d" % (sT1, sT1, STG))
    a("v_lshlrev_b32 v%d, 7, v%d" % (t[5], tok)); a("v_add_u32 v%d, s%d, v%d" % (t[5], sT1, t[5]))
    a("v_bfe_u32 v%d, v1, 1, 3" % t[6]); a("v_xor_b32 v%d, v%d, v%d" % (t[6], t[6], hi))
    for k in range(4):
        a("v_xor_b32 v%d, %d, v%d" % (C_XA + k, 2 * k, t[6])); a("v_lshl_add_u32 v%d, v%d, 4, v%d" % (C_XA + k, C_XA + k, t[5]))
        a("v_add_u32 v%d, 0x10000, v%d" % (C_XA + 4 + k, C_XA + k))
    for k in range(4): a("v_mov_b32 v%d, 0x3f803f80" % (N_ONES + k))
    ident(a, N_ID, t[13])
    for j in range(3): a("v_cmp_eq_u32 %s, %d, v%d" % (s(sMK + 2 * j, 2), j + 1, t[13]))
    a("v_mov_b32 v%d, %d" % (C_FL, FL)); a("v_mov_b32 v%d, 1" % C_ONE); a("s_lshl_b32 s%d, s%d, 10" % (sT4, sI)); a("v_mov_b32 v%d, s%d" % (C_CM, sT4))
    a("s_lshl_b32 s%d, s%d, 2" % (sT4, sW)); a("v_add_u32 v18, s%d, v%d" % (sT4, C_FL))
    a("s_lshl_b32 s%d, s%d, 5" % (sT4, sW)); a("v_add_u32 v%d, s%d, v%d" % (N_TK, sT4, tok))
    a("s_lshl_b32 s%d, s%d, 13" % (sT0, sW))
    a("v_bfe_u32 v%d, v1, 2, 2" % r); a("v_and_b32 v%d, 3, v1" % c); a("v_bfe_u32 v%d, v1, 4, 1" % mat)
    a("v_lshlrev_b32 v%d, 3, v%d" % (t[7], c)); a("v_lshl_add_u32 v%d, v%d, 10, v%d" % (t[7], mat, t[7]))
    a("v_lshl_add_u32 v%d, v%d, 11, v%d" % (t[8], hi, t[7])); a("v_lshl_add_u32 v%d, v%d, 7, v%d" % (t[8], r, t[8]))
    a("v_and_b32 v%d, 2, v%d" % (t[9], r)); a("v_xor_b32 v%d, v%d, v%d" % (t[9], t[9], mat))
    for k in range(4):
        a("v_xor_b32 v%d, %d, v%d" % (t[10], k, t[9])); a("v_lshl_add_u32 v%d, v%d, 5, v%d" % (2 + k, t[10], t[8])); a("v_add_u32 v%d, 0x10000, v%d" % (6 + k, 2 + k))
    a("v_lshl_add_u32 v%d, v%d, 9, v%d" % (t[8], hi, t[7])); a("v_lshl_add_u32 v%d, v%d, 6, v%d" % (t[8], r, t[8]))
    for k in range(2):
        a("v_xor_b32 v%d, %d, v%d" % (t[10], k, mat)); a("v_lshl_add_u32 v%d, v%d, 5, v%d" % (10 + k, t[10], t[8])); a("v_add_u32 v%d, 0x10000, v%d" % (12 + k, 10 + k))
    a("v_lshlrev_b32 v%d, 4, v1" % t[11])
    a("s_add_u32 s%d, s%d, %d" % (sT0, sT0, EX)); a("v_add_u32 v15, s%d, v%d" % (sT0, t[11]))
    a("s_lshl_b32 s%d, s%d, 2" % (sT0, sI)); a("s_add_u32 s%d, s%d, s%d" % (sT0, sT0, sW)); a("s_mul_i32 s%d, s%d, %d" % (sT0, sT0, 147456))
    a("s_add_u32 s%d, s%d, %d" % (sT0, sT0, WS_HO)); a("v_add_u32 v14, s%d, v%d" % (sT0, t[11]))
    fcols(a, ty)
    a("s_lshl_b32 s%d, s%d, 6" % (sKS, sKS)); a("s_lshl_b32 s%d, s%d, 6" % (sKS + 1, sKS + 1))
    a("s_lshr_b32 s%d, s%d, 1" % (sT0, sW))
    a("s_lshl_b32 s%d, s%d, 13" % (sT2, sT0)); a("s_add_u32 s%d, s%d, 2048" % (sT2, sT2))
    a("v_add_u32 v%d, s%d, v%d" % (C_A2, sT2, t[11])); a("v_add_u32 v%d, 0x10000, v%d" % (C_A2 + 1, C_A2)); a("v_add_u32 v%d, 0x20000, v%d" % (C_A2 + 2, C_A2))
    u = t[12]
    a("v_bfe_u32 v%d, v1, 3, 1" % u); a("v_xor_b32 v%d, s%d, v%d" % (u, sW1, u)); a("v_lshlrev_b32 v%d, 6, v%d" % (C_B2, u))
    a("v_lshl_add_u32 v%d, v%d, 7, v%d" % (C_B2, r, C_B2)); a("v_lshl_add_u32 v%d, v%d, 9, v%d" % (C_B2, hi, C_B2))
    a("v_and_b32 v%d, 1, v1" % u); a("v_lshl_add_u32 v%d, v%d, 5, v%d" % (C_B2, u, C_B2))
    a("v_lshl_add_u32 v%d, v%d, 4, v%d" % (C_B2, mat, C_B2))
    a("v_bfe_u32 v%d, v1, 1, 1" % u); a("v_lshl_add_u32 v%d, v%d, 3, v%d" % (C_B2, u, C_B2))
    a("v_add_u32 v%d, 0x10000, v%d" % (C_B2 + 1, C_B2)); a("v_add_u32 v%d, 0x20000, v%d" % (C_B2 + 2, C_B2))
    a("s_lshl_b32 s%d, s%d, 6" % (sT2, sTT)); a("s_lshl_b32 s%d, s%d, 5" % (sT3, sT0)); a("s_add_u32 s%d, s%d, s%d" % (sT2, sT2, sT3))
    a("v_add_u32 v%d, s%d, v%d" % (u, sT2, tok))
    a("v_lshlrev_b32 v%d, 2, v%d" % (C_RO, u)); a("v_add_u32 v%d, %d, v%d" % (C_RO, WS_RS, C_RO))
    a("s_lshl_b32 s%d, s%d, 7" % (sT3, sCT)); a("s_lshl_b32 s%d, s%d, 6" % (sT4, sW1)); a("s_add_u32 s%d, s%d, s%d" % (sT3, sT3, sT4))
    a("v_lshlrev_b32 v%d, 10, v%d" % (u, u)); a("v_lshl_add_u32 v%d, v%d, 5, v%d" % (u, hi, u)); a("v_add_u32 v%d, s%d, v%d" % (C_OUT, sT3, u))
    return P

def compute(ty):
    P = compute_setup(ty); a = lambda t, tag=None: P.append(I(t, tag))
    NB = CFG["nb%d" % ty]; CH = checks(ty)
    ops = []; queue = []
    sl = slabs_of(ty); gu_seen = 0; ex_seen = 0
    firstuse = {}; epi = []
    for n, (pi, kind, sg) in enumerate(sl):
        slot = slot_of(n); win = slot >> 2; base = (slot & 3) * SLOT
        e, tiles = PH[ty][pi][1:]
        order = tiles if sg == 0 else sorted(tiles)
        nk = 4 if kind == "P4" else 8
        last = sg == (7 if kind == "P4" else 3)
        seq = [(t, u) for t in order for u in range(nk)]
        for t, u in seq:
            if sg == 0 and u == 0: firstuse[(pi, t)] = len(ops)
            if True:
                m = len(ops); fb = WF + 4 * (m & 7)
                if kind == "P4": ar, off, dq, xs = 2 + 4 * win + t, base + u * 4096, 512, sg * 4 + u
                else: ar, off, dq, xs = 10 + 2 * win + (t & 1), base + u * 2048, 256, sg * 8 + u
                acc = v(ACC + 16 * t, 16)
                ops.append(dict(slab=n, reads=[("ds_read_b64_tr_b16 %s, v%d offset:%d" % (v(fb, 2), ar, off), ("f", m)),
                                               ("ds_read_b64_tr_b16 %s, v%d offset:%d" % (v(fb + 2, 2), ar, off + dq), ("f", m))],
                                waits=[("f", m)], la=CFG["LA"],
                                mfma="v_mfma_f32_32x32x16_bf16 %s, %s, %s, %s" % (acc, v(fb, 4), v(XR + 4 * xs, 4), "0" if (sg == 0 and u == 0) else acc)))
            if last and u == nk - 1:
                A = ACC + 16 * t; E = []
                if e == "gu":
                    for j in range(8): E.append(I("v_mul_f32 v%d, v%d, v%d" % (A + j, A + j, A + j + 8)))
                    for j in range(4): E.append(I("v_cvt_pk_bf16_f32 v%d, v%d, v%d" % (A + j, A + 2 * j, A + 2 * j + 1)))
                    E.append(I("buffer_store_dwordx4 %s, v14, %s, s%d offen offset:%d sc1" % (v(A, 4), srd(SWS), sKS + gu_seen, t * 1024), ("h", gu_seen)))
                else:
                    for j in range(4):
                        for k in (2 * j, 2 * j + 1): E.append(I("v_cvt_pk_bf16_f32 v%d, v%d, v%d" % (A + k, A + 2 * k, A + 2 * k + 1)))
                        E.append(I("ds_write_b64 v15, %s offset:%d" % (v(A + 2 * j, 2), t * 2048 + (j >> 1) * 1024 + (j & 1) * 8)))
                    if t == order[-1]:
                        g = []; one_lane(g, "ds_add_u32 v%d, v%d offset:%d" % (C_FL, C_ONE, F_EX + 4 * ex_seen)); E.append(g); ex_seen += 1
                epi.append((len(ops) + 1, pi, t, E))
        if last and e == "gu":
            lb = newlbl(); kind_ = (C_H1B if ty else C_H1A) if gu_seen == 0 else C_H2
            g1 = [W(vm=[("h", gu_seen)])]; one_lane(g1, "ds_add_rtn_u32 v%d, v%d, v%d offset:%d" % (C_HC, C_FL, C_ONE, F_H + 4 * gu_seen), ("hc", gu_seen))
            g2 = [W(lg=[("hc", gu_seen)]), I("v_readfirstlane_b32 s%d, v%d" % (sT4, C_HC)), I("s_cmp_lg_u32 s%d, %d" % (sT4, 4 if gu_seen == 0 else 3)),
                  I("s_cbranch_scc1 L_hs%d" % lb), L("    s_mov_b64 exec, 1"),
                  L("    buffer_atomic_add v%d, v%d, %s, 0 offen offset:%d sc1" % (C_ONE, C_CM, srd(SWS), kind_ * 256)), L("    s_mov_b64 exec, -1"), L("L_hs%d:" % lb)]
            w0 = len(ops) + 6 + CFG["hwait1" if gu_seen == 0 else "hwait2"]
            epi.append((w0, 99, 0, [g1])); epi.append((w0 + 4, 99, 0, [g2]))
            gu_seen += 1
    n1 = len(ops)
    HB = XR; RES = XR + 32; R2 = XR + 40
    Y, S_ = (ACC + 32, ACC + 48) if ty == 1 else (XR + 48, XR + 64)
    for n in range(20, 56):
        slot = slot_of(n); win = slot >> 2; base = (slot & 3) * SLOT
        acc = v(Y if n < 48 else S_, 16)
        for kk in range(4):
            m = len(ops); fb = WF + 4 * (m & 7); hb = HB + 4 * (m & 7)
            ops.append(dict(slab=n, reads=[("ds_read_b64_tr_b16 %s, v%d offset:%d" % (v(fb, 2), C_B2 + win, base + kk * 4096), ("f", m)),
                                           ("ds_read_b64_tr_b16 %s, v%d offset:%d" % (v(fb + 2, 2), C_B2 + win, base + kk * 4096 + 1024), ("f", m)),
                                           ("ds_read_b128 %s, v%d offset:%d" % (v(hb, 4), C_A2 + win, base + (kk >> 1) * 4096 + (kk & 1) * 1024), ("f", m))],
                            waits=[("f", m)], la=4 if not (CFG["h2now"] and n == 20) else kk + 1,
                            mfma="v_mfma_f32_32x32x16_bf16 %s, %s, %s, %s" % (acc, v(fb, 4), v(hb, 4), "0" if (n in (20, 48) and kk == 0) else acc)))
    X = []; x = lambda t: X.append(I(t)); r = N_SQ
    for j in range(4): x("v_add_f32 v%d, v%d, v%d" % (r + j, r + j, r + j + 4))
    for j in range(3): x("v_cndmask_b32 v%d, v%d, v%d, %s" % (r, r, r + j + 1, s(sMK + 2 * j, 2)))
    x("v_mov_b32 v%d, v%d" % (r + 1, r)); x("v_permlane32_swap_b32 v%d, v%d" % (r, r + 1)); x("v_add_f32 v%d, v%d, v%d" % (r, r, r + 1))
    x("v_mul_f32 v%d, 0x3b000000, v%d" % (r, r)); x("v_fma_f32 v%d, -v%d, v%d, v%d" % (r, N_DL, N_DL, r)); x("v_max_f32 v%d, 0, v%d" % (r, r))
    def rnd(): x("v_cvt_pk_bf16_f32 v%d, v%d, v%d" % (r + 1, r, r)); x("v_and_b32 v%d, 0xffff0000, v%d" % (r, r + 1))
    rnd(); x("v_add_f32 v%d, 0x3727c5ac, v%d" % (r, r)); rnd(); x("v_sqrt_f32 v%d, v%d" % (r, r)); rnd()
    x("v_rcp_f32 v%d, v%d" % (r, r))
    x("v_lshl_add_u32 v%d, v%d, 1, v%d" % (r + 2, N_TK, C_FL)); x("v_lshl_add_u32 v%d, v%d, 2, v%d" % (r + 3, N_TK, C_FL))
    x("ds_write_b16 v%d, v%d offset:%d" % (r + 2, r + 1, LSD - FL)); x("ds_write_b32 v%d, v%d offset:%d" % (r + 3, r, LRS - FL))
    for it in X: queue.append((18, 50, it))
    for e0, pi, t, E in epi:
        dl = min([x for (p2, t2), x in firstuse.items() if p2 > pi and t2 == t] + [10 ** 9]) - 1
        for it in E: queue.append((e0, dl, it))
    G = XR + 80; XF = XR + 96; E = []
    E.append(I("buffer_load_dwordx4 %s, v%d, %s, 0 offen" % (v(RES, 4), C_OUT, srd(SX)), "res"))
    E.append(I("buffer_load_dwordx4 %s, v%d, %s, 0 offen offset:16" % (v(RES + 4, 4), C_OUT, srd(SX)), "res"))
    E.append(I("buffer_load_dword v%d, v%d, %s, 0 offen sc1" % (R2, C_RO, srd(SWS)), "res"))
    for it in E: queue.append((n1 + 48, 10 ** 9, it))
    E = [W(vm=["res"]), I("v_mul_f32 v%d, v%d, v%d" % (R2, R2, R2)), I("v_mul_f32 v%d, s%d, v%d" % (R2 + 1, sL2E, R2))]
    for j in range(8):
        E.append(I("v_lshlrev_b32 v%d, 16, v%d" % (XF + 2 * j, RES + j))); E.append(I("v_and_b32 v%d, 0xffff0000, v%d" % (XF + 2 * j + 1, RES + j)))
    for it in E: queue.append((n1 + 24 * 4, 10 ** 9, it))
    E = []
    for j in range(16): E.append(I("v_mul_f32 v%d, v%d, v%d" % (G + j, R2 + 1, Y + j)))
    for j in range(16): E.append(I("v_exp_f32 v%d, -v%d" % (G + j, G + j)))
    for j in range(16): E.append(I("v_mul_f32 v%d, v%d, v%d" % (Y + j, R2, Y + j)))
    for j in range(16): E.append(I("v_add_f32 v%d, 1.0, v%d" % (G + j, G + j)))
    for j in range(16): E.append(I("v_rcp_f32 v%d, v%d" % (G + j, G + j)))
    for j in range(16): E.append(I("v_mul_f32 v%d, v%d, v%d" % (G + j, G + j, Y + j)))
    for it in E: queue.append((n1 + 28 * 4 + 1, 10 ** 9, it))
    queue.sort(key=lambda x: x[0])
    first = {}
    for m, o in enumerate(ops): first.setdefault(o["slab"], m)
    fread = {first[n] - ops[first[n]]["la"] - (CFG["LAF"] if n <= 20 else 3): n for n in CH}
    lastdone = prev_user(min(NB + CFG["ahead2"], 56) - 1)
    def done(n):
        a("v_mov_b32 v%d, %d" % (C_DV, n + 1)); one_lane(P, "ds_write_b32 v18, v%d offset:%d" % (C_DV, F_DONE))
    issued = 0; cur = 0
    def issue_reads(upto_fn):
        nonlocal issued, cur
        while issued < len(ops) and upto_fn(issued):
            o = ops[issued]
            if o["slab"] > cur:
                cur = o["slab"]
                if cur > 20 and cur - 1 <= lastdone: done(cur - 1)
                if cur >= NB: a("s_barrier")
                elif cur in CH:
                    lb = newlbl()
                    a("s_cbranch_vccnz L_cs%d" % lb); P.append(L("L_cb%d:" % lb))
                    STUBS.extend(["L_cs%d:" % lb, "    s_movk_i32 s%d, %d" % (sSPIN + 1, CH[cur] + 1),
                                  "    s_call_b64 %s, L_spin_c" % s(sRET, 2), "    s_branch L_cb%d" % lb])
            for t, tag in o["reads"]: a(t, tag)
            issued += 1
    def cstamp(k):
        r = sPH + 2 * (k & 1)
        if k > 2:
            a("s_sub_u32 s%d, s%d, s%d" % (r, r, sTM)); a("v_writelane_b32 v19, s%d, %d" % (r, k - 2))
        elif k == 1: a("v_mov_b32 v19, 0")
        P.append(L("    s_memtime %s" % s(r, 2)))
    SM = ACC
    for j in range(4):
        a("s_barrier")
        for k in range(8 * j, 8 * j + 8):
            a("ds_read_b128 %s, v%d offset:%d" % (v(XR + 4 * k, 4), C_XA + (k & 3) + 4 * (k >> 4), ((k >> 2) & 3) * 16384), ("xn", k))
        for k in range(8 * j, 8 * j + 8):
            P.append(W(lg=[("xn", k)]))
            if k == 31: a("s_barrier")
            for h in range(2):
                xx = v(XR + 4 * k + 2 * h, 2); c = v(SM + 4 * h, 4); q = v(N_SQ + 4 * h, 4)
                a("v_mfma_f32_4x4x4_16b_bf16 %s, %s, %s, %s" % (c, v(N_ONES, 2), xx, "0" if k == 0 else c))
                a("v_mfma_f32_4x4x4_16b_bf16 %s, %s, %s, %s" % (q, xx, xx, "0" if k == 0 else q))
    a("s_waitcnt vmcnt(0)")
    issue_reads(lambda m: m < CFG["LA"])
    a("v_add_f32 v%d, v%d, v%d" % (SM, SM, SM + 4)); a("v_mov_b32 v%d, v%d" % (SM + 1, SM)); a("v_permlane32_swap_b32 v%d, v%d" % (SM, SM + 1))
    a("v_add_f32 v%d, v%d, v%d" % (SM, SM, SM + 1))
    a("v_mul_f32 v%d, 0xbb000000, v%d" % (N_DL, SM))
    a("v_cvt_pk_bf16_f32 v%d, v%d, v%d" % (SM, N_DL, N_DL))
    for j in range(4): a("v_and_b32 v%d, 0xffff0000, v%d" % (N_CM + j, SM))
    def cen(k, h): a("v_mfma_f32_4x4x4_16b_bf16 %s, %s, %s, %s" % (v(N_T + 8 * (k & 1) + 4 * h, 4), v(N_ID, 2), v(XR + 4 * k + 2 * h, 2), v(N_CM, 4)))
    def cvt(k, h):
        for j in (2 * h, 2 * h + 1): a("v_cvt_pk_bf16_f32 v%d, v%d, v%d" % (XR + 4 * k + j, N_T + 8 * (k & 1) + 2 * j, N_T + 8 * (k & 1) + 2 * j + 1))
    cen(0, 0); cen(0, 1); cen(1, 0)
    for k in range(32):
        for h in range(2):
            kn, hn = k + (h + 3) // 2, (h + 3) & 1
            if kn < 32: cen(kn, hn)
            cvt(k, h)
    qi = 0
    for m, o in enumerate(ops):
        P.append(W(lg=o["waits"]))
        a(o["mfma"])
        if m == n1 - 1 and CFG["h2now"]:
            lim = n1 + 1 if CFG["h2now"] == 1 else n1 + 40
            while queue[qi][0] <= lim:
                it = queue[qi][2]; P += it if isinstance(it, list) else [it]; qi += 1
        issue_reads(lambda k: k - ops[k]["la"] <= m)
        for n in range(1, 56):
            d = m - (first[n] - ops[first[n]]["la"])
            if d == -1 and n in CH:
                P.append(W(lg=[("fl", n)])); a("v_min_u32 v%d, v%d, v%d" % (C_FV, C_FV, C_FV + 1)); a("v_cmp_ge_u32 vcc, %d, v%d" % (CH[n], C_FV))
            if d == 1 and n <= 20: done(n - 1)
            if d == (2 if n <= 20 else 0) and CFG["stamps"] and not CFG["zoom"]: cstamp(n)
            if CFG["zoom"] and m == CFG["zoom"] + n: cstamp(n)
        if m in fread: a("ds_read_b64 %s, v%d offset:%d" % (v(C_FV, 2), C_FL, F_LAND), ("fl", fread[m]))
        rate = CFG["erate"] if m < n1 else 5
        cnt = 0
        while qi < len(queue) and queue[qi][0] <= m and cnt < rate:
            assert m <= queue[qi][1], ("filler past its deadline", ty, m, queue[qi][1])
            it = queue[qi][2]
            if isinstance(it, list): P += it; cnt += 2
            else: P.append(it)
            qi += 1; cnt += 1
    assert qi == len(queue)
    for j in range(16): a("v_fma_f32 v%d, v%d, v%d, v%d" % (G + j, S_ + j, G + j, XF + j))
    for j in range(8): a("v_cvt_pk_bf16_f32 v%d, v%d, v%d" % (XF + j, G + 2 * j, G + 2 * j + 1))
    if CFG["probe"]:
        a("s_memrealtime s[6:7]"); P.append(W(lg="all")); a("s_sub_u32 s6, s6, s4")
        a("s_cmp_%s_u32 s6, %d" % ("gt" if CFG["probe"] > 0 else "lt", abs(CFG["probe"]))); a("s_cselect_b32 s6, 0x7fc07fc0, 0"); a("v_or_b32 v%d, s6, v%d" % (XF, XF))
    a("buffer_store_dwordx4 %s, v%d, %s, 0 offen%s" % (v(XF, 4), C_OUT, srd(SOUT), CFG["outfl"]))
    a("buffer_store_dwordx4 %s, v%d, %s, 0 offen offset:16%s" % (v(XF + 4, 4), C_OUT, srd(SOUT), CFG["outfl"]))
    if CFG["stamps"]:
        one_lane(P, "ds_add_u32 v%d, v%d offset:%d" % (C_FL, C_ONE, F_END))
        cstamp(56); cstamp(57); P.append(W(lg="all")); cstamp(58)
        a("s_lshl_b32 s%d, s2, 8" % sT0); a("s_add_u32 s%d, s%d, %d" % (sT0, sT0, WS_ST + 0x20000))
        a("v_lshlrev_b32 v18, 2, v1")
        a("s_cmp_lg_u32 s%d, %d" % (sW, CFG["stampw"])); a("s_cbranch_scc1 L_exit")
        a("buffer_store_dword v19, v18, %s, s%d offen" % (srd(SWS), sT0))
    a("s_endpgm")
    return P

D_P = 32
D_A, D_B, D_B2, D_TAB, D_FL, D_LA, D_ONE, D_ZERO, D_CC, D_POLL, D_LV = range(2, 13)
D_DV = 28
D_TCH = 20
def phase_info(ty):
    return [(kind, 3584, SG, SU) if e == "gu" else (kind, 3072, SQKV, SQKV) for kind, e, _ in PH[ty]]
def dma_setup(ty):
    P = []; b = lambda t, tag=None: P.append(I(t, tag))
    t0, t1, t2, t3, u0, u1, u2 = range(64, 71)
    b("v_mov_b32 v%d, 0" % D_ZERO); b("v_mov_b32 v%d, 0" % D_TAB)
    b("v_mov_b32 v%d, 1" % D_ONE); b("v_mov_b32 v%d, %d" % (D_FL, FL))
    b("s_lshl_b32 s%d, s%d, 2" % (sT0, sW1)); b("v_add_u32 v%d, s%d, v%d" % (D_LA, sT0, D_FL))
    b("s_lshr_b32 s%d, s%d, 1" % (sT0, sTT)); b("s_lshl_b32 s%d, s%d, 10" % (sT0, sT0)); b("v_mov_b32 v%d, s%d" % (D_CC, sT0))
    b("s_lshl_b32 s%d, s%d, 1" % (sT0, sTT)); b("s_add_u32 s%d, s%d, s%d" % (sT0, sT0, sW1))
    b("s_mul_i32 s%d, s%d, 147456" % (sT0, sT0)); b("s_add_u32 s%d, s%d, %d" % (sT0, sT0, WS_HO - 2048))
    b("v_lshlrev_b32 v%d, 4, v1" % u0); b("v_add_u32 v%d, s%d, v%d" % (D_A, sT0, u0))
    b("v_lshrrev_b32 v%d, 3, v1" % u0); b("v_and_b32 v%d, 2, v%d" % (u1, u0)); b("v_lshlrev_b32 v%d, 1, v%d" % (u1, u1))
    b("v_and_b32 v%d, 7, v1" % u2); b("v_xor_b32 v%d, v%d, v%d" % (u2, u2, u1))
    b("v_lshlrev_b32 v%d, 10, v%d" % (u0, u0)); b("v_lshl_add_u32 v%d, v%d, 4, v%d" % (D_B, u2, u0))
    b("s_lshl_b32 s%d, s%d, 15" % (sT0, sW1)); b("s_lshl_b32 s%d, s%d, 7" % (sT1, sCT)); b("s_add_u32 s%d, s%d, s%d" % (sT0, sT0, sT1))
    b("v_add_u32 v%d, s%d, v%d" % (D_B, sT0, D_B)); b("v_add_u32 v%d, %d, v%d" % (D_B2, 8192 - 1024, D_B))
    fcols(b, ty)
    gu = 0
    for pi, (kind, e, _) in enumerate(PH[ty]):
        stride = 3584 if e == "gu" else 3072
        (p4_voffs if kind == "P4" else p2_voffs)(b, u0, u1, stride, t0)
        if e == "gu": b("s_lshl_b32 s%d, s%d, 1" % (sT1, sKS + gu)); db = 0; gu += 1
        elif e == "kv": b("s_mov_b32 s%d, s%d" % (sT1, sKC)); db = 1024
        else: b("s_lshl_b32 s%d, s%d, 7" % (sT1, sGR)); db = 64
        step = (8 if kind == "P4" else 16) * stride
        b("v_add_u32 v%d, s%d, v%d" % (u0, sT1, u0)); b("v_add_u32 v%d, s%d, v%d" % (u1, sT1, u1))
        for p in range(4):
            b("v_add_u32 v%d, %d, v%d" % (D_P + 4 * pi + p, 4096 + (p >> 1) * step - p * 1024 + (db if p & 1 else 0), u1 if p & 1 else u0))
    b("s_lshl_b32 s%d, s%d, 13" % (sLA, sW1))
    nr = 32 if CFG["map"] == 84 else 64
    b("s_lshl_b32 s%d, s%d, 6" % (sT0, sXR)); b("s_mul_i32 s%d, s%d, %d" % (sT1, sW1, nr)); b("s_add_u32 s%d, s%d, s%d" % (sT0, sT0, sT1))
    b("v_add_u32 v%d, s%d, v1" % (t2, sT0)); b("v_mul_u32_u24 v%d, 3072, v%d" % (D_TCH + 3, t2)); b("v_mul_u32_u24 v%d, 3584, v%d" % (D_TCH + 2, t2))
    b("s_lshl_b32 s%d, s%d, 7" % (sT0, sGR)); b("s_add_u32 s%d, s%d, 4096" % (sT0, sT0)); b("v_add_u32 v%d, s%d, v%d" % (D_TCH + 3, sT0, D_TCH + 3))
    b("v_add_u32 v%d, 4096, v%d" % (D_TCH + 2, D_TCH + 2))
    b("s_lshl_b32 s%d, s%d, 1" % (sKS, sKS)); b("s_lshl_b32 s%d, s%d, 1" % (sKS + 1, sKS + 1))
    b("s_lshl_b32 s%d, s%d, 1" % (sT0, sSH)); b("s_add_u32 s%d, s%d, s%d" % (sT0, sT0, sW1))
    if CFG["map2"] == 48: b("v_lshlrev_b32 v%d, 7, v1" % t2)
    else:
        b("v_lshrrev_b32 v%d, 2, v1" % t2); b("v_lshlrev_b32 v%d, 10, v%d" % (t2, t2)); b("v_and_b32 v%d, 3, v1" % t3); b("v_lshl_add_u32 v%d, v%d, 7, v%d" % (t2, t3, t2))
        b("s_and_b32 s%d, s%d, 4" % (sT1, sCT)); b("s_lshl_b32 s%d, s%d, 7" % (sT1, sT1)); b("v_add_u32 v%d, s%d, v%d" % (t2, sT1, t2))
    b("s_mul_i32 s%d, s%d, %d" % (sT1, sT0, 28 * 1024)); b("v_add_u32 v%d, s%d, v%d" % (D_TCH, sT1, t2))
    b("s_lshl_b32 s%d, s%d, 13" % (sT1, sT0)); b("v_add_u32 v%d, s%d, v%d" % (D_TCH + 1, sT1, t2))
    def seg(lo, items):
        for t in items: b(t)
        b("v_cmp_le_u32 vcc, %d, v1" % lo); b("v_cndmask_b32 v%d, v%d, v%d, vcc" % (D_TAB, D_TAB, t1))
    b("s_add_u32 s%d, s%d, s%d" % (sT0, sR1, sW1))
    n0 = 0
    for pi, (kind, e, _) in enumerate(PH[ty]):
        stride = 3584 if e == "gu" else 3072
        if kind == "P4":
            seg(n0, ["v_add_u32 v%d, s%d, v1" % (t1, sR1), "v_add_u32 v%d, %d, v%d" % (t1, (-n0) & 7, t1), "v_and_b32 v%d, 7, v%d" % (t1, t1),
                     "v_lshlrev_b32 v%d, 1, v%d" % (t1, t1), "v_add_u32 v%d, s%d, v%d" % (t1, sW1, t1), "v_mul_u32_u24 v%d, %d, v%d" % (t1, 32 * stride, t1)]); n0 += 8
        else:
            seg(n0, ["v_lshlrev_b32 v%d, 1, v1" % t1, "v_add_u32 v%d, s%d, v%d" % (t1, sT0, t1), "v_and_b32 v%d, 7, v%d" % (t1, t1),
                     "v_mul_u32_u24 v%d, %d, v%d" % (t1, 64 * stride, t1)]); n0 += 4
    b("v_add_u32 v%d, s%d, v1" % (t0, sR2)); b("v_and_b32 v%d, 7, v%d" % (t2, t0))
    seg(20, ["v_lshlrev_b32 v%d, 13, v%d" % (t1, t2)])
    seg(28, ["v_lshrrev_b32 v%d, 1, v%d" % (t3, t2), "v_lshlrev_b32 v%d, 1, v%d" % (t1, t2), "v_sub_u32 v%d, v%d, v%d" % (t1, t1, t3),
             "v_add_u32 v%d, 16, v%d" % (t1, t1), "v_lshlrev_b32 v%d, 12, v%d" % (t1, t1)])
    seg(36, ["v_lshlrev_b32 v%d, 13, v%d" % (t1, t2), "v_add_u32 v%d, 4096, v%d" % (t1, t1)])
    seg(44, ["v_and_b32 v%d, 3, v%d" % (t1, t0), "v_mul_u32_u24 v%d, 3, v%d" % (t1, t1), "v_add_u32 v%d, 17, v%d" % (t1, t1), "v_lshlrev_b32 v%d, 12, v%d" % (t1, t1)])
    seg(48, ["v_lshlrev_b32 v%d, 12, v%d" % (t1, t2)])
    return P

def dma_wave(ty):
    P = [M(("x", 1))] + dma_setup(ty); a = lambda t, tag=None: P.append(I(t, tag))
    stamp = lambda k: stamp_to(P, k)
    stamp_to(P, 1, H_STAMP2)
    NB = CFG["nb%d" % ty]; CH = checks(ty)
    sl = slabs_of(ty); info = phase_info(ty)
    def look(n):
        if n < 56: a("v_readlane_b32 s%d, v%d, %d" % (sPH + 2 * (n & 1), D_TAB, n))
    def part(n, which, nxt):
        so = sPH + 2 * (n & 1); cap = CFG["cap1"]
        if which == "B": a("s_lshl_b32 s%d, s%d, 4" % (so, so))
        for h in range(2):
            a("s_add_u32 m0, s%d, %d" % (sLA, slot_of(n) * SLOT + h * 4096))
            if h: a("s_add_u32 s%d, s%d, %d" % (so, so, 16384 if which == "B" else 2048))
            elif (nxt ^ n) & 1: look(nxt)
            room(16, cap)
            if which == "B":
                vm("buffer_load_dwordx4 v%d, %s, s%d offen lds" % (D_B, srd(SWD), so), 8)
                vm("buffer_load_dwordx4 v%d, %s, s%d offen offset:1024 lds" % (D_B2, srd(SWD), so), 8)
            else:
                vm("buffer_load_dwordx4 v%d, %s, s%d offen offset:2048 sc1 lds" % (D_A, srd(SWS), so), 8, ("slab", n))
                vm("buffer_load_dwordx4 v%d, %s, s%d offen offset:3072 sc1 lds" % (D_A, srd(SWS), so), 8, ("slab", n))
        if not (nxt ^ n) & 1: look(nxt)
    hist = []
    def room(w, cap):
        tot = w; k = 0
        while k < len(hist) and tot + hist[-1 - k] <= cap: tot += hist[-1 - k]; k += 1
        if k < len(hist): a("s_waitcnt vmcnt(%d)" % min(k, 63))
    def vm(t, w, tag=None): a(t, tag); hist.append(w)
    def dma(n):
        so = sPH + 2 * (n & 1); cap = CFG["cap1"] if n < CFG["capsw"] else CFG["cap2"]
        for h in range(2):
            a("s_add_u32 m0, s%d, %d" % (sLA, slot_of(n) * SLOT + h * 4096))
            if n < 20:
                pi, kind, sg = sl[n]; _, stride, sa, sb = info[pi]
                w = 16 if (kind == "P2" and PH[ty][pi][1] != "q") else 8
                if h: a("s_add_u32 s%d, s%d, %d" % (so, so, (16 if kind == "P4" else 32) * stride))
                else: look(n + 1)
                for p in range(4):
                    if p % 2 == 0: room(2 * w, cap)
                    vm("buffer_load_dwordx4 v%d, %s, s%d offen offset:%d lds" % (D_P + 4 * pi + p, srd(sb if p & 1 else sa), so, p * 1024), w, ("slab", n))
            else:
                if h: a("s_add_u32 s%d, s%d, 2048" % (so, so)); a("s_add_u32 s%d, s%d, 16384" % (so + 1, so + 1))
                else:
                    a("s_lshl_b32 s%d, s%d, 4" % (so + 1, so)); look(n + 1)
                    if n == 48: a("v_add_u32 v%d, %d, v%d" % (D_A, 28 * 4096, D_A))
                wb = srd(SWD if n < 48 else SWO)
                room(16, cap)
                vm("buffer_load_dwordx4 v%d, %s, s%d offen lds" % (D_B, wb, so + 1), 8, ("slab", n))
                vm("buffer_load_dwordx4 v%d, %s, s%d offen offset:1024 lds" % (D_B2, wb, so + 1), 8, ("slab", n))
                room(16, cap)
                vm("buffer_load_dwordx4 v%d, %s, s%d offen offset:2048 sc1 lds" % (D_A, srd(SWS), so), 8, ("slab", n))
                vm("buffer_load_dwordx4 v%d, %s, s%d offen offset:3072 sc1 lds" % (D_A, srd(SWS), so), 8, ("slab", n))
    def touch(which):
        nr = 32 if CFG["map"] == 84 else 64; dst = D_TCH + 4; cap = CFG["cap1"]
        for w in which:
            if w in ("q", "g0", "g1"):
                if nr == 32: a("s_mov_b32 exec_hi, 0")
                if w == "q": room(nr, cap); vm("buffer_load_dword v%d, v%d, %s, 0 offen" % (dst, D_TCH + 3, srd(SQKV)), nr)
                else:
                    for d in (SG, SU): room(nr, cap); vm("buffer_load_dword v%d, v%d, %s, s%d offen" % (dst, D_TCH + 2, srd(d), sKS + int(w[1])), nr)
            elif w == "o":
                if CFG["map2"] == 84: a("s_mov_b32 exec_hi, 0")
                k = 64 if CFG["map2"] == 48 else 32
                room(k, cap); vm("buffer_load_dword v%d, v%d, %s, 0 offen" % (dst, D_TCH + 1, srd(SWO)), k)
            else:
                j = int(w[1])
                if j >= (4 if CFG["map2"] == 48 else 2): continue
                a("s_mov_b32 exec_hi, 0xffffff"); a("s_mov_b32 s%d, %d" % (sT0, j * 56 * (128 if CFG["map2"] == 48 else 256)))
                room(56, cap); vm("buffer_load_dword v%d, v%d, %s, s%d offen" % (dst, D_TCH, srd(SWD), sT0), 56)
            a("s_mov_b64 exec, -1")
    def mark(X, m):
        X.append(I("v_mov_b32 v%d, %d" % (D_LV, m + 1))); one_lane(X, "ds_max_u32 v%d, v%d offset:%d" % (D_LA, D_LV, F_LAND))
    def publish(m):
        if m in CH.values():
            P.append(W(vm=[("slab", m)])); mark(P, m)
            if CFG["stamps"] == 2 or m % 4 == 3: stamp(m)
    def flush(n):
        g = [I("s_waitcnt vmcnt(0)")]; mark(g, n - 1); return g
    for d in (SQKV, SG, SU):
        a("s_sub_u32 s%d, s%d, 4096" % (d, d)); a("s_subb_u32 s%d, s%d, 0" % (d + 1, d + 1)); a("s_add_u32 s%d, s%d, 4096" % (d + 2, d + 2))
    gates = {20: (C_H1A, 8), 28: (C_H1B, 8), 36: (C_H2, 16), 48: (C_O, 16)}
    def do_gate(n):
        stamp_to(P, 20 + 2 * list(gates).index(n), H_STAMP2)
        gate(P, D_CC, SWS, gates[n][0] * 256, ("poll", n), D_POLL, gates[n][1], slow=flush(n) if n <= NB + CFG["ahead2"] else None)
        stamp_to(P, 21 + 2 * list(gates).index(n), H_STAMP2)
    def poll(gn): vm("buffer_load_dword v%d, v%d, %s, 0 offen offset:%d sc1" % (D_POLL, D_CC, srd(SWS), gates[gn][0] * 256), 1, ("poll", gn))
    nbf = CFG["bfirst"]
    def issue(n):
        if n in gates and not (n == 20 and nbf): do_gate(n)
        if n + CFG["pollat"] in gates and not (n + CFG["pollat"] == 20 and nbf): poll(n + CFG["pollat"])
        dma(n)
    def do_touch(n):
        tp = CFG["tplan%d" % ty].get(str(n))
        if tp:
            touch(tp.split()[:1])
            if n > 1: P.append(W(vm=[("slab", n)])); mark(P, n)
            touch(tp.split()[1:])
    look(0)
    hist += [16] * 8
    xstages(P, {2: lambda: dma(0), 3: lambda: (dma(1), do_touch(1))})
    stamp(60)
    P.append(W(vm=[("slab", 0)]))
    a("s_barrier")
    stamp(61)
    publish(1)
    for n in range(2, min(NB + CFG["ahead2"], 56)):
        pu = prev_user(n)
        if pu >= 0:
            lb = newlbl()
            P.append(W(lg=[("dn", n)]))
            a("v_min3_u32 v%d, v%d, v%d, v%d" % (D_DV, D_DV, D_DV + 2, D_DV + 3)); a("v_min_u32 v%d, v%d, v%d" % (D_DV, D_DV, D_DV + 1))
            a("v_cmp_ge_u32 vcc, %d, v%d" % (pu, D_DV)); a("s_cbranch_vccz L_fr%d" % lb)
            raw(P, flush(min(n, 20) if n < 20 + nbf else n) + [I("s_movk_i32 s%d, %d" % (sSPIN + 1, pu + 1)), I("s_call_b64 %s, L_spin_d" % s(sRET, 2))]); P.append(L("L_fr%d:" % lb))
        if n == 24:
            count_wait(P, D_FL, D_DV, F_EXF, 2)
        if n == 12: vm("buffer_load_dword v%d, v%d, %s, 0 offen sc1" % (D_POLL, D_ZERO, srd(SDBG)), 1, "pollinit")
        if n == 15: gate(P, D_ZERO, SDBG, 0, "pollinit", D_POLL, 1)
        if n + 1 < NB + CFG["ahead2"] and prev_user(n + 1) >= 0: a("ds_read_b128 %s, v%d offset:%d" % (v(D_DV, 4), D_FL, F_DONE), ("dn", n + 1))
        if 20 <= n < 20 + nbf:
            lastb = n == 20 + nbf - 1
            if lastb: poll(20)
            part(n, "B", 20 if lastb else n + 1)
            if n < 22: publish(n - 2)
            if lastb:
                do_gate(20)
                for m in range(20, n + 1):
                    if m + CFG["pollat"] in gates: poll(m + CFG["pollat"])
                    part(m, "A", m + 1)
                    if m - 3 >= 20: publish(m - 3)
                publish(n - 2)
        else:
            issue(n)
            publish(n - 2 if n > 4 else n - 1)
        do_touch(n)
    for m in range(n - 1, NB): publish(m)
    for nb in range(NB, 56):
        n = nb + CFG["ahead2"]
        P.append(W(vm=[("slab", nb)]))
        a("s_barrier")
        if CFG["stamps"] == 2 or nb % 4 == 3: stamp(nb)
        if n < 56:
            assert prev_user(n) <= nb - 2
            issue(n)
    if CFG["stamps"]:
        count_wait(P, D_FL, D_DV, F_END, 4)
        stamp(62)
        a("s_memrealtime s[6:7]"); P.append(W(lg="all"))
        a("v_writelane_b32 v%d, s4, 62" % H_STAMP2); a("v_writelane_b32 v%d, s6, 63" % H_STAMP2)
        a("s_lshl_b32 s%d, s2, 8" % sT0); a("s_add_u32 s%d, s%d, %d" % (sT0, sT0, WS_ST))
        a("v_lshlrev_b32 v64, 2, v1")
        a("s_cmp_lg_u32 s%d, %d" % (sW1, CFG["stampw"] & 1)); a("s_cbranch_scc1 L_exit")
        a("buffer_store_dword v%d, v64, %s, s%d offen" % (H_STAMP, srd(SWS), sT0))
        a("s_add_u32 s%d, s%d, 0x10000" % (sT0, sT0))
        a("buffer_store_dword v%d, v64, %s, s%d offen" % (H_STAMP2, srd(SWS), sT0))
    a("s_endpgm")
    return P

A_ONE, A_ZERO, A_CM, A_CK, A_CQ, A_FL, A_RK, A_RV, A_ST, A_ZA, A_PL, A_ZL, A_OS, A_SGN = range(2, 16)
A_POLL, A_FV, A_TCH = 25, 27, 28
A_ID = 32
A_WP = 36
A_R = 16
A_ACC = 56
A_RAW = 72
A_T = 72
A_KF = 112
A_SD = 128; A_PHI = 144
A_PQ = 128
A_LD = 192
def softmax_unit(wp, kf, u, dst, Pm, R, scale_r):
    B = []; b = lambda t, tag=None: B.append(I(t, tag))
    C = A_R + 4 + u
    b("v_mfma_f32_32x32x16_bf16 %s, %s, %s, 0" % (v(Pm, 16), v(wp, 4), v(kf, 4)))
    for g in range(2): b("v_max3_f32 v%d, v%d, v%d, v%d" % (R + g, Pm + 8 * g, Pm + 8 * g + 1, Pm + 8 * g + 2))
    for g in range(2): b("v_max3_f32 v%d, v%d, v%d, v%d" % (R + 2 + g, Pm + 8 * g + 3, Pm + 8 * g + 4, Pm + 8 * g + 5))
    for g in range(2): b("v_max3_f32 v%d, v%d, v%d, v%d" % (R + g, R + g, Pm + 8 * g + 6, Pm + 8 * g + 7))
    for g in range(2): b("v_max_f32 v%d, v%d, v%d" % (R + g, R + g, R + 2 + g))
    def allred(op, mid):
        b("v_permlane32_swap_b32 v%d, v%d" % (R, R + 1))
        b("%s v%d, v%d, v%d" % (op, R, R, R + 1))
        for t in mid: b(t)
        b("v_mov_b32 v%d, v%d" % (R + 1, R))
        b("v_permlane32_swap_b32 v%d, v%d" % (R, R + 1))
    allred("v_max_f32", ["v_mul_f32 v%d, v%d, v%d" % (R, C, R)])
    for j in range(16): b("v_fma_f32 v%d, v%d, v%d, -v%d" % (Pm + j, Pm + j, C, R + j // 8))
    for j in range(16): b("v_exp_f32 v%d, v%d" % (Pm + j, Pm + j))
    for g in range(2):
        b("v_add_f32 v%d, v%d, v%d" % (R + g, Pm + 8 * g, Pm + 8 * g + 1)); b("v_add_f32 v%d, v%d, v%d" % (R + 2 + g, Pm + 8 * g + 2, Pm + 8 * g + 3))
    for k in (4, 6):
        for g in range(2):
            b("v_add_f32 v%d, v%d, v%d" % (R + g, R + g, Pm + 8 * g + k)); b("v_add_f32 v%d, v%d, v%d" % (R + 2 + g, R + 2 + g, Pm + 8 * g + k + 1))
    for g in range(2): b("v_add_f32 v%d, v%d, v%d" % (R + g, R + g, R + 2 + g))
    allred("v_add_f32", ["v_rcp_f32 v%d, v%d" % (R, R)] + (["v_mul_f32 v%d, v%d, v%d" % (R, R, A_R + u)] if scale_r else []))
    for j in range(16): b("v_mul_f32 v%d, v%d, v%d" % (Pm + j, Pm + j, R + j // 8))
    for j in range(8): b("v_cvt_pk_bf16_f32 v%d, v%d, v%d" % (dst + j, Pm + 2 * j, Pm + 2 * j + 1))
    return B
def zipper(x, y):
    out = []
    for i in range(max(len(x), len(y))):
        if i < len(x): out.append(x[i])
        if i < len(y): out.append(y[i])
    return out
def mprio(B):
    out = []; hi = False
    for it in B:
        m_ = isinstance(it, I) and it.t.startswith("v_mfma")
        if m_ and not hi: out.append(I("s_setprio 3")); hi = True
        if hi and not m_: out.append(I("s_setprio 0")); hi = False
        out.append(it)
    return out

def attn_setup(ty):
    P = []; b = lambda t, tag=None: P.append(I(t, tag))
    t0, t1, t2, t3, u0 = range(100, 105)
    hk, hq = sT2, sT3
    nr = 32 if CFG["map"] == 84 else 64
    b("s_lshl_b32 s%d, s%d, 6" % (sT0, sXR)); b("s_mul_i32 s%d, s%d, %d" % (sT1, sW1, nr)); b("s_add_u32 s%d, s%d, s%d" % (sT0, sT0, sT1))
    b("v_add_u32 v%d, s%d, v1" % (A_TCH + 2, sT0)); b("v_mul_u32_u24 v%d, 3072, v%d" % (A_TCH + 3, A_TCH + 2)); b("v_mul_u32_u24 v%d, 3584, v%d" % (A_TCH + 2, A_TCH + 2))
    if nr == 32: b("s_mov_b32 exec_hi, 0")
    b("buffer_load_dword v%d, v%d, %s, s%d offen offset:%d" % (A_POLL + 1, A_TCH + 3, srd(SQKV), sKC, 1024 * ty)); b("s_mov_b64 exec, -1")
    b("s_lshl_b32 s%d, s%d, 2" % (hq, sGR)); b("s_add_u32 s%d, s%d, s%d" % (hq, hq, sW1))
    b("s_add_u32 s%d, s%d, %d" % (hk, hq, 2 * ty))
    b("v_lshrrev_b32 v%d, 5, v1" % t3); b("v_and_b32 v%d, 15, v1" % t1); b("v_lshrrev_b32 v%d, 4, v1" % t0)
    b("v_lshlrev_b32 v%d, 7, v%d" % (t2, t3)); b("v_lshl_add_u32 v%d, v%d, 1, v%d" % (t2, t1, t2))
    b("s_lshl_b32 s%d, s%d, 9" % (sT0, hq))
    for hh in range(1 + ty):
        for j in range(8):
            b("buffer_load_ushort v%d, v%d, %s, s%d offen offset:%d" % (A_RAW + 8 * hh + j, t2, srd(SPHI), sT0, 1024 * hh + 32 * ((j & 3) + 8 * (j >> 2))), "wphi")
    b("v_mov_b32 v%d, 0" % A_ZERO); b("v_mov_b32 v34, 0")
    b("v_mov_b32 v%d, 1" % A_ONE); b("v_mov_b32 v%d, %d" % (A_FL, FL))
    if ty == 0:
        b("v_lshlrev_b32 v%d, 8, v1" % u0)
        b("s_add_u32 s%d, s2, s%d" % (sT0, sW1)); b("s_cmp_lg_u32 s%d, 0" % sT0); b("s_cbranch_scc1 L_noinit")
        raw(P, [I("buffer_store_dword v%d, v%d, %s, 0 offen sc1" % (A_ZERO, u0, srd(SWS))), I("s_movk_i32 s%d, 0x4000" % sT0),
                I("buffer_store_dword v%d, v%d, %s, s%d offen sc1" % (A_ZERO, u0, srd(SWS), sT0))])
        P.append(L("L_noinit:"))
    b("v_and_b32 v%d, 1, v%d" % (t2, t0)); b("v_mul_u32_u24 v%d, 0x8000, v%d" % (t2, t2)); b("v_lshl_or_b32 v%d, v%d, 16, v%d" % (A_SGN, t2, t2))
    b("s_lshl_b32 s%d, s%d, 10" % (sT0, sI)); b("v_mov_b32 v%d, s%d" % (A_CM, sT0))
    b("s_lshl_b32 s%d, s%d, 8" % (sT0, hk)); b("s_add_u32 s%d, s%d, 0x4000" % (sT0, sT0)); b("v_mov_b32 v%d, s%d" % (A_CK, sT0))
    b("s_lshl_b32 s%d, s%d, 8" % (sT0, hq)); b("s_add_u32 s%d, s%d, 0x4000" % (sT0, sT0)); b("v_mov_b32 v%d, s%d" % (A_CQ, sT0))
    b("s_lshl_b32 s%d, s%d, 11" % (sT0, sW1)); b("s_add_u32 s%d, s%d, %d" % (sT0, sT0, EX))
    b("v_lshlrev_b32 v%d, 4, v1" % u0); b("v_add_u32 v%d, s%d, v%d" % (A_RK, sT0, u0))
    b("v_and_b32 v%d, 1, v1" % t2); b("v_lshlrev_b32 v%d, 9, v%d" % (A_RV, t2)); b("v_lshl_add_u32 v%d, v%d, 7, v%d" % (A_RV, t0, A_RV))
    b("v_bfe_u32 v%d, v1, 2, 2" % t2); b("v_lshl_add_u32 v%d, v%d, 4, v%d" % (A_RV, t2, A_RV))
    b("v_bfe_u32 v%d, v1, 1, 1" % t2); b("v_lshl_add_u32 v%d, v%d, 3, v%d" % (A_RV, t2, A_RV)); b("v_add_u32 v%d, s%d, v%d" % (A_RV, sT0, A_RV))
    b("s_lshl_b32 s%d, s%d, 4" % (sT0, hk)); b("s_add_u32 s%d, s%d, s%d" % (sT0, sT0, sI))
    b("s_lshl_b32 s%d, s%d, 10" % (sT1, sT0)); b("s_add_u32 s%d, s%d, %d" % (sT1, sT1, WS_KV)); b("v_add_u32 v%d, s%d, v%d" % (A_ST, sT1, u0))
    b("s_lshl_b32 s%d, s%d, 7" % (sT1, sT0)); b("s_add_u32 s%d, s%d, %d" % (sT1, sT1, WS_Z))
    b("v_lshlrev_b32 v%d, 6, v%d" % (A_ZA, t1)); b("v_lshl_add_u32 v%d, v%d, 4, v%d" % (A_ZA, t0, A_ZA)); b("v_add_u32 v%d, s%d, v%d" % (A_ZA, sT1, A_ZA))
    if ty == 1:
        b("s_lshl_b32 s%d, s%d, 14" % (sT1, hq)); b("s_add_u32 s%d, s%d, %d" % (sT1, sT1, WS_KV)); b("v_add_u32 v%d, s%d, v%d" % (A_PL, sT1, u0))
        b("s_lshl_b32 s%d, s%d, 11" % (sT1, hq)); b("s_add_u32 s%d, s%d, %d" % (sT1, sT1, WS_Z))
        b("v_lshlrev_b32 v%d, 7, v%d" % (A_ZL, t1)); b("v_lshl_add_u32 v%d, v%d, 4, v%d" % (A_ZL, t0, A_ZL)); b("v_add_u32 v%d, s%d, v%d" % (A_ZL, sT1, A_ZL))
        b("s_mul_i32 s%d, s%d, 576" % (sT1, sI)); b("s_add_u32 s%d, s%d, s%d" % (sT1, sT1, hq)); b("s_add_u32 s%d, s%d, 112" % (sT1, sT1))
        b("s_lshl_b32 s%d, s%d, 10" % (sT1, sT1)); b("s_add_u32 s%d, s%d, %d" % (sT1, sT1, WS_HO)); b("v_add_u32 v%d, s%d, v%d" % (A_OS, sT1, u0))
        ident(b, A_ID, t1)
    return P

def attn_wave(ty):
    P = [M(("x", 1))] + attn_setup(ty); a = lambda t, tag=None: P.append(I(t, tag))
    stamp = lambda k: stamp_to(P, k, 34)
    def signal(vaddr, off): one_lane(P, "buffer_atomic_add v%d, v%d, %s, 0 offen offset:%d sc1" % (A_ONE, vaddr, srd(SWS), off))
    def after3():
        a("v_lshl_add_u32 v%d, v1, 2, v%d" % (A_FV, A_FL)); a("ds_write_b32 v%d, v%d" % (A_FV, A_ZERO))
        if ty == 0:
            only(P, ["s_add_u32 s%d, s2, s%d" % (sT0, sW1), "s_cmp_lg_u32 s%d, 0" % sT0],
                 [I("buffer_store_dword v%d, v%d, %s, 0 offen sc1" % (A_ONE, A_ZERO, srd(SDBG)))])
        P.append(W(lg="all"))
    xstages(P, {3: after3})
    a("s_barrier")
    P.append(W(vm=["wphi"]))
    for hh in range(1 + ty):
        for j in range(4): a("v_lshl_or_b32 v%d, v%d, 16, v%d" % (A_WP + 4 * hh + j, A_RAW + 8 * hh + 2 * j + 1, A_RAW + 8 * hh + 2 * j))
        for j in range(4): a("v_xor_b32 v%d, v%d, v%d" % (A_WP + 4 * hh + j, A_WP + 4 * hh + j, A_SGN))
    WK = A_WP + 4 * ty
    count_wait(P, A_FL, A_FV, F_EX, 4)
    stamp(11)
    T = A_T
    a("v_and_b32 v%d, 31, v1" % T); a("v_lshlrev_b32 v%d, 2, v%d" % (T, T)); a("v_add_u32 v%d, %d, v%d" % (T, LRS, T))
    for u in range(4): a("ds_read_b32 v%d, v%d offset:%d" % (A_R + u, T, u * 128))
    a("v_lshrrev_b32 v%d, 4, v1" % (T + 1)); a("v_lshlrev_b32 v%d, 4, v%d" % (T + 1, T + 1)); a("v_add_u32 v%d, %d, v%d" % (T + 1, LSD, T + 1))
    for u in range(4): a("ds_read_b128 %s, v%d offset:%d" % (v(A_SD + 4 * u, 4), T + 1, u * 64))
    if ty == 0:
        a("v_lshlrev_b32 v%d, 3, v1" % (T + 2)); a("v_add_u32 v%d, %d, v%d" % (T + 3, LRS, T + 2)); a("ds_read_b64 %s, v%d" % (v(T + 4, 2), T + 3))
    P.append(W(lg="all"))
    for u in range(4): a("v_mul_f32 v%d, s%d, v%d" % (A_R + 4 + u, sL2E, A_R + u))
    if ty == 0:
        only(P, ["s_add_u32 s%d, s%d, s%d" % (sT0, sGR, sW1), "s_cmp_lg_u32 s%d, 0" % sT0],
             [I("s_lshl_b32 s%d, s%d, 9" % (sT0, sI)), I("s_add_u32 s%d, s%d, %d" % (sT0, sT0, WS_RS)),
              I("buffer_store_dwordx2 %s, v%d, %s, s%d offen sc1" % (v(T + 4, 2), T + 2, srd(SWS), sT0))])
    a("buffer_load_dword v%d, v%d, %s, 0 offen sc1" % (A_POLL, A_ZERO, srd(SDBG)), "pollinit")
    B = []; b = lambda t, tag=None: B.append(I(t, tag))
    for u in range(4): b("ds_read_b128 %s, v%d offset:%d" % (v(A_KF + 4 * u, 4), A_RK, u * 8192), "kf")
    B.append(W(lg=["kf"]))
    PM = (T, T + 16); RR = (T + 32, T + 36)
    def tail(u):
        X = []; x = lambda t, tag=None: X.append(I(t, tag))
        PHI = A_PHI + 8 * (u & 1); FR = A_PHI + 16 + 12 * (u & 1); so = (u & 1) * 16384
        for sg in range(2): x("ds_write_b128 v%d, %s offset:%d" % (A_RK, v(PHI + 4 * sg, 4), so + sg * 8192))
        for q in range(2): x("ds_read_b64_tr_b16 %s, v%d offset:%d" % (v(FR + 2 * q, 2), A_RV, u * 8192 + 1024 + q * 64), ("pr", u))
        for sg in range(2):
            for q in range(2): x("ds_read_b64_tr_b16 %s, v%d offset:%d" % (v(FR + 4 + 4 * sg + 2 * q, 2), A_RV, so + sg * 8192 + q * 64), ("pr", u))
        return X
    def kvm(us):
        X = [W(lg=[("pr", us[-1])])]
        for u in us:
            FR = A_PHI + 16 + 12 * (u & 1)
            for sg in range(2):
                c = v(A_ACC + 4 * sg, 4); z = v(A_ACC + 8 + 4 * sg, 4)
                X.append(I("v_mfma_f32_16x16x32_bf16 %s, %s, %s, %s" % (c, v(FR + 4 + 4 * sg, 4), v(FR, 4), "0" if u == 0 else c)))
                X.append(I("v_mfma_f32_16x16x32_bf16 %s, %s, %s, %s" % (z, v(FR + 4 + 4 * sg, 4), v(A_SD + 4 * u, 4), "0" if u == 0 else z)))
        return X
    for pr in range(2):
        z = zipper(softmax_unit(WK, A_KF + 8 * pr, 2 * pr, A_PHI, PM[0], RR[0], True), softmax_unit(WK, A_KF + 8 * pr + 4, 2 * pr + 1, A_PHI + 8, PM[1], RR[1], True))
        if pr == 1: z = z[:2] + kvm((0, 1)) + z[2:]
        B += z + tail(2 * pr) + tail(2 * pr + 1)
    b("v_and_b32 v%d, 15, v1" % T); b("v_cmp_eq_u32 vcc, 1, v%d" % T)
    if ty == 0: one_lane(B, "ds_add_u32 v%d, v%d offset:%d" % (A_FL, A_ONE, F_EXF))
    B += kvm((2, 3))
    for j in range(4): b("v_cvt_pk_bf16_f32 v%d, v%d, v%d" % (A_ACC + j, A_ACC + 2 * j, A_ACC + 2 * j + 1))
    for j in range(4): b("v_cndmask_b32 v%d, v%d, v%d, vcc" % (A_ACC + 8 + j, A_ACC + 8 + j, A_ACC + 12 + j))
    b("buffer_store_dwordx4 %s, v%d, %s, 0 offen sc1" % (v(A_ACC, 4), A_ST, srd(SWS)), "part")
    b("s_mov_b32 exec_lo, 0x00030003"); b("s_mov_b32 exec_hi, 0x00030003")
    b("buffer_store_dwordx4 %s, v%d, %s, 0 offen sc1" % (v(A_ACC + 8, 4), A_ZA, srd(SWS)), "part"); b("s_mov_b64 exec, -1")
    P += mprio(B)
    stamp(12)
    def publish_k():
        gate(P, A_ZERO, SDBG, 0, "pollinit", A_POLL, 1)
        P.append(W(vm=["part"])); signal(A_CK, 0)
        lb = newlbl()
        only(P, ["s_cmp_lg_u32 s%d, 0" % sW1],
             [I("s_mov_b64 exec, 1"), I("ds_add_rtn_u32 v%d, v%d, v%d offset:%d" % (A_FV, A_FL, A_ONE, F_H)), W(lg="all"),
              I("v_readfirstlane_b32 s%d, v%d" % (sT5, A_FV)), I("s_cmp_lg_u32 s%d, 4" % sT5), I("s_cbranch_scc1 L_hh%d" % lb),
              I("buffer_atomic_add v%d, v%d, %s, 0 offen offset:%d sc1" % (A_ONE, A_CM, srd(SWS), (C_H1B if ty else C_H1A) * 256)),
              L("L_hh%d:" % lb), I("s_mov_b64 exec, -1")])
        stamp(13)
    if ty == 0: publish_k()
    else:
        count_wait(P, A_FL, A_FV, F_EX + 4, 4)
        QF = A_LD
        for hh in range(2):
            for u in range(4): a("ds_read_b128 %s, v%d offset:%d" % (v(QF + 16 * hh + 4 * u, 4), A_RK, u * 8192 + 4096 + hh * 1024), "qf")
        one_lane(P, "ds_add_u32 v%d, v%d offset:%d" % (A_FL, A_ONE, F_EXF))
        P.append(W(lg=["qf"]))
        def qpair(hh, pr):
            return mprio(zipper(softmax_unit(A_WP + 4 * hh, QF + 16 * hh + 8 * pr, 2 * pr, A_PQ + 32 * hh + 16 * pr, PM[0], RR[0], False),
                                softmax_unit(A_WP + 4 * hh, QF + 16 * hh + 8 * pr + 4, 2 * pr + 1, A_PQ + 32 * hh + 16 * pr + 8, PM[1], RR[1], False)))
        z = qpair(0, 0); P += z[:100]; publish_k(); P += z[100:]
        P += qpair(0, 1)
        z = qpair(1, 0); P += z[:100]
        for hh in range(2): a("buffer_load_dword v%d, v%d, %s, 0 offen offset:%d sc1" % (A_POLL + hh, A_CQ, srd(SWS), 512 * hh), ("pollkv", hh))
        P += z[100:]
        Z = (A_ACC, A_ACC + 8); KVA = (A_WP, A_R)
        free0 = list(range(A_LD, A_LD + 24, 4)) + list(range(A_LD + 32, A_LD + 64, 4)) + [A_KF, A_KF + 4]
        free1 = list(range(A_LD, A_LD + 64, 4))
        def loads(hh, dst):
            gate(P, A_CQ, SWS, 512 * hh, ("pollkv", hh), A_POLL + hh, 16)
            a("s_movk_i32 s%d, %d" % (sT4, 4096 * hh))
            a("buffer_load_dwordx4 %s, v%d, %s, s%d offen sc1" % (v(Z[hh], 4), A_ZL, srd(SWS), sT4), ("zl", hh))
            a("buffer_load_dwordx4 %s, v%d, %s, s%d offen offset:64 sc1" % (v(Z[hh] + 4, 4), A_ZL, srd(SWS), sT4), ("zl", hh))
            for m in range(16):
                if m % 4 == 0:
                    a("s_add_u32 s%d, s%d, %d" % (sT5, sI, m // 4)); a("s_and_b32 s%d, s%d, 3" % (sT5, sT5)); a("s_lshl_b32 s%d, s%d, 12" % (sT5, sT5))
                    if hh: a("s_add_u32 s%d, s%d, 32768" % (sT5, sT5))
                if CFG["awin"] >= 0: a("s_waitcnt vmcnt(%d)" % CFG["awin"])
                a("buffer_load_dwordx4 %s, v%d, %s, s%d offen offset:%d sc1" % (v(dst[m], 4), A_PL, srd(SWS), sT5, (m & 3) * 1024), ("pl", hh, m))
        S = A_KF + 8
        def reduce_(hh, src):
            B = []; b = lambda t, tag=None: B.append(I(t, tag))
            for m in range(16):
                if m % 4 == 0: B.append(W(vm=[("pl", hh, m + 3)]))
                for sg in range(2):
                    c = v(S + 4 * sg, 4)
                    b("v_mfma_f32_4x4x4_16b_bf16 %s, %s, %s, %s" % (c, v(A_ID, 2), v(src[m] + 2 * sg, 2), "0" if m == 0 else c))
            P.extend(mprio(B + [I("s_nop 0")]))
        def finish(hh):
            B = []; b = lambda t, tag=None: B.append(I(t, tag))
            for k in (8, 4, 2, 1):
                for j in range(8): b("v_add_f32_dpp v%d, v%d, v%d row_ror:%d row_mask:0xf bank_mask:0xf" % (Z[hh] + j, Z[hh] + j, Z[hh] + j, k))
            KV = KVA[hh]; PQ = A_PQ + 32 * hh
            for sg in range(2):
                for j in range(2): b("v_cvt_pk_bf16_f32 v%d, v%d, v%d" % (KV + 4 * sg + 2 + j, Z[hh] + 4 * sg + 2 * j, Z[hh] + 4 * sg + 2 * j + 1))
            for sg in range(2):
                for j in range(2): b("v_cvt_pk_bf16_f32 v%d, v%d, v%d" % (KV + 4 * sg + j, S + 4 * sg + 2 * j, S + 4 * sg + 2 * j + 1))
            for w in ("16", "32"):
                for sg in range(2):
                    for j in range(2): b("v_permlane%s_swap_b32 v%d, v%d" % (w, KV + 4 * sg + j, KV + 4 * sg + 2 + j))
            for pr in range(2):
                for u in (2 * pr, 2 * pr + 1):
                    N = v(T + 16 * (u & 1), 16)
                    b("v_mfma_f32_32x32x16_bf16 %s, %s, %s, 0" % (N, v(KV, 4), v(PQ + 8 * u, 4)))
                    b("v_mfma_f32_32x32x16_bf16 %s, %s, %s, %s" % (N, v(KV + 4, 4), v(PQ + 8 * u + 4, 4), N))
                for u in range(2): b("v_add_f32 v%d, 0x358637bd, v%d" % (T + 16 * u + 8, T + 16 * u + 8))
                for u in range(2): b("v_rcp_f32 v%d, v%d" % (T + 16 * u + 8, T + 16 * u + 8))
                for u in (2 * pr, 2 * pr + 1):
                    N = T + 16 * (u & 1); O = PQ + 8 * u
                    for j in range(8): b("v_mul_f32 v%d, v%d, v%d" % (N + j, N + j, N + 8))
                    for j in range(4): b("v_cvt_pk_bf16_f32 v%d, v%d, v%d" % (O + j, N + 2 * j, N + 2 * j + 1))
                    b("s_mov_b32 s%d, %d" % (sT5, u * 147456))
                    b("buffer_store_dwordx4 %s, v%d, %s, s%d offen offset:%d sc1" % (v(O, 4), A_OS, srd(SWS), sT5, 2048 * hh), "ost")
            P.extend(mprio(B))
        stamp(14)
        loads(0, free0)
        stamp(15)
        P += qpair(1, 1)
        reduce_(0, free0); loads(1, free1); finish(0); reduce_(1, free1); finish(1)
        stamp(16)
        P.append(W(vm=["ost"])); signal(A_CM, C_O * 256)
        stamp(17)
    if CFG["stamps"]:
        a("s_lshl_b32 s%d, s2, 8" % sT0); a("s_add_u32 s%d, s%d, %d" % (sT0, sT0, WS_ST + 0x30000))
        a("v_lshlrev_b32 v64, 2, v1")
        a("s_cmp_lg_u32 s%d, %d" % (sW1, CFG["stampw"] & 1)); a("s_cbranch_scc1 L_exit")
        a("buffer_store_dword v34, v64, %s, s%d offen" % (srd(SWS), sT0))
    a("s_endpgm")
    return P

def main():
    hdr = open("cdna_kernels/%s.s.ref" % NAME).read().split("; Override launch geometry")[0]
    out = [hdr.rstrip(), "; @launch grid=(256,1,1) block=(512,1,1) lds=163840",
           '.amdgcn_target "amdgcn-amd-amdhsa--gfx950"', ".text", ".globl %s_kernel" % NAME, ".p2align 8",
           ".type %s_kernel,@function" % NAME, "%s_kernel:" % NAME]
    t, st = finalize(prologue()); out += t
    for nm, fn in (("attn", attn_wave), ("dma", dma_wave), ("comp", compute)):
        out.append("L_%s:" % nm)
        out += finalize([I("s_cmp_eq_u32 s%d, 1" % sTY), I("s_cbranch_scc1 L_%s1" % nm)] + fn(0), st.clone())[0]
        out.append("L_%s1:" % nm); out += finalize(fn(1), st.clone())[0]
    out += STUBS
    out += lds_spin("c", C_FL, F_LAND, 2, C_FV, CFG["cnap"]) + lds_spin("d", D_FL, F_DONE, 4, D_DV, 1)
    out += ["L_exit:", "    s_endpgm", '.section .rodata,"a"', ".p2align 6", ".amdhsa_kernel %s_kernel" % NAME,
            "  .amdhsa_next_free_vgpr 256", "  .amdhsa_next_free_sgpr 100", "  .amdhsa_accum_offset 256",
            "  .amdhsa_group_segment_fixed_size 0", "  .amdhsa_kernarg_size 88", "  .amdhsa_user_sgpr_count 2",
            "  .amdhsa_user_sgpr_kernarg_segment_ptr 1", "  .amdhsa_system_sgpr_workgroup_id_x 1", ".end_amdhsa_kernel"]
    open(sys.argv[1], "w").write("\n".join(out) + "\n")
main()
```

```python
import sys, os, json
sys.path.insert(0, os.path.dirname(os.path.abspath(__file__)))
from asmir import I, W, L, M, v, s, finalize, State

NAME = "recurrent_scan__linear_kernel_hedgehog__glu_gated_bilinear__prompt"
CFG = dict(stamps=0, probe=0, xprobe=0, outfl="", stampw=0, zoom=0, LA=6, LAF=5, erate=3, codepf=1, sleep=2, cnap=1, map=84, map2=84, h2now=1, chk2=1,
           cap1=128, cap2=128, capsw=36, awin=-1, pollat=2, hwait1=24, hwait2=0, nb0=28, nb1=32, ahead2=4,
           bfirst=6, p2chk=1,
           tplan0={"1": "g0", "7": "g1 o", "10": "d0 d1", "14": "d2 d3"},
           tplan1={"1": "q g0", "9": "d0 d1", "12": "g1 o", "15": "d2 d3"})
for a_ in sys.argv[2:]:
    k_, x_ = a_.split("="); assert k_ in CFG, k_; CFG[k_] = json.loads(x_)

WS_RS = 0x8000
WS_KV = 0x10000
WS_Z = 0x120000
WS_ST = 0x140000
WS_HO = 0x200000
WS_BYTES = WS_HO + 64 * 144 * 1024
C_H1A, C_H1B, C_H2, C_O = 0, 1, 2, 3
SLOT = 16384; STG = 32768; EX = 131072; FL = 7 * SLOT; LRS = FL + 1024; LSD = LRS + 512
F_LAND, F_DONE, F_EX, F_RS, F_H, F_EXF, F_END = 0, 16, 32, 40, 44, 52, 56
SX, SQKV, SPHI, SWO, SG, SU, SWD, SOUT, SDBG, SWS = 8, 12, 16, 20, 24, 28, 32, 36, 40, 44
sW, sW1, sI, sGR, sTY, sR1, sXR, sTT, sCT, sR2 = range(56, 66)
sT0, sT1, sT2, sT3, sT4, sT5 = range(66, 72)
sL2E = 72; sKC = 73; sSH = 74; sXL = 75; sKS = 76; sLA = 78; sXB = 79
sSPIN = 80; sRET = 82; sPH = 84; sTM = 90; sMK = 94
srd = lambda b: s(b, 4)
LOG2E = 0x3fb8aa3b
XR = 128; ACC = 64; WF = 32
L_T, L_SEL, L_ID, L_SM, L_CM, L_SQ = 192, 224, 228, 232, 236, 240
L_XO, L_RR, L_C, L_SB, L_C7, L_WA, L_VA, L_VB = 124, 245, 246, 247, 248, 249, 251, 252
L_TR = 244
K_SQ, K_DL, K_RA = 16, 20, 24
H_STAMP = 255; H_STAMP2 = 254
_lbl = [0]
def newlbl():
    _lbl[0] += 1; return _lbl[0]
STUBS = []

PH = {0: [("P2", "kv", (0, 1)), ("P4", "gu", (2, 3, 0, 1)), ("P4", "gu", (0, 1, 2, 3))],
      1: [("P2", "kv", (0, 1)), ("P2", "q", (2, 3)), ("P4", "gu", (0, 1, 2, 3)), ("P2", "gu", (0, 1))]}
def slabs_of(ty):
    return [(pi, k, sg) for pi, (k, e, _) in enumerate(PH[ty]) for sg in range(8 if k == "P4" else 4)]
def slot_of(n):
    return n % 7 if n < 20 else (6, 0, 1, 2, 8, 9, 3, 4, 5)[(n - 20) % 9]
def prev_user(n):
    p = [m for m in range(n) if slot_of(m) == slot_of(n)]
    return p[-1] if p else -1
def checks(ty):
    c = {1: 1}
    for n in range(2, CFG["nb%d" % ty], 2):
        if (CFG["chk2"] if n < 20 else CFG["p2chk"] == 2): c[n] = n + 1
        else: c[n] = n; c[n + 1] = n + 1
    return c

def stamp_to(P, k, reg=H_STAMP):
    if CFG["stamps"]:
        P.append(I("s_memtime %s" % s(sTM + 2, 2))); P.append(W(lg="all"))
        P.append(I("s_sub_u32 s%d, s%d, s%d" % (sTM + 2, sTM + 2, sTM))); P.append(I("v_writelane_b32 v%d, s%d, %d" % (reg, sTM + 2, k)))
def raw(P, items):
    for x in finalize(items)[0]: P.append(L(x))
def only(P, cond, items):
    n = newlbl()
    for t in cond: P.append(I(t))
    P.append(I("s_cbranch_scc1 L_sk%d" % n)); raw(P, items); P.append(L("L_sk%d:" % n))
def one_lane(X, t, tag=None):
    X.append(I("s_mov_b64 exec, 1")); X.append(I(t, tag)); X.append(I("s_mov_b64 exec, -1"))

def p4_voffs(a, va, vb, stride, t):
    a("v_lshrrev_b32 v%d, 3, v1" % t)
    a("v_and_b32 v%d, 2, v%d" % (t + 1, t)); a("v_lshlrev_b32 v%d, 1, v%d" % (t + 1, t + 1))
    a("v_and_b32 v%d, 7, v1" % (t + 2)); a("v_xor_b32 v%d, v%d, v%d" % (t + 2, t + 2, t + 1))
    a("v_mul_u32_u24 v%d, %d, v%d" % (t, stride, t))
    a("v_lshl_add_u32 v%d, v%d, 4, v%d" % (va, t + 2, t))
    a("v_xor_b32 v%d, 32, v%d" % (vb, va))
def p2_voffs(a, va, vb, stride, t):
    a("v_lshrrev_b32 v%d, 2, v1" % t)
    a("v_and_b32 v%d, 3, v1" % (t + 2))
    a("v_mul_u32_u24 v%d, %d, v%d" % (t, stride, t))
    a("v_lshl_add_u32 v%d, v%d, 4, v%d" % (va, t + 2, t))
    a("v_xor_b32 v%d, 32, v%d" % (vb, va))
def ident(a, dst, t):
    a("v_and_b32 v%d, 3, v1" % t)
    a("v_and_b32 v%d, 1, v1" % (t + 1)); a("v_lshlrev_b32 v%d, 4, v%d" % (t + 1, t + 1)); a("v_mov_b32 v%d, 0x3f80" % (t + 2))
    a("v_lshlrev_b32 v%d, v%d, v%d" % (t + 1, t + 1, t + 2))
    a("v_cmp_gt_u32 vcc, 2, v%d" % t)
    a("v_cndmask_b32 v%d, 0, v%d, vcc" % (dst, t + 1)); a("v_sub_u32 v%d, v%d, v%d" % (dst + 1, t + 1, dst))

X_V = 48
def prologue():
    P = []; a = lambda t, tag=None: P.append(I(t, tag))
    a("s_cmp_ge_u32 s2, 256")
    a("s_cbranch_scc1 L_exit")
    a("s_load_dwordx2 %s, s[0:1], 0" % s(SX, 2)); a("s_load_dwordx2 %s, s[0:1], 8" % s(SQKV, 2))
    if CFG["probe"]: a("s_memrealtime s[4:5]")
    if CFG["stamps"]:
        a("s_memtime %s" % s(sTM, 2)); a("s_memrealtime s[4:5]")
    a("s_lshr_b32 s%d, s2, 3" % sSH)
    if CFG["codepf"]:
        a("s_getpc_b64 s[6:7]"); P.append(L("L_pc:"))
        a("s_mul_i32 s%d, s%d, 24" % (sT0, sSH))
        a("v_add_u32 v3, s%d, v0" % sT0); a("v_lshlrev_b32 v3, 7, v3"); a("v_min_u32 v3, L_exit-L_pc, v3")
        a("v_cmp_gt_u32 vcc, 24, v0"); a("s_and_saveexec_b64 s[48:49], vcc"); a("s_cbranch_execz L_nopf")
        P.append(L("    global_load_dword v%d, v3, s[6:7]" % (X_V + 5)))
        P.append(L("L_nopf:")); a("s_mov_b64 exec, -1")
    a("v_lshrrev_b32 v2, 6, v0")
    a("v_and_b32 v1, 63, v0")
    a("v_readfirstlane_b32 s%d, v2" % sW)
    a("s_and_b32 s%d, s2, 7" % sT5)
    a("s_lshr_b32 s%d, s%d, 4" % (sTY, sSH))
    if CFG["map"] == 48:
        a("s_and_b32 s%d, s%d, 3" % (sT3, sSH)); a("s_lshl_b32 s%d, s%d, 1" % (sXR, sT3))
        a("s_lshr_b32 s%d, s%d, 1" % (sT2, sT5)); a("s_lshl_b32 s%d, s%d, 2" % (sT2, sT2)); a("s_add_u32 s%d, s%d, s%d" % (sI, sT2, sT3))
        a("s_lshr_b32 s%d, s%d, 2" % (sR1, sSH))
        a("s_and_b32 s%d, s%d, 1" % (sT2, sT5)); a("s_lshl_b32 s%d, s%d, 2" % (sT2, sT2)); a("s_and_b32 s%d, s%d, 3" % (sT3, sR1)); a("s_add_u32 s%d, s%d, s%d" % (sGR, sT2, sT3))
    else:
        a("s_and_b32 s%d, s%d, 7" % (sXR, sSH))
        a("s_lshr_b32 s%d, s%d, 2" % (sT2, sT5)); a("s_lshl_b32 s%d, s%d, 3" % (sT2, sT2)); a("s_add_u32 s%d, s%d, s%d" % (sI, sT2, sXR))
        a("s_lshr_b32 s%d, s%d, 3" % (sT3, sSH)); a("s_lshl_b32 s%d, s%d, 1" % (sR1, sT3))
        a("s_and_b32 s%d, s%d, 3" % (sT2, sT5)); a("s_lshl_b32 s%d, s%d, 1" % (sT2, sT2)); a("s_and_b32 s%d, s%d, 1" % (sT3, sT3)); a("s_add_u32 s%d, s%d, s%d" % (sGR, sT2, sT3))
    a("s_mov_b32 s%d, 2097152" % (SX + 2)); a("s_mov_b32 s%d, 0x20000" % (SX + 3))
    X = []; x = lambda t, tag=None: X.append(I(t, tag))
    x("v_lshrrev_b32 v4, 3, v1"); x("v_lshrrev_b32 v5, 4, v1"); x("v_and_b32 v6, 7, v1"); x("v_xor_b32 v5, v5, v6")
    x("v_lshlrev_b32 v4, 10, v4"); x("v_lshl_add_u32 v%d, v5, 4, v4" % X_V)
    x("v_xor_b32 v4, 64, v%d" % X_V)
    x("v_add_u32 v%d, 7168, v4" % (X_V + 1)); x("v_add_u32 v%d, 14336, v%d" % (X_V + 2, X_V)); x("v_add_u32 v%d, 21504, v4" % (X_V + 3))
    x("s_and_b32 s%d, s%d, 3" % (sT0, sW)); x("s_lshl_b32 s%d, s%d, 12" % (sXL, sT0)); x("s_add_u32 s%d, s%d, %d" % (sXL, sXL, STG))
    x("s_lshl_b32 s%d, s%d, 15" % (sT0, sT0)); x("s_lshl_b32 s%d, s%d, 17" % (sXB, sI)); x("s_add_u32 s%d, s%d, s%d" % (sXB, sXB, sT0))
    x("s_cmp_lt_u32 s%d, 4" % sW); x("s_cbranch_scc1 L_nox")
    x("s_waitcnt lgkmcnt(0)")
    xline(x, 0); xline(x, 1)
    raw(P, X); P.append(L("L_nox:"))
    if CFG["stamps"]:
        a("v_mov_b32 v%d, 0" % H_STAMP); a("v_mov_b32 v%d, 0" % H_STAMP2); P.append(W(lg="all"))
    stamp_to(P, 0, H_STAMP2)
    for b, off in ((SPHI, 16), (SWS, 80), (SG, 40), (SU, 48), (SWO, 24), (SWD, 56), (SOUT, 64), (SDBG, 72)):
        a("s_load_dwordx2 %s, s[0:1], %d" % (s(b, 2), off))
    for b, n in ((SQKV, 1572864), (SPHI, 16384), (SWO, 524288), (SG, 1835008), (SU, 1835008), (SWD, 1835008), (SOUT, 2097152), (SDBG, 256), (SWS, WS_BYTES)):
        a("s_mov_b32 s%d, %d" % (b + 2, n)); a("s_mov_b32 s%d, 0x20000" % (b + 3))
    a("s_lshl_b32 s%d, s%d, 7" % (sKC, sGR)); a("s_lshl_b32 s%d, s%d, 6" % (sT0, sTY)); a("s_add_u32 s%d, s%d, s%d" % (sKC, sKC, sT0)); a("s_add_u32 s%d, s%d, 1024" % (sKC, sKC))
    if CFG["map2"] == 48:
        a("s_lshr_b32 s%d, s%d, 2" % (sCT, sSH)); a("s_and_b32 s%d, s%d, 3" % (sT3, sSH))
        a("s_lshl_b32 s%d, s%d, 2" % (sT2, sT5)); a("s_add_u32 s%d, s%d, s%d" % (sTT, sT2, sT3))
        a("s_lshl_b32 s%d, s%d, 1" % (sT3, sT3)); a("s_add_u32 s%d, s%d, s%d" % (sR2, sT3, sCT))
    else:
        a("s_lshr_b32 s%d, s%d, 3" % (sT3, sSH)); a("s_and_b32 s%d, s%d, 1" % (sT2, sT5)); a("s_lshl_b32 s%d, s%d, 2" % (sT2, sT2)); a("s_add_u32 s%d, s%d, s%d" % (sCT, sT2, sT3))
        a("s_and_b32 s%d, s%d, 7" % (sT1, sSH)); a("s_lshr_b32 s%d, s%d, 1" % (sT2, sT5)); a("s_lshl_b32 s%d, s%d, 3" % (sT2, sT2)); a("s_add_u32 s%d, s%d, s%d" % (sTT, sT2, sT1))
        a("s_lshl_b32 s%d, s%d, 1" % (sT3, sT3)); a("s_add_u32 s%d, s%d, s%d" % (sR2, sT3, sT1))
    a("s_and_b32 s%d, s%d, 1" % (sW1, sW))
    a("s_mov_b32 s%d, 0x%x" % (sL2E, LOG2E))
    P.append(W(lg="all"))
    a("s_cmp_lt_u32 s%d, 4" % sW); a("s_cbranch_scc1 L_comp")
    a("s_cmp_lt_u32 s%d, 6" % sW); a("s_cbranch_scc1 L_dma")
    return P

def xline(a, j):
    a("s_add_u32 s%d, s%d, %d" % (sT0, sR1, j)); a("s_and_b32 s%d, s%d, 7" % (sT0, sT0)); a("s_lshl_b32 s%d, s%d, 7" % (sT0, sT0)); a("s_add_u32 s%d, s%d, s%d" % (sT0, sT0, sXB))
    a("s_add_u32 m0, s%d, %d" % (sXL, j * 16384))
    for p in range(4): a("buffer_load_dwordx4 v%d, %s, s%d offen offset:%d lds" % (X_V + p, srd(SX), sT0, p * 1024), ("x", j))
def xstages(P, extra):
    a = lambda t, tag=None: P.append(I(t, tag))
    xline(a, 2); xline(a, 3)
    for j in range(4):
        P.append(W(vm=[("x", 2 * j + 1)]))
        a("s_barrier")
        if j == 0: stamp_to(P, 2, H_STAMP2)
        if j < 2: xline(a, 2 * j + 4); xline(a, 2 * j + 5)
        if j in extra: extra[j]()

def fcols(a, ty):
    if ty == 0:
        a("s_lshl_b32 s%d, s%d, 7" % (sKS, sGR)); a("s_add_u32 s%d, s%d, 64" % (sKS + 1, sKS))
    else:
        a("s_mul_i32 s%d, s%d, 96" % (sT0, sGR)); a("s_add_u32 s%d, s%d, 1024" % (sT0, sT0))
        a("s_and_b32 s%d, s%d, 1" % (sT1, sGR)); a("s_lshl_b32 s%d, s%d, 5" % (sT2, sT1))
        a("s_add_u32 s%d, s%d, s%d" % (sKS, sT0, sT2))
        a("s_xor_b32 s%d, s%d, 1" % (sT1, sT1)); a("s_lshl_b32 s%d, s%d, 6" % (sT1, sT1))
        a("s_add_u32 s%d, s%d, s%d" % (sKS + 1, sT0, sT1))

def clear_low(a, used):
    for k in range(2, 64):
        if k not in used: a("v_mov_b32 v%d, 0" % k)

def lds_spin(nm, vfl, off, nw, vd, nap):
    rd = {1: "ds_read_b32 v%d" % vd, 2: "ds_read_b64 %s" % v(vd, 2), 4: "ds_read_b128 %s" % v(vd, 4)}[nw]
    X = ["L_spin_%s:" % nm, "    s_mov_b32 s%d, 0" % sSPIN, "L_spl_%s:" % nm]
    if nap: X.append("    s_sleep %d" % nap)
    X += ["    %s, v%d offset:%d" % (rd, vfl, off), "    s_add_u32 s%d, s%d, 1" % (sSPIN, sSPIN), "    s_waitcnt lgkmcnt(0)"]
    if nw == 4: X.append("    v_min3_u32 v%d, v%d, v%d, v%d" % (vd, vd, vd + 2, vd + 3))
    if nw >= 2: X.append("    v_min_u32 v%d, v%d, v%d" % (vd, vd, vd + 1))
    X += ["    s_cmp_ge_u32 s%d, 0x1000000" % sSPIN, "    s_cbranch_scc1 L_spr_%s" % nm,
          "    v_cmp_gt_u32 vcc, s%d, v%d" % (sSPIN + 1, vd), "    s_cbranch_vccnz L_spl_%s" % nm, "L_spr_%s:" % nm, "    s_setpc_b64 %s" % s(sRET, 2)]
    return X
def count_wait(P, vfl, vd, off, want):
    n = newlbl()
    P.append(W(lg="all"))
    for t in ["    s_mov_b32 s%d, 0" % sSPIN, "L_cw%d:" % n, "    ds_read_b32 v%d, v%d offset:%d" % (vd, vfl, off), "    s_add_u32 s%d, s%d, 1" % (sSPIN, sSPIN),
              "    s_waitcnt lgkmcnt(0)", "    v_cmp_le_u32 vcc, %d, v%d" % (want, vd), "    s_cbranch_vccnz L_cx%d" % n, "    s_sleep 1",
              "    s_cmp_lt_u32 s%d, 0x1000000" % sSPIN, "    s_cbranch_scc1 L_cw%d" % n, "L_cx%d:" % n]: P.append(L(t))

def gate(P, vaddr, srdb, off, tag, vdst, want, slow=None):
    n = newlbl()
    P.append(W(vm=[tag]))
    P.append(I("v_cmp_eq_u32 vcc, %d, v%d" % (want, vdst)))
    P.append(I("s_cbranch_vccnz L_ok%d" % n))
    if slow: raw(P, slow)
    X = ["    s_mov_b32 s%d, 0" % sSPIN, "L_spin%d:" % n]
    if CFG["sleep"]: X.append("    s_sleep %d" % CFG["sleep"])
    X += ["    buffer_load_dword v%d, v%d, %s, 0 offen offset:%d sc1" % (vdst, vaddr, srd(srdb), off), "    s_add_u32 s%d, s%d, 1" % (sSPIN, sSPIN),
          "    s_waitcnt vmcnt(0)", "    v_cmp_eq_u32 vcc, %d, v%d" % (want, vdst), "    s_cbranch_vccnz L_ok%d" % n,
          "    s_cmp_lt_u32 s%d, 0x80000" % sSPIN, "    s_cbranch_scc1 L_spin%d" % n, "L_ok%d:" % n]
    for t in X: P.append(L(t))

C_XA = ACC + 16
N_ONES = ACC + 24
N_T, N_CM, N_SQ, N_ID, N_DL, N_TK = ACC + 32, ACC + 48, ACC + 52, ACC + 60, ACC + 62, ACC + 63
C_A2, C_B2, C_OUT, C_RO = 25, 28, 31, 0
C_FV, C_HC, C_FL, C_ONE, C_DV, C_CM = 16, 20, 21, 22, 23, 24
def compute_setup(ty):
    P = []; a = lambda t, tag=None: P.append(I(t, tag))
    t = list(range(32, 48))
    tok, hi, r, c, mat = t[0:5]
    a("v_and_b32 v%d, 31, v1" % tok); a("v_lshrrev_b32 v%d, 5, v1" % hi)
    a("s_lshl_b32 s%d, s%d, 12" % (sT1, sW)); a("s_add_u32 s%d, s%d, %d" % (sT1, sT1, STG))
    a("v_lshlrev_b32 v%d, 7, v%d" % (t[5], tok)); a("v_add_u32 v%d, s%d, v%d" % (t[5], sT1, t[5]))
    a("v_bfe_u32 v%d, v1, 1, 3" % t[6]); a("v_xor_b32 v%d, v%d, v%d" % (t[6], t[6], hi))
    for k in range(4):
        a("v_xor_b32 v%d, %d, v%d" % (C_XA + k, 2 * k, t[6])); a("v_lshl_add_u32 v%d, v%d, 4, v%d" % (C_XA + k, C_XA + k, t[5]))
        a("v_add_u32 v%d, 0x10000, v%d" % (C_XA + 4 + k, C_XA + k))
    for k in range(4): a("v_mov_b32 v%d, 0x3f803f80" % (N_ONES + k))
    ident(a, N_ID, t[13])
    for j in range(3): a("v_cmp_eq_u32 %s, %d, v%d" % (s(sMK + 2 * j, 2), j + 1, t[13]))
    a("v_mov_b32 v%d, %d" % (C_FL, FL)); a("v_mov_b32 v%d, 1" % C_ONE); a("s_lshl_b32 s%d, s%d, 10" % (sT4, sI)); a("v_mov_b32 v%d, s%d" % (C_CM, sT4))
    a("s_lshl_b32 s%d, s%d, 2" % (sT4, sW)); a("v_add_u32 v18, s%d, v%d" % (sT4, C_FL))
    a("s_lshl_b32 s%d, s%d, 5" % (sT4, sW)); a("v_add_u32 v%d, s%d, v%d" % (N_TK, sT4, tok))
    a("s_lshl_b32 s%d, s%d, 13" % (sT0, sW))
    a("v_bfe_u32 v%d, v1, 2, 2" % r); a("v_and_b32 v%d, 3, v1" % c); a("v_bfe_u32 v%d, v1, 4, 1" % mat)
    a("v_lshlrev_b32 v%d, 3, v%d" % (t[7], c)); a("v_lshl_add_u32 v%d, v%d, 10, v%d" % (t[7], mat, t[7]))
    a("v_lshl_add_u32 v%d, v%d, 11, v%d" % (t[8], hi, t[7])); a("v_lshl_add_u32 v%d, v%d, 7, v%d" % (t[8], r, t[8]))
    a("v_and_b32 v%d, 2, v%d" % (t[9], r)); a("v_xor_b32 v%d, v%d, v%d" % (t[9], t[9], mat))
    for k in range(4):
        a("v_xor_b32 v%d, %d, v%d" % (t[10], k, t[9])); a("v_lshl_add_u32 v%d, v%d, 5, v%d" % (2 + k, t[10], t[8])); a("v_add_u32 v%d, 0x10000, v%d" % (6 + k, 2 + k))
    a("v_lshl_add_u32 v%d, v%d, 9, v%d" % (t[8], hi, t[7])); a("v_lshl_add_u32 v%d, v%d, 6, v%d" % (t[8], r, t[8]))
    for k in range(2):
        a("v_xor_b32 v%d, %d, v%d" % (t[10], k, mat)); a("v_lshl_add_u32 v%d, v%d, 5, v%d" % (10 + k, t[10], t[8])); a("v_add_u32 v%d, 0x10000, v%d" % (12 + k, 10 + k))
    a("v_lshlrev_b32 v%d, 4, v1" % t[11])
    a("s_add_u32 s%d, s%d, %d" % (sT0, sT0, EX)); a("v_add_u32 v15, s%d, v%d" % (sT0, t[11]))
    a("s_lshl_b32 s%d, s%d, 2" % (sT0, sI)); a("s_add_u32 s%d, s%d, s%d" % (sT0, sT0, sW)); a("s_mul_i32 s%d, s%d, %d" % (sT0, sT0, 147456))
    a("s_add_u32 s%d, s%d, %d" % (sT0, sT0, WS_HO)); a("v_add_u32 v14, s%d, v%d" % (sT0, t[11]))
    fcols(a, ty)
    a("s_lshl_b32 s%d, s%d, 6" % (sKS, sKS)); a("s_lshl_b32 s%d, s%d, 6" % (sKS + 1, sKS + 1))
    a("s_lshr_b32 s%d, s%d, 1" % (sT0, sW))
    a("s_lshl_b32 s%d, s%d, 13" % (sT2, sT0)); a("s_add_u32 s%d, s%d, 2048" % (sT2, sT2))
    a("v_add_u32 v%d, s%d, v%d" % (C_A2, sT2, t[11])); a("v_add_u32 v%d, 0x10000, v%d" % (C_A2 + 1, C_A2)); a("v_add_u32 v%d, 0x20000, v%d" % (C_A2 + 2, C_A2))
    u = t[12]
    a("v_bfe_u32 v%d, v1, 3, 1" % u); a("v_xor_b32 v%d, s%d, v%d" % (u, sW1, u)); a("v_lshlrev_b32 v%d, 6, v%d" % (C_B2, u))
    a("v_lshl_add_u32 v%d, v%d, 7, v%d" % (C_B2, r, C_B2)); a("v_lshl_add_u32 v%d, v%d, 9, v%d" % (C_B2, hi, C_B2))
    a("v_and_b32 v%d, 1, v1" % u); a("v_lshl_add_u32 v%d, v%d, 5, v%d" % (C_B2, u, C_B2))
    a("v_lshl_add_u32 v%d, v%d, 4, v%d" % (C_B2, mat, C_B2))
    a("v_bfe_u32 v%d, v1, 1, 1" % u); a("v_lshl_add_u32 v%d, v%d, 3, v%d" % (C_B2, u, C_B2))
    a("v_add_u32 v%d, 0x10000, v%d" % (C_B2 + 1, C_B2)); a("v_add_u32 v%d, 0x20000, v%d" % (C_B2 + 2, C_B2))
    a("s_lshl_b32 s%d, s%d, 6" % (sT2, sTT)); a("s_lshl_b32 s%d, s%d, 5" % (sT3, sT0)); a("s_add_u32 s%d, s%d, s%d" % (sT2, sT2, sT3))
    a("v_add_u32 v%d, s%d, v%d" % (u, sT2, tok))
    a("v_lshlrev_b32 v%d, 2, v%d" % (C_RO, u)); a("v_add_u32 v%d, %d, v%d" % (C_RO, WS_RS, C_RO))
    a("s_lshl_b32 s%d, s%d, 7" % (sT3, sCT)); a("s_lshl_b32 s%d, s%d, 6" % (sT4, sW1)); a("s_add_u32 s%d, s%d, s%d" % (sT3, sT3, sT4))
    a("v_lshlrev_b32 v%d, 10, v%d" % (u, u)); a("v_lshl_add_u32 v%d, v%d, 5, v%d" % (u, hi, u)); a("v_add_u32 v%d, s%d, v%d" % (C_OUT, sT3, u))
    return P

def compute(ty):
    P = compute_setup(ty); a = lambda t, tag=None: P.append(I(t, tag))
    NB = CFG["nb%d" % ty]; CH = checks(ty)
    ops = []; queue = []
    sl = slabs_of(ty); gu_seen = 0; ex_seen = 0
    firstuse = {}; epi = []
    for n, (pi, kind, sg) in enumerate(sl):
        slot = slot_of(n); win = slot >> 2; base = (slot & 3) * SLOT
        e, tiles = PH[ty][pi][1:]
        order = tiles if sg == 0 else sorted(tiles)
        nk = 4 if kind == "P4" else 8
        last = sg == (7 if kind == "P4" else 3)
        seq = [(t, u) for t in order for u in range(nk)]
        for t, u in seq:
            if sg == 0 and u == 0: firstuse[(pi, t)] = len(ops)
            if True:
                m = len(ops); fb = WF + 4 * (m & 7)
                if kind == "P4": ar, off, dq, xs = 2 + 4 * win + t, base + u * 4096, 512, sg * 4 + u
                else: ar, off, dq, xs = 10 + 2 * win + (t & 1), base + u * 2048, 256, sg * 8 + u
                acc = v(ACC + 16 * t, 16)
                ops.append(dict(slab=n, reads=[("ds_read_b64_tr_b16 %s, v%d offset:%d" % (v(fb, 2), ar, off), ("f", m)),
                                               ("ds_read_b64_tr_b16 %s, v%d offset:%d" % (v(fb + 2, 2), ar, off + dq), ("f", m))],
                                waits=[("f", m)], la=CFG["LA"],
                                mfma="v_mfma_f32_32x32x16_bf16 %s, %s, %s, %s" % (acc, v(fb, 4), v(XR + 4 * xs, 4), "0" if (sg == 0 and u == 0) else acc)))
            if last and u == nk - 1:
                A = ACC + 16 * t; E = []
                if e == "gu":
                    for j in range(8): E.append(I("v_mul_f32 v%d, v%d, v%d" % (A + j, A + j, A + j + 8)))
                    for j in range(4): E.append(I("v_cvt_pk_bf16_f32 v%d, v%d, v%d" % (A + j, A + 2 * j, A + 2 * j + 1)))
                    E.append(I("buffer_store_dwordx4 %s, v14, %s, s%d offen offset:%d sc1" % (v(A, 4), srd(SWS), sKS + gu_seen, t * 1024), ("h", gu_seen)))
                else:
                    for j in range(4):
                        for k in (2 * j, 2 * j + 1): E.append(I("v_cvt_pk_bf16_f32 v%d, v%d, v%d" % (A + k, A + 2 * k, A + 2 * k + 1)))
                        E.append(I("ds_write_b64 v15, %s offset:%d" % (v(A + 2 * j, 2), t * 2048 + (j >> 1) * 1024 + (j & 1) * 8)))
                    if t == order[-1]:
                        g = []; one_lane(g, "ds_add_u32 v%d, v%d offset:%d" % (C_FL, C_ONE, F_EX + 4 * ex_seen)); E.append(g); ex_seen += 1
                epi.append((len(ops) + 1, pi, t, E))
        if last and e == "gu":
            lb = newlbl(); kind_ = (C_H1B if ty else C_H1A) if gu_seen == 0 else C_H2
            g1 = [W(vm=[("h", gu_seen)])]; one_lane(g1, "ds_add_rtn_u32 v%d, v%d, v%d offset:%d" % (C_HC, C_FL, C_ONE, F_H + 4 * gu_seen), ("hc", gu_seen))
            g2 = [W(lg=[("hc", gu_seen)]), I("v_readfirstlane_b32 s%d, v%d" % (sT4, C_HC)), I("s_cmp_lg_u32 s%d, %d" % (sT4, 4 if gu_seen == 0 else 3)),
                  I("s_cbranch_scc1 L_hs%d" % lb), L("    s_mov_b64 exec, 1"),
                  L("    buffer_atomic_add v%d, v%d, %s, 0 offen offset:%d sc1" % (C_ONE, C_CM, srd(SWS), kind_ * 256)), L("    s_mov_b64 exec, -1"), L("L_hs%d:" % lb)]
            w0 = len(ops) + 6 + CFG["hwait1" if gu_seen == 0 else "hwait2"]
            epi.append((w0, 99, 0, [g1])); epi.append((w0 + 4, 99, 0, [g2]))
            gu_seen += 1
    n1 = len(ops)
    HB = XR; RES = XR + 32; R2 = XR + 40
    Y, S_ = (ACC + 32, ACC + 48) if ty == 1 else (XR + 48, XR + 64)
    for n in range(20, 56):
        slot = slot_of(n); win = slot >> 2; base = (slot & 3) * SLOT
        acc = v(Y if n < 48 else S_, 16)
        for kk in range(4):
            m = len(ops); fb = WF + 4 * (m & 7); hb = HB + 4 * (m & 7)
            ops.append(dict(slab=n, reads=[("ds_read_b64_tr_b16 %s, v%d offset:%d" % (v(fb, 2), C_B2 + win, base + kk * 4096), ("f", m)),
                                           ("ds_read_b64_tr_b16 %s, v%d offset:%d" % (v(fb + 2, 2), C_B2 + win, base + kk * 4096 + 1024), ("f", m)),
                                           ("ds_read_b128 %s, v%d offset:%d" % (v(hb, 4), C_A2 + win, base + (kk >> 1) * 4096 + (kk & 1) * 1024), ("f", m))],
                            waits=[("f", m)], la=4 if not (CFG["h2now"] and n == 20) else kk + 1,
                            mfma="v_mfma_f32_32x32x16_bf16 %s, %s, %s, %s" % (acc, v(fb, 4), v(hb, 4), "0" if (n in (20, 48) and kk == 0) else acc)))
    X = []; x = lambda t: X.append(I(t)); r = N_SQ
    for j in range(4): x("v_add_f32 v%d, v%d, v%d" % (r + j, r + j, r + j + 4))
    for j in range(3): x("v_cndmask_b32 v%d, v%d, v%d, %s" % (r, r, r + j + 1, s(sMK + 2 * j, 2)))
    x("v_mov_b32 v%d, v%d" % (r + 1, r)); x("v_permlane32_swap_b32 v%d, v%d" % (r, r + 1)); x("v_add_f32 v%d, v%d, v%d" % (r, r, r + 1))
    x("v_mul_f32 v%d, 0x3b000000, v%d" % (r, r)); x("v_fma_f32 v%d, -v%d, v%d, v%d" % (r, N_DL, N_DL, r)); x("v_max_f32 v%d, 0, v%d" % (r, r))
    def rnd(): x("v_cvt_pk_bf16_f32 v%d, v%d, v%d" % (r + 1, r, r)); x("v_and_b32 v%d, 0xffff0000, v%d" % (r, r + 1))
    rnd(); x("v_add_f32 v%d, 0x3727c5ac, v%d" % (r, r)); rnd(); x("v_sqrt_f32 v%d, v%d" % (r, r)); rnd()
    x("v_rcp_f32 v%d, v%d" % (r, r))
    x("v_lshl_add_u32 v%d, v%d, 1, v%d" % (r + 2, N_TK, C_FL)); x("v_lshl_add_u32 v%d, v%d, 2, v%d" % (r + 3, N_TK, C_FL))
    x("ds_write_b16 v%d, v%d offset:%d" % (r + 2, r + 1, LSD - FL)); x("ds_write_b32 v%d, v%d offset:%d" % (r + 3, r, LRS - FL))
    for it in X: queue.append((18, 50, it))
    for e0, pi, t, E in epi:
        dl = min([x for (p2, t2), x in firstuse.items() if p2 > pi and t2 == t] + [10 ** 9]) - 1
        for it in E: queue.append((e0, dl, it))
    G = XR + 80; XF = XR + 96; E = []
    E.append(I("buffer_load_dwordx4 %s, v%d, %s, 0 offen" % (v(RES, 4), C_OUT, srd(SX)), "res"))
    E.append(I("buffer_load_dwordx4 %s, v%d, %s, 0 offen offset:16" % (v(RES + 4, 4), C_OUT, srd(SX)), "res"))
    E.append(I("buffer_load_dword v%d, v%d, %s, 0 offen sc1" % (R2, C_RO, srd(SWS)), "res"))
    for it in E: queue.append((n1 + 48, 10 ** 9, it))
    E = [W(vm=["res"]), I("v_mul_f32 v%d, v%d, v%d" % (R2, R2, R2)), I("v_mul_f32 v%d, s%d, v%d" % (R2 + 1, sL2E, R2))]
    for j in range(8):
        E.append(I("v_lshlrev_b32 v%d, 16, v%d" % (XF + 2 * j, RES + j))); E.append(I("v_and_b32 v%d, 0xffff0000, v%d" % (XF + 2 * j + 1, RES + j)))
    for it in E: queue.append((n1 + 24 * 4, 10 ** 9, it))
    E = []
    for j in range(16): E.append(I("v_mul_f32 v%d, v%d, v%d" % (G + j, R2 + 1, Y + j)))
    for j in range(16): E.append(I("v_exp_f32 v%d, -v%d" % (G + j, G + j)))
    for j in range(16): E.append(I("v_mul_f32 v%d, v%d, v%d" % (Y + j, R2, Y + j)))
    for j in range(16): E.append(I("v_add_f32 v%d, 1.0, v%d" % (G + j, G + j)))
    for j in range(16): E.append(I("v_rcp_f32 v%d, v%d" % (G + j, G + j)))
    for j in range(16): E.append(I("v_mul_f32 v%d, v%d, v%d" % (G + j, G + j, Y + j)))
    for it in E: queue.append((n1 + 28 * 4 + 1, 10 ** 9, it))
    queue.sort(key=lambda x: x[0])
    first = {}
    for m, o in enumerate(ops): first.setdefault(o["slab"], m)
    fread = {first[n] - ops[first[n]]["la"] - (CFG["LAF"] if n <= 20 else 3): n for n in CH}
    lastdone = prev_user(min(NB + CFG["ahead2"], 56) - 1)
    def done(n):
        a("v_mov_b32 v%d, %d" % (C_DV, n + 1)); one_lane(P, "ds_write_b32 v18, v%d offset:%d" % (C_DV, F_DONE))
    issued = 0; cur = 0
    def issue_reads(upto_fn):
        nonlocal issued, cur
        while issued < len(ops) and upto_fn(issued):
            o = ops[issued]
            if o["slab"] > cur:
                cur = o["slab"]
                if cur > 20 and cur - 1 <= lastdone: done(cur - 1)
                if cur >= NB: a("s_barrier")
                elif cur in CH:
                    lb = newlbl()
                    a("s_cbranch_vccnz L_cs%d" % lb); P.append(L("L_cb%d:" % lb))
                    STUBS.extend(["L_cs%d:" % lb, "    s_movk_i32 s%d, %d" % (sSPIN + 1, CH[cur] + 1),
                                  "    s_call_b64 %s, L_spin_c" % s(sRET, 2), "    s_branch L_cb%d" % lb])
            for t, tag in o["reads"]: a(t, tag)
            issued += 1
    def cstamp(k):
        r = sPH + 2 * (k & 1)
        if k > 2:
            a("s_sub_u32 s%d, s%d, s%d" % (r, r, sTM)); a("v_writelane_b32 v19, s%d, %d" % (r, k - 2))
        elif k == 1: a("v_mov_b32 v19, 0")
        P.append(L("    s_memtime %s" % s(r, 2)))
    SM = ACC
    for j in range(4):
        a("s_barrier")
        for k in range(8 * j, 8 * j + 8):
            a("ds_read_b128 %s, v%d offset:%d" % (v(XR + 4 * k, 4), C_XA + (k & 3) + 4 * (k >> 4), ((k >> 2) & 3) * 16384), ("xn", k))
        for k in range(8 * j, 8 * j + 8):
            P.append(W(lg=[("xn", k)]))
            if k == 31: a("s_barrier")
            for h in range(2):
                xx = v(XR + 4 * k + 2 * h, 2); c = v(SM + 4 * h, 4); q = v(N_SQ + 4 * h, 4)
                a("v_mfma_f32_4x4x4_16b_bf16 %s, %s, %s, %s" % (c, v(N_ONES, 2), xx, "0" if k == 0 else c))
                a("v_mfma_f32_4x4x4_16b_bf16 %s, %s, %s, %s" % (q, xx, xx, "0" if k == 0 else q))
    a("s_waitcnt vmcnt(0)")
    issue_reads(lambda m: m < CFG["LA"])
    a("v_add_f32 v%d, v%d, v%d" % (SM, SM, SM + 4)); a("v_mov_b32 v%d, v%d" % (SM + 1, SM)); a("v_permlane32_swap_b32 v%d, v%d" % (SM, SM + 1))
    a("v_add_f32 v%d, v%d, v%d" % (SM, SM, SM + 1))
    a("v_mul_f32 v%d, 0xbb000000, v%d" % (N_DL, SM))
    a("v_cvt_pk_bf16_f32 v%d, v%d, v%d" % (SM, N_DL, N_DL))
    for j in range(4): a("v_and_b32 v%d, 0xffff0000, v%d" % (N_CM + j, SM))
    def cen(k, h): a("v_mfma_f32_4x4x4_16b_bf16 %s, %s, %s, %s" % (v(N_T + 8 * (k & 1) + 4 * h, 4), v(N_ID, 2), v(XR + 4 * k + 2 * h, 2), v(N_CM, 4)))
    def cvt(k, h):
        for j in (2 * h, 2 * h + 1): a("v_cvt_pk_bf16_f32 v%d, v%d, v%d" % (XR + 4 * k + j, N_T + 8 * (k & 1) + 2 * j, N_T + 8 * (k & 1) + 2 * j + 1))
    cen(0, 0); cen(0, 1); cen(1, 0)
    for k in range(32):
        for h in range(2):
            kn, hn = k + (h + 3) // 2, (h + 3) & 1
            if kn < 32: cen(kn, hn)
            cvt(k, h)
    qi = 0
    for m, o in enumerate(ops):
        P.append(W(lg=o["waits"]))
        a(o["mfma"])
        if m == n1 - 1 and CFG["h2now"]:
            lim = n1 + 1 if CFG["h2now"] == 1 else n1 + 40
            while queue[qi][0] <= lim:
                it = queue[qi][2]; P += it if isinstance(it, list) else [it]; qi += 1
        issue_reads(lambda k: k - ops[k]["la"] <= m)
        for n in range(1, 56):
            d = m - (first[n] - ops[first[n]]["la"])
            if d == -1 and n in CH:
                P.append(W(lg=[("fl", n)])); a("v_min_u32 v%d, v%d, v%d" % (C_FV, C_FV, C_FV + 1)); a("v_cmp_ge_u32 vcc, %d, v%d" % (CH[n], C_FV))
            if d == 1 and n <= 20: done(n - 1)
            if d == (2 if n <= 20 else 0) and CFG["stamps"] and not CFG["zoom"]: cstamp(n)
            if CFG["zoom"] and m == CFG["zoom"] + n: cstamp(n)
        if m in fread: a("ds_read_b64 %s, v%d offset:%d" % (v(C_FV, 2), C_FL, F_LAND), ("fl", fread[m]))
        rate = CFG["erate"] if m < n1 else 5
        cnt = 0
        while qi < len(queue) and queue[qi][0] <= m and cnt < rate:
            assert m <= queue[qi][1], ("filler past its deadline", ty, m, queue[qi][1])
            it = queue[qi][2]
            if isinstance(it, list): P += it; cnt += 2
            else: P.append(it)
            qi += 1; cnt += 1
    assert qi == len(queue)
    for j in range(16): a("v_fma_f32 v%d, v%d, v%d, v%d" % (G + j, S_ + j, G + j, XF + j))
    for j in range(8): a("v_cvt_pk_bf16_f32 v%d, v%d, v%d" % (XF + j, G + 2 * j, G + 2 * j + 1))
    if CFG["xprobe"]:
        lb = newlbl()
        a("s_getreg_b32 s6, hwreg(HW_REG_XCC_ID, 0, 4)"); a("s_and_b32 s7, s2, 7"); a("s_cmp_eq_u32 s6, s7"); a("s_cbranch_scc1 L_xp%d" % lb)
        for _ in range(6): a("s_sleep 127")
        P.append(L("L_xp%d:" % lb))
    if CFG["probe"]:
        a("s_memrealtime s[6:7]"); P.append(W(lg="all")); a("s_sub_u32 s6, s6, s4")
        a("s_cmp_%s_u32 s6, %d" % ("gt" if CFG["probe"] > 0 else "lt", abs(CFG["probe"]))); a("s_cselect_b32 s6, 0x7fc07fc0, 0"); a("v_or_b32 v%d, s6, v%d" % (XF, XF))
    a("buffer_store_dwordx4 %s, v%d, %s, 0 offen%s" % (v(XF, 4), C_OUT, srd(SOUT), CFG["outfl"]))
    a("buffer_store_dwordx4 %s, v%d, %s, 0 offen offset:16%s" % (v(XF + 4, 4), C_OUT, srd(SOUT), CFG["outfl"]))
    if CFG["stamps"]:
        one_lane(P, "ds_add_u32 v%d, v%d offset:%d" % (C_FL, C_ONE, F_END))
        cstamp(56); cstamp(57); P.append(W(lg="all")); cstamp(58)
        a("s_lshl_b32 s%d, s2, 8" % sT0); a("s_add_u32 s%d, s%d, %d" % (sT0, sT0, WS_ST + 0x20000))
        a("v_lshlrev_b32 v18, 2, v1")
        a("s_cmp_lg_u32 s%d, %d" % (sW, CFG["stampw"])); a("s_cbranch_scc1 L_exit")
        a("buffer_store_dword v19, v18, %s, s%d offen" % (srd(SWS), sT0))
    a("s_endpgm")
    return P

D_P = 32
D_A, D_B, D_B2, D_TAB, D_FL, D_LA, D_ONE, D_ZERO, D_CC, D_POLL, D_LV = range(2, 13)
D_DV = 28
D_TCH = 20
def phase_info(ty):
    return [(kind, 3584, SG, SU) if e == "gu" else (kind, 3072, SQKV, SQKV) for kind, e, _ in PH[ty]]
def dma_setup(ty):
    P = []; b = lambda t, tag=None: P.append(I(t, tag))
    t0, t1, t2, t3, u0, u1, u2 = range(64, 71)
    b("v_mov_b32 v%d, 0" % D_ZERO); b("v_mov_b32 v%d, 0" % D_TAB)
    b("v_mov_b32 v%d, 1" % D_ONE); b("v_mov_b32 v%d, %d" % (D_FL, FL))
    b("s_lshl_b32 s%d, s%d, 2" % (sT0, sW1)); b("v_add_u32 v%d, s%d, v%d" % (D_LA, sT0, D_FL))
    b("s_lshr_b32 s%d, s%d, 1" % (sT0, sTT)); b("s_lshl_b32 s%d, s%d, 10" % (sT0, sT0)); b("v_mov_b32 v%d, s%d" % (D_CC, sT0))
    b("s_lshl_b32 s%d, s%d, 1" % (sT0, sTT)); b("s_add_u32 s%d, s%d, s%d" % (sT0, sT0, sW1))
    b("s_mul_i32 s%d, s%d, 147456" % (sT0, sT0)); b("s_add_u32 s%d, s%d, %d" % (sT0, sT0, WS_HO - 2048))
    b("v_lshlrev_b32 v%d, 4, v1" % u0); b("v_add_u32 v%d, s%d, v%d" % (D_A, sT0, u0))
    b("v_lshrrev_b32 v%d, 3, v1" % u0); b("v_and_b32 v%d, 2, v%d" % (u1, u0)); b("v_lshlrev_b32 v%d, 1, v%d" % (u1, u1))
    b("v_and_b32 v%d, 7, v1" % u2); b("v_xor_b32 v%d, v%d, v%d" % (u2, u2, u1))
    b("v_lshlrev_b32 v%d, 10, v%d" % (u0, u0)); b("v_lshl_add_u32 v%d, v%d, 4, v%d" % (D_B, u2, u0))
    b("s_lshl_b32 s%d, s%d, 15" % (sT0, sW1)); b("s_lshl_b32 s%d, s%d, 7" % (sT1, sCT)); b("s_add_u32 s%d, s%d, s%d" % (sT0, sT0, sT1))
    b("v_add_u32 v%d, s%d, v%d" % (D_B, sT0, D_B)); b("v_add_u32 v%d, %d, v%d" % (D_B2, 8192 - 1024, D_B))
    fcols(b, ty)
    gu = 0
    for pi, (kind, e, _) in enumerate(PH[ty]):
        stride = 3584 if e == "gu" else 3072
        (p4_voffs if kind == "P4" else p2_voffs)(b, u0, u1, stride, t0)
        if e == "gu": b("s_lshl_b32 s%d, s%d, 1" % (sT1, sKS + gu)); db = 0; gu += 1
        elif e == "kv": b("s_mov_b32 s%d, s%d" % (sT1, sKC)); db = 1024
        else: b("s_lshl_b32 s%d, s%d, 7" % (sT1, sGR)); db = 64
        step = (8 if kind == "P4" else 16) * stride
        b("v_add_u32 v%d, s%d, v%d" % (u0, sT1, u0)); b("v_add_u32 v%d, s%d, v%d" % (u1, sT1, u1))
        for p in range(4):
            b("v_add_u32 v%d, %d, v%d" % (D_P + 4 * pi + p, 4096 + (p >> 1) * step - p * 1024 + (db if p & 1 else 0), u1 if p & 1 else u0))
    b("s_lshl_b32 s%d, s%d, 13" % (sLA, sW1))
    nr = 32 if CFG["map"] == 84 else 64
    b("s_lshl_b32 s%d, s%d, 6" % (sT0, sXR)); b("s_mul_i32 s%d, s%d, %d" % (sT1, sW1, nr)); b("s_add_u32 s%d, s%d, s%d" % (sT0, sT0, sT1))
    b("v_add_u32 v%d, s%d, v1" % (t2, sT0)); b("v_mul_u32_u24 v%d, 3072, v%d" % (D_TCH + 3, t2)); b("v_mul_u32_u24 v%d, 3584, v%d" % (D_TCH + 2, t2))
    b("s_lshl_b32 s%d, s%d, 7" % (sT0, sGR)); b("s_add_u32 s%d, s%d, 4096" % (sT0, sT0)); b("v_add_u32 v%d, s%d, v%d" % (D_TCH + 3, sT0, D_TCH + 3))
    b("v_add_u32 v%d, 4096, v%d" % (D_TCH + 2, D_TCH + 2))
    b("s_lshl_b32 s%d, s%d, 1" % (sKS, sKS)); b("s_lshl_b32 s%d, s%d, 1" % (sKS + 1, sKS + 1))
    b("s_lshl_b32 s%d, s%d, 1" % (sT0, sSH)); b("s_add_u32 s%d, s%d, s%d" % (sT0, sT0, sW1))
    if CFG["map2"] == 48: b("v_lshlrev_b32 v%d, 7, v1" % t2)
    else:
        b("v_lshrrev_b32 v%d, 2, v1" % t2); b("v_lshlrev_b32 v%d, 10, v%d" % (t2, t2)); b("v_and_b32 v%d, 3, v1" % t3); b("v_lshl_add_u32 v%d, v%d, 7, v%d" % (t2, t3, t2))
        b("s_and_b32 s%d, s%d, 4" % (sT1, sCT)); b("s_lshl_b32 s%d, s%d, 7" % (sT1, sT1)); b("v_add_u32 v%d, s%d, v%d" % (t2, sT1, t2))
    b("s_mul_i32 s%d, s%d, %d" % (sT1, sT0, 28 * 1024)); b("v_add_u32 v%d, s%d, v%d" % (D_TCH, sT1, t2))
    b("s_lshl_b32 s%d, s%d, 13" % (sT1, sT0)); b("v_add_u32 v%d, s%d, v%d" % (D_TCH + 1, sT1, t2))
    def seg(lo, items):
        for t in items: b(t)
        b("v_cmp_le_u32 vcc, %d, v1" % lo); b("v_cndmask_b32 v%d, v%d, v%d, vcc" % (D_TAB, D_TAB, t1))
    b("s_add_u32 s%d, s%d, s%d" % (sT0, sR1, sW1))
    n0 = 0
    for pi, (kind, e, _) in enumerate(PH[ty]):
        stride = 3584 if e == "gu" else 3072
        if kind == "P4":
            seg(n0, ["v_add_u32 v%d, s%d, v1" % (t1, sR1), "v_add_u32 v%d, %d, v%d" % (t1, (-n0) & 7, t1), "v_and_b32 v%d, 7, v%d" % (t1, t1),
                     "v_lshlrev_b32 v%d, 1, v%d" % (t1, t1), "v_add_u32 v%d, s%d, v%d" % (t1, sW1, t1), "v_mul_u32_u24 v%d, %d, v%d" % (t1, 32 * stride, t1)]); n0 += 8
        else:
            seg(n0, ["v_lshlrev_b32 v%d, 1, v1" % t1, "v_add_u32 v%d, s%d, v%d" % (t1, sT0, t1), "v_and_b32 v%d, 7, v%d" % (t1, t1),
                     "v_mul_u32_u24 v%d, %d, v%d" % (t1, 64 * stride, t1)]); n0 += 4
    b("v_add_u32 v%d, s%d, v1" % (t0, sR2)); b("v_and_b32 v%d, 7, v%d" % (t2, t0))
    seg(20, ["v_lshlrev_b32 v%d, 13, v%d" % (t1, t2)])
    seg(28, ["v_lshrrev_b32 v%d, 1, v%d" % (t3, t2), "v_lshlrev_b32 v%d, 1, v%d" % (t1, t2), "v_sub_u32 v%d, v%d, v%d" % (t1, t1, t3),
             "v_add_u32 v%d, 16, v%d" % (t1, t1), "v_lshlrev_b32 v%d, 12, v%d" % (t1, t1)])
    seg(36, ["v_lshlrev_b32 v%d, 13, v%d" % (t1, t2), "v_add_u32 v%d, 4096, v%d" % (t1, t1)])
    seg(44, ["v_and_b32 v%d, 3, v%d" % (t1, t0), "v_mul_u32_u24 v%d, 3, v%d" % (t1, t1), "v_add_u32 v%d, 17, v%d" % (t1, t1), "v_lshlrev_b32 v%d, 12, v%d" % (t1, t1)])
    seg(48, ["v_lshlrev_b32 v%d, 12, v%d" % (t1, t2)])
    return P

def dma_wave(ty):
    P = [M(("x", 1))] + dma_setup(ty); a = lambda t, tag=None: P.append(I(t, tag))
    stamp = lambda k: stamp_to(P, k)
    stamp_to(P, 1, H_STAMP2)
    NB = CFG["nb%d" % ty]; CH = checks(ty)
    sl = slabs_of(ty); info = phase_info(ty)
    def look(n):
        if n < 56: a("v_readlane_b32 s%d, v%d, %d" % (sPH + 2 * (n & 1), D_TAB, n))
    def part(n, which, nxt):
        so = sPH + 2 * (n & 1); cap = CFG["cap1"]
        if which == "B": a("s_lshl_b32 s%d, s%d, 4" % (so, so))
        for h in range(2):
            a("s_add_u32 m0, s%d, %d" % (sLA, slot_of(n) * SLOT + h * 4096))
            if h: a("s_add_u32 s%d, s%d, %d" % (so, so, 16384 if which == "B" else 2048))
            elif (nxt ^ n) & 1: look(nxt)
            room(16, cap)
            if which == "B":
                vm("buffer_load_dwordx4 v%d, %s, s%d offen lds" % (D_B, srd(SWD), so), 8)
                vm("buffer_load_dwordx4 v%d, %s, s%d offen offset:1024 lds" % (D_B2, srd(SWD), so), 8)
            else:
                vm("buffer_load_dwordx4 v%d, %s, s%d offen offset:2048 sc1 lds" % (D_A, srd(SWS), so), 8, ("slab", n))
                vm("buffer_load_dwordx4 v%d, %s, s%d offen offset:3072 sc1 lds" % (D_A, srd(SWS), so), 8, ("slab", n))
        if not (nxt ^ n) & 1: look(nxt)
    hist = []
    def room(w, cap):
        tot = w; k = 0
        while k < len(hist) and tot + hist[-1 - k] <= cap: tot += hist[-1 - k]; k += 1
        if k < len(hist): a("s_waitcnt vmcnt(%d)" % min(k, 63))
    def vm(t, w, tag=None): a(t, tag); hist.append(w)
    def dma(n):
        so = sPH + 2 * (n & 1); cap = CFG["cap1"] if n < CFG["capsw"] else CFG["cap2"]
        for h in range(2):
            a("s_add_u32 m0, s%d, %d" % (sLA, slot_of(n) * SLOT + h * 4096))
            if n < 20:
                pi, kind, sg = sl[n]; _, stride, sa, sb = info[pi]
                w = 16 if (kind == "P2" and PH[ty][pi][1] != "q") else 8
                if h: a("s_add_u32 s%d, s%d, %d" % (so, so, (16 if kind == "P4" else 32) * stride))
                else: look(n + 1)
                for p in range(4):
                    if p % 2 == 0: room(2 * w, cap)
                    vm("buffer_load_dwordx4 v%d, %s, s%d offen offset:%d lds" % (D_P + 4 * pi + p, srd(sb if p & 1 else sa), so, p * 1024), w, ("slab", n))
            else:
                if h: a("s_add_u32 s%d, s%d, 2048" % (so, so)); a("s_add_u32 s%d, s%d, 16384" % (so + 1, so + 1))
                else:
                    a("s_lshl_b32 s%d, s%d, 4" % (so + 1, so)); look(n + 1)
                    if n == 48: a("v_add_u32 v%d, %d, v%d" % (D_A, 28 * 4096, D_A))
                wb = srd(SWD if n < 48 else SWO)
                room(16, cap)
                vm("buffer_load_dwordx4 v%d, %s, s%d offen lds" % (D_B, wb, so + 1), 8, ("slab", n))
                vm("buffer_load_dwordx4 v%d, %s, s%d offen offset:1024 lds" % (D_B2, wb, so + 1), 8, ("slab", n))
                room(16, cap)
                vm("buffer_load_dwordx4 v%d, %s, s%d offen offset:2048 sc1 lds" % (D_A, srd(SWS), so), 8, ("slab", n))
                vm("buffer_load_dwordx4 v%d, %s, s%d offen offset:3072 sc1 lds" % (D_A, srd(SWS), so), 8, ("slab", n))
    def touch(which):
        nr = 32 if CFG["map"] == 84 else 64; dst = D_TCH + 4; cap = CFG["cap1"]
        for w in which:
            if w in ("q", "g0", "g1"):
                if nr == 32: a("s_mov_b32 exec_hi, 0")
                if w == "q": room(nr, cap); vm("buffer_load_dword v%d, v%d, %s, 0 offen" % (dst, D_TCH + 3, srd(SQKV)), nr)
                else:
                    for d in (SG, SU): room(nr, cap); vm("buffer_load_dword v%d, v%d, %s, s%d offen" % (dst, D_TCH + 2, srd(d), sKS + int(w[1])), nr)
            elif w == "o":
                if CFG["map2"] == 84: a("s_mov_b32 exec_hi, 0")
                k = 64 if CFG["map2"] == 48 else 32
                room(k, cap); vm("buffer_load_dword v%d, v%d, %s, 0 offen" % (dst, D_TCH + 1, srd(SWO)), k)
            else:
                j = int(w[1])
                if j >= (4 if CFG["map2"] == 48 else 2): continue
                a("s_mov_b32 exec_hi, 0xffffff"); a("s_mov_b32 s%d, %d" % (sT0, j * 56 * (128 if CFG["map2"] == 48 else 256)))
                room(56, cap); vm("buffer_load_dword v%d, v%d, %s, s%d offen" % (dst, D_TCH, srd(SWD), sT0), 56)
            a("s_mov_b64 exec, -1")
    def mark(X, m):
        X.append(I("v_mov_b32 v%d, %d" % (D_LV, m + 1))); one_lane(X, "ds_max_u32 v%d, v%d offset:%d" % (D_LA, D_LV, F_LAND))
    def publish(m):
        if m in CH.values():
            P.append(W(vm=[("slab", m)])); mark(P, m)
            if CFG["stamps"] == 2 or m % 4 == 3: stamp(m)
    def flush(n):
        g = [I("s_waitcnt vmcnt(0)")]; mark(g, n - 1); return g
    for d in (SQKV, SG, SU):
        a("s_sub_u32 s%d, s%d, 4096" % (d, d)); a("s_subb_u32 s%d, s%d, 0" % (d + 1, d + 1)); a("s_add_u32 s%d, s%d, 4096" % (d + 2, d + 2))
    gates = {20: (C_H1A, 8), 28: (C_H1B, 8), 36: (C_H2, 16), 48: (C_O, 16)}
    def do_gate(n):
        stamp_to(P, 20 + 2 * list(gates).index(n), H_STAMP2)
        gate(P, D_CC, SWS, gates[n][0] * 256, ("poll", n), D_POLL, gates[n][1], slow=flush(n) if n <= NB + CFG["ahead2"] else None)
        stamp_to(P, 21 + 2 * list(gates).index(n), H_STAMP2)
    def poll(gn): vm("buffer_load_dword v%d, v%d, %s, 0 offen offset:%d sc1" % (D_POLL, D_CC, srd(SWS), gates[gn][0] * 256), 1, ("poll", gn))
    nbf = CFG["bfirst"]
    def issue(n):
        if n in gates and not (n == 20 and nbf): do_gate(n)
        if n + CFG["pollat"] in gates and not (n + CFG["pollat"] == 20 and nbf): poll(n + CFG["pollat"])
        dma(n)
    def do_touch(n):
        tp = CFG["tplan%d" % ty].get(str(n))
        if tp:
            touch(tp.split()[:1])
            if n > 1: P.append(W(vm=[("slab", n)])); mark(P, n)
            touch(tp.split()[1:])
    look(0)
    hist += [16] * 8
    xstages(P, {2: lambda: dma(0), 3: lambda: (dma(1), do_touch(1))})
    stamp(60)
    P.append(W(vm=[("slab", 0)]))
    a("s_barrier")
    stamp(61)
    publish(1)
    for n in range(2, min(NB + CFG["ahead2"], 56)):
        pu = prev_user(n)
        if pu >= 0:
            lb = newlbl()
            P.append(W(lg=[("dn", n)]))
            a("v_min3_u32 v%d, v%d, v%d, v%d" % (D_DV, D_DV, D_DV + 2, D_DV + 3)); a("v_min_u32 v%d, v%d, v%d" % (D_DV, D_DV, D_DV + 1))
            a("v_cmp_ge_u32 vcc, %d, v%d" % (pu, D_DV)); a("s_cbranch_vccz L_fr%d" % lb)
            raw(P, flush(min(n, 20) if n < 20 + nbf else n) + [I("s_movk_i32 s%d, %d" % (sSPIN + 1, pu + 1)), I("s_call_b64 %s, L_spin_d" % s(sRET, 2))]); P.append(L("L_fr%d:" % lb))
        if n == 24:
            count_wait(P, D_FL, D_DV, F_EXF, 2)
        if n == 12: vm("buffer_load_dword v%d, v%d, %s, 0 offen sc1" % (D_POLL, D_ZERO, srd(SDBG)), 1, "pollinit")
        if n == 15: gate(P, D_ZERO, SDBG, 0, "pollinit", D_POLL, 1)
        if n + 1 < NB + CFG["ahead2"] and prev_user(n + 1) >= 0: a("ds_read_b128 %s, v%d offset:%d" % (v(D_DV, 4), D_FL, F_DONE), ("dn", n + 1))
        if 20 <= n < 20 + nbf:
            lastb = n == 20 + nbf - 1
            if lastb: poll(20)
            part(n, "B", 20 if lastb else n + 1)
            if n < 22: publish(n - 2)
            if lastb:
                do_gate(20)
                for m in range(20, n + 1):
                    if m + CFG["pollat"] in gates: poll(m + CFG["pollat"])
                    part(m, "A", m + 1)
                    if m - 3 >= 20: publish(m - 3)
                publish(n - 2)
        else:
            issue(n)
            publish(n - 2 if n > 4 else n - 1)
        do_touch(n)
    for m in range(n - 1, NB): publish(m)
    for nb in range(NB, 56):
        n = nb + CFG["ahead2"]
        P.append(W(vm=[("slab", nb)]))
        a("s_barrier")
        if CFG["stamps"] == 2 or nb % 4 == 3: stamp(nb)
        if n < 56:
            assert prev_user(n) <= nb - 2
            issue(n)
    if CFG["stamps"]:
        count_wait(P, D_FL, D_DV, F_END, 4)
        stamp(62)
        a("s_memrealtime s[6:7]"); P.append(W(lg="all"))
        a("v_writelane_b32 v%d, s4, 62" % H_STAMP2); a("v_writelane_b32 v%d, s6, 63" % H_STAMP2)
        a("s_lshl_b32 s%d, s2, 8" % sT0); a("s_add_u32 s%d, s%d, %d" % (sT0, sT0, WS_ST))
        a("v_lshlrev_b32 v64, 2, v1")
        a("s_cmp_lg_u32 s%d, %d" % (sW1, CFG["stampw"] & 1)); a("s_cbranch_scc1 L_exit")
        a("buffer_store_dword v%d, v64, %s, s%d offen" % (H_STAMP, srd(SWS), sT0))
        a("s_add_u32 s%d, s%d, 0x10000" % (sT0, sT0))
        a("buffer_store_dword v%d, v64, %s, s%d offen" % (H_STAMP2, srd(SWS), sT0))
    a("s_endpgm")
    return P

A_ONE, A_ZERO, A_CM, A_CK, A_CQ, A_FL, A_RK, A_RV, A_ST, A_ZA, A_PL, A_ZL, A_OS, A_SGN = range(2, 16)
A_POLL, A_FV, A_TCH = 25, 27, 28
A_ID = 32
A_WP = 36
A_R = 16
A_ACC = 56
A_RAW = 72
A_T = 72
A_KF = 112
A_SD = 128; A_PHI = 144
A_PQ = 128
A_LD = 192
def softmax_unit(wp, kf, u, dst, Pm, R, scale_r):
    B = []; b = lambda t, tag=None: B.append(I(t, tag))
    C = A_R + 4 + u
    b("v_mfma_f32_32x32x16_bf16 %s, %s, %s, 0" % (v(Pm, 16), v(wp, 4), v(kf, 4)))
    for g in range(2): b("v_max3_f32 v%d, v%d, v%d, v%d" % (R + g, Pm + 8 * g, Pm + 8 * g + 1, Pm + 8 * g + 2))
    for g in range(2): b("v_max3_f32 v%d, v%d, v%d, v%d" % (R + 2 + g, Pm + 8 * g + 3, Pm + 8 * g + 4, Pm + 8 * g + 5))
    for g in range(2): b("v_max3_f32 v%d, v%d, v%d, v%d" % (R + g, R + g, Pm + 8 * g + 6, Pm + 8 * g + 7))
    for g in range(2): b("v_max_f32 v%d, v%d, v%d" % (R + g, R + g, R + 2 + g))
    def allred(op, mid):
        b("v_permlane32_swap_b32 v%d, v%d" % (R, R + 1))
        b("%s v%d, v%d, v%d" % (op, R, R, R + 1))
        for t in mid: b(t)
        b("v_mov_b32 v%d, v%d" % (R + 1, R))
        b("v_permlane32_swap_b32 v%d, v%d" % (R, R + 1))
    allred("v_max_f32", ["v_mul_f32 v%d, v%d, v%d" % (R, C, R)])
    for j in range(16): b("v_fma_f32 v%d, v%d, v%d, -v%d" % (Pm + j, Pm + j, C, R + j // 8))
    for j in range(16): b("v_exp_f32 v%d, v%d" % (Pm + j, Pm + j))
    for g in range(2):
        b("v_add_f32 v%d, v%d, v%d" % (R + g, Pm + 8 * g, Pm + 8 * g + 1)); b("v_add_f32 v%d, v%d, v%d" % (R + 2 + g, Pm + 8 * g + 2, Pm + 8 * g + 3))
    for k in (4, 6):
        for g in range(2):
            b("v_add_f32 v%d, v%d, v%d" % (R + g, R + g, Pm + 8 * g + k)); b("v_add_f32 v%d, v%d, v%d" % (R + 2 + g, R + 2 + g, Pm + 8 * g + k + 1))
    for g in range(2): b("v_add_f32 v%d, v%d, v%d" % (R + g, R + g, R + 2 + g))
    allred("v_add_f32", ["v_rcp_f32 v%d, v%d" % (R, R)] + (["v_mul_f32 v%d, v%d, v%d" % (R, R, A_R + u)] if scale_r else []))
    for j in range(16): b("v_mul_f32 v%d, v%d, v%d" % (Pm + j, Pm + j, R + j // 8))
    for j in range(8): b("v_cvt_pk_bf16_f32 v%d, v%d, v%d" % (dst + j, Pm + 2 * j, Pm + 2 * j + 1))
    return B
def zipper(x, y):
    out = []
    for i in range(max(len(x), len(y))):
        if i < len(x): out.append(x[i])
        if i < len(y): out.append(y[i])
    return out
def mprio(B):
    out = []; hi = False
    for it in B:
        m_ = isinstance(it, I) and it.t.startswith("v_mfma")
        if m_ and not hi: out.append(I("s_setprio 3")); hi = True
        if hi and not m_: out.append(I("s_setprio 0")); hi = False
        out.append(it)
    return out

def attn_setup(ty):
    P = []; b = lambda t, tag=None: P.append(I(t, tag))
    t0, t1, t2, t3, u0 = range(100, 105)
    hk, hq = sT2, sT3
    nr = 32 if CFG["map"] == 84 else 64
    b("s_lshl_b32 s%d, s%d, 6" % (sT0, sXR)); b("s_mul_i32 s%d, s%d, %d" % (sT1, sW1, nr)); b("s_add_u32 s%d, s%d, s%d" % (sT0, sT0, sT1))
    b("v_add_u32 v%d, s%d, v1" % (A_TCH + 2, sT0)); b("v_mul_u32_u24 v%d, 3072, v%d" % (A_TCH + 3, A_TCH + 2)); b("v_mul_u32_u24 v%d, 3584, v%d" % (A_TCH + 2, A_TCH + 2))
    if nr == 32: b("s_mov_b32 exec_hi, 0")
    b("buffer_load_dword v%d, v%d, %s, s%d offen offset:%d" % (A_POLL + 1, A_TCH + 3, srd(SQKV), sKC, 1024 * ty)); b("s_mov_b64 exec, -1")
    b("s_lshl_b32 s%d, s%d, 2" % (hq, sGR)); b("s_add_u32 s%d, s%d, s%d" % (hq, hq, sW1))
    b("s_add_u32 s%d, s%d, %d" % (hk, hq, 2 * ty))
    b("v_lshrrev_b32 v%d, 5, v1" % t3); b("v_and_b32 v%d, 15, v1" % t1); b("v_lshrrev_b32 v%d, 4, v1" % t0)
    b("v_lshlrev_b32 v%d, 7, v%d" % (t2, t3)); b("v_lshl_add_u32 v%d, v%d, 1, v%d" % (t2, t1, t2))
    b("s_lshl_b32 s%d, s%d, 9" % (sT0, hq))
    for hh in range(1 + ty):
        for j in range(8):
            b("buffer_load_ushort v%d, v%d, %s, s%d offen offset:%d" % (A_RAW + 8 * hh + j, t2, srd(SPHI), sT0, 1024 * hh + 32 * ((j & 3) + 8 * (j >> 2))), "wphi")
    b("v_mov_b32 v%d, 0" % A_ZERO); b("v_mov_b32 v34, 0")
    b("v_mov_b32 v%d, 1" % A_ONE); b("v_mov_b32 v%d, %d" % (A_FL, FL))
    if ty == 0:
        b("v_lshlrev_b32 v%d, 8, v1" % u0)
        b("s_add_u32 s%d, s2, s%d" % (sT0, sW1)); b("s_cmp_lg_u32 s%d, 0" % sT0); b("s_cbranch_scc1 L_noinit")
        raw(P, [I("buffer_store_dword v%d, v%d, %s, 0 offen sc1" % (A_ZERO, u0, srd(SWS))), I("s_movk_i32 s%d, 0x4000" % sT0),
                I("buffer_store_dword v%d, v%d, %s, s%d offen sc1" % (A_ZERO, u0, srd(SWS), sT0))])
        P.append(L("L_noinit:"))
    b("v_and_b32 v%d, 1, v%d" % (t2, t0)); b("v_mul_u32_u24 v%d, 0x8000, v%d" % (t2, t2)); b("v_lshl_or_b32 v%d, v%d, 16, v%d" % (A_SGN, t2, t2))
    b("s_lshl_b32 s%d, s%d, 10" % (sT0, sI)); b("v_mov_b32 v%d, s%d" % (A_CM, sT0))
    b("s_lshl_b32 s%d, s%d, 8" % (sT0, hk)); b("s_add_u32 s%d, s%d, 0x4000" % (sT0, sT0)); b("v_mov_b32 v%d, s%d" % (A_CK, sT0))
    b("s_lshl_b32 s%d, s%d, 8" % (sT0, hq)); b("s_add_u32 s%d, s%d, 0x4000" % (sT0, sT0)); b("v_mov_b32 v%d, s%d" % (A_CQ, sT0))
    b("s_lshl_b32 s%d, s%d, 11" % (sT0, sW1)); b("s_add_u32 s%d, s%d, %d" % (sT0, sT0, EX))
    b("v_lshlrev_b32 v%d, 4, v1" % u0); b("v_add_u32 v%d, s%d, v%d" % (A_RK, sT0, u0))
    b("v_and_b32 v%d, 1, v1" % t2); b("v_lshlrev_b32 v%d, 9, v%d" % (A_RV, t2)); b("v_lshl_add_u32 v%d, v%d, 7, v%d" % (A_RV, t0, A_RV))
    b("v_bfe_u32 v%d, v1, 2, 2" % t2); b("v_lshl_add_u32 v%d, v%d, 4, v%d" % (A_RV, t2, A_RV))
    b("v_bfe_u32 v%d, v1, 1, 1" % t2); b("v_lshl_add_u32 v%d, v%d, 3, v%d" % (A_RV, t2, A_RV)); b("v_add_u32 v%d, s%d, v%d" % (A_RV, sT0, A_RV))
    b("s_lshl_b32 s%d, s%d, 4" % (sT0, hk)); b("s_add_u32 s%d, s%d, s%d" % (sT0, sT0, sI))
    b("s_lshl_b32 s%d, s%d, 10" % (sT1, sT0)); b("s_add_u32 s%d, s%d, %d" % (sT1, sT1, WS_KV)); b("v_add_u32 v%d, s%d, v%d" % (A_ST, sT1, u0))
    b("s_lshl_b32 s%d, s%d, 7" % (sT1, sT0)); b("s_add_u32 s%d, s%d, %d" % (sT1, sT1, WS_Z))
    b("v_lshlrev_b32 v%d, 6, v%d" % (A_ZA, t1)); b("v_lshl_add_u32 v%d, v%d, 4, v%d" % (A_ZA, t0, A_ZA)); b("v_add_u32 v%d, s%d, v%d" % (A_ZA, sT1, A_ZA))
    if ty == 1:
        b("s_lshl_b32 s%d, s%d, 14" % (sT1, hq)); b("s_add_u32 s%d, s%d, %d" % (sT1, sT1, WS_KV)); b("v_add_u32 v%d, s%d, v%d" % (A_PL, sT1, u0))
        b("s_lshl_b32 s%d, s%d, 11" % (sT1, hq)); b("s_add_u32 s%d, s%d, %d" % (sT1, sT1, WS_Z))
        b("v_lshlrev_b32 v%d, 7, v%d" % (A_ZL, t1)); b("v_lshl_add_u32 v%d, v%d, 4, v%d" % (A_ZL, t0, A_ZL)); b("v_add_u32 v%d, s%d, v%d" % (A_ZL, sT1, A_ZL))
        b("s_mul_i32 s%d, s%d, 576" % (sT1, sI)); b("s_add_u32 s%d, s%d, s%d" % (sT1, sT1, hq)); b("s_add_u32 s%d, s%d, 112" % (sT1, sT1))
        b("s_lshl_b32 s%d, s%d, 10" % (sT1, sT1)); b("s_add_u32 s%d, s%d, %d" % (sT1, sT1, WS_HO)); b("v_add_u32 v%d, s%d, v%d" % (A_OS, sT1, u0))
        ident(b, A_ID, t1)
    return P

def attn_wave(ty):
    P = [M(("x", 1))] + attn_setup(ty); a = lambda t, tag=None: P.append(I(t, tag))
    stamp = lambda k: stamp_to(P, k, 34)
    def signal(vaddr, off): one_lane(P, "buffer_atomic_add v%d, v%d, %s, 0 offen offset:%d sc1" % (A_ONE, vaddr, srd(SWS), off))
    def after3():
        a("v_lshl_add_u32 v%d, v1, 2, v%d" % (A_FV, A_FL)); a("ds_write_b32 v%d, v%d" % (A_FV, A_ZERO))
        if ty == 0:
            only(P, ["s_add_u32 s%d, s2, s%d" % (sT0, sW1), "s_cmp_lg_u32 s%d, 0" % sT0],
                 [I("buffer_store_dword v%d, v%d, %s, 0 offen sc1" % (A_ONE, A_ZERO, srd(SDBG)))])
        P.append(W(lg="all"))
    xstages(P, {3: after3})
    a("s_barrier")
    P.append(W(vm=["wphi"]))
    for hh in range(1 + ty):
        for j in range(4): a("v_lshl_or_b32 v%d, v%d, 16, v%d" % (A_WP + 4 * hh + j, A_RAW + 8 * hh + 2 * j + 1, A_RAW + 8 * hh + 2 * j))
        for j in range(4): a("v_xor_b32 v%d, v%d, v%d" % (A_WP + 4 * hh + j, A_WP + 4 * hh + j, A_SGN))
    WK = A_WP + 4 * ty
    count_wait(P, A_FL, A_FV, F_EX, 4)
    stamp(11)
    T = A_T
    a("v_and_b32 v%d, 31, v1" % T); a("v_lshlrev_b32 v%d, 2, v%d" % (T, T)); a("v_add_u32 v%d, %d, v%d" % (T, LRS, T))
    for u in range(4): a("ds_read_b32 v%d, v%d offset:%d" % (A_R + u, T, u * 128))
    a("v_lshrrev_b32 v%d, 4, v1" % (T + 1)); a("v_lshlrev_b32 v%d, 4, v%d" % (T + 1, T + 1)); a("v_add_u32 v%d, %d, v%d" % (T + 1, LSD, T + 1))
    for u in range(4): a("ds_read_b128 %s, v%d offset:%d" % (v(A_SD + 4 * u, 4), T + 1, u * 64))
    if ty == 0:
        a("v_lshlrev_b32 v%d, 3, v1" % (T + 2)); a("v_add_u32 v%d, %d, v%d" % (T + 3, LRS, T + 2)); a("ds_read_b64 %s, v%d" % (v(T + 4, 2), T + 3))
    P.append(W(lg="all"))
    for u in range(4): a("v_mul_f32 v%d, s%d, v%d" % (A_R + 4 + u, sL2E, A_R + u))
    if ty == 0:
        only(P, ["s_add_u32 s%d, s%d, s%d" % (sT0, sGR, sW1), "s_cmp_lg_u32 s%d, 0" % sT0],
             [I("s_lshl_b32 s%d, s%d, 9" % (sT0, sI)), I("s_add_u32 s%d, s%d, %d" % (sT0, sT0, WS_RS)),
              I("buffer_store_dwordx2 %s, v%d, %s, s%d offen sc1" % (v(T + 4, 2), T + 2, srd(SWS), sT0))])
    a("buffer_load_dword v%d, v%d, %s, 0 offen sc1" % (A_POLL, A_ZERO, srd(SDBG)), "pollinit")
    B = []; b = lambda t, tag=None: B.append(I(t, tag))
    for u in range(4): b("ds_read_b128 %s, v%d offset:%d" % (v(A_KF + 4 * u, 4), A_RK, u * 8192), "kf")
    B.append(W(lg=["kf"]))
    PM = (T, T + 16); RR = (T + 32, T + 36)
    def tail(u):
        X = []; x = lambda t, tag=None: X.append(I(t, tag))
        PHI = A_PHI + 8 * (u & 1); FR = A_PHI + 16 + 12 * (u & 1); so = (u & 1) * 16384
        for sg in range(2): x("ds_write_b128 v%d, %s offset:%d" % (A_RK, v(PHI + 4 * sg, 4), so + sg * 8192))
        for q in range(2): x("ds_read_b64_tr_b16 %s, v%d offset:%d" % (v(FR + 2 * q, 2), A_RV, u * 8192 + 1024 + q * 64), ("pr", u))
        for sg in range(2):
            for q in range(2): x("ds_read_b64_tr_b16 %s, v%d offset:%d" % (v(FR + 4 + 4 * sg + 2 * q, 2), A_RV, so + sg * 8192 + q * 64), ("pr", u))
        return X
    def kvm(us):
        X = [W(lg=[("pr", us[-1])])]
        for u in us:
            FR = A_PHI + 16 + 12 * (u & 1)
            for sg in range(2):
                c = v(A_ACC + 4 * sg, 4); z = v(A_ACC + 8 + 4 * sg, 4)
                X.append(I("v_mfma_f32_16x16x32_bf16 %s, %s, %s, %s" % (c, v(FR + 4 + 4 * sg, 4), v(FR, 4), "0" if u == 0 else c)))
                X.append(I("v_mfma_f32_16x16x32_bf16 %s, %s, %s, %s" % (z, v(FR + 4 + 4 * sg, 4), v(A_SD + 4 * u, 4), "0" if u == 0 else z)))
        return X
    for pr in range(2):
        z = zipper(softmax_unit(WK, A_KF + 8 * pr, 2 * pr, A_PHI, PM[0], RR[0], True), softmax_unit(WK, A_KF + 8 * pr + 4, 2 * pr + 1, A_PHI + 8, PM[1], RR[1], True))
        if pr == 1: z = z[:2] + kvm((0, 1)) + z[2:]
        B += z + tail(2 * pr) + tail(2 * pr + 1)
    b("v_and_b32 v%d, 15, v1" % T); b("v_cmp_eq_u32 vcc, 1, v%d" % T)
    if ty == 0: one_lane(B, "ds_add_u32 v%d, v%d offset:%d" % (A_FL, A_ONE, F_EXF))
    B += kvm((2, 3))
    for j in range(4): b("v_cvt_pk_bf16_f32 v%d, v%d, v%d" % (A_ACC + j, A_ACC + 2 * j, A_ACC + 2 * j + 1))
    for j in range(4): b("v_cndmask_b32 v%d, v%d, v%d, vcc" % (A_ACC + 8 + j, A_ACC + 8 + j, A_ACC + 12 + j))
    b("buffer_store_dwordx4 %s, v%d, %s, 0 offen sc1" % (v(A_ACC, 4), A_ST, srd(SWS)), "part")
    b("s_mov_b32 exec_lo, 0x00030003"); b("s_mov_b32 exec_hi, 0x00030003")
    b("buffer_store_dwordx4 %s, v%d, %s, 0 offen sc1" % (v(A_ACC + 8, 4), A_ZA, srd(SWS)), "part"); b("s_mov_b64 exec, -1")
    P += mprio(B)
    stamp(12)
    def publish_k():
        gate(P, A_ZERO, SDBG, 0, "pollinit", A_POLL, 1)
        P.append(W(vm=["part"])); signal(A_CK, 0)
        lb = newlbl()
        only(P, ["s_cmp_lg_u32 s%d, 0" % sW1],
             [I("s_mov_b64 exec, 1"), I("ds_add_rtn_u32 v%d, v%d, v%d offset:%d" % (A_FV, A_FL, A_ONE, F_H)), W(lg="all"),
              I("v_readfirstlane_b32 s%d, v%d" % (sT5, A_FV)), I("s_cmp_lg_u32 s%d, 4" % sT5), I("s_cbranch_scc1 L_hh%d" % lb),
              I("buffer_atomic_add v%d, v%d, %s, 0 offen offset:%d sc1" % (A_ONE, A_CM, srd(SWS), (C_H1B if ty else C_H1A) * 256)),
              L("L_hh%d:" % lb), I("s_mov_b64 exec, -1")])
        stamp(13)
    if ty == 0: publish_k()
    else:
        count_wait(P, A_FL, A_FV, F_EX + 4, 4)
        QF = A_LD
        for hh in range(2):
            for u in range(4): a("ds_read_b128 %s, v%d offset:%d" % (v(QF + 16 * hh + 4 * u, 4), A_RK, u * 8192 + 4096 + hh * 1024), "qf")
        one_lane(P, "ds_add_u32 v%d, v%d offset:%d" % (A_FL, A_ONE, F_EXF))
        P.append(W(lg=["qf"]))
        def qpair(hh, pr):
            return mprio(zipper(softmax_unit(A_WP + 4 * hh, QF + 16 * hh + 8 * pr, 2 * pr, A_PQ + 32 * hh + 16 * pr, PM[0], RR[0], False),
                                softmax_unit(A_WP + 4 * hh, QF + 16 * hh + 8 * pr + 4, 2 * pr + 1, A_PQ + 32 * hh + 16 * pr + 8, PM[1], RR[1], False)))
        z = qpair(0, 0); P += z[:100]; publish_k(); P += z[100:]
        P += qpair(0, 1)
        z = qpair(1, 0); P += z[:100]
        for hh in range(2): a("buffer_load_dword v%d, v%d, %s, 0 offen offset:%d sc1" % (A_POLL + hh, A_CQ, srd(SWS), 512 * hh), ("pollkv", hh))
        P += z[100:]
        Z = (A_ACC, A_ACC + 8); KVA = (A_WP, A_R)
        free0 = list(range(A_LD, A_LD + 24, 4)) + list(range(A_LD + 32, A_LD + 64, 4)) + [A_KF, A_KF + 4]
        free1 = list(range(A_LD, A_LD + 64, 4))
        def loads(hh, dst):
            gate(P, A_CQ, SWS, 512 * hh, ("pollkv", hh), A_POLL + hh, 16)
            a("s_movk_i32 s%d, %d" % (sT4, 4096 * hh))
            a("buffer_load_dwordx4 %s, v%d, %s, s%d offen sc1" % (v(Z[hh], 4), A_ZL, srd(SWS), sT4), ("zl", hh))
            a("buffer_load_dwordx4 %s, v%d, %s, s%d offen offset:64 sc1" % (v(Z[hh] + 4, 4), A_ZL, srd(SWS), sT4), ("zl", hh))
            for m in range(16):
                if m % 4 == 0:
                    a("s_add_u32 s%d, s%d, %d" % (sT5, sI, m // 4)); a("s_and_b32 s%d, s%d, 3" % (sT5, sT5)); a("s_lshl_b32 s%d, s%d, 12" % (sT5, sT5))
                    if hh: a("s_add_u32 s%d, s%d, 32768" % (sT5, sT5))
                if CFG["awin"] >= 0: a("s_waitcnt vmcnt(%d)" % CFG["awin"])
                a("buffer_load_dwordx4 %s, v%d, %s, s%d offen offset:%d sc1" % (v(dst[m], 4), A_PL, srd(SWS), sT5, (m & 3) * 1024), ("pl", hh, m))
        S = A_KF + 8
        def reduce_(hh, src):
            B = []; b = lambda t, tag=None: B.append(I(t, tag))
            for m in range(16):
                if m % 4 == 0: B.append(W(vm=[("pl", hh, m + 3)]))
                for sg in range(2):
                    c = v(S + 4 * sg, 4)
                    b("v_mfma_f32_4x4x4_16b_bf16 %s, %s, %s, %s" % (c, v(A_ID, 2), v(src[m] + 2 * sg, 2), "0" if m == 0 else c))
            P.extend(mprio(B + [I("s_nop 0")]))
        def finish(hh):
            B = []; b = lambda t, tag=None: B.append(I(t, tag))
            for k in (8, 4, 2, 1):
                for j in range(8): b("v_add_f32_dpp v%d, v%d, v%d row_ror:%d row_mask:0xf bank_mask:0xf" % (Z[hh] + j, Z[hh] + j, Z[hh] + j, k))
            KV = KVA[hh]; PQ = A_PQ + 32 * hh
            for sg in range(2):
                for j in range(2): b("v_cvt_pk_bf16_f32 v%d, v%d, v%d" % (KV + 4 * sg + 2 + j, Z[hh] + 4 * sg + 2 * j, Z[hh] + 4 * sg + 2 * j + 1))
            for sg in range(2):
                for j in range(2): b("v_cvt_pk_bf16_f32 v%d, v%d, v%d" % (KV + 4 * sg + j, S + 4 * sg + 2 * j, S + 4 * sg + 2 * j + 1))
            for w in ("16", "32"):
                for sg in range(2):
                    for j in range(2): b("v_permlane%s_swap_b32 v%d, v%d" % (w, KV + 4 * sg + j, KV + 4 * sg + 2 + j))
            for pr in range(2):
                for u in (2 * pr, 2 * pr + 1):
                    N = v(T + 16 * (u & 1), 16)
                    b("v_mfma_f32_32x32x16_bf16 %s, %s, %s, 0" % (N, v(KV, 4), v(PQ + 8 * u, 4)))
                    b("v_mfma_f32_32x32x16_bf16 %s, %s, %s, %s" % (N, v(KV + 4, 4), v(PQ + 8 * u + 4, 4), N))
                for u in range(2): b("v_add_f32 v%d, 0x358637bd, v%d" % (T + 16 * u + 8, T + 16 * u + 8))
                for u in range(2): b("v_rcp_f32 v%d, v%d" % (T + 16 * u + 8, T + 16 * u + 8))
                for u in (2 * pr, 2 * pr + 1):
                    N = T + 16 * (u & 1); O = PQ + 8 * u
                    for j in range(8): b("v_mul_f32 v%d, v%d, v%d" % (N + j, N + j, N + 8))
                    for j in range(4): b("v_cvt_pk_bf16_f32 v%d, v%d, v%d" % (O + j, N + 2 * j, N + 2 * j + 1))
                    b("s_mov_b32 s%d, %d" % (sT5, u * 147456))
                    b("buffer_store_dwordx4 %s, v%d, %s, s%d offen offset:%d sc1" % (v(O, 4), A_OS, srd(SWS), sT5, 2048 * hh), "ost")
            P.extend(mprio(B))
        stamp(14)
        loads(0, free0)
        stamp(15)
        P += qpair(1, 1)
        reduce_(0, free0); loads(1, free1); finish(0); reduce_(1, free1); finish(1)
        stamp(16)
        P.append(W(vm=["ost"])); signal(A_CM, C_O * 256)
        stamp(17)
    if CFG["stamps"]:
        a("s_lshl_b32 s%d, s2, 8" % sT0); a("s_add_u32 s%d, s%d, %d" % (sT0, sT0, WS_ST + 0x30000))
        a("v_lshlrev_b32 v64, 2, v1")
        a("s_cmp_lg_u32 s%d, %d" % (sW1, CFG["stampw"] & 1)); a("s_cbranch_scc1 L_exit")
        a("buffer_store_dword v34, v64, %s, s%d offen" % (srd(SWS), sT0))
    a("s_endpgm")
    return P

def main():
    hdr = open("cdna_kernels/%s.s.ref" % NAME).read().split("; Override launch geometry")[0]
    out = [hdr.rstrip(), "; @launch grid=(256,1,1) block=(512,1,1) lds=163840",
           '.amdgcn_target "amdgcn-amd-amdhsa--gfx950"', ".text", ".globl %s_kernel" % NAME, ".p2align 8",
           ".type %s_kernel,@function" % NAME, "%s_kernel:" % NAME]
    t, st = finalize(prologue()); out += t
    for nm, fn in (("attn", attn_wave), ("dma", dma_wave), ("comp", compute)):
        out.append("L_%s:" % nm)
        out += finalize([I("s_cmp_eq_u32 s%d, 1" % sTY), I("s_cbranch_scc1 L_%s1" % nm)] + fn(0), st.clone())[0]
        out.append("L_%s1:" % nm); out += finalize(fn(1), st.clone())[0]
    out += STUBS
    out += lds_spin("c", C_FL, F_LAND, 2, C_FV, CFG["cnap"]) + lds_spin("d", D_FL, F_DONE, 4, D_DV, 1)
    out += ["L_exit:", "    s_endpgm", '.section .rodata,"a"', ".p2align 6", ".amdhsa_kernel %s_kernel" % NAME,
            "  .amdhsa_next_free_vgpr 256", "  .amdhsa_next_free_sgpr 100", "  .amdhsa_accum_offset 256",
            "  .amdhsa_group_segment_fixed_size 0", "  .amdhsa_kernarg_size 88", "  .amdhsa_user_sgpr_count 2",
            "  .amdhsa_user_sgpr_kernarg_segment_ptr 1", "  .amdhsa_system_sgpr_workgroup_id_x 1", ".end_amdhsa_kernel"]
    open(sys.argv[1], "w").write("\n".join(out) + "\n")
main()
```

```python
import sys, os, json
sys.path.insert(0, os.path.dirname(os.path.abspath(__file__)))
from asmir import I, W, L, M, v, s, finalize, State

NAME = "recurrent_scan__linear_kernel_hedgehog__glu_gated_bilinear__prompt"
CFG = dict(stamps=0, probe=0, probeat=-1, xprobe=0, outfl="", stampw=0, zoom=0, LA=6, LAF=5, erate=3, codepf=1, sleep=2, cnap=1, map=84, map2=84, h2now=1, chk2=1,
           cap1=128, cap2=128, capsw=36, awin=-1, pollat=2, hwait1=24, hwait2=0, nb0=28, nb1=32, ahead2=4,
           bfirst=6, p2chk=1,
           tplan0={"1": "g0", "7": "g1 o", "10": "d0 d1", "14": "d2 d3"},
           tplan1={"1": "q g0", "9": "d0 d1", "12": "g1 o", "15": "d2 d3"})
for a_ in sys.argv[2:]:
    k_, x_ = a_.split("="); assert k_ in CFG, k_; CFG[k_] = json.loads(x_)

WS_RS = 0x8000
WS_KV = 0x10000
WS_Z = 0x120000
WS_ST = 0x140000
WS_HO = 0x200000
WS_BYTES = WS_HO + 64 * 144 * 1024
C_H1A, C_H1B, C_H2, C_O = 0, 1, 2, 3
SLOT = 16384; STG = 32768; EX = 131072; FL = 7 * SLOT; LRS = FL + 1024; LSD = LRS + 512
F_LAND, F_DONE, F_EX, F_RS, F_H, F_EXF, F_END = 0, 16, 32, 40, 44, 52, 56
SX, SQKV, SPHI, SWO, SG, SU, SWD, SOUT, SDBG, SWS = 8, 12, 16, 20, 24, 28, 32, 36, 40, 44
sW, sW1, sI, sGR, sTY, sR1, sXR, sTT, sCT, sR2 = range(56, 66)
sT0, sT1, sT2, sT3, sT4, sT5 = range(66, 72)
sL2E = 72; sKC = 73; sSH = 74; sXL = 75; sKS = 76; sLA = 78; sXB = 79
sSPIN = 80; sRET = 82; sPH = 84; sTM = 90; sMK = 94
srd = lambda b: s(b, 4)
LOG2E = 0x3fb8aa3b
XR = 128; ACC = 64; WF = 32
L_T, L_SEL, L_ID, L_SM, L_CM, L_SQ = 192, 224, 228, 232, 236, 240
L_XO, L_RR, L_C, L_SB, L_C7, L_WA, L_VA, L_VB = 124, 245, 246, 247, 248, 249, 251, 252
L_TR = 244
K_SQ, K_DL, K_RA = 16, 20, 24
H_STAMP = 255; H_STAMP2 = 254
_lbl = [0]
def newlbl():
    _lbl[0] += 1; return _lbl[0]
STUBS = []

PH = {0: [("P2", "kv", (0, 1)), ("P4", "gu", (2, 3, 0, 1)), ("P4", "gu", (0, 1, 2, 3))],
      1: [("P2", "kv", (0, 1)), ("P2", "q", (2, 3)), ("P4", "gu", (0, 1, 2, 3)), ("P2", "gu", (0, 1))]}
def slabs_of(ty):
    return [(pi, k, sg) for pi, (k, e, _) in enumerate(PH[ty]) for sg in range(8 if k == "P4" else 4)]
def slot_of(n):
    return n % 7 if n < 20 else (6, 0, 1, 2, 8, 9, 3, 4, 5)[(n - 20) % 9]
def prev_user(n):
    p = [m for m in range(n) if slot_of(m) == slot_of(n)]
    return p[-1] if p else -1
def checks(ty):
    c = {1: 1}
    for n in range(2, CFG["nb%d" % ty], 2):
        if (CFG["chk2"] if n < 20 else CFG["p2chk"] == 2): c[n] = n + 1
        else: c[n] = n; c[n + 1] = n + 1
    return c

def stamp_to(P, k, reg=H_STAMP):
    if CFG["stamps"]:
        P.append(I("s_memtime %s" % s(sTM + 2, 2))); P.append(W(lg="all"))
        P.append(I("s_sub_u32 s%d, s%d, s%d" % (sTM + 2, sTM + 2, sTM))); P.append(I("v_writelane_b32 v%d, s%d, %d" % (reg, sTM + 2, k)))
def raw(P, items):
    for x in finalize(items)[0]: P.append(L(x))
def only(P, cond, items):
    n = newlbl()
    for t in cond: P.append(I(t))
    P.append(I("s_cbranch_scc1 L_sk%d" % n)); raw(P, items); P.append(L("L_sk%d:" % n))
def one_lane(X, t, tag=None):
    X.append(I("s_mov_b64 exec, 1")); X.append(I(t, tag)); X.append(I("s_mov_b64 exec, -1"))

def p4_voffs(a, va, vb, stride, t):
    a("v_lshrrev_b32 v%d, 3, v1" % t)
    a("v_and_b32 v%d, 2, v%d" % (t + 1, t)); a("v_lshlrev_b32 v%d, 1, v%d" % (t + 1, t + 1))
    a("v_and_b32 v%d, 7, v1" % (t + 2)); a("v_xor_b32 v%d, v%d, v%d" % (t + 2, t + 2, t + 1))
    a("v_mul_u32_u24 v%d, %d, v%d" % (t, stride, t))
    a("v_lshl_add_u32 v%d, v%d, 4, v%d" % (va, t + 2, t))
    a("v_xor_b32 v%d, 32, v%d" % (vb, va))
def p2_voffs(a, va, vb, stride, t):
    a("v_lshrrev_b32 v%d, 2, v1" % t)
    a("v_and_b32 v%d, 3, v1" % (t + 2))
    a("v_mul_u32_u24 v%d, %d, v%d" % (t, stride, t))
    a("v_lshl_add_u32 v%d, v%d, 4, v%d" % (va, t + 2, t))
    a("v_xor_b32 v%d, 32, v%d" % (vb, va))
def ident(a, dst, t):
    a("v_and_b32 v%d, 3, v1" % t)
    a("v_and_b32 v%d, 1, v1" % (t + 1)); a("v_lshlrev_b32 v%d, 4, v%d" % (t + 1, t + 1)); a("v_mov_b32 v%d, 0x3f80" % (t + 2))
    a("v_lshlrev_b32 v%d, v%d, v%d" % (t + 1, t + 1, t + 2))
    a("v_cmp_gt_u32 vcc, 2, v%d" % t)
    a("v_cndmask_b32 v%d, 0, v%d, vcc" % (dst, t + 1)); a("v_sub_u32 v%d, v%d, v%d" % (dst + 1, t + 1, dst))

X_V = 48
def prologue():
    P = []; a = lambda t, tag=None: P.append(I(t, tag))
    a("s_cmp_ge_u32 s2, 256")
    a("s_cbranch_scc1 L_exit")
    a("s_load_dwordx2 %s, s[0:1], 0" % s(SX, 2)); a("s_load_dwordx2 %s, s[0:1], 8" % s(SQKV, 2))
    if CFG["probe"]: a("s_memrealtime s[4:5]")
    if CFG["stamps"]:
        a("s_memtime %s" % s(sTM, 2)); a("s_memrealtime s[4:5]")
    a("s_lshr_b32 s%d, s2, 3" % sSH)
    if CFG["codepf"]:
        a("s_getpc_b64 s[6:7]"); P.append(L("L_pc:"))
        a("s_mul_i32 s%d, s%d, 24" % (sT0, sSH))
        a("v_add_u32 v3, s%d, v0" % sT0); a("v_lshlrev_b32 v3, 7, v3"); a("v_min_u32 v3, L_exit-L_pc, v3")
        a("v_cmp_gt_u32 vcc, 24, v0"); a("s_and_saveexec_b64 s[48:49], vcc"); a("s_cbranch_execz L_nopf")
        P.append(L("    global_load_dword v%d, v3, s[6:7]" % (X_V + 5)))
        P.append(L("L_nopf:")); a("s_mov_b64 exec, -1")
    a("v_lshrrev_b32 v2, 6, v0")
    a("v_and_b32 v1, 63, v0")
    a("v_readfirstlane_b32 s%d, v2" % sW)
    a("s_and_b32 s%d, s2, 7" % sT5)
    a("s_lshr_b32 s%d, s%d, 4" % (sTY, sSH))
    if CFG["map"] == 48:
        a("s_and_b32 s%d, s%d, 3" % (sT3, sSH)); a("s_lshl_b32 s%d, s%d, 1" % (sXR, sT3))
        a("s_lshr_b32 s%d, s%d, 1" % (sT2, sT5)); a("s_lshl_b32 s%d, s%d, 2" % (sT2, sT2)); a("s_add_u32 s%d, s%d, s%d" % (sI, sT2, sT3))
        a("s_lshr_b32 s%d, s%d, 2" % (sR1, sSH))
        a("s_and_b32 s%d, s%d, 1" % (sT2, sT5)); a("s_lshl_b32 s%d, s%d, 2" % (sT2, sT2)); a("s_and_b32 s%d, s%d, 3" % (sT3, sR1)); a("s_add_u32 s%d, s%d, s%d" % (sGR, sT2, sT3))
    else:
        a("s_and_b32 s%d, s%d, 7" % (sXR, sSH))
        a("s_lshr_b32 s%d, s%d, 2" % (sT2, sT5)); a("s_lshl_b32 s%d, s%d, 3" % (sT2, sT2)); a("s_add_u32 s%d, s%d, s%d" % (sI, sT2, sXR))
        a("s_lshr_b32 s%d, s%d, 3" % (sT3, sSH)); a("s_lshl_b32 s%d, s%d, 1" % (sR1, sT3))
        a("s_and_b32 s%d, s%d, 3" % (sT2, sT5)); a("s_lshl_b32 s%d, s%d, 1" % (sT2, sT2)); a("s_and_b32 s%d, s%d, 1" % (sT3, sT3)); a("s_add_u32 s%d, s%d, s%d" % (sGR, sT2, sT3))
    a("s_mov_b32 s%d, 2097152" % (SX + 2)); a("s_mov_b32 s%d, 0x20000" % (SX + 3))
    X = []; x = lambda t, tag=None: X.append(I(t, tag))
    x("v_lshrrev_b32 v4, 3, v1"); x("v_lshrrev_b32 v5, 4, v1"); x("v_and_b32 v6, 7, v1"); x("v_xor_b32 v5, v5, v6")
    x("v_lshlrev_b32 v4, 10, v4"); x("v_lshl_add_u32 v%d, v5, 4, v4" % X_V)
    x("v_xor_b32 v4, 64, v%d" % X_V)
    x("v_add_u32 v%d, 7168, v4" % (X_V + 1)); x("v_add_u32 v%d, 14336, v%d" % (X_V + 2, X_V)); x("v_add_u32 v%d, 21504, v4" % (X_V + 3))
    x("s_and_b32 s%d, s%d, 3" % (sT0, sW)); x("s_lshl_b32 s%d, s%d, 12" % (sXL, sT0)); x("s_add_u32 s%d, s%d, %d" % (sXL, sXL, STG))
    x("s_lshl_b32 s%d, s%d, 15" % (sT0, sT0)); x("s_lshl_b32 s%d, s%d, 17" % (sXB, sI)); x("s_add_u32 s%d, s%d, s%d" % (sXB, sXB, sT0))
    x("s_cmp_lt_u32 s%d, 4" % sW); x("s_cbranch_scc1 L_nox")
    x("s_waitcnt lgkmcnt(0)")
    xline(x, 0); xline(x, 1)
    raw(P, X); P.append(L("L_nox:"))
    if CFG["stamps"]:
        a("v_mov_b32 v%d, 0" % H_STAMP); a("v_mov_b32 v%d, 0" % H_STAMP2); P.append(W(lg="all"))
    stamp_to(P, 0, H_STAMP2)
    for b, off in ((SPHI, 16), (SWS, 80), (SG, 40), (SU, 48), (SWO, 24), (SWD, 56), (SOUT, 64), (SDBG, 72)):
        a("s_load_dwordx2 %s, s[0:1], %d" % (s(b, 2), off))
    for b, n in ((SQKV, 1572864), (SPHI, 16384), (SWO, 524288), (SG, 1835008), (SU, 1835008), (SWD, 1835008), (SOUT, 2097152), (SDBG, 256), (SWS, WS_BYTES)):
        a("s_mov_b32 s%d, %d" % (b + 2, n)); a("s_mov_b32 s%d, 0x20000" % (b + 3))
    a("s_lshl_b32 s%d, s%d, 7" % (sKC, sGR)); a("s_lshl_b32 s%d, s%d, 6" % (sT0, sTY)); a("s_add_u32 s%d, s%d, s%d" % (sKC, sKC, sT0)); a("s_add_u32 s%d, s%d, 1024" % (sKC, sKC))
    if CFG["map2"] == 48:
        a("s_lshr_b32 s%d, s%d, 2" % (sCT, sSH)); a("s_and_b32 s%d, s%d, 3" % (sT3, sSH))
        a("s_lshl_b32 s%d, s%d, 2" % (sT2, sT5)); a("s_add_u32 s%d, s%d, s%d" % (sTT, sT2, sT3))
        a("s_lshl_b32 s%d, s%d, 1" % (sT3, sT3)); a("s_add_u32 s%d, s%d, s%d" % (sR2, sT3, sCT))
    else:
        a("s_lshr_b32 s%d, s%d, 3" % (sT3, sSH)); a("s_and_b32 s%d, s%d, 1" % (sT2, sT5)); a("s_lshl_b32 s%d, s%d, 2" % (sT2, sT2)); a("s_add_u32 s%d, s%d, s%d" % (sCT, sT2, sT3))
        a("s_and_b32 s%d, s%d, 7" % (sT1, sSH)); a("s_lshr_b32 s%d, s%d, 1" % (sT2, sT5)); a("s_lshl_b32 s%d, s%d, 3" % (sT2, sT2)); a("s_add_u32 s%d, s%d, s%d" % (sTT, sT2, sT1))
        a("s_lshl_b32 s%d, s%d, 1" % (sT3, sT3)); a("s_add_u32 s%d, s%d, s%d" % (sR2, sT3, sT1))
    a("s_and_b32 s%d, s%d, 1" % (sW1, sW))
    a("s_mov_b32 s%d, 0x%x" % (sL2E, LOG2E))
    P.append(W(lg="all"))
    a("s_cmp_lt_u32 s%d, 4" % sW); a("s_cbranch_scc1 L_comp")
    a("s_cmp_lt_u32 s%d, 6" % sW); a("s_cbranch_scc1 L_dma")
    return P

def xline(a, j):
    a("s_add_u32 s%d, s%d, %d" % (sT0, sR1, j)); a("s_and_b32 s%d, s%d, 7" % (sT0, sT0)); a("s_lshl_b32 s%d, s%d, 7" % (sT0, sT0)); a("s_add_u32 s%d, s%d, s%d" % (sT0, sT0, sXB))
    a("s_add_u32 m0, s%d, %d" % (sXL, j * 16384))
    for p in range(4): a("buffer_load_dwordx4 v%d, %s, s%d offen offset:%d lds" % (X_V + p, srd(SX), sT0, p * 1024), ("x", j))
def xstages(P, extra):
    a = lambda t, tag=None: P.append(I(t, tag))
    xline(a, 2); xline(a, 3)
    for j in range(4):
        P.append(W(vm=[("x", 2 * j + 1)]))
        a("s_barrier")
        if j == 0: stamp_to(P, 2, H_STAMP2)
        if j < 2: xline(a, 2 * j + 4); xline(a, 2 * j + 5)
        if j in extra: extra[j]()

def fcols(a, ty):
    if ty == 0:
        a("s_lshl_b32 s%d, s%d, 7" % (sKS, sGR)); a("s_add_u32 s%d, s%d, 64" % (sKS + 1, sKS))
    else:
        a("s_mul_i32 s%d, s%d, 96" % (sT0, sGR)); a("s_add_u32 s%d, s%d, 1024" % (sT0, sT0))
        a("s_and_b32 s%d, s%d, 1" % (sT1, sGR)); a("s_lshl_b32 s%d, s%d, 5" % (sT2, sT1))
        a("s_add_u32 s%d, s%d, s%d" % (sKS, sT0, sT2))
        a("s_xor_b32 s%d, s%d, 1" % (sT1, sT1)); a("s_lshl_b32 s%d, s%d, 6" % (sT1, sT1))
        a("s_add_u32 s%d, s%d, s%d" % (sKS + 1, sT0, sT1))

def clear_low(a, used):
    for k in range(2, 64):
        if k not in used: a("v_mov_b32 v%d, 0" % k)

def lds_spin(nm, vfl, off, nw, vd, nap):
    rd = {1: "ds_read_b32 v%d" % vd, 2: "ds_read_b64 %s" % v(vd, 2), 4: "ds_read_b128 %s" % v(vd, 4)}[nw]
    X = ["L_spin_%s:" % nm, "    s_mov_b32 s%d, 0" % sSPIN, "L_spl_%s:" % nm]
    if nap: X.append("    s_sleep %d" % nap)
    X += ["    %s, v%d offset:%d" % (rd, vfl, off), "    s_add_u32 s%d, s%d, 1" % (sSPIN, sSPIN), "    s_waitcnt lgkmcnt(0)"]
    if nw == 4: X.append("    v_min3_u32 v%d, v%d, v%d, v%d" % (vd, vd, vd + 2, vd + 3))
    if nw >= 2: X.append("    v_min_u32 v%d, v%d, v%d" % (vd, vd, vd + 1))
    X += ["    s_cmp_ge_u32 s%d, 0x1000000" % sSPIN, "    s_cbranch_scc1 L_spr_%s" % nm,
          "    v_cmp_gt_u32 vcc, s%d, v%d" % (sSPIN + 1, vd), "    s_cbranch_vccnz L_spl_%s" % nm, "L_spr_%s:" % nm, "    s_setpc_b64 %s" % s(sRET, 2)]
    return X
def count_wait(P, vfl, vd, off, want):
    n = newlbl()
    P.append(W(lg="all"))
    for t in ["    s_mov_b32 s%d, 0" % sSPIN, "L_cw%d:" % n, "    ds_read_b32 v%d, v%d offset:%d" % (vd, vfl, off), "    s_add_u32 s%d, s%d, 1" % (sSPIN, sSPIN),
              "    s_waitcnt lgkmcnt(0)", "    v_cmp_le_u32 vcc, %d, v%d" % (want, vd), "    s_cbranch_vccnz L_cx%d" % n, "    s_sleep 1",
              "    s_cmp_lt_u32 s%d, 0x1000000" % sSPIN, "    s_cbranch_scc1 L_cw%d" % n, "L_cx%d:" % n]: P.append(L(t))

def gate(P, vaddr, srdb, off, tag, vdst, want, slow=None):
    n = newlbl()
    P.append(W(vm=[tag]))
    P.append(I("v_cmp_eq_u32 vcc, %d, v%d" % (want, vdst)))
    P.append(I("s_cbranch_vccnz L_ok%d" % n))
    if slow: raw(P, slow)
    X = ["    s_mov_b32 s%d, 0" % sSPIN, "L_spin%d:" % n]
    if CFG["sleep"]: X.append("    s_sleep %d" % CFG["sleep"])
    X += ["    buffer_load_dword v%d, v%d, %s, 0 offen offset:%d sc1" % (vdst, vaddr, srd(srdb), off), "    s_add_u32 s%d, s%d, 1" % (sSPIN, sSPIN),
          "    s_waitcnt vmcnt(0)", "    v_cmp_eq_u32 vcc, %d, v%d" % (want, vdst), "    s_cbranch_vccnz L_ok%d" % n,
          "    s_cmp_lt_u32 s%d, 0x80000" % sSPIN, "    s_cbranch_scc1 L_spin%d" % n, "L_ok%d:" % n]
    for t in X: P.append(L(t))

C_XA = ACC + 16
N_ONES = ACC + 24
N_T, N_CM, N_SQ, N_ID, N_DL, N_TK = ACC + 32, ACC + 48, ACC + 52, ACC + 60, ACC + 62, ACC + 63
C_A2, C_B2, C_OUT, C_RO = 25, 28, 31, 0
C_FV, C_HC, C_FL, C_ONE, C_DV, C_CM = 16, 20, 21, 22, 23, 24
def compute_setup(ty):
    P = []; a = lambda t, tag=None: P.append(I(t, tag))
    t = list(range(32, 48))
    tok, hi, r, c, mat = t[0:5]
    a("v_and_b32 v%d, 31, v1" % tok); a("v_lshrrev_b32 v%d, 5, v1" % hi)
    a("s_lshl_b32 s%d, s%d, 12" % (sT1, sW)); a("s_add_u32 s%d, s%d, %d" % (sT1, sT1, STG))
    a("v_lshlrev_b32 v%d, 7, v%d" % (t[5], tok)); a("v_add_u32 v%d, s%d, v%d" % (t[5], sT1, t[5]))
    a("v_bfe_u32 v%d, v1, 1, 3" % t[6]); a("v_xor_b32 v%d, v%d, v%d" % (t[6], t[6], hi))
    for k in range(4):
        a("v_xor_b32 v%d, %d, v%d" % (C_XA + k, 2 * k, t[6])); a("v_lshl_add_u32 v%d, v%d, 4, v%d" % (C_XA + k, C_XA + k, t[5]))
        a("v_add_u32 v%d, 0x10000, v%d" % (C_XA + 4 + k, C_XA + k))
    for k in range(4): a("v_mov_b32 v%d, 0x3f803f80" % (N_ONES + k))
    ident(a, N_ID, t[13])
    for j in range(3): a("v_cmp_eq_u32 %s, %d, v%d" % (s(sMK + 2 * j, 2), j + 1, t[13]))
    a("v_mov_b32 v%d, %d" % (C_FL, FL)); a("v_mov_b32 v%d, 1" % C_ONE); a("s_lshl_b32 s%d, s%d, 10" % (sT4, sI)); a("v_mov_b32 v%d, s%d" % (C_CM, sT4))
    a("s_lshl_b32 s%d, s%d, 2" % (sT4, sW)); a("v_add_u32 v18, s%d, v%d" % (sT4, C_FL))
    a("s_lshl_b32 s%d, s%d, 5" % (sT4, sW)); a("v_add_u32 v%d, s%d, v%d" % (N_TK, sT4, tok))
    a("s_lshl_b32 s%d, s%d, 13" % (sT0, sW))
    a("v_bfe_u32 v%d, v1, 2, 2" % r); a("v_and_b32 v%d, 3, v1" % c); a("v_bfe_u32 v%d, v1, 4, 1" % mat)
    a("v_lshlrev_b32 v%d, 3, v%d" % (t[7], c)); a("v_lshl_add_u32 v%d, v%d, 10, v%d" % (t[7], mat, t[7]))
    a("v_lshl_add_u32 v%d, v%d, 11, v%d" % (t[8], hi, t[7])); a("v_lshl_add_u32 v%d, v%d, 7, v%d" % (t[8], r, t[8]))
    a("v_and_b32 v%d, 2, v%d" % (t[9], r)); a("v_xor_b32 v%d, v%d, v%d" % (t[9], t[9], mat))
    for k in range(4):
        a("v_xor_b32 v%d, %d, v%d" % (t[10], k, t[9])); a("v_lshl_add_u32 v%d, v%d, 5, v%d" % (2 + k, t[10], t[8])); a("v_add_u32 v%d, 0x10000, v%d" % (6 + k, 2 + k))
    a("v_lshl_add_u32 v%d, v%d, 9, v%d" % (t[8], hi, t[7])); a("v_lshl_add_u32 v%d, v%d, 6, v%d" % (t[8], r, t[8]))
    for k in range(2):
        a("v_xor_b32 v%d, %d, v%d" % (t[10], k, mat)); a("v_lshl_add_u32 v%d, v%d, 5, v%d" % (10 + k, t[10], t[8])); a("v_add_u32 v%d, 0x10000, v%d" % (12 + k, 10 + k))
    a("v_lshlrev_b32 v%d, 4, v1" % t[11])
    a("s_add_u32 s%d, s%d, %d" % (sT0, sT0, EX)); a("v_add_u32 v15, s%d, v%d" % (sT0, t[11]))
    a("s_lshl_b32 s%d, s%d, 2" % (sT0, sI)); a("s_add_u32 s%d, s%d, s%d" % (sT0, sT0, sW)); a("s_mul_i32 s%d, s%d, %d" % (sT0, sT0, 147456))
    a("s_add_u32 s%d, s%d, %d" % (sT0, sT0, WS_HO)); a("v_add_u32 v14, s%d, v%d" % (sT0, t[11]))
    fcols(a, ty)
    a("s_lshl_b32 s%d, s%d, 6" % (sKS, sKS)); a("s_lshl_b32 s%d, s%d, 6" % (sKS + 1, sKS + 1))
    a("s_lshr_b32 s%d, s%d, 1" % (sT0, sW))
    a("s_lshl_b32 s%d, s%d, 13" % (sT2, sT0)); a("s_add_u32 s%d, s%d, 2048" % (sT2, sT2))
    a("v_add_u32 v%d, s%d, v%d" % (C_A2, sT2, t[11])); a("v_add_u32 v%d, 0x10000, v%d" % (C_A2 + 1, C_A2)); a("v_add_u32 v%d, 0x20000, v%d" % (C_A2 + 2, C_A2))
    u = t[12]
    a("v_bfe_u32 v%d, v1, 3, 1" % u); a("v_xor_b32 v%d, s%d, v%d" % (u, sW1, u)); a("v_lshlrev_b32 v%d, 6, v%d" % (C_B2, u))
    a("v_lshl_add_u32 v%d, v%d, 7, v%d" % (C_B2, r, C_B2)); a("v_lshl_add_u32 v%d, v%d, 9, v%d" % (C_B2, hi, C_B2))
    a("v_and_b32 v%d, 1, v1" % u); a("v_lshl_add_u32 v%d, v%d, 5, v%d" % (C_B2, u, C_B2))
    a("v_lshl_add_u32 v%d, v%d, 4, v%d" % (C_B2, mat, C_B2))
    a("v_bfe_u32 v%d, v1, 1, 1" % u); a("v_lshl_add_u32 v%d, v%d, 3, v%d" % (C_B2, u, C_B2))
    a("v_add_u32 v%d, 0x10000, v%d" % (C_B2 + 1, C_B2)); a("v_add_u32 v%d, 0x20000, v%d" % (C_B2 + 2, C_B2))
    a("s_lshl_b32 s%d, s%d, 6" % (sT2, sTT)); a("s_lshl_b32 s%d, s%d, 5" % (sT3, sT0)); a("s_add_u32 s%d, s%d, s%d" % (sT2, sT2, sT3))
    a("v_add_u32 v%d, s%d, v%d" % (u, sT2, tok))
    a("v_lshlrev_b32 v%d, 2, v%d" % (C_RO, u)); a("v_add_u32 v%d, %d, v%d" % (C_RO, WS_RS, C_RO))
    a("s_lshl_b32 s%d, s%d, 7" % (sT3, sCT)); a("s_lshl_b32 s%d, s%d, 6" % (sT4, sW1)); a("s_add_u32 s%d, s%d, s%d" % (sT3, sT3, sT4))
    a("v_lshlrev_b32 v%d, 10, v%d" % (u, u)); a("v_lshl_add_u32 v%d, v%d, 5, v%d" % (u, hi, u)); a("v_add_u32 v%d, s%d, v%d" % (C_OUT, sT3, u))
    return P

def compute(ty):
    P = compute_setup(ty); a = lambda t, tag=None: P.append(I(t, tag))
    NB = CFG["nb%d" % ty]; CH = checks(ty)
    ops = []; queue = []
    sl = slabs_of(ty); gu_seen = 0; ex_seen = 0
    firstuse = {}; epi = []
    for n, (pi, kind, sg) in enumerate(sl):
        slot = slot_of(n); win = slot >> 2; base = (slot & 3) * SLOT
        e, tiles = PH[ty][pi][1:]
        order = tiles if sg == 0 else sorted(tiles)
        nk = 4 if kind == "P4" else 8
        last = sg == (7 if kind == "P4" else 3)
        seq = [(t, u) for t in order for u in range(nk)]
        for t, u in seq:
            if sg == 0 and u == 0: firstuse[(pi, t)] = len(ops)
            if True:
                m = len(ops); fb = WF + 4 * (m & 7)
                if kind == "P4": ar, off, dq, xs = 2 + 4 * win + t, base + u * 4096, 512, sg * 4 + u
                else: ar, off, dq, xs = 10 + 2 * win + (t & 1), base + u * 2048, 256, sg * 8 + u
                acc = v(ACC + 16 * t, 16)
                ops.append(dict(slab=n, reads=[("ds_read_b64_tr_b16 %s, v%d offset:%d" % (v(fb, 2), ar, off), ("f", m)),
                                               ("ds_read_b64_tr_b16 %s, v%d offset:%d" % (v(fb + 2, 2), ar, off + dq), ("f", m))],
                                waits=[("f", m)], la=CFG["LA"],
                                mfma="v_mfma_f32_32x32x16_bf16 %s, %s, %s, %s" % (acc, v(fb, 4), v(XR + 4 * xs, 4), "0" if (sg == 0 and u == 0) else acc)))
            if last and u == nk - 1:
                A = ACC + 16 * t; E = []
                if e == "gu":
                    for j in range(8): E.append(I("v_mul_f32 v%d, v%d, v%d" % (A + j, A + j, A + j + 8)))
                    for j in range(4): E.append(I("v_cvt_pk_bf16_f32 v%d, v%d, v%d" % (A + j, A + 2 * j, A + 2 * j + 1)))
                    E.append(I("buffer_store_dwordx4 %s, v14, %s, s%d offen offset:%d sc1" % (v(A, 4), srd(SWS), sKS + gu_seen, t * 1024), ("h", gu_seen)))
                else:
                    for j in range(4):
                        for k in (2 * j, 2 * j + 1): E.append(I("v_cvt_pk_bf16_f32 v%d, v%d, v%d" % (A + k, A + 2 * k, A + 2 * k + 1)))
                        E.append(I("ds_write_b64 v15, %s offset:%d" % (v(A + 2 * j, 2), t * 2048 + (j >> 1) * 1024 + (j & 1) * 8)))
                    if t == order[-1]:
                        g = []; one_lane(g, "ds_add_u32 v%d, v%d offset:%d" % (C_FL, C_ONE, F_EX + 4 * ex_seen)); E.append(g); ex_seen += 1
                epi.append((len(ops) + 1, pi, t, E))
        if last and e == "gu":
            lb = newlbl(); kind_ = (C_H1B if ty else C_H1A) if gu_seen == 0 else C_H2
            g1 = [W(vm=[("h", gu_seen)])]; one_lane(g1, "ds_add_rtn_u32 v%d, v%d, v%d offset:%d" % (C_HC, C_FL, C_ONE, F_H + 4 * gu_seen), ("hc", gu_seen))
            g2 = [W(lg=[("hc", gu_seen)]), I("v_readfirstlane_b32 s%d, v%d" % (sT4, C_HC)), I("s_cmp_lg_u32 s%d, %d" % (sT4, 4 if gu_seen == 0 else 3)),
                  I("s_cbranch_scc1 L_hs%d" % lb), L("    s_mov_b64 exec, 1"),
                  L("    buffer_atomic_add v%d, v%d, %s, 0 offen offset:%d sc1" % (C_ONE, C_CM, srd(SWS), kind_ * 256)), L("    s_mov_b64 exec, -1"), L("L_hs%d:" % lb)]
            w0 = len(ops) + 6 + CFG["hwait1" if gu_seen == 0 else "hwait2"]
            epi.append((w0, 99, 0, [g1])); epi.append((w0 + 4, 99, 0, [g2]))
            gu_seen += 1
    n1 = len(ops)
    HB = XR; RES = XR + 32; R2 = XR + 40
    Y, S_ = (ACC + 32, ACC + 48) if ty == 1 else (XR + 48, XR + 64)
    for n in range(20, 56):
        slot = slot_of(n); win = slot >> 2; base = (slot & 3) * SLOT
        acc = v(Y if n < 48 else S_, 16)
        for kk in range(4):
            m = len(ops); fb = WF + 4 * (m & 7); hb = HB + 4 * (m & 7)
            ops.append(dict(slab=n, reads=[("ds_read_b64_tr_b16 %s, v%d offset:%d" % (v(fb, 2), C_B2 + win, base + kk * 4096), ("f", m)),
                                           ("ds_read_b64_tr_b16 %s, v%d offset:%d" % (v(fb + 2, 2), C_B2 + win, base + kk * 4096 + 1024), ("f", m)),
                                           ("ds_read_b128 %s, v%d offset:%d" % (v(hb, 4), C_A2 + win, base + (kk >> 1) * 4096 + (kk & 1) * 1024), ("f", m))],
                            waits=[("f", m)], la=4 if not (CFG["h2now"] and n == 20) else kk + 1,
                            mfma="v_mfma_f32_32x32x16_bf16 %s, %s, %s, %s" % (acc, v(fb, 4), v(hb, 4), "0" if (n in (20, 48) and kk == 0) else acc)))
    X = []; x = lambda t: X.append(I(t)); r = N_SQ
    for j in range(4): x("v_add_f32 v%d, v%d, v%d" % (r + j, r + j, r + j + 4))
    for j in range(3): x("v_cndmask_b32 v%d, v%d, v%d, %s" % (r, r, r + j + 1, s(sMK + 2 * j, 2)))
    x("v_mov_b32 v%d, v%d" % (r + 1, r)); x("v_permlane32_swap_b32 v%d, v%d" % (r, r + 1)); x("v_add_f32 v%d, v%d, v%d" % (r, r, r + 1))
    x("v_mul_f32 v%d, 0x3b000000, v%d" % (r, r)); x("v_fma_f32 v%d, -v%d, v%d, v%d" % (r, N_DL, N_DL, r)); x("v_max_f32 v%d, 0, v%d" % (r, r))
    def rnd(): x("v_cvt_pk_bf16_f32 v%d, v%d, v%d" % (r + 1, r, r)); x("v_and_b32 v%d, 0xffff0000, v%d" % (r, r + 1))
    rnd(); x("v_add_f32 v%d, 0x3727c5ac, v%d" % (r, r)); rnd(); x("v_sqrt_f32 v%d, v%d" % (r, r)); rnd()
    x("v_rcp_f32 v%d, v%d" % (r, r))
    x("v_lshl_add_u32 v%d, v%d, 1, v%d" % (r + 2, N_TK, C_FL)); x("v_lshl_add_u32 v%d, v%d, 2, v%d" % (r + 3, N_TK, C_FL))
    x("ds_write_b16 v%d, v%d offset:%d" % (r + 2, r + 1, LSD - FL)); x("ds_write_b32 v%d, v%d offset:%d" % (r + 3, r, LRS - FL))
    for it in X: queue.append((18, 50, it))
    for e0, pi, t, E in epi:
        dl = min([x for (p2, t2), x in firstuse.items() if p2 > pi and t2 == t] + [10 ** 9]) - 1
        for it in E: queue.append((e0, dl, it))
    G = XR + 80; XF = XR + 96; E = []
    E.append(I("buffer_load_dwordx4 %s, v%d, %s, 0 offen" % (v(RES, 4), C_OUT, srd(SX)), "res"))
    E.append(I("buffer_load_dwordx4 %s, v%d, %s, 0 offen offset:16" % (v(RES + 4, 4), C_OUT, srd(SX)), "res"))
    E.append(I("buffer_load_dword v%d, v%d, %s, 0 offen sc1" % (R2, C_RO, srd(SWS)), "res"))
    for it in E: queue.append((n1 + 48, 10 ** 9, it))
    E = [W(vm=["res"]), I("v_mul_f32 v%d, v%d, v%d" % (R2, R2, R2)), I("v_mul_f32 v%d, s%d, v%d" % (R2 + 1, sL2E, R2))]
    for j in range(8):
        E.append(I("v_lshlrev_b32 v%d, 16, v%d" % (XF + 2 * j, RES + j))); E.append(I("v_and_b32 v%d, 0xffff0000, v%d" % (XF + 2 * j + 1, RES + j)))
    for it in E: queue.append((n1 + 24 * 4, 10 ** 9, it))
    E = []
    for j in range(16): E.append(I("v_mul_f32 v%d, v%d, v%d" % (G + j, R2 + 1, Y + j)))
    for j in range(16): E.append(I("v_exp_f32 v%d, -v%d" % (G + j, G + j)))
    for j in range(16): E.append(I("v_mul_f32 v%d, v%d, v%d" % (Y + j, R2, Y + j)))
    for j in range(16): E.append(I("v_add_f32 v%d, 1.0, v%d" % (G + j, G + j)))
    for j in range(16): E.append(I("v_rcp_f32 v%d, v%d" % (G + j, G + j)))
    for j in range(16): E.append(I("v_mul_f32 v%d, v%d, v%d" % (G + j, G + j, Y + j)))
    for it in E: queue.append((n1 + 28 * 4 + 1, 10 ** 9, it))
    queue.sort(key=lambda x: x[0])
    first = {}
    for m, o in enumerate(ops): first.setdefault(o["slab"], m)
    fread = {first[n] - ops[first[n]]["la"] - (CFG["LAF"] if n <= 20 else 3): n for n in CH}
    lastdone = prev_user(min(NB + CFG["ahead2"], 56) - 1)
    def done(n):
        a("v_mov_b32 v%d, %d" % (C_DV, n + 1)); one_lane(P, "ds_write_b32 v18, v%d offset:%d" % (C_DV, F_DONE))
    issued = 0; cur = 0
    def issue_reads(upto_fn):
        nonlocal issued, cur
        while issued < len(ops) and upto_fn(issued):
            o = ops[issued]
            if o["slab"] > cur:
                cur = o["slab"]
                if cur > 20 and cur - 1 <= lastdone: done(cur - 1)
                if cur >= NB: a("s_barrier")
                elif cur in CH:
                    lb = newlbl()
                    a("s_cbranch_vccnz L_cs%d" % lb); P.append(L("L_cb%d:" % lb))
                    STUBS.extend(["L_cs%d:" % lb, "    s_movk_i32 s%d, %d" % (sSPIN + 1, CH[cur] + 1),
                                  "    s_call_b64 %s, L_spin_c" % s(sRET, 2), "    s_branch L_cb%d" % lb])
            for t, tag in o["reads"]: a(t, tag)
            issued += 1
    def cstamp(k):
        r = sPH + 2 * (k & 1)
        if k > 2:
            a("s_sub_u32 s%d, s%d, s%d" % (r, r, sTM)); a("v_writelane_b32 v19, s%d, %d" % (r, k - 2))
        elif k == 1: a("v_mov_b32 v19, 0")
        P.append(L("    s_memtime %s" % s(r, 2)))
    SM = ACC
    for j in range(4):
        a("s_barrier")
        for k in range(8 * j, 8 * j + 8):
            a("ds_read_b128 %s, v%d offset:%d" % (v(XR + 4 * k, 4), C_XA + (k & 3) + 4 * (k >> 4), ((k >> 2) & 3) * 16384), ("xn", k))
        for k in range(8 * j, 8 * j + 8):
            P.append(W(lg=[("xn", k)]))
            if k == 31: a("s_barrier")
            for h in range(2):
                xx = v(XR + 4 * k + 2 * h, 2); c = v(SM + 4 * h, 4); q = v(N_SQ + 4 * h, 4)
                a("v_mfma_f32_4x4x4_16b_bf16 %s, %s, %s, %s" % (c, v(N_ONES, 2), xx, "0" if k == 0 else c))
                a("v_mfma_f32_4x4x4_16b_bf16 %s, %s, %s, %s" % (q, xx, xx, "0" if k == 0 else q))
    a("s_waitcnt vmcnt(0)")
    issue_reads(lambda m: m < CFG["LA"])
    a("v_add_f32 v%d, v%d, v%d" % (SM, SM, SM + 4)); a("v_mov_b32 v%d, v%d" % (SM + 1, SM)); a("v_permlane32_swap_b32 v%d, v%d" % (SM, SM + 1))
    a("v_add_f32 v%d, v%d, v%d" % (SM, SM, SM + 1))
    a("v_mul_f32 v%d, 0xbb000000, v%d" % (N_DL, SM))
    a("v_cvt_pk_bf16_f32 v%d, v%d, v%d" % (SM, N_DL, N_DL))
    for j in range(4): a("v_and_b32 v%d, 0xffff0000, v%d" % (N_CM + j, SM))
    def cen(k, h): a("v_mfma_f32_4x4x4_16b_bf16 %s, %s, %s, %s" % (v(N_T + 8 * (k & 1) + 4 * h, 4), v(N_ID, 2), v(XR + 4 * k + 2 * h, 2), v(N_CM, 4)))
    def cvt(k, h):
        for j in (2 * h, 2 * h + 1): a("v_cvt_pk_bf16_f32 v%d, v%d, v%d" % (XR + 4 * k + j, N_T + 8 * (k & 1) + 2 * j, N_T + 8 * (k & 1) + 2 * j + 1))
    cen(0, 0); cen(0, 1); cen(1, 0)
    for k in range(32):
        for h in range(2):
            kn, hn = k + (h + 3) // 2, (h + 3) & 1
            if kn < 32: cen(kn, hn)
            cvt(k, h)
    qi = 0
    for m, o in enumerate(ops):
        P.append(W(lg=o["waits"]))
        a(o["mfma"])
        if CFG["probe"] and m == CFG["probeat"]: P.append(L("    s_memrealtime s[6:7]"))
        if m == n1 - 1 and CFG["h2now"]:
            lim = n1 + 1 if CFG["h2now"] == 1 else n1 + 40
            while queue[qi][0] <= lim:
                it = queue[qi][2]; P += it if isinstance(it, list) else [it]; qi += 1
        issue_reads(lambda k: k - ops[k]["la"] <= m)
        for n in range(1, 56):
            d = m - (first[n] - ops[first[n]]["la"])
            if d == -1 and n in CH:
                P.append(W(lg=[("fl", n)])); a("v_min_u32 v%d, v%d, v%d" % (C_FV, C_FV, C_FV + 1)); a("v_cmp_ge_u32 vcc, %d, v%d" % (CH[n], C_FV))
            if d == 1 and n <= 20: done(n - 1)
            if d == (2 if n <= 20 else 0) and CFG["stamps"] and not CFG["zoom"]: cstamp(n)
            if CFG["zoom"] and m == CFG["zoom"] + n: cstamp(n)
        if m in fread: a("ds_read_b64 %s, v%d offset:%d" % (v(C_FV, 2), C_FL, F_LAND), ("fl", fread[m]))
        rate = CFG["erate"] if m < n1 else 5
        cnt = 0
        while qi < len(queue) and queue[qi][0] <= m and cnt < rate:
            assert m <= queue[qi][1], ("filler past its deadline", ty, m, queue[qi][1])
            it = queue[qi][2]
            if isinstance(it, list): P += it; cnt += 2
            else: P.append(it)
            qi += 1; cnt += 1
    assert qi == len(queue)
    for j in range(16): a("v_fma_f32 v%d, v%d, v%d, v%d" % (G + j, S_ + j, G + j, XF + j))
    for j in range(8): a("v_cvt_pk_bf16_f32 v%d, v%d, v%d" % (XF + j, G + 2 * j, G + 2 * j + 1))
    if CFG["xprobe"]:
        lb = newlbl()
        a("s_getreg_b32 s6, hwreg(HW_REG_XCC_ID, 0, 4)"); a("s_and_b32 s7, s2, 7"); a("s_cmp_eq_u32 s6, s7"); a("s_cbranch_scc1 L_xp%d" % lb)
        for _ in range(6): a("s_sleep 127")
        P.append(L("L_xp%d:" % lb))
    if CFG["probe"]:
        lb = newlbl()
        if CFG["probeat"] < 0: a("s_memrealtime s[6:7]")
        P.append(W(lg="all")); a("s_sub_u32 s6, s6, s4")
        a("s_cmp_le_u32 s6, %d" % CFG["probe"]); a("s_cbranch_scc1 L_xp%d" % lb)
        for _ in range(6): a("s_sleep 127")
        P.append(L("L_xp%d:" % lb))
    a("buffer_store_dwordx4 %s, v%d, %s, 0 offen%s" % (v(XF, 4), C_OUT, srd(SOUT), CFG["outfl"]))
    a("buffer_store_dwordx4 %s, v%d, %s, 0 offen offset:16%s" % (v(XF + 4, 4), C_OUT, srd(SOUT), CFG["outfl"]))
    if CFG["stamps"]:
        one_lane(P, "ds_add_u32 v%d, v%d offset:%d" % (C_FL, C_ONE, F_END))
        cstamp(56); cstamp(57); P.append(W(lg="all")); cstamp(58)
        a("s_lshl_b32 s%d, s2, 8" % sT0); a("s_add_u32 s%d, s%d, %d" % (sT0, sT0, WS_ST + 0x20000))
        a("v_lshlrev_b32 v18, 2, v1")
        a("s_cmp_lg_u32 s%d, %d" % (sW, CFG["stampw"])); a("s_cbranch_scc1 L_exit")
        a("buffer_store_dword v19, v18, %s, s%d offen" % (srd(SWS), sT0))
    a("s_endpgm")
    return P

D_P = 32
D_A, D_B, D_B2, D_TAB, D_FL, D_LA, D_ONE, D_ZERO, D_CC, D_POLL, D_LV = range(2, 13)
D_DV = 28
D_TCH = 20
def phase_info(ty):
    return [(kind, 3584, SG, SU) if e == "gu" else (kind, 3072, SQKV, SQKV) for kind, e, _ in PH[ty]]
def dma_setup(ty):
    P = []; b = lambda t, tag=None: P.append(I(t, tag))
    t0, t1, t2, t3, u0, u1, u2 = range(64, 71)
    b("v_mov_b32 v%d, 0" % D_ZERO); b("v_mov_b32 v%d, 0" % D_TAB)
    b("v_mov_b32 v%d, 1" % D_ONE); b("v_mov_b32 v%d, %d" % (D_FL, FL))
    b("s_lshl_b32 s%d, s%d, 2" % (sT0, sW1)); b("v_add_u32 v%d, s%d, v%d" % (D_LA, sT0, D_FL))
    b("s_lshr_b32 s%d, s%d, 1" % (sT0, sTT)); b("s_lshl_b32 s%d, s%d, 10" % (sT0, sT0)); b("v_mov_b32 v%d, s%d" % (D_CC, sT0))
    b("s_lshl_b32 s%d, s%d, 1" % (sT0, sTT)); b("s_add_u32 s%d, s%d, s%d" % (sT0, sT0, sW1))
    b("s_mul_i32 s%d, s%d, 147456" % (sT0, sT0)); b("s_add_u32 s%d, s%d, %d" % (sT0, sT0, WS_HO - 2048))
    b("v_lshlrev_b32 v%d, 4, v1" % u0); b("v_add_u32 v%d, s%d, v%d" % (D_A, sT0, u0))
    b("v_lshrrev_b32 v%d, 3, v1" % u0); b("v_and_b32 v%d, 2, v%d" % (u1, u0)); b("v_lshlrev_b32 v%d, 1, v%d" % (u1, u1))
    b("v_and_b32 v%d, 7, v1" % u2); b("v_xor_b32 v%d, v%d, v%d" % (u2, u2, u1))
    b("v_lshlrev_b32 v%d, 10, v%d" % (u0, u0)); b("v_lshl_add_u32 v%d, v%d, 4, v%d" % (D_B, u2, u0))
    b("s_lshl_b32 s%d, s%d, 15" % (sT0, sW1)); b("s_lshl_b32 s%d, s%d, 7" % (sT1, sCT)); b("s_add_u32 s%d, s%d, s%d" % (sT0, sT0, sT1))
    b("v_add_u32 v%d, s%d, v%d" % (D_B, sT0, D_B)); b("v_add_u32 v%d, %d, v%d" % (D_B2, 8192 - 1024, D_B))
    fcols(b, ty)
    gu = 0
    for pi, (kind, e, _) in enumerate(PH[ty]):
        stride = 3584 if e == "gu" else 3072
        (p4_voffs if kind == "P4" else p2_voffs)(b, u0, u1, stride, t0)
        if e == "gu": b("s_lshl_b32 s%d, s%d, 1" % (sT1, sKS + gu)); db = 0; gu += 1
        elif e == "kv": b("s_mov_b32 s%d, s%d" % (sT1, sKC)); db = 1024
        else: b("s_lshl_b32 s%d, s%d, 7" % (sT1, sGR)); db = 64
        step = (8 if kind == "P4" else 16) * stride
        b("v_add_u32 v%d, s%d, v%d" % (u0, sT1, u0)); b("v_add_u32 v%d, s%d, v%d" % (u1, sT1, u1))
        for p in range(4):
            b("v_add_u32 v%d, %d, v%d" % (D_P + 4 * pi + p, 4096 + (p >> 1) * step - p * 1024 + (db if p & 1 else 0), u1 if p & 1 else u0))
    b("s_lshl_b32 s%d, s%d, 13" % (sLA, sW1))
    nr = 32 if CFG["map"] == 84 else 64
    b("s_lshl_b32 s%d, s%d, 6" % (sT0, sXR)); b("s_mul_i32 s%d, s%d, %d" % (sT1, sW1, nr)); b("s_add_u32 s%d, s%d, s%d" % (sT0, sT0, sT1))
    b("v_add_u32 v%d, s%d, v1" % (t2, sT0)); b("v_mul_u32_u24 v%d, 3072, v%d" % (D_TCH + 3, t2)); b("v_mul_u32_u24 v%d, 3584, v%d" % (D_TCH + 2, t2))
    b("s_lshl_b32 s%d, s%d, 7" % (sT0, sGR)); b("s_add_u32 s%d, s%d, 4096" % (sT0, sT0)); b("v_add_u32 v%d, s%d, v%d" % (D_TCH + 3, sT0, D_TCH + 3))
    b("v_add_u32 v%d, 4096, v%d" % (D_TCH + 2, D_TCH + 2))
    b("s_lshl_b32 s%d, s%d, 1" % (sKS, sKS)); b("s_lshl_b32 s%d, s%d, 1" % (sKS + 1, sKS + 1))
    b("s_lshl_b32 s%d, s%d, 1" % (sT0, sSH)); b("s_add_u32 s%d, s%d, s%d" % (sT0, sT0, sW1))
    if CFG["map2"] == 48: b("v_lshlrev_b32 v%d, 7, v1" % t2)
    else:
        b("v_lshrrev_b32 v%d, 2, v1" % t2); b("v_lshlrev_b32 v%d, 10, v%d" % (t2, t2)); b("v_and_b32 v%d, 3, v1" % t3); b("v_lshl_add_u32 v%d, v%d, 7, v%d" % (t2, t3, t2))
        b("s_and_b32 s%d, s%d, 4" % (sT1, sCT)); b("s_lshl_b32 s%d, s%d, 7" % (sT1, sT1)); b("v_add_u32 v%d, s%d, v%d" % (t2, sT1, t2))
    b("s_mul_i32 s%d, s%d, %d" % (sT1, sT0, 28 * 1024)); b("v_add_u32 v%d, s%d, v%d" % (D_TCH, sT1, t2))
    b("s_lshl_b32 s%d, s%d, 13" % (sT1, sT0)); b("v_add_u32 v%d, s%d, v%d" % (D_TCH + 1, sT1, t2))
    def seg(lo, items):
        for t in items: b(t)
        b("v_cmp_le_u32 vcc, %d, v1" % lo); b("v_cndmask_b32 v%d, v%d, v%d, vcc" % (D_TAB, D_TAB, t1))
    b("s_add_u32 s%d, s%d, s%d" % (sT0, sR1, sW1))
    n0 = 0
    for pi, (kind, e, _) in enumerate(PH[ty]):
        stride = 3584 if e == "gu" else 3072
        if kind == "P4":
            seg(n0, ["v_add_u32 v%d, s%d, v1" % (t1, sR1), "v_add_u32 v%d, %d, v%d" % (t1, (-n0) & 7, t1), "v_and_b32 v%d, 7, v%d" % (t1, t1),
                     "v_lshlrev_b32 v%d, 1, v%d" % (t1, t1), "v_add_u32 v%d, s%d, v%d" % (t1, sW1, t1), "v_mul_u32_u24 v%d, %d, v%d" % (t1, 32 * stride, t1)]); n0 += 8
        else:
            seg(n0, ["v_lshlrev_b32 v%d, 1, v1" % t1, "v_add_u32 v%d, s%d, v%d" % (t1, sT0, t1), "v_and_b32 v%d, 7, v%d" % (t1, t1),
                     "v_mul_u32_u24 v%d, %d, v%d" % (t1, 64 * stride, t1)]); n0 += 4
    b("v_add_u32 v%d, s%d, v1" % (t0, sR2)); b("v_and_b32 v%d, 7, v%d" % (t2, t0))
    seg(20, ["v_lshlrev_b32 v%d, 13, v%d" % (t1, t2)])
    seg(28, ["v_lshrrev_b32 v%d, 1, v%d" % (t3, t2), "v_lshlrev_b32 v%d, 1, v%d" % (t1, t2), "v_sub_u32 v%d, v%d, v%d" % (t1, t1, t3),
             "v_add_u32 v%d, 16, v%d" % (t1, t1), "v_lshlrev_b32 v%d, 12, v%d" % (t1, t1)])
    seg(36, ["v_lshlrev_b32 v%d, 13, v%d" % (t1, t2), "v_add_u32 v%d, 4096, v%d" % (t1, t1)])
    seg(44, ["v_and_b32 v%d, 3, v%d" % (t1, t0), "v_mul_u32_u24 v%d, 3, v%d" % (t1, t1), "v_add_u32 v%d, 17, v%d" % (t1, t1), "v_lshlrev_b32 v%d, 12, v%d" % (t1, t1)])
    seg(48, ["v_lshlrev_b32 v%d, 12, v%d" % (t1, t2)])
    return P

def dma_wave(ty):
    P = [M(("x", 1))] + dma_setup(ty); a = lambda t, tag=None: P.append(I(t, tag))
    stamp = lambda k: stamp_to(P, k)
    stamp_to(P, 1, H_STAMP2)
    NB = CFG["nb%d" % ty]; CH = checks(ty)
    sl = slabs_of(ty); info = phase_info(ty)
    def look(n):
        if n < 56: a("v_readlane_b32 s%d, v%d, %d" % (sPH + 2 * (n & 1), D_TAB, n))
    def part(n, which, nxt):
        so = sPH + 2 * (n & 1); cap = CFG["cap1"]
        if which == "B": a("s_lshl_b32 s%d, s%d, 4" % (so, so))
        for h in range(2):
            a("s_add_u32 m0, s%d, %d" % (sLA, slot_of(n) * SLOT + h * 4096))
            if h: a("s_add_u32 s%d, s%d, %d" % (so, so, 16384 if which == "B" else 2048))
            elif (nxt ^ n) & 1: look(nxt)
            room(16, cap)
            if which == "B":
                vm("buffer_load_dwordx4 v%d, %s, s%d offen lds" % (D_B, srd(SWD), so), 8)
                vm("buffer_load_dwordx4 v%d, %s, s%d offen offset:1024 lds" % (D_B2, srd(SWD), so), 8)
            else:
                vm("buffer_load_dwordx4 v%d, %s, s%d offen offset:2048 sc1 lds" % (D_A, srd(SWS), so), 8, ("slab", n))
                vm("buffer_load_dwordx4 v%d, %s, s%d offen offset:3072 sc1 lds" % (D_A, srd(SWS), so), 8, ("slab", n))
        if not (nxt ^ n) & 1: look(nxt)
    hist = []
    def room(w, cap):
        tot = w; k = 0
        while k < len(hist) and tot + hist[-1 - k] <= cap: tot += hist[-1 - k]; k += 1
        if k < len(hist): a("s_waitcnt vmcnt(%d)" % min(k, 63))
    def vm(t, w, tag=None): a(t, tag); hist.append(w)
    def dma(n):
        so = sPH + 2 * (n & 1); cap = CFG["cap1"] if n < CFG["capsw"] else CFG["cap2"]
        for h in range(2):
            a("s_add_u32 m0, s%d, %d" % (sLA, slot_of(n) * SLOT + h * 4096))
            if n < 20:
                pi, kind, sg = sl[n]; _, stride, sa, sb = info[pi]
                w = 16 if (kind == "P2" and PH[ty][pi][1] != "q") else 8
                if h: a("s_add_u32 s%d, s%d, %d" % (so, so, (16 if kind == "P4" else 32) * stride))
                else: look(n + 1)
                for p in range(4):
                    if p % 2 == 0: room(2 * w, cap)
                    vm("buffer_load_dwordx4 v%d, %s, s%d offen offset:%d lds" % (D_P + 4 * pi + p, srd(sb if p & 1 else sa), so, p * 1024), w, ("slab", n))
            else:
                if h: a("s_add_u32 s%d, s%d, 2048" % (so, so)); a("s_add_u32 s%d, s%d, 16384" % (so + 1, so + 1))
                else:
                    a("s_lshl_b32 s%d, s%d, 4" % (so + 1, so)); look(n + 1)
                    if n == 48: a("v_add_u32 v%d, %d, v%d" % (D_A, 28 * 4096, D_A))
                wb = srd(SWD if n < 48 else SWO)
                room(16, cap)
                vm("buffer_load_dwordx4 v%d, %s, s%d offen lds" % (D_B, wb, so + 1), 8, ("slab", n))
                vm("buffer_load_dwordx4 v%d, %s, s%d offen offset:1024 lds" % (D_B2, wb, so + 1), 8, ("slab", n))
                room(16, cap)
                vm("buffer_load_dwordx4 v%d, %s, s%d offen offset:2048 sc1 lds" % (D_A, srd(SWS), so), 8, ("slab", n))
                vm("buffer_load_dwordx4 v%d, %s, s%d offen offset:3072 sc1 lds" % (D_A, srd(SWS), so), 8, ("slab", n))
    def touch(which):
        nr = 32 if CFG["map"] == 84 else 64; dst = D_TCH + 4; cap = CFG["cap1"]
        for w in which:
            if w in ("q", "g0", "g1"):
                if nr == 32: a("s_mov_b32 exec_hi, 0")
                if w == "q": room(nr, cap); vm("buffer_load_dword v%d, v%d, %s, 0 offen" % (dst, D_TCH + 3, srd(SQKV)), nr)
                else:
                    for d in (SG, SU): room(nr, cap); vm("buffer_load_dword v%d, v%d, %s, s%d offen" % (dst, D_TCH + 2, srd(d), sKS + int(w[1])), nr)
            elif w == "o":
                if CFG["map2"] == 84: a("s_mov_b32 exec_hi, 0")
                k = 64 if CFG["map2"] == 48 else 32
                room(k, cap); vm("buffer_load_dword v%d, v%d, %s, 0 offen" % (dst, D_TCH + 1, srd(SWO)), k)
            else:
                j = int(w[1])
                if j >= (4 if CFG["map2"] == 48 else 2): continue
                a("s_mov_b32 exec_hi, 0xffffff"); a("s_mov_b32 s%d, %d" % (sT0, j * 56 * (128 if CFG["map2"] == 48 else 256)))
                room(56, cap); vm("buffer_load_dword v%d, v%d, %s, s%d offen" % (dst, D_TCH, srd(SWD), sT0), 56)
            a("s_mov_b64 exec, -1")
    def mark(X, m):
        X.append(I("v_mov_b32 v%d, %d" % (D_LV, m + 1))); one_lane(X, "ds_max_u32 v%d, v%d offset:%d" % (D_LA, D_LV, F_LAND))
    def publish(m):
        if m in CH.values():
            P.append(W(vm=[("slab", m)])); mark(P, m)
            if CFG["stamps"] == 2 or m % 4 == 3: stamp(m)
    def flush(n):
        g = [I("s_waitcnt vmcnt(0)")]; mark(g, n - 1); return g
    for d in (SQKV, SG, SU):
        a("s_sub_u32 s%d, s%d, 4096" % (d, d)); a("s_subb_u32 s%d, s%d, 0" % (d + 1, d + 1)); a("s_add_u32 s%d, s%d, 4096" % (d + 2, d + 2))
    gates = {20: (C_H1A, 8), 28: (C_H1B, 8), 36: (C_H2, 16), 48: (C_O, 16)}
    def do_gate(n):
        stamp_to(P, 20 + 2 * list(gates).index(n), H_STAMP2)
        gate(P, D_CC, SWS, gates[n][0] * 256, ("poll", n), D_POLL, gates[n][1], slow=flush(n) if n <= NB + CFG["ahead2"] else None)
        stamp_to(P, 21 + 2 * list(gates).index(n), H_STAMP2)
    def poll(gn): vm("buffer_load_dword v%d, v%d, %s, 0 offen offset:%d sc1" % (D_POLL, D_CC, srd(SWS), gates[gn][0] * 256), 1, ("poll", gn))
    nbf = CFG["bfirst"]
    def issue(n):
        if n in gates and not (n == 20 and nbf): do_gate(n)
        if n + CFG["pollat"] in gates and not (n + CFG["pollat"] == 20 and nbf): poll(n + CFG["pollat"])
        dma(n)
    def do_touch(n):
        tp = CFG["tplan%d" % ty].get(str(n))
        if tp:
            touch(tp.split()[:1])
            if n > 1: P.append(W(vm=[("slab", n)])); mark(P, n)
            touch(tp.split()[1:])
    look(0)
    hist += [16] * 8
    xstages(P, {2: lambda: dma(0), 3: lambda: (dma(1), do_touch(1))})
    stamp(60)
    P.append(W(vm=[("slab", 0)]))
    a("s_barrier")
    stamp(61)
    publish(1)
    for n in range(2, min(NB + CFG["ahead2"], 56)):
        pu = prev_user(n)
        if pu >= 0:
            lb = newlbl()
            P.append(W(lg=[("dn", n)]))
            a("v_min3_u32 v%d, v%d, v%d, v%d" % (D_DV, D_DV, D_DV + 2, D_DV + 3)); a("v_min_u32 v%d, v%d, v%d" % (D_DV, D_DV, D_DV + 1))
            a("v_cmp_ge_u32 vcc, %d, v%d" % (pu, D_DV)); a("s_cbranch_vccz L_fr%d" % lb)
            raw(P, flush(min(n, 20) if n < 20 + nbf else n) + [I("s_movk_i32 s%d, %d" % (sSPIN + 1, pu + 1)), I("s_call_b64 %s, L_spin_d" % s(sRET, 2))]); P.append(L("L_fr%d:" % lb))
        if n == 24:
            count_wait(P, D_FL, D_DV, F_EXF, 2)
        if n == 12: vm("buffer_load_dword v%d, v%d, %s, 0 offen sc1" % (D_POLL, D_ZERO, srd(SDBG)), 1, "pollinit")
        if n == 15: gate(P, D_ZERO, SDBG, 0, "pollinit", D_POLL, 1)
        if n + 1 < NB + CFG["ahead2"] and prev_user(n + 1) >= 0: a("ds_read_b128 %s, v%d offset:%d" % (v(D_DV, 4), D_FL, F_DONE), ("dn", n + 1))
        if 20 <= n < 20 + nbf:
            lastb = n == 20 + nbf - 1
            if lastb: poll(20)
            part(n, "B", 20 if lastb else n + 1)
            if n < 22: publish(n - 2)
            if lastb:
                do_gate(20)
                for m in range(20, n + 1):
                    if m + CFG["pollat"] in gates: poll(m + CFG["pollat"])
                    part(m, "A", m + 1)
                    if m - 3 >= 20: publish(m - 3)
                publish(n - 2)
        else:
            issue(n)
            publish(n - 2 if n > 4 else n - 1)
        do_touch(n)
    for m in range(n - 1, NB): publish(m)
    for nb in range(NB, 56):
        n = nb + CFG["ahead2"]
        P.append(W(vm=[("slab", nb)]))
        a("s_barrier")
        if CFG["stamps"] == 2 or nb % 4 == 3: stamp(nb)
        if n < 56:
            assert prev_user(n) <= nb - 2
            issue(n)
    if CFG["stamps"]:
        count_wait(P, D_FL, D_DV, F_END, 4)
        stamp(62)
        a("s_memrealtime s[6:7]"); P.append(W(lg="all"))
        a("v_writelane_b32 v%d, s4, 62" % H_STAMP2); a("v_writelane_b32 v%d, s6, 63" % H_STAMP2)
        a("s_lshl_b32 s%d, s2, 8" % sT0); a("s_add_u32 s%d, s%d, %d" % (sT0, sT0, WS_ST))
        a("v_lshlrev_b32 v64, 2, v1")
        a("s_cmp_lg_u32 s%d, %d" % (sW1, CFG["stampw"] & 1)); a("s_cbranch_scc1 L_exit")
        a("buffer_store_dword v%d, v64, %s, s%d offen" % (H_STAMP, srd(SWS), sT0))
        a("s_add_u32 s%d, s%d, 0x10000" % (sT0, sT0))
        a("buffer_store_dword v%d, v64, %s, s%d offen" % (H_STAMP2, srd(SWS), sT0))
    a("s_endpgm")
    return P

A_ONE, A_ZERO, A_CM, A_CK, A_CQ, A_FL, A_RK, A_RV, A_ST, A_ZA, A_PL, A_ZL, A_OS, A_SGN = range(2, 16)
A_POLL, A_FV, A_TCH = 25, 27, 28
A_ID = 32
A_WP = 36
A_R = 16
A_ACC = 56
A_RAW = 72
A_T = 72
A_KF = 112
A_SD = 128; A_PHI = 144
A_PQ = 128
A_LD = 192
def softmax_unit(wp, kf, u, dst, Pm, R, scale_r):
    B = []; b = lambda t, tag=None: B.append(I(t, tag))
    C = A_R + 4 + u
    b("v_mfma_f32_32x32x16_bf16 %s, %s, %s, 0" % (v(Pm, 16), v(wp, 4), v(kf, 4)))
    for g in range(2): b("v_max3_f32 v%d, v%d, v%d, v%d" % (R + g, Pm + 8 * g, Pm + 8 * g + 1, Pm + 8 * g + 2))
    for g in range(2): b("v_max3_f32 v%d, v%d, v%d, v%d" % (R + 2 + g, Pm + 8 * g + 3, Pm + 8 * g + 4, Pm + 8 * g + 5))
    for g in range(2): b("v_max3_f32 v%d, v%d, v%d, v%d" % (R + g, R + g, Pm + 8 * g + 6, Pm + 8 * g + 7))
    for g in range(2): b("v_max_f32 v%d, v%d, v%d" % (R + g, R + g, R + 2 + g))
    def allred(op, mid):
        b("v_permlane32_swap_b32 v%d, v%d" % (R, R + 1))
        b("%s v%d, v%d, v%d" % (op, R, R, R + 1))
        for t in mid: b(t)
        b("v_mov_b32 v%d, v%d" % (R + 1, R))
        b("v_permlane32_swap_b32 v%d, v%d" % (R, R + 1))
    allred("v_max_f32", ["v_mul_f32 v%d, v%d, v%d" % (R, C, R)])
    for j in range(16): b("v_fma_f32 v%d, v%d, v%d, -v%d" % (Pm + j, Pm + j, C, R + j // 8))
    for j in range(16): b("v_exp_f32 v%d, v%d" % (Pm + j, Pm + j))
    for g in range(2):
        b("v_add_f32 v%d, v%d, v%d" % (R + g, Pm + 8 * g, Pm + 8 * g + 1)); b("v_add_f32 v%d, v%d, v%d" % (R + 2 + g, Pm + 8 * g + 2, Pm + 8 * g + 3))
    for k in (4, 6):
        for g in range(2):
            b("v_add_f32 v%d, v%d, v%d" % (R + g, R + g, Pm + 8 * g + k)); b("v_add_f32 v%d, v%d, v%d" % (R + 2 + g, R + 2 + g, Pm + 8 * g + k + 1))
    for g in range(2): b("v_add_f32 v%d, v%d, v%d" % (R + g, R + g, R + 2 + g))
    allred("v_add_f32", ["v_rcp_f32 v%d, v%d" % (R, R)] + (["v_mul_f32 v%d, v%d, v%d" % (R, R, A_R + u)] if scale_r else []))
    for j in range(16): b("v_mul_f32 v%d, v%d, v%d" % (Pm + j, Pm + j, R + j // 8))
    for j in range(8): b("v_cvt_pk_bf16_f32 v%d, v%d, v%d" % (dst + j, Pm + 2 * j, Pm + 2 * j + 1))
    return B
def zipper(x, y):
    out = []
    for i in range(max(len(x), len(y))):
        if i < len(x): out.append(x[i])
        if i < len(y): out.append(y[i])
    return out
def mprio(B):
    out = []; hi = False
    for it in B:
        m_ = isinstance(it, I) and it.t.startswith("v_mfma")
        if m_ and not hi: out.append(I("s_setprio 3")); hi = True
        if hi and not m_: out.append(I("s_setprio 0")); hi = False
        out.append(it)
    return out

def attn_setup(ty):
    P = []; b = lambda t, tag=None: P.append(I(t, tag))
    t0, t1, t2, t3, u0 = range(100, 105)
    hk, hq = sT2, sT3
    nr = 32 if CFG["map"] == 84 else 64
    b("s_lshl_b32 s%d, s%d, 6" % (sT0, sXR)); b("s_mul_i32 s%d, s%d, %d" % (sT1, sW1, nr)); b("s_add_u32 s%d, s%d, s%d" % (sT0, sT0, sT1))
    b("v_add_u32 v%d, s%d, v1" % (A_TCH + 2, sT0)); b("v_mul_u32_u24 v%d, 3072, v%d" % (A_TCH + 3, A_TCH + 2)); b("v_mul_u32_u24 v%d, 3584, v%d" % (A_TCH + 2, A_TCH + 2))
    if nr == 32: b("s_mov_b32 exec_hi, 0")
    b("buffer_load_dword v%d, v%d, %s, s%d offen offset:%d" % (A_POLL + 1, A_TCH + 3, srd(SQKV), sKC, 1024 * ty)); b("s_mov_b64 exec, -1")
    b("s_lshl_b32 s%d, s%d, 2" % (hq, sGR)); b("s_add_u32 s%d, s%d, s%d" % (hq, hq, sW1))
    b("s_add_u32 s%d, s%d, %d" % (hk, hq, 2 * ty))
    b("v_lshrrev_b32 v%d, 5, v1" % t3); b("v_and_b32 v%d, 15, v1" % t1); b("v_lshrrev_b32 v%d, 4, v1" % t0)
    b("v_lshlrev_b32 v%d, 7, v%d" % (t2, t3)); b("v_lshl_add_u32 v%d, v%d, 1, v%d" % (t2, t1, t2))
    b("s_lshl_b32 s%d, s%d, 9" % (sT0, hq))
    for hh in range(1 + ty):
        for j in range(8):
            b("buffer_load_ushort v%d, v%d, %s, s%d offen offset:%d" % (A_RAW + 8 * hh + j, t2, srd(SPHI), sT0, 1024 * hh + 32 * ((j & 3) + 8 * (j >> 2))), "wphi")
    b("v_mov_b32 v%d, 0" % A_ZERO); b("v_mov_b32 v34, 0")
    b("v_mov_b32 v%d, 1" % A_ONE); b("v_mov_b32 v%d, %d" % (A_FL, FL))
    if ty == 0:
        b("v_lshlrev_b32 v%d, 8, v1" % u0)
        b("s_add_u32 s%d, s2, s%d" % (sT0, sW1)); b("s_cmp_lg_u32 s%d, 0" % sT0); b("s_cbranch_scc1 L_noinit")
        raw(P, [I("buffer_store_dword v%d, v%d, %s, 0 offen sc1" % (A_ZERO, u0, srd(SWS))), I("s_movk_i32 s%d, 0x4000" % sT0),
                I("buffer_store_dword v%d, v%d, %s, s%d offen sc1" % (A_ZERO, u0, srd(SWS), sT0))])
        P.append(L("L_noinit:"))
    b("v_and_b32 v%d, 1, v%d" % (t2, t0)); b("v_mul_u32_u24 v%d, 0x8000, v%d" % (t2, t2)); b("v_lshl_or_b32 v%d, v%d, 16, v%d" % (A_SGN, t2, t2))
    b("s_lshl_b32 s%d, s%d, 10" % (sT0, sI)); b("v_mov_b32 v%d, s%d" % (A_CM, sT0))
    b("s_lshl_b32 s%d, s%d, 8" % (sT0, hk)); b("s_add_u32 s%d, s%d, 0x4000" % (sT0, sT0)); b("v_mov_b32 v%d, s%d" % (A_CK, sT0))
    b("s_lshl_b32 s%d, s%d, 8" % (sT0, hq)); b("s_add_u32 s%d, s%d, 0x4000" % (sT0, sT0)); b("v_mov_b32 v%d, s%d" % (A_CQ, sT0))
    b("s_lshl_b32 s%d, s%d, 11" % (sT0, sW1)); b("s_add_u32 s%d, s%d, %d" % (sT0, sT0, EX))
    b("v_lshlrev_b32 v%d, 4, v1" % u0); b("v_add_u32 v%d, s%d, v%d" % (A_RK, sT0, u0))
    b("v_and_b32 v%d, 1, v1" % t2); b("v_lshlrev_b32 v%d, 9, v%d" % (A_RV, t2)); b("v_lshl_add_u32 v%d, v%d, 7, v%d" % (A_RV, t0, A_RV))
    b("v_bfe_u32 v%d, v1, 2, 2" % t2); b("v_lshl_add_u32 v%d, v%d, 4, v%d" % (A_RV, t2, A_RV))
    b("v_bfe_u32 v%d, v1, 1, 1" % t2); b("v_lshl_add_u32 v%d, v%d, 3, v%d" % (A_RV, t2, A_RV)); b("v_add_u32 v%d, s%d, v%d" % (A_RV, sT0, A_RV))
    b("s_lshl_b32 s%d, s%d, 4" % (sT0, hk)); b("s_add_u32 s%d, s%d, s%d" % (sT0, sT0, sI))
    b("s_lshl_b32 s%d, s%d, 10" % (sT1, sT0)); b("s_add_u32 s%d, s%d, %d" % (sT1, sT1, WS_KV)); b("v_add_u32 v%d, s%d, v%d" % (A_ST, sT1, u0))
    b("s_lshl_b32 s%d, s%d, 7" % (sT1, sT0)); b("s_add_u32 s%d, s%d, %d" % (sT1, sT1, WS_Z))
    b("v_lshlrev_b32 v%d, 6, v%d" % (A_ZA, t1)); b("v_lshl_add_u32 v%d, v%d, 4, v%d" % (A_ZA, t0, A_ZA)); b("v_add_u32 v%d, s%d, v%d" % (A_ZA, sT1, A_ZA))
    if ty == 1:
        b("s_lshl_b32 s%d, s%d, 14" % (sT1, hq)); b("s_add_u32 s%d, s%d, %d" % (sT1, sT1, WS_KV)); b("v_add_u32 v%d, s%d, v%d" % (A_PL, sT1, u0))
        b("s_lshl_b32 s%d, s%d, 11" % (sT1, hq)); b("s_add_u32 s%d, s%d, %d" % (sT1, sT1, WS_Z))
        b("v_lshlrev_b32 v%d, 7, v%d" % (A_ZL, t1)); b("v_lshl_add_u32 v%d, v%d, 4, v%d" % (A_ZL, t0, A_ZL)); b("v_add_u32 v%d, s%d, v%d" % (A_ZL, sT1, A_ZL))
        b("s_mul_i32 s%d, s%d, 576" % (sT1, sI)); b("s_add_u32 s%d, s%d, s%d" % (sT1, sT1, hq)); b("s_add_u32 s%d, s%d, 112" % (sT1, sT1))
        b("s_lshl_b32 s%d, s%d, 10" % (sT1, sT1)); b("s_add_u32 s%d, s%d, %d" % (sT1, sT1, WS_HO)); b("v_add_u32 v%d, s%d, v%d" % (A_OS, sT1, u0))
        ident(b, A_ID, t1)
    return P

def attn_wave(ty):
    P = [M(("x", 1))] + attn_setup(ty); a = lambda t, tag=None: P.append(I(t, tag))
    stamp = lambda k: stamp_to(P, k, 34)
    def signal(vaddr, off): one_lane(P, "buffer_atomic_add v%d, v%d, %s, 0 offen offset:%d sc1" % (A_ONE, vaddr, srd(SWS), off))
    def after3():
        a("v_lshl_add_u32 v%d, v1, 2, v%d" % (A_FV, A_FL)); a("ds_write_b32 v%d, v%d" % (A_FV, A_ZERO))
        if ty == 0:
            only(P, ["s_add_u32 s%d, s2, s%d" % (sT0, sW1), "s_cmp_lg_u32 s%d, 0" % sT0],
                 [I("buffer_store_dword v%d, v%d, %s, 0 offen sc1" % (A_ONE, A_ZERO, srd(SDBG)))])
        P.append(W(lg="all"))
    xstages(P, {3: after3})
    a("s_barrier")
    P.append(W(vm=["wphi"]))
    for hh in range(1 + ty):
        for j in range(4): a("v_lshl_or_b32 v%d, v%d, 16, v%d" % (A_WP + 4 * hh + j, A_RAW + 8 * hh + 2 * j + 1, A_RAW + 8 * hh + 2 * j))
        for j in range(4): a("v_xor_b32 v%d, v%d, v%d" % (A_WP + 4 * hh + j, A_WP + 4 * hh + j, A_SGN))
    WK = A_WP + 4 * ty
    count_wait(P, A_FL, A_FV, F_EX, 4)
    stamp(11)
    T = A_T
    a("v_and_b32 v%d, 31, v1" % T); a("v_lshlrev_b32 v%d, 2, v%d" % (T, T)); a("v_add_u32 v%d, %d, v%d" % (T, LRS, T))
    for u in range(4): a("ds_read_b32 v%d, v%d offset:%d" % (A_R + u, T, u * 128))
    a("v_lshrrev_b32 v%d, 4, v1" % (T + 1)); a("v_lshlrev_b32 v%d, 4, v%d" % (T + 1, T + 1)); a("v_add_u32 v%d, %d, v%d" % (T + 1, LSD, T + 1))
    for u in range(4): a("ds_read_b128 %s, v%d offset:%d" % (v(A_SD + 4 * u, 4), T + 1, u * 64))
    if ty == 0:
        a("v_lshlrev_b32 v%d, 3, v1" % (T + 2)); a("v_add_u32 v%d, %d, v%d" % (T + 3, LRS, T + 2)); a("ds_read_b64 %s, v%d" % (v(T + 4, 2), T + 3))
    P.append(W(lg="all"))
    for u in range(4): a("v_mul_f32 v%d, s%d, v%d" % (A_R + 4 + u, sL2E, A_R + u))
    if ty == 0:
        only(P, ["s_add_u32 s%d, s%d, s%d" % (sT0, sGR, sW1), "s_cmp_lg_u32 s%d, 0" % sT0],
             [I("s_lshl_b32 s%d, s%d, 9" % (sT0, sI)), I("s_add_u32 s%d, s%d, %d" % (sT0, sT0, WS_RS)),
              I("buffer_store_dwordx2 %s, v%d, %s, s%d offen sc1" % (v(T + 4, 2), T + 2, srd(SWS), sT0))])
    a("buffer_load_dword v%d, v%d, %s, 0 offen sc1" % (A_POLL, A_ZERO, srd(SDBG)), "pollinit")
    B = []; b = lambda t, tag=None: B.append(I(t, tag))
    for u in range(4): b("ds_read_b128 %s, v%d offset:%d" % (v(A_KF + 4 * u, 4), A_RK, u * 8192), "kf")
    B.append(W(lg=["kf"]))
    PM = (T, T + 16); RR = (T + 32, T + 36)
    def tail(u):
        X = []; x = lambda t, tag=None: X.append(I(t, tag))
        PHI = A_PHI + 8 * (u & 1); FR = A_PHI + 16 + 12 * (u & 1); so = (u & 1) * 16384
        for sg in range(2): x("ds_write_b128 v%d, %s offset:%d" % (A_RK, v(PHI + 4 * sg, 4), so + sg * 8192))
        for q in range(2): x("ds_read_b64_tr_b16 %s, v%d offset:%d" % (v(FR + 2 * q, 2), A_RV, u * 8192 + 1024 + q * 64), ("pr", u))
        for sg in range(2):
            for q in range(2): x("ds_read_b64_tr_b16 %s, v%d offset:%d" % (v(FR + 4 + 4 * sg + 2 * q, 2), A_RV, so + sg * 8192 + q * 64), ("pr", u))
        return X
    def kvm(us):
        X = [W(lg=[("pr", us[-1])])]
        for u in us:
            FR = A_PHI + 16 + 12 * (u & 1)
            for sg in range(2):
                c = v(A_ACC + 4 * sg, 4); z = v(A_ACC + 8 + 4 * sg, 4)
                X.append(I("v_mfma_f32_16x16x32_bf16 %s, %s, %s, %s" % (c, v(FR + 4 + 4 * sg, 4), v(FR, 4), "0" if u == 0 else c)))
                X.append(I("v_mfma_f32_16x16x32_bf16 %s, %s, %s, %s" % (z, v(FR + 4 + 4 * sg, 4), v(A_SD + 4 * u, 4), "0" if u == 0 else z)))
        return X
    for pr in range(2):
        z = zipper(softmax_unit(WK, A_KF + 8 * pr, 2 * pr, A_PHI, PM[0], RR[0], True), softmax_unit(WK, A_KF + 8 * pr + 4, 2 * pr + 1, A_PHI + 8, PM[1], RR[1], True))
        if pr == 1: z = z[:2] + kvm((0, 1)) + z[2:]
        B += z + tail(2 * pr) + tail(2 * pr + 1)
    b("v_and_b32 v%d, 15, v1" % T); b("v_cmp_eq_u32 vcc, 1, v%d" % T)
    if ty == 0: one_lane(B, "ds_add_u32 v%d, v%d offset:%d" % (A_FL, A_ONE, F_EXF))
    B += kvm((2, 3))
    for j in range(4): b("v_cvt_pk_bf16_f32 v%d, v%d, v%d" % (A_ACC + j, A_ACC + 2 * j, A_ACC + 2 * j + 1))
    for j in range(4): b("v_cndmask_b32 v%d, v%d, v%d, vcc" % (A_ACC + 8 + j, A_ACC + 8 + j, A_ACC + 12 + j))
    b("buffer_store_dwordx4 %s, v%d, %s, 0 offen sc1" % (v(A_ACC, 4), A_ST, srd(SWS)), "part")
    b("s_mov_b32 exec_lo, 0x00030003"); b("s_mov_b32 exec_hi, 0x00030003")
    b("buffer_store_dwordx4 %s, v%d, %s, 0 offen sc1" % (v(A_ACC + 8, 4), A_ZA, srd(SWS)), "part"); b("s_mov_b64 exec, -1")
    P += mprio(B)
    stamp(12)
    def publish_k():
        gate(P, A_ZERO, SDBG, 0, "pollinit", A_POLL, 1)
        P.append(W(vm=["part"])); signal(A_CK, 0)
        lb = newlbl()
        only(P, ["s_cmp_lg_u32 s%d, 0" % sW1],
             [I("s_mov_b64 exec, 1"), I("ds_add_rtn_u32 v%d, v%d, v%d offset:%d" % (A_FV, A_FL, A_ONE, F_H)), W(lg="all"),
              I("v_readfirstlane_b32 s%d, v%d" % (sT5, A_FV)), I("s_cmp_lg_u32 s%d, 4" % sT5), I("s_cbranch_scc1 L_hh%d" % lb),
              I("buffer_atomic_add v%d, v%d, %s, 0 offen offset:%d sc1" % (A_ONE, A_CM, srd(SWS), (C_H1B if ty else C_H1A) * 256)),
              L("L_hh%d:" % lb), I("s_mov_b64 exec, -1")])
        stamp(13)
    if ty == 0: publish_k()
    else:
        count_wait(P, A_FL, A_FV, F_EX + 4, 4)
        QF = A_LD
        for hh in range(2):
            for u in range(4): a("ds_read_b128 %s, v%d offset:%d" % (v(QF + 16 * hh + 4 * u, 4), A_RK, u * 8192 + 4096 + hh * 1024), "qf")
        one_lane(P, "ds_add_u32 v%d, v%d offset:%d" % (A_FL, A_ONE, F_EXF))
        P.append(W(lg=["qf"]))
        def qpair(hh, pr):
            return mprio(zipper(softmax_unit(A_WP + 4 * hh, QF + 16 * hh + 8 * pr, 2 * pr, A_PQ + 32 * hh + 16 * pr, PM[0], RR[0], False),
                                softmax_unit(A_WP + 4 * hh, QF + 16 * hh + 8 * pr + 4, 2 * pr + 1, A_PQ + 32 * hh + 16 * pr + 8, PM[1], RR[1], False)))
        z = qpair(0, 0); P += z[:100]; publish_k(); P += z[100:]
        P += qpair(0, 1)
        z = qpair(1, 0); P += z[:100]
        for hh in range(2): a("buffer_load_dword v%d, v%d, %s, 0 offen offset:%d sc1" % (A_POLL + hh, A_CQ, srd(SWS), 512 * hh), ("pollkv", hh))
        P += z[100:]
        Z = (A_ACC, A_ACC + 8); KVA = (A_WP, A_R)
        free0 = list(range(A_LD, A_LD + 24, 4)) + list(range(A_LD + 32, A_LD + 64, 4)) + [A_KF, A_KF + 4]
        free1 = list(range(A_LD, A_LD + 64, 4))
        def loads(hh, dst):
            gate(P, A_CQ, SWS, 512 * hh, ("pollkv", hh), A_POLL + hh, 16)
            a("s_movk_i32 s%d, %d" % (sT4, 4096 * hh))
            a("buffer_load_dwordx4 %s, v%d, %s, s%d offen sc1" % (v(Z[hh], 4), A_ZL, srd(SWS), sT4), ("zl", hh))
            a("buffer_load_dwordx4 %s, v%d, %s, s%d offen offset:64 sc1" % (v(Z[hh] + 4, 4), A_ZL, srd(SWS), sT4), ("zl", hh))
            for m in range(16):
                if m % 4 == 0:
                    a("s_add_u32 s%d, s%d, %d" % (sT5, sI, m // 4)); a("s_and_b32 s%d, s%d, 3" % (sT5, sT5)); a("s_lshl_b32 s%d, s%d, 12" % (sT5, sT5))
                    if hh: a("s_add_u32 s%d, s%d, 32768" % (sT5, sT5))
                if CFG["awin"] >= 0: a("s_waitcnt vmcnt(%d)" % CFG["awin"])
                a("buffer_load_dwordx4 %s, v%d, %s, s%d offen offset:%d sc1" % (v(dst[m], 4), A_PL, srd(SWS), sT5, (m & 3) * 1024), ("pl", hh, m))
        S = A_KF + 8
        def reduce_(hh, src):
            B = []; b = lambda t, tag=None: B.append(I(t, tag))
            for m in range(16):
                if m % 4 == 0: B.append(W(vm=[("pl", hh, m + 3)]))
                for sg in range(2):
                    c = v(S + 4 * sg, 4)
                    b("v_mfma_f32_4x4x4_16b_bf16 %s, %s, %s, %s" % (c, v(A_ID, 2), v(src[m] + 2 * sg, 2), "0" if m == 0 else c))
            P.extend(mprio(B + [I("s_nop 0")]))
        def finish(hh):
            B = []; b = lambda t, tag=None: B.append(I(t, tag))
            for k in (8, 4, 2, 1):
                for j in range(8): b("v_add_f32_dpp v%d, v%d, v%d row_ror:%d row_mask:0xf bank_mask:0xf" % (Z[hh] + j, Z[hh] + j, Z[hh] + j, k))
            KV = KVA[hh]; PQ = A_PQ + 32 * hh
            for sg in range(2):
                for j in range(2): b("v_cvt_pk_bf16_f32 v%d, v%d, v%d" % (KV + 4 * sg + 2 + j, Z[hh] + 4 * sg + 2 * j, Z[hh] + 4 * sg + 2 * j + 1))
            for sg in range(2):
                for j in range(2): b("v_cvt_pk_bf16_f32 v%d, v%d, v%d" % (KV + 4 * sg + j, S + 4 * sg + 2 * j, S + 4 * sg + 2 * j + 1))
            for w in ("16", "32"):
                for sg in range(2):
                    for j in range(2): b("v_permlane%s_swap_b32 v%d, v%d" % (w, KV + 4 * sg + j, KV + 4 * sg + 2 + j))
            for pr in range(2):
                for u in (2 * pr, 2 * pr + 1):
                    N = v(T + 16 * (u & 1), 16)
                    b("v_mfma_f32_32x32x16_bf16 %s, %s, %s, 0" % (N, v(KV, 4), v(PQ + 8 * u, 4)))
                    b("v_mfma_f32_32x32x16_bf16 %s, %s, %s, %s" % (N, v(KV + 4, 4), v(PQ + 8 * u + 4, 4), N))
                for u in range(2): b("v_add_f32 v%d, 0x358637bd, v%d" % (T + 16 * u + 8, T + 16 * u + 8))
                for u in range(2): b("v_rcp_f32 v%d, v%d" % (T + 16 * u + 8, T + 16 * u + 8))
                for u in (2 * pr, 2 * pr + 1):
                    N = T + 16 * (u & 1); O = PQ + 8 * u
                    for j in range(8): b("v_mul_f32 v%d, v%d, v%d" % (N + j, N + j, N + 8))
                    for j in range(4): b("v_cvt_pk_bf16_f32 v%d, v%d, v%d" % (O + j, N + 2 * j, N + 2 * j + 1))
                    b("s_mov_b32 s%d, %d" % (sT5, u * 147456))
                    b("buffer_store_dwordx4 %s, v%d, %s, s%d offen offset:%d sc1" % (v(O, 4), A_OS, srd(SWS), sT5, 2048 * hh), "ost")
            P.extend(mprio(B))
        stamp(14)
        loads(0, free0)
        stamp(15)
        P += qpair(1, 1)
        reduce_(0, free0); loads(1, free1); finish(0); reduce_(1, free1); finish(1)
        stamp(16)
        P.append(W(vm=["ost"])); signal(A_CM, C_O * 256)
        stamp(17)
    if CFG["stamps"]:
        a("s_lshl_b32 s%d, s2, 8" % sT0); a("s_add_u32 s%d, s%d, %d" % (sT0, sT0, WS_ST + 0x30000))
        a("v_lshlrev_b32 v64, 2, v1")
        a("s_cmp_lg_u32 s%d, %d" % (sW1, CFG["stampw"] & 1)); a("s_cbranch_scc1 L_exit")
        a("buffer_store_dword v34, v64, %s, s%d offen" % (srd(SWS), sT0))
    a("s_endpgm")
    return P

def main():
    hdr = open("cdna_kernels/%s.s.ref" % NAME).read().split("; Override launch geometry")[0]
    out = [hdr.rstrip(), "; @launch grid=(256,1,1) block=(512,1,1) lds=163840",
           '.amdgcn_target "amdgcn-amd-amdhsa--gfx950"', ".text", ".globl %s_kernel" % NAME, ".p2align 8",
           ".type %s_kernel,@function" % NAME, "%s_kernel:" % NAME]
    t, st = finalize(prologue()); out += t
    for nm, fn in (("attn", attn_wave), ("dma", dma_wave), ("comp", compute)):
        out.append("L_%s:" % nm)
        out += finalize([I("s_cmp_eq_u32 s%d, 1" % sTY), I("s_cbranch_scc1 L_%s1" % nm)] + fn(0), st.clone())[0]
        out.append("L_%s1:" % nm); out += finalize(fn(1), st.clone())[0]
    out += STUBS
    out += lds_spin("c", C_FL, F_LAND, 2, C_FV, CFG["cnap"]) + lds_spin("d", D_FL, F_DONE, 4, D_DV, 1)
    out += ["L_exit:", "    s_endpgm", '.section .rodata,"a"', ".p2align 6", ".amdhsa_kernel %s_kernel" % NAME,
            "  .amdhsa_next_free_vgpr 256", "  .amdhsa_next_free_sgpr 100", "  .amdhsa_accum_offset 256",
            "  .amdhsa_group_segment_fixed_size 0", "  .amdhsa_kernarg_size 88", "  .amdhsa_user_sgpr_count 2",
            "  .amdhsa_user_sgpr_kernarg_segment_ptr 1", "  .amdhsa_system_sgpr_workgroup_id_x 1", ".end_amdhsa_kernel"]
    open(sys.argv[1], "w").write("\n".join(out) + "\n")
main()
```

```python
import sys, os, json
sys.path.insert(0, os.path.dirname(os.path.abspath(__file__)))
from asmir import I, W, L, M, v, s, finalize, State

NAME = "recurrent_scan__linear_kernel_hedgehog__glu_gated_bilinear__prompt"
CFG = dict(stamps=0, probe=0, probeat=-1, xprobe=0, outfl="", stampw=0, zoom=0, LA=6, LAF=5, erate=3, codepf=1, sleep=2, cnap=1, dnap=2, map=84, latin=1, lead=0, spoll=1, leadoff=0, who=[0, 2, 0, 2, 1, 3, 0, 2, 1], kpub=90, dry=1, aonly=0, map2=84, h2now=1, chk2=0,
           cap1=128, capt=160, cap2=128, capsw=20, awin=-1, pollat=3, hwait1=16, hwait2=0, nb0=56, nb1=56, ahead2=4,
           bfirst=2, p2chk=1,
           rsat=56, exw0=[8], exw1=[8, 13], afirst={},
           tplan0={"7": "d0", "14": "d1 o x"}, tplan1={"7": "d0 x", "12": "d1 o g1"})
for a_ in sys.argv[2:]:
    k_, x_ = a_.split("="); assert k_ in CFG, k_; CFG[k_] = json.loads(x_)

WS_RS = 0x8000
WS_KV = 0x10000
WS_Z = 0x120000
WS_ST = 0x140000
WS_HO = 0x200000
WS_BYTES = WS_HO + 64 * 144 * 1024
C_H1A, C_H1B, C_H2, C_O = 0, 1, 2, 3
SLOT = 16384; STG = 32768; EX = 131072; FL = SLOT; LRS = FL + 2048; LSD = LRS + 512; F_INIT = 1792; LR2 = FL + 3072; LX = FL + 4096
F_LAND, F_DONE = 256, 768
F_EX, F_H, F_EXF, F_END = 32, 44, 52, 56
SX, SQKV, SPHI, SWO, SG, SU, SWD, SOUT, SDBG, SWS = 8, 12, 16, 20, 24, 28, 32, 36, 40, 44
sW, sW1, sI, sGR, sTY, sR1, sXR, sTT, sCT, sR2 = range(56, 66)
sT0, sT1, sT2, sT3, sT4, sT5 = range(66, 72)
sL2E = 72; sKC = 73; sSH = 74; sXL = 75; sKS = 76; sLA = 78; sXB = 79
sSPIN = 80; sRET = 82; sPH = 84; sTB = 88; sTM = 90; sMK = 94; sLM = 48; sLD = 49; sG = 50; sCC = 54; sPV = 55
srd = lambda b: s(b, 4)
LOG2E = 0x3fb8aa3b
XR = 128; ACC = 64; WF = 32
L_T, L_SEL, L_ID, L_SM, L_CM, L_SQ = 192, 224, 228, 232, 236, 240
L_XO, L_RR, L_C, L_SB, L_C7, L_WA, L_VA, L_VB = 124, 245, 246, 247, 248, 249, 251, 252
L_TR = 244
K_SQ, K_DL, K_RA = 16, 20, 24
H_STAMP = 255; H_STAMP2 = 254
_lbl = [0]
def newlbl():
    _lbl[0] += 1; return _lbl[0]
STUBS = []

PH = {0: [("P2", "kv", (0, 1)), ("P4", "gu", (2, 3, 0, 1)), ("P4", "gu", (0, 1, 2, 3))],
      1: [("P2", "q", (0, 1)), ("P2", "kv", (2, 3)), ("P4", "gu", (0, 1, 2, 3)), ("P2", "gu", (0, 1))]}
def slabs_of(ty):
    return [(pi, k, sg) for pi, (k, e, _) in enumerate(PH[ty]) for sg in range(8 if k == "P4" else 4)]
def slot_of(n):
    return (0, 2, 3, 4, 5, 6, 7)[n % 7] if n < 20 else (8, 9, 7, 0, 2, 3, 4, 5, 6)[(n - 20) % 9]
def prev_user(n):
    p = [m for m in range(n) if slot_of(m) == slot_of(n)]
    return p[-1] if p else -1
def checks(ty):
    c = {0: 0, 1: 1}
    for n in range(2, CFG["nb%d" % ty], 2):
        if (CFG["chk2"] if n < 20 else CFG["p2chk"] == 2): c[n] = n + 1
        else: c[n] = n; c[n + 1] = n + 1
    return c

def stamp_to(P, k, reg=H_STAMP):
    if CFG["stamps"]:
        P.append(I("s_memtime %s" % s(sTM + 2, 2))); P.append(W(lg="all"))
        P.append(I("s_sub_u32 s%d, s%d, s%d" % (sTM + 2, sTM + 2, sTM))); P.append(I("v_writelane_b32 v%d, s%d, %d" % (reg, sTM + 2, k)))
def rstamp(P, k):
    if CFG["stamps"]:
        P.append(I("s_memrealtime s[6:7]")); stamp_to(P, k, H_STAMP2)
        P.append(I("s_sub_u32 s6, s6, s4")); P.append(I("v_writelane_b32 v%d, s6, %d" % (H_STAMP2, k + 1)))
def raw(P, items):
    for x in finalize(items)[0]: P.append(L(x))
def only(P, cond, items):
    n = newlbl()
    for t in cond: P.append(I(t))
    P.append(I("s_cbranch_scc1 L_sk%d" % n)); raw(P, items); P.append(L("L_sk%d:" % n))
def one_lane(X, t, tag=None):
    X.append(I("s_mov_b64 exec, 1")); X.append(I(t, tag)); X.append(I("s_mov_b64 exec, -1"))

def p4_voffs(a, va, vb, stride, t):
    a("v_lshrrev_b32 v%d, 3, v1" % t)
    a("v_and_b32 v%d, 2, v%d" % (t + 1, t)); a("v_lshlrev_b32 v%d, 1, v%d" % (t + 1, t + 1))
    a("v_and_b32 v%d, 7, v1" % (t + 2)); a("v_xor_b32 v%d, v%d, v%d" % (t + 2, t + 2, t + 1))
    a("v_mul_u32_u24 v%d, %d, v%d" % (t, stride, t))
    a("v_lshl_add_u32 v%d, v%d, 4, v%d" % (va, t + 2, t))
    a("v_xor_b32 v%d, 32, v%d" % (vb, va))
def p2_voffs(a, va, vb, stride, t):
    a("v_lshrrev_b32 v%d, 2, v1" % t)
    a("v_and_b32 v%d, 3, v1" % (t + 2))
    a("v_mul_u32_u24 v%d, %d, v%d" % (t, stride, t))
    a("v_lshl_add_u32 v%d, v%d, 4, v%d" % (va, t + 2, t))
    a("v_xor_b32 v%d, 32, v%d" % (vb, va))
def ident(a, dst, t):
    a("v_and_b32 v%d, 3, v1" % t)
    a("v_and_b32 v%d, 1, v1" % (t + 1)); a("v_lshlrev_b32 v%d, 4, v%d" % (t + 1, t + 1)); a("v_mov_b32 v%d, 0x3f80" % (t + 2))
    a("v_lshlrev_b32 v%d, v%d, v%d" % (t + 1, t + 1, t + 2))
    a("v_cmp_gt_u32 vcc, 2, v%d" % t)
    a("v_cndmask_b32 v%d, 0, v%d, vcc" % (dst, t + 1)); a("v_sub_u32 v%d, v%d, v%d" % (dst + 1, t + 1, dst))

X_V = 48
def prologue():
    P = []; a = lambda t, tag=None: P.append(I(t, tag))
    a("s_cmp_ge_u32 s2, 256")
    a("s_cbranch_scc1 L_exit")
    a("s_load_dwordx2 %s, s[0:1], 0" % s(SX, 2)); a("s_load_dwordx2 %s, s[0:1], 8" % s(SQKV, 2))
    if CFG["probe"]: a("s_memrealtime s[4:5]")
    if CFG["stamps"]:
        a("s_memtime %s" % s(sTM, 2)); a("s_memrealtime s[4:5]")
    a("s_lshr_b32 s%d, s2, 3" % sSH)
    a("s_getpc_b64 %s" % s(sTB, 2)); P.append(L("L_pc:"))
    if CFG["codepf"]:
        a("s_mul_i32 s%d, s%d, 24" % (sT0, sSH))
        a("v_add_u32 v3, s%d, v0" % sT0); a("v_lshlrev_b32 v3, 7, v3"); a("v_min_u32 v3, L_tab-L_pc+252, v3")
        a("v_cmp_gt_u32 vcc, 24, v0"); a("s_and_saveexec_b64 s[48:49], vcc"); a("s_cbranch_execz L_nopf")
        P.append(L("    global_load_dword v%d, v3, %s" % (X_V + 5, s(sTB, 2))))
        P.append(L("L_nopf:")); a("s_mov_b64 exec, -1")
    a("v_lshrrev_b32 v2, 6, v0")
    a("v_and_b32 v1, 63, v0")
    a("v_readfirstlane_b32 s%d, v2" % sW)
    a("s_and_b32 s%d, s2, 7" % sT5)
    a("s_lshr_b32 s%d, s%d, 4" % (sTY, sSH))
    if CFG["map"] == 48:
        a("s_and_b32 s%d, s%d, 3" % (sT3, sSH)); a("s_lshl_b32 s%d, s%d, 1" % (sXR, sT3))
        a("s_lshr_b32 s%d, s%d, 1" % (sT2, sT5)); a("s_lshl_b32 s%d, s%d, 2" % (sT2, sT2)); a("s_add_u32 s%d, s%d, s%d" % (sI, sT2, sT3))
        a("s_lshr_b32 s%d, s%d, 2" % (sR1, sSH))
        a("s_and_b32 s%d, s%d, 1" % (sT2, sT5)); a("s_lshl_b32 s%d, s%d, 2" % (sT2, sT2)); a("s_and_b32 s%d, s%d, 3" % (sT3, sR1)); a("s_add_u32 s%d, s%d, s%d" % (sGR, sT2, sT3))
    else:
        a("s_and_b32 s%d, s%d, 7" % (sXR, sSH))
        a("s_lshr_b32 s%d, s%d, 2" % (sT2, sT5)); a("s_lshl_b32 s%d, s%d, 3" % (sT2, sT2)); a("s_add_u32 s%d, s%d, s%d" % (sI, sT2, sXR))
        a("s_lshr_b32 s%d, s%d, 3" % (sT3, sSH)); a("s_lshl_b32 s%d, s%d, 1" % (sR1, sT3))
        a("s_and_b32 s%d, s%d, 3" % (sT2, sT5)); a("s_lshl_b32 s%d, s%d, 1" % (sT2, sT2)); a("s_and_b32 s%d, s%d, 1" % (sT3, sT3)); a("s_add_u32 s%d, s%d, s%d" % (sGR, sT2, sT3))
    if CFG["latin"]: a("s_add_u32 s%d, s%d, s%d" % (sR1, sR1, sXR)); a("s_and_b32 s%d, s%d, 7" % (sR1, sR1))
    a("s_mov_b32 s%d, 2097152" % (SX + 2)); a("s_mov_b32 s%d, 0x20000" % (SX + 3))
    X = []; x = lambda t, tag=None: X.append(I(t, tag))
    x("v_lshrrev_b32 v4, 3, v1"); x("v_lshrrev_b32 v5, 4, v1"); x("v_and_b32 v6, 7, v1"); x("v_xor_b32 v5, v5, v6")
    x("v_lshlrev_b32 v4, 10, v4"); x("v_lshl_add_u32 v%d, v5, 4, v4" % X_V)
    x("v_xor_b32 v4, 64, v%d" % X_V)
    x("v_add_u32 v%d, 7168, v4" % (X_V + 1)); x("v_add_u32 v%d, 14336, v%d" % (X_V + 2, X_V)); x("v_add_u32 v%d, 21504, v4" % (X_V + 3))
    x("s_and_b32 s%d, s%d, 3" % (sT0, sW)); x("s_lshl_b32 s%d, s%d, 12" % (sXL, sT0)); x("s_add_u32 s%d, s%d, %d" % (sXL, sXL, STG))
    x("s_lshl_b32 s%d, s%d, 15" % (sT0, sT0)); x("s_lshl_b32 s%d, s%d, 17" % (sXB, sI)); x("s_add_u32 s%d, s%d, s%d" % (sXB, sXB, sT0))
    x("s_cmp_lt_u32 s%d, 4" % sW); x("s_cbranch_scc1 L_nox")
    x("s_waitcnt lgkmcnt(0)")
    xline(x, 0); xline(x, 1)
    raw(P, X); P.append(L("L_nox:"))
    if CFG["stamps"]:
        a("v_mov_b32 v%d, 0" % H_STAMP); a("v_mov_b32 v%d, 0" % H_STAMP2); P.append(W(lg="all"))
    stamp_to(P, 0, H_STAMP2)
    for b, off in ((SPHI, 16), (SWS, 80), (SG, 40), (SU, 48), (SWO, 24), (SWD, 56), (SOUT, 64), (SDBG, 72)):
        a("s_load_dwordx2 %s, s[0:1], %d" % (s(b, 2), off))
    for b, n in ((SQKV, 1572864), (SPHI, 16384), (SWO, 524288), (SG, 1835008), (SU, 1835008), (SWD, 1835008), (SOUT, 2097152), (SDBG, 256), (SWS, WS_BYTES)):
        a("s_mov_b32 s%d, %d" % (b + 2, n)); a("s_mov_b32 s%d, 0x20000" % (b + 3))
    a("s_lshl_b32 s%d, s%d, 7" % (sKC, sGR)); a("s_lshl_b32 s%d, s%d, 6" % (sT0, sTY)); a("s_add_u32 s%d, s%d, s%d" % (sKC, sKC, sT0)); a("s_add_u32 s%d, s%d, 1024" % (sKC, sKC))
    if CFG["map2"] == 48:
        a("s_lshr_b32 s%d, s%d, 2" % (sCT, sSH)); a("s_and_b32 s%d, s%d, 3" % (sT3, sSH))
        a("s_lshl_b32 s%d, s%d, 2" % (sT2, sT5)); a("s_add_u32 s%d, s%d, s%d" % (sTT, sT2, sT3))
        a("s_lshl_b32 s%d, s%d, 1" % (sT3, sT3)); a("s_add_u32 s%d, s%d, s%d" % (sR2, sT3, sCT))
    else:
        a("s_lshr_b32 s%d, s%d, 3" % (sT3, sSH)); a("s_and_b32 s%d, s%d, 1" % (sT2, sT5)); a("s_lshl_b32 s%d, s%d, 2" % (sT2, sT2)); a("s_add_u32 s%d, s%d, s%d" % (sCT, sT2, sT3))
        a("s_and_b32 s%d, s%d, 7" % (sT1, sSH)); a("s_lshr_b32 s%d, s%d, 1" % (sT2, sT5)); a("s_lshl_b32 s%d, s%d, 3" % (sT2, sT2)); a("s_add_u32 s%d, s%d, s%d" % (sTT, sT2, sT1))
        a("s_and_b32 s%d, s%d, 1" % (sT3, sT3)); a("s_lshl_b32 s%d, s%d, 1" % (sT3, sT3)); a("s_add_u32 s%d, s%d, s%d" % (sT3, sT3, sTY))
        if CFG["lead"]: a("s_mov_b32 s%d, s%d" % (sLD, sT3)); a("s_mov_b32 s%d, s%d" % (sR2, sT1))
        else: a("s_lshl_b32 s%d, s%d, 1" % (sT3, sT3)); a("s_add_u32 s%d, s%d, s%d" % (sR2, sT3, sT1))
    a("s_and_b32 s%d, s%d, 1" % (sW1, sW))
    a("s_mov_b32 s%d, 0x%x" % (sL2E, LOG2E))
    a("s_add_u32 s%d, s%d, L_tab-L_pc" % (sTB, sTB)); a("s_addc_u32 s%d, s%d, 0" % (sTB + 1, sTB + 1))
    P.append(W(lg="all"))
    a("s_cmp_lt_u32 s%d, 4" % sW); a("s_cbranch_scc1 L_comp")
    a("s_cmp_lt_u32 s%d, 6" % sW); a("s_cbranch_scc1 L_dma")
    return P

def xline(a, j):
    a("s_add_u32 s%d, s%d, %d" % (sT0, sR1, j)); a("s_and_b32 s%d, s%d, 7" % (sT0, sT0)); a("s_lshl_b32 s%d, s%d, 7" % (sT0, sT0)); a("s_add_u32 s%d, s%d, s%d" % (sT0, sT0, sXB))
    a("s_add_u32 m0, s%d, %d" % (sXL, j * 16384))
    for p in range(4): a("buffer_load_dwordx4 v%d, %s, s%d offen offset:%d lds" % (X_V + p, srd(SX), sT0, p * 1024), ("x", j))
def xstages(P, extra):
    a = lambda t, tag=None: P.append(I(t, tag))
    xline(a, 2); xline(a, 3)
    for j in range(4):
        P.append(W(vm=[("x", 2 * j + 1)]))
        a("s_barrier")
        if j == 0: stamp_to(P, 2, H_STAMP2)
        if j < 2: xline(a, 2 * j + 4); xline(a, 2 * j + 5)
        if j in extra: extra[j]()

def fcols(a, ty):
    if ty == 0:
        a("s_lshl_b32 s%d, s%d, 7" % (sKS, sGR)); a("s_add_u32 s%d, s%d, 64" % (sKS + 1, sKS))
    else:
        a("s_mul_i32 s%d, s%d, 96" % (sT0, sGR)); a("s_add_u32 s%d, s%d, 1024" % (sT0, sT0))
        a("s_and_b32 s%d, s%d, 1" % (sT1, sGR)); a("s_lshl_b32 s%d, s%d, 5" % (sT2, sT1))
        a("s_add_u32 s%d, s%d, s%d" % (sKS, sT0, sT2))
        a("s_xor_b32 s%d, s%d, 1" % (sT1, sT1)); a("s_lshl_b32 s%d, s%d, 6" % (sT1, sT1))
        a("s_add_u32 s%d, s%d, s%d" % (sKS + 1, sT0, sT1))

def clear_low(a, used):
    for k in range(2, 64):
        if k not in used: a("v_mov_b32 v%d, 0" % k)

def lds_spin(nm, va, vd, nap):
    X = ["L_spin_%s:" % nm, "    s_mov_b32 s%d, 0" % sSPIN, "L_spl_%s:" % nm]
    if nap: X.append("    s_sleep %d" % nap)
    X += ["    ds_read_b32 v%d, v%d" % (vd, va), "    s_add_u32 s%d, s%d, 1" % (sSPIN, sSPIN), "    s_waitcnt lgkmcnt(0)",
          "    s_cmp_ge_u32 s%d, 0x1000000" % sSPIN, "    s_cbranch_scc1 L_spr_%s" % nm,
          "    v_cmp_gt_u32 vcc, s%d, v%d" % (sSPIN + 1, vd), "    s_cbranch_vccnz L_spl_%s" % nm, "L_spr_%s:" % nm, "    s_setpc_b64 %s" % s(sRET, 2)]
    return X
def count_wait(P, vfl, vd, off, want):
    n = newlbl()
    P.append(W(lg="all"))
    for t in ["    s_mov_b32 s%d, 0" % sSPIN, "L_cw%d:" % n, "    ds_read_b32 v%d, v%d offset:%d" % (vd, vfl, off), "    s_add_u32 s%d, s%d, 1" % (sSPIN, sSPIN),
              "    s_waitcnt lgkmcnt(0)", "    v_cmp_le_u32 vcc, %d, v%d" % (want, vd), "    s_cbranch_vccnz L_cx%d" % n, "    s_sleep %d" % CFG["dnap"],
              "    s_cmp_lt_u32 s%d, 0x1000000" % sSPIN, "    s_cbranch_scc1 L_cw%d" % n, "L_cx%d:" % n]: P.append(L(t))

def sload(base, soff, off, sdst):
    return "s_load_dword s%d, %s, %s glc" % (sdst, s(base, 2), ("s%d offset:%d" % (soff, off)) if soff is not None else "%d" % off)
def sgate(P, soff, off, sdst, want, base=None):
    n = newlbl()
    P.append(W(lg="all"))
    P.append(I("s_cmp_eq_u32 s%d, %d" % (sdst, want))); P.append(I("s_cbranch_scc1 L_ok%d" % n))
    X = ["    s_mov_b32 s%d, 0" % sSPIN, "L_spin%d:" % n]
    if CFG["sleep"]: X.append("    s_sleep %d" % CFG["sleep"])
    X += ["    " + sload(SWS if base is None else base, soff, off, sdst), "    s_add_u32 s%d, s%d, 1" % (sSPIN, sSPIN),
          "    s_waitcnt lgkmcnt(0)", "    s_cmp_eq_u32 s%d, %d" % (sdst, want), "    s_cbranch_scc1 L_ok%d" % n,
          "    s_cmp_lt_u32 s%d, 0x80000" % sSPIN, "    s_cbranch_scc1 L_spin%d" % n, "L_ok%d:" % n]
    for t in X: P.append(L(t))

def gate(P, vaddr, srdb, off, tag, vdst, want, slow=None):
    n = newlbl()
    P.append(W(lg=[tag]) if tag == "init" else W(vm=[tag]))
    P.append(I("v_cmp_eq_u32 vcc, %d, v%d" % (want, vdst)))
    P.append(I("s_cbranch_vccnz L_ok%d" % n))
    if slow: raw(P, slow)
    X = ["    s_mov_b32 s%d, 0" % sSPIN, "L_spin%d:" % n]
    if CFG["sleep"]: X.append("    s_sleep %d" % CFG["sleep"])
    X += ["    buffer_load_dword v%d, v%d, %s, 0 offen offset:%d sc1" % (vdst, vaddr, srd(srdb), off), "    s_add_u32 s%d, s%d, 1" % (sSPIN, sSPIN),
          "    s_waitcnt vmcnt(0)", "    v_cmp_eq_u32 vcc, %d, v%d" % (want, vdst), "    s_cbranch_vccnz L_ok%d" % n,
          "    s_cmp_lt_u32 s%d, 0x80000" % sSPIN, "    s_cbranch_scc1 L_spin%d" % n, "L_ok%d:" % n]
    for t in X: P.append(L(t))

C_XA = ACC + 16
N_ONES = ACC + 24
N_T, N_CM, N_SQ, N_ID, N_DL, N_TK = ACC + 32, ACC + 48, ACC + 52, ACC + 60, ACC + 62, ACC + 63
C_A2, C_B2, C_OUT, C_RO = 25, 28, 31, 0
C_FV, C_HC, C_FL, C_ONE, C_DV, C_CM = 16, 20, 21, 22, 23, 24
def compute_setup(ty):
    P = []; a = lambda t, tag=None: P.append(I(t, tag))
    t = list(range(32, 48))
    tok, hi, r, c, mat = t[0:5]
    a("v_and_b32 v%d, 31, v1" % tok); a("v_lshrrev_b32 v%d, 5, v1" % hi)
    a("s_lshl_b32 s%d, s%d, 12" % (sT1, sW)); a("s_add_u32 s%d, s%d, %d" % (sT1, sT1, STG))
    a("v_lshlrev_b32 v%d, 7, v%d" % (t[5], tok)); a("v_add_u32 v%d, s%d, v%d" % (t[5], sT1, t[5]))
    a("v_bfe_u32 v%d, v1, 1, 3" % t[6]); a("v_xor_b32 v%d, v%d, v%d" % (t[6], t[6], hi))
    for k in range(4):
        a("v_xor_b32 v%d, %d, v%d" % (C_XA + k, 2 * k, t[6])); a("v_lshl_add_u32 v%d, v%d, 4, v%d" % (C_XA + k, C_XA + k, t[5]))
        a("v_add_u32 v%d, 0x10000, v%d" % (C_XA + 4 + k, C_XA + k))
    for k in range(4): a("v_mov_b32 v%d, 0x3f803f80" % (N_ONES + k))
    ident(a, N_ID, t[13])
    for j in range(3): a("v_cmp_eq_u32 %s, %d, v%d" % (s(sMK + 2 * j, 2), j + 1, t[13]))
    a("v_mov_b32 v%d, %d" % (C_FL, FL)); a("v_mov_b32 v%d, 1" % C_ONE); a("s_lshl_b32 s%d, s%d, 1" % (sT4, sI)); a("s_lshr_b32 s%d, s%d, 1" % (sT3, sW)); a("s_add_u32 s%d, s%d, s%d" % (sT4, sT4, sT3))
    a("s_lshl_b32 s%d, s%d, 9" % (sT4, sT4)); a("v_mov_b32 v%d, s%d" % (C_CM, sT4))
    a("v_and_b32 v18, 1, v1"); a("v_lshlrev_b32 v18, 8, v18"); a("v_add_u32 v18, %d, v18" % (FL + F_LAND))
    a("s_lshl_b32 s%d, s%d, 8" % (sT4, sW)); a("s_add_u32 m0, s%d, %d" % (sT4, FL + F_DONE))
    a("s_lshl_b32 s%d, s%d, 5" % (sT4, sW)); a("v_add_u32 v%d, s%d, v%d" % (N_TK, sT4, tok))
    a("s_lshl_b32 s%d, s%d, 13" % (sT0, sW))
    a("v_bfe_u32 v%d, v1, 2, 2" % r); a("v_and_b32 v%d, 3, v1" % c); a("v_bfe_u32 v%d, v1, 4, 1" % mat)
    a("v_lshlrev_b32 v%d, 3, v%d" % (t[7], c)); a("v_lshl_add_u32 v%d, v%d, 10, v%d" % (t[7], mat, t[7]))
    a("v_lshl_add_u32 v%d, v%d, 11, v%d" % (t[8], hi, t[7])); a("v_lshl_add_u32 v%d, v%d, 7, v%d" % (t[8], r, t[8]))
    a("v_and_b32 v%d, 2, v%d" % (t[9], r)); a("v_xor_b32 v%d, v%d, v%d" % (t[9], t[9], mat))
    for k in range(4):
        a("v_xor_b32 v%d, %d, v%d" % (t[10], k, t[9])); a("v_lshl_add_u32 v%d, v%d, 5, v%d" % (2 + k, t[10], t[8])); a("v_add_u32 v%d, 0x10000, v%d" % (6 + k, 2 + k))
    a("v_lshl_add_u32 v%d, v%d, 9, v%d" % (t[8], hi, t[7])); a("v_lshl_add_u32 v%d, v%d, 6, v%d" % (t[8], r, t[8]))
    for k in range(2):
        a("v_xor_b32 v%d, %d, v%d" % (t[10], k, mat)); a("v_lshl_add_u32 v%d, v%d, 5, v%d" % (10 + k, t[10], t[8])); a("v_add_u32 v%d, 0x10000, v%d" % (12 + k, 10 + k))
    a("v_lshlrev_b32 v%d, 4, v1" % t[11])
    a("s_add_u32 s%d, s%d, %d" % (sT0, sT0, EX)); a("v_add_u32 v15, s%d, v%d" % (sT0, t[11]))
    a("s_lshl_b32 s%d, s%d, 2" % (sT0, sI)); a("s_add_u32 s%d, s%d, s%d" % (sT0, sT0, sW)); a("s_mul_i32 s%d, s%d, %d" % (sT0, sT0, 147456))
    a("s_add_u32 s%d, s%d, %d" % (sT0, sT0, WS_HO)); a("v_add_u32 v14, s%d, v%d" % (sT0, t[11]))
    fcols(a, ty)
    a("s_lshl_b32 s%d, s%d, 6" % (sKS, sKS)); a("s_lshl_b32 s%d, s%d, 6" % (sKS + 1, sKS + 1))
    a("s_lshr_b32 s%d, s%d, 1" % (sT0, sW))
    a("s_lshl_b32 s%d, s%d, 13" % (sT2, sT0)); a("s_add_u32 s%d, s%d, 2048" % (sT2, sT2))
    a("v_add_u32 v%d, s%d, v%d" % (C_A2, sT2, t[11])); a("v_add_u32 v%d, 0x10000, v%d" % (C_A2 + 1, C_A2)); a("v_add_u32 v%d, 0x20000, v%d" % (C_A2 + 2, C_A2))
    u = t[12]
    a("v_bfe_u32 v%d, v1, 3, 1" % u); a("v_xor_b32 v%d, s%d, v%d" % (u, sW1, u)); a("v_lshlrev_b32 v%d, 6, v%d" % (C_B2, u))
    a("v_lshl_add_u32 v%d, v%d, 7, v%d" % (C_B2, r, C_B2)); a("v_lshl_add_u32 v%d, v%d, 9, v%d" % (C_B2, hi, C_B2))
    a("v_and_b32 v%d, 1, v1" % u); a("v_lshl_add_u32 v%d, v%d, 5, v%d" % (C_B2, u, C_B2))
    a("v_lshl_add_u32 v%d, v%d, 4, v%d" % (C_B2, mat, C_B2))
    a("v_bfe_u32 v%d, v1, 1, 1" % u); a("v_lshl_add_u32 v%d, v%d, 3, v%d" % (C_B2, u, C_B2))
    a("v_add_u32 v%d, 0x10000, v%d" % (C_B2 + 1, C_B2)); a("v_add_u32 v%d, 0x20000, v%d" % (C_B2 + 2, C_B2))
    a("s_lshl_b32 s%d, s%d, 6" % (sT2, sTT)); a("s_lshl_b32 s%d, s%d, 5" % (sT3, sT0)); a("s_add_u32 s%d, s%d, s%d" % (sT2, sT2, sT3))
    a("v_add_u32 v%d, s%d, v%d" % (u, sT2, tok))
    a("v_add_u32 v17, s%d, v%d" % (sT3, tok)); a("v_lshlrev_b32 v%d, 2, v17" % C_RO)
    a("v_lshlrev_b32 v17, 7, v17"); a("v_lshl_add_u32 v17, v%d, 5, v17" % hi); a("s_lshl_b32 s%d, s%d, 6" % (sT4, sW1)); a("v_add_u32 v17, s%d, v17" % sT4)
    a("s_lshl_b32 s%d, s%d, 7" % (sT3, sCT)); a("s_lshl_b32 s%d, s%d, 6" % (sT4, sW1)); a("s_add_u32 s%d, s%d, s%d" % (sT3, sT3, sT4))
    a("v_lshlrev_b32 v%d, 10, v%d" % (u, u)); a("v_lshl_add_u32 v%d, v%d, 5, v%d" % (u, hi, u)); a("v_add_u32 v%d, s%d, v%d" % (C_OUT, sT3, u))
    return P

def centre(a, k0, k1):
    def cen(k, h): a("v_mfma_f32_4x4x4_16b_bf16 %s, %s, %s, %s" % (v(N_T + 8 * (k & 1) + 4 * h, 4), v(N_ID, 2), v(XR + 4 * k + 2 * h, 2), v(N_CM, 4)))
    cen(k0, 0); cen(k0, 1); cen(k0 + 1, 0)
    for k in range(k0, k1):
        for h in range(2):
            kn, hn = k + (h + 3) // 2, (h + 3) & 1
            if kn < k1: cen(kn, hn)
            for j in (2 * h, 2 * h + 1): a("v_cvt_pk_bf16_f32 v%d, v%d, v%d" % (XR + 4 * k + j, N_T + 8 * (k & 1) + 2 * j, N_T + 8 * (k & 1) + 2 * j + 1))
def centre_sub():
    P = []; centre(lambda t: P.append(I(t)), 0, 28); P.append(I("s_setpc_b64 %s" % s(sRET, 2)))
    return ["L_centre:"] + finalize(P)[0]

def compute(ty):
    P = compute_setup(ty); a = lambda t, tag=None: P.append(I(t, tag))
    NB = CFG["nb%d" % ty]; CH = checks(ty)
    ops = []; queue = []
    sl = slabs_of(ty); gu_seen = 0; ex_seen = 0
    firstuse = {}; epi = []
    for n, (pi, kind, sg) in enumerate(sl):
        slot = slot_of(n); win = slot >> 2; base = (slot & 3) * SLOT
        e, tiles = PH[ty][pi][1:]
        order = tiles if sg == 0 else sorted(tiles)
        nk = 4 if kind == "P4" else 8
        last = sg == (7 if kind == "P4" else 3)
        seq = [(t, u) for t in order for u in range(nk)]
        for t, u in seq:
            if sg == 0 and u == 0: firstuse[(pi, t)] = len(ops)
            if True:
                m = len(ops); fb = WF + 4 * (m & 7)
                if kind == "P4": ar, off, dq, xs = 2 + 4 * win + t, base + u * 4096, 512, sg * 4 + u
                else: ar, off, dq, xs = 10 + 2 * win + (t & 1), base + u * 2048, 256, sg * 8 + u
                acc = v(ACC + 16 * t, 16)
                ops.append(dict(slab=n, reads=[("ds_read_b64_tr_b16 %s, v%d offset:%d" % (v(fb, 2), ar, off), ("f", m)),
                                               ("ds_read_b64_tr_b16 %s, v%d offset:%d" % (v(fb + 2, 2), ar, off + dq), ("f", m))],
                                waits=[("f", m)], la=CFG["LA"],
                                mfma="v_mfma_f32_32x32x16_bf16 %s, %s, %s, %s" % (acc, v(fb, 4), v(XR + 4 * xs, 4), "0" if (sg == 0 and u == 0) else acc)))
            if last and u == nk - 1:
                A = ACC + 16 * t; E = []
                if e == "gu":
                    for j in range(8): E.append(I("v_mul_f32 v%d, v%d, v%d" % (A + j, A + j, A + j + 8)))
                    for j in range(4): E.append(I("v_cvt_pk_bf16_f32 v%d, v%d, v%d" % (A + j, A + 2 * j, A + 2 * j + 1)))
                    E.append(I("buffer_store_dwordx4 %s, v14, %s, s%d offen offset:%d sc1" % (v(A, 4), srd(SWS), sKS + gu_seen, t * 1024), ("h", gu_seen)))
                else:
                    for j in range(4):
                        for k in (2 * j, 2 * j + 1): E.append(I("v_cvt_pk_bf16_f32 v%d, v%d, v%d" % (A + k, A + 2 * k, A + 2 * k + 1)))
                        E.append(I("ds_write_b64 v15, %s offset:%d" % (v(A + 2 * j, 2), t * 2048 + (j >> 1) * 1024 + (j & 1) * 8)))
                    if t == order[-1]:
                        g = []; one_lane(g, "ds_add_u32 v%d, v%d offset:%d" % (C_FL, C_ONE, F_EX + 4 * ex_seen)); E.append(g); ex_seen += 1
                epi.append((len(ops) + 1, pi, t, E))
        if last and e == "gu":
            kind_ = (C_H1B if ty else C_H1A) if gu_seen == 0 else C_H2
            g1 = [W(vm=[("h", gu_seen)])]; one_lane(g1, "buffer_atomic_add v%d, v%d, %s, 0 offen offset:%d sc1" % (C_ONE, C_CM, srd(SWS), kind_ * 128))
            epi.append((len(ops) + 6 + CFG["hwait1" if gu_seen == 0 else "hwait2"], 99, 0, [g1]))
            gu_seen += 1
    n1 = len(ops)
    HB = XR; RES = XR + 32; R2 = XR + 40
    Y, S_ = (ACC + 32, ACC + 48) if ty == 1 else (XR + 48, XR + 64)
    for n in range(20, 56):
        slot = slot_of(n); win = slot >> 2; base = (slot & 3) * SLOT
        acc = v(Y if n < 48 else S_, 16)
        for kk in range(4):
            m = len(ops); fb = WF + 4 * (m & 7); hb = HB + 4 * (m & 7)
            ops.append(dict(slab=n, reads=[("ds_read_b64_tr_b16 %s, v%d offset:%d" % (v(fb, 2), C_B2 + win, base + kk * 4096), ("f", m)),
                                           ("ds_read_b64_tr_b16 %s, v%d offset:%d" % (v(fb + 2, 2), C_B2 + win, base + kk * 4096 + 1024), ("f", m)),
                                           ("ds_read_b128 %s, v%d offset:%d" % (v(hb, 4), C_A2 + win, base + (kk >> 1) * 4096 + (kk & 1) * 1024), ("f", m))],
                            waits=[("f", m)], la=4 if not (CFG["h2now"] and n == 20) else kk + 1,
                            mfma="v_mfma_f32_32x32x16_bf16 %s, %s, %s, %s" % (acc, v(fb, 4), v(hb, 4), "0" if (n in (20, 48) and kk == 0) else acc)))
    X = []; x = lambda t: X.append(I(t)); r = N_SQ
    for j in range(4): x("v_add_f32 v%d, v%d, v%d" % (r + j, r + j, r + j + 4))
    for j in range(3): x("v_cndmask_b32 v%d, v%d, v%d, %s" % (r, r, r + j + 1, s(sMK + 2 * j, 2)))
    x("v_mov_b32 v%d, v%d" % (r + 1, r)); x("v_permlane32_swap_b32 v%d, v%d" % (r, r + 1)); x("v_add_f32 v%d, v%d, v%d" % (r, r, r + 1))
    x("v_mul_f32 v%d, 0x3b000000, v%d" % (r, r)); x("v_fma_f32 v%d, -v%d, v%d, v%d" % (r, N_DL, N_DL, r)); x("v_max_f32 v%d, 0, v%d" % (r, r))
    def rnd(): x("v_cvt_pk_bf16_f32 v%d, v%d, v%d" % (r + 1, r, r)); x("v_and_b32 v%d, 0xffff0000, v%d" % (r, r + 1))
    rnd(); x("v_add_f32 v%d, 0x3727c5ac, v%d" % (r, r)); rnd(); x("v_sqrt_f32 v%d, v%d" % (r, r)); rnd()
    x("v_rcp_f32 v%d, v%d" % (r, r))
    x("v_lshl_add_u32 v%d, v%d, 1, v%d" % (r + 2, N_TK, C_FL)); x("v_lshl_add_u32 v%d, v%d, 2, v%d" % (r + 3, N_TK, C_FL))
    x("ds_write_b16 v%d, v%d offset:%d" % (r + 2, r + 1, LSD - FL)); x("ds_write_b32 v%d, v%d offset:%d" % (r + 3, r, LRS - FL))
    for it in X[:-2]: queue.append((18, 50, it))
    for it in X[-2:]: queue.append((CFG["rsat"], 60, it))
    if ty == 0:
        g = []
        only(g, ["s_cmp_lg_u32 s%d, 0" % sGR], [I("s_lshl_b32 s%d, s%d, 9" % (sT4, sI)), I("s_add_u32 s%d, s%d, %d" % (sT4, sT4, WS_RS - FL)), I("s_mov_b32 exec_hi, 0"),
                                               I("buffer_store_dword v%d, v%d, %s, s%d offen sc1" % (r, r + 3, srd(SWS), sT4)), I("s_mov_b64 exec, -1")])
        queue.append((30, 60, g))
    queue.append((158, 160, I("ds_read_b32 v%d, v%d offset:%d" % (C_HC, C_FL, F_INIT), "init")))
    g = []; gate(g, C_DV, SDBG, 0, "init", C_HC, 1, slow=[I("v_mov_b32 v%d, 0" % C_DV)]); queue.append((164, 166, g))
    for e0, pi, t, E in epi:
        dl = min([x for (p2, t2), x in firstuse.items() if p2 > pi and t2 == t] + [10 ** 9]) - 1
        for it in E: queue.append((e0, dl, it))
    G = XR + 80; XF = XR + 96; E = []
    E.append(I("ds_read_b128 %s, v17 offset:%d" % (v(RES, 4), LX), "res")); E.append(I("ds_read_b128 %s, v17 offset:%d" % (v(RES + 4, 4), LX + 16), "res"))
    E.append(I("ds_read_b32 v%d, v%d offset:%d" % (R2, C_RO, LR2), "res"))
    for it in E: queue.append((n1 + 22 * 4, 10 ** 9, it))
    E = [W(lg=["res"]), I("v_mul_f32 v%d, v%d, v%d" % (R2, R2, R2)), I("v_mul_f32 v%d, s%d, v%d" % (R2 + 1, sL2E, R2))]
    for j in range(8):
        E.append(I("v_lshlrev_b32 v%d, 16, v%d" % (XF + 2 * j, RES + j))); E.append(I("v_and_b32 v%d, 0xffff0000, v%d" % (XF + 2 * j + 1, RES + j)))
    for it in E: queue.append((n1 + 24 * 4, 10 ** 9, it))
    E = []
    for j in range(16): E.append(I("v_mul_f32 v%d, v%d, v%d" % (G + j, R2 + 1, Y + j)))
    for j in range(16): E.append(I("v_exp_f32 v%d, -v%d" % (G + j, G + j)))
    for j in range(16): E.append(I("v_mul_f32 v%d, v%d, v%d" % (Y + j, R2, Y + j)))
    for j in range(16): E.append(I("v_add_f32 v%d, 1.0, v%d" % (G + j, G + j)))
    for j in range(16): E.append(I("v_rcp_f32 v%d, v%d" % (G + j, G + j)))
    for j in range(16): E.append(I("v_mul_f32 v%d, v%d, v%d" % (G + j, G + j, Y + j)))
    for it in E: queue.append((n1 + 28 * 4 + 1, 10 ** 9, it))
    queue.sort(key=lambda x: x[0])
    first = {}
    for m, o in enumerate(ops): first.setdefault(o["slab"], m)
    fread = {first[n] - ops[first[n]]["la"] - (CFG["LAF"] if n <= 20 else 3): n for n in CH if n}
    lastdone = prev_user(min(NB + CFG["ahead2"], 56) - 1)
    def done(n):
        a("v_mov_b32 v%d, %d" % (C_DV, 4 * (n + 1))); a("global_load_lds_dword v%d, %s" % (C_DV, s(sTB, 2)))
    issued = 0; cur = -1
    def issue_reads(upto_fn):
        nonlocal issued, cur
        while issued < len(ops) and upto_fn(issued):
            o = ops[issued]
            if o["slab"] > cur:
                cur = o["slab"]
                if cur >= NB: a("s_barrier")
                elif cur in CH:
                    lb = newlbl()
                    a("s_cbranch_vccnz L_cs%d" % lb); P.append(L("L_cb%d:" % lb))
                    STUBS.extend(["L_cs%d:" % lb, "    s_movk_i32 s%d, %d" % (sSPIN + 1, CH[cur] + 1),
                                  "    s_call_b64 %s, L_spin_c" % s(sRET, 2), "    s_branch L_cb%d" % lb])
            for t, tag in o["reads"]: a(t, tag)
            issued += 1
    def cstamp(k):
        r = sPH + 2 * (k & 1)
        if k > 2:
            a("s_sub_u32 s%d, s%d, s%d" % (r, r, sTM)); a("v_writelane_b32 v19, s%d, %d" % (r, k - 2))
        elif k == 1: a("v_mov_b32 v19, 0")
        P.append(L("    s_memtime %s" % s(r, 2)))
    SM = ACC
    if CFG["dry"]: a("s_nop 1"); a("s_call_b64 %s, L_centre" % s(sRET, 2))
    for j in range(4):
        a("s_barrier")
        for k in range(8 * j, 8 * j + 8):
            a("ds_read_b128 %s, v%d offset:%d" % (v(XR + 4 * k, 4), C_XA + (k & 3) + 4 * (k >> 4), ((k >> 2) & 3) * 16384), ("xn", k))
        for k in range(8 * j, 8 * j + 8):
            P.append(W(lg=[("xn", k)]))
            if k == 31: a("s_barrier")
            for h in range(2):
                xx = v(XR + 4 * k + 2 * h, 2); c = v(SM + 4 * h, 4); q = v(N_SQ + 4 * h, 4)
                a("v_mfma_f32_4x4x4_16b_bf16 %s, %s, %s, %s" % (c, v(N_ONES, 2), xx, "0" if k == 0 else c))
                a("v_mfma_f32_4x4x4_16b_bf16 %s, %s, %s, %s" % (q, xx, xx, "0" if k == 0 else q))
    a("s_waitcnt vmcnt(0)")
    a("v_add_f32 v%d, v%d, v%d" % (SM, SM, SM + 4)); a("v_mov_b32 v%d, v%d" % (SM + 1, SM)); a("v_permlane32_swap_b32 v%d, v%d" % (SM, SM + 1))
    a("v_add_f32 v%d, v%d, v%d" % (SM, SM, SM + 1))
    a("v_mul_f32 v%d, 0xbb000000, v%d" % (N_DL, SM))
    a("v_cvt_pk_bf16_f32 v%d, v%d, v%d" % (SM, N_DL, N_DL))
    for j in range(4): a("v_and_b32 v%d, 0xffff0000, v%d" % (N_CM + j, SM))
    a("ds_read_b32 v%d, v18" % C_FV, ("fl", 0))
    a("s_nop 1"); a("s_call_b64 %s, L_centre" % s(sRET, 2))
    P.append(W(lg=[("fl", 0)])); a("v_cmp_ge_u32 vcc, 0, v%d" % C_FV)
    issue_reads(lambda m: m < CFG["LA"])
    centre(a, 28, 32)
    qi = 0
    for m, o in enumerate(ops):
        P.append(W(lg=o["waits"]))
        a(o["mfma"])
        if m + 1 < len(ops) and ops[m + 1]["slab"] != o["slab"] and o["slab"] <= lastdone: done(o["slab"])
        if CFG["probe"] and m == CFG["probeat"]: P.append(L("    s_memrealtime s[6:7]"))
        if m == n1 - 1 and CFG["h2now"]:
            lim = n1 + 1 if CFG["h2now"] == 1 else n1 + 40
            while queue[qi][0] <= lim:
                it = queue[qi][2]; P += it if isinstance(it, list) else [it]; qi += 1
        issue_reads(lambda k: k - ops[k]["la"] <= m)
        for n in range(1, 56):
            d = m - (first[n] - ops[first[n]]["la"])
            if d == -1 and n in CH:
                P.append(W(lg=[("fl", n)])); a("v_cmp_ge_u32 vcc, %d, v%d" % (CH[n], C_FV))
            if d == (2 if n <= 20 else 0) and CFG["stamps"] and not CFG["zoom"]: cstamp(n)
            if CFG["zoom"] and m == CFG["zoom"] + n: cstamp(n)
        if m in fread: a("ds_read_b32 v%d, v18" % C_FV, ("fl", fread[m]))
        rate = CFG["erate"] if m < n1 else 5
        cnt = 0
        while qi < len(queue) and queue[qi][0] <= m and cnt < rate:
            assert m <= queue[qi][1], ("filler past its deadline", ty, m, queue[qi][1])
            it = queue[qi][2]
            if isinstance(it, list): P += it; cnt += 2
            else: P.append(it)
            qi += 1; cnt += 1
    assert qi == len(queue)
    for j in range(16): a("v_fma_f32 v%d, v%d, v%d, v%d" % (G + j, S_ + j, G + j, XF + j))
    for j in range(8): a("v_cvt_pk_bf16_f32 v%d, v%d, v%d" % (XF + j, G + 2 * j, G + 2 * j + 1))
    if CFG["xprobe"]:
        lb = newlbl()
        a("s_getreg_b32 s6, hwreg(HW_REG_XCC_ID, 0, 4)"); a("s_and_b32 s7, s2, 7"); a("s_cmp_eq_u32 s6, s7"); a("s_cbranch_scc1 L_xp%d" % lb)
        for _ in range(6): a("s_sleep 127")
        P.append(L("L_xp%d:" % lb))
    if CFG["probe"]:
        lb = newlbl()
        if CFG["probeat"] < 0: a("s_memrealtime s[6:7]")
        P.append(W(lg="all")); a("s_sub_u32 s6, s6, s4")
        a("s_cmp_le_u32 s6, %d" % CFG["probe"]); a("s_cbranch_scc1 L_xp%d" % lb)
        for _ in range(6): a("s_sleep 127")
        P.append(L("L_xp%d:" % lb))
    a("buffer_store_dwordx4 %s, v%d, %s, 0 offen%s" % (v(XF, 4), C_OUT, srd(SOUT), CFG["outfl"]))
    a("buffer_store_dwordx4 %s, v%d, %s, 0 offen offset:16%s" % (v(XF + 4, 4), C_OUT, srd(SOUT), CFG["outfl"]))
    if CFG["stamps"]:
        one_lane(P, "ds_add_u32 v%d, v%d offset:%d" % (C_FL, C_ONE, F_END))
        cstamp(56); cstamp(57); P.append(W(lg="all")); cstamp(58)
        a("s_lshl_b32 s%d, s2, 8" % sT0); a("s_add_u32 s%d, s%d, %d" % (sT0, sT0, WS_ST + 0x20000))
        a("v_lshlrev_b32 v18, 2, v1")
        a("s_cmp_lg_u32 s%d, %d" % (sW, CFG["stampw"])); a("s_cbranch_scc1 L_exit")
        a("buffer_store_dword v19, v18, %s, s%d offen" % (srd(SWS), sT0))
    a("s_endpgm")
    return P

D_P = 32
D_A, D_B, D_B2, D_TAB, D_FL, D_LA, D_ONE, D_ZERO, D_CC, D_POLL, D_LV = range(2, 13)
D_AT, D_POLL2, D_X, D_R = 13, 14, 15, 16
D_DV = 28
D_TCH = 20
def phase_info(ty):
    return [(kind, 3584, SG, SU) if e == "gu" else (kind, 3072, SQKV, SQKV) for kind, e, _ in PH[ty]]
def dma_setup(ty):
    P = []; b = lambda t, tag=None: P.append(I(t, tag))
    t0, t1, t2, t3, u0, u1, u2 = range(64, 71)
    b("v_mov_b32 v%d, 0" % D_ZERO); b("v_mov_b32 v%d, 0" % D_TAB)
    b("v_mov_b32 v%d, 1" % D_ONE); b("v_mov_b32 v%d, %d" % (D_FL, FL))
    b("v_and_b32 v%d, 3, v1" % D_LA); b("v_lshlrev_b32 v%d, 8, v%d" % (D_LA, D_LA)); b("v_add_u32 v%d, %d, v%d" % (D_LA, FL + F_DONE, D_LA))
    b("s_lshl_b32 s%d, s%d, 8" % (sLM, sW1)); b("s_add_u32 s%d, s%d, %d" % (sLM, sLM, FL + F_LAND))
    b("s_lshl_b32 s%d, s%d, 9" % (sCC, sTT)); b("v_mov_b32 v%d, s%d" % (D_CC, sCC))
    b("s_lshl_b32 s%d, s%d, 1" % (sT0, sTT)); b("s_add_u32 s%d, s%d, s%d" % (sT0, sT0, sW1))
    b("s_mul_i32 s%d, s%d, 147456" % (sT0, sT0)); b("s_add_u32 s%d, s%d, %d" % (sT0, sT0, WS_HO - 2048))
    b("v_lshlrev_b32 v%d, 4, v1" % u0); b("v_add_u32 v%d, s%d, v%d" % (D_A, sT0, u0))
    b("v_lshlrev_b32 v%d, 7, v1" % u0); b("v_add_u32 v%d, s%d, v%d" % (D_AT, sT0, u0))
    b("v_lshrrev_b32 v%d, 3, v1" % u0); b("v_and_b32 v%d, 2, v%d" % (u1, u0)); b("v_lshlrev_b32 v%d, 1, v%d" % (u1, u1))
    b("v_and_b32 v%d, 7, v1" % u2); b("v_xor_b32 v%d, v%d, v%d" % (u2, u2, u1))
    b("v_lshlrev_b32 v%d, 10, v%d" % (u0, u0)); b("v_lshl_add_u32 v%d, v%d, 4, v%d" % (D_B, u2, u0))
    b("s_lshl_b32 s%d, s%d, 15" % (sT0, sW1)); b("s_lshl_b32 s%d, s%d, 7" % (sT1, sCT)); b("s_add_u32 s%d, s%d, s%d" % (sT0, sT0, sT1))
    b("v_add_u32 v%d, s%d, v%d" % (D_B, sT0, D_B)); b("v_add_u32 v%d, %d, v%d" % (D_B2, 8192 - 1024, D_B))
    b("v_lshrrev_b32 v%d, 3, v1" % u0); b("v_lshlrev_b32 v%d, 10, v%d" % (u0, u0)); b("v_and_b32 v%d, 7, v1" % u2); b("v_lshl_add_u32 v%d, v%d, 4, v%d" % (D_X, u2, u0))
    b("s_lshl_b32 s%d, s%d, 16" % (sT1, sTT)); b("s_add_u32 s%d, s%d, s%d" % (sT0, sT0, sT1)); b("v_add_u32 v%d, s%d, v%d" % (D_X, sT0, D_X))
    b("s_lshl_b32 s%d, s%d, 8" % (sT1, sTT)); b("s_add_u32 s%d, s%d, %d" % (sT1, sT1, WS_RS)); b("v_lshlrev_b32 v%d, 2, v1" % D_R); b("v_add_u32 v%d, s%d, v%d" % (D_R, sT1, D_R))
    fcols(b, ty)
    gu = 0
    for pi, (kind, e, _) in enumerate(PH[ty]):
        stride = 3584 if e == "gu" else 3072
        (p4_voffs if kind == "P4" else p2_voffs)(b, u0, u1, stride, t0)
        if e == "gu": b("s_lshl_b32 s%d, s%d, 1" % (sT1, sKS + gu)); db = 0; gu += 1
        elif e == "kv": b("s_mov_b32 s%d, s%d" % (sT1, sKC)); db = 1024
        else: b("s_lshl_b32 s%d, s%d, 7" % (sT1, sGR)); db = 64
        step = (8 if kind == "P4" else 16) * stride
        b("v_add_u32 v%d, s%d, v%d" % (u0, sT1, u0)); b("v_add_u32 v%d, s%d, v%d" % (u1, sT1, u1))
        for p in range(4):
            b("v_add_u32 v%d, %d, v%d" % (D_P + 4 * pi + p, 4096 + (p >> 1) * step - p * 1024 + (db if p & 1 else 0), u1 if p & 1 else u0))
    b("s_lshl_b32 s%d, s%d, 13" % (sLA, sW1))
    nr = 32 if CFG["map"] == 84 else 64
    b("s_lshl_b32 s%d, s%d, 6" % (sT0, sXR)); b("s_mul_i32 s%d, s%d, %d" % (sT1, sW1, nr)); b("s_add_u32 s%d, s%d, s%d" % (sT0, sT0, sT1))
    b("v_add_u32 v%d, s%d, v1" % (t2, sT0)); b("v_mul_u32_u24 v%d, 3072, v%d" % (D_TCH + 3, t2)); b("v_mul_u32_u24 v%d, 3584, v%d" % (D_TCH + 2, t2))
    b("s_lshl_b32 s%d, s%d, 7" % (sT0, sGR)); b("s_add_u32 s%d, s%d, 4096" % (sT0, sT0)); b("v_add_u32 v%d, s%d, v%d" % (D_TCH + 3, sT0, D_TCH + 3))
    b("v_add_u32 v%d, 4096, v%d" % (D_TCH + 2, D_TCH + 2))
    b("s_lshl_b32 s%d, s%d, 1" % (sKS, sKS)); b("s_lshl_b32 s%d, s%d, 1" % (sKS + 1, sKS + 1))
    b("s_lshl_b32 s%d, s%d, 1" % (sT0, sSH)); b("s_add_u32 s%d, s%d, s%d" % (sT0, sT0, sW1))
    if CFG["map2"] == 48: b("v_lshlrev_b32 v%d, 7, v1" % t2)
    else:
        b("v_lshrrev_b32 v%d, 2, v1" % t2); b("v_lshlrev_b32 v%d, 10, v%d" % (t2, t2)); b("v_and_b32 v%d, 3, v1" % t3); b("v_lshl_add_u32 v%d, v%d, 7, v%d" % (t2, t3, t2))
        b("s_and_b32 s%d, s%d, 4" % (sT1, sCT)); b("s_lshl_b32 s%d, s%d, 7" % (sT1, sT1)); b("v_add_u32 v%d, s%d, v%d" % (t2, sT1, t2))
    k2 = 2 if CFG["aonly"] else 1
    b("s_mul_i32 s%d, s%d, %d" % (sT1, sT0, 28 * 1024 * k2)); b("v_add_u32 v%d, s%d, v%d" % (D_TCH, sT1, t2))
    b("s_mul_i32 s%d, s%d, %d" % (sT1, sT0, 8192 * k2)); b("v_add_u32 v%d, s%d, v%d" % (D_TCH + 1, sT1, t2))
    def seg(lo, items):
        for t in items: b(t)
        b("v_cmp_le_u32 vcc, %d, v1" % lo); b("v_cndmask_b32 v%d, v%d, v%d, vcc" % (D_TAB, D_TAB, t1))
    b("s_add_u32 s%d, s%d, s%d" % (sT0, sR1, sW1))
    n0 = 0
    for pi, (kind, e, _) in enumerate(PH[ty]):
        stride = 3584 if e == "gu" else 3072
        if kind == "P4":
            seg(n0, ["v_add_u32 v%d, s%d, v1" % (t1, sR1), "v_add_u32 v%d, %d, v%d" % (t1, (-n0) & 7, t1), "v_and_b32 v%d, 7, v%d" % (t1, t1),
                     "v_lshlrev_b32 v%d, 1, v%d" % (t1, t1), "v_add_u32 v%d, s%d, v%d" % (t1, sW1, t1), "v_mul_u32_u24 v%d, %d, v%d" % (t1, 32 * stride, t1)]); n0 += 8
        else:
            seg(n0, ["v_lshlrev_b32 v%d, 1, v1" % t1, "v_add_u32 v%d, s%d, v%d" % (t1, sT0, t1), "v_and_b32 v%d, 7, v%d" % (t1, t1),
                     "v_mul_u32_u24 v%d, %d, v%d" % (t1, 64 * stride, t1)]); n0 += 4
    b("v_add_u32 v%d, s%d, v1" % (t0, sR2)); b("v_and_b32 v%d, 7, v%d" % (t2, t0))
    seg(20, ["v_lshlrev_b32 v%d, 13, v%d" % (t1, t2)])
    seg(28, ["v_lshrrev_b32 v%d, 1, v%d" % (t3, t2), "v_lshlrev_b32 v%d, 1, v%d" % (t1, t2), "v_sub_u32 v%d, v%d, v%d" % (t1, t1, t3),
             "v_add_u32 v%d, 16, v%d" % (t1, t1), "v_lshlrev_b32 v%d, 12, v%d" % (t1, t1)])
    seg(36, ["v_lshlrev_b32 v%d, 13, v%d" % (t1, t2), "v_add_u32 v%d, 4096, v%d" % (t1, t1)])
    seg(44, ["v_and_b32 v%d, 3, v%d" % (t1, t0), "v_mul_u32_u24 v%d, 3, v%d" % (t1, t1), "v_add_u32 v%d, 17, v%d" % (t1, t1), "v_lshlrev_b32 v%d, 12, v%d" % (t1, t1)])
    seg(48, ["v_lshlrev_b32 v%d, 12, v%d" % (t1, t2)])
    return P

def dma_wave(ty):
    P = [M(("x", 1))] + dma_setup(ty); a = lambda t, tag=None: P.append(I(t, tag))
    stamp = lambda k: stamp_to(P, k)
    stamp_to(P, 1, H_STAMP2)
    NB = CFG["nb%d" % ty]; CH = checks(ty)
    sl = slabs_of(ty); info = phase_info(ty)
    def look(n):
        if n < 56: a("v_readlane_b32 s%d, v%d, %d" % (sPH + 2 * (n & 1), D_TAB, n))
    def part(n, which, nxt):
        so = sPH + 2 * (n & 1); cap = CFG["cap2"]; wb = srd(SWD if n < 48 else SWO)
        if which == "B": a("s_lshl_b32 s%d, s%d, 4" % (so, so))
        elif n == 48: a("v_add_u32 v%d, %d, v%d" % (D_A, 28 * 4096, D_A))
        for h in range(2):
            a("s_add_u32 m0, s%d, %d" % (sLA, slot_of(n) * SLOT + h * 4096))
            if h: a("s_add_u32 s%d, s%d, %d" % (so, so, 16384 if which == "B" else 2048))
            elif (nxt ^ n) & 1: look(nxt)
            room(16, cap)
            if which == "B":
                vm("buffer_load_dwordx4 v%d, %s, s%d offen lds" % (D_B, wb, so), 8)
                vm("buffer_load_dwordx4 v%d, %s, s%d offen offset:1024 lds" % (D_B2, wb, so), 8)
            else:
                vm("buffer_load_dwordx4 v%d, %s, s%d offen offset:2048 sc1 lds" % (D_A, srd(SWS), so), 8, ("slab", n))
                vm("buffer_load_dwordx4 v%d, %s, s%d offen offset:3072 sc1 lds" % (D_A, srd(SWS), so), 8, ("slab", n))
        if not (nxt ^ n) & 1: look(nxt)
    hist = []
    def room(w, cap):
        tot = w; k = 0
        while k < len(hist) and tot + hist[-1 - k] <= cap: tot += hist[-1 - k]; k += 1
        if k < len(hist): a("s_waitcnt vmcnt(%d)" % min(k, 63))
    def vm(t, w, tag=None): a(t, tag); hist.append(w)
    def dma(n):
        so = sPH + 2 * (n & 1); cap = CFG["cap1"] if n < CFG["capsw"] else CFG["cap2"]
        for h in range(2):
            a("s_add_u32 m0, s%d, %d" % (sLA, slot_of(n) * SLOT + h * 4096))
            if n < 20:
                pi, kind, sg = sl[n]; _, stride, sa, sb = info[pi]
                w = 16 if (kind == "P2" and PH[ty][pi][1] != "q") else 8
                if h: a("s_add_u32 s%d, s%d, %d" % (so, so, (16 if kind == "P4" else 32) * stride))
                else: look(n + 1)
                for p in range(4):
                    if p % 2 == 0: room(2 * w, cap)
                    vm("buffer_load_dwordx4 v%d, %s, s%d offen offset:%d lds" % (D_P + 4 * pi + p, srd(sb if p & 1 else sa), so, p * 1024), w, ("slab", n))
            else:
                if h: a("s_add_u32 s%d, s%d, 2048" % (so, so)); a("s_add_u32 s%d, s%d, 16384" % (so + 1, so + 1))
                else:
                    a("s_lshl_b32 s%d, s%d, 4" % (so + 1, so)); look(n + 1)
                    if n == 48: a("v_add_u32 v%d, %d, v%d" % (D_A, 28 * 4096, D_A))
                wb = srd(SWD if n < 48 else SWO)
                room(16, cap)
                vm("buffer_load_dwordx4 v%d, %s, s%d offen lds" % (D_B, wb, so + 1), 8, ("slab", n))
                vm("buffer_load_dwordx4 v%d, %s, s%d offen offset:1024 lds" % (D_B2, wb, so + 1), 8, ("slab", n))
                room(16, cap)
                vm("buffer_load_dwordx4 v%d, %s, s%d offen offset:2048 sc1 lds" % (D_A, srd(SWS), so), 8, ("slab", n))
                vm("buffer_load_dwordx4 v%d, %s, s%d offen offset:3072 sc1 lds" % (D_A, srd(SWS), so), 8, ("slab", n))
    def touch(which):
        nr = 32 if CFG["map"] == 84 else 64; dst = D_TCH + 4; cap = CFG["capt"]
        for w in which:
            if w == "x":
                a("s_lshr_b32 s%d, s%d, 1" % (sT0, sLA)); a("s_add_u32 m0, s%d, %d" % (sT0, LX))
                room(32, cap)
                for p in range(4):
                    a("s_movk_i32 s%d, %d" % (sT1, 7168 * p))
                    vm("buffer_load_dwordx4 v%d, %s, s%d offen offset:%d lds" % (D_X, srd(SX), sT1, 1024 * p), 8)
            elif w in ("q", "g0", "g1"):
                if nr == 32: a("s_mov_b32 exec_hi, 0")
                if w == "q": room(nr, cap); vm("buffer_load_dword v%d, v%d, %s, 0 offen" % (dst, D_TCH + 3, srd(SQKV)), nr)
                else:
                    for d in (SG, SU): room(nr, cap); vm("buffer_load_dword v%d, v%d, %s, s%d offen" % (dst, D_TCH + 2, srd(d), sKS + int(w[1])), nr)
            elif w == "o":
                k = 64 if (CFG["map2"] == 48 or CFG["aonly"]) else 32
                if k == 32: a("s_mov_b32 exec_hi, 0")
                room(k, cap); vm("buffer_load_dword v%d, v%d, %s, 0 offen" % (dst, D_TCH + 1, srd(SWO)), k)
            else:
                j = int(w[1])
                if j >= (4 if (CFG["map2"] == 48 or CFG["aonly"]) else 2): continue
                a("s_mov_b32 exec_hi, 0xffffff"); a("s_mov_b32 s%d, %d" % (sT0, j * 56 * (128 if CFG["map2"] == 48 else 256)))
                room(56, cap); vm("buffer_load_dword v%d, v%d, %s, s%d offen" % (dst, D_TCH, srd(SWD), sT0), 56)
            a("s_mov_b64 exec, -1")
    def publish(m):
        if m in CH.values():
            a("s_mov_b32 m0, s%d" % sLM); a("v_mov_b32 v%d, %d" % (D_LV, 4 * (m + 1)))
            vm("global_load_lds_dword v%d, %s" % (D_LV, s(sTB, 2)), 1)
        if CFG["stamps"] == 2 or (CFG["stamps"] and m % 4 == 0): stamp(m)
    for d in (SQKV, SG, SU):
        a("s_sub_u32 s%d, s%d, 4096" % (d, d)); a("s_subb_u32 s%d, s%d, 0" % (d + 1, d + 1)); a("s_add_u32 s%d, s%d, 4096" % (d + 2, d + 2))
    gates = {20: (C_H1A, 16), 28: (C_H1B, 16), 36: (C_H2, 32), 48: (C_O, 16)}
    def do_gate(n):
        if CFG["stamps"] == 2: stamp_to(P, 20 + 2 * list(gates).index(n), H_STAMP2)
        if CFG["spoll"]: sgate(P, sCC, gates[n][0] * 128, sPV, gates[n][1])
        else: gate(P, D_CC, SWS, gates[n][0] * 128, ("poll", n), D_POLL, gates[n][1])
        stamp_to(P, 21 + 2 * list(gates).index(n), H_STAMP2)
    def poll(gn):
        if CFG["spoll"]: a("s_load_dword s%d, %s, s%d offset:%d glc" % (sPV, s(SWS, 2), sCC, gates[gn][0] * 128))
        else: vm("buffer_load_dword v%d, v%d, %s, 0 offen offset:%d sc1" % (D_POLL, D_CC, srd(SWS), gates[gn][0] * 128), 1, ("poll", gn))
    nbf = CFG["bfirst"]
    def issue(n):
        if n in gates and not (n == 20 and nbf): do_gate(n)
        if n + CFG["pollat"] in gates and not (n + CFG["pollat"] == 20 and nbf): poll(n + CFG["pollat"])
        dma(n)
    def do_touch(n):
        tp = CFG["tplan%d" % ty].get(str(n))
        if tp:
            touch(tp.split())
    look(0)
    hist += [16] * 8
    xstages(P, {2: lambda: (dma(0), publish(0), do_touch(0))})
    stamp(60)
    a("s_barrier")
    stamp(61); rstamp(P, 40)
    assert NB == 56
    seq = [(n, "F") for n in range(1, 20)] + [(n, "B") for n in range(20, 20 + nbf)]
    n = 20
    while n < 56:
        k = CFG["afirst"].get(str(n), 0)
        if n == 20: k = max(k, nbf)
        seq += [(m, "A") for m in range(n, n + k)] + [(m, "B") for m in range(n, n + k) if (m, "B") not in seq]
        if not k: seq.append((n, "F"))
        n += max(k, 1)
    started = set(); parts = {}; checked = -1; gated = set()
    firstA = {g: min(i for i, (m, w) in enumerate(seq) if m >= g and w != "B") for g in gates}
    gstart = {g: min(i for i, (m, w) in enumerate(seq) if m >= 20 + 4 * g and w != "B") for g in range(9)}
    def need_at(i):
        k = 1
        if CFG["spoll"] and any(i + CFG["pollat"] == firstA[g] for g in gates): k = CFG["pollat"]
        return max(prev_user(m) if m not in started else -1 for m, w in seq[i:i + k])
    for i, (n, w) in enumerate(seq):
        if (n, w) in ((11, "F"), (15, "F"), (18, "F"), (30, "F"), (42, "F"), (54, "F")): rstamp(P, 42 + 2 * (11, 15, 18, 30, 42, 54).index(n))
        if w == "F" and n in CFG["exw%d" % ty]: count_wait(P, D_FL, D_DV + 1, F_EX + 4 * CFG["exw%d" % ty].index(n), 4)
        pu = need_at(i)
        if pu > checked:
            lb = newlbl()
            P.append(W(lg=[("dn", i)]))
            a("v_cmp_ge_u32 vcc, %d, v%d" % (pu, D_DV)); a("s_cbranch_vccz L_fr%d" % lb)
            raw(P, [I("s_movk_i32 s%d, %d" % (sSPIN + 1, pu + 1)), I("s_call_b64 %s, L_spin_d" % s(sRET, 2))]); P.append(L("L_fr%d:" % lb))
            checked = pu
        if n == 20 and n not in started: count_wait(P, D_FL, D_DV + 1, F_EXF, 2)
        if (n, w) == (4, "F"): a("s_movk_i32 m0, %d" % (FL + F_INIT)); vm("buffer_load_dword v%d, %s, 0 offen sc1 lds" % (D_ZERO, srd(SDBG)), 1)
        if (n, w) == (15, "F"): a("ds_read_b32 v%d, v%d offset:%d" % (D_POLL, D_FL, F_INIT), "init"); gate(P, D_ZERO, SDBG, 0, "init", D_POLL, 1)
        for g in gates:
            if i == firstA[g]:
                do_gate(g)
                if g == 20: a("s_movk_i32 m0, %d" % LR2); vm("buffer_load_dword v%d, %s, 0 offen sc1 lds" % (D_R, srd(SWS)), 2)
            if i + CFG["pollat"] == firstA[g]: poll(g)
        if CFG["lead"]:
            for g in range(1, 9):
                sec = max(x for x in gates if x <= 20 + 4 * g); newsec = sec == 20 + 4 * g
                at = gstart[g - 1]
                if newsec and i + CFG["pollat"] == at:
                    vm("buffer_load_dword v%d, v%d, %s, 0 offen offset:%d sc1" % (D_POLL2, D_CC, srd(SWS), gates[sec][0] * 128), 1, ("poll2", g))
                if i == at + CFG["leadoff"]:
                    lb = newlbl()
                    if newsec: P.append(W(vm=[("poll2", g)]))
                    a("s_cmp_lg_u32 s%d, %d" % (sLD, CFG["who"][g])); a("s_cbranch_scc1 L_nl%d" % lb)
                    X = []
                    if newsec: X += [I("v_cmp_eq_u32 vcc, %d, v%d" % (gates[sec][1], D_POLL2)), I("s_cbranch_vccz L_nl%d" % lb)]
                    for j in range(4): X.append(I("v_readlane_b32 s%d, v%d, %d" % (sG + j, D_TAB, 20 + 4 * g + j)))
                    X.append(I("s_mov_b32 exec_hi, 0"))
                    for j in range(4):
                        if g >= 7: X.append(I("s_add_u32 s%d, s%d, %d" % (sG + j, sG + j, 28 * 4096)))
                        X.append(I("buffer_load_dword v%d, v%d, %s, s%d offen offset:2048 sc1" % (D_TCH + 4, D_AT, srd(SWS), sG + j)))
                    X.append(I("s_mov_b64 exec, -1"))
                    raw(P, X); P.append(L("L_nl%d:" % lb))
        started.add(n)
        if i + 1 < len(seq) and need_at(i + 1) > checked: a("ds_read_b32 v%d, v%d" % (D_DV, D_LA), ("dn", i + 1))
        nxt = seq[i + 1][0] if i + 1 < len(seq) else 99
        if w == "F":
            assert nxt in (n + 1, 99); dma(n)
        else: part(n, w, nxt)
        parts.setdefault(n, set()).add(w)
        if parts[n] in ({"F"}, {"A", "B"}):
            assert all(parts.get(m) in ({"F"}, {"A", "B"}) for m in range(1, n))
            publish(n)
        if w == "F": do_touch(n)
    if CFG["stamps"]:
        count_wait(P, D_FL, D_DV, F_END, 4)
        stamp(62)
        a("s_memrealtime s[6:7]"); P.append(W(lg="all"))
        a("v_writelane_b32 v%d, s4, 62" % H_STAMP2); a("v_writelane_b32 v%d, s6, 63" % H_STAMP2)
        a("s_lshl_b32 s%d, s2, 8" % sT0); a("s_add_u32 s%d, s%d, %d" % (sT0, sT0, WS_ST))
        a("v_lshlrev_b32 v64, 2, v1")
        a("s_cmp_lg_u32 s%d, %d" % (sW1, CFG["stampw"] & 1)); a("s_cbranch_scc1 L_exit")
        a("buffer_store_dword v%d, v64, %s, s%d offen" % (H_STAMP, srd(SWS), sT0))
        a("s_add_u32 s%d, s%d, 0x10000" % (sT0, sT0))
        a("buffer_store_dword v%d, v64, %s, s%d offen" % (H_STAMP2, srd(SWS), sT0))
    a("s_endpgm")
    return P

A_ONE, A_ZERO, A_CM, A_CK, A_CQ, A_FL, A_RK, A_RV, A_ST, A_ZA, A_PL, A_ZL, A_OS, A_SGN = range(2, 16)
A_POLL, A_FV, A_TCH = 25, 27, 28
A_ID = 32
A_WP = 36
A_R = 16
A_ACC = 56
A_RAW = 72
A_T = 72
A_KF = 112
A_SD = 192; A_PHI = 208
A_PQ = 128
A_LD = 192
def softmax_unit(wp, kf, u, dst, Pm, R, scale_r):
    B = []; b = lambda t, tag=None: B.append(I(t, tag))
    C = A_R + 4 + u
    b("v_mfma_f32_32x32x16_bf16 %s, %s, %s, 0" % (v(Pm, 16), v(wp, 4), v(kf, 4)))
    for g in range(2): b("v_max3_f32 v%d, v%d, v%d, v%d" % (R + g, Pm + 8 * g, Pm + 8 * g + 1, Pm + 8 * g + 2))
    for g in range(2): b("v_max3_f32 v%d, v%d, v%d, v%d" % (R + 2 + g, Pm + 8 * g + 3, Pm + 8 * g + 4, Pm + 8 * g + 5))
    for g in range(2): b("v_max3_f32 v%d, v%d, v%d, v%d" % (R + g, R + g, Pm + 8 * g + 6, Pm + 8 * g + 7))
    for g in range(2): b("v_max_f32 v%d, v%d, v%d" % (R + g, R + g, R + 2 + g))
    def allred(op, mid):
        b("v_permlane32_swap_b32 v%d, v%d" % (R, R + 1))
        b("%s v%d, v%d, v%d" % (op, R, R, R + 1))
        for t in mid: b(t)
        b("v_mov_b32 v%d, v%d" % (R + 1, R))
        b("v_permlane32_swap_b32 v%d, v%d" % (R, R + 1))
    allred("v_max_f32", ["v_mul_f32 v%d, v%d, v%d" % (R, C, R)])
    for j in range(16): b("v_fma_f32 v%d, v%d, v%d, -v%d" % (Pm + j, Pm + j, C, R + j // 8))
    for j in range(16): b("v_exp_f32 v%d, v%d" % (Pm + j, Pm + j))
    for g in range(2):
        b("v_add_f32 v%d, v%d, v%d" % (R + g, Pm + 8 * g, Pm + 8 * g + 1)); b("v_add_f32 v%d, v%d, v%d" % (R + 2 + g, Pm + 8 * g + 2, Pm + 8 * g + 3))
    for k in (4, 6):
        for g in range(2):
            b("v_add_f32 v%d, v%d, v%d" % (R + g, R + g, Pm + 8 * g + k)); b("v_add_f32 v%d, v%d, v%d" % (R + 2 + g, R + 2 + g, Pm + 8 * g + k + 1))
    for g in range(2): b("v_add_f32 v%d, v%d, v%d" % (R + g, R + g, R + 2 + g))
    allred("v_add_f32", ["v_rcp_f32 v%d, v%d" % (R, R)] + (["v_mul_f32 v%d, v%d, v%d" % (R, R, A_R + u)] if scale_r else []))
    for j in range(16): b("v_mul_f32 v%d, v%d, v%d" % (Pm + j, Pm + j, R + j // 8))
    for j in range(8): b("v_cvt_pk_bf16_f32 v%d, v%d, v%d" % (dst + j, Pm + 2 * j, Pm + 2 * j + 1))
    return B
def zipper(x, y):
    out = []
    for i in range(max(len(x), len(y))):
        if i < len(x): out.append(x[i])
        if i < len(y): out.append(y[i])
    return out
def mprio(B):
    out = []; hi = False
    for it in B:
        m_ = isinstance(it, I) and it.t.startswith("v_mfma")
        if m_ and not hi: out.append(I("s_setprio 3")); hi = True
        if hi and not m_: out.append(I("s_setprio 0")); hi = False
        out.append(it)
    return out

def attn_setup(ty):
    P = []; b = lambda t, tag=None: P.append(I(t, tag))
    t0, t1, t2, t3, u0 = range(100, 105)
    hk, hq = sT2, sT3
    nr = 32 if CFG["map"] == 84 else 64
    b("s_lshl_b32 s%d, s%d, 6" % (sT0, sXR)); b("s_mul_i32 s%d, s%d, %d" % (sT1, sW1, nr)); b("s_add_u32 s%d, s%d, s%d" % (sT0, sT0, sT1))
    b("v_add_u32 v%d, s%d, v1" % (A_TCH + 2, sT0)); b("v_mul_u32_u24 v%d, 3072, v%d" % (A_TCH + 3, A_TCH + 2)); b("v_mul_u32_u24 v%d, 3584, v%d" % (A_TCH + 2, A_TCH + 2))
    if nr == 32: b("s_mov_b32 exec_hi, 0")
    if ty == 0:
        for o_ in (0, 1024): b("buffer_load_dword v%d, v%d, %s, s%d offen offset:%d" % (A_POLL + 1, A_TCH + 3, srd(SQKV), sKC, o_))
    else:
        b("s_lshl_b32 s%d, s%d, 7" % (sT0, sGR)); b("buffer_load_dword v%d, v%d, %s, s%d offen" % (A_POLL + 1, A_TCH + 3, srd(SQKV), sT0))
    b("s_mov_b64 exec, -1")
    b("s_lshl_b32 s%d, s%d, 2" % (hq, sGR)); b("s_add_u32 s%d, s%d, s%d" % (hq, hq, sW1))
    b("s_add_u32 s%d, s%d, %d" % (hk, hq, 2 * ty))
    b("v_lshrrev_b32 v%d, 5, v1" % t3); b("v_and_b32 v%d, 15, v1" % t1); b("v_lshrrev_b32 v%d, 4, v1" % t0)
    b("v_lshlrev_b32 v%d, 7, v%d" % (t2, t3)); b("v_lshl_add_u32 v%d, v%d, 1, v%d" % (t2, t1, t2))
    b("s_lshl_b32 s%d, s%d, 9" % (sT0, hq))
    for hh in range(1 + ty):
        for j in range(8):
            b("buffer_load_ushort v%d, v%d, %s, s%d offen offset:%d" % (A_RAW + 8 * hh + j, t2, srd(SPHI), sT0, 1024 * hh + 32 * ((j & 3) + 8 * (j >> 2))), "wphi")
    b("v_mov_b32 v%d, 0" % A_ZERO); b("v_mov_b32 v34, 0")
    b("v_mov_b32 v%d, 1" % A_ONE); b("v_mov_b32 v%d, %d" % (A_FL, FL))
    if ty == 0:
        b("v_lshlrev_b32 v%d, 7, v1" % u0)
        b("s_add_u32 s%d, s2, s%d" % (sT0, sW1)); b("s_cmp_lg_u32 s%d, 0" % sT0); b("s_cbranch_scc1 L_noinit")
        raw(P, sum([[I("s_movk_i32 s%d, 0x%x" % (sT0, 0x2000 * k)), I("buffer_store_dword v%d, v%d, %s, s%d offen sc1" % (A_ZERO, u0, srd(SWS), sT0))] for k in range(3)], []))
        P.append(L("L_noinit:"))
    b("v_and_b32 v%d, 1, v%d" % (t2, t0)); b("v_mul_u32_u24 v%d, 0x8000, v%d" % (t2, t2)); b("v_lshl_or_b32 v%d, v%d, 16, v%d" % (A_SGN, t2, t2))
    b("s_lshl_b32 s%d, s%d, 10" % (sT0, sI)); b("v_lshlrev_b32 v%d, 9, v1" % A_CM); b("v_add_u32 v%d, s%d, v%d" % (A_CM, sT0, A_CM))
    b("v_lshl_add_u32 v%d, v1, 2, v%d" % (A_FV, A_FL))
    for k in range(8): b("ds_write_b32 v%d, v%d offset:%d" % (A_FV, A_ZERO, 256 * k))
    b("s_lshl_b32 s%d, s%d, 8" % (sT0, hk)); b("s_add_u32 s%d, s%d, 0x4000" % (sT0, sT0)); b("v_mov_b32 v%d, s%d" % (A_CK, sT0))
    b("s_lshl_b32 s%d, s%d, 8" % (sT0, hq)); b("s_add_u32 s%d, s%d, 0x4000" % (sCC, sT0))
    b("s_lshl_b32 s%d, s%d, 11" % (sT0, sW1)); b("s_add_u32 s%d, s%d, %d" % (sT0, sT0, EX))
    b("v_lshlrev_b32 v%d, 4, v1" % u0); b("v_add_u32 v%d, s%d, v%d" % (A_RK, sT0, u0))
    b("v_and_b32 v%d, 1, v1" % t2); b("v_lshlrev_b32 v%d, 9, v%d" % (A_RV, t2)); b("v_lshl_add_u32 v%d, v%d, 7, v%d" % (A_RV, t0, A_RV))
    b("v_bfe_u32 v%d, v1, 2, 2" % t2); b("v_lshl_add_u32 v%d, v%d, 4, v%d" % (A_RV, t2, A_RV))
    b("v_bfe_u32 v%d, v1, 1, 1" % t2); b("v_lshl_add_u32 v%d, v%d, 3, v%d" % (A_RV, t2, A_RV)); b("v_add_u32 v%d, s%d, v%d" % (A_RV, sT0, A_RV))
    b("s_lshl_b32 s%d, s%d, 4" % (sT0, hk)); b("s_add_u32 s%d, s%d, s%d" % (sT0, sT0, sI))
    b("s_lshl_b32 s%d, s%d, 10" % (sT1, sT0)); b("s_add_u32 s%d, s%d, %d" % (sT1, sT1, WS_KV)); b("v_add_u32 v%d, s%d, v%d" % (A_ST, sT1, u0))
    b("s_lshl_b32 s%d, s%d, 7" % (sT1, sT0)); b("s_add_u32 s%d, s%d, %d" % (sT1, sT1, WS_Z))
    b("v_lshlrev_b32 v%d, 6, v%d" % (A_ZA, t1)); b("v_lshl_add_u32 v%d, v%d, 4, v%d" % (A_ZA, t0, A_ZA)); b("v_add_u32 v%d, s%d, v%d" % (A_ZA, sT1, A_ZA))
    if ty == 1:
        b("s_lshl_b32 s%d, s%d, 14" % (sT1, hq)); b("s_add_u32 s%d, s%d, %d" % (sT1, sT1, WS_KV)); b("v_add_u32 v%d, s%d, v%d" % (A_PL, sT1, u0))
        b("s_lshl_b32 s%d, s%d, 11" % (sT1, hq)); b("s_add_u32 s%d, s%d, %d" % (sT1, sT1, WS_Z))
        b("v_lshlrev_b32 v%d, 7, v%d" % (A_ZL, t1)); b("v_lshl_add_u32 v%d, v%d, 4, v%d" % (A_ZL, t0, A_ZL)); b("v_add_u32 v%d, s%d, v%d" % (A_ZL, sT1, A_ZL))
        b("s_mul_i32 s%d, s%d, 576" % (sT1, sI)); b("s_add_u32 s%d, s%d, s%d" % (sT1, sT1, hq)); b("s_add_u32 s%d, s%d, 112" % (sT1, sT1))
        b("s_lshl_b32 s%d, s%d, 10" % (sT1, sT1)); b("s_add_u32 s%d, s%d, %d" % (sT1, sT1, WS_HO)); b("v_add_u32 v%d, s%d, v%d" % (A_OS, sT1, u0))
        ident(b, A_ID, t1)
    return P

def attn_wave(ty):
    P = [M(("x", 1))] + attn_setup(ty); a = lambda t, tag=None: P.append(I(t, tag))
    stamp = lambda k: stamp_to(P, k, 34)
    def signal(vaddr, off): one_lane(P, "buffer_atomic_add v%d, v%d, %s, 0 offen offset:%d sc1" % (A_ONE, vaddr, srd(SWS), off))
    def after1():
        if ty == 0:
            only(P, ["s_add_u32 s%d, s2, s%d" % (sT0, sW1), "s_cmp_lg_u32 s%d, 0" % sT0],
                 [I("buffer_store_dword v%d, v%d, %s, 0 offen sc1" % (A_ONE, A_ZERO, srd(SDBG)))])
    P.append(W(lg="all"))
    xstages(P, {1: after1})
    a("s_barrier")
    P.append(W(vm=["wphi"]))
    for hh in range(1 + ty):
        for j in range(4): a("v_lshl_or_b32 v%d, v%d, 16, v%d" % (A_WP + 4 * hh + j, A_RAW + 8 * hh + 2 * j + 1, A_RAW + 8 * hh + 2 * j))
        for j in range(4): a("v_xor_b32 v%d, v%d, v%d" % (A_WP + 4 * hh + j, A_WP + 4 * hh + j, A_SGN))
    WK = A_WP + 4 * ty
    T = A_T
    a("v_and_b32 v%d, 31, v1" % T); a("v_lshlrev_b32 v%d, 2, v%d" % (T, T)); a("v_add_u32 v%d, %d, v%d" % (T, LRS, T))
    a("v_lshrrev_b32 v%d, 4, v1" % (T + 1)); a("v_lshlrev_b32 v%d, 4, v%d" % (T + 1, T + 1)); a("v_add_u32 v%d, %d, v%d" % (T + 1, LSD, T + 1))
    count_wait(P, A_FL, A_FV, F_EX, 4)
    stamp(11)
    for u in range(4): a("ds_read_b32 v%d, v%d offset:%d" % (A_R + u, T, u * 128))
    for u in range(4): a("ds_read_b128 %s, v%d offset:%d" % (v(A_SD + 4 * u, 4), T + 1, u * 64))
    for u in range(4): a("ds_read_b128 %s, v%d offset:%d" % (v(A_KF + 4 * u, 4), A_RK, u * 8192))
    P.append(W(lg="all"))
    for u in range(4): a("v_mul_f32 v%d, s%d, v%d" % (A_R + 4 + u, sL2E, A_R + u))
    PM = (T, T + 16); RR = (T + 32, T + 36)
    def qpair(hh, pr):
        return mprio(zipper(softmax_unit(A_WP + 4 * hh, A_KF + 8 * pr, 2 * pr, A_PQ + 32 * hh + 16 * pr, PM[0], RR[0], False),
                            softmax_unit(A_WP + 4 * hh, A_KF + 8 * pr + 4, 2 * pr + 1, A_PQ + 32 * hh + 16 * pr + 8, PM[1], RR[1], False)))
    KO = 4096 * ty
    if ty == 1:
        P += qpair(0, 0) + qpair(0, 1)
        count_wait(P, A_FL, A_FV, F_EX + 4, 4)
        stamp(18)
        for u in range(4): a("ds_read_b128 %s, v%d offset:%d" % (v(A_KF + 4 * u, 4), A_RK, u * 8192 + KO))
        P.append(W(lg="all"))
    B = []; b = lambda t, tag=None: B.append(I(t, tag))
    def tail(u):
        X = []; x = lambda t, tag=None: X.append(I(t, tag))
        PHI = A_PHI + 8 * (u & 1); FR = A_PHI + 16 + 12 * (u & 1); so = (u & 1) * 16384 + KO
        for sg in range(2): x("ds_write_b128 v%d, %s offset:%d" % (A_RK, v(PHI + 4 * sg, 4), so + sg * 8192))
        for q in range(2): x("ds_read_b64_tr_b16 %s, v%d offset:%d" % (v(FR + 2 * q, 2), A_RV, u * 8192 + KO + 1024 + q * 64), ("pr", u))
        for sg in range(2):
            for q in range(2): x("ds_read_b64_tr_b16 %s, v%d offset:%d" % (v(FR + 4 + 4 * sg + 2 * q, 2), A_RV, so + sg * 8192 + q * 64), ("pr", u))
        return X
    def kvm(us):
        X = [W(lg=[("pr", us[-1])])]
        for u in us:
            FR = A_PHI + 16 + 12 * (u & 1)
            for sg in range(2):
                c = v(A_ACC + 4 * sg, 4); z = v(A_ACC + 8 + 4 * sg, 4)
                X.append(I("v_mfma_f32_16x16x32_bf16 %s, %s, %s, %s" % (c, v(FR + 4 + 4 * sg, 4), v(FR, 4), "0" if u == 0 else c)))
                X.append(I("v_mfma_f32_16x16x32_bf16 %s, %s, %s, %s" % (z, v(FR + 4 + 4 * sg, 4), v(A_SD + 4 * u, 4), "0" if u == 0 else z)))
        return X
    for pr in range(2):
        z = zipper(softmax_unit(WK, A_KF + 8 * pr, 2 * pr, A_PHI, PM[0], RR[0], True), softmax_unit(WK, A_KF + 8 * pr + 4, 2 * pr + 1, A_PHI + 8, PM[1], RR[1], True))
        t0_, t1_ = tail(2 * pr), tail(2 * pr + 1)
        if pr == 0: B += z + t0_[:2] + t1_[:2]; late = t0_[2:] + t1_[2:]
        else: B += z[:70] + late + z[70:120] + kvm((0, 1)) + z[120:] + t0_[:2] + t1_[:2] + t0_[2:] + t1_[2:]
    b("v_and_b32 v%d, 15, v1" % T); b("v_cmp_eq_u32 vcc, 1, v%d" % T)
    if ty == 1:
        for u in range(4): b("ds_read_b128 %s, v%d offset:%d" % (v(A_KF + 4 * u, 4), A_RK, u * 8192 + 1024), "qf")
    one_lane(B, "ds_add_u32 v%d, v%d offset:%d" % (A_FL, A_ONE, F_EXF))
    B += kvm((2, 3))
    for j in range(4): b("v_cvt_pk_bf16_f32 v%d, v%d, v%d" % (A_ACC + j, A_ACC + 2 * j, A_ACC + 2 * j + 1))
    for j in range(4): b("v_cndmask_b32 v%d, v%d, v%d, vcc" % (A_ACC + 8 + j, A_ACC + 8 + j, A_ACC + 12 + j))
    b("buffer_store_dwordx4 %s, v%d, %s, 0 offen sc1" % (v(A_ACC, 4), A_ST, srd(SWS)), "part")
    b("s_mov_b32 exec_lo, 0x00030003"); b("s_mov_b32 exec_hi, 0x00030003")
    b("buffer_store_dwordx4 %s, v%d, %s, 0 offen sc1" % (v(A_ACC + 8, 4), A_ZA, srd(SWS)), "part"); b("s_mov_b64 exec, -1")
    P += mprio(B)
    stamp(12)
    def publish_k():
        a("ds_read_b32 v%d, v%d offset:%d" % (A_POLL, A_FL, F_INIT), "init"); gate(P, A_ZERO, SDBG, 0, "init", A_POLL, 1)
        P.append(W(vm=["part"])); signal(A_CK, 0)
        stamp(13)
    if ty == 0: publish_k()
    else:
        P.append(W(lg=["qf"]))
        z = qpair(1, 0); P += z[:CFG["kpub"]]; publish_k(); P += z[CFG["kpub"]:]
        z = qpair(1, 1); P += z[:120]
        for hh in range(2): a(sload(SWS, sCC, 512 * hh, sG + hh))
        P += z[120:]
        Z = (A_ACC, A_ACC + 8); KVA = (A_WP, A_R)
        free0 = list(range(A_LD, A_LD + 64, 4))
        free1 = list(range(A_LD, A_LD + 64, 4))
        def loads(hh, dst):
            sgate(P, sCC, 512 * hh, sG + hh, 16)
            a("s_movk_i32 s%d, %d" % (sT4, 4096 * hh))
            a("buffer_load_dwordx4 %s, v%d, %s, s%d offen sc1" % (v(Z[hh], 4), A_ZL, srd(SWS), sT4), ("zl", hh))
            a("buffer_load_dwordx4 %s, v%d, %s, s%d offen offset:64 sc1" % (v(Z[hh] + 4, 4), A_ZL, srd(SWS), sT4), ("zl", hh))
            for m in range(16):
                if m % 4 == 0:
                    a("s_add_u32 s%d, s%d, %d" % (sT5, sI, m // 4)); a("s_and_b32 s%d, s%d, 3" % (sT5, sT5)); a("s_lshl_b32 s%d, s%d, 12" % (sT5, sT5))
                    if hh: a("s_add_u32 s%d, s%d, 32768" % (sT5, sT5))
                if CFG["awin"] >= 0: a("s_waitcnt vmcnt(%d)" % CFG["awin"])
                a("buffer_load_dwordx4 %s, v%d, %s, s%d offen offset:%d sc1" % (v(dst[m], 4), A_PL, srd(SWS), sT5, (m & 3) * 1024), ("pl", hh, m))
        S = A_KF + 8
        def reduce_(hh, src):
            B = []; b = lambda t, tag=None: B.append(I(t, tag))
            for m in range(16):
                if m % 4 == 0: B.append(W(vm=[("pl", hh, m + 3)]))
                for sg in range(2):
                    c = v(S + 4 * sg, 4)
                    b("v_mfma_f32_4x4x4_16b_bf16 %s, %s, %s, %s" % (c, v(A_ID, 2), v(src[m] + 2 * sg, 2), "0" if m == 0 else c))
            P.extend(mprio(B + [I("s_nop 0")]))
        def finish(hh):
            B = []; b = lambda t, tag=None: B.append(I(t, tag))
            for k in (8, 4, 2, 1):
                for j in range(8): b("v_add_f32_dpp v%d, v%d, v%d row_ror:%d row_mask:0xf bank_mask:0xf" % (Z[hh] + j, Z[hh] + j, Z[hh] + j, k))
            KV = KVA[hh]; PQ = A_PQ + 32 * hh
            for sg in range(2):
                for j in range(2): b("v_cvt_pk_bf16_f32 v%d, v%d, v%d" % (KV + 4 * sg + 2 + j, Z[hh] + 4 * sg + 2 * j, Z[hh] + 4 * sg + 2 * j + 1))
            for sg in range(2):
                for j in range(2): b("v_cvt_pk_bf16_f32 v%d, v%d, v%d" % (KV + 4 * sg + j, S + 4 * sg + 2 * j, S + 4 * sg + 2 * j + 1))
            for w in ("16", "32"):
                for sg in range(2):
                    for j in range(2): b("v_permlane%s_swap_b32 v%d, v%d" % (w, KV + 4 * sg + j, KV + 4 * sg + 2 + j))
            for pr in range(2):
                for u in (2 * pr, 2 * pr + 1):
                    N = v(T + 16 * (u & 1), 16)
                    b("v_mfma_f32_32x32x16_bf16 %s, %s, %s, 0" % (N, v(KV, 4), v(PQ + 8 * u, 4)))
                    b("v_mfma_f32_32x32x16_bf16 %s, %s, %s, %s" % (N, v(KV + 4, 4), v(PQ + 8 * u + 4, 4), N))
                for u in range(2): b("v_add_f32 v%d, 0x358637bd, v%d" % (T + 16 * u + 8, T + 16 * u + 8))
                for u in range(2): b("v_rcp_f32 v%d, v%d" % (T + 16 * u + 8, T + 16 * u + 8))
                for u in (2 * pr, 2 * pr + 1):
                    N = T + 16 * (u & 1); O = PQ + 8 * u
                    for j in range(8): b("v_mul_f32 v%d, v%d, v%d" % (N + j, N + j, N + 8))
                    for j in range(4): b("v_cvt_pk_bf16_f32 v%d, v%d, v%d" % (O + j, N + 2 * j, N + 2 * j + 1))
                    b("s_mov_b32 s%d, %d" % (sT5, u * 147456))
                    b("buffer_store_dwordx4 %s, v%d, %s, s%d offen offset:%d sc1" % (v(O, 4), A_OS, srd(SWS), sT5, 2048 * hh), "ost")
            P.extend(mprio(B))
        stamp(14)
        loads(0, free0)
        stamp(15)
        reduce_(0, free0); loads(1, free1); finish(0); reduce_(1, free1); finish(1)
        stamp(16)
        P.append(W(vm=["ost"]))
        a("s_mov_b64 exec, 3"); a("buffer_atomic_add v%d, v%d, %s, 0 offen offset:%d sc1" % (A_ONE, A_CM, srd(SWS), C_O * 128)); a("s_mov_b64 exec, -1")
        stamp(17)
    if CFG["stamps"]:
        a("s_lshl_b32 s%d, s2, 8" % sT0); a("s_add_u32 s%d, s%d, %d" % (sT0, sT0, WS_ST + 0x30000))
        a("v_lshlrev_b32 v64, 2, v1")
        a("s_cmp_lg_u32 s%d, %d" % (sW1, CFG["stampw"] & 1)); a("s_cbranch_scc1 L_exit")
        a("buffer_store_dword v34, v64, %s, s%d offen" % (srd(SWS), sT0))
    a("s_endpgm")
    return P

def main():
    hdr = open("cdna_kernels/%s.s.ref" % NAME).read().split("; Override launch geometry")[0]
    out = [hdr.rstrip(), "; @launch grid=(256,1,1) block=(512,1,1) lds=163840",
           '.amdgcn_target "amdgcn-amd-amdhsa--gfx950"', ".text", ".globl %s_kernel" % NAME, ".p2align 8",
           ".type %s_kernel,@function" % NAME, "%s_kernel:" % NAME]
    t, st = finalize(prologue()); out += t
    for nm, fn in (("attn", attn_wave), ("dma", dma_wave), ("comp", compute)):
        out.append("L_%s:" % nm)
        out += finalize([I("s_cmp_eq_u32 s%d, 1" % sTY), I("s_cbranch_scc1 L_%s1" % nm)] + fn(0), st.clone())[0]
        out.append("L_%s1:" % nm); out += finalize(fn(1), st.clone())[0]
    out += centre_sub() + STUBS
    out += lds_spin("c", 18, C_FV, CFG["cnap"]) + lds_spin("d", D_LA, D_DV, CFG["dnap"])
    out += ["L_exit:", "    s_endpgm", ".p2align 7", "L_tab:"] + ["    .long %d" % k for k in range(64)]
    out += ['.section .rodata,"a"', ".p2align 6", ".amdhsa_kernel %s_kernel" % NAME,
            "  .amdhsa_next_free_vgpr 256", "  .amdhsa_next_free_sgpr 100", "  .amdhsa_accum_offset 256",
            "  .amdhsa_group_segment_fixed_size 0", "  .amdhsa_kernarg_size 88", "  .amdhsa_user_sgpr_count 2",
            "  .amdhsa_user_sgpr_kernarg_segment_ptr 1", "  .amdhsa_system_sgpr_workgroup_id_x 1", ".end_amdhsa_kernel"]
    open(sys.argv[1], "w").write("\n".join(out) + "\n")
main()
```

```python
import sys, os, json
sys.path.insert(0, os.path.dirname(os.path.abspath(__file__)))
from asmir import I, W, L, M, v, s, finalize, State

NAME = "recurrent_scan__linear_kernel_hedgehog__glu_gated_bilinear__prompt"
CFG = dict(stamps=0, probe=0, probeat=-1, xprobe=0, outfl="", stampw=0, zoom=0, LA=6, LAF=5, erate=3, codepf=1, sleep=4, cnap=1, dnap=2, map=84, latin=1, kvfirst=1, l2nap=16, qpre=1, qpost=1, ftouch=0, fakeA=0, fakeP=0, dstep=1, fake16=0, lead=0, spoll=1, leadoff=0, who=[0, 2, 0, 2, 1, 3, 0, 2, 1], kpub=100, dry=0, aonly=0, map2=84, h2now=1, chk2=0,
           cap1=128, capt=160, cap2=128, capsw=20, awin=-1, pollat=2, hwait1=16, hwait2=0, nb0=56, nb1=56, ahead2=4,
           bfirst=2, p2chk=1,
           rsat=56, exw0=[8], exw1=[9, 13], afirst={},
           tplan0={"7": "d0", "14": "d1 o x"}, tplan1={"10": "d0 x", "13": "d1 o"})
for a_ in sys.argv[2:]:
    k_, x_ = a_.split("="); assert k_ in CFG, k_; CFG[k_] = json.loads(x_)

WS_RS = 0x8000
WS_KV = 0x10000
WS_Z = 0x120000
WS_KVF = 0x130000; WS_ZF = 0x138000
WS_ST = 0x140000
WS_HO = 0x200000
WS_BYTES = WS_HO + 64 * 144 * 1024
C_H1A, C_H1B, C_H2, C_O = 0, 1, 2, 3
SLOT = 16384; STG = 32768; EX = 131072; FL = SLOT; LRS = FL + 2048; LSD = LRS + 512; F_INIT = 1792; LR2 = FL + 3072; LX = FL + 4096
F_LAND, F_DONE = 256, 768
F_EX, F_H, F_EXF, F_END = 32, 44, 52, 56
SX, SQKV, SPHI, SWO, SG, SU, SWD, SOUT, SDBG, SWS = 8, 12, 16, 20, 24, 28, 32, 36, 40, 44
sW, sW1, sI, sGR, sTY, sR1, sXR, sTT, sCT, sR2 = range(56, 66)
sT0, sT1, sT2, sT3, sT4, sT5 = range(66, 72)
sL2E = 72; sKC = 73; sSH = 74; sXL = 75; sKS = 76; sLA = 78; sXB = 79
sSPIN = 80; sRET = 82; sPH = 84; sTB = 88; sTM = 90; sMK = 94; sLM = 48; sLD = 49; sG = 50; sCC = 54; sPV = 55
srd = lambda b: s(b, 4)
LOG2E = 0x3fb8aa3b
XR = 128; ACC = 64; WF = 32
L_T, L_SEL, L_ID, L_SM, L_CM, L_SQ = 192, 224, 228, 232, 236, 240
L_XO, L_RR, L_C, L_SB, L_C7, L_WA, L_VA, L_VB = 124, 245, 246, 247, 248, 249, 251, 252
L_TR = 244
K_SQ, K_DL, K_RA = 16, 20, 24
H_STAMP = 255; H_STAMP2 = 254
_lbl = [0]
def newlbl():
    _lbl[0] += 1; return _lbl[0]
STUBS = []

PH = {0: [("P2", "kv", (0, 1)), ("P4", "gu", (2, 3, 0, 1)), ("P4", "gu", (0, 1, 2, 3))],
      1: [("P2", "q", (0, 1)), ("P2", "kv", (2, 3)), ("P4", "gu", (0, 1, 2, 3)), ("P2", "gu", (0, 1))]}
if CFG["kvfirst"]: PH[1][0:2] = [("P2", "kv", (0, 1)), ("P2", "q", (2, 3))]
def slabs_of(ty):
    return [(pi, k, sg) for pi, (k, e, _) in enumerate(PH[ty]) for sg in range(8 if k == "P4" else 4)]
def slot_of(n):
    return (0, 2, 3, 4, 5, 6, 7)[n % 7] if n < 20 else (8, 9, 7, 0, 2, 3, 4, 5, 6)[(n - 20) % 9]
def prev_user(n):
    p = [m for m in range(n) if slot_of(m) == slot_of(n)]
    return p[-1] if p else -1
def marked(n): return n < 20 or n % CFG["dstep"] == CFG["dstep"] - 1
def checks(ty):
    c = {0: 0, 1: 1}
    for n in range(2, CFG["nb%d" % ty], 2):
        if (CFG["chk2"] if n < 20 else CFG["p2chk"] == 2): c[n] = n + 1
        else: c[n] = n; c[n + 1] = n + 1
    return c

def stamp_to(P, k, reg=H_STAMP):
    if CFG["stamps"]:
        P.append(I("s_memtime %s" % s(sTM + 2, 2))); P.append(W(lg="all"))
        P.append(I("s_sub_u32 s%d, s%d, s%d" % (sTM + 2, sTM + 2, sTM))); P.append(I("v_writelane_b32 v%d, s%d, %d" % (reg, sTM + 2, k)))
def rstamp(P, k):
    if CFG["stamps"]:
        P.append(I("s_memrealtime s[6:7]")); stamp_to(P, k, H_STAMP2)
        P.append(I("s_sub_u32 s6, s6, s4")); P.append(I("v_writelane_b32 v%d, s6, %d" % (H_STAMP2, k + 1)))
def raw(P, items):
    for x in finalize(items)[0]: P.append(L(x))
def only(P, cond, items):
    n = newlbl()
    for t in cond: P.append(I(t))
    P.append(I("s_cbranch_scc1 L_sk%d" % n)); raw(P, items); P.append(L("L_sk%d:" % n))
def one_lane(X, t, tag=None):
    X.append(I("s_mov_b64 exec, 1")); X.append(I(t, tag)); X.append(I("s_mov_b64 exec, -1"))

def p4_voffs(a, va, vb, stride, t):
    a("v_lshrrev_b32 v%d, 3, v1" % t)
    a("v_and_b32 v%d, 2, v%d" % (t + 1, t)); a("v_lshlrev_b32 v%d, 1, v%d" % (t + 1, t + 1))
    a("v_and_b32 v%d, 7, v1" % (t + 2)); a("v_xor_b32 v%d, v%d, v%d" % (t + 2, t + 2, t + 1))
    a("v_mul_u32_u24 v%d, %d, v%d" % (t, stride, t))
    a("v_lshl_add_u32 v%d, v%d, 4, v%d" % (va, t + 2, t))
    a("v_xor_b32 v%d, 32, v%d" % (vb, va))
def p2_voffs(a, va, vb, stride, t):
    a("v_lshrrev_b32 v%d, 2, v1" % t)
    a("v_and_b32 v%d, 3, v1" % (t + 2))
    a("v_mul_u32_u24 v%d, %d, v%d" % (t, stride, t))
    a("v_lshl_add_u32 v%d, v%d, 4, v%d" % (va, t + 2, t))
    a("v_xor_b32 v%d, 32, v%d" % (vb, va))
def ident(a, dst, t):
    a("v_and_b32 v%d, 3, v1" % t)
    a("v_and_b32 v%d, 1, v1" % (t + 1)); a("v_lshlrev_b32 v%d, 4, v%d" % (t + 1, t + 1)); a("v_mov_b32 v%d, 0x3f80" % (t + 2))
    a("v_lshlrev_b32 v%d, v%d, v%d" % (t + 1, t + 1, t + 2))
    a("v_cmp_gt_u32 vcc, 2, v%d" % t)
    a("v_cndmask_b32 v%d, 0, v%d, vcc" % (dst, t + 1)); a("v_sub_u32 v%d, v%d, v%d" % (dst + 1, t + 1, dst))

X_V = 48
def prologue():
    P = []; a = lambda t, tag=None: P.append(I(t, tag))
    a("s_cmp_ge_u32 s2, 256")
    a("s_cbranch_scc1 L_exit")
    a("s_load_dwordx2 %s, s[0:1], 0" % s(SX, 2)); a("s_load_dwordx2 %s, s[0:1], 8" % s(SQKV, 2))
    if CFG["probe"]: a("s_memrealtime s[4:5]")
    if CFG["stamps"]:
        a("s_memtime %s" % s(sTM, 2)); a("s_memrealtime s[4:5]")
    a("s_lshr_b32 s%d, s2, 3" % sSH)
    a("s_getpc_b64 %s" % s(sTB, 2)); P.append(L("L_pc:"))
    if CFG["codepf"]:
        a("s_mul_i32 s%d, s%d, 24" % (sT0, sSH))
        a("v_add_u32 v3, s%d, v0" % sT0); a("v_lshlrev_b32 v3, 7, v3"); a("v_min_u32 v3, L_tab-L_pc+252, v3")
        a("v_cmp_gt_u32 vcc, 24, v0"); a("s_and_saveexec_b64 s[48:49], vcc"); a("s_cbranch_execz L_nopf")
        P.append(L("    global_load_dword v%d, v3, %s" % (X_V + 5, s(sTB, 2))))
        P.append(L("L_nopf:")); a("s_mov_b64 exec, -1")
    a("v_lshrrev_b32 v2, 6, v0")
    a("v_and_b32 v1, 63, v0")
    a("v_readfirstlane_b32 s%d, v2" % sW)
    a("s_and_b32 s%d, s2, 7" % sT5)
    a("s_lshr_b32 s%d, s%d, 4" % (sTY, sSH))
    if CFG["map"] == 48:
        a("s_and_b32 s%d, s%d, 3" % (sT3, sSH)); a("s_lshl_b32 s%d, s%d, 1" % (sXR, sT3))
        a("s_lshr_b32 s%d, s%d, 1" % (sT2, sT5)); a("s_lshl_b32 s%d, s%d, 2" % (sT2, sT2)); a("s_add_u32 s%d, s%d, s%d" % (sI, sT2, sT3))
        a("s_lshr_b32 s%d, s%d, 2" % (sR1, sSH))
        a("s_and_b32 s%d, s%d, 1" % (sT2, sT5)); a("s_lshl_b32 s%d, s%d, 2" % (sT2, sT2)); a("s_and_b32 s%d, s%d, 3" % (sT3, sR1)); a("s_add_u32 s%d, s%d, s%d" % (sGR, sT2, sT3))
    else:
        a("s_and_b32 s%d, s%d, 7" % (sXR, sSH))
        a("s_lshr_b32 s%d, s%d, 2" % (sT2, sT5)); a("s_lshl_b32 s%d, s%d, 3" % (sT2, sT2)); a("s_add_u32 s%d, s%d, s%d" % (sI, sT2, sXR))
        a("s_lshr_b32 s%d, s%d, 3" % (sT3, sSH)); a("s_lshl_b32 s%d, s%d, 1" % (sR1, sT3))
        a("s_and_b32 s%d, s%d, 3" % (sT2, sT5)); a("s_lshl_b32 s%d, s%d, 1" % (sT2, sT2)); a("s_and_b32 s%d, s%d, 1" % (sT3, sT3)); a("s_add_u32 s%d, s%d, s%d" % (sGR, sT2, sT3))
    if CFG["latin"]: a("s_add_u32 s%d, s%d, s%d" % (sR1, sR1, sXR)); a("s_and_b32 s%d, s%d, 7" % (sR1, sR1))
    a("s_mov_b32 s%d, 2097152" % (SX + 2)); a("s_mov_b32 s%d, 0x20000" % (SX + 3))
    X = []; x = lambda t, tag=None: X.append(I(t, tag))
    x("v_lshrrev_b32 v4, 3, v1"); x("v_lshrrev_b32 v5, 4, v1"); x("v_and_b32 v6, 7, v1"); x("v_xor_b32 v5, v5, v6")
    x("v_lshlrev_b32 v4, 10, v4"); x("v_lshl_add_u32 v%d, v5, 4, v4" % X_V)
    x("v_xor_b32 v4, 64, v%d" % X_V)
    x("v_add_u32 v%d, 7168, v4" % (X_V + 1)); x("v_add_u32 v%d, 14336, v%d" % (X_V + 2, X_V)); x("v_add_u32 v%d, 21504, v4" % (X_V + 3))
    x("s_and_b32 s%d, s%d, 3" % (sT0, sW)); x("s_lshl_b32 s%d, s%d, 12" % (sXL, sT0)); x("s_add_u32 s%d, s%d, %d" % (sXL, sXL, STG))
    x("s_lshl_b32 s%d, s%d, 15" % (sT0, sT0)); x("s_lshl_b32 s%d, s%d, 17" % (sXB, sI)); x("s_add_u32 s%d, s%d, s%d" % (sXB, sXB, sT0))
    x("s_cmp_lt_u32 s%d, 4" % sW); x("s_cbranch_scc1 L_nox")
    x("s_waitcnt lgkmcnt(0)")
    xline(x, 0); xline(x, 1)
    raw(P, X); P.append(L("L_nox:"))
    if CFG["stamps"]:
        a("v_mov_b32 v%d, 0" % H_STAMP); a("v_mov_b32 v%d, 0" % H_STAMP2); P.append(W(lg="all"))
    stamp_to(P, 0, H_STAMP2)
    for b, off in ((SPHI, 16), (SWS, 80), (SG, 40), (SU, 48), (SWO, 24), (SWD, 56), (SOUT, 64), (SDBG, 72)):
        a("s_load_dwordx2 %s, s[0:1], %d" % (s(b, 2), off))
    for b, n in ((SQKV, 1572864), (SPHI, 16384), (SWO, 524288), (SG, 1835008), (SU, 1835008), (SWD, 1835008), (SOUT, 2097152), (SDBG, 256), (SWS, WS_BYTES)):
        a("s_mov_b32 s%d, %d" % (b + 2, n)); a("s_mov_b32 s%d, 0x20000" % (b + 3))
    a("s_lshl_b32 s%d, s%d, 7" % (sKC, sGR)); a("s_lshl_b32 s%d, s%d, 6" % (sT0, sTY)); a("s_add_u32 s%d, s%d, s%d" % (sKC, sKC, sT0)); a("s_add_u32 s%d, s%d, 1024" % (sKC, sKC))
    if CFG["map2"] == 48:
        a("s_lshr_b32 s%d, s%d, 2" % (sCT, sSH)); a("s_and_b32 s%d, s%d, 3" % (sT3, sSH))
        a("s_lshl_b32 s%d, s%d, 2" % (sT2, sT5)); a("s_add_u32 s%d, s%d, s%d" % (sTT, sT2, sT3))
        a("s_lshl_b32 s%d, s%d, 1" % (sT3, sT3)); a("s_add_u32 s%d, s%d, s%d" % (sR2, sT3, sCT))
    else:
        a("s_lshr_b32 s%d, s%d, 3" % (sT3, sSH)); a("s_and_b32 s%d, s%d, 1" % (sT2, sT5)); a("s_lshl_b32 s%d, s%d, 2" % (sT2, sT2)); a("s_add_u32 s%d, s%d, s%d" % (sCT, sT2, sT3))
        a("s_and_b32 s%d, s%d, 7" % (sT1, sSH)); a("s_lshr_b32 s%d, s%d, 1" % (sT2, sT5)); a("s_lshl_b32 s%d, s%d, 3" % (sT2, sT2)); a("s_add_u32 s%d, s%d, s%d" % (sTT, sT2, sT1))
        a("s_and_b32 s%d, s%d, 1" % (sT3, sT3)); a("s_lshl_b32 s%d, s%d, 1" % (sT3, sT3)); a("s_add_u32 s%d, s%d, s%d" % (sT3, sT3, sTY))
        if CFG["lead"]: a("s_mov_b32 s%d, s%d" % (sLD, sT3)); a("s_mov_b32 s%d, s%d" % (sR2, sT1))
        else: a("s_lshl_b32 s%d, s%d, 1" % (sT3, sT3)); a("s_add_u32 s%d, s%d, s%d" % (sR2, sT3, sT1))
    a("s_and_b32 s%d, s%d, 1" % (sW1, sW))
    a("s_mov_b32 s%d, 0x%x" % (sL2E, LOG2E))
    a("s_add_u32 s%d, s%d, L_tab-L_pc" % (sTB, sTB)); a("s_addc_u32 s%d, s%d, 0" % (sTB + 1, sTB + 1))
    P.append(W(lg="all"))
    a("s_cmp_lt_u32 s%d, 4" % sW); a("s_cbranch_scc1 L_comp")
    a("s_cmp_lt_u32 s%d, 6" % sW); a("s_cbranch_scc1 L_dma")
    return P

def xline(a, j):
    a("s_add_u32 s%d, s%d, %d" % (sT0, sR1, j)); a("s_and_b32 s%d, s%d, 7" % (sT0, sT0)); a("s_lshl_b32 s%d, s%d, 7" % (sT0, sT0)); a("s_add_u32 s%d, s%d, s%d" % (sT0, sT0, sXB))
    a("s_add_u32 m0, s%d, %d" % (sXL, j * 16384))
    for p in range(4): a("buffer_load_dwordx4 v%d, %s, s%d offen offset:%d lds" % (X_V + p, srd(SX), sT0, p * 1024), ("x", j))
def xstages(P, extra):
    a = lambda t, tag=None: P.append(I(t, tag))
    xline(a, 2); xline(a, 3)
    for j in range(4):
        P.append(W(vm=[("x", 2 * j + 1)]))
        a("s_barrier")
        if j == 0: stamp_to(P, 2, H_STAMP2)
        if j < 2: xline(a, 2 * j + 4); xline(a, 2 * j + 5)
        if j in extra: extra[j]()

def fcols(a, ty):
    if ty == 0:
        a("s_lshl_b32 s%d, s%d, 7" % (sKS, sGR)); a("s_add_u32 s%d, s%d, 64" % (sKS + 1, sKS))
    else:
        a("s_mul_i32 s%d, s%d, 96" % (sT0, sGR)); a("s_add_u32 s%d, s%d, 1024" % (sT0, sT0))
        a("s_and_b32 s%d, s%d, 1" % (sT1, sGR)); a("s_lshl_b32 s%d, s%d, 5" % (sT2, sT1))
        a("s_add_u32 s%d, s%d, s%d" % (sKS, sT0, sT2))
        a("s_xor_b32 s%d, s%d, 1" % (sT1, sT1)); a("s_lshl_b32 s%d, s%d, 6" % (sT1, sT1))
        a("s_add_u32 s%d, s%d, s%d" % (sKS + 1, sT0, sT1))

def clear_low(a, used):
    for k in range(2, 64):
        if k not in used: a("v_mov_b32 v%d, 0" % k)

def lds_spin(nm, va, vd, nap):
    X = ["L_spin_%s:" % nm, "    s_mov_b32 s%d, 0" % sSPIN, "L_spl_%s:" % nm]
    if nap: X.append("    s_sleep %d" % nap)
    X += ["    ds_read_b32 v%d, v%d" % (vd, va), "    s_add_u32 s%d, s%d, 1" % (sSPIN, sSPIN), "    s_waitcnt lgkmcnt(0)",
          "    s_cmp_ge_u32 s%d, 0x1000000" % sSPIN, "    s_cbranch_scc1 L_spr_%s" % nm,
          "    v_cmp_gt_u32 vcc, s%d, v%d" % (sSPIN + 1, vd), "    s_cbranch_vccnz L_spl_%s" % nm, "L_spr_%s:" % nm, "    s_setpc_b64 %s" % s(sRET, 2)]
    return X
def count_wait(P, vfl, vd, off, want):
    n = newlbl()
    P.append(W(lg="all"))
    for t in ["    s_mov_b32 s%d, 0" % sSPIN, "L_cw%d:" % n, "    ds_read_b32 v%d, v%d offset:%d" % (vd, vfl, off), "    s_add_u32 s%d, s%d, 1" % (sSPIN, sSPIN),
              "    s_waitcnt lgkmcnt(0)", "    v_cmp_le_u32 vcc, %d, v%d" % (want, vd), "    s_cbranch_vccnz L_cx%d" % n, "    s_sleep %d" % CFG["dnap"],
              "    s_cmp_lt_u32 s%d, 0x1000000" % sSPIN, "    s_cbranch_scc1 L_cw%d" % n, "L_cx%d:" % n]: P.append(L(t))

def sload(base, soff, off, sdst):
    return "s_load_dword s%d, %s, %s glc" % (sdst, s(base, 2), ("s%d offset:%d" % (soff, off)) if soff is not None else "%d" % off)
def sgate(P, soff, off, sdst, want, base=None):
    n = newlbl()
    P.append(W(lg="all"))
    P.append(I("s_cmp_eq_u32 s%d, %d" % (sdst, want))); P.append(I("s_cbranch_scc1 L_ok%d" % n))
    X = ["    s_mov_b32 s%d, 0" % sSPIN, "L_spin%d:" % n]
    if CFG["sleep"]: X.append("    s_sleep %d" % CFG["sleep"])
    X += ["    " + sload(SWS if base is None else base, soff, off, sdst), "    s_add_u32 s%d, s%d, 1" % (sSPIN, sSPIN),
          "    s_waitcnt lgkmcnt(0)", "    s_cmp_eq_u32 s%d, %d" % (sdst, want), "    s_cbranch_scc1 L_ok%d" % n,
          "    s_cmp_lt_u32 s%d, 0x80000" % sSPIN, "    s_cbranch_scc1 L_spin%d" % n, "L_ok%d:" % n]
    for t in X: P.append(L(t))

def gate(P, vaddr, srdb, off, tag, vdst, want, slow=None):
    n = newlbl()
    P.append(W(lg=[tag]) if tag == "init" else W(vm=[tag]))
    P.append(I("v_cmp_eq_u32 vcc, %d, v%d" % (want, vdst)))
    P.append(I("s_cbranch_vccnz L_ok%d" % n))
    if slow: raw(P, slow)
    X = ["    s_mov_b32 s%d, 0" % sSPIN, "L_spin%d:" % n]
    if CFG["sleep"]: X.append("    s_sleep %d" % CFG["sleep"])
    X += ["    buffer_load_dword v%d, v%d, %s, 0 offen offset:%d sc1" % (vdst, vaddr, srd(srdb), off), "    s_add_u32 s%d, s%d, 1" % (sSPIN, sSPIN),
          "    s_waitcnt vmcnt(0)", "    v_cmp_eq_u32 vcc, %d, v%d" % (want, vdst), "    s_cbranch_vccnz L_ok%d" % n,
          "    s_cmp_lt_u32 s%d, 0x80000" % sSPIN, "    s_cbranch_scc1 L_spin%d" % n, "L_ok%d:" % n]
    for t in X: P.append(L(t))

C_XA = ACC + 16
N_ONES = ACC + 24
N_T, N_CM, N_SQ, N_ID, N_DL, N_TK = ACC + 32, ACC + 48, ACC + 52, ACC + 60, ACC + 62, ACC + 63
C_A2, C_B2, C_OUT, C_RO = 25, 28, 31, 0
C_FV, C_HC, C_FL, C_ONE, C_DV, C_CM = 16, 20, 21, 22, 23, 24
def compute_setup(ty):
    P = []; a = lambda t, tag=None: P.append(I(t, tag))
    t = list(range(32, 48))
    tok, hi, r, c, mat = t[0:5]
    a("v_and_b32 v%d, 31, v1" % tok); a("v_lshrrev_b32 v%d, 5, v1" % hi)
    a("s_lshl_b32 s%d, s%d, 12" % (sT1, sW)); a("s_add_u32 s%d, s%d, %d" % (sT1, sT1, STG))
    a("v_lshlrev_b32 v%d, 7, v%d" % (t[5], tok)); a("v_add_u32 v%d, s%d, v%d" % (t[5], sT1, t[5]))
    a("v_bfe_u32 v%d, v1, 1, 3" % t[6]); a("v_xor_b32 v%d, v%d, v%d" % (t[6], t[6], hi))
    for k in range(4):
        a("v_xor_b32 v%d, %d, v%d" % (C_XA + k, 2 * k, t[6])); a("v_lshl_add_u32 v%d, v%d, 4, v%d" % (C_XA + k, C_XA + k, t[5]))
        a("v_add_u32 v%d, 0x10000, v%d" % (C_XA + 4 + k, C_XA + k))
    for k in range(4): a("v_mov_b32 v%d, 0x3f803f80" % (N_ONES + k))
    ident(a, N_ID, t[13])
    for j in range(3): a("v_cmp_eq_u32 %s, %d, v%d" % (s(sMK + 2 * j, 2), j + 1, t[13]))
    a("v_mov_b32 v%d, %d" % (C_FL, FL)); a("v_mov_b32 v%d, 1" % C_ONE); a("s_lshl_b32 s%d, s%d, 1" % (sT4, sI)); a("s_lshr_b32 s%d, s%d, 1" % (sT3, sW)); a("s_add_u32 s%d, s%d, s%d" % (sT4, sT4, sT3))
    a("s_lshl_b32 s%d, s%d, 9" % (sT4, sT4)); a("v_mov_b32 v%d, s%d" % (C_CM, sT4))
    a("v_and_b32 v18, 1, v1"); a("v_lshlrev_b32 v18, 8, v18"); a("v_add_u32 v18, %d, v18" % (FL + F_LAND))
    a("s_lshl_b32 s%d, s%d, 8" % (sT4, sW)); a("s_add_u32 m0, s%d, %d" % (sT4, FL + F_DONE))
    a("s_lshl_b32 s%d, s%d, 5" % (sT4, sW)); a("v_add_u32 v%d, s%d, v%d" % (N_TK, sT4, tok))
    a("s_lshl_b32 s%d, s%d, 13" % (sT0, sW))
    a("v_bfe_u32 v%d, v1, 2, 2" % r); a("v_and_b32 v%d, 3, v1" % c); a("v_bfe_u32 v%d, v1, 4, 1" % mat)
    a("v_lshlrev_b32 v%d, 3, v%d" % (t[7], c)); a("v_lshl_add_u32 v%d, v%d, 10, v%d" % (t[7], mat, t[7]))
    a("v_lshl_add_u32 v%d, v%d, 11, v%d" % (t[8], hi, t[7])); a("v_lshl_add_u32 v%d, v%d, 7, v%d" % (t[8], r, t[8]))
    a("v_and_b32 v%d, 2, v%d" % (t[9], r)); a("v_xor_b32 v%d, v%d, v%d" % (t[9], t[9], mat))
    for k in range(4):
        a("v_xor_b32 v%d, %d, v%d" % (t[10], k, t[9])); a("v_lshl_add_u32 v%d, v%d, 5, v%d" % (2 + k, t[10], t[8])); a("v_add_u32 v%d, 0x10000, v%d" % (6 + k, 2 + k))
    a("v_lshl_add_u32 v%d, v%d, 9, v%d" % (t[8], hi, t[7])); a("v_lshl_add_u32 v%d, v%d, 6, v%d" % (t[8], r, t[8]))
    for k in range(2):
        a("v_xor_b32 v%d, %d, v%d" % (t[10], k, mat)); a("v_lshl_add_u32 v%d, v%d, 5, v%d" % (10 + k, t[10], t[8])); a("v_add_u32 v%d, 0x10000, v%d" % (12 + k, 10 + k))
    a("v_lshlrev_b32 v%d, 4, v1" % t[11])
    a("s_add_u32 s%d, s%d, %d" % (sT0, sT0, EX)); a("v_add_u32 v15, s%d, v%d" % (sT0, t[11]))
    a("s_lshl_b32 s%d, s%d, 2" % (sT0, sI)); a("s_add_u32 s%d, s%d, s%d" % (sT0, sT0, sW)); a("s_mul_i32 s%d, s%d, %d" % (sT0, sT0, 147456))
    a("s_add_u32 s%d, s%d, %d" % (sT0, sT0, WS_HO)); a("v_add_u32 v14, s%d, v%d" % (sT0, t[11]))
    fcols(a, ty)
    a("s_lshl_b32 s%d, s%d, 6" % (sKS, sKS)); a("s_lshl_b32 s%d, s%d, 6" % (sKS + 1, sKS + 1))
    a("s_lshr_b32 s%d, s%d, 1" % (sT0, sW))
    a("s_lshl_b32 s%d, s%d, 13" % (sT2, sT0)); a("s_add_u32 s%d, s%d, 2048" % (sT2, sT2))
    a("v_add_u32 v%d, s%d, v%d" % (C_A2, sT2, t[11])); a("v_add_u32 v%d, 0x10000, v%d" % (C_A2 + 1, C_A2)); a("v_add_u32 v%d, 0x20000, v%d" % (C_A2 + 2, C_A2))
    u = t[12]
    a("v_bfe_u32 v%d, v1, 3, 1" % u); a("v_xor_b32 v%d, s%d, v%d" % (u, sW1, u)); a("v_lshlrev_b32 v%d, 6, v%d" % (C_B2, u))
    a("v_lshl_add_u32 v%d, v%d, 7, v%d" % (C_B2, r, C_B2)); a("v_lshl_add_u32 v%d, v%d, 9, v%d" % (C_B2, hi, C_B2))
    a("v_and_b32 v%d, 1, v1" % u); a("v_lshl_add_u32 v%d, v%d, 5, v%d" % (C_B2, u, C_B2))
    a("v_lshl_add_u32 v%d, v%d, 4, v%d" % (C_B2, mat, C_B2))
    a("v_bfe_u32 v%d, v1, 1, 1" % u); a("v_lshl_add_u32 v%d, v%d, 3, v%d" % (C_B2, u, C_B2))
    a("v_add_u32 v%d, 0x10000, v%d" % (C_B2 + 1, C_B2)); a("v_add_u32 v%d, 0x20000, v%d" % (C_B2 + 2, C_B2))
    a("s_lshl_b32 s%d, s%d, 6" % (sT2, sTT)); a("s_lshl_b32 s%d, s%d, 5" % (sT3, sT0)); a("s_add_u32 s%d, s%d, s%d" % (sT2, sT2, sT3))
    a("v_add_u32 v%d, s%d, v%d" % (u, sT2, tok))
    a("v_add_u32 v17, s%d, v%d" % (sT3, tok)); a("v_lshlrev_b32 v%d, 2, v17" % C_RO)
    a("v_lshlrev_b32 v17, 7, v17"); a("v_lshl_add_u32 v17, v%d, 5, v17" % hi); a("s_lshl_b32 s%d, s%d, 6" % (sT4, sW1)); a("v_add_u32 v17, s%d, v17" % sT4)
    a("s_lshl_b32 s%d, s%d, 7" % (sT3, sCT)); a("s_lshl_b32 s%d, s%d, 6" % (sT4, sW1)); a("s_add_u32 s%d, s%d, s%d" % (sT3, sT3, sT4))
    a("v_lshlrev_b32 v%d, 10, v%d" % (u, u)); a("v_lshl_add_u32 v%d, v%d, 5, v%d" % (u, hi, u)); a("v_add_u32 v%d, s%d, v%d" % (C_OUT, sT3, u))
    return P

def centre(a, k0, k1):
    def cen(k, h): a("v_mfma_f32_4x4x4_16b_bf16 %s, %s, %s, %s" % (v(N_T + 8 * (k & 1) + 4 * h, 4), v(N_ID, 2), v(XR + 4 * k + 2 * h, 2), v(N_CM, 4)))
    cen(k0, 0); cen(k0, 1); cen(k0 + 1, 0)
    for k in range(k0, k1):
        for h in range(2):
            kn, hn = k + (h + 3) // 2, (h + 3) & 1
            if kn < k1: cen(kn, hn)
            for j in (2 * h, 2 * h + 1): a("v_cvt_pk_bf16_f32 v%d, v%d, v%d" % (XR + 4 * k + j, N_T + 8 * (k & 1) + 2 * j, N_T + 8 * (k & 1) + 2 * j + 1))
def centre_sub():
    P = []; centre(lambda t: P.append(I(t)), 0, 28); P.append(I("s_setpc_b64 %s" % s(sRET, 2)))
    return ["L_centre:"] + finalize(P)[0]

def compute(ty):
    P = compute_setup(ty); a = lambda t, tag=None: P.append(I(t, tag))
    NB = CFG["nb%d" % ty]; CH = checks(ty)
    ops = []; queue = []
    sl = slabs_of(ty); gu_seen = 0; ex_seen = 0
    firstuse = {}; epi = []
    for n, (pi, kind, sg) in enumerate(sl):
        slot = slot_of(n); win = slot >> 2; base = (slot & 3) * SLOT
        e, tiles = PH[ty][pi][1:]
        order = tiles if sg == 0 else sorted(tiles)
        nk = 4 if kind == "P4" else 8
        last = sg == (7 if kind == "P4" else 3)
        seq = [(t, u) for t in order for u in range(nk)]
        for t, u in seq:
            if sg == 0 and u == 0: firstuse[(pi, t)] = len(ops)
            if True:
                m = len(ops); fb = WF + 4 * (m & 7)
                if kind == "P4": ar, off, dq, xs = 2 + 4 * win + t, base + u * 4096, 512, sg * 4 + u
                else: ar, off, dq, xs = 10 + 2 * win + (t & 1), base + u * 2048, 256, sg * 8 + u
                acc = v(ACC + 16 * t, 16)
                ops.append(dict(slab=n, reads=[("ds_read_b64_tr_b16 %s, v%d offset:%d" % (v(fb, 2), ar, off), ("f", m)),
                                               ("ds_read_b64_tr_b16 %s, v%d offset:%d" % (v(fb + 2, 2), ar, off + dq), ("f", m))],
                                waits=[("f", m)], la=CFG["LA"],
                                mfma="v_mfma_f32_32x32x16_bf16 %s, %s, %s, %s" % (acc, v(fb, 4), v(XR + 4 * xs, 4), "0" if (sg == 0 and u == 0) else acc)))
            if last and u == nk - 1:
                A = ACC + 16 * t; E = []
                if e == "gu":
                    for j in range(8): E.append(I("v_mul_f32 v%d, v%d, v%d" % (A + j, A + j, A + j + 8)))
                    for j in range(4): E.append(I("v_cvt_pk_bf16_f32 v%d, v%d, v%d" % (A + j, A + 2 * j, A + 2 * j + 1)))
                    E.append(I("buffer_store_dwordx4 %s, v14, %s, s%d offen offset:%d sc1" % (v(A, 4), srd(SWS), sKS + gu_seen, t * 1024), ("h", gu_seen)))
                else:
                    for j in range(4):
                        for k in (2 * j, 2 * j + 1): E.append(I("v_cvt_pk_bf16_f32 v%d, v%d, v%d" % (A + k, A + 2 * k, A + 2 * k + 1)))
                        E.append(I("ds_write_b64 v15, %s offset:%d" % (v(A + 2 * j, 2), t * 2048 + (j >> 1) * 1024 + (j & 1) * 8)))
                    if t == order[-1]:
                        g = []; one_lane(g, "ds_add_u32 v%d, v%d offset:%d" % (C_FL, C_ONE, F_EX + 4 * ex_seen)); E.append(g); ex_seen += 1
                epi.append((len(ops) + 1, pi, t, E))
        if last and e == "gu":
            kind_ = (C_H1B if ty else C_H1A) if gu_seen == 0 else C_H2
            g1 = [W(vm=[("h", gu_seen)])]; one_lane(g1, "buffer_atomic_add v%d, v%d, %s, 0 offen offset:%d sc1" % (C_ONE, C_CM, srd(SWS), kind_ * 128))
            epi.append((len(ops) + 6 + CFG["hwait1" if gu_seen == 0 else "hwait2"], 99, 0, [g1]))
            gu_seen += 1
    n1 = len(ops)
    HB = XR; RES = XR + 32; R2 = XR + 40
    Y, S_ = (ACC + 32, ACC + 48) if ty == 1 else (XR + 48, XR + 64)
    for n in range(20, 56):
        slot = slot_of(n); win = slot >> 2; base = (slot & 3) * SLOT
        acc = v(Y if n < 48 else S_, 16)
        for kk in range(4):
            m = len(ops); fb = WF + 4 * (m & 7); hb = HB + 4 * (m & 7)
            ops.append(dict(slab=n, reads=[("ds_read_b64_tr_b16 %s, v%d offset:%d" % (v(fb, 2), C_B2 + win, base + kk * 4096), ("f", m)),
                                           ("ds_read_b64_tr_b16 %s, v%d offset:%d" % (v(fb + 2, 2), C_B2 + win, base + kk * 4096 + 1024), ("f", m)),
                                           ("ds_read_b128 %s, v%d offset:%d" % (v(hb, 4), C_A2 + win, base + (kk >> 1) * 4096 + (kk & 1) * 1024), ("f", m))],
                            waits=[("f", m)], la=4 if not (CFG["h2now"] and n == 20) else kk + 1,
                            mfma="v_mfma_f32_32x32x16_bf16 %s, %s, %s, %s" % (acc, v(fb, 4), v(hb, 4), "0" if (n in (20, 48) and kk == 0) else acc)))
    X = []; x = lambda t: X.append(I(t)); r = N_SQ
    for j in range(4): x("v_add_f32 v%d, v%d, v%d" % (r + j, r + j, r + j + 4))
    for j in range(3): x("v_cndmask_b32 v%d, v%d, v%d, %s" % (r, r, r + j + 1, s(sMK + 2 * j, 2)))
    x("v_mov_b32 v%d, v%d" % (r + 1, r)); x("v_permlane32_swap_b32 v%d, v%d" % (r, r + 1)); x("v_add_f32 v%d, v%d, v%d" % (r, r, r + 1))
    x("v_mul_f32 v%d, 0x3b000000, v%d" % (r, r)); x("v_fma_f32 v%d, -v%d, v%d, v%d" % (r, N_DL, N_DL, r)); x("v_max_f32 v%d, 0, v%d" % (r, r))
    def rnd(): x("v_cvt_pk_bf16_f32 v%d, v%d, v%d" % (r + 1, r, r)); x("v_and_b32 v%d, 0xffff0000, v%d" % (r, r + 1))
    rnd(); x("v_add_f32 v%d, 0x3727c5ac, v%d" % (r, r)); rnd(); x("v_sqrt_f32 v%d, v%d" % (r, r)); rnd()
    x("v_rcp_f32 v%d, v%d" % (r, r))
    x("v_lshl_add_u32 v%d, v%d, 1, v%d" % (r + 2, N_TK, C_FL)); x("v_lshl_add_u32 v%d, v%d, 2, v%d" % (r + 3, N_TK, C_FL))
    x("ds_write_b16 v%d, v%d offset:%d" % (r + 2, r + 1, LSD - FL)); x("ds_write_b32 v%d, v%d offset:%d" % (r + 3, r, LRS - FL))
    for it in X[:-2]: queue.append((18, 50, it))
    for it in X[-2:]: queue.append((CFG["rsat"], 60, it))
    if ty == 0:
        g = []
        only(g, ["s_cmp_lg_u32 s%d, 0" % sGR], [I("s_lshl_b32 s%d, s%d, 9" % (sT4, sI)), I("s_add_u32 s%d, s%d, %d" % (sT4, sT4, WS_RS - FL)), I("s_mov_b32 exec_hi, 0"),
                                               I("buffer_store_dword v%d, v%d, %s, s%d offen sc1" % (r, r + 3, srd(SWS), sT4)), I("s_mov_b64 exec, -1")])
        queue.append((30, 60, g))
    queue.append((158, 160, I("ds_read_b32 v%d, v%d offset:%d" % (C_HC, C_FL, F_INIT), "init")))
    g = []; gate(g, C_DV, SDBG, 0, "init", C_HC, 1, slow=[I("v_mov_b32 v%d, 0" % C_DV)]); queue.append((164, 166, g))
    for e0, pi, t, E in epi:
        dl = min([x for (p2, t2), x in firstuse.items() if p2 > pi and t2 == t] + [10 ** 9]) - 1
        for it in E: queue.append((e0, dl, it))
    G = XR + 80; XF = XR + 96; E = []
    E.append(I("ds_read_b128 %s, v17 offset:%d" % (v(RES, 4), LX), "res")); E.append(I("ds_read_b128 %s, v17 offset:%d" % (v(RES + 4, 4), LX + 16), "res"))
    E.append(I("ds_read_b32 v%d, v%d offset:%d" % (R2, C_RO, LR2), "res"))
    for it in E: queue.append((n1 + 22 * 4, 10 ** 9, it))
    E = [W(lg=["res"]), I("v_mul_f32 v%d, v%d, v%d" % (R2, R2, R2)), I("v_mul_f32 v%d, s%d, v%d" % (R2 + 1, sL2E, R2))]
    for j in range(8):
        E.append(I("v_lshlrev_b32 v%d, 16, v%d" % (XF + 2 * j, RES + j))); E.append(I("v_and_b32 v%d, 0xffff0000, v%d" % (XF + 2 * j + 1, RES + j)))
    for it in E: queue.append((n1 + 24 * 4, 10 ** 9, it))
    E = []
    for j in range(16): E.append(I("v_mul_f32 v%d, v%d, v%d" % (G + j, R2 + 1, Y + j)))
    for j in range(16): E.append(I("v_exp_f32 v%d, -v%d" % (G + j, G + j)))
    for j in range(16): E.append(I("v_mul_f32 v%d, v%d, v%d" % (Y + j, R2, Y + j)))
    for j in range(16): E.append(I("v_add_f32 v%d, 1.0, v%d" % (G + j, G + j)))
    for j in range(16): E.append(I("v_rcp_f32 v%d, v%d" % (G + j, G + j)))
    for j in range(16): E.append(I("v_mul_f32 v%d, v%d, v%d" % (G + j, G + j, Y + j)))
    for it in E: queue.append((n1 + 28 * 4 + 1, 10 ** 9, it))
    queue.sort(key=lambda x: x[0])
    first = {}
    for m, o in enumerate(ops): first.setdefault(o["slab"], m)
    fread = {first[n] - ops[first[n]]["la"] - (CFG["LAF"] if n <= 20 else 3): n for n in CH if n}
    lastdone = prev_user(min(NB + CFG["ahead2"], 56) - 1)
    def done(n):
        a("v_mov_b32 v%d, %d" % (C_DV, 4 * (n + 1))); a("global_load_lds_dword v%d, %s" % (C_DV, s(sTB, 2)))
    issued = 0; cur = -1
    def issue_reads(upto_fn):
        nonlocal issued, cur
        while issued < len(ops) and upto_fn(issued):
            o = ops[issued]
            if o["slab"] > cur:
                cur = o["slab"]
                if cur >= NB: a("s_barrier")
                elif cur in CH:
                    lb = newlbl()
                    a("s_cbranch_vccnz L_cs%d" % lb); P.append(L("L_cb%d:" % lb))
                    STUBS.extend(["L_cs%d:" % lb, "    s_movk_i32 s%d, %d" % (sSPIN + 1, CH[cur] + 1),
                                  "    s_call_b64 %s, L_spin_c" % s(sRET, 2), "    s_branch L_cb%d" % lb])
            for t, tag in o["reads"]: a(t, tag)
            issued += 1
    def cstamp(k):
        r = sPH + 2 * (k & 1)
        if k > 2:
            a("s_sub_u32 s%d, s%d, s%d" % (r, r, sTM)); a("v_writelane_b32 v19, s%d, %d" % (r, k - 2))
        elif k == 1: a("v_mov_b32 v19, 0")
        P.append(L("    s_memtime %s" % s(r, 2)))
    SM = ACC
    if CFG["dry"]: a("s_nop 1"); a("s_call_b64 %s, L_centre" % s(sRET, 2))
    for j in range(4):
        a("s_barrier")
        for k in range(8 * j, 8 * j + 8):
            a("ds_read_b128 %s, v%d offset:%d" % (v(XR + 4 * k, 4), C_XA + (k & 3) + 4 * (k >> 4), ((k >> 2) & 3) * 16384), ("xn", k))
        for k in range(8 * j, 8 * j + 8):
            P.append(W(lg=[("xn", k)]))
            if k == 31: a("s_barrier")
            for h in range(2):
                xx = v(XR + 4 * k + 2 * h, 2); c = v(SM + 4 * h, 4); q = v(N_SQ + 4 * h, 4)
                a("v_mfma_f32_4x4x4_16b_bf16 %s, %s, %s, %s" % (c, v(N_ONES, 2), xx, "0" if k == 0 else c))
                a("v_mfma_f32_4x4x4_16b_bf16 %s, %s, %s, %s" % (q, xx, xx, "0" if k == 0 else q))
    a("s_waitcnt vmcnt(0)")
    a("v_add_f32 v%d, v%d, v%d" % (SM, SM, SM + 4)); a("v_mov_b32 v%d, v%d" % (SM + 1, SM)); a("v_permlane32_swap_b32 v%d, v%d" % (SM, SM + 1))
    a("v_add_f32 v%d, v%d, v%d" % (SM, SM, SM + 1))
    a("v_mul_f32 v%d, 0xbb000000, v%d" % (N_DL, SM))
    a("v_cvt_pk_bf16_f32 v%d, v%d, v%d" % (SM, N_DL, N_DL))
    for j in range(4): a("v_and_b32 v%d, 0xffff0000, v%d" % (N_CM + j, SM))
    a("ds_read_b32 v%d, v18" % C_FV, ("fl", 0))
    a("s_nop 1"); a("s_call_b64 %s, L_centre" % s(sRET, 2))
    P.append(W(lg=[("fl", 0)])); a("v_cmp_ge_u32 vcc, 0, v%d" % C_FV)
    issue_reads(lambda m: m < CFG["LA"])
    centre(a, 28, 32)
    qi = 0
    for m, o in enumerate(ops):
        P.append(W(lg=o["waits"]))
        if CFG["fake16"]:
            import re
            d0, a0, b0 = [int(x) for x in re.findall(r"v\[(\d+):", o["mfma"])[:3]]; z = o["mfma"].endswith(", 0") or ops[m - 1]["mfma"].endswith(", 0")
            for h in range(2):
                c = v(d0 + 8 * (m & 1) + 4 * h, 4); bb = b0 if m >= n1 else (b0 & ~7) + 4 * h
                a("v_mfma_f32_16x16x32_bf16 %s, %s, %s, %s" % (c, v(a0, 4), v(bb, 4), "0" if z else c))
        else: a(o["mfma"])
        if m + 1 < len(ops) and ops[m + 1]["slab"] != o["slab"] and o["slab"] <= lastdone + 1 and marked(o["slab"]): done(o["slab"])
        if CFG["probe"] and m == CFG["probeat"]: P.append(L("    s_memrealtime s[6:7]"))
        if m == n1 - 1 and CFG["h2now"]:
            lim = n1 + 1 if CFG["h2now"] == 1 else n1 + 40
            while queue[qi][0] <= lim:
                it = queue[qi][2]; P += it if isinstance(it, list) else [it]; qi += 1
        issue_reads(lambda k: k - ops[k]["la"] <= m)
        for n in range(1, 56):
            d = m - (first[n] - ops[first[n]]["la"])
            if d == -1 and n in CH:
                P.append(W(lg=[("fl", n)])); a("v_cmp_ge_u32 vcc, %d, v%d" % (CH[n], C_FV))
            if d == (2 if n <= 20 else 0) and CFG["stamps"] and not CFG["zoom"]: cstamp(n)
            if CFG["zoom"] and m == CFG["zoom"] + n: cstamp(n)
        if m in fread: a("ds_read_b32 v%d, v18" % C_FV, ("fl", fread[m]))
        rate = CFG["erate"] if m < n1 else 5
        cnt = 0
        while qi < len(queue) and queue[qi][0] <= m and cnt < rate:
            assert m <= queue[qi][1], ("filler past its deadline", ty, m, queue[qi][1])
            it = queue[qi][2]
            if isinstance(it, list): P += it; cnt += 2
            else: P.append(it)
            qi += 1; cnt += 1
    assert qi == len(queue)
    if CFG["fake16"]:
        Q = []; i = 0
        ism = lambda x: isinstance(x, I) and x.t.startswith("v_mfma_f32_16x16x32")
        while i < len(P):
            if ism(P[i]) and ism(P[i + 1]):
                j = i + 2
                while j < len(P) and not ism(P[j]): j += 1
                mid = P[i + 2:j]
                k = 0
                while k < (len(mid)) // 2 and isinstance(mid[k], I) and not mid[k].t.startswith(("s_mov_b64 exec", "s_cbranch", "s_cmp")): k += 1
                Q += [P[i]] + mid[:k] + [P[i + 1]] + mid[k:]; i = j
            else: Q.append(P[i]); i += 1
        P[:] = Q
    for j in range(16): a("v_fma_f32 v%d, v%d, v%d, v%d" % (G + j, S_ + j, G + j, XF + j))
    for j in range(8): a("v_cvt_pk_bf16_f32 v%d, v%d, v%d" % (XF + j, G + 2 * j, G + 2 * j + 1))
    if CFG["xprobe"]:
        lb = newlbl()
        a("s_getreg_b32 s6, hwreg(HW_REG_XCC_ID, 0, 4)"); a("s_and_b32 s7, s2, 7"); a("s_cmp_eq_u32 s6, s7"); a("s_cbranch_scc1 L_xp%d" % lb)
        for _ in range(6): a("s_sleep 127")
        P.append(L("L_xp%d:" % lb))
    if CFG["probe"]:
        lb = newlbl()
        if CFG["probeat"] < 0: a("s_memrealtime s[6:7]")
        P.append(W(lg="all")); a("s_sub_u32 s6, s6, s4")
        a("s_cmp_le_u32 s6, %d" % CFG["probe"]); a("s_cbranch_scc1 L_xp%d" % lb)
        for _ in range(6): a("s_sleep 127")
        P.append(L("L_xp%d:" % lb))
    a("buffer_store_dwordx4 %s, v%d, %s, 0 offen%s" % (v(XF, 4), C_OUT, srd(SOUT), CFG["outfl"]))
    a("buffer_store_dwordx4 %s, v%d, %s, 0 offen offset:16%s" % (v(XF + 4, 4), C_OUT, srd(SOUT), CFG["outfl"]))
    if CFG["stamps"]:
        one_lane(P, "ds_add_u32 v%d, v%d offset:%d" % (C_FL, C_ONE, F_END))
        cstamp(56); cstamp(57); P.append(W(lg="all")); cstamp(58)
        a("s_lshl_b32 s%d, s2, 8" % sT0); a("s_add_u32 s%d, s%d, %d" % (sT0, sT0, WS_ST + 0x20000))
        a("v_lshlrev_b32 v18, 2, v1")
        a("s_cmp_lg_u32 s%d, %d" % (sW, CFG["stampw"])); a("s_cbranch_scc1 L_exit")
        a("buffer_store_dword v19, v18, %s, s%d offen" % (srd(SWS), sT0))
    a("s_endpgm")
    return P

D_P = 32
D_A, D_B, D_B2, D_TAB, D_FL, D_LA, D_ONE, D_ZERO, D_CC, D_POLL, D_LV = range(2, 13)
D_AT, D_POLL2, D_X, D_R = 13, 14, 15, 16
D_DV = 28
D_TCH = 20
def phase_info(ty):
    return [(kind, 3584, SG, SU) if e == "gu" else (kind, 3072, SQKV, SQKV) for kind, e, _ in PH[ty]]
def dma_setup(ty):
    P = []; b = lambda t, tag=None: P.append(I(t, tag))
    t0, t1, t2, t3, u0, u1, u2 = range(64, 71)
    b("v_mov_b32 v%d, 0" % D_ZERO); b("v_mov_b32 v%d, 0" % D_TAB)
    b("v_mov_b32 v%d, 1" % D_ONE); b("v_mov_b32 v%d, %d" % (D_FL, FL))
    b("v_and_b32 v%d, 3, v1" % D_LA); b("v_lshlrev_b32 v%d, 8, v%d" % (D_LA, D_LA)); b("v_add_u32 v%d, %d, v%d" % (D_LA, FL + F_DONE, D_LA))
    b("s_lshl_b32 s%d, s%d, 8" % (sLM, sW1)); b("s_add_u32 s%d, s%d, %d" % (sLM, sLM, FL + F_LAND))
    b("s_lshl_b32 s%d, s%d, 9" % (sCC, sTT)); b("v_mov_b32 v%d, s%d" % (D_CC, sCC))
    b("s_lshl_b32 s%d, s%d, 1" % (sT0, sTT)); b("s_add_u32 s%d, s%d, s%d" % (sT0, sT0, sW1))
    b("s_mul_i32 s%d, s%d, 147456" % (sT0, sT0)); b("s_add_u32 s%d, s%d, %d" % (sT0, sT0, WS_HO - 2048))
    if CFG["fakeA"]: b("s_lshr_b32 s%d, s%d, 3" % (sT0, sI)); b("s_lshl_b32 s%d, s%d, 20" % (sT0, sT0)); b("s_lshl_b32 s%d, s%d, 18" % (sT1, sW1)); b("s_add_u32 s%d, s%d, s%d" % (sT0, sT0, sT1))
    b("v_lshlrev_b32 v%d, 4, v1" % u0); b("v_add_u32 v%d, s%d, v%d" % (D_A, sT0, u0))
    b("v_lshlrev_b32 v%d, 7, v1" % u0); b("v_add_u32 v%d, s%d, v%d" % (D_AT, sT0, u0))
    b("v_lshrrev_b32 v%d, 3, v1" % u0); b("v_and_b32 v%d, 2, v%d" % (u1, u0)); b("v_lshlrev_b32 v%d, 1, v%d" % (u1, u1))
    b("v_and_b32 v%d, 7, v1" % u2); b("v_xor_b32 v%d, v%d, v%d" % (u2, u2, u1))
    b("v_lshlrev_b32 v%d, 10, v%d" % (u0, u0)); b("v_lshl_add_u32 v%d, v%d, 4, v%d" % (D_B, u2, u0))
    b("s_lshl_b32 s%d, s%d, 15" % (sT0, sW1)); b("s_lshl_b32 s%d, s%d, 7" % (sT1, sCT)); b("s_add_u32 s%d, s%d, s%d" % (sT0, sT0, sT1))
    b("v_add_u32 v%d, s%d, v%d" % (D_B, sT0, D_B)); b("v_add_u32 v%d, %d, v%d" % (D_B2, 8192 - 1024, D_B))
    b("v_lshrrev_b32 v%d, 3, v1" % u0); b("v_lshlrev_b32 v%d, 10, v%d" % (u0, u0)); b("v_and_b32 v%d, 7, v1" % u2); b("v_lshl_add_u32 v%d, v%d, 4, v%d" % (D_X, u2, u0))
    b("s_lshl_b32 s%d, s%d, 16" % (sT1, sTT)); b("s_add_u32 s%d, s%d, s%d" % (sT0, sT0, sT1)); b("v_add_u32 v%d, s%d, v%d" % (D_X, sT0, D_X))
    b("s_lshl_b32 s%d, s%d, 8" % (sT1, sTT)); b("s_add_u32 s%d, s%d, %d" % (sT1, sT1, WS_RS)); b("v_lshlrev_b32 v%d, 2, v1" % D_R); b("v_add_u32 v%d, s%d, v%d" % (D_R, sT1, D_R))
    fcols(b, ty)
    gu = 0
    for pi, (kind, e, _) in enumerate(PH[ty]):
        stride = 3584 if e == "gu" else 3072
        (p4_voffs if kind == "P4" else p2_voffs)(b, u0, u1, stride, t0)
        if e == "gu": b("s_lshl_b32 s%d, s%d, 1" % (sT1, sKS + gu)); db = 0; gu += 1
        elif e == "kv": b("s_mov_b32 s%d, s%d" % (sT1, sKC)); db = 1024
        else: b("s_lshl_b32 s%d, s%d, 7" % (sT1, sGR)); db = 64
        step = (8 if kind == "P4" else 16) * stride
        b("v_add_u32 v%d, s%d, v%d" % (u0, sT1, u0)); b("v_add_u32 v%d, s%d, v%d" % (u1, sT1, u1))
        for p in range(4):
            b("v_add_u32 v%d, %d, v%d" % (D_P + 4 * pi + p, 4096 + (p >> 1) * step - p * 1024 + (db if p & 1 else 0), u1 if p & 1 else u0))
    b("s_lshl_b32 s%d, s%d, 13" % (sLA, sW1))
    nr = 32 if CFG["map"] == 84 else 64
    b("s_lshl_b32 s%d, s%d, 6" % (sT0, sXR)); b("s_mul_i32 s%d, s%d, %d" % (sT1, sW1, nr)); b("s_add_u32 s%d, s%d, s%d" % (sT0, sT0, sT1))
    b("v_add_u32 v%d, s%d, v1" % (t2, sT0)); b("v_mul_u32_u24 v%d, 3072, v%d" % (D_TCH + 3, t2)); b("v_mul_u32_u24 v%d, 3584, v%d" % (D_TCH + 2, t2))
    b("s_lshl_b32 s%d, s%d, 7" % (sT0, sGR)); b("s_add_u32 s%d, s%d, 4096" % (sT0, sT0)); b("v_add_u32 v%d, s%d, v%d" % (D_TCH + 3, sT0, D_TCH + 3))
    b("v_add_u32 v%d, 4096, v%d" % (D_TCH + 2, D_TCH + 2))
    b("s_lshl_b32 s%d, s%d, 1" % (sKS, sKS)); b("s_lshl_b32 s%d, s%d, 1" % (sKS + 1, sKS + 1))
    b("s_lshl_b32 s%d, s%d, 1" % (sT0, sSH)); b("s_add_u32 s%d, s%d, s%d" % (sT0, sT0, sW1))
    if CFG["map2"] == 48: b("v_lshlrev_b32 v%d, 7, v1" % t2)
    else:
        b("v_lshrrev_b32 v%d, 2, v1" % t2); b("v_lshlrev_b32 v%d, 10, v%d" % (t2, t2)); b("v_and_b32 v%d, 3, v1" % t3); b("v_lshl_add_u32 v%d, v%d, 7, v%d" % (t2, t3, t2))
        b("s_and_b32 s%d, s%d, 4" % (sT1, sCT)); b("s_lshl_b32 s%d, s%d, 7" % (sT1, sT1)); b("v_add_u32 v%d, s%d, v%d" % (t2, sT1, t2))
    k2 = 2 if CFG["aonly"] else 1
    b("s_mul_i32 s%d, s%d, %d" % (sT1, sT0, 28 * 1024 * k2)); b("v_add_u32 v%d, s%d, v%d" % (D_TCH, sT1, t2))
    b("s_mul_i32 s%d, s%d, %d" % (sT1, sT0, 8192 * k2)); b("v_add_u32 v%d, s%d, v%d" % (D_TCH + 1, sT1, t2))
    def seg(lo, items):
        for t in items: b(t)
        b("v_cmp_le_u32 vcc, %d, v1" % lo); b("v_cndmask_b32 v%d, v%d, v%d, vcc" % (D_TAB, D_TAB, t1))
    b("s_add_u32 s%d, s%d, s%d" % (sT0, sR1, sW1))
    n0 = 0
    for pi, (kind, e, _) in enumerate(PH[ty]):
        stride = 3584 if e == "gu" else 3072
        if kind == "P4":
            seg(n0, ["v_add_u32 v%d, s%d, v1" % (t1, sR1), "v_add_u32 v%d, %d, v%d" % (t1, (-n0) & 7, t1), "v_and_b32 v%d, 7, v%d" % (t1, t1),
                     "v_lshlrev_b32 v%d, 1, v%d" % (t1, t1), "v_add_u32 v%d, s%d, v%d" % (t1, sW1, t1), "v_mul_u32_u24 v%d, %d, v%d" % (t1, 32 * stride, t1)]); n0 += 8
        else:
            seg(n0, ["v_lshlrev_b32 v%d, 1, v1" % t1, "v_add_u32 v%d, s%d, v%d" % (t1, sT0, t1), "v_and_b32 v%d, 7, v%d" % (t1, t1),
                     "v_mul_u32_u24 v%d, %d, v%d" % (t1, 64 * stride, t1)]); n0 += 4
    b("v_add_u32 v%d, s%d, v1" % (t0, sR2)); b("v_and_b32 v%d, 7, v%d" % (t2, t0))
    seg(20, ["v_lshlrev_b32 v%d, 13, v%d" % (t1, t2)])
    seg(28, ["v_lshrrev_b32 v%d, 1, v%d" % (t3, t2), "v_lshlrev_b32 v%d, 1, v%d" % (t1, t2), "v_sub_u32 v%d, v%d, v%d" % (t1, t1, t3),
             "v_add_u32 v%d, 16, v%d" % (t1, t1), "v_lshlrev_b32 v%d, 12, v%d" % (t1, t1)])
    seg(36, ["v_lshlrev_b32 v%d, 13, v%d" % (t1, t2), "v_add_u32 v%d, 4096, v%d" % (t1, t1)])
    seg(44, ["v_and_b32 v%d, 3, v%d" % (t1, t0), "v_mul_u32_u24 v%d, 3, v%d" % (t1, t1), "v_add_u32 v%d, 17, v%d" % (t1, t1), "v_lshlrev_b32 v%d, 12, v%d" % (t1, t1)])
    seg(48, ["v_lshlrev_b32 v%d, 12, v%d" % (t1, t2)])
    return P

def dma_wave(ty):
    P = [M(("x", 1))] + dma_setup(ty); a = lambda t, tag=None: P.append(I(t, tag))
    stamp = lambda k: stamp_to(P, k)
    stamp_to(P, 1, H_STAMP2)
    NB = CFG["nb%d" % ty]; CH = checks(ty)
    sl = slabs_of(ty); info = phase_info(ty)
    def look(n):
        if n < 56: a("v_readlane_b32 s%d, v%d, %d" % (sPH + 2 * (n & 1), D_TAB, n))
    def part(n, which, nxt):
        so = sPH + 2 * (n & 1); cap = CFG["cap2"]; wb = srd(SWD if n < 48 else SWO)
        if which == "B": a("s_lshl_b32 s%d, s%d, 4" % (so, so))
        elif n == 48: a("v_add_u32 v%d, %d, v%d" % (D_A, 28 * 4096, D_A))
        for h in range(2):
            a("s_add_u32 m0, s%d, %d" % (sLA, slot_of(n) * SLOT + h * 4096))
            if h: a("s_add_u32 s%d, s%d, %d" % (so, so, 16384 if which == "B" else 2048))
            elif (nxt ^ n) & 1: look(nxt)
            room(16, cap)
            if which == "B":
                vm("buffer_load_dwordx4 v%d, %s, s%d offen lds" % (D_B, wb, so), 8)
                vm("buffer_load_dwordx4 v%d, %s, s%d offen offset:1024 lds" % (D_B2, wb, so), 8)
            else:
                vm("buffer_load_dwordx4 v%d, %s, s%d offen offset:2048 sc1 lds" % (D_A, srd(SX if CFG["fakeA"] else SWS), so), 8, ("slab", n))
                vm("buffer_load_dwordx4 v%d, %s, s%d offen offset:3072 sc1 lds" % (D_A, srd(SX if CFG["fakeA"] else SWS), so), 8, ("slab", n))
        if not (nxt ^ n) & 1: look(nxt)
    hist = []
    def room(w, cap):
        tot = w; k = 0
        while k < len(hist) and tot + hist[-1 - k] <= cap: tot += hist[-1 - k]; k += 1
        if k < len(hist): a("s_waitcnt vmcnt(%d)" % min(k, 63))
    def vm(t, w, tag=None): a(t, tag); hist.append(w)
    def dma(n):
        so = sPH + 2 * (n & 1); cap = CFG["cap1"] if n < CFG["capsw"] else CFG["cap2"]
        for h in range(2):
            a("s_add_u32 m0, s%d, %d" % (sLA, slot_of(n) * SLOT + h * 4096))
            if n < 20:
                pi, kind, sg = sl[n]; _, stride, sa, sb = info[pi]
                w = 16 if (kind == "P2" and PH[ty][pi][1] != "q") else 8
                if h: a("s_add_u32 s%d, s%d, %d" % (so, so, (16 if kind == "P4" else 32) * stride))
                else: look(n + 1)
                for p in range(4):
                    if p % 2 == 0: room(2 * w, cap)
                    vm("buffer_load_dwordx4 v%d, %s, s%d offen offset:%d lds" % (D_P + 4 * pi + p, srd(sb if p & 1 else sa), so, p * 1024), w, ("slab", n))
            else:
                if h: a("s_add_u32 s%d, s%d, 2048" % (so, so)); a("s_add_u32 s%d, s%d, 16384" % (so + 1, so + 1))
                else:
                    a("s_lshl_b32 s%d, s%d, 4" % (so + 1, so)); look(n + 1)
                    if n == 48: a("v_add_u32 v%d, %d, v%d" % (D_A, 28 * 4096, D_A))
                wb = srd(SWD if n < 48 else SWO)
                room(16, cap)
                vm("buffer_load_dwordx4 v%d, %s, s%d offen lds" % (D_B, wb, so + 1), 8, ("slab", n))
                vm("buffer_load_dwordx4 v%d, %s, s%d offen offset:1024 lds" % (D_B2, wb, so + 1), 8, ("slab", n))
                room(16, cap)
                vm("buffer_load_dwordx4 v%d, %s, s%d offen offset:2048 sc1 lds" % (D_A, srd(SX if CFG["fakeA"] else SWS), so), 8, ("slab", n))
                vm("buffer_load_dwordx4 v%d, %s, s%d offen offset:3072 sc1 lds" % (D_A, srd(SX if CFG["fakeA"] else SWS), so), 8, ("slab", n))
    def touch(which):
        nr = 32 if CFG["map"] == 84 else 64; dst = D_TCH + 4; cap = CFG["capt"]
        for w in which:
            if w == "x":
                a("s_lshr_b32 s%d, s%d, 1" % (sT0, sLA)); a("s_add_u32 m0, s%d, %d" % (sT0, LX))
                room(32, cap)
                for p in range(4):
                    a("s_movk_i32 s%d, %d" % (sT1, 7168 * p))
                    vm("buffer_load_dwordx4 v%d, %s, s%d offen offset:%d lds" % (D_X, srd(SX), sT1, 1024 * p), 8)
            elif w in ("q", "g0", "g1"):
                if nr == 32: a("s_mov_b32 exec_hi, 0")
                if w == "q": room(nr, cap); vm("buffer_load_dword v%d, v%d, %s, 0 offen" % (dst, D_TCH + 3, srd(SQKV)), nr)
                else:
                    for d in (SG, SU): room(nr, cap); vm("buffer_load_dword v%d, v%d, %s, s%d offen" % (dst, D_TCH + 2, srd(d), sKS + int(w[1])), nr)
            elif w == "o":
                k = 64 if (CFG["map2"] == 48 or CFG["aonly"]) else 32
                if k == 32: a("s_mov_b32 exec_hi, 0")
                room(k, cap); vm("buffer_load_dword v%d, v%d, %s, 0 offen" % (dst, D_TCH + 1, srd(SWO)), k)
            else:
                j = int(w[1])
                if j >= (4 if (CFG["map2"] == 48 or CFG["aonly"]) else 2): continue
                a("s_mov_b32 exec_hi, 0xffffff"); a("s_mov_b32 s%d, %d" % (sT0, j * 56 * (128 if CFG["map2"] == 48 else 256)))
                room(56, cap); vm("buffer_load_dword v%d, v%d, %s, s%d offen" % (dst, D_TCH, srd(SWD), sT0), 56)
            a("s_mov_b64 exec, -1")
    def publish(m):
        if m in CH.values():
            a("s_mov_b32 m0, s%d" % sLM); a("v_mov_b32 v%d, %d" % (D_LV, 4 * (m + 1)))
            vm("global_load_lds_dword v%d, %s" % (D_LV, s(sTB, 2)), 1)
        if CFG["stamps"] == 2 or (CFG["stamps"] and m % 4 == 0): stamp(m)
    for d in (SQKV, SG, SU):
        a("s_sub_u32 s%d, s%d, 4096" % (d, d)); a("s_subb_u32 s%d, s%d, 0" % (d + 1, d + 1)); a("s_add_u32 s%d, s%d, 4096" % (d + 2, d + 2))
    gates = {20: (C_H1A, 16), 28: (C_H1B, 16), 36: (C_H2, 32), 48: (C_O, 16)}
    def do_gate(n):
        if CFG["stamps"] == 2: stamp_to(P, 20 + 2 * list(gates).index(n), H_STAMP2)
        if CFG["spoll"]: sgate(P, sCC, gates[n][0] * 128, sPV, gates[n][1])
        else: gate(P, D_CC, SWS, gates[n][0] * 128, ("poll", n), D_POLL, gates[n][1])
        stamp_to(P, 21 + 2 * list(gates).index(n), H_STAMP2)
    def poll(gn):
        if CFG["spoll"]: a("s_load_dword s%d, %s, s%d offset:%d glc" % (sPV, s(SWS, 2), sCC, gates[gn][0] * 128))
        else: vm("buffer_load_dword v%d, v%d, %s, 0 offen offset:%d sc1" % (D_POLL, D_CC, srd(SWS), gates[gn][0] * 128), 1, ("poll", gn))
    nbf = CFG["bfirst"]
    def issue(n):
        if n in gates and not (n == 20 and nbf): do_gate(n)
        if n + CFG["pollat"] in gates and not (n + CFG["pollat"] == 20 and nbf): poll(n + CFG["pollat"])
        dma(n)
    def do_touch(n):
        tp = CFG["tplan%d" % ty].get(str(n))
        if tp:
            touch(tp.split())
    look(0)
    hist += [16] * 8
    xstages(P, {2: lambda: (dma(0), publish(0), do_touch(0))})
    stamp(60)
    a("s_barrier")
    stamp(61); rstamp(P, 40)
    assert NB == 56
    seq = [(n, "F") for n in range(1, 20)] + [(n, "B") for n in range(20, 20 + nbf)]
    n = 20
    while n < 56:
        k = CFG["afirst"].get(str(n), 0)
        if n == 20: k = max(k, nbf)
        seq += [(m, "A") for m in range(n, n + k)] + [(m, "B") for m in range(n, n + k) if (m, "B") not in seq]
        if not k: seq.append((n, "F"))
        n += max(k, 1)
    started = set(); parts = {}; checked = -1; gated = set()
    firstA = {g: min(i for i, (m, w) in enumerate(seq) if m >= g and w != "B") for g in gates}
    gstart = {g: min(i for i, (m, w) in enumerate(seq) if m >= 20 + 4 * g and w != "B") for g in range(9)}
    def need_at(i):
        k = 1
        if CFG["spoll"] and any(i + CFG["pollat"] == firstA[g] for g in gates): k = CFG["pollat"]
        pu = max(prev_user(m) if m not in started else -1 for m, w in seq[i:i + k])
        while pu > checked and not marked(pu): pu += 1
        return pu
    for i, (n, w) in enumerate(seq):
        if (n, w) in ((11, "F"), (15, "F"), (18, "F"), (30, "F"), (42, "F"), (54, "F")): rstamp(P, 42 + 2 * (11, 15, 18, 30, 42, 54).index(n))
        if w == "F" and n in CFG["exw%d" % ty]: count_wait(P, D_FL, D_DV + 1, F_EX + 4 * CFG["exw%d" % ty].index(n), 4)
        pu = need_at(i)
        if pu > checked:
            lb = newlbl()
            P.append(W(lg=[("dn", i)]))
            a("v_cmp_ge_u32 vcc, %d, v%d" % (pu, D_DV)); a("s_cbranch_vccz L_fr%d" % lb)
            raw(P, [I("s_movk_i32 s%d, %d" % (sSPIN + 1, pu + 1)), I("s_call_b64 %s, L_spin_d" % s(sRET, 2))]); P.append(L("L_fr%d:" % lb))
            checked = pu
        if n == 20 and n not in started: count_wait(P, D_FL, D_DV + 1, F_EXF, 2)
        if (n, w) == (4, "F"): a("s_movk_i32 m0, %d" % (FL + F_INIT)); vm("buffer_load_dword v%d, %s, 0 offen sc1 lds" % (D_ZERO, srd(SDBG)), 1)
        if (n, w) == (15, "F"): a("ds_read_b32 v%d, v%d offset:%d" % (D_POLL, D_FL, F_INIT), "init"); gate(P, D_ZERO, SDBG, 0, "init", D_POLL, 1)
        for g in gates:
            if i == firstA[g]:
                do_gate(g)
                if g == 20: a("s_movk_i32 m0, %d" % LR2); vm("buffer_load_dword v%d, %s, 0 offen sc1 lds" % (D_R, srd(SWS)), 2)
            if i + CFG["pollat"] == firstA[g]: poll(g)
        if CFG["lead"]:
            for g in range(1, 9):
                sec = max(x for x in gates if x <= 20 + 4 * g); newsec = sec == 20 + 4 * g
                at = gstart[g - 1]
                if newsec and i + CFG["pollat"] == at:
                    vm("buffer_load_dword v%d, v%d, %s, 0 offen offset:%d sc1" % (D_POLL2, D_CC, srd(SWS), gates[sec][0] * 128), 1, ("poll2", g))
                if i == at + CFG["leadoff"]:
                    lb = newlbl()
                    if newsec: P.append(W(vm=[("poll2", g)]))
                    a("s_cmp_lg_u32 s%d, %d" % (sLD, CFG["who"][g])); a("s_cbranch_scc1 L_nl%d" % lb)
                    X = []
                    if newsec: X += [I("v_cmp_eq_u32 vcc, %d, v%d" % (gates[sec][1], D_POLL2)), I("s_cbranch_vccz L_nl%d" % lb)]
                    for j in range(4): X.append(I("v_readlane_b32 s%d, v%d, %d" % (sG + j, D_TAB, 20 + 4 * g + j)))
                    X.append(I("s_mov_b32 exec_hi, 0"))
                    for j in range(4):
                        if g >= 7: X.append(I("s_add_u32 s%d, s%d, %d" % (sG + j, sG + j, 28 * 4096)))
                        X.append(I("buffer_load_dword v%d, v%d, %s, s%d offen offset:2048 sc1" % (D_TCH + 4, D_AT, srd(SWS), sG + j)))
                    X.append(I("s_mov_b64 exec, -1"))
                    raw(P, X); P.append(L("L_nl%d:" % lb))
        started.add(n)
        if i + 1 < len(seq) and need_at(i + 1) > checked: a("ds_read_b32 v%d, v%d" % (D_DV, D_LA), ("dn", i + 1))
        nxt = seq[i + 1][0] if i + 1 < len(seq) else 99
        if w == "F":
            assert nxt in (n + 1, 99); dma(n)
        else: part(n, w, nxt)
        parts.setdefault(n, set()).add(w)
        if parts[n] in ({"F"}, {"A", "B"}):
            assert all(parts.get(m) in ({"F"}, {"A", "B"}) for m in range(1, n))
            publish(n)
        if w == "F": do_touch(n)
    if CFG["stamps"]:
        count_wait(P, D_FL, D_DV, F_END, 4)
        stamp(62)
        a("s_memrealtime s[6:7]"); P.append(W(lg="all"))
        a("v_writelane_b32 v%d, s4, 62" % H_STAMP2); a("v_writelane_b32 v%d, s6, 63" % H_STAMP2)
        a("s_lshl_b32 s%d, s2, 8" % sT0); a("s_add_u32 s%d, s%d, %d" % (sT0, sT0, WS_ST))
        a("v_lshlrev_b32 v64, 2, v1")
        a("s_cmp_lg_u32 s%d, %d" % (sW1, CFG["stampw"] & 1)); a("s_cbranch_scc1 L_exit")
        a("buffer_store_dword v%d, v64, %s, s%d offen" % (H_STAMP, srd(SWS), sT0))
        a("s_add_u32 s%d, s%d, 0x10000" % (sT0, sT0))
        a("buffer_store_dword v%d, v64, %s, s%d offen" % (H_STAMP2, srd(SWS), sT0))
    a("s_endpgm")
    return P

A_ONE, A_ZERO, A_CM, A_CK, A_CQ, A_FL, A_RK, A_RV, A_ST, A_ZA, A_PL, A_ZL, A_OS, A_SGN = range(2, 16)
A_POLL, A_FV, A_TCH = 25, 27, 28
A_ID = 32
A_WP = 36
A_R = 16
A_ACC = 56
A_RAW = 72
A_T = 72
A_KF = 112
A_SD = 192; A_PHI = 208
A_PQ = 128
A_LD = 192
def softmax_unit(wp, kf, u, dst, Pm, R, scale_r):
    B = []; b = lambda t, tag=None: B.append(I(t, tag))
    C = A_R + 4 + u
    b("v_mfma_f32_32x32x16_bf16 %s, %s, %s, 0" % (v(Pm, 16), v(wp, 4), v(kf, 4)))
    for g in range(2): b("v_max3_f32 v%d, v%d, v%d, v%d" % (R + g, Pm + 8 * g, Pm + 8 * g + 1, Pm + 8 * g + 2))
    for g in range(2): b("v_max3_f32 v%d, v%d, v%d, v%d" % (R + 2 + g, Pm + 8 * g + 3, Pm + 8 * g + 4, Pm + 8 * g + 5))
    for g in range(2): b("v_max3_f32 v%d, v%d, v%d, v%d" % (R + g, R + g, Pm + 8 * g + 6, Pm + 8 * g + 7))
    for g in range(2): b("v_max_f32 v%d, v%d, v%d" % (R + g, R + g, R + 2 + g))
    def allred(op, mid):
        b("v_permlane32_swap_b32 v%d, v%d" % (R, R + 1))
        b("%s v%d, v%d, v%d" % (op, R, R, R + 1))
        for t in mid: b(t)
        b("v_mov_b32 v%d, v%d" % (R + 1, R))
        b("v_permlane32_swap_b32 v%d, v%d" % (R, R + 1))
    allred("v_max_f32", ["v_mul_f32 v%d, v%d, v%d" % (R, C, R)])
    for j in range(16): b("v_fma_f32 v%d, v%d, v%d, -v%d" % (Pm + j, Pm + j, C, R + j // 8))
    for j in range(16): b("v_exp_f32 v%d, v%d" % (Pm + j, Pm + j))
    if not scale_r:
        for j in range(8): b("v_cvt_pk_bf16_f32 v%d, v%d, v%d" % (dst + j, Pm + 2 * j, Pm + 2 * j + 1))
        return B
    for g in range(2):
        b("v_add_f32 v%d, v%d, v%d" % (R + g, Pm + 8 * g, Pm + 8 * g + 1)); b("v_add_f32 v%d, v%d, v%d" % (R + 2 + g, Pm + 8 * g + 2, Pm + 8 * g + 3))
    for k in (4, 6):
        for g in range(2):
            b("v_add_f32 v%d, v%d, v%d" % (R + g, R + g, Pm + 8 * g + k)); b("v_add_f32 v%d, v%d, v%d" % (R + 2 + g, R + 2 + g, Pm + 8 * g + k + 1))
    for g in range(2): b("v_add_f32 v%d, v%d, v%d" % (R + g, R + g, R + 2 + g))
    allred("v_add_f32", ["v_rcp_f32 v%d, v%d" % (R, R)] + (["v_mul_f32 v%d, v%d, v%d" % (R, R, A_R + u)] if scale_r else []))
    for j in range(16): b("v_mul_f32 v%d, v%d, v%d" % (Pm + j, Pm + j, R + j // 8))
    for j in range(8): b("v_cvt_pk_bf16_f32 v%d, v%d, v%d" % (dst + j, Pm + 2 * j, Pm + 2 * j + 1))
    return B
def zipper(x, y):
    out = []
    for i in range(max(len(x), len(y))):
        if i < len(x): out.append(x[i])
        if i < len(y): out.append(y[i])
    return out
def mprio(B):
    out = []; hi = False
    for it in B:
        m_ = isinstance(it, I) and it.t.startswith("v_mfma")
        if m_ and not hi: out.append(I("s_setprio 3")); hi = True
        if hi and not m_: out.append(I("s_setprio 0")); hi = False
        out.append(it)
    return out

def attn_setup(ty):
    P = []; b = lambda t, tag=None: P.append(I(t, tag))
    t0, t1, t2, t3, u0 = range(100, 105)
    hk, hq = sT2, sT3
    nr = 32 if CFG["map"] == 84 else 64
    b("s_lshl_b32 s%d, s%d, 6" % (sT0, sXR)); b("s_mul_i32 s%d, s%d, %d" % (sT1, sW1, nr)); b("s_add_u32 s%d, s%d, s%d" % (sT0, sT0, sT1))
    b("v_add_u32 v%d, s%d, v1" % (A_TCH + 2, sT0)); b("v_mul_u32_u24 v%d, 3072, v%d" % (A_TCH + 3, A_TCH + 2)); b("v_mul_u32_u24 v%d, 3584, v%d" % (A_TCH + 2, A_TCH + 2))
    if nr == 32: b("s_mov_b32 exec_hi, 0")
    if not CFG["ftouch"] & (1 << ty): pass
    elif ty == 0:
        for o_ in (0, 1024): b("buffer_load_dword v%d, v%d, %s, s%d offen offset:%d" % (A_POLL + 1, A_TCH + 3, srd(SQKV), sKC, o_))
    else:
        b("s_lshl_b32 s%d, s%d, 7" % (sT0, sGR)); b("buffer_load_dword v%d, v%d, %s, s%d offen" % (A_POLL + 1, A_TCH + 3, srd(SQKV), sT0))
    b("s_mov_b64 exec, -1")
    b("s_lshl_b32 s%d, s%d, 2" % (hq, sGR)); b("s_add_u32 s%d, s%d, s%d" % (hq, hq, sW1))
    b("s_add_u32 s%d, s%d, %d" % (hk, hq, 2 * ty))
    b("v_lshrrev_b32 v%d, 5, v1" % t3); b("v_and_b32 v%d, 15, v1" % t1); b("v_lshrrev_b32 v%d, 4, v1" % t0)
    b("v_lshlrev_b32 v%d, 7, v%d" % (t2, t3)); b("v_lshl_add_u32 v%d, v%d, 1, v%d" % (t2, t1, t2))
    b("s_lshl_b32 s%d, s%d, 9" % (sT0, hq))
    for hh in range(1 + ty):
        for j in range(8):
            b("buffer_load_ushort v%d, v%d, %s, s%d offen offset:%d" % (A_RAW + 8 * hh + j, t2, srd(SPHI), sT0, 1024 * hh + 32 * ((j & 3) + 8 * (j >> 2))), "wphi")
    b("v_mov_b32 v%d, 0" % A_ZERO); b("v_mov_b32 v34, 0")
    b("v_mov_b32 v%d, 1" % A_ONE); b("v_mov_b32 v%d, %d" % (A_FL, FL))
    if ty == 0:
        b("v_lshlrev_b32 v%d, 7, v1" % u0)
        b("s_add_u32 s%d, s2, s%d" % (sT0, sW1)); b("s_cmp_lg_u32 s%d, 0" % sT0); b("s_cbranch_scc1 L_noinit")
        raw(P, sum([[I("s_movk_i32 s%d, 0x%x" % (sT0, 0x2000 * k)), I("buffer_store_dword v%d, v%d, %s, s%d offen sc1" % (A_ZERO, u0, srd(SWS), sT0))] for k in range(3)], []))
        P.append(L("L_noinit:"))
    b("v_and_b32 v%d, 1, v%d" % (t2, t0)); b("v_mul_u32_u24 v%d, 0x8000, v%d" % (t2, t2)); b("v_lshl_or_b32 v%d, v%d, 16, v%d" % (A_SGN, t2, t2))
    b("s_lshl_b32 s%d, s%d, 10" % (sT0, sI)); b("v_lshlrev_b32 v%d, 9, v1" % A_CM); b("v_add_u32 v%d, s%d, v%d" % (A_CM, sT0, A_CM))
    b("v_lshl_add_u32 v%d, v1, 2, v%d" % (A_FV, A_FL))
    for k in range(8): b("ds_write_b32 v%d, v%d offset:%d" % (A_FV, A_ZERO, 256 * k))
    b("s_lshl_b32 s%d, s%d, 8" % (sT0, hk)); b("s_add_u32 s%d, s%d, 0x4000" % (sT0, sT0)); b("v_mov_b32 v%d, s%d" % (A_CK, sT0))
    b("s_lshl_b32 s%d, s%d, 8" % (sT0, hq)); b("s_add_u32 s%d, s%d, 0x4000" % (sCC, sT0))
    b("s_lshl_b32 s%d, s%d, 11" % (sT0, sW1)); b("s_add_u32 s%d, s%d, %d" % (sT0, sT0, EX))
    b("v_lshlrev_b32 v%d, 4, v1" % u0); b("v_add_u32 v%d, s%d, v%d" % (A_RK, sT0, u0))
    b("v_and_b32 v%d, 1, v1" % t2); b("v_lshlrev_b32 v%d, 9, v%d" % (A_RV, t2)); b("v_lshl_add_u32 v%d, v%d, 7, v%d" % (A_RV, t0, A_RV))
    b("v_bfe_u32 v%d, v1, 2, 2" % t2); b("v_lshl_add_u32 v%d, v%d, 4, v%d" % (A_RV, t2, A_RV))
    b("v_bfe_u32 v%d, v1, 1, 1" % t2); b("v_lshl_add_u32 v%d, v%d, 3, v%d" % (A_RV, t2, A_RV)); b("v_add_u32 v%d, s%d, v%d" % (A_RV, sT0, A_RV))
    b("s_lshl_b32 s%d, s%d, 4" % (sT0, hk)); b("s_add_u32 s%d, s%d, s%d" % (sT0, sT0, sI))
    b("s_lshl_b32 s%d, s%d, 10" % (sT1, sT0)); b("s_add_u32 s%d, s%d, %d" % (sT1, sT1, WS_KV)); b("v_add_u32 v%d, s%d, v%d" % (A_ST, sT1, u0))
    b("s_lshl_b32 s%d, s%d, 7" % (sT1, sT0)); b("s_add_u32 s%d, s%d, %d" % (sT1, sT1, WS_Z))
    b("v_lshlrev_b32 v%d, 6, v%d" % (A_ZA, t1)); b("v_lshl_add_u32 v%d, v%d, 4, v%d" % (A_ZA, t0, A_ZA)); b("v_add_u32 v%d, s%d, v%d" % (A_ZA, sT1, A_ZA))
    if ty == 0:
        b("s_lshl_b32 s%d, s%d, 1" % (sT0, sI)); b("s_add_u32 s%d, s%d, s%d" % (sT0, sT0, sW1)); b("s_and_b32 s%d, s%d, 7" % (sLD, sT0))
        b("s_lshr_b32 s%d, s%d, 3" % (sT0, sT0)); b("s_lshl_b32 s%d, s%d, 2" % (sT4, sGR)); b("s_add_u32 s%d, s%d, s%d" % (sT4, sT4, sT0))
        b("s_lshl_b32 s%d, s%d, 8" % (sT0, sT4)); b("s_add_u32 s%d, s%d, 0x4000" % (sCC, sT0)); b("v_mov_b32 v%d, s%d" % (A_CQ, sCC))
        b("s_lshl_b32 s%d, s%d, 7" % (sT5, sLD))
        b("s_lshl_b32 s%d, s%d, 14" % (sT1, sT4)); b("s_add_u32 s%d, s%d, s%d" % (sT1, sT1, sT5)); b("s_add_u32 s%d, s%d, %d" % (sT1, sT1, WS_KV))
        b("v_lshrrev_b32 v%d, 3, v1" % t2); b("v_lshlrev_b32 v%d, 10, v%d" % (A_PL, t2)); b("v_and_b32 v%d, 7, v1" % t2)
        b("v_lshl_add_u32 v%d, v%d, 4, v%d" % (A_PL, t2, A_PL)); b("v_add_u32 v%d, s%d, v%d" % (A_PL, sT1, A_PL))
        b("s_lshl_b32 s%d, s%d, 10" % (sT1, sT4)); b("s_add_u32 s%d, s%d, s%d" % (sT1, sT1, sT5)); b("s_add_u32 s%d, s%d, %d" % (sT1, sT1, WS_KVF))
        b("v_lshlrev_b32 v%d, 4, v%d" % (A_OS, t2)); b("v_lshl_add_u32 v%d, v%d, 2, v%d" % (A_OS, t3, A_OS))
        b("v_and_b32 v%d, 1, v%d" % (t2, t0)); b("v_lshl_add_u32 v%d, v%d, 3, v%d" % (A_OS, t2, A_OS)); b("v_add_u32 v%d, s%d, v%d" % (A_OS, sT1, A_OS))
        b("s_lshl_b32 s%d, s%d, 11" % (sT1, sT4)); b("s_add_u32 s%d, s%d, %d" % (sT1, sT1, WS_Z))
        b("v_lshlrev_b32 v%d, 7, v%d" % (A_ZL, t1)); b("v_lshl_add_u32 v%d, v%d, 4, v%d" % (A_ZL, t0, A_ZL)); b("v_add_u32 v%d, s%d, v%d" % (A_ZL, sT1, A_ZL))
        b("s_lshl_b32 s%d, s%d, 7" % (sT1, sT4)); b("s_add_u32 s%d, s%d, %d" % (sT1, sT1, WS_ZF))
        b("v_lshlrev_b32 v%d, 6, v%d" % (A_CM, t1)); b("v_lshl_add_u32 v%d, v%d, 4, v%d" % (A_CM, t0, A_CM)); b("v_add_u32 v%d, s%d, v%d" % (A_CM, sT1, A_CM))
        ident(b, A_ID, t1)
    if ty == 1:
        b("s_lshl_b32 s%d, s%d, 10" % (sT1, hq)); b("s_add_u32 s%d, s%d, %d" % (sT1, sT1, WS_KVF)); b("v_add_u32 v%d, s%d, v%d" % (A_PL, sT1, u0))
        b("s_lshl_b32 s%d, s%d, 7" % (sT1, hq)); b("s_add_u32 s%d, s%d, %d" % (sT1, sT1, WS_ZF))
        b("v_lshlrev_b32 v%d, 4, v%d" % (A_ZL, t0)); b("v_add_u32 v%d, s%d, v%d" % (A_ZL, sT1, A_ZL))
        b("s_mul_i32 s%d, s%d, 576" % (sT1, sI)); b("s_add_u32 s%d, s%d, s%d" % (sT1, sT1, hq)); b("s_add_u32 s%d, s%d, 112" % (sT1, sT1))
        b("s_lshl_b32 s%d, s%d, 10" % (sT1, sT1)); b("s_add_u32 s%d, s%d, %d" % (sT1, sT1, WS_HO)); b("v_add_u32 v%d, s%d, v%d" % (A_OS, sT1, u0))
    return P

def attn_wave(ty):
    P = [M(("x", 1))] + attn_setup(ty); a = lambda t, tag=None: P.append(I(t, tag))
    stamp = lambda k: stamp_to(P, k, 34)
    def signal(vaddr, off): one_lane(P, "buffer_atomic_add v%d, v%d, %s, 0 offen offset:%d sc1" % (A_ONE, vaddr, srd(SWS), off))
    def after1():
        if ty == 0:
            only(P, ["s_add_u32 s%d, s2, s%d" % (sT0, sW1), "s_cmp_lg_u32 s%d, 0" % sT0],
                 [I("buffer_store_dword v%d, v%d, %s, 0 offen sc1" % (A_ONE, A_ZERO, srd(SDBG)))])
    P.append(W(lg="all"))
    xstages(P, {1: after1})
    a("s_barrier")
    P.append(W(vm=["wphi"]))
    for hh in range(1 + ty):
        for j in range(4): a("v_lshl_or_b32 v%d, v%d, 16, v%d" % (A_WP + 4 * hh + j, A_RAW + 8 * hh + 2 * j + 1, A_RAW + 8 * hh + 2 * j))
        for j in range(4): a("v_xor_b32 v%d, v%d, v%d" % (A_WP + 4 * hh + j, A_WP + 4 * hh + j, A_SGN))
    WK = A_WP + 4 * ty
    T = A_T
    a("v_and_b32 v%d, 31, v1" % T); a("v_lshlrev_b32 v%d, 2, v%d" % (T, T)); a("v_add_u32 v%d, %d, v%d" % (T, LRS, T))
    a("v_lshrrev_b32 v%d, 4, v1" % (T + 1)); a("v_lshlrev_b32 v%d, 4, v%d" % (T + 1, T + 1)); a("v_add_u32 v%d, %d, v%d" % (T + 1, LSD, T + 1))
    count_wait(P, A_FL, A_FV, F_EX, 4)
    stamp(11)
    for u in range(4): a("ds_read_b32 v%d, v%d offset:%d" % (A_R + u, T, u * 128))
    for u in range(4): a("ds_read_b128 %s, v%d offset:%d" % (v(A_SD + 4 * u, 4), T + 1, u * 64))
    for u in range(4): a("ds_read_b128 %s, v%d offset:%d" % (v(A_KF + 4 * u, 4), A_RK, u * 8192))
    P.append(W(lg="all"))
    for u in range(4): a("v_mul_f32 v%d, s%d, v%d" % (A_R + 4 + u, sL2E, A_R + u))
    PM = (T, T + 16); RR = (T + 32, T + 36)
    def qpair(hh, pr, src=None):
        src = A_KF + 8 * pr if src is None else src
        return mprio(zipper(softmax_unit(A_WP + 4 * hh, src, 2 * pr, A_PQ + 32 * hh + 16 * pr, PM[0], RR[0], False),
                            softmax_unit(A_WP + 4 * hh, src + 4, 2 * pr + 1, A_PQ + 32 * hh + 16 * pr + 8, PM[1], RR[1], False)))
    KO = 0 if CFG["kvfirst"] else 4096 * ty
    if ty == 1 and not CFG["kvfirst"]:
        P += qpair(0, 0)
        if CFG["qpre"] == 2: P += qpair(0, 1)
        else:
            for j in range(8): a("v_mov_b32 v%d, v%d" % (A_PQ + 16 + j, A_KF + 8 + j))
        count_wait(P, A_FL, A_FV, F_EX + 4, 4)
        stamp(18)
        for u in range(4): a("ds_read_b128 %s, v%d offset:%d" % (v(A_KF + 4 * u, 4), A_RK, u * 8192 + KO))
        P.append(W(lg="all"))
    B = []; b = lambda t, tag=None: B.append(I(t, tag))
    def tail(u):
        X = []; x = lambda t, tag=None: X.append(I(t, tag))
        PHI = A_PHI + 8 * (u & 1); FR = A_PHI + 16 + 12 * (u & 1); so = (u & 1) * 16384 + KO
        for sg in range(2): x("ds_write_b128 v%d, %s offset:%d" % (A_RK, v(PHI + 4 * sg, 4), so + sg * 8192))
        for q in range(2): x("ds_read_b64_tr_b16 %s, v%d offset:%d" % (v(FR + 2 * q, 2), A_RV, u * 8192 + KO + 1024 + q * 64), ("pr", u))
        for sg in range(2):
            for q in range(2): x("ds_read_b64_tr_b16 %s, v%d offset:%d" % (v(FR + 4 + 4 * sg + 2 * q, 2), A_RV, so + sg * 8192 + q * 64), ("pr", u))
        return X
    def kvm(us):
        X = [W(lg=[("pr", us[-1])])]
        for u in us:
            FR = A_PHI + 16 + 12 * (u & 1)
            for sg in range(2):
                c = v(A_ACC + 4 * sg, 4); z = v(A_ACC + 8 + 4 * sg, 4)
                X.append(I("v_mfma_f32_16x16x32_bf16 %s, %s, %s, %s" % (c, v(FR + 4 + 4 * sg, 4), v(FR, 4), "0" if u == 0 else c)))
                X.append(I("v_mfma_f32_16x16x32_bf16 %s, %s, %s, %s" % (z, v(FR + 4 + 4 * sg, 4), v(A_SD + 4 * u, 4), "0" if u == 0 else z)))
        return X
    for pr in range(2):
        z = zipper(softmax_unit(WK, A_KF + 8 * pr, 2 * pr, A_PHI, PM[0], RR[0], True), softmax_unit(WK, A_KF + 8 * pr + 4, 2 * pr + 1, A_PHI + 8, PM[1], RR[1], True))
        t0_, t1_ = tail(2 * pr), tail(2 * pr + 1)
        if pr == 0: B += z + t0_[:2] + t1_[:2]; late = t0_[2:] + t1_[2:]
        else: B += z[:70] + late + z[70:120] + kvm((0, 1)) + z[120:] + t0_[:2] + t1_[:2] + t0_[2:] + t1_[2:]
    b("v_and_b32 v%d, 15, v1" % T); b("v_cmp_eq_u32 vcc, 1, v%d" % T)
    if ty == 1 and CFG["kvfirst"]:
        g = []; count_wait(g, A_FL, A_FV, F_EX + 4, 4); B[-2:-2] = g
        for hh in range(2):
            for u in range(4): b("ds_read_b128 %s, v%d offset:%d" % (v(A_PQ + 32 * hh + 16 * (u >> 1) + 4 * (u & 1), 4), A_RK, u * 8192 + 4096 + 1024 * hh), "qf")
    elif ty == 1:
        for u in range(4): b("ds_read_b128 %s, v%d offset:%d" % (v(A_KF + 4 * u, 4), A_RK, u * 8192 + 1024), "qf")
    one_lane(B, "ds_add_u32 v%d, v%d offset:%d" % (A_FL, A_ONE, F_EXF))
    B += kvm((2, 3))
    for j in range(4): b("v_cvt_pk_bf16_f32 v%d, v%d, v%d" % (A_ACC + j, A_ACC + 2 * j, A_ACC + 2 * j + 1))
    for j in range(4): b("v_cndmask_b32 v%d, v%d, v%d, vcc" % (A_ACC + 8 + j, A_ACC + 8 + j, A_ACC + 12 + j))
    b("buffer_store_dwordx4 %s, v%d, %s, 0 offen sc1" % (v(A_ACC, 4), A_ST, srd(SWS)), "part")
    b("s_mov_b32 exec_lo, 0x00030003"); b("s_mov_b32 exec_hi, 0x00030003")
    b("buffer_store_dwordx4 %s, v%d, %s, 0 offen sc1" % (v(A_ACC + 8, 4), A_ZA, srd(SWS)), "part"); b("s_mov_b64 exec, -1")
    P += mprio(B)
    stamp(12)
    def publish_k():
        a("ds_read_b32 v%d, v%d offset:%d" % (A_POLL, A_FL, F_INIT), "init"); gate(P, A_ZERO, SDBG, 0, "init", A_POLL, 1)
        P.append(W(vm=["part"])); signal(A_CK, 0)
        stamp(13)
    if ty == 0:
        publish_k()
        a("s_sleep %d" % CFG["l2nap"]); a(sload(SWS, sCC, 0, sG)); sgate(P, sCC, 0, sG, 16)
        stamp(14)
        LD = A_LD; S = T; Z = A_ACC
        a("buffer_load_dwordx4 %s, v%d, %s, 0 offen sc1" % (v(LD, 4), A_PL, srd(SWS))); a("s_movk_i32 s%d, 8192" % sT0)
        a("buffer_load_dwordx4 %s, v%d, %s, s%d offen sc1" % (v(LD + 4, 4), A_PL, srd(SWS), sT0))
        X = []; x = lambda t: X.append(I(t))
        x("buffer_load_dwordx4 %s, v%d, %s, 0 offen sc1" % (v(Z, 4), A_ZL, srd(SWS))); x("buffer_load_dwordx4 %s, v%d, %s, 0 offen offset:64 sc1" % (v(Z + 4, 4), A_ZL, srd(SWS)))
        x("v_and_b32 v%d, 15, v1" % S); x("v_cmp_eq_u32 vcc, 1, v%d" % S); x("s_waitcnt vmcnt(0)")
        for k in (8, 4, 2, 1):
            for j in range(8): x("v_add_f32_dpp v%d, v%d, v%d row_ror:%d row_mask:0xf bank_mask:0xf" % (Z + j, Z + j, Z + j, k))
        for j in range(4): x("v_cndmask_b32 v%d, v%d, v%d, vcc" % (Z + j, Z + j, Z + 4 + j))
        x("s_mov_b32 exec_lo, 0x00030003"); x("s_mov_b32 exec_hi, 0x00030003")
        x("buffer_store_dwordx4 %s, v%d, %s, 0 offen sc1" % (v(Z, 4), A_CM, srd(SWS))); x("s_mov_b64 exec, -1"); x("s_branch L_l2b")
        only(P, ["s_cmp_lg_u32 s%d, 0" % sLD], X)
        a("s_waitcnt vmcnt(0)"); P.append(L("L_l2b:"))
        B = []
        for t_ in range(2):
            for sg in range(2): b("v_mfma_f32_4x4x4_16b_bf16 %s, %s, %s, %s" % (v(S + 4 * sg, 4), v(A_ID, 2), v(LD + 4 * t_ + 2 * sg, 2), "0" if t_ == 0 else v(S + 4 * sg, 4)))
        for j in range(8): b("v_add_f32_dpp v%d, v%d, v%d row_ror:8 row_mask:0xf bank_mask:0xf" % (S + j, S + j, S + j))
        for j in range(4): b("v_permlane16_swap_b32 v%d, v%d" % (S + j, S + 4 + j))
        for j in range(4): b("v_add_f32 v%d, v%d, v%d" % (S + j, S + j, S + 4 + j))
        for j in range(2): b("v_permlane32_swap_b32 v%d, v%d" % (S + j, S + 2 + j))
        for j in range(2): b("v_add_f32 v%d, v%d, v%d" % (S + j, S + j, S + 2 + j))
        b("v_cvt_pk_bf16_f32 v%d, v%d, v%d" % (S, S, S + 1))
        b("s_mov_b32 exec_lo, 0x00ff00ff"); b("s_mov_b32 exec_hi, 0x00ff00ff")
        b("buffer_store_dword v%d, v%d, %s, 0 offen sc1" % (S, A_OS, srd(SWS))); b("s_mov_b64 exec, -1")
        P += mprio(B); P.append(W(vm="all")); signal(A_CQ, 128)
        stamp(15)
    else:
        P.append(W(lg=["qf"]))
        z = qpair(0, 0, A_PQ) if CFG["kvfirst"] else qpair(1, 0)
        P += z[:CFG["kpub"]]; publish_k(); P += z[CFG["kpub"]:]
        if CFG["kvfirst"]: rest = [qpair(0, 1, A_PQ + 16), qpair(1, 0, A_PQ + 32), qpair(1, 1, A_PQ + 48)]
        else: rest = ([qpair(0, 1, A_PQ + 16)] if CFG["qpre"] == 1 else []) + [qpair(1, 1)]
        for z in rest: P += z
        Z = (A_ACC, A_ACC + 8); KVA = (A_WP, A_R); S = A_KF
        def finish(hh):
            B = []; b = lambda t, tag=None: B.append(I(t, tag))
            KV = KVA[hh]; PQ = A_PQ + 32 * hh
            for sg in range(2):
                for j in range(2):
                    b("v_mov_b32 v%d, v%d" % (KV + 4 * sg + j, S + 4 * hh + 2 * sg + j))
                    b("v_cvt_pk_bf16_f32 v%d, v%d, v%d" % (KV + 4 * sg + 2 + j, Z[hh] + 4 * sg + 2 * j, Z[hh] + 4 * sg + 2 * j + 1))
            for w in ("16", "32"):
                for sg in range(2):
                    for j in range(2): b("v_permlane%s_swap_b32 v%d, v%d" % (w, KV + 4 * sg + j, KV + 4 * sg + 2 + j))
            b("s_mov_b32 exec_lo, 0xff000000"); b("s_mov_b32 exec_hi, 0xff000000")
            for j in range(8): b("v_mov_b32 v%d, 0x3f803f80" % (KV + j))
            b("s_mov_b64 exec, -1")
            buf = [A_LD + 32, A_LD]
            def mm(u):
                for sg in range(2): b("v_mfma_f32_32x32x16_bf16 %s, %s, %s, 0" % (v(buf[u & 1] + 16 * sg, 16), v(KV + 4 * sg, 4), v(PQ + 8 * u + 4 * sg, 4)))
            mm(0)
            for u in range(4):
                if u < 3: mm(u + 1)
                N = buf[u & 1]; Q = N + 16; O = PQ + 8 * u
                b("v_rcp_f32 v%d, v%d" % (N + 12, N + 12)); b("v_rcp_f32 v%d, v%d" % (Q + 12, Q + 12))
                b("v_fmaak_f32 v%d, v%d, v%d, 0x358637bd" % (N + 8, N + 8, N + 12)); b("v_fmac_f32 v%d, v%d, v%d" % (N + 8, Q + 8, Q + 12))
                b("v_rcp_f32 v%d, v%d" % (N + 8, N + 8))
                b("v_mul_f32 v%d, v%d, v%d" % (N + 12, N + 12, N + 8)); b("v_mul_f32 v%d, v%d, v%d" % (Q + 12, Q + 12, N + 8))
                for j in range(8): b("v_mul_f32 v%d, v%d, v%d" % (N + j, N + j, N + 12))
                for j in range(8): b("v_fmac_f32 v%d, v%d, v%d" % (N + j, Q + j, Q + 12))
                for j in range(4): b("v_cvt_pk_bf16_f32 v%d, v%d, v%d" % (O + j, N + 2 * j, N + 2 * j + 1))
            P.extend(mprio(B))
        def stores(hh):
            for u in range(4):
                a("s_mov_b32 s%d, %d" % (sT5, u * 147456))
                a("buffer_store_dwordx4 %s, v%d, %s, s%d offen offset:%d sc1" % (v(A_PQ + 32 * hh + 8 * u, 4), A_OS, srd(SWS), sT5, 2048 * hh), "ost")
        stamp(14)
        for hh in range(2): a(sload(SWS, sCC, 512 * hh + 128, sG + hh))
        for hh in range(2): sgate(P, sCC, 512 * hh + 128, sG + hh, 8)
        stamp(15)
        for hh in range(2):
            a("buffer_load_dwordx4 %s, v%d, %s, 0 offen offset:%d sc1" % (v(S + 4 * hh, 4), A_PL, srd(SWS), 2048 * hh))
            for sg in range(2): a("buffer_load_dwordx4 %s, v%d, %s, 0 offen offset:%d sc1" % (v(Z[hh] + 4 * sg, 4), A_ZL, srd(SWS), 256 * hh + 64 * sg))
        P.append(W(vm="all"))
        finish(0); stores(0); finish(1); stores(1)
        stamp(16)
        P.append(W(vm=["ost"]))
        a("s_mov_b64 exec, 3"); a("buffer_atomic_add v%d, v%d, %s, 0 offen offset:%d sc1" % (A_ONE, A_CM, srd(SWS), C_O * 128)); a("s_mov_b64 exec, -1")
        stamp(17)
    if CFG["stamps"]:
        a("s_lshl_b32 s%d, s2, 8" % sT0); a("s_add_u32 s%d, s%d, %d" % (sT0, sT0, WS_ST + 0x30000))
        a("v_lshlrev_b32 v64, 2, v1")
        a("s_cmp_lg_u32 s%d, %d" % (sW1, CFG["stampw"] & 1)); a("s_cbranch_scc1 L_exit")
        a("buffer_store_dword v34, v64, %s, s%d offen" % (srd(SWS), sT0))
    a("s_endpgm")
    return P

def main():
    hdr = open("cdna_kernels/%s.s.ref" % NAME).read().split("; Override launch geometry")[0]
    out = [hdr.rstrip(), "; @launch grid=(256,1,1) block=(512,1,1) lds=163840",
           '.amdgcn_target "amdgcn-amd-amdhsa--gfx950"', ".text", ".globl %s_kernel" % NAME, ".p2align 8",
           ".type %s_kernel,@function" % NAME, "%s_kernel:" % NAME]
    t, st = finalize(prologue()); out += t
    for nm, fn in (("attn", attn_wave), ("dma", dma_wave), ("comp", compute)):
        out.append("L_%s:" % nm)
        out += finalize([I("s_cmp_eq_u32 s%d, 1" % sTY), I("s_cbranch_scc1 L_%s1" % nm)] + fn(0), st.clone())[0]
        out.append("L_%s1:" % nm); out += finalize(fn(1), st.clone())[0]
    out += centre_sub() + STUBS
    out += lds_spin("c", 18, C_FV, CFG["cnap"]) + lds_spin("d", D_LA, D_DV, CFG["dnap"])
    out += ["L_exit:", "    s_endpgm", ".p2align 7", "L_tab:"] + ["    .long %d" % k for k in range(64)]
    out += ['.section .rodata,"a"', ".p2align 6", ".amdhsa_kernel %s_kernel" % NAME,
            "  .amdhsa_next_free_vgpr 256", "  .amdhsa_next_free_sgpr 100", "  .amdhsa_accum_offset 256",
            "  .amdhsa_group_segment_fixed_size 0", "  .amdhsa_kernarg_size 88", "  .amdhsa_user_sgpr_count 2",
            "  .amdhsa_user_sgpr_kernarg_segment_ptr 1", "  .amdhsa_system_sgpr_workgroup_id_x 1", ".end_amdhsa_kernel"]
    open(sys.argv[1], "w").write("\n".join(out) + "\n")
main()
```

```python
import sys, os, json
sys.path.insert(0, os.path.dirname(os.path.abspath(__file__)))
from asmir import I, W, L, M, v, s, finalize, State

NAME = "recurrent_scan__linear_kernel_hedgehog__glu_gated_bilinear__prompt"
CFG = dict(stamps=0, probe=0, probeat=-1, xprobe=0, outfl="", stampw=0, zoom=0, LA=6, LAF=5, erate=3, codepf=1, sleep=4, cnap=1, dnap=2, map=84, latin=1, cen0=32, dprio=0, hfl="sc1", cenat=4, nods=0, nost=0, noattn=0, light=0, nogate=[], qnorm=1, inl=0, tlb=0, tlbm=0xfffffff, s0at=2, kprio=0, qprio=0, fprio=0, wait2=0, kvfirst=1, l2nap=16, qpre=1, qpost=1, ftouch=0, fakeA=0, fakeP=0, dstep=1, fake16=0, lead=0, spoll=1, leadoff=0, who=[0, 2, 0, 2, 1, 3, 0, 2, 1], kpub=40, dry=0, aonly=0, map2=84, h2now=1, chk2=0,
           cap1=128, capt=160, cap2=112, capsw=20, awin=-1, pollat=2, hwait1=16, hwait2=0, nb0=56, nb1=56, ahead2=4,
           bfirst=2, p2chk=1,
           rsat=56, exw0=[], exw1=[], afirst={},
           tplan0={"7": "d0", "14": "d1 o x"}, tplan1={"10": "d0 x", "13": "d1 o"})
for a_ in sys.argv[2:]:
    k_, x_ = a_.split("="); assert k_ in CFG, k_; CFG[k_] = json.loads(x_)

WS_RS = 0x8000
WS_KV = 0x10000
WS_Z = 0x120000
WS_KVF = 0x130000; WS_ZF = 0x138000
WS_ST = 0x140000
WS_HO = 0x200000
WS_BYTES = WS_HO + 64 * 144 * 1024
C_H1A, C_H1B, C_H2, C_O = 0, 1, 2, 3
SLOT = 16384; STG = 32768; EX = 131072; FL = SLOT; LRS = FL + 2048; LSD = LRS + 512; F_INIT = 1792; LR2 = FL + 3072; LX = FL + 4096
F_LAND, F_DONE = 256, 768
F_EX, F_H, F_EXF, F_END = 32, 44, 52, 56
SX, SQKV, SPHI, SWO, SG, SU, SWD, SOUT, SDBG, SWS = 8, 12, 16, 20, 24, 28, 32, 36, 40, 44
sW, sW1, sI, sGR, sTY, sR1, sXR, sTT, sCT, sR2 = range(56, 66)
sT0, sT1, sT2, sT3, sT4, sT5 = range(66, 72)
sL2E = 72; sKC = 73; sSH = 74; sXL = 75; sKS = 76; sLA = 78; sXB = 79
sSPIN = 80; sRET = 82; sPH = 84; sTB = 88; sTM = 90; sMK = 94; sLM = 48; sLD = 49; sG = 50; sCC = 54; sPV = 55
srd = lambda b: s(b, 4)
LOG2E = 0x3fb8aa3b
XR = 128; ACC = 64; WF = 32
L_T, L_SEL, L_ID, L_SM, L_CM, L_SQ = 192, 224, 228, 232, 236, 240
L_XO, L_RR, L_C, L_SB, L_C7, L_WA, L_VA, L_VB = 124, 245, 246, 247, 248, 249, 251, 252
L_TR = 244
K_SQ, K_DL, K_RA = 16, 20, 24
H_STAMP = 255; H_STAMP2 = 254
_lbl = [0]
def newlbl():
    _lbl[0] += 1; return _lbl[0]
STUBS = []

PH = {0: [("P2", "kv", (0, 1)), ("P4", "gu", (2, 3, 0, 1)), ("P4", "gu", (0, 1, 2, 3))],
      1: [("P2", "q", (0, 1)), ("P2", "kv", (2, 3)), ("P4", "gu", (0, 1, 2, 3)), ("P2", "gu", (0, 1))]}
if CFG["kvfirst"]: PH[1][0:2] = [("P2", "kv", (0, 1)), ("P2", "q", (2, 3))]
def slabs_of(ty):
    return [(pi, k, sg) for pi, (k, e, _) in enumerate(PH[ty]) for sg in range(8 if k == "P4" else 4)]
def slot_of(n):
    return (0, 2, 3, 4, 5, 6, 7)[n % 7] if n < 20 else (8, 9, 7, 0, 2, 3, 4, 5, 6)[(n - 20) % 9]
def prev_user(n):
    p = [m for m in range(n) if slot_of(m) == slot_of(n)]
    return p[-1] if p else -1
def marked(n): return n < 20 or n % CFG["dstep"] == CFG["dstep"] - 1
def checks(ty):
    c = {0: 0, 1: 1}
    for n in range(2, CFG["nb%d" % ty], 2):
        if (CFG["chk2"] if n < 20 else CFG["p2chk"] == 2): c[n] = n + 1
        else: c[n] = n; c[n + 1] = n + 1
    return c

def stamp_to(P, k, reg=H_STAMP):
    if CFG["stamps"]:
        P.append(I("s_memtime %s" % s(sTM + 2, 2))); P.append(W(lg="all"))
        P.append(I("s_sub_u32 s%d, s%d, s%d" % (sTM + 2, sTM + 2, sTM))); P.append(I("v_writelane_b32 v%d, s%d, %d" % (reg, sTM + 2, k)))
def rstamp(P, k):
    if CFG["stamps"]:
        P.append(I("s_memrealtime s[6:7]")); stamp_to(P, k, H_STAMP2)
        P.append(I("s_sub_u32 s6, s6, s4")); P.append(I("v_writelane_b32 v%d, s6, %d" % (H_STAMP2, k + 1)))
def raw(P, items):
    for x in finalize(items)[0]: P.append(L(x))
def only(P, cond, items):
    n = newlbl()
    for t in cond: P.append(I(t))
    P.append(I("s_cbranch_scc1 L_sk%d" % n)); raw(P, items); P.append(L("L_sk%d:" % n))
def one_lane(X, t, tag=None):
    X.append(I("s_mov_b64 exec, 1")); X.append(I(t, tag)); X.append(I("s_mov_b64 exec, -1"))

def p4_voffs(a, va, vb, stride, t):
    a("v_lshrrev_b32 v%d, 3, v1" % t)
    a("v_and_b32 v%d, 2, v%d" % (t + 1, t)); a("v_lshlrev_b32 v%d, 1, v%d" % (t + 1, t + 1))
    a("v_and_b32 v%d, 7, v1" % (t + 2)); a("v_xor_b32 v%d, v%d, v%d" % (t + 2, t + 2, t + 1))
    a("v_mul_u32_u24 v%d, %d, v%d" % (t, stride, t))
    a("v_lshl_add_u32 v%d, v%d, 4, v%d" % (va, t + 2, t))
    a("v_xor_b32 v%d, 32, v%d" % (vb, va))
def p2_voffs(a, va, vb, stride, t):
    a("v_lshrrev_b32 v%d, 2, v1" % t)
    a("v_and_b32 v%d, 3, v1" % (t + 2)); a("v_lshrrev_b32 v%d, 4, v1" % (t + 1)); a("v_and_b32 v%d, 2, v%d" % (t + 1, t + 1)); a("v_xor_b32 v%d, v%d, v%d" % (t + 2, t + 2, t + 1))
    a("v_mul_u32_u24 v%d, %d, v%d" % (t, stride, t))
    a("v_lshl_add_u32 v%d, v%d, 4, v%d" % (va, t + 2, t))
    a("v_mov_b32 v%d, v%d" % (vb, va))
def ident(a, dst, t):
    a("v_and_b32 v%d, 3, v1" % t)
    a("v_and_b32 v%d, 1, v1" % (t + 1)); a("v_lshlrev_b32 v%d, 4, v%d" % (t + 1, t + 1)); a("v_mov_b32 v%d, 0x3f80" % (t + 2))
    a("v_lshlrev_b32 v%d, v%d, v%d" % (t + 1, t + 1, t + 2))
    a("v_cmp_gt_u32 vcc, 2, v%d" % t)
    a("v_cndmask_b32 v%d, 0, v%d, vcc" % (dst, t + 1)); a("v_sub_u32 v%d, v%d, v%d" % (dst + 1, t + 1, dst))

X_V = 48
def prologue():
    P = []; a = lambda t, tag=None: P.append(I(t, tag))
    a("s_cmp_ge_u32 s2, 256")
    a("s_cbranch_scc1 L_exit")
    a("s_load_dwordx2 %s, s[0:1], 0" % s(SX, 2)); a("s_load_dwordx2 %s, s[0:1], 8" % s(SQKV, 2))
    if CFG["probe"]: a("s_memrealtime s[4:5]")
    if CFG["light"]: a("s_memtime %s" % s(sTM, 2)); a("s_memrealtime s[4:5]")
    if CFG["stamps"]:
        a("s_memtime %s" % s(sTM, 2)); a("s_memrealtime s[4:5]")
    a("s_lshr_b32 s%d, s2, 3" % sSH)
    a("s_getpc_b64 %s" % s(sTB, 2)); P.append(L("L_pc:"))
    if CFG["codepf"]:
        a("s_mul_i32 s%d, s%d, 24" % (sT0, sSH))
        a("v_add_u32 v3, s%d, v0" % sT0); a("v_lshlrev_b32 v3, 7, v3"); a("v_min_u32 v3, L_tab-L_pc+252, v3")
        a("v_cmp_gt_u32 vcc, 24, v0"); a("s_and_saveexec_b64 s[48:49], vcc"); a("s_cbranch_execz L_nopf")
        P.append(L("    global_load_dword v%d, v3, %s" % (X_V + 5, s(sTB, 2))))
        P.append(L("L_nopf:")); a("s_mov_b64 exec, -1")
    a("v_lshrrev_b32 v2, 6, v0")
    a("v_and_b32 v1, 63, v0")
    a("v_readfirstlane_b32 s%d, v2" % sW)
    a("s_and_b32 s%d, s2, 7" % sT5)
    a("s_lshr_b32 s%d, s%d, 4" % (sTY, sSH))
    if CFG["map"] == 48:
        a("s_and_b32 s%d, s%d, 3" % (sT3, sSH)); a("s_lshl_b32 s%d, s%d, 1" % (sXR, sT3))
        a("s_lshr_b32 s%d, s%d, 1" % (sT2, sT5)); a("s_lshl_b32 s%d, s%d, 2" % (sT2, sT2)); a("s_add_u32 s%d, s%d, s%d" % (sI, sT2, sT3))
        a("s_lshr_b32 s%d, s%d, 2" % (sR1, sSH))
        a("s_and_b32 s%d, s%d, 1" % (sT2, sT5)); a("s_lshl_b32 s%d, s%d, 2" % (sT2, sT2)); a("s_and_b32 s%d, s%d, 3" % (sT3, sR1)); a("s_add_u32 s%d, s%d, s%d" % (sGR, sT2, sT3))
    else:
        a("s_and_b32 s%d, s%d, 7" % (sXR, sSH))
        a("s_lshr_b32 s%d, s%d, 2" % (sT2, sT5)); a("s_lshl_b32 s%d, s%d, 3" % (sT2, sT2)); a("s_add_u32 s%d, s%d, s%d" % (sI, sT2, sXR))
        a("s_lshr_b32 s%d, s%d, 3" % (sT3, sSH)); a("s_lshl_b32 s%d, s%d, 1" % (sR1, sT3))
        a("s_and_b32 s%d, s%d, 3" % (sT2, sT5)); a("s_lshl_b32 s%d, s%d, 1" % (sT2, sT2)); a("s_and_b32 s%d, s%d, 1" % (sT3, sT3)); a("s_add_u32 s%d, s%d, s%d" % (sGR, sT2, sT3))
    if CFG["latin"]: a("s_add_u32 s%d, s%d, s%d" % (sR1, sR1, sXR)); a("s_and_b32 s%d, s%d, 7" % (sR1, sR1))
    a("s_mov_b32 s%d, 2097152" % (SX + 2)); a("s_mov_b32 s%d, 0x20000" % (SX + 3))
    X = []; x = lambda t, tag=None: X.append(I(t, tag))
    x("v_lshrrev_b32 v4, 3, v1"); x("v_lshrrev_b32 v5, 4, v1"); x("v_and_b32 v6, 7, v1"); x("v_xor_b32 v5, v5, v6")
    x("v_lshlrev_b32 v4, 10, v4"); x("v_lshl_add_u32 v%d, v5, 4, v4" % X_V)
    x("v_xor_b32 v4, 64, v%d" % X_V)
    x("v_add_u32 v%d, 7168, v4" % (X_V + 1)); x("v_add_u32 v%d, 14336, v%d" % (X_V + 2, X_V)); x("v_add_u32 v%d, 21504, v4" % (X_V + 3))
    x("s_and_b32 s%d, s%d, 3" % (sT0, sW)); x("s_lshl_b32 s%d, s%d, 12" % (sXL, sT0)); x("s_add_u32 s%d, s%d, %d" % (sXL, sXL, STG))
    x("s_lshl_b32 s%d, s%d, 15" % (sT0, sT0)); x("s_lshl_b32 s%d, s%d, 17" % (sXB, sI)); x("s_add_u32 s%d, s%d, s%d" % (sXB, sXB, sT0))
    x("s_cmp_lt_u32 s%d, 4" % sW); x("s_cbranch_scc1 L_nox")
    x("s_waitcnt lgkmcnt(0)")
    xline(x, 0); xline(x, 1)
    raw(P, X); P.append(L("L_nox:"))
    if CFG["stamps"]:
        a("v_mov_b32 v%d, 0" % H_STAMP); a("v_mov_b32 v%d, 0" % H_STAMP2); P.append(W(lg="all"))
    stamp_to(P, 0, H_STAMP2)
    for b, off in ((SPHI, 16), (SWS, 80), (SG, 40), (SU, 48), (SWO, 24), (SWD, 56), (SOUT, 64), (SDBG, 72)):
        a("s_load_dwordx2 %s, s[0:1], %d" % (s(b, 2), off))
    for b, n in ((SQKV, 1572864), (SPHI, 16384), (SWO, 524288), (SG, 1835008), (SU, 1835008), (SWD, 1835008), (SOUT, 2097152), (SDBG, 256), (SWS, WS_BYTES)):
        a("s_mov_b32 s%d, %d" % (b + 2, n)); a("s_mov_b32 s%d, 0x20000" % (b + 3))
    a("s_lshl_b32 s%d, s%d, 7" % (sKC, sGR)); a("s_lshl_b32 s%d, s%d, 6" % (sT0, sTY)); a("s_add_u32 s%d, s%d, s%d" % (sKC, sKC, sT0)); a("s_add_u32 s%d, s%d, 1024" % (sKC, sKC))
    if CFG["map2"] == 48:
        a("s_lshr_b32 s%d, s%d, 2" % (sCT, sSH)); a("s_and_b32 s%d, s%d, 3" % (sT3, sSH))
        a("s_lshl_b32 s%d, s%d, 2" % (sT2, sT5)); a("s_add_u32 s%d, s%d, s%d" % (sTT, sT2, sT3))
        a("s_lshl_b32 s%d, s%d, 1" % (sT3, sT3)); a("s_add_u32 s%d, s%d, s%d" % (sR2, sT3, sCT))
    else:
        a("s_lshr_b32 s%d, s%d, 3" % (sT3, sSH)); a("s_and_b32 s%d, s%d, 1" % (sT2, sT5)); a("s_lshl_b32 s%d, s%d, 2" % (sT2, sT2)); a("s_add_u32 s%d, s%d, s%d" % (sCT, sT2, sT3))
        a("s_and_b32 s%d, s%d, 7" % (sT1, sSH)); a("s_lshr_b32 s%d, s%d, 1" % (sT2, sT5)); a("s_lshl_b32 s%d, s%d, 3" % (sT2, sT2)); a("s_add_u32 s%d, s%d, s%d" % (sTT, sT2, sT1))
        a("s_and_b32 s%d, s%d, 1" % (sT3, sT3)); a("s_lshl_b32 s%d, s%d, 1" % (sT3, sT3)); a("s_add_u32 s%d, s%d, s%d" % (sT3, sT3, sTY))
        if CFG["lead"]: a("s_mov_b32 s%d, s%d" % (sLD, sT3)); a("s_mov_b32 s%d, s%d" % (sR2, sT1))
        else: a("s_lshl_b32 s%d, s%d, 1" % (sT3, sT3)); a("s_add_u32 s%d, s%d, s%d" % (sR2, sT3, sT1))
    a("s_and_b32 s%d, s%d, 1" % (sW1, sW))
    a("s_mov_b32 s%d, 0x%x" % (sL2E, LOG2E))
    a("s_add_u32 s%d, s%d, L_tab-L_pc" % (sTB, sTB)); a("s_addc_u32 s%d, s%d, 0" % (sTB + 1, sTB + 1))
    P.append(W(lg="all"))
    a("s_cmp_lt_u32 s%d, 4" % sW); a("s_cbranch_scc1 L_comp")
    a("s_cmp_lt_u32 s%d, 6" % sW); a("s_cbranch_scc1 L_dma")
    return P

def xline(a, j):
    a("s_add_u32 s%d, s%d, %d" % (sT0, sR1, j)); a("s_and_b32 s%d, s%d, 7" % (sT0, sT0)); a("s_lshl_b32 s%d, s%d, 7" % (sT0, sT0)); a("s_add_u32 s%d, s%d, s%d" % (sT0, sT0, sXB))
    a("s_add_u32 m0, s%d, %d" % (sXL, j * 16384))
    for p in range(4): a("buffer_load_dwordx4 v%d, %s, s%d offen offset:%d lds" % (X_V + p, srd(SX), sT0, p * 1024), ("x", j))
def xstages(P, extra):
    a = lambda t, tag=None: P.append(I(t, tag))
    xline(a, 2); xline(a, 3)
    for j in range(4):
        P.append(W(vm=[("x", 2 * j + 1)]))
        a("s_barrier")
        if j == 0: stamp_to(P, 2, H_STAMP2)
        if j < 2: xline(a, 2 * j + 4); xline(a, 2 * j + 5)
        if j in extra: extra[j]()

def fcols(a, ty):
    if ty == 0:
        a("s_lshl_b32 s%d, s%d, 7" % (sKS, sGR)); a("s_add_u32 s%d, s%d, 64" % (sKS + 1, sKS))
    else:
        a("s_mul_i32 s%d, s%d, 96" % (sT0, sGR)); a("s_add_u32 s%d, s%d, 1024" % (sT0, sT0))
        a("s_and_b32 s%d, s%d, 1" % (sT1, sGR)); a("s_lshl_b32 s%d, s%d, 5" % (sT2, sT1))
        a("s_add_u32 s%d, s%d, s%d" % (sKS, sT0, sT2))
        a("s_xor_b32 s%d, s%d, 1" % (sT1, sT1)); a("s_lshl_b32 s%d, s%d, 6" % (sT1, sT1))
        a("s_add_u32 s%d, s%d, s%d" % (sKS + 1, sT0, sT1))

def clear_low(a, used):
    for k in range(2, 64):
        if k not in used: a("v_mov_b32 v%d, 0" % k)

def lds_spin(nm, va, vd, nap):
    X = ["L_spin_%s:" % nm, "    s_mov_b32 s%d, 0" % sSPIN, "L_spl_%s:" % nm]
    if nap: X.append("    s_sleep %d" % nap)
    X += ["    ds_read_b32 v%d, v%d" % (vd, va), "    s_add_u32 s%d, s%d, 1" % (sSPIN, sSPIN), "    s_waitcnt lgkmcnt(0)",
          "    s_cmp_ge_u32 s%d, 0x1000000" % sSPIN, "    s_cbranch_scc1 L_spr_%s" % nm,
          "    v_cmp_gt_u32 vcc, s%d, v%d" % (sSPIN + 1, vd), "    s_cbranch_vccnz L_spl_%s" % nm, "L_spr_%s:" % nm, "    s_setpc_b64 %s" % s(sRET, 2)]
    return X
def count_wait(P, vfl, vd, off, want):
    n = newlbl()
    P.append(W(lg="all"))
    for t in ["    s_mov_b32 s%d, 0" % sSPIN, "L_cw%d:" % n, "    ds_read_b32 v%d, v%d offset:%d" % (vd, vfl, off), "    s_add_u32 s%d, s%d, 1" % (sSPIN, sSPIN),
              "    s_waitcnt lgkmcnt(0)", "    v_cmp_le_u32 vcc, %d, v%d" % (want, vd), "    s_cbranch_vccnz L_cx%d" % n, "    s_sleep %d" % CFG["dnap"],
              "    s_cmp_lt_u32 s%d, 0x1000000" % sSPIN, "    s_cbranch_scc1 L_cw%d" % n, "L_cx%d:" % n]: P.append(L(t))

def sload(base, soff, off, sdst):
    return "s_load_dword s%d, %s, %s glc" % (sdst, s(base, 2), ("s%d offset:%d" % (soff, off)) if soff is not None else "%d" % off)
def sgate(P, soff, off, sdst, want, base=None):
    n = newlbl()
    P.append(W(lg="all"))
    P.append(I("s_cmp_eq_u32 s%d, %d" % (sdst, want))); P.append(I("s_cbranch_scc1 L_ok%d" % n))
    X = ["    s_mov_b32 s%d, 0" % sSPIN, "L_spin%d:" % n]
    if CFG["sleep"]: X.append("    s_sleep %d" % CFG["sleep"])
    X += ["    " + sload(SWS if base is None else base, soff, off, sdst), "    s_add_u32 s%d, s%d, 1" % (sSPIN, sSPIN),
          "    s_waitcnt lgkmcnt(0)", "    s_cmp_eq_u32 s%d, %d" % (sdst, want), "    s_cbranch_scc1 L_ok%d" % n,
          "    s_cmp_lt_u32 s%d, 0x80000" % sSPIN, "    s_cbranch_scc1 L_spin%d" % n, "L_ok%d:" % n]
    for t in X: P.append(L(t))

def gate(P, vaddr, srdb, off, tag, vdst, want, slow=None):
    n = newlbl()
    P.append(W(lg=[tag]) if tag == "init" else W(vm=[tag]))
    P.append(I("v_cmp_eq_u32 vcc, %d, v%d" % (want, vdst)))
    P.append(I("s_cbranch_vccnz L_ok%d" % n))
    if slow: raw(P, slow)
    X = ["    s_mov_b32 s%d, 0" % sSPIN, "L_spin%d:" % n]
    if CFG["sleep"]: X.append("    s_sleep %d" % CFG["sleep"])
    X += ["    buffer_load_dword v%d, v%d, %s, 0 offen offset:%d sc1" % (vdst, vaddr, srd(srdb), off), "    s_add_u32 s%d, s%d, 1" % (sSPIN, sSPIN),
          "    s_waitcnt vmcnt(0)", "    v_cmp_eq_u32 vcc, %d, v%d" % (want, vdst), "    s_cbranch_vccnz L_ok%d" % n,
          "    s_cmp_lt_u32 s%d, 0x80000" % sSPIN, "    s_cbranch_scc1 L_spin%d" % n, "L_ok%d:" % n]
    for t in X: P.append(L(t))

C_XA, N_ONES, N_SQ = ACC + 16, ACC + 20, ACC + 24
N_T, N_CM, N_ID, N_R, N_DL, N_TK = ACC + 32, ACC + 48, ACC + 56, ACC + 58, ACC + 62, ACC + 63
C_A2, C_B2, C_OUT, C_RO = 25, 28, 31, 0
C_FV, C_HC, C_FL, C_ONE, C_DV, C_CM = 16, 20, 21, 22, 23, 24
MM = "v_mfma_f32_16x16x32_bf16"
def compute_setup(ty):
    P = []; a = lambda t, tag=None: P.append(I(t, tag))
    t = list(range(32, 48))
    tk, G, r, c, g0, g1 = t[0:6]
    a("v_and_b32 v%d, 15, v1" % tk); a("v_lshrrev_b32 v%d, 4, v1" % G); a("v_and_b32 v%d, 1, v%d" % (g0, G)); a("v_lshrrev_b32 v%d, 5, v1" % g1)
    a("s_lshl_b32 s%d, s%d, 12" % (sT1, sW)); a("s_add_u32 s%d, s%d, %d" % (sT1, sT1, STG))
    a("v_lshlrev_b32 v%d, 7, v%d" % (t[6], tk)); a("v_add_u32 v%d, s%d, v%d" % (t[7], sT1, t[6]))
    a("v_lshrrev_b32 v%d, 1, v%d" % (t[8], tk)); a("v_xor_b32 v%d, v%d, v%d" % (t[8], t[8], G))
    a("v_lshl_add_u32 v%d, v%d, 4, v%d" % (C_XA, t[8], t[7])); a("v_xor_b32 v%d, 64, v%d" % (C_XA + 1, C_XA))
    for k in range(2): a("v_add_u32 v%d, 0x10000, v%d" % (C_XA + 2 + k, C_XA + k)); a("v_mov_b32 v%d, 0x3f803f80" % (N_ONES + k))
    ident(a, N_ID, t[13])
    for j in range(3): a("v_cmp_eq_u32 %s, %d, v%d" % (s(sMK + 2 * j, 2), j + 1, t[13]))
    a("v_mov_b32 v%d, %d" % (C_FL, FL)); a("v_mov_b32 v%d, 1" % C_ONE); a("s_lshl_b32 s%d, s%d, 1" % (sT4, sI)); a("s_lshr_b32 s%d, s%d, 1" % (sT3, sW)); a("s_add_u32 s%d, s%d, s%d" % (sT4, sT4, sT3))
    a("s_lshl_b32 s%d, s%d, 9" % (sT4, sT4)); a("v_mov_b32 v%d, s%d" % (C_CM, sT4))
    a("v_and_b32 v18, 1, v1"); a("v_lshlrev_b32 v18, 8, v18"); a("v_add_u32 v18, %d, v18" % (FL + F_LAND))
    a("s_lshl_b32 s%d, s%d, 8" % (sT4, sW)); a("s_add_u32 m0, s%d, %d" % (sT4, FL + F_DONE))
    a("s_lshl_b32 s%d, s%d, 5" % (sT4, sW)); a("v_and_b32 v%d, 31, v1" % N_TK); a("v_add_u32 v%d, s%d, v%d" % (N_TK, sT4, N_TK))
    a("v_bfe_u32 v%d, v1, 2, 2" % r); a("v_and_b32 v%d, 3, v1" % c); a("v_lshlrev_b32 v%d, 3, v%d" % (c, c))
    a("v_lshl_add_u32 v%d, v%d, 11, v%d" % (t[8], G, c)); a("v_lshl_add_u32 v%d, v%d, 7, v%d" % (t[8], r, t[8]))
    a("v_and_b32 v%d, 2, v%d" % (t[9], r)); a("v_xor_b32 v%d, v%d, v%d" % (t[9], t[9], g0))
    a("v_lshl_add_u32 v2, v%d, 5, v%d" % (t[9], t[8]))
    for k in range(1, 4): a("v_xor_b32 v%d, %d, v2" % (2 + k, 32 * k))
    for k in range(4): a("v_add_u32 v%d, 0x10000, v%d" % (6 + k, 2 + k))
    a("v_lshl_add_u32 v%d, v%d, 11, v%d" % (t[8], g1, c)); a("v_lshl_add_u32 v%d, v%d, 6, v%d" % (t[8], r, t[8]))
    a("v_mul_u32_u24 v%d, 544, v%d" % (t[9], g0)); a("v_add_u32 v10, v%d, v%d" % (t[8], t[9])); a("v_xor_b32 v11, 32, v10")
    for k in range(2): a("v_add_u32 v%d, 0x10000, v%d" % (12 + k, 10 + k))
    a("s_lshl_b32 s%d, s%d, 13" % (sT0, sW)); a("s_add_u32 s%d, s%d, %d" % (sT0, sT0, EX))
    a("v_lshlrev_b32 v15, 9, v%d" % g0); a("v_lshl_add_u32 v15, v%d, 4, v15" % tk); a("v_lshl_add_u32 v15, v%d, 3, v15" % g1); a("v_add_u32 v15, s%d, v15" % sT0)
    a("v_lshlrev_b32 v%d, 4, v1" % t[11])
    a("s_lshl_b32 s%d, s%d, 2" % (sT0, sI)); a("s_add_u32 s%d, s%d, s%d" % (sT0, sT0, sW)); a("s_mul_i32 s%d, s%d, %d" % (sT0, sT0, 147456))
    a("s_add_u32 s%d, s%d, %d" % (sT0, sT0, WS_HO)); a("v_add_u32 v14, s%d, v%d" % (sT0, t[11]))
    fcols(a, ty)
    a("s_lshl_b32 s%d, s%d, 6" % (sKS, sKS)); a("s_lshl_b32 s%d, s%d, 6" % (sKS + 1, sKS + 1))
    a("s_lshr_b32 s%d, s%d, 1" % (sT0, sW))
    a("s_lshl_b32 s%d, s%d, 13" % (sT2, sT0)); a("s_add_u32 s%d, s%d, 2048" % (sT2, sT2))
    a("v_add_u32 v%d, s%d, v%d" % (C_A2, sT2, t[11])); a("v_add_u32 v%d, 0x10000, v%d" % (C_A2 + 1, C_A2)); a("v_add_u32 v%d, 0x20000, v%d" % (C_A2 + 2, C_A2))
    u = t[12]
    a("v_bfe_u32 v%d, v1, 3, 2" % u); a("s_lshl_b32 s%d, s%d, 1" % (sT4, sW1)); a("v_xor_b32 v%d, s%d, v%d" % (u, sT4, u)); a("v_lshl_add_u32 v%d, v%d, 5, v%d" % (C_B2, u, c))
    a("v_lshrrev_b32 v%d, 2, v1" % u); a("v_lshl_add_u32 v%d, v%d, 7, v%d" % (C_B2, u, C_B2))
    a("v_add_u32 v%d, 0x10000, v%d" % (C_B2 + 1, C_B2)); a("v_add_u32 v%d, 0x20000, v%d" % (C_B2 + 2, C_B2))
    a("s_lshl_b32 s%d, s%d, 5" % (sT3, sT0)); a("v_add_u32 v%d, s%d, v%d" % (u, sT3, tk)); a("v_lshlrev_b32 v%d, 2, v%d" % (C_RO, u))
    a("s_lshl_b32 s%d, s%d, 6" % (sT4, sW1))
    a("v_lshlrev_b32 v17, 7, v%d" % u); a("v_lshl_add_u32 v17, v%d, 3, v17" % G); a("v_add_u32 v17, s%d, v17" % sT4)
    a("s_lshl_b32 s%d, s%d, 16" % (sT2, sTT)); a("s_lshl_b32 s%d, s%d, 7" % (sT3, sCT)); a("s_add_u32 s%d, s%d, s%d" % (sT3, sT3, sT4)); a("s_add_u32 s%d, s%d, s%d" % (sT3, sT3, sT2))
    a("v_lshlrev_b32 v%d, 10, v%d" % (u, u)); a("v_lshl_add_u32 v%d, v%d, 5, v%d" % (u, g0, u)); a("v_lshl_add_u32 v%d, v%d, 4, v%d" % (u, g1, u)); a("v_add_u32 v%d, s%d, v%d" % (C_OUT, sT3, u))
    return P

def centre(a, k0, k1):
    def cen(k, h): a("v_mfma_f32_4x4x4_16b_bf16 %s, %s, %s, %s" % (v(N_T + 8 * (k & 1) + 4 * h, 4), v(N_ID, 2), v(XR + 4 * k + 2 * h, 2), v(N_CM + 4 * (k & 1), 4)))
    cen(k0, 0); cen(k0, 1); cen(k0 + 1, 0)
    for k in range(k0, k1):
        for h in range(2):
            kn, hn = k + (h + 3) // 2, (h + 3) & 1
            if kn < k1: cen(kn, hn)
            for j in (2 * h, 2 * h + 1): a("v_cvt_pk_bf16_f32 v%d, v%d, v%d" % (XR + 4 * k + j, N_T + 8 * (k & 1) + 2 * j, N_T + 8 * (k & 1) + 2 * j + 1))
def centre_sub():
    P = []; centre(lambda t: P.append(I(t)), 0, 24); P.append(I("s_setpc_b64 %s" % s(sRET, 2)))
    return ["L_centre:"] + finalize(P)[0]
def fold4(x, p, q):
    x("v_permlane16_swap_b32 v%d, v%d" % (p, q)); x("v_add_f32 v%d, v%d, v%d" % (p, p, q))
    x("v_mov_b32 v%d, v%d" % (q, p)); x("v_permlane32_swap_b32 v%d, v%d" % (p, q)); x("v_add_f32 v%d, v%d, v%d" % (p, p, q))

def compute(ty):
    P = compute_setup(ty); a = lambda t, tag=None: P.append(I(t, tag))
    CH = checks(ty)
    ops = []; queue = []
    sl = slabs_of(ty); gu_seen = 0; ex_seen = 0
    firstuse = {}; epi = []
    def pair(acc, fa, fb2, zero):
        return ["%s %s, %s, %s, %s" % (MM, v(acc + 4 * h, 4), v(fa, 4), v(fb2 + 4 * h, 4), "0" if zero else v(acc + 4 * h, 4)) for h in range(2)]
    for n, (pi, kind, sg) in enumerate(sl):
        slot = slot_of(n); win = slot >> 2; base = (slot & 3) * SLOT
        e, tiles = PH[ty][pi][1:]
        order = tiles if sg == 0 else sorted(tiles)
        nk = 2 if kind == "P4" else 4
        last = sg == (7 if kind == "P4" else 3)
        for t in order:
            if sg == 0: firstuse[(pi, t)] = len(ops)
            for u in range(nk):
                for mat in range(2):
                    m = len(ops); fb = WF + 4 * (m & 7)
                    if kind == "P4": ar, off, dq = 2 + 4 * win + t, base + u * 8192 + mat * 1024, 512
                    else: ar, off, dq = 10 + 2 * win + (t & 1), base + u * 4096 + mat * 1024, 256
                    ops.append(dict(slab=n, reads=[("ds_read_b64_tr_b16 %s, v%d offset:%d" % (v(fb, 2), ar, off), ("f", m)),
                                                   ("ds_read_b64_tr_b16 %s, v%d offset:%d" % (v(fb + 2, 2), ar, off + dq), ("f", m))],
                                    la=CFG["LA"], mfma=pair(ACC + 16 * t + 8 * mat, fb, XR + 8 * (sg * nk + u), sg == 0 and u == 0)))
            if last:
                A = ACC + 16 * t; E = []; hold = [t]
                if e == "gu":
                    D = ACC + 16 * (t & ~1) + 8; hold = [t, t & ~1]
                    for j in range(8): E.append(I("v_mul_f32 v%d, v%d, v%d" % (A + j, A + j, A + j + 8)))
                    for j in range(4):
                        E.append(I("v_cvt_pk_bf16_f32 v%d, v%d, v%d" % (D + 4 * (j >> 1) + 2 * (t & 1) + (j & 1), A + 2 * j, A + 2 * j + 1)))
                        if t & 1 and j & 1:
                            E.append(I("buffer_store_dwordx4 %s, v14, %s, s%d offen offset:%d %s" % (v(D + 4 * (j >> 1), 4), srd(SWS), sKS + gu_seen, (t - 1 + (j >> 1)) * 1024, CFG["hfl"]), ("h", gu_seen)))
                else:
                    for j in range(4):
                        for k in range(2): E.append(I("v_cvt_pk_bf16_f32 v%d, v%d, v%d" % (A + 4 * j + k, A + 4 * j + 2 * k, A + 4 * j + 2 * k + 1)))
                        E.append(I("ds_write_b64 v15, %s offset:%d" % (v(A + 4 * j, 2), t * 2048 + (j >> 1) * 1024 + (j & 1) * 256)))
                    if t == order[-1]:
                        g = []; one_lane(g, "ds_add_u32 v%d, v%d offset:%d" % (C_FL, C_ONE, F_EX + 4 * ex_seen)); E.append(g); ex_seen += 1
                if CFG["nods"]: E = [x_ for x_ in E if not (isinstance(x_, I) and x_.t.startswith("ds_write"))]
                if CFG["nost"]: E = [(M(x_.tag) if isinstance(x_, I) and x_.t.startswith("buffer_store") else x_) for x_ in E]
                epi.append((len(ops), pi, hold, E))
        if last and e == "gu":
            kind_ = (C_H1B if ty else C_H1A) if gu_seen == 0 else C_H2
            g1 = [W(vm=[("h", gu_seen)])]; one_lane(g1, "buffer_atomic_add v%d, v%d, %s, 0 offen offset:%d sc1" % (C_ONE, C_CM, srd(SWS), kind_ * 128))
            epi.append((len(ops) + 6 + CFG["hwait1" if gu_seen == 0 else "hwait2"], 99, [], [g1]))
            gu_seen += 1
    n1 = len(ops)
    HB = XR; RES = XR + 32; R2 = XR + 40
    Y, S_ = (ACC + 32, ACC + 48) if ty == 1 else (XR + 48, XR + 64)
    for n in range(20, 56):
        slot = slot_of(n); win = slot >> 2; base = (slot & 3) * SLOT
        for kk in range(4):
            u, nb = kk >> 1, kk & 1
            m = len(ops); fb = WF + 4 * (m & 7); hb = HB + 8 * ((m >> 1) & 3); br = (2 if nb else C_B2) + win
            blk = (lambda q: 2 * u + q) if n < 48 else (lambda q: u + 2 * q)
            rd = [("ds_read_b64_tr_b16 %s, v%d offset:%d" % (v(fb + 2 * q, 2), br, base + blk(q) * 4096), ("f", m)) for q in range(2)]
            if not nb: rd += [("ds_read_b128 %s, v%d offset:%d" % (v(hb + 4 * h, 4), C_A2 + win, base + u * 4096 + h * 1024), ("f", m)) for h in range(2)]
            ops.append(dict(slab=n, reads=rd, la=4 if n > 20 else kk + 1, mfma=pair((Y if n < 48 else S_) + 8 * nb, fb, hb, n in (20, 48) and u == 0)))
    for k in range(3): queue.append((n1 - 3, n1 - 1, I("v_xor_b32 v%d, 32, v%d" % (2 + k, C_B2 + k))))
    X = []; x = lambda t: X.append(I(t)); r = N_R
    fold4(x, r, r + 1)
    x("v_mul_f32 v%d, 0x3b000000, v%d" % (r, r)); x("v_fma_f32 v%d, -v%d, v%d, v%d" % (r, N_DL, N_DL, r)); x("v_max_f32 v%d, 0, v%d" % (r, r))
    def rnd(): x("v_cvt_pk_bf16_f32 v%d, v%d, v%d" % (r + 1, r, r)); x("v_and_b32 v%d, 0xffff0000, v%d" % (r, r + 1))
    rnd(); x("v_add_f32 v%d, 0x3727c5ac, v%d" % (r, r)); rnd(); x("v_sqrt_f32 v%d, v%d" % (r, r)); rnd()
    x("v_rcp_f32 v%d, v%d" % (r, r))
    x("v_lshl_add_u32 v%d, v%d, 1, v%d" % (r + 2, N_TK, C_FL)); x("v_lshl_add_u32 v%d, v%d, 2, v%d" % (r + 3, N_TK, C_FL))
    x("ds_write_b16 v%d, v%d offset:%d" % (r + 2, r + 1, LSD - FL)); x("ds_write_b32 v%d, v%d offset:%d" % (r + 3, r, LRS - FL))
    for j, it in enumerate(X[:-2]): queue.append((12 + j, 50, it))
    for it in X[-2:]:
        if not CFG["nods"]: queue.append((CFG["rsat"], 60, it))
    if ty == 0:
        g = []
        only(g, ["s_cmp_lg_u32 s%d, 0" % sGR], [I("s_lshl_b32 s%d, s%d, 9" % (sT4, sI)), I("s_add_u32 s%d, s%d, %d" % (sT4, sT4, WS_RS - FL)), I("s_mov_b32 exec_hi, 0"),
                                               I("buffer_store_dword v%d, v%d, %s, s%d offen sc1" % (r, r + 3, srd(SWS), sT4)), I("s_mov_b64 exec, -1")])
        queue.append((46, 60, g))
    queue.append((158, 160, I("ds_read_b32 v%d, v%d offset:%d" % (C_HC, C_FL, F_INIT), "init")))
    g = []; gate(g, C_DV, SDBG, 0, "init", C_HC, 1, slow=[I("v_mov_b32 v%d, 0" % C_DV)]); queue.append((164, 166, g))
    for e0, pi, hold, E in epi:
        dl = min([x_ for (p2, t2), x_ in firstuse.items() if p2 > pi and t2 in hold] + [10 ** 9]) - 1
        for it in E: queue.append((e0, dl, it))
    G = XR + 80; XF = XR + 96; E = []
    for j in range(4): E.append(I("ds_read_b64 %s, v17 offset:%d" % (v(RES + 2 * j, 2), LX + (j >> 1) * 32 + (j & 1) * 2048), "res"))
    for h in range(2): E.append(I("ds_read_b32 v%d, v%d offset:%d" % (R2 + h, C_RO, LR2 + 64 * h), "res"))
    for j, it in enumerate(E): queue.append((n1 + 21 * 4 + j, 10 ** 9, it))
    E = [W(lg=["res"])]
    for h in range(2): E.append(I("v_mul_f32 v%d, v%d, v%d" % (R2 + h, R2 + h, R2 + h)))
    for h in range(2): E.append(I("v_mul_f32 v%d, s%d, v%d" % (R2 + 2 + h, sL2E, R2 + h)))
    for j in range(8):
        E.append(I("v_lshlrev_b32 v%d, 16, v%d" % (XF + 2 * j, RES + j))); E.append(I("v_and_b32 v%d, 0xffff0000, v%d" % (XF + 2 * j + 1, RES + j)))
    for it in E: queue.append((n1 + 24 * 4, 10 ** 9, it))
    E = []
    for j in range(16): E.append(I("v_mul_f32 v%d, v%d, v%d" % (G + j, R2 + 2 + ((j >> 2) & 1), Y + j)))
    for j in range(16): E.append(I("v_exp_f32 v%d, -v%d" % (G + j, G + j)))
    for j in range(16): E.append(I("v_mul_f32 v%d, v%d, v%d" % (Y + j, R2 + ((j >> 2) & 1), Y + j)))
    for j in range(16): E.append(I("v_add_f32 v%d, 1.0, v%d" % (G + j, G + j)))
    for j in range(16): E.append(I("v_rcp_f32 v%d, v%d" % (G + j, G + j)))
    for j in range(16): E.append(I("v_mul_f32 v%d, v%d, v%d" % (G + j, G + j, Y + j)))
    for it in E: queue.append((n1 + 28 * 4 + 1, 10 ** 9, it))
    queue.sort(key=lambda x_: x_[0])
    first = {}
    for m, o in enumerate(ops): first.setdefault(o["slab"], m)
    fread = {first[n] - ops[first[n]]["la"] - (CFG["LAF"] if n <= 20 else 3): n for n in CH if n}
    lastdone = prev_user(55)
    def done(n):
        a("v_mov_b32 v%d, %d" % (C_DV, 4 * (n + 1))); a("global_load_lds_dword v%d, %s" % (C_DV, s(sTB, 2)))
    issued = 0; cur = -1
    def issue_reads(upto_fn):
        nonlocal issued, cur
        while issued < len(ops) and upto_fn(issued):
            o = ops[issued]
            if o["slab"] > cur:
                cur = o["slab"]
                if cur in CH:
                    lb = newlbl()
                    if cur >= CFG["inl"] or cur < 2:
                        a("s_cbranch_vccz L_cb%d" % lb)
                        raw(P, [I("s_movk_i32 s%d, %d" % (sSPIN + 1, CH[cur] + 1)), I("s_call_b64 %s, L_spin_c" % s(sRET, 2))]); P.append(L("L_cb%d:" % lb))
                    else:
                        a("s_cbranch_vccnz L_cs%d" % lb); P.append(L("L_cb%d:" % lb))
                        STUBS.extend(["L_cs%d:" % lb, "    s_movk_i32 s%d, %d" % (sSPIN + 1, CH[cur] + 1),
                                  "    s_call_b64 %s, L_spin_c" % s(sRET, 2), "    s_branch L_cb%d" % lb])
            for t, tag in o["reads"]: a(t, tag)
            issued += 1
    def cstamp(k):
        r = sPH + 2 * (k & 1)
        if k > 2:
            a("s_sub_u32 s%d, s%d, s%d" % (r, r, sTM)); a("v_writelane_b32 v19, s%d, %d" % (r, k - 2))
        P.append(L("    s_memtime %s" % s(r, 2)))
    SM = ACC
    a("s_mov_b32 s%d, 0" % (sSPIN + 1)); a("s_call_b64 %s, L_spin_c" % s(sRET, 2))
    for j in range(4):
        a("s_barrier")
        for k in range(8 * j, 8 * j + 8):
            a("ds_read_b128 %s, v%d offset:%d" % (v(XR + 4 * k, 4), C_XA + ((k >> 1) & 1) + 2 * (k >> 4), ((k >> 2) & 3) * 16384 + (k & 1) * 2048), ("xn", k))
        for k in range(8 * j, 8 * j + 8, 2):
            P.append(W(lg=[("xn", k + 1)]))
            if k == 30: a("s_barrier")
            for h in range(2):
                for sq in range(2):
                    for t in range(2):
                        xx = v(XR + 4 * (k + t) + 2 * h, 2); c = v((N_SQ if sq else SM) + 4 * t, 4)
                        a("v_mfma_f32_4x4x4_16b_bf16 %s, %s, %s, %s" % (c, xx if sq else v(N_ONES, 2), xx, "0" if (k, h) == (0, 0) else c))
    a("s_waitcnt vmcnt(0)")
    fold4(a, SM, SM + 4)
    a("v_mul_f32 v%d, 0xbb000000, v%d" % (N_DL, SM))
    a("v_cvt_pk_bf16_f32 v%d, v%d, v%d" % (SM, N_DL, N_DL)); a("v_mov_b32 v%d, v%d" % (SM + 1, SM)); a("v_permlane16_swap_b32 v%d, v%d" % (SM, SM + 1))
    for j in range(8): a("v_and_b32 v%d, 0xffff0000, v%d" % (N_CM + j, SM + (j >> 2)))
    if CFG["stamps"]: a("v_mov_b32 v19, 0"); stamp_to(P, 59, 19)
    c0 = CFG["cen0"]
    if c0 == 32: a("s_nop 1"); a("s_call_b64 %s, L_centre" % s(sRET, 2))
    elif c0 > 8: centre(a, 0, c0 - 8)
    stamp_to(P, 60, 19)
    a("ds_read_b32 v%d, v18" % C_FV, ("fl", 0))
    for j in range(3):
        for h in range(2): a("v_cndmask_b32 v%d, v%d, v%d, %s" % (N_R + h, N_R + h if j else N_SQ + 4 * h, N_SQ + 4 * h + j + 1, s(sMK + 2 * j, 2)))
    centre(a, c0 - 8, c0 - 4)
    P.append(W(lg=[("fl", 0)])); a("v_cmp_ge_u32 vcc, 0, v%d" % C_FV)
    issue_reads(lambda m: m < CFG["LA"])
    centre(a, c0 - 4, c0)
    stamp_to(P, 61, 19)
    qi = 0
    for m, o in enumerate(ops):
        w2 = CFG["wait2"] and m < n1
        if not w2: P.append(W(lg=[("f", m)]))
        elif m % 2 == 0: P.append(W(lg=[("f", m + 1)]))
        a(o["mfma"][0]); at = len(P)
        if m == n1 - 1: a(o["mfma"][1])
        if m + 1 < len(ops) and ops[m + 1]["slab"] != o["slab"] and o["slab"] <= lastdone + 1 and marked(o["slab"]): done(o["slab"])
        LP = [0, 64, 192, n1 - 1, n1 + 32, n1 + 112]
        if CFG["light"] and m in LP:
            P.append(L("    s_memtime %s" % s(12 + 4 * LP.index(m), 2))); P.append(L("    s_memrealtime %s" % s(14 + 4 * LP.index(m), 2)))
        if CFG["probe"] and m == CFG["probeat"]: P.append(L("    s_memrealtime s[6:7]"))
        if m == n1 - 1:
            while queue[qi][0] <= n1 + 1:
                it = queue[qi][2]; P += it if isinstance(it, list) else [it]; qi += 1
        issue_reads(lambda k: k - ops[k]["la"] <= m)
        for n in range(1, 56):
            d = m - (first[n] - ops[first[n]]["la"])
            if d == -1 and n in CH:
                P.append(W(lg=[("fl", n)])); a("v_cmp_ge_u32 vcc, %d, v%d" % (CH[n], C_FV))
            if d == (2 if n <= 20 else 0) and CFG["stamps"] and not CFG["zoom"]: cstamp(n)
            if CFG["zoom"] and m == CFG["zoom"] + n: cstamp(n)
        if m in fread: a("ds_read_b32 v%d, v18" % C_FV, ("fl", fread[m]))
        rate = CFG["erate"] if m < n1 else 5
        cnt = 0
        while qi < len(queue) and queue[qi][0] <= m and cnt < rate:
            assert m <= queue[qi][1], ("filler past its deadline", ty, m, queue[qi][1])
            it = queue[qi][2]
            if isinstance(it, list): P += it; cnt += 2
            else: P.append(it)
            qi += 1; cnt += 1
        if m != n1 - 1:
            mid = P[at:]; k = 0
            while k < (len(mid) + 1) // 2 and isinstance(mid[k], I) and not mid[k].t.startswith("s_"): k += 1
            P.insert(at + k, I(o["mfma"][1]))
        if m % 16 == CFG["cenat"] and c0 + m // 16 * 8 < 32: centre(a, c0 + m // 16 * 8, c0 + m // 16 * 8 + 8)
    assert qi == len(queue)
    for j in range(16): a("v_fma_f32 v%d, v%d, v%d, v%d" % (G + j, S_ + j, G + j, XF + j))
    for j in range(8): a("v_cvt_pk_bf16_f32 v%d, v%d, v%d" % (XF + 4 * ((j >> 1) & 1) + 2 * (j >> 2) + (j & 1), G + 2 * j, G + 2 * j + 1))
    for h in range(2):
        for i in range(2): a("v_permlane16_swap_b32 v%d, v%d" % (XF + 4 * h + i, XF + 4 * h + 2 + i))
    if CFG["probe"]:
        lb = newlbl()
        if CFG["probeat"] < 0: a("s_memrealtime s[6:7]")
        P.append(W(lg="all")); a("s_sub_u32 s6, s6, s4")
        a("s_cmp_le_u32 s6, %d" % CFG["probe"]); a("s_cbranch_scc1 L_xp%d" % lb)
        for _ in range(6): a("s_sleep 127")
        P.append(L("L_xp%d:" % lb))
    a("s_movk_i32 s%d, 16384" % sT0)
    a("buffer_store_dwordx4 %s, v%d, %s, 0 offen%s" % (v(XF, 4), C_OUT, srd(SOUT), CFG["outfl"]))
    a("buffer_store_dwordx4 %s, v%d, %s, s%d offen%s" % (v(XF + 4, 4), C_OUT, srd(SOUT), sT0, CFG["outfl"]))
    if CFG["light"]:
        a("s_waitcnt vmcnt(0)"); a("s_memtime s[84:85]"); a("s_memrealtime s[86:87]"); P.append(W(lg="all")); a("v_mov_b32 v19, 0")
        for j, r_ in enumerate([sTM, 4] + list(range(12, 36, 2)) + [84, 86]): a("v_writelane_b32 v19, s%d, %d" % (r_, j))
        a("s_lshl_b32 s%d, s2, 10" % sT0); a("s_lshl_b32 s%d, s%d, 8" % (sT1, sW)); a("s_add_u32 s%d, s%d, s%d" % (sT0, sT0, sT1)); a("s_add_u32 s%d, s%d, %d" % (sT0, sT0, WS_ST))
        a("v_lshlrev_b32 v18, 2, v1"); a("buffer_store_dword v19, v18, %s, s%d offen" % (srd(SWS), sT0))
    if CFG["stamps"]:
        one_lane(P, "ds_add_u32 v%d, v%d offset:%d" % (C_FL, C_ONE, F_END))
        cstamp(56); cstamp(57); P.append(W(lg="all")); cstamp(58)
        a("s_lshl_b32 s%d, s2, 8" % sT0); a("s_add_u32 s%d, s%d, %d" % (sT0, sT0, WS_ST + 0x20000))
        a("v_lshlrev_b32 v18, 2, v1")
        a("s_cmp_lg_u32 s%d, %d" % (sW, CFG["stampw"])); a("s_cbranch_scc1 L_exit")
        a("buffer_store_dword v19, v18, %s, s%d offen" % (srd(SWS), sT0))
    a("s_endpgm")
    return P

D_P = 32
D_A, D_B, D_B2, D_TAB, D_FL, D_LA, D_ONE, D_ZERO, D_CC, D_POLL, D_LV = range(2, 13)
D_AT, D_POLL2, D_X, D_R = 13, 14, 15, 16
D_DV = 28
D_TCH = 20
def phase_info(ty):
    return [(kind, 3584, SG, SU) if e == "gu" else (kind, 3072, SQKV, SQKV) for kind, e, _ in PH[ty]]
def dma_setup(ty):
    P = []; b = lambda t, tag=None: P.append(I(t, tag))
    t0, t1, t2, t3, u0, u1, u2 = range(64, 71)
    b("v_mov_b32 v%d, 0" % D_ZERO); b("v_mov_b32 v%d, 0" % D_TAB)
    b("v_mov_b32 v%d, 1" % D_ONE); b("v_mov_b32 v%d, %d" % (D_FL, FL))
    b("v_and_b32 v%d, 3, v1" % D_LA); b("v_lshlrev_b32 v%d, 8, v%d" % (D_LA, D_LA)); b("v_add_u32 v%d, %d, v%d" % (D_LA, FL + F_DONE, D_LA))
    b("s_lshl_b32 s%d, s%d, 8" % (sLM, sW1)); b("s_add_u32 s%d, s%d, %d" % (sLM, sLM, FL + F_LAND))
    b("s_lshl_b32 s%d, s%d, 9" % (sCC, sTT)); b("v_mov_b32 v%d, s%d" % (D_CC, sCC))
    b("s_lshl_b32 s%d, s%d, 1" % (sT0, sTT)); b("s_add_u32 s%d, s%d, s%d" % (sT0, sT0, sW1))
    b("s_mul_i32 s%d, s%d, 147456" % (sT0, sT0)); b("s_add_u32 s%d, s%d, %d" % (sT0, sT0, WS_HO - 2048))
    if CFG["fakeA"]: b("s_lshr_b32 s%d, s%d, 3" % (sT0, sI)); b("s_lshl_b32 s%d, s%d, 20" % (sT0, sT0)); b("s_lshl_b32 s%d, s%d, 18" % (sT1, sW1)); b("s_add_u32 s%d, s%d, s%d" % (sT0, sT0, sT1))
    b("v_lshlrev_b32 v%d, 4, v1" % u0); b("v_add_u32 v%d, s%d, v%d" % (D_A, sT0, u0))
    b("v_lshlrev_b32 v%d, 7, v1" % u0); b("v_add_u32 v%d, s%d, v%d" % (D_AT, sT0, u0))
    b("v_lshrrev_b32 v%d, 3, v1" % u0); b("v_and_b32 v%d, 6, v%d" % (u1, u0))
    b("v_and_b32 v%d, 7, v1" % u2); b("v_xor_b32 v%d, v%d, v%d" % (u2, u2, u1))
    b("v_lshlrev_b32 v%d, 10, v%d" % (u0, u0)); b("v_lshl_add_u32 v%d, v%d, 4, v%d" % (D_B, u2, u0))
    b("s_lshl_b32 s%d, s%d, 15" % (sT0, sW1)); b("s_lshl_b32 s%d, s%d, 7" % (sT1, sCT)); b("s_add_u32 s%d, s%d, s%d" % (sT0, sT0, sT1))
    b("v_add_u32 v%d, s%d, v%d" % (D_B, sT0, D_B)); b("v_add_u32 v%d, %d, v%d" % (D_B2, 8192 - 1024, D_B))
    b("v_lshrrev_b32 v%d, 3, v1" % u0); b("v_lshlrev_b32 v%d, 10, v%d" % (u0, u0)); b("v_and_b32 v%d, 7, v1" % u2); b("v_lshl_add_u32 v%d, v%d, 4, v%d" % (D_X, u2, u0))
    b("s_lshl_b32 s%d, s%d, 16" % (sT1, sTT)); b("s_add_u32 s%d, s%d, s%d" % (sT0, sT0, sT1)); b("v_add_u32 v%d, s%d, v%d" % (D_X, sT0, D_X))
    b("s_lshl_b32 s%d, s%d, 8" % (sT1, sTT)); b("s_add_u32 s%d, s%d, %d" % (sT1, sT1, WS_RS)); b("v_lshlrev_b32 v%d, 2, v1" % D_R); b("v_add_u32 v%d, s%d, v%d" % (D_R, sT1, D_R))
    fcols(b, ty)
    gu = 0
    for pi, (kind, e, _) in enumerate(PH[ty]):
        stride = 3584 if e == "gu" else 3072
        (p4_voffs if kind == "P4" else p2_voffs)(b, u0, u1, stride, t0)
        if e == "gu": b("s_lshl_b32 s%d, s%d, 1" % (sT1, sKS + gu)); db = 0; gu += 1
        elif e == "kv": b("s_mov_b32 s%d, s%d" % (sT1, sKC)); db = 1024
        else: b("s_lshl_b32 s%d, s%d, 7" % (sT1, sGR)); db = 64
        step = (8 if kind == "P4" else 16) * stride
        b("v_add_u32 v%d, s%d, v%d" % (u0, sT1, u0)); b("v_add_u32 v%d, s%d, v%d" % (u1, sT1, u1))
        for p in range(4):
            b("v_add_u32 v%d, %d, v%d" % (D_P + 4 * pi + p, 4096 + (p >> 1) * step - p * 1024 + (db if p & 1 else 0), u1 if p & 2 else u0))
    b("s_lshl_b32 s%d, s%d, 13" % (sLA, sW1))
    nr = 32 if CFG["map"] == 84 else 64
    b("s_lshl_b32 s%d, s%d, 6" % (sT0, sXR)); b("s_mul_i32 s%d, s%d, %d" % (sT1, sW1, nr)); b("s_add_u32 s%d, s%d, s%d" % (sT0, sT0, sT1))
    b("v_add_u32 v%d, s%d, v1" % (t2, sT0)); b("v_mul_u32_u24 v%d, 3072, v%d" % (D_TCH + 3, t2)); b("v_mul_u32_u24 v%d, 3584, v%d" % (D_TCH + 2, t2))
    b("s_lshl_b32 s%d, s%d, 7" % (sT0, sGR)); b("s_add_u32 s%d, s%d, 4096" % (sT0, sT0)); b("v_add_u32 v%d, s%d, v%d" % (D_TCH + 3, sT0, D_TCH + 3))
    b("v_add_u32 v%d, 4096, v%d" % (D_TCH + 2, D_TCH + 2))
    b("s_lshl_b32 s%d, s%d, 1" % (sKS, sKS)); b("s_lshl_b32 s%d, s%d, 1" % (sKS + 1, sKS + 1))
    b("s_lshl_b32 s%d, s%d, 1" % (sT0, sSH)); b("s_add_u32 s%d, s%d, s%d" % (sT0, sT0, sW1))
    if CFG["map2"] == 48: b("v_lshlrev_b32 v%d, 7, v1" % t2)
    else:
        b("v_lshrrev_b32 v%d, 2, v1" % t2); b("v_lshlrev_b32 v%d, 10, v%d" % (t2, t2)); b("v_and_b32 v%d, 3, v1" % t3); b("v_lshl_add_u32 v%d, v%d, 7, v%d" % (t2, t3, t2))
        b("s_and_b32 s%d, s%d, 4" % (sT1, sCT)); b("s_lshl_b32 s%d, s%d, 7" % (sT1, sT1)); b("v_add_u32 v%d, s%d, v%d" % (t2, sT1, t2))
    k2 = 2 if CFG["aonly"] else 1
    b("s_mul_i32 s%d, s%d, %d" % (sT1, sT0, 28 * 1024 * k2)); b("v_add_u32 v%d, s%d, v%d" % (D_TCH, sT1, t2))
    b("s_mul_i32 s%d, s%d, %d" % (sT1, sT0, 8192 * k2)); b("v_add_u32 v%d, s%d, v%d" % (D_TCH + 1, sT1, t2))
    def seg(lo, items):
        for t in items: b(t)
        b("v_cmp_le_u32 vcc, %d, v1" % lo); b("v_cndmask_b32 v%d, v%d, v%d, vcc" % (D_TAB, D_TAB, t1))
    b("s_add_u32 s%d, s%d, s%d" % (sT0, sR1, sW1))
    n0 = 0
    for pi, (kind, e, _) in enumerate(PH[ty]):
        stride = 3584 if e == "gu" else 3072
        if kind == "P4":
            seg(n0, ["v_add_u32 v%d, s%d, v1" % (t1, sR1), "v_add_u32 v%d, %d, v%d" % (t1, (-n0) & 7, t1), "v_and_b32 v%d, 7, v%d" % (t1, t1),
                     "v_lshlrev_b32 v%d, 1, v%d" % (t1, t1), "v_add_u32 v%d, s%d, v%d" % (t1, sW1, t1), "v_mul_u32_u24 v%d, %d, v%d" % (t1, 32 * stride, t1)]); n0 += 8
        else:
            seg(n0, ["v_lshlrev_b32 v%d, 1, v1" % t1, "v_add_u32 v%d, s%d, v%d" % (t1, sT0, t1), "v_and_b32 v%d, 7, v%d" % (t1, t1),
                     "v_mul_u32_u24 v%d, %d, v%d" % (t1, 64 * stride, t1)]); n0 += 4
    b("v_add_u32 v%d, s%d, v1" % (t0, sR2)); b("v_and_b32 v%d, 7, v%d" % (t2, t0))
    seg(20, ["v_lshlrev_b32 v%d, 13, v%d" % (t1, t2)])
    seg(28, ["v_lshrrev_b32 v%d, 1, v%d" % (t3, t2), "v_lshlrev_b32 v%d, 1, v%d" % (t1, t2), "v_sub_u32 v%d, v%d, v%d" % (t1, t1, t3),
             "v_add_u32 v%d, 16, v%d" % (t1, t1), "v_lshlrev_b32 v%d, 12, v%d" % (t1, t1)])
    seg(36, ["v_lshlrev_b32 v%d, 13, v%d" % (t1, t2), "v_add_u32 v%d, 4096, v%d" % (t1, t1)])
    seg(44, ["v_and_b32 v%d, 3, v%d" % (t1, t0), "v_mul_u32_u24 v%d, 3, v%d" % (t1, t1), "v_add_u32 v%d, 17, v%d" % (t1, t1), "v_lshlrev_b32 v%d, 12, v%d" % (t1, t1)])
    seg(48, ["v_lshlrev_b32 v%d, 12, v%d" % (t1, t2)])
    return P

def dma_wave(ty):
    P = [M(("x", 1))] + dma_setup(ty); a = lambda t, tag=None: P.append(I(t, tag))
    stamp = lambda k: stamp_to(P, k)
    stamp_to(P, 1, H_STAMP2)
    NB = CFG["nb%d" % ty]; CH = checks(ty)
    sl = slabs_of(ty); info = phase_info(ty)
    def look(n):
        if n < 56: a("v_readlane_b32 s%d, v%d, %d" % (sPH + 2 * (n & 1), D_TAB, n))
    def part(n, which, nxt):
        so = sPH + 2 * (n & 1); cap = CFG["cap2"]; wb = srd(SWD if n < 48 else SWO)
        if which == "B": a("s_lshl_b32 s%d, s%d, 4" % (so, so))
        elif n == 48: a("v_add_u32 v%d, %d, v%d" % (D_A, 28 * 4096, D_A))
        for h in range(2):
            a("s_add_u32 m0, s%d, %d" % (sLA, slot_of(n) * SLOT + h * 4096))
            if h: a("s_add_u32 s%d, s%d, %d" % (so, so, 16384 if which == "B" else 2048))
            elif (nxt ^ n) & 1: look(nxt)
            room(16, cap)
            if which == "B":
                vm("buffer_load_dwordx4 v%d, %s, s%d offen lds" % (D_B, wb, so), 8)
                vm("buffer_load_dwordx4 v%d, %s, s%d offen offset:1024 lds" % (D_B2, wb, so), 8)
            else:
                vm("buffer_load_dwordx4 v%d, %s, s%d offen offset:2048 sc1 lds" % (D_A, srd(SX if CFG["fakeA"] else SWS), so), 8, ("slab", n))
                vm("buffer_load_dwordx4 v%d, %s, s%d offen offset:3072 sc1 lds" % (D_A, srd(SX if CFG["fakeA"] else SWS), so), 8, ("slab", n))
        if not (nxt ^ n) & 1: look(nxt)
    hist = []
    def room(w, cap):
        tot = w; k = 0
        while k < len(hist) and tot + hist[-1 - k] <= cap: tot += hist[-1 - k]; k += 1
        if k < len(hist): a("s_waitcnt vmcnt(%d)" % min(k, 63))
    def vm(t, w, tag=None): a(t, tag); hist.append(w)
    def dma(n):
        so = sPH + 2 * (n & 1); cap = CFG["cap1"] if n < CFG["capsw"] else CFG["cap2"]
        for h in range(2):
            a("s_add_u32 m0, s%d, %d" % (sLA, slot_of(n) * SLOT + h * 4096))
            if n < 20:
                pi, kind, sg = sl[n]; _, stride, sa, sb = info[pi]
                w = 16 if (kind == "P2" and PH[ty][pi][1] != "q") else 8
                if h: a("s_add_u32 s%d, s%d, %d" % (so, so, (16 if kind == "P4" else 32) * stride))
                else: look(n + 1)
                for p in range(4):
                    if p % 2 == 0: room(2 * w, cap)
                    vm("buffer_load_dwordx4 v%d, %s, s%d offen offset:%d lds" % (D_P + 4 * pi + p, srd(sb if p & 1 else sa), so, p * 1024), w, ("slab", n))
            else:
                if h: a("s_add_u32 s%d, s%d, 2048" % (so, so)); a("s_add_u32 s%d, s%d, 16384" % (so + 1, so + 1))
                else:
                    a("s_lshl_b32 s%d, s%d, 4" % (so + 1, so)); look(n + 1)
                    if n == 48: a("v_add_u32 v%d, %d, v%d" % (D_A, 28 * 4096, D_A))
                wb = srd(SWD if n < 48 else SWO)
                room(16, cap)
                vm("buffer_load_dwordx4 v%d, %s, s%d offen lds" % (D_B, wb, so + 1), 8, ("slab", n))
                vm("buffer_load_dwordx4 v%d, %s, s%d offen offset:1024 lds" % (D_B2, wb, so + 1), 8, ("slab", n))
                room(16, cap)
                vm("buffer_load_dwordx4 v%d, %s, s%d offen offset:2048 sc1 lds" % (D_A, srd(SX if CFG["fakeA"] else SWS), so), 8, ("slab", n))
                vm("buffer_load_dwordx4 v%d, %s, s%d offen offset:3072 sc1 lds" % (D_A, srd(SX if CFG["fakeA"] else SWS), so), 8, ("slab", n))
    def touch(which):
        nr = 32 if CFG["map"] == 84 else 64; dst = D_TCH + 4; cap = CFG["capt"]
        for w in which:
            if w == "x":
                a("s_lshr_b32 s%d, s%d, 1" % (sT0, sLA)); a("s_add_u32 m0, s%d, %d" % (sT0, LX))
                room(32, cap)
                for p in range(4):
                    a("s_movk_i32 s%d, %d" % (sT1, 7168 * p))
                    vm("buffer_load_dwordx4 v%d, %s, s%d offen offset:%d lds" % (D_X, srd(SX), sT1, 1024 * p), 8)
            elif w in ("q", "g0", "g1"):
                if nr == 32: a("s_mov_b32 exec_hi, 0")
                if w == "q": room(nr, cap); vm("buffer_load_dword v%d, v%d, %s, 0 offen" % (dst, D_TCH + 3, srd(SQKV)), nr)
                else:
                    for d in (SG, SU): room(nr, cap); vm("buffer_load_dword v%d, v%d, %s, s%d offen" % (dst, D_TCH + 2, srd(d), sKS + int(w[1])), nr)
            elif w == "o":
                k = 64 if (CFG["map2"] == 48 or CFG["aonly"]) else 32
                if k == 32: a("s_mov_b32 exec_hi, 0")
                room(k, cap); vm("buffer_load_dword v%d, v%d, %s, 0 offen" % (dst, D_TCH + 1, srd(SWO)), k)
            else:
                j = int(w[1])
                if j >= (4 if (CFG["map2"] == 48 or CFG["aonly"]) else 2): continue
                a("s_mov_b32 exec_hi, 0xffffff"); a("s_mov_b32 s%d, %d" % (sT0, j * 56 * (128 if CFG["map2"] == 48 else 256)))
                room(56, cap); vm("buffer_load_dword v%d, v%d, %s, s%d offen" % (dst, D_TCH, srd(SWD), sT0), 56)
            a("s_mov_b64 exec, -1")
    def publish(m):
        if m in CH.values():
            a("s_mov_b32 m0, s%d" % sLM); a("v_mov_b32 v%d, %d" % (D_LV, 4 * (m + 1)))
            vm("global_load_lds_dword v%d, %s" % (D_LV, s(sTB, 2)), 1)
        if CFG["stamps"] == 2 or (CFG["stamps"] and m % 4 == 0): stamp(m)
    for d in (SQKV, SG, SU):
        a("s_sub_u32 s%d, s%d, 4096" % (d, d)); a("s_subb_u32 s%d, s%d, 0" % (d + 1, d + 1)); a("s_add_u32 s%d, s%d, 4096" % (d + 2, d + 2))
    gates = {20: (C_H1A, 16), 28: (C_H1B, 16), 36: (C_H2, 32), 48: (C_O, 16)}
    def do_gate(n):
        if CFG["stamps"] == 2: stamp_to(P, 20 + 2 * list(gates).index(n), H_STAMP2)
        if n in CFG["nogate"]: pass
        elif CFG["spoll"]: sgate(P, sCC, gates[n][0] * 128, sPV, gates[n][1])
        else: gate(P, D_CC, SWS, gates[n][0] * 128, ("poll", n), D_POLL, gates[n][1])
        stamp_to(P, 21 + 2 * list(gates).index(n), H_STAMP2)
    def poll(gn):
        if CFG["spoll"]: a("s_load_dword s%d, %s, s%d offset:%d glc" % (sPV, s(SWS, 2), sCC, gates[gn][0] * 128))
        else: vm("buffer_load_dword v%d, v%d, %s, 0 offen offset:%d sc1" % (D_POLL, D_CC, srd(SWS), gates[gn][0] * 128), 1, ("poll", gn))
    nbf = CFG["bfirst"]
    def issue(n):
        if n in gates and not (n == 20 and nbf): do_gate(n)
        if n + CFG["pollat"] in gates and not (n + CFG["pollat"] == 20 and nbf): poll(n + CFG["pollat"])
        dma(n)
    def do_touch(n):
        tp = CFG["tplan%d" % ty].get(str(n))
        if tp:
            touch(tp.split())
    look(0)
    if CFG["dprio"]: a("s_setprio %d" % CFG["dprio"])
    hist += [16] * 8
    xstages(P, {CFG["s0at"]: lambda: (dma(0), publish(0), do_touch(0))})
    stamp(60)
    a("s_barrier")
    stamp(61); rstamp(P, 40)
    assert NB == 56
    seq = [(n, "F") for n in range(1, 20)] + [(n, "B") for n in range(20, 20 + nbf)]
    n = 20
    while n < 56:
        k = CFG["afirst"].get(str(n), 0)
        if n == 20: k = max(k, nbf)
        seq += [(m, "A") for m in range(n, n + k)] + [(m, "B") for m in range(n, n + k) if (m, "B") not in seq]
        if not k: seq.append((n, "F"))
        n += max(k, 1)
    started = set(); parts = {}; checked = -1; gated = set()
    firstA = {g: min(i for i, (m, w) in enumerate(seq) if m >= g and w != "B") for g in gates}
    gstart = {g: min(i for i, (m, w) in enumerate(seq) if m >= 20 + 4 * g and w != "B") for g in range(9)}
    def need_at(i):
        k = 1
        if CFG["spoll"] and any(i + CFG["pollat"] == firstA[g] for g in gates): k = CFG["pollat"]
        pu = max(prev_user(m) if m not in started else -1 for m, w in seq[i:i + k])
        while pu > checked and not marked(pu): pu += 1
        return pu
    for i, (n, w) in enumerate(seq):
        if (n, w) in ((11, "F"), (15, "F"), (18, "F"), (30, "F"), (42, "F"), (54, "F")): rstamp(P, 42 + 2 * (11, 15, 18, 30, 42, 54).index(n))
        if w == "F" and n in CFG["exw%d" % ty]: count_wait(P, D_FL, D_DV + 1, F_EX + 4 * CFG["exw%d" % ty].index(n), 4)
        pu = need_at(i)
        if pu > checked:
            lb = newlbl()
            P.append(W(lg=[("dn", i)]))
            a("v_cmp_ge_u32 vcc, %d, v%d" % (pu, D_DV)); a("s_cbranch_vccz L_fr%d" % lb)
            raw(P, [I("s_movk_i32 s%d, %d" % (sSPIN + 1, pu + 1)), I("s_call_b64 %s, L_spin_d" % s(sRET, 2))]); P.append(L("L_fr%d:" % lb))
            checked = pu
        if n == 20 and n not in started: count_wait(P, D_FL, D_DV + 1, F_EXF, 2)
        if (n, w) == (4, "F"): a("s_movk_i32 m0, %d" % (FL + F_INIT)); vm("buffer_load_dword v%d, %s, 0 offen sc1 lds" % (D_ZERO, srd(SDBG)), 1)
        if (n, w) == (15, "F"): a("ds_read_b32 v%d, v%d offset:%d" % (D_POLL, D_FL, F_INIT), "init"); gate(P, D_ZERO, SDBG, 0, "init", D_POLL, 1)
        for g in gates:
            if i == firstA[g]:
                do_gate(g)
                if g == 20: a("s_movk_i32 m0, %d" % LR2); vm("buffer_load_dword v%d, %s, 0 offen sc1 lds" % (D_R, srd(SWS)), 2)
            if i + CFG["pollat"] == firstA[g]: poll(g)
        if CFG["lead"]:
            for g in range(1, 9):
                sec = max(x for x in gates if x <= 20 + 4 * g); newsec = sec == 20 + 4 * g
                at = gstart[g - 1]
                if newsec and i + CFG["pollat"] == at:
                    vm("buffer_load_dword v%d, v%d, %s, 0 offen offset:%d sc1" % (D_POLL2, D_CC, srd(SWS), gates[sec][0] * 128), 1, ("poll2", g))
                if i == at + CFG["leadoff"]:
                    lb = newlbl()
                    if newsec: P.append(W(vm=[("poll2", g)]))
                    a("s_cmp_lg_u32 s%d, %d" % (sLD, CFG["who"][g])); a("s_cbranch_scc1 L_nl%d" % lb)
                    X = []
                    if newsec: X += [I("v_cmp_eq_u32 vcc, %d, v%d" % (gates[sec][1], D_POLL2)), I("s_cbranch_vccz L_nl%d" % lb)]
                    for j in range(4): X.append(I("v_readlane_b32 s%d, v%d, %d" % (sG + j, D_TAB, 20 + 4 * g + j)))
                    X.append(I("s_mov_b32 exec_hi, 0"))
                    for j in range(4):
                        if g >= 7: X.append(I("s_add_u32 s%d, s%d, %d" % (sG + j, sG + j, 28 * 4096)))
                        X.append(I("buffer_load_dword v%d, v%d, %s, s%d offen offset:2048 sc1" % (D_TCH + 4, D_AT, srd(SWS), sG + j)))
                    X.append(I("s_mov_b64 exec, -1"))
                    raw(P, X); P.append(L("L_nl%d:" % lb))
        started.add(n)
        if i + 1 < len(seq) and need_at(i + 1) > checked: a("ds_read_b32 v%d, v%d" % (D_DV, D_LA), ("dn", i + 1))
        nxt = seq[i + 1][0] if i + 1 < len(seq) else 99
        if w == "F":
            assert nxt in (n + 1, 99); dma(n)
        else: part(n, w, nxt)
        parts.setdefault(n, set()).add(w)
        if parts[n] in ({"F"}, {"A", "B"}):
            assert all(parts.get(m) in ({"F"}, {"A", "B"}) for m in range(1, n))
            publish(n)
        if w == "F": do_touch(n)
    if CFG["stamps"]:
        count_wait(P, D_FL, D_DV, F_END, 4)
        stamp(62)
        a("s_memrealtime s[6:7]"); P.append(W(lg="all"))
        a("v_writelane_b32 v%d, s4, 62" % H_STAMP2); a("v_writelane_b32 v%d, s6, 63" % H_STAMP2)
        a("s_lshl_b32 s%d, s2, 8" % sT0); a("s_add_u32 s%d, s%d, %d" % (sT0, sT0, WS_ST))
        a("v_lshlrev_b32 v64, 2, v1")
        a("s_cmp_lg_u32 s%d, %d" % (sW1, CFG["stampw"] & 1)); a("s_cbranch_scc1 L_exit")
        a("buffer_store_dword v%d, v64, %s, s%d offen" % (H_STAMP, srd(SWS), sT0))
        a("s_add_u32 s%d, s%d, 0x10000" % (sT0, sT0))
        a("buffer_store_dword v%d, v64, %s, s%d offen" % (H_STAMP2, srd(SWS), sT0))
    a("s_endpgm")
    return P

A_ONE, A_ZERO, A_CM, A_CK, A_CQ, A_FL, A_RK, A_RV, A_ST, A_ZA, A_PL, A_ZL, A_OS, A_SGN = range(2, 16)
A_POLL, A_FV, A_TCH = 25, 27, 28
A_ID = 32
A_WP = 36
A_R = 16
A_ACC = 56
A_RAW = 72
A_T = 72
A_KF = 112
A_SD = 192; A_PHI = 208
A_PQ = 128
A_LD = 192
def softmax_unit(wp, kf, u, dst, Pm, R, scale_r):
    B = []; b = lambda t, tag=None: B.append(I(t, tag))
    C = A_R + 4 + u
    b("v_mfma_f32_32x32x16_bf16 %s, %s, %s, 0" % (v(Pm, 16), v(wp, 4), v(kf, 4)))
    for g in range(2): b("v_max3_f32 v%d, v%d, v%d, v%d" % (R + g, Pm + 8 * g, Pm + 8 * g + 1, Pm + 8 * g + 2))
    for g in range(2): b("v_max3_f32 v%d, v%d, v%d, v%d" % (R + 2 + g, Pm + 8 * g + 3, Pm + 8 * g + 4, Pm + 8 * g + 5))
    for g in range(2): b("v_max3_f32 v%d, v%d, v%d, v%d" % (R + g, R + g, Pm + 8 * g + 6, Pm + 8 * g + 7))
    for g in range(2): b("v_max_f32 v%d, v%d, v%d" % (R + g, R + g, R + 2 + g))
    def allred(op, mid):
        b("v_permlane32_swap_b32 v%d, v%d" % (R, R + 1))
        b("%s v%d, v%d, v%d" % (op, R, R, R + 1))
        for t in mid: b(t)
        b("v_mov_b32 v%d, v%d" % (R + 1, R))
        b("v_permlane32_swap_b32 v%d, v%d" % (R, R + 1))
    allred("v_max_f32", ["v_mul_f32 v%d, v%d, v%d" % (R, C, R)])
    for j in range(16): b("v_fma_f32 v%d, v%d, v%d, -v%d" % (Pm + j, Pm + j, C, R + j // 8))
    for j in range(16): b("v_exp_f32 v%d, v%d" % (Pm + j, Pm + j))
    if not scale_r and not CFG["qnorm"]:
        for j in range(8): b("v_cvt_pk_bf16_f32 v%d, v%d, v%d" % (dst + j, Pm + 2 * j, Pm + 2 * j + 1))
        return B
    for g in range(2):
        b("v_add_f32 v%d, v%d, v%d" % (R + g, Pm + 8 * g, Pm + 8 * g + 1)); b("v_add_f32 v%d, v%d, v%d" % (R + 2 + g, Pm + 8 * g + 2, Pm + 8 * g + 3))
    for k in (4, 6):
        for g in range(2):
            b("v_add_f32 v%d, v%d, v%d" % (R + g, R + g, Pm + 8 * g + k)); b("v_add_f32 v%d, v%d, v%d" % (R + 2 + g, R + 2 + g, Pm + 8 * g + k + 1))
    for g in range(2): b("v_add_f32 v%d, v%d, v%d" % (R + g, R + g, R + 2 + g))
    allred("v_add_f32", ["v_rcp_f32 v%d, v%d" % (R, R)] + (["v_mul_f32 v%d, v%d, v%d" % (R, R, A_R + u)] if scale_r else []))
    for j in range(16): b("v_mul_f32 v%d, v%d, v%d" % (Pm + j, Pm + j, R + j // 8))
    for j in range(8): b("v_cvt_pk_bf16_f32 v%d, v%d, v%d" % (dst + j, Pm + 2 * j, Pm + 2 * j + 1))
    return B
def zipper(x, y):
    out = []
    for i in range(max(len(x), len(y))):
        if i < len(x): out.append(x[i])
        if i < len(y): out.append(y[i])
    return out
def mprio(B, base=0):
    out = []; hi = False
    for it in B:
        m_ = isinstance(it, I) and it.t.startswith("v_mfma")
        if m_ and not hi: out.append(I("s_setprio 3")); hi = True
        if hi and not m_: out.append(I("s_setprio %d" % base)); hi = False
        out.append(it)
    return out

def attn_setup(ty):
    P = []; b = lambda t, tag=None: P.append(I(t, tag))
    t0, t1, t2, t3, u0 = range(100, 105)
    hk, hq = sT2, sT3
    if CFG["tlb"]:
        b("v_lshlrev_b32 v%d, 16, v1" % t0); b("s_mov_b64 exec, 0x%x" % CFG["tlbm"])
        for d in ((SQKV,), (SQKV, SG, SU), (SQKV, SG, SU, SWD, SWO))[CFG["tlb"] - 1]: b("buffer_load_dword v%d, v%d, %s, 0 offen" % (A_POLL + 1, t0, srd(d)))
        b("s_mov_b64 exec, -1")
    nr = 32 if CFG["map"] == 84 else 64
    b("s_lshl_b32 s%d, s%d, 6" % (sT0, sXR)); b("s_mul_i32 s%d, s%d, %d" % (sT1, sW1, nr)); b("s_add_u32 s%d, s%d, s%d" % (sT0, sT0, sT1))
    b("v_add_u32 v%d, s%d, v1" % (A_TCH + 2, sT0)); b("v_mul_u32_u24 v%d, 3072, v%d" % (A_TCH + 3, A_TCH + 2)); b("v_mul_u32_u24 v%d, 3584, v%d" % (A_TCH + 2, A_TCH + 2))
    if nr == 32: b("s_mov_b32 exec_hi, 0")
    if CFG["ftouch"] == 4: b("buffer_load_dword v%d, v%d, %s, s%d offen offset:%d" % (A_POLL + 1, A_TCH + 3, srd(SQKV), sKC, 1024 * ty))
    elif CFG["ftouch"] >= 5 or not CFG["ftouch"] & (1 << ty): pass
    elif ty == 0:
        for o_ in (0, 1024): b("buffer_load_dword v%d, v%d, %s, s%d offen offset:%d" % (A_POLL + 1, A_TCH + 3, srd(SQKV), sKC, o_))
    else:
        b("s_lshl_b32 s%d, s%d, 7" % (sT0, sGR)); b("buffer_load_dword v%d, v%d, %s, s%d offen" % (A_POLL + 1, A_TCH + 3, srd(SQKV), sT0))
    b("s_mov_b64 exec, -1")
    b("s_lshl_b32 s%d, s%d, 2" % (hq, sGR)); b("s_add_u32 s%d, s%d, s%d" % (hq, hq, sW1))
    b("s_add_u32 s%d, s%d, %d" % (hk, hq, 2 * ty))
    b("v_lshrrev_b32 v%d, 5, v1" % t3); b("v_and_b32 v%d, 15, v1" % t1); b("v_lshrrev_b32 v%d, 4, v1" % t0)
    b("v_lshlrev_b32 v%d, 7, v%d" % (t2, t3)); b("v_lshl_add_u32 v%d, v%d, 1, v%d" % (t2, t1, t2))
    b("s_lshl_b32 s%d, s%d, 9" % (sT0, hq))
    for hh in range(1 + ty):
        for j in range(8):
            b("buffer_load_ushort v%d, v%d, %s, s%d offen offset:%d" % (A_RAW + 8 * hh + j, t2, srd(SPHI), sT0, 1024 * hh + 32 * ((j & 3) + 8 * (j >> 2))), "wphi")
    b("v_mov_b32 v%d, 0" % A_ZERO); b("v_mov_b32 v34, 0")
    b("v_mov_b32 v%d, 1" % A_ONE); b("v_mov_b32 v%d, %d" % (A_FL, FL))
    if ty == 0:
        b("v_lshlrev_b32 v%d, 7, v1" % u0)
        b("s_add_u32 s%d, s2, s%d" % (sT0, sW1)); b("s_cmp_lg_u32 s%d, 0" % sT0); b("s_cbranch_scc1 L_noinit")
        raw(P, sum([[I("s_movk_i32 s%d, 0x%x" % (sT0, 0x2000 * k)), I("buffer_store_dword v%d, v%d, %s, s%d offen sc1" % (A_ZERO, u0, srd(SWS), sT0))] for k in range(3)], []))
        P.append(L("L_noinit:"))
    b("v_and_b32 v%d, 1, v%d" % (t2, t0)); b("v_mul_u32_u24 v%d, 0x8000, v%d" % (t2, t2)); b("v_lshl_or_b32 v%d, v%d, 16, v%d" % (A_SGN, t2, t2))
    b("s_lshl_b32 s%d, s%d, 10" % (sT0, sI)); b("v_lshlrev_b32 v%d, 9, v1" % A_CM); b("v_add_u32 v%d, s%d, v%d" % (A_CM, sT0, A_CM))
    b("v_lshl_add_u32 v%d, v1, 2, v%d" % (A_FV, A_FL))
    for k in range(8): b("ds_write_b32 v%d, v%d offset:%d" % (A_FV, A_ZERO, 256 * k))
    b("s_lshl_b32 s%d, s%d, 8" % (sT0, hk)); b("s_add_u32 s%d, s%d, 0x4000" % (sT0, sT0)); b("v_mov_b32 v%d, s%d" % (A_CK, sT0))
    b("s_lshl_b32 s%d, s%d, 8" % (sT0, hq)); b("s_add_u32 s%d, s%d, 0x4000" % (sCC, sT0))
    b("s_lshl_b32 s%d, s%d, 11" % (sT0, sW1)); b("s_add_u32 s%d, s%d, %d" % (sT0, sT0, EX))
    b("v_lshlrev_b32 v%d, 4, v1" % u0); b("v_add_u32 v%d, s%d, v%d" % (A_RK, sT0, u0))
    b("v_and_b32 v%d, 1, v1" % t2); b("v_lshlrev_b32 v%d, 9, v%d" % (A_RV, t2)); b("v_lshl_add_u32 v%d, v%d, 7, v%d" % (A_RV, t0, A_RV))
    b("v_bfe_u32 v%d, v1, 2, 2" % t2); b("v_lshl_add_u32 v%d, v%d, 4, v%d" % (A_RV, t2, A_RV))
    b("v_bfe_u32 v%d, v1, 1, 1" % t2); b("v_lshl_add_u32 v%d, v%d, 3, v%d" % (A_RV, t2, A_RV)); b("v_add_u32 v%d, s%d, v%d" % (A_RV, sT0, A_RV))
    b("s_lshl_b32 s%d, s%d, 4" % (sT0, hk)); b("s_add_u32 s%d, s%d, s%d" % (sT0, sT0, sI))
    b("s_lshl_b32 s%d, s%d, 10" % (sT1, sT0)); b("s_add_u32 s%d, s%d, %d" % (sT1, sT1, WS_KV)); b("v_add_u32 v%d, s%d, v%d" % (A_ST, sT1, u0))
    b("s_lshl_b32 s%d, s%d, 7" % (sT1, sT0)); b("s_add_u32 s%d, s%d, %d" % (sT1, sT1, WS_Z))
    b("v_lshlrev_b32 v%d, 6, v%d" % (A_ZA, t1)); b("v_lshl_add_u32 v%d, v%d, 4, v%d" % (A_ZA, t0, A_ZA)); b("v_add_u32 v%d, s%d, v%d" % (A_ZA, sT1, A_ZA))
    if ty == 0:
        b("s_lshl_b32 s%d, s%d, 1" % (sT0, sI)); b("s_add_u32 s%d, s%d, s%d" % (sT0, sT0, sW1)); b("s_and_b32 s%d, s%d, 7" % (sLD, sT0))
        b("s_lshr_b32 s%d, s%d, 3" % (sT0, sT0)); b("s_lshl_b32 s%d, s%d, 2" % (sT4, sGR)); b("s_add_u32 s%d, s%d, s%d" % (sT4, sT4, sT0))
        b("s_lshl_b32 s%d, s%d, 8" % (sT0, sT4)); b("s_add_u32 s%d, s%d, 0x4000" % (sCC, sT0)); b("v_mov_b32 v%d, s%d" % (A_CQ, sCC))
        b("s_lshl_b32 s%d, s%d, 7" % (sT5, sLD))
        b("s_lshl_b32 s%d, s%d, 14" % (sT1, sT4)); b("s_add_u32 s%d, s%d, s%d" % (sT1, sT1, sT5)); b("s_add_u32 s%d, s%d, %d" % (sT1, sT1, WS_KV))
        b("v_lshrrev_b32 v%d, 3, v1" % t2); b("v_lshlrev_b32 v%d, 10, v%d" % (A_PL, t2)); b("v_and_b32 v%d, 7, v1" % t2)
        b("v_lshl_add_u32 v%d, v%d, 4, v%d" % (A_PL, t2, A_PL)); b("v_add_u32 v%d, s%d, v%d" % (A_PL, sT1, A_PL))
        b("s_lshl_b32 s%d, s%d, 10" % (sT1, sT4)); b("s_add_u32 s%d, s%d, s%d" % (sT1, sT1, sT5)); b("s_add_u32 s%d, s%d, %d" % (sT1, sT1, WS_KVF))
        b("v_lshlrev_b32 v%d, 4, v%d" % (A_OS, t2)); b("v_lshl_add_u32 v%d, v%d, 2, v%d" % (A_OS, t3, A_OS))
        b("v_and_b32 v%d, 1, v%d" % (t2, t0)); b("v_lshl_add_u32 v%d, v%d, 3, v%d" % (A_OS, t2, A_OS)); b("v_add_u32 v%d, s%d, v%d" % (A_OS, sT1, A_OS))
        b("s_lshl_b32 s%d, s%d, 11" % (sT1, sT4)); b("s_add_u32 s%d, s%d, %d" % (sT1, sT1, WS_Z))
        b("v_lshlrev_b32 v%d, 7, v%d" % (A_ZL, t1)); b("v_lshl_add_u32 v%d, v%d, 4, v%d" % (A_ZL, t0, A_ZL)); b("v_add_u32 v%d, s%d, v%d" % (A_ZL, sT1, A_ZL))
        b("s_lshl_b32 s%d, s%d, 7" % (sT1, sT4)); b("s_add_u32 s%d, s%d, %d" % (sT1, sT1, WS_ZF))
        b("v_lshlrev_b32 v%d, 6, v%d" % (A_CM, t1)); b("v_lshl_add_u32 v%d, v%d, 4, v%d" % (A_CM, t0, A_CM)); b("v_add_u32 v%d, s%d, v%d" % (A_CM, sT1, A_CM))
        ident(b, A_ID, t1)
    if ty == 1:
        b("s_lshl_b32 s%d, s%d, 10" % (sT1, hq)); b("s_add_u32 s%d, s%d, %d" % (sT1, sT1, WS_KVF)); b("v_add_u32 v%d, s%d, v%d" % (A_PL, sT1, u0))
        b("s_lshl_b32 s%d, s%d, 7" % (sT1, hq)); b("s_add_u32 s%d, s%d, %d" % (sT1, sT1, WS_ZF))
        b("v_lshlrev_b32 v%d, 4, v%d" % (A_ZL, t0)); b("v_add_u32 v%d, s%d, v%d" % (A_ZL, sT1, A_ZL))
        b("s_mul_i32 s%d, s%d, 576" % (sT1, sI)); b("s_add_u32 s%d, s%d, s%d" % (sT1, sT1, hq)); b("s_add_u32 s%d, s%d, s%d" % (sT1, sT1, sW1)); b("s_add_u32 s%d, s%d, 112" % (sT1, sT1))
        b("s_lshl_b32 s%d, s%d, 10" % (sT1, sT1)); b("s_add_u32 s%d, s%d, %d" % (sT1, sT1, WS_HO))
        b("v_and_b32 v%d, 1, v%d" % (t2, t0)); b("v_lshlrev_b32 v%d, 10, v%d" % (A_OS, t2)); b("v_lshl_add_u32 v%d, v%d, 8, v%d" % (A_OS, t3, A_OS))
        b("v_lshl_add_u32 v%d, v%d, 4, v%d" % (A_OS, t1, A_OS)); b("v_add_u32 v%d, s%d, v%d" % (A_OS, sT1, A_OS))
    return P

def attn_wave(ty):
    P = [M(("x", 1))] + attn_setup(ty); a = lambda t, tag=None: P.append(I(t, tag))
    stamp = lambda k: stamp_to(P, k, 34)
    def signal(vaddr, off): one_lane(P, "buffer_atomic_add v%d, v%d, %s, 0 offen offset:%d sc1" % (A_ONE, vaddr, srd(SWS), off))
    def ft():
        a("s_mov_b32 exec_hi, 0"); a("buffer_load_dword v%d, v%d, %s, s%d offen offset:%d" % (A_POLL + 1, A_TCH + 3, srd(SQKV), sKC, 1024 * ty))
        if CFG["ftouch"] == 7:
            if ty: a("s_lshl_b32 s%d, s%d, 7" % (sT0, sGR)); a("buffer_load_dword v%d, v%d, %s, s%d offen" % (A_POLL + 1, A_TCH + 3, srd(SQKV), sT0))
            else:
                a("s_lshl_b32 s%d, s%d, 8" % (sT0, sGR))
                for d in (SG, SU): a("buffer_load_dword v%d, v%d, %s, s%d offen" % (A_POLL + 1, A_TCH + 2, srd(d), sT0))
        a("s_mov_b64 exec, -1")
    def after1():
        if CFG["ftouch"] in (5, 7): ft()
        if ty == 0:
            only(P, ["s_add_u32 s%d, s2, s%d" % (sT0, sW1), "s_cmp_lg_u32 s%d, 0" % sT0],
                 [I("buffer_store_dword v%d, v%d, %s, 0 offen sc1" % (A_ONE, A_ZERO, srd(SDBG)))])
    P.append(W(lg="all"))
    xstages(P, {1: after1, 0: (ft if CFG["ftouch"] == 6 else lambda: None)})
    a("s_barrier")
    if CFG["noattn"]:
        one_lane(P, "ds_add_u32 v%d, v%d offset:%d" % (A_FL, A_ONE, F_EXF)); a("s_endpgm"); return P
    P.append(W(vm=["wphi"]))
    for hh in range(1 + ty):
        for j in range(4): a("v_lshl_or_b32 v%d, v%d, 16, v%d" % (A_WP + 4 * hh + j, A_RAW + 8 * hh + 2 * j + 1, A_RAW + 8 * hh + 2 * j))
        for j in range(4): a("v_xor_b32 v%d, v%d, v%d" % (A_WP + 4 * hh + j, A_WP + 4 * hh + j, A_SGN))
    WK = A_WP + 4 * ty
    T = A_T
    a("v_and_b32 v%d, 31, v1" % T); a("v_lshlrev_b32 v%d, 2, v%d" % (T, T)); a("v_add_u32 v%d, %d, v%d" % (T, LRS, T))
    a("v_lshrrev_b32 v%d, 4, v1" % (T + 1)); a("v_lshlrev_b32 v%d, 4, v%d" % (T + 1, T + 1)); a("v_add_u32 v%d, %d, v%d" % (T + 1, LSD, T + 1))
    count_wait(P, A_FL, A_FV, F_EX, 4)
    stamp(11)
    for u in range(4): a("ds_read_b32 v%d, v%d offset:%d" % (A_R + u, T, u * 128))
    for u in range(4): a("ds_read_b128 %s, v%d offset:%d" % (v(A_SD + 4 * u, 4), T + 1, u * 64))
    for u in range(4): a("ds_read_b128 %s, v%d offset:%d" % (v(A_KF + 4 * u, 4), A_RK, u * 8192))
    P.append(W(lg="all"))
    for u in range(4): a("v_mul_f32 v%d, s%d, v%d" % (A_R + 4 + u, sL2E, A_R + u))
    PM = (T, T + 16); RR = (T + 32, T + 36)
    def qpair(hh, pr, src=None):
        src = A_KF + 8 * pr if src is None else src
        return mprio(zipper(softmax_unit(A_WP + 4 * hh, src, 2 * pr, A_PQ + 32 * hh + 16 * pr, PM[0], RR[0], False),
                            softmax_unit(A_WP + 4 * hh, src + 4, 2 * pr + 1, A_PQ + 32 * hh + 16 * pr + 8, PM[1], RR[1], False)), CFG["qprio"])
    KO = 0 if CFG["kvfirst"] else 4096 * ty
    if ty == 1 and not CFG["kvfirst"]:
        P += qpair(0, 0)
        if CFG["qpre"] == 2: P += qpair(0, 1)
        else:
            for j in range(8): a("v_mov_b32 v%d, v%d" % (A_PQ + 16 + j, A_KF + 8 + j))
        count_wait(P, A_FL, A_FV, F_EX + 4, 4)
        stamp(18)
        for u in range(4): a("ds_read_b128 %s, v%d offset:%d" % (v(A_KF + 4 * u, 4), A_RK, u * 8192 + KO))
        P.append(W(lg="all"))
    B = []; b = lambda t, tag=None: B.append(I(t, tag))
    def tail(u):
        X = []; x = lambda t, tag=None: X.append(I(t, tag))
        PHI = A_PHI + 8 * (u & 1); FR = A_PHI + 16 + 12 * (u & 1); so = (u & 1) * 16384 + KO
        for sg in range(2): x("ds_write_b128 v%d, %s offset:%d" % (A_RK, v(PHI + 4 * sg, 4), so + sg * 8192))
        for q in range(2): x("ds_read_b64_tr_b16 %s, v%d offset:%d" % (v(FR + 2 * q, 2), A_RV, u * 8192 + KO + 1024 + q * 64), ("pr", u))
        for sg in range(2):
            for q in range(2): x("ds_read_b64_tr_b16 %s, v%d offset:%d" % (v(FR + 4 + 4 * sg + 2 * q, 2), A_RV, so + sg * 8192 + q * 64), ("pr", u))
        return X
    def kvm(us):
        X = [W(lg=[("pr", us[-1])])]
        for u in us:
            FR = A_PHI + 16 + 12 * (u & 1)
            for sg in range(2):
                c = v(A_ACC + 4 * sg, 4); z = v(A_ACC + 8 + 4 * sg, 4)
                X.append(I("v_mfma_f32_16x16x32_bf16 %s, %s, %s, %s" % (c, v(FR + 4 + 4 * sg, 4), v(FR, 4), "0" if u == 0 else c)))
                X.append(I("v_mfma_f32_16x16x32_bf16 %s, %s, %s, %s" % (z, v(FR + 4 + 4 * sg, 4), v(A_SD + 4 * u, 4), "0" if u == 0 else z)))
        return X
    for pr in range(2):
        z = zipper(softmax_unit(WK, A_KF + 8 * pr, 2 * pr, A_PHI, PM[0], RR[0], True), softmax_unit(WK, A_KF + 8 * pr + 4, 2 * pr + 1, A_PHI + 8, PM[1], RR[1], True))
        t0_, t1_ = tail(2 * pr), tail(2 * pr + 1)
        if pr == 0: B += z + t0_[:2] + t1_[:2]; late = t0_[2:] + t1_[2:]
        else: B += z[:70] + late + z[70:120] + kvm((0, 1)) + z[120:] + t0_[:2] + t1_[:2] + t0_[2:] + t1_[2:]
    b("v_and_b32 v%d, 15, v1" % T); b("v_cmp_eq_u32 vcc, 1, v%d" % T)
    if ty == 0: one_lane(B, "ds_add_u32 v%d, v%d offset:%d" % (A_FL, A_ONE, F_EXF))
    B += kvm((2, 3))
    for j in range(4): b("v_cvt_pk_bf16_f32 v%d, v%d, v%d" % (A_ACC + j, A_ACC + 2 * j, A_ACC + 2 * j + 1))
    for j in range(4): b("v_cndmask_b32 v%d, v%d, v%d, vcc" % (A_ACC + 8 + j, A_ACC + 8 + j, A_ACC + 12 + j))
    b("buffer_store_dwordx4 %s, v%d, %s, 0 offen sc1" % (v(A_ACC, 4), A_ST, srd(SWS)), "part")
    b("s_mov_b32 exec_lo, 0x00030003"); b("s_mov_b32 exec_hi, 0x00030003")
    b("buffer_store_dwordx4 %s, v%d, %s, 0 offen sc1" % (v(A_ACC + 8, 4), A_ZA, srd(SWS)), "part"); b("s_mov_b64 exec, -1")
    P += mprio(B, CFG["kprio"]); a("s_setprio 0")
    stamp(12)
    def publish_k():
        a("ds_read_b32 v%d, v%d offset:%d" % (A_POLL, A_FL, F_INIT), "init"); gate(P, A_ZERO, SDBG, 0, "init", A_POLL, 1)
        P.append(W(vm=["part"])); signal(A_CK, 0)
        stamp(13)
    if ty == 0:
        publish_k()
        a("s_sleep %d" % CFG["l2nap"]); a(sload(SWS, sCC, 0, sG)); sgate(P, sCC, 0, sG, 16)
        stamp(14)
        LD = A_LD; S = T; Z = A_ACC
        a("buffer_load_dwordx4 %s, v%d, %s, 0 offen sc1" % (v(LD, 4), A_PL, srd(SWS))); a("s_movk_i32 s%d, 8192" % sT0)
        a("buffer_load_dwordx4 %s, v%d, %s, s%d offen sc1" % (v(LD + 4, 4), A_PL, srd(SWS), sT0))
        X = []; x = lambda t: X.append(I(t))
        x("buffer_load_dwordx4 %s, v%d, %s, 0 offen sc1" % (v(Z, 4), A_ZL, srd(SWS))); x("buffer_load_dwordx4 %s, v%d, %s, 0 offen offset:64 sc1" % (v(Z + 4, 4), A_ZL, srd(SWS)))
        x("v_and_b32 v%d, 15, v1" % S); x("v_cmp_eq_u32 vcc, 1, v%d" % S); x("s_waitcnt vmcnt(0)")
        for k in (8, 4, 2, 1):
            for j in range(8): x("v_add_f32_dpp v%d, v%d, v%d row_ror:%d row_mask:0xf bank_mask:0xf" % (Z + j, Z + j, Z + j, k))
        for j in range(4): x("v_cndmask_b32 v%d, v%d, v%d, vcc" % (Z + j, Z + j, Z + 4 + j))
        x("s_mov_b32 exec_lo, 0x00030003"); x("s_mov_b32 exec_hi, 0x00030003")
        x("buffer_store_dwordx4 %s, v%d, %s, 0 offen sc1" % (v(Z, 4), A_CM, srd(SWS))); x("s_mov_b64 exec, -1"); x("s_branch L_l2b")
        only(P, ["s_cmp_lg_u32 s%d, 0" % sLD], X)
        a("s_waitcnt vmcnt(0)"); P.append(L("L_l2b:"))
        B = []
        for t_ in range(2):
            for sg in range(2): b("v_mfma_f32_4x4x4_16b_bf16 %s, %s, %s, %s" % (v(S + 4 * sg, 4), v(A_ID, 2), v(LD + 4 * t_ + 2 * sg, 2), "0" if t_ == 0 else v(S + 4 * sg, 4)))
        for j in range(8): b("v_add_f32_dpp v%d, v%d, v%d row_ror:8 row_mask:0xf bank_mask:0xf" % (S + j, S + j, S + j))
        for j in range(4): b("v_permlane16_swap_b32 v%d, v%d" % (S + j, S + 4 + j))
        for j in range(4): b("v_add_f32 v%d, v%d, v%d" % (S + j, S + j, S + 4 + j))
        for j in range(2): b("v_permlane32_swap_b32 v%d, v%d" % (S + j, S + 2 + j))
        for j in range(2): b("v_add_f32 v%d, v%d, v%d" % (S + j, S + j, S + 2 + j))
        b("v_cvt_pk_bf16_f32 v%d, v%d, v%d" % (S, S, S + 1))
        b("s_mov_b32 exec_lo, 0x00ff00ff"); b("s_mov_b32 exec_hi, 0x00ff00ff")
        b("buffer_store_dword v%d, v%d, %s, 0 offen sc1" % (S, A_OS, srd(SWS))); b("s_mov_b64 exec, -1")
        P += mprio(B); P.append(W(vm="all")); signal(A_CQ, 128)
        stamp(15)
    else:
        assert CFG["kvfirst"]
        count_wait(P, A_FL, A_FV, F_EX + 4, 4)
        for hh in range(2):
            for u in range(4): a("ds_read_b128 %s, v%d offset:%d" % (v(A_PQ + 32 * hh + 16 * (u >> 1) + 4 * (u & 1), 4), A_RK, u * 8192 + 4096 + 1024 * hh), "qf")
        one_lane(P, "ds_add_u32 v%d, v%d offset:%d" % (A_FL, A_ONE, F_EXF))
        P.append(W(lg=["qf"]))
        z = qpair(0, 0, A_PQ) if CFG["kvfirst"] else qpair(1, 0)
        P += z[:CFG["kpub"]]; publish_k(); P += z[CFG["kpub"]:]
        if CFG["kvfirst"]: rest = [qpair(0, 1, A_PQ + 16), qpair(1, 0, A_PQ + 32), qpair(1, 1, A_PQ + 48)]
        else: rest = ([qpair(0, 1, A_PQ + 16)] if CFG["qpre"] == 1 else []) + [qpair(1, 1)]
        for z in rest: P += z
        Z = (A_ACC, A_ACC + 8); KVA = (A_WP, A_R); S = A_KF
        def finish(hh):
            B = []; b = lambda t, tag=None: B.append(I(t, tag))
            KV = KVA[hh]; PQ = A_PQ + 32 * hh
            for sg in range(2):
                for j in range(2):
                    b("v_mov_b32 v%d, v%d" % (KV + 4 * sg + j, S + 4 * hh + 2 * sg + j))
                    b("v_cvt_pk_bf16_f32 v%d, v%d, v%d" % (KV + 4 * sg + 2 + j, Z[hh] + 4 * sg + 2 * j, Z[hh] + 4 * sg + 2 * j + 1))
            for w in ("16", "32"):
                for sg in range(2):
                    for j in range(2): b("v_permlane%s_swap_b32 v%d, v%d" % (w, KV + 4 * sg + j, KV + 4 * sg + 2 + j))
            if CFG["qnorm"]:
                NN = [A_LD + 16 * u for u in range(4)]
                for u in range(4):
                    for sg in range(2): b("v_mfma_f32_32x32x16_bf16 %s, %s, %s, %s" % (v(NN[u], 16), v(KV + 4 * sg, 4), v(PQ + 8 * u + 4 * sg, 4), v(NN[u], 16) if sg else "0"))
                for u in range(4):
                    N = NN[u]
                    b("v_add_f32 v%d, 0x358637bd, v%d" % (N + 8, N + 8)); b("v_rcp_f32 v%d, v%d" % (N + 8, N + 8))
                    for j in range(8): b("v_mul_f32 v%d, v%d, v%d" % (N + j, N + j, N + 8))
                    for j in range(4): b("v_cvt_pk_bf16_f32 v%d, v%d, v%d" % (A_PQ + 8 * u + 4 * (j >> 1) + 2 * hh + (j & 1), N + 2 * j, N + 2 * j + 1))
                    if hh:
                        b("s_mov_b32 s%d, %d" % (sT5, u * 147456))
                        for h2 in range(2): b("buffer_store_dwordx4 %s, v%d, %s, s%d offen offset:%d sc1" % (v(A_PQ + 8 * u + 4 * h2, 4), A_OS, srd(SWS), sT5, 512 * h2), "ost")
                P.extend(mprio(B, CFG["fprio"])); return
            b("s_mov_b32 exec_lo, 0xff000000"); b("s_mov_b32 exec_hi, 0xff000000")
            for j in range(8): b("v_mov_b32 v%d, 0x3f803f80" % (KV + j))
            b("s_mov_b64 exec, -1")
            buf = [A_LD + 32, A_LD]
            def mm(u):
                for sg in range(2): b("v_mfma_f32_32x32x16_bf16 %s, %s, %s, 0" % (v(buf[u & 1] + 16 * sg, 16), v(KV + 4 * sg, 4), v(PQ + 8 * u + 4 * sg, 4)))
            mm(0)
            for u in range(4):
                if u < 3: mm(u + 1)
                N = buf[u & 1]; Q = N + 16; O = PQ + 8 * u
                b("v_rcp_f32 v%d, v%d" % (N + 12, N + 12)); b("v_rcp_f32 v%d, v%d" % (Q + 12, Q + 12))
                b("v_fmaak_f32 v%d, v%d, v%d, 0x358637bd" % (N + 8, N + 8, N + 12)); b("v_fmac_f32 v%d, v%d, v%d" % (N + 8, Q + 8, Q + 12))
                b("v_rcp_f32 v%d, v%d" % (N + 8, N + 8))
                b("v_mul_f32 v%d, v%d, v%d" % (N + 12, N + 12, N + 8)); b("v_mul_f32 v%d, v%d, v%d" % (Q + 12, Q + 12, N + 8))
                for j in range(8): b("v_mul_f32 v%d, v%d, v%d" % (N + j, N + j, N + 12))
                for j in range(8): b("v_fmac_f32 v%d, v%d, v%d" % (N + j, Q + j, Q + 12))
                for j in range(4): b("v_cvt_pk_bf16_f32 v%d, v%d, v%d" % (A_PQ + 8 * u + 4 * (j >> 1) + 2 * hh + (j & 1), N + 2 * j, N + 2 * j + 1))
            P.extend(mprio(B, CFG["fprio"]))
        def stores(hh):
            for u in range(4):
                a("s_mov_b32 s%d, %d" % (sT5, u * 147456))
                a("buffer_store_dwordx4 %s, v%d, %s, s%d offen offset:%d sc1" % (v(A_PQ + 8 * u + 4 * hh, 4), A_OS, srd(SWS), sT5, 512 * hh), "ost")
        stamp(14)
        for hh in range(2): a(sload(SWS, sCC, 512 * hh + 128, sG + hh))
        for hh in range(2): sgate(P, sCC, 512 * hh + 128, sG + hh, 8)
        stamp(15)
        for hh in range(2):
            a("buffer_load_dwordx4 %s, v%d, %s, 0 offen offset:%d sc1" % (v(S + 4 * hh, 4), A_PL, srd(SWS), 2048 * hh))
            for sg in range(2): a("buffer_load_dwordx4 %s, v%d, %s, 0 offen offset:%d sc1" % (v(Z[hh] + 4 * sg, 4), A_ZL, srd(SWS), 256 * hh + 64 * sg))
        P.append(W(vm="all"))
        finish(0); finish(1)
        if not CFG["qnorm"]: stores(0); stores(1)
        stamp(16)
        P.append(W(vm=["ost"]))
        a("s_mov_b64 exec, 3"); a("buffer_atomic_add v%d, v%d, %s, 0 offen offset:%d sc1" % (A_ONE, A_CM, srd(SWS), C_O * 128)); a("s_mov_b64 exec, -1")
        stamp(17)
    if CFG["stamps"]:
        a("s_lshl_b32 s%d, s2, 8" % sT0); a("s_add_u32 s%d, s%d, %d" % (sT0, sT0, WS_ST + 0x30000))
        a("v_lshlrev_b32 v64, 2, v1")
        a("s_cmp_lg_u32 s%d, %d" % (sW1, CFG["stampw"] & 1)); a("s_cbranch_scc1 L_exit")
        a("buffer_store_dword v34, v64, %s, s%d offen" % (srd(SWS), sT0))
    a("s_endpgm")
    return P

def main():
    hdr = open("cdna_kernels/%s.s.ref" % NAME).read().split("; Override launch geometry")[0]
    out = [hdr.rstrip(), "; @launch grid=(256,1,1) block=(512,1,1) lds=163840",
           '.amdgcn_target "amdgcn-amd-amdhsa--gfx950"', ".text", ".globl %s_kernel" % NAME, ".p2align 8",
           ".type %s_kernel,@function" % NAME, "%s_kernel:" % NAME]
    t, st = finalize(prologue()); out += t
    for nm, fn in (("attn", attn_wave), ("dma", dma_wave), ("comp", compute)):
        out.append("L_%s:" % nm)
        out += finalize([I("s_cmp_eq_u32 s%d, 1" % sTY), I("s_cbranch_scc1 L_%s1" % nm)] + fn(0), st.clone())[0]
        out.append("L_%s1:" % nm); out += finalize(fn(1), st.clone())[0]
    out += centre_sub() + STUBS
    out += lds_spin("c", 18, C_FV, CFG["cnap"]) + lds_spin("d", D_LA, D_DV, CFG["dnap"])
    out += ["L_exit:", "    s_endpgm", ".p2align 7", "L_tab:"] + ["    .long %d" % k for k in range(64)]
    out += ['.section .rodata,"a"', ".p2align 6", ".amdhsa_kernel %s_kernel" % NAME,
            "  .amdhsa_next_free_vgpr 256", "  .amdhsa_next_free_sgpr 100", "  .amdhsa_accum_offset 256",
            "  .amdhsa_group_segment_fixed_size 0", "  .amdhsa_kernarg_size 88", "  .amdhsa_user_sgpr_count 2",
            "  .amdhsa_user_sgpr_kernarg_segment_ptr 1", "  .amdhsa_system_sgpr_workgroup_id_x 1", ".end_amdhsa_kernel"]
    open(sys.argv[1], "w").write("\n".join(out) + "\n")
main()
```

```python
import sys, os, json
sys.path.insert(0, os.path.dirname(os.path.abspath(__file__)))
from asmir import I, W, L, M, v, s, finalize, State

NAME = "recurrent_scan__linear_kernel_hedgehog__glu_gated_bilinear__prompt"
CFG = dict(stamps=0, probe=0, probeat=-1, xprobe=0, outfl="", stampw=0, zoom=0, LA=6, LAF=3, erate=3, codepf=1, sleep=4, cnap=1, dnap=2, map=84, latin=1, stspread=0, qlate=0, ring2=[8, 9, 7, 0, 2, 3, 4, 5, 6], soft0=[], soft1=[], capsoft=48, zstep=1, bigring=0, bigto=20, cen0=32, dprio=0, hfl="sc1", cenat=4, nods=0, nost=0, noattn=0, light=0, nogate=[], qnorm=1, inl=0, tlb=0, tlbm=0xfffffff, s0at=2, kprio=0, qprio=0, fprio=0, wait2=0, kvfirst=1, l2nap=16, qpre=1, qpost=1, ftouch=0, fakeA=0, fakeP=0, dstep=1, fake16=0, lead=0, spoll=1, leadoff=0, who=[0, 2, 0, 2, 1, 3, 0, 2, 1], kpub=40, dry=0, aonly=0, map2=84, h2now=1, chk2=0,
           cap1=128, capt=160, cap2=112, capsw=20, awin=-1, pollat=2, hwait1=16, hwait2=-6, nb0=56, nb1=56, ahead2=4,
           bfirst=2, p2chk=1,
           rsat=56, exw0=[], exw1=[], afirst={},
           tplan0={"8": "d0 x", "15": "d1 o"}, tplan1={"5": "d0 x", "11": "d1 o"})
for a_ in sys.argv[2:]:
    k_, x_ = a_.split("="); assert k_ in CFG, k_; CFG[k_] = json.loads(x_)

WS_RS = 0x8000
WS_KV = 0x10000
WS_Z = 0x120000
WS_KVF = 0x130000; WS_ZF = 0x138000
WS_ST = 0x140000
WS_HO = 0x200000
WS_BYTES = WS_HO + 64 * 144 * 1024
C_H1A, C_H1B, C_H2, C_O = 0, 1, 2, 3
SLOT = 16384; STG = 32768; EX = 131072; FL = SLOT; LRS = FL + 2048; LSD = LRS + 512; F_INIT = 1792; LR2 = FL + 3072; LX = FL + 4096
F_LAND, F_DONE = 256, 768
F_EX, F_H, F_EXF, F_END = 32, 44, 52, 56
SX, SQKV, SPHI, SWO, SG, SU, SWD, SOUT, SDBG, SWS = 8, 12, 16, 20, 24, 28, 32, 36, 40, 44
sW, sW1, sI, sGR, sTY, sR1, sXR, sTT, sCT, sR2 = range(56, 66)
sT0, sT1, sT2, sT3, sT4, sT5 = range(66, 72)
sL2E = 72; sKC = 73; sSH = 74; sXL = 75; sKS = 76; sLA = 78; sXB = 79
sSPIN = 80; sRET = 82; sPH = 84; sTB = 88; sTM = 90; sMK = 94; sLM = 48; sLD = 49; sG = 50; sCC = 54; sPV = 55
srd = lambda b: s(b, 4)
LOG2E = 0x3fb8aa3b
XR = 128; ACC = 64; WF = 32
L_T, L_SEL, L_ID, L_SM, L_CM, L_SQ = 192, 224, 228, 232, 236, 240
L_XO, L_RR, L_C, L_SB, L_C7, L_WA, L_VA, L_VB = 124, 245, 246, 247, 248, 249, 251, 252
L_TR = 244
K_SQ, K_DL, K_RA = 16, 20, 24
H_STAMP = 255; H_STAMP2 = 254
_lbl = [0]
def newlbl():
    _lbl[0] += 1; return _lbl[0]
STUBS = []

PH = {0: [("P2", "kv", (0, 1)), ("P4", "gu", (2, 3, 0, 1)), ("P4", "gu", (0, 1, 2, 3))],
      1: [("P2", "q", (0, 1)), ("P2", "kv", (2, 3)), ("P4", "gu", (0, 1, 2, 3)), ("P2", "gu", (0, 1))]}
if CFG["kvfirst"]: PH[1][0:2] = [("P2", "kv", (0, 1)), ("P2", "q", (2, 3))]
if CFG["qlate"]: PH[1] = [("P2", "kv", (0, 1)), ("P4", "gu", (2, 3, 0, 1)), ("P2", "q", (0, 1)), ("P2", "gu", (2, 3))]
def slabs_of(ty):
    return [(pi, k, sg) for pi, (k, e, _) in enumerate(PH[ty]) for sg in range(8 if k == "P4" else 4)]
def slot_of(n):
    return (0, 2, 3, 4, 5, 6, 7)[n % 7] if n < 20 else tuple(CFG["ring2"])[(n - 20) % 9]
def prev_user(n):
    p = [m for m in range(n) if slot_of(m) == slot_of(n)]
    return p[-1] if p else -1
def marked(n): return n < 20 or n % CFG["dstep"] == CFG["dstep"] - 1
def checks(ty):
    c = {0: 0, 1: 1}
    for n in range(2, CFG["nb%d" % ty], 2):
        if (CFG["chk2"] if n < 20 else CFG["p2chk"] == 2): c[n] = n + 1
        else: c[n] = n; c[n + 1] = n + 1
    return c

def stamp_to(P, k, reg=H_STAMP):
    if CFG["stamps"]:
        P.append(I("s_memtime %s" % s(sTM + 2, 2))); P.append(W(lg="all"))
        P.append(I("s_sub_u32 s%d, s%d, s%d" % (sTM + 2, sTM + 2, sTM))); P.append(I("v_writelane_b32 v%d, s%d, %d" % (reg, sTM + 2, k)))
def rstamp(P, k):
    if CFG["stamps"]:
        P.append(I("s_memrealtime s[6:7]")); stamp_to(P, k, H_STAMP2)
        P.append(I("s_sub_u32 s6, s6, s4")); P.append(I("v_writelane_b32 v%d, s6, %d" % (H_STAMP2, k + 1)))
def raw(P, items):
    for x in finalize(items)[0]: P.append(L(x))
def only(P, cond, items):
    n = newlbl()
    for t in cond: P.append(I(t))
    P.append(I("s_cbranch_scc1 L_sk%d" % n)); raw(P, items); P.append(L("L_sk%d:" % n))
def one_lane(X, t, tag=None):
    X.append(I("s_mov_b64 exec, 1")); X.append(I(t, tag)); X.append(I("s_mov_b64 exec, -1"))

def p4_voffs(a, va, vb, stride, t):
    a("v_lshrrev_b32 v%d, 3, v1" % t)
    a("v_and_b32 v%d, 2, v%d" % (t + 1, t)); a("v_lshlrev_b32 v%d, 1, v%d" % (t + 1, t + 1))
    a("v_and_b32 v%d, 7, v1" % (t + 2)); a("v_xor_b32 v%d, v%d, v%d" % (t + 2, t + 2, t + 1))
    a("v_mul_u32_u24 v%d, %d, v%d" % (t, stride, t))
    a("v_lshl_add_u32 v%d, v%d, 4, v%d" % (va, t + 2, t))
    a("v_xor_b32 v%d, 32, v%d" % (vb, va))
def p2_voffs(a, va, vb, stride, t):
    a("v_lshrrev_b32 v%d, 2, v1" % t)
    a("v_and_b32 v%d, 3, v1" % (t + 2)); a("v_lshrrev_b32 v%d, 4, v1" % (t + 1)); a("v_and_b32 v%d, 2, v%d" % (t + 1, t + 1)); a("v_xor_b32 v%d, v%d, v%d" % (t + 2, t + 2, t + 1))
    a("v_mul_u32_u24 v%d, %d, v%d" % (t, stride, t))
    a("v_lshl_add_u32 v%d, v%d, 4, v%d" % (va, t + 2, t))
    a("v_mov_b32 v%d, v%d" % (vb, va))
def ident(a, dst, t):
    a("v_and_b32 v%d, 3, v1" % t)
    a("v_and_b32 v%d, 1, v1" % (t + 1)); a("v_lshlrev_b32 v%d, 4, v%d" % (t + 1, t + 1)); a("v_mov_b32 v%d, 0x3f80" % (t + 2))
    a("v_lshlrev_b32 v%d, v%d, v%d" % (t + 1, t + 1, t + 2))
    a("v_cmp_gt_u32 vcc, 2, v%d" % t)
    a("v_cndmask_b32 v%d, 0, v%d, vcc" % (dst, t + 1)); a("v_sub_u32 v%d, v%d, v%d" % (dst + 1, t + 1, dst))

X_V = 48
def prologue():
    P = []; a = lambda t, tag=None: P.append(I(t, tag))
    a("s_cmp_ge_u32 s2, 256")
    a("s_cbranch_scc1 L_exit")
    a("s_load_dwordx2 %s, s[0:1], 0" % s(SX, 2)); a("s_load_dwordx2 %s, s[0:1], 8" % s(SQKV, 2))
    if CFG["probe"]: a("s_memrealtime s[4:5]")
    if CFG["light"]: a("s_memtime %s" % s(sTM, 2)); a("s_memrealtime s[4:5]")
    if CFG["stamps"]:
        a("s_memtime %s" % s(sTM, 2)); a("s_memrealtime s[4:5]")
    a("s_lshr_b32 s%d, s2, 3" % sSH)
    a("s_getpc_b64 %s" % s(sTB, 2)); P.append(L("L_pc:"))
    if CFG["codepf"]:
        a("s_mul_i32 s%d, s%d, 24" % (sT0, sSH))
        a("v_add_u32 v3, s%d, v0" % sT0); a("v_lshlrev_b32 v3, 7, v3"); a("v_min_u32 v3, L_tab-L_pc+252, v3")
        a("v_cmp_gt_u32 vcc, 24, v0"); a("s_and_saveexec_b64 s[48:49], vcc"); a("s_cbranch_execz L_nopf")
        P.append(L("    global_load_dword v%d, v3, %s" % (X_V + 5, s(sTB, 2))))
        P.append(L("L_nopf:")); a("s_mov_b64 exec, -1")
    a("v_lshrrev_b32 v2, 6, v0")
    a("v_and_b32 v1, 63, v0")
    a("v_readfirstlane_b32 s%d, v2" % sW)
    a("s_and_b32 s%d, s2, 7" % sT5)
    a("s_lshr_b32 s%d, s%d, 4" % (sTY, sSH))
    if CFG["map"] == 48:
        a("s_and_b32 s%d, s%d, 3" % (sT3, sSH)); a("s_lshl_b32 s%d, s%d, 1" % (sXR, sT3))
        a("s_lshr_b32 s%d, s%d, 1" % (sT2, sT5)); a("s_lshl_b32 s%d, s%d, 2" % (sT2, sT2)); a("s_add_u32 s%d, s%d, s%d" % (sI, sT2, sT3))
        a("s_lshr_b32 s%d, s%d, 2" % (sR1, sSH))
        a("s_and_b32 s%d, s%d, 1" % (sT2, sT5)); a("s_lshl_b32 s%d, s%d, 2" % (sT2, sT2)); a("s_and_b32 s%d, s%d, 3" % (sT3, sR1)); a("s_add_u32 s%d, s%d, s%d" % (sGR, sT2, sT3))
    else:
        a("s_and_b32 s%d, s%d, 7" % (sXR, sSH))
        a("s_lshr_b32 s%d, s%d, 2" % (sT2, sT5)); a("s_lshl_b32 s%d, s%d, 3" % (sT2, sT2)); a("s_add_u32 s%d, s%d, s%d" % (sI, sT2, sXR))
        a("s_lshr_b32 s%d, s%d, 3" % (sT3, sSH)); a("s_lshl_b32 s%d, s%d, 1" % (sR1, sT3))
        a("s_and_b32 s%d, s%d, 3" % (sT2, sT5)); a("s_lshl_b32 s%d, s%d, 1" % (sT2, sT2)); a("s_and_b32 s%d, s%d, 1" % (sT3, sT3)); a("s_add_u32 s%d, s%d, s%d" % (sGR, sT2, sT3))
    if CFG["latin"]: a("s_add_u32 s%d, s%d, s%d" % (sR1, sR1, sXR)); a("s_and_b32 s%d, s%d, 7" % (sR1, sR1))
    a("s_mov_b32 s%d, 2097152" % (SX + 2)); a("s_mov_b32 s%d, 0x20000" % (SX + 3))
    X = []; x = lambda t, tag=None: X.append(I(t, tag))
    x("v_lshrrev_b32 v4, 3, v1"); x("v_lshrrev_b32 v5, 4, v1"); x("v_and_b32 v6, 7, v1"); x("v_xor_b32 v5, v5, v6")
    x("v_lshlrev_b32 v4, 10, v4"); x("v_lshl_add_u32 v%d, v5, 4, v4" % X_V)
    x("v_xor_b32 v4, 64, v%d" % X_V)
    x("v_add_u32 v%d, 7168, v4" % (X_V + 1)); x("v_add_u32 v%d, 14336, v%d" % (X_V + 2, X_V)); x("v_add_u32 v%d, 21504, v4" % (X_V + 3))
    x("s_and_b32 s%d, s%d, 3" % (sT0, sW)); x("s_lshl_b32 s%d, s%d, 12" % (sXL, sT0)); x("s_add_u32 s%d, s%d, %d" % (sXL, sXL, STG))
    x("s_lshl_b32 s%d, s%d, 15" % (sT0, sT0)); x("s_lshl_b32 s%d, s%d, 17" % (sXB, sI)); x("s_add_u32 s%d, s%d, s%d" % (sXB, sXB, sT0))
    x("s_cmp_lt_u32 s%d, 4" % sW); x("s_cbranch_scc1 L_nox")
    x("s_waitcnt lgkmcnt(0)")
    xline(x, 0); xline(x, 1)
    raw(P, X); P.append(L("L_nox:"))
    if CFG["stamps"]:
        a("v_mov_b32 v%d, 0" % H_STAMP); a("v_mov_b32 v%d, 0" % H_STAMP2); P.append(W(lg="all"))
    stamp_to(P, 0, H_STAMP2)
    for b, off in ((SPHI, 16), (SWS, 80), (SG, 40), (SU, 48), (SWO, 24), (SWD, 56), (SOUT, 64), (SDBG, 72)):
        a("s_load_dwordx2 %s, s[0:1], %d" % (s(b, 2), off))
    for b, n in ((SQKV, 1572864), (SPHI, 16384), (SWO, 524288), (SG, 1835008), (SU, 1835008), (SWD, 1835008), (SOUT, 2097152), (SDBG, 256), (SWS, WS_BYTES)):
        a("s_mov_b32 s%d, %d" % (b + 2, n)); a("s_mov_b32 s%d, 0x20000" % (b + 3))
    a("s_lshl_b32 s%d, s%d, 7" % (sKC, sGR)); a("s_lshl_b32 s%d, s%d, 6" % (sT0, sTY)); a("s_add_u32 s%d, s%d, s%d" % (sKC, sKC, sT0)); a("s_add_u32 s%d, s%d, 1024" % (sKC, sKC))
    if CFG["map2"] == 48:
        a("s_lshr_b32 s%d, s%d, 2" % (sCT, sSH)); a("s_and_b32 s%d, s%d, 3" % (sT3, sSH))
        a("s_lshl_b32 s%d, s%d, 2" % (sT2, sT5)); a("s_add_u32 s%d, s%d, s%d" % (sTT, sT2, sT3))
        a("s_lshl_b32 s%d, s%d, 1" % (sT3, sT3)); a("s_add_u32 s%d, s%d, s%d" % (sR2, sT3, sCT))
    else:
        a("s_lshr_b32 s%d, s%d, 3" % (sT3, sSH)); a("s_and_b32 s%d, s%d, 1" % (sT2, sT5)); a("s_lshl_b32 s%d, s%d, 2" % (sT2, sT2)); a("s_add_u32 s%d, s%d, s%d" % (sCT, sT2, sT3))
        a("s_and_b32 s%d, s%d, 7" % (sT1, sSH)); a("s_lshr_b32 s%d, s%d, 1" % (sT2, sT5)); a("s_lshl_b32 s%d, s%d, 3" % (sT2, sT2)); a("s_add_u32 s%d, s%d, s%d" % (sTT, sT2, sT1))
        a("s_and_b32 s%d, s%d, 1" % (sT3, sT3)); a("s_lshl_b32 s%d, s%d, 1" % (sT3, sT3)); a("s_add_u32 s%d, s%d, s%d" % (sT3, sT3, sTY))
        if CFG["lead"]: a("s_mov_b32 s%d, s%d" % (sLD, sT3)); a("s_mov_b32 s%d, s%d" % (sR2, sT1))
        else: a("s_lshl_b32 s%d, s%d, 1" % (sT3, sT3)); a("s_add_u32 s%d, s%d, s%d" % (sR2, sT3, sT1))
    a("s_and_b32 s%d, s%d, 1" % (sW1, sW))
    a("s_mov_b32 s%d, 0x%x" % (sL2E, LOG2E))
    a("s_add_u32 s%d, s%d, L_tab-L_pc" % (sTB, sTB)); a("s_addc_u32 s%d, s%d, 0" % (sTB + 1, sTB + 1))
    P.append(W(lg="all"))
    a("s_cmp_lt_u32 s%d, 4" % sW); a("s_cbranch_scc1 L_comp")
    a("s_cmp_lt_u32 s%d, 6" % sW); a("s_cbranch_scc1 L_dma")
    return P

def xline(a, j):
    a("s_add_u32 s%d, s%d, %d" % (sT0, sR1, j)); a("s_and_b32 s%d, s%d, 7" % (sT0, sT0)); a("s_lshl_b32 s%d, s%d, 7" % (sT0, sT0)); a("s_add_u32 s%d, s%d, s%d" % (sT0, sT0, sXB))
    a("s_add_u32 m0, s%d, %d" % (sXL, j * 16384))
    for p in range(4): a("buffer_load_dwordx4 v%d, %s, s%d offen offset:%d lds" % (X_V + p, srd(SX), sT0, p * 1024), ("x", j))
def xstages(P, extra):
    a = lambda t, tag=None: P.append(I(t, tag))
    xline(a, 2); xline(a, 3)
    for j in range(4):
        P.append(W(vm=[("x", 2 * j + 1)]))
        a("s_barrier")
        if j == 0: stamp_to(P, 2, H_STAMP2)
        if j < 2: xline(a, 2 * j + 4); xline(a, 2 * j + 5)
        if j in extra: extra[j]()

def fcols(a, ty):
    if ty == 0:
        a("s_lshl_b32 s%d, s%d, 7" % (sKS, sGR)); a("s_add_u32 s%d, s%d, 64" % (sKS + 1, sKS))
    else:
        a("s_mul_i32 s%d, s%d, 96" % (sT0, sGR)); a("s_add_u32 s%d, s%d, 1024" % (sT0, sT0))
        a("s_and_b32 s%d, s%d, 1" % (sT1, sGR)); a("s_lshl_b32 s%d, s%d, 5" % (sT2, sT1))
        a("s_add_u32 s%d, s%d, s%d" % (sKS, sT0, sT2))
        a("s_xor_b32 s%d, s%d, 1" % (sT1, sT1)); a("s_lshl_b32 s%d, s%d, 6" % (sT1, sT1))
        a("s_add_u32 s%d, s%d, s%d" % (sKS + 1, sT0, sT1))

def clear_low(a, used):
    for k in range(2, 64):
        if k not in used: a("v_mov_b32 v%d, 0" % k)

def lds_spin(nm, va, vd, nap):
    X = ["L_spin_%s:" % nm, "    s_mov_b32 s%d, 0" % sSPIN, "L_spl_%s:" % nm]
    if nap: X.append("    s_sleep %d" % nap)
    X += ["    ds_read_b32 v%d, v%d" % (vd, va), "    s_add_u32 s%d, s%d, 1" % (sSPIN, sSPIN), "    s_waitcnt lgkmcnt(0)",
          "    s_cmp_ge_u32 s%d, 0x1000000" % sSPIN, "    s_cbranch_scc1 L_spr_%s" % nm,
          "    v_cmp_gt_u32 vcc, s%d, v%d" % (sSPIN + 1, vd), "    s_cbranch_vccnz L_spl_%s" % nm, "L_spr_%s:" % nm, "    s_setpc_b64 %s" % s(sRET, 2)]
    return X
def count_wait(P, vfl, vd, off, want):
    n = newlbl()
    P.append(W(lg="all"))
    for t in ["    s_mov_b32 s%d, 0" % sSPIN, "L_cw%d:" % n, "    ds_read_b32 v%d, v%d offset:%d" % (vd, vfl, off), "    s_add_u32 s%d, s%d, 1" % (sSPIN, sSPIN),
              "    s_waitcnt lgkmcnt(0)", "    v_cmp_le_u32 vcc, %d, v%d" % (want, vd), "    s_cbranch_vccnz L_cx%d" % n, "    s_sleep %d" % CFG["dnap"],
              "    s_cmp_lt_u32 s%d, 0x1000000" % sSPIN, "    s_cbranch_scc1 L_cw%d" % n, "L_cx%d:" % n]: P.append(L(t))

def sload(base, soff, off, sdst):
    return "s_load_dword s%d, %s, %s glc" % (sdst, s(base, 2), ("s%d offset:%d" % (soff, off)) if soff is not None else "%d" % off)
def sgate(P, soff, off, sdst, want, base=None):
    n = newlbl()
    P.append(W(lg="all"))
    P.append(I("s_cmp_eq_u32 s%d, %d" % (sdst, want))); P.append(I("s_cbranch_scc1 L_ok%d" % n))
    X = ["    s_mov_b32 s%d, 0" % sSPIN, "L_spin%d:" % n]
    if CFG["sleep"]: X.append("    s_sleep %d" % CFG["sleep"])
    X += ["    " + sload(SWS if base is None else base, soff, off, sdst), "    s_add_u32 s%d, s%d, 1" % (sSPIN, sSPIN),
          "    s_waitcnt lgkmcnt(0)", "    s_cmp_eq_u32 s%d, %d" % (sdst, want), "    s_cbranch_scc1 L_ok%d" % n,
          "    s_cmp_lt_u32 s%d, 0x80000" % sSPIN, "    s_cbranch_scc1 L_spin%d" % n, "L_ok%d:" % n]
    for t in X: P.append(L(t))

def gate(P, vaddr, srdb, off, tag, vdst, want, slow=None):
    n = newlbl()
    P.append(W(lg=[tag]) if tag == "init" else W(vm=[tag]))
    P.append(I("v_cmp_eq_u32 vcc, %d, v%d" % (want, vdst)))
    P.append(I("s_cbranch_vccnz L_ok%d" % n))
    if slow: raw(P, slow)
    X = ["    s_mov_b32 s%d, 0" % sSPIN, "L_spin%d:" % n]
    if CFG["sleep"]: X.append("    s_sleep %d" % CFG["sleep"])
    X += ["    buffer_load_dword v%d, v%d, %s, 0 offen offset:%d sc1" % (vdst, vaddr, srd(srdb), off), "    s_add_u32 s%d, s%d, 1" % (sSPIN, sSPIN),
          "    s_waitcnt vmcnt(0)", "    v_cmp_eq_u32 vcc, %d, v%d" % (want, vdst), "    s_cbranch_vccnz L_ok%d" % n,
          "    s_cmp_lt_u32 s%d, 0x80000" % sSPIN, "    s_cbranch_scc1 L_spin%d" % n, "L_ok%d:" % n]
    for t in X: P.append(L(t))

C_XA, N_ONES, N_SQ = ACC + 16, ACC + 20, ACC + 24
N_T, N_CM, N_ID, N_R, N_DL, N_TK = ACC + 32, ACC + 48, ACC + 56, ACC + 58, ACC + 62, ACC + 63
C_A2, C_B2, C_OUT, C_RO = 25, 28, 31, 0
C_FV, C_HC, C_FL, C_ONE, C_DV, C_CM = 16, 20, 21, 22, 23, 24
MM = "v_mfma_f32_16x16x32_bf16"
def compute_setup(ty):
    P = []; a = lambda t, tag=None: P.append(I(t, tag))
    t = list(range(32, 48))
    tk, G, r, c, g0, g1 = t[0:6]
    a("v_and_b32 v%d, 15, v1" % tk); a("v_lshrrev_b32 v%d, 4, v1" % G); a("v_and_b32 v%d, 1, v%d" % (g0, G)); a("v_lshrrev_b32 v%d, 5, v1" % g1)
    a("s_lshl_b32 s%d, s%d, 12" % (sT1, sW)); a("s_add_u32 s%d, s%d, %d" % (sT1, sT1, STG))
    a("v_lshlrev_b32 v%d, 7, v%d" % (t[6], tk)); a("v_add_u32 v%d, s%d, v%d" % (t[7], sT1, t[6]))
    a("v_lshrrev_b32 v%d, 1, v%d" % (t[8], tk)); a("v_xor_b32 v%d, v%d, v%d" % (t[8], t[8], G))
    a("v_lshl_add_u32 v%d, v%d, 4, v%d" % (C_XA, t[8], t[7])); a("v_xor_b32 v%d, 64, v%d" % (C_XA + 1, C_XA))
    for k in range(2): a("v_add_u32 v%d, 0x10000, v%d" % (C_XA + 2 + k, C_XA + k)); a("v_mov_b32 v%d, 0x3f803f80" % (N_ONES + k))
    ident(a, N_ID, t[13])
    for j in range(3): a("v_cmp_eq_u32 %s, %d, v%d" % (s(sMK + 2 * j, 2), j + 1, t[13]))
    a("v_mov_b32 v%d, %d" % (C_FL, FL)); a("v_mov_b32 v%d, 1" % C_ONE); a("s_lshl_b32 s%d, s%d, 1" % (sT4, sI)); a("s_lshr_b32 s%d, s%d, 1" % (sT3, sW)); a("s_add_u32 s%d, s%d, s%d" % (sT4, sT4, sT3))
    a("s_lshl_b32 s%d, s%d, 9" % (sT4, sT4)); a("v_mov_b32 v%d, s%d" % (C_CM, sT4))
    a("v_and_b32 v18, 1, v1"); a("v_lshlrev_b32 v18, 8, v18"); a("v_add_u32 v18, %d, v18" % (FL + F_LAND))
    a("s_lshl_b32 s%d, s%d, 8" % (sT4, sW)); a("s_add_u32 m0, s%d, %d" % (sT4, FL + F_DONE))
    a("s_lshl_b32 s%d, s%d, 5" % (sT4, sW)); a("v_and_b32 v%d, 31, v1" % N_TK); a("v_add_u32 v%d, s%d, v%d" % (N_TK, sT4, N_TK))
    a("v_bfe_u32 v%d, v1, 2, 2" % r); a("v_and_b32 v%d, 3, v1" % c); a("v_lshlrev_b32 v%d, 3, v%d" % (c, c))
    a("v_lshl_add_u32 v%d, v%d, 11, v%d" % (t[8], G, c)); a("v_lshl_add_u32 v%d, v%d, 7, v%d" % (t[8], r, t[8]))
    a("v_and_b32 v%d, 2, v%d" % (t[9], r)); a("v_xor_b32 v%d, v%d, v%d" % (t[9], t[9], g0))
    a("v_lshl_add_u32 v2, v%d, 5, v%d" % (t[9], t[8]))
    for k in range(1, 4): a("v_xor_b32 v%d, %d, v2" % (2 + k, 32 * k))
    for k in range(4): a("v_add_u32 v%d, 0x10000, v%d" % (6 + k, 2 + k))
    a("v_lshl_add_u32 v%d, v%d, 11, v%d" % (t[8], g1, c)); a("v_lshl_add_u32 v%d, v%d, 6, v%d" % (t[8], r, t[8]))
    a("v_mul_u32_u24 v%d, 544, v%d" % (t[9], g0)); a("v_add_u32 v10, v%d, v%d" % (t[8], t[9])); a("v_xor_b32 v11, 32, v10")
    for k in range(2): a("v_add_u32 v%d, 0x10000, v%d" % (12 + k, 10 + k))
    a("s_lshl_b32 s%d, s%d, 13" % (sT0, sW)); a("s_add_u32 s%d, s%d, %d" % (sT0, sT0, EX))
    a("v_lshlrev_b32 v15, 9, v%d" % g0); a("v_lshl_add_u32 v15, v%d, 4, v15" % tk); a("v_lshl_add_u32 v15, v%d, 3, v15" % g1); a("v_add_u32 v15, s%d, v15" % sT0)
    a("v_lshlrev_b32 v%d, 4, v1" % t[11])
    a("s_lshl_b32 s%d, s%d, 2" % (sT0, sI)); a("s_add_u32 s%d, s%d, s%d" % (sT0, sT0, sW)); a("s_mul_i32 s%d, s%d, %d" % (sT0, sT0, 147456))
    a("s_add_u32 s%d, s%d, %d" % (sT0, sT0, WS_HO)); a("v_add_u32 v14, s%d, v%d" % (sT0, t[11]))
    fcols(a, ty)
    a("s_lshl_b32 s%d, s%d, 6" % (sKS, sKS)); a("s_lshl_b32 s%d, s%d, 6" % (sKS + 1, sKS + 1))
    a("s_lshr_b32 s%d, s%d, 1" % (sT0, sW))
    a("s_lshl_b32 s%d, s%d, 13" % (sT2, sT0)); a("s_add_u32 s%d, s%d, 2048" % (sT2, sT2))
    a("v_add_u32 v%d, s%d, v%d" % (C_A2, sT2, t[11])); a("v_add_u32 v%d, 0x10000, v%d" % (C_A2 + 1, C_A2)); a("v_add_u32 v%d, 0x20000, v%d" % (C_A2 + 2, C_A2))
    u = t[12]
    a("v_bfe_u32 v%d, v1, 3, 2" % u); a("s_lshl_b32 s%d, s%d, 1" % (sT4, sW1)); a("v_xor_b32 v%d, s%d, v%d" % (u, sT4, u)); a("v_lshl_add_u32 v%d, v%d, 5, v%d" % (C_B2, u, c))
    a("v_lshrrev_b32 v%d, 2, v1" % u); a("v_lshl_add_u32 v%d, v%d, 7, v%d" % (C_B2, u, C_B2))
    a("v_add_u32 v%d, 0x10000, v%d" % (C_B2 + 1, C_B2)); a("v_add_u32 v%d, 0x20000, v%d" % (C_B2 + 2, C_B2))
    a("s_lshl_b32 s%d, s%d, 5" % (sT3, sT0)); a("v_add_u32 v%d, s%d, v%d" % (u, sT3, tk)); a("v_lshlrev_b32 v%d, 2, v%d" % (C_RO, u))
    a("s_lshl_b32 s%d, s%d, 6" % (sT4, sW1))
    a("v_lshlrev_b32 v17, 7, v%d" % u); a("v_lshl_add_u32 v17, v%d, 3, v17" % G); a("v_add_u32 v17, s%d, v17" % sT4)
    a("s_lshl_b32 s%d, s%d, 16" % (sT2, sTT)); a("s_lshl_b32 s%d, s%d, 7" % (sT3, sCT)); a("s_add_u32 s%d, s%d, s%d" % (sT3, sT3, sT4)); a("s_add_u32 s%d, s%d, s%d" % (sT3, sT3, sT2))
    a("v_lshlrev_b32 v%d, 10, v%d" % (u, u)); a("v_lshl_add_u32 v%d, v%d, 5, v%d" % (u, g0, u)); a("v_lshl_add_u32 v%d, v%d, 4, v%d" % (u, g1, u)); a("v_add_u32 v%d, s%d, v%d" % (C_OUT, sT3, u))
    return P

def centre(a, k0, k1):
    def cen(k, h): a("v_mfma_f32_4x4x4_16b_bf16 %s, %s, %s, %s" % (v(N_T + 8 * (k & 1) + 4 * h, 4), v(N_ID, 2), v(XR + 4 * k + 2 * h, 2), v(N_CM + 4 * (k & 1), 4)))
    cen(k0, 0); cen(k0, 1); cen(k0 + 1, 0)
    for k in range(k0, k1):
        for h in range(2):
            kn, hn = k + (h + 3) // 2, (h + 3) & 1
            if kn < k1: cen(kn, hn)
            for j in (2 * h, 2 * h + 1): a("v_cvt_pk_bf16_f32 v%d, v%d, v%d" % (XR + 4 * k + j, N_T + 8 * (k & 1) + 2 * j, N_T + 8 * (k & 1) + 2 * j + 1))
def centre_sub():
    P = []; centre(lambda t: P.append(I(t)), 0, 24); P.append(I("s_setpc_b64 %s" % s(sRET, 2)))
    return ["L_centre:"] + finalize(P)[0]
def fold4(x, p, q):
    x("v_permlane16_swap_b32 v%d, v%d" % (p, q)); x("v_add_f32 v%d, v%d, v%d" % (p, p, q))
    x("v_mov_b32 v%d, v%d" % (q, p)); x("v_permlane32_swap_b32 v%d, v%d" % (p, q)); x("v_add_f32 v%d, v%d, v%d" % (p, p, q))

def compute(ty):
    P = compute_setup(ty); a = lambda t, tag=None: P.append(I(t, tag))
    CH = checks(ty)
    ops = []; queue = []
    sl = slabs_of(ty); gu_seen = 0; ex_seen = 0
    firstuse = {}; epi = []
    def pair(acc, fa, fb2, zero):
        return ["%s %s, %s, %s, %s" % (MM, v(acc + 4 * h, 4), v(fa, 4), v(fb2 + 4 * h, 4), "0" if zero else v(acc + 4 * h, 4)) for h in range(2)]
    for n, (pi, kind, sg) in enumerate(sl):
        slot = slot_of(n); win = slot >> 2; base = (slot & 3) * SLOT
        e, tiles = PH[ty][pi][1:]
        order = tiles if sg == 0 else sorted(tiles)
        nk = 2 if kind == "P4" else 4
        last = sg == (7 if kind == "P4" else 3)
        for t in order:
            if sg == 0: firstuse[(pi, t)] = len(ops)
            for u in range(nk):
                for mat in range(2):
                    m = len(ops); fb = WF + 4 * (m & 7)
                    if kind == "P4": ar, off, dq = 2 + 4 * win + t, base + u * 8192 + mat * 1024, 512
                    else: ar, off, dq = 10 + 2 * win + (t & 1), base + u * 4096 + mat * 1024, 256
                    ops.append(dict(slab=n, reads=[("ds_read_b64_tr_b16 %s, v%d offset:%d" % (v(fb, 2), ar, off), ("f", m)),
                                                   ("ds_read_b64_tr_b16 %s, v%d offset:%d" % (v(fb + 2, 2), ar, off + dq), ("f", m))],
                                    la=CFG["LA"], mfma=pair(ACC + 16 * t + 8 * mat, fb, XR + 8 * (sg * nk + u), sg == 0 and u == 0)))
            if last:
                A = ACC + 16 * t; E = []; hold = [t]
                if e == "gu":
                    D = ACC + 16 * (t & ~1) + 8; hold = [t, t & ~1]
                    for j in range(8): E.append(I("v_mul_f32 v%d, v%d, v%d" % (A + j, A + j, A + j + 8)))
                    for j in range(4):
                        E.append(I("v_cvt_pk_bf16_f32 v%d, v%d, v%d" % (D + 4 * (j >> 1) + 2 * (t & 1) + (j & 1), A + 2 * j, A + 2 * j + 1)))
                        if t & 1 and j & 1:
                            E.append(I("buffer_store_dwordx4 %s, v14, %s, s%d offen offset:%d %s" % (v(D + 4 * (j >> 1), 4), srd(SWS), sKS + gu_seen, ((t - 1 if kind == "P4" else 0) + (j >> 1)) * 1024, CFG["hfl"]), ("h", gu_seen)))
                else:
                    for j in range(4):
                        for k in range(2): E.append(I("v_cvt_pk_bf16_f32 v%d, v%d, v%d" % (A + 4 * j + k, A + 4 * j + 2 * k, A + 4 * j + 2 * k + 1)))
                        E.append(I("ds_write_b64 v15, %s offset:%d" % (v(A + 4 * j, 2), ((t & 1) + 2 * (e == "q")) * 2048 + (j >> 1) * 1024 + (j & 1) * 256)))
                    if t == order[-1]:
                        g = []; one_lane(g, "ds_add_u32 v%d, v%d offset:%d" % (C_FL, C_ONE, F_EX + 4 * ex_seen)); E.append(g); ex_seen += 1
                if CFG["nods"]: E = [x_ for x_ in E if not (isinstance(x_, I) and x_.t.startswith("ds_write"))]
                if CFG["nost"]: E = [(M(x_.tag) if isinstance(x_, I) and x_.t.startswith("buffer_store") else x_) for x_ in E]
                if CFG["stspread"] and e == "gu" and t & 1:
                    st_ = [x_ for x_ in E if isinstance(x_, I) and x_.t.startswith("buffer_store")]
                    nst = 4 if kind == "P4" else 2; endp = (len(ops) + 15) // 16 * 16
                    for q_, x_ in enumerate(st_):
                        idx = (t - 1 if kind == "P4" else 0) + q_
                        if idx < nst - 1: E.remove(x_); epi.append((endp + 4 - (nst - 1 - idx) * CFG["stspread"], 99, [], [x_]))
                epi.append((len(ops), pi, hold, E))
        if last and e == "gu":
            kind_ = (C_H1B if ty else C_H1A) if gu_seen == 0 else C_H2
            g1 = [W(vm=[("h", gu_seen)])]; one_lane(g1, "buffer_atomic_add v%d, v%d, %s, 0 offen offset:%d sc1" % (C_ONE, C_CM, srd(SWS), kind_ * 128))
            epi.append((len(ops) + 6 + CFG["hwait1" if gu_seen == 0 else "hwait2"], 99, [], [g1]))
            gu_seen += 1
    n1 = len(ops)
    HB = XR; RES = XR + 32; R2 = XR + 40
    Y, S_ = XR + 48, XR + 64
    for n in range(20, 56):
        slot = slot_of(n); win = slot >> 2; base = (slot & 3) * SLOT
        for kk in range(4):
            u, nb = kk >> 1, kk & 1
            m = len(ops); fb = WF + 4 * (m & 7); hb = HB + 8 * ((m >> 1) & 3); br = (2 if nb else C_B2) + win
            blk = (lambda q: 2 * u + q) if n < 48 else (lambda q: u + 2 * q)
            rd = [("ds_read_b64_tr_b16 %s, v%d offset:%d" % (v(fb + 2 * q, 2), br, base + blk(q) * 4096), ("f", m)) for q in range(2)]
            if not nb: rd += [("ds_read_b128 %s, v%d offset:%d" % (v(hb + 4 * h, 4), C_A2 + win, base + u * 4096 + h * 1024), ("f", m)) for h in range(2)]
            ops.append(dict(slab=n, reads=rd, la=4 if n > 20 else kk + 1, mfma=pair((Y if n < 48 else S_) + 8 * nb, fb, hb, n in (20, 48) and u == 0)))
    for k in range(3): queue.append((n1 - 3, n1 - 1, I("v_xor_b32 v%d, 32, v%d" % (2 + k, C_B2 + k))))
    X = []; x = lambda t: X.append(I(t)); r = N_R
    fold4(x, r, r + 1)
    x("v_mul_f32 v%d, 0x3b000000, v%d" % (r, r)); x("v_fma_f32 v%d, -v%d, v%d, v%d" % (r, N_DL, N_DL, r)); x("v_max_f32 v%d, 0, v%d" % (r, r))
    def rnd(): x("v_cvt_pk_bf16_f32 v%d, v%d, v%d" % (r + 1, r, r)); x("v_and_b32 v%d, 0xffff0000, v%d" % (r, r + 1))
    rnd(); x("v_add_f32 v%d, 0x3727c5ac, v%d" % (r, r)); rnd(); x("v_sqrt_f32 v%d, v%d" % (r, r)); rnd()
    x("v_rcp_f32 v%d, v%d" % (r, r))
    x("v_lshl_add_u32 v%d, v%d, 1, v%d" % (r + 2, N_TK, C_FL)); x("v_lshl_add_u32 v%d, v%d, 2, v%d" % (r + 3, N_TK, C_FL))
    x("ds_write_b16 v%d, v%d offset:%d" % (r + 2, r + 1, LSD - FL)); x("ds_write_b32 v%d, v%d offset:%d" % (r + 3, r, LRS - FL))
    for j, it in enumerate(X[:-2]): queue.append((12 + j, 50, it))
    for it in X[-2:]:
        if not CFG["nods"]: queue.append((CFG["rsat"], 60, it))
    if ty == 0:
        g = []
        only(g, ["s_cmp_lg_u32 s%d, 0" % sGR], [I("s_lshl_b32 s%d, s%d, 9" % (sT4, sI)), I("s_add_u32 s%d, s%d, %d" % (sT4, sT4, WS_RS - FL)), I("s_mov_b32 exec_hi, 0"),
                                               I("buffer_store_dword v%d, v%d, %s, s%d offen sc1" % (r, r + 3, srd(SWS), sT4)), I("s_mov_b64 exec, -1")])
        queue.append((46, 60, g))
    queue.append((158, 160, I("ds_read_b32 v%d, v%d offset:%d" % (C_HC, C_FL, F_INIT), "init")))
    g = []; gate(g, C_DV, SDBG, 0, "init", C_HC, 1, slow=[I("v_mov_b32 v%d, 0" % C_DV)]); queue.append((164, 166, g))
    for e0, pi, hold, E in epi:
        dl = min([x_ for (p2, t2), x_ in firstuse.items() if p2 > pi and t2 in hold] + [10 ** 9]) - 1
        for it in E: queue.append((e0, dl, it))
    G = XR + 80; XF = XR + 96; E = []
    for j in range(4): E.append(I("ds_read_b64 %s, v17 offset:%d" % (v(RES + 2 * j, 2), LX + (j >> 1) * 32 + (j & 1) * 2048), "res"))
    for h in range(2): E.append(I("ds_read_b32 v%d, v%d offset:%d" % (R2 + h, C_RO, LR2 + 64 * h), "res"))
    for j, it in enumerate(E): queue.append((n1 + 21 * 4 + j, 10 ** 9, it))
    E = [W(lg=["res"])]
    for h in range(2): E.append(I("v_mul_f32 v%d, v%d, v%d" % (R2 + h, R2 + h, R2 + h)))
    for h in range(2): E.append(I("v_mul_f32 v%d, s%d, v%d" % (R2 + 2 + h, sL2E, R2 + h)))
    for j in range(8):
        E.append(I("v_lshlrev_b32 v%d, 16, v%d" % (XF + 2 * j, RES + j))); E.append(I("v_and_b32 v%d, 0xffff0000, v%d" % (XF + 2 * j + 1, RES + j)))
    for it in E: queue.append((n1 + 24 * 4, 10 ** 9, it))
    E = []
    for j in range(16): E.append(I("v_mul_f32 v%d, v%d, v%d" % (G + j, R2 + 2 + ((j >> 2) & 1), Y + j)))
    for j in range(16): E.append(I("v_exp_f32 v%d, -v%d" % (G + j, G + j)))
    for j in range(16): E.append(I("v_mul_f32 v%d, v%d, v%d" % (Y + j, R2 + ((j >> 2) & 1), Y + j)))
    for j in range(16): E.append(I("v_add_f32 v%d, 1.0, v%d" % (G + j, G + j)))
    for j in range(16): E.append(I("v_rcp_f32 v%d, v%d" % (G + j, G + j)))
    for j in range(16): E.append(I("v_mul_f32 v%d, v%d, v%d" % (G + j, G + j, Y + j)))
    for it in E: queue.append((n1 + 28 * 4 + 1, 10 ** 9, it))
    queue.sort(key=lambda x_: x_[0])
    first = {}
    for m, o in enumerate(ops): first.setdefault(o["slab"], m)
    fread = {first[n] - ops[first[n]]["la"] - (CFG["LAF"] if n <= 20 else 3): n for n in CH if n}
    lastdone = prev_user(55)
    def done(n):
        a("v_mov_b32 v%d, %d" % (C_DV, 4 * (n + 1))); a("global_load_lds_dword v%d, %s" % (C_DV, s(sTB, 2)))
    issued = 0; cur = -1
    def issue_reads(upto_fn):
        nonlocal issued, cur
        while issued < len(ops) and upto_fn(issued):
            o = ops[issued]
            if o["slab"] > cur:
                cur = o["slab"]
                if cur in CH:
                    lb = newlbl()
                    if cur >= CFG["inl"] or cur < 2:
                        a("s_cbranch_vccz L_cb%d" % lb)
                        raw(P, [I("s_movk_i32 s%d, %d" % (sSPIN + 1, CH[cur] + 1)), I("s_call_b64 %s, L_spin_c" % s(sRET, 2))]); P.append(L("L_cb%d:" % lb))
                    else:
                        a("s_cbranch_vccnz L_cs%d" % lb); P.append(L("L_cb%d:" % lb))
                        STUBS.extend(["L_cs%d:" % lb, "    s_movk_i32 s%d, %d" % (sSPIN + 1, CH[cur] + 1),
                                  "    s_call_b64 %s, L_spin_c" % s(sRET, 2), "    s_branch L_cb%d" % lb])
            for t, tag in o["reads"]: a(t, tag)
            issued += 1
    def cstamp(k):
        r = sPH + 2 * (k & 1)
        if k > 2:
            a("s_sub_u32 s%d, s%d, s%d" % (r, r, sTM)); a("v_writelane_b32 v19, s%d, %d" % (r, k - 2))
        P.append(L("    s_memtime %s" % s(r, 2)))
    SM = ACC
    a("s_mov_b32 s%d, 0" % (sSPIN + 1)); a("s_call_b64 %s, L_spin_c" % s(sRET, 2))
    for j in range(4):
        a("s_barrier")
        for k in range(8 * j, 8 * j + 8):
            a("ds_read_b128 %s, v%d offset:%d" % (v(XR + 4 * k, 4), C_XA + ((k >> 1) & 1) + 2 * (k >> 4), ((k >> 2) & 3) * 16384 + (k & 1) * 2048), ("xn", k))
        for k in range(8 * j, 8 * j + 8, 2):
            P.append(W(lg=[("xn", k + 1)]))
            if k == 30: a("s_barrier")
            for h in range(2):
                for sq in range(2):
                    for t in range(2):
                        xx = v(XR + 4 * (k + t) + 2 * h, 2); c = v((N_SQ if sq else SM) + 4 * t, 4)
                        a("v_mfma_f32_4x4x4_16b_bf16 %s, %s, %s, %s" % (c, xx if sq else v(N_ONES, 2), xx, "0" if (k, h) == (0, 0) else c))
    a("s_waitcnt vmcnt(0)")
    fold4(a, SM, SM + 4)
    a("v_mul_f32 v%d, 0xbb000000, v%d" % (N_DL, SM))
    a("v_cvt_pk_bf16_f32 v%d, v%d, v%d" % (SM, N_DL, N_DL)); a("v_mov_b32 v%d, v%d" % (SM + 1, SM)); a("v_permlane16_swap_b32 v%d, v%d" % (SM, SM + 1))
    for j in range(8): a("v_and_b32 v%d, 0xffff0000, v%d" % (N_CM + j, SM + (j >> 2)))
    if CFG["stamps"]: a("v_mov_b32 v19, 0"); stamp_to(P, 59, 19)
    c0 = CFG["cen0"]
    if c0 == 32: a("s_nop 1"); a("s_call_b64 %s, L_centre" % s(sRET, 2))
    elif c0 > 8: centre(a, 0, c0 - 8)
    stamp_to(P, 60, 19)
    a("ds_read_b32 v%d, v18" % C_FV, ("fl", 0))
    for j in range(3):
        for h in range(2): a("v_cndmask_b32 v%d, v%d, v%d, %s" % (N_R + h, N_R + h if j else N_SQ + 4 * h, N_SQ + 4 * h + j + 1, s(sMK + 2 * j, 2)))
    centre(a, c0 - 8, c0 - 4)
    P.append(W(lg=[("fl", 0)])); a("v_cmp_ge_u32 vcc, 0, v%d" % C_FV)
    issue_reads(lambda m: m < CFG["LA"])
    centre(a, c0 - 4, c0)
    stamp_to(P, 61, 19)
    qi = 0
    for m, o in enumerate(ops):
        w2 = CFG["wait2"] and m < n1
        if not w2: P.append(W(lg=[("f", m)]))
        elif m % 2 == 0: P.append(W(lg=[("f", m + 1)]))
        a(o["mfma"][0]); at = len(P)
        if m == n1 - 1: a(o["mfma"][1])
        if m + 1 < len(ops) and ops[m + 1]["slab"] != o["slab"] and o["slab"] <= lastdone + 1 and marked(o["slab"]): done(o["slab"])
        LP = [0, 64, 192, n1 - 1, n1 + 32, n1 + 112]
        if CFG["light"] and m in LP:
            P.append(L("    s_memtime %s" % s(12 + 4 * LP.index(m), 2))); P.append(L("    s_memrealtime %s" % s(14 + 4 * LP.index(m), 2)))
        if CFG["probe"] and m == CFG["probeat"]: P.append(L("    s_memrealtime s[6:7]"))
        if m == n1 - 1:
            while queue[qi][0] <= n1 + 1:
                it = queue[qi][2]; P += it if isinstance(it, list) else [it]; qi += 1
        issue_reads(lambda k: k - ops[k]["la"] <= m)
        for n in range(1, 56):
            d = m - (first[n] - ops[first[n]]["la"])
            if d == -1 and n in CH:
                P.append(W(lg=[("fl", n)])); a("v_cmp_ge_u32 vcc, %d, v%d" % (CH[n], C_FV))
            if d == (2 if n <= 20 else 0) and CFG["stamps"] and not CFG["zoom"]: cstamp(n)
            if CFG["zoom"] and m == CFG["zoom"] + n * CFG["zstep"]: cstamp(n)
        if m in fread: a("ds_read_b32 v%d, v18" % C_FV, ("fl", fread[m]))
        rate = CFG["erate"] if m < n1 else 5
        cnt = 0
        while qi < len(queue) and queue[qi][0] <= m and cnt < rate:
            assert m <= queue[qi][1], ("filler past its deadline", ty, m, queue[qi][1])
            it = queue[qi][2]
            if isinstance(it, list): P += it; cnt += 2
            else: P.append(it)
            qi += 1; cnt += 1
        if m != n1 - 1:
            mid = P[at:]; k = 0
            while k < (len(mid) + 1) // 2 and isinstance(mid[k], I) and not mid[k].t.startswith("s_"): k += 1
            P.insert(at + k, I(o["mfma"][1]))
        if m % 16 == CFG["cenat"] and c0 + m // 16 * 8 < 32: centre(a, c0 + m // 16 * 8, c0 + m // 16 * 8 + 8)
    assert qi == len(queue)
    for j in range(16): a("v_fma_f32 v%d, v%d, v%d, v%d" % (G + j, S_ + j, G + j, XF + j))
    for j in range(8): a("v_cvt_pk_bf16_f32 v%d, v%d, v%d" % (XF + 4 * ((j >> 1) & 1) + 2 * (j >> 2) + (j & 1), G + 2 * j, G + 2 * j + 1))
    for h in range(2):
        for i in range(2): a("v_permlane16_swap_b32 v%d, v%d" % (XF + 4 * h + i, XF + 4 * h + 2 + i))
    if CFG["probe"]:
        lb = newlbl()
        if CFG["probeat"] < 0: a("s_memrealtime s[6:7]")
        P.append(W(lg="all")); a("s_sub_u32 s6, s6, s4")
        a("s_cmp_le_u32 s6, %d" % CFG["probe"]); a("s_cbranch_scc1 L_xp%d" % lb)
        for _ in range(6): a("s_sleep 127")
        P.append(L("L_xp%d:" % lb))
    a("s_movk_i32 s%d, 16384" % sT0)
    a("buffer_store_dwordx4 %s, v%d, %s, 0 offen%s" % (v(XF, 4), C_OUT, srd(SOUT), CFG["outfl"]))
    a("buffer_store_dwordx4 %s, v%d, %s, s%d offen%s" % (v(XF + 4, 4), C_OUT, srd(SOUT), sT0, CFG["outfl"]))
    if CFG["light"]:
        a("s_waitcnt vmcnt(0)"); a("s_memtime s[84:85]"); a("s_memrealtime s[86:87]"); P.append(W(lg="all")); a("v_mov_b32 v19, 0")
        for j, r_ in enumerate([sTM, 4] + list(range(12, 36, 2)) + [84, 86]): a("v_writelane_b32 v19, s%d, %d" % (r_, j))
        a("s_lshl_b32 s%d, s2, 10" % sT0); a("s_lshl_b32 s%d, s%d, 8" % (sT1, sW)); a("s_add_u32 s%d, s%d, s%d" % (sT0, sT0, sT1)); a("s_add_u32 s%d, s%d, %d" % (sT0, sT0, WS_ST))
        a("v_lshlrev_b32 v18, 2, v1"); a("buffer_store_dword v19, v18, %s, s%d offen" % (srd(SWS), sT0))
    if CFG["stamps"]:
        one_lane(P, "ds_add_u32 v%d, v%d offset:%d" % (C_FL, C_ONE, F_END))
        cstamp(56); cstamp(57); P.append(W(lg="all")); cstamp(58)
        a("s_lshl_b32 s%d, s2, 8" % sT0); a("s_add_u32 s%d, s%d, %d" % (sT0, sT0, WS_ST + 0x20000))
        a("v_lshlrev_b32 v18, 2, v1")
        a("s_cmp_lg_u32 s%d, %d" % (sW, CFG["stampw"])); a("s_cbranch_scc1 L_exit")
        a("buffer_store_dword v19, v18, %s, s%d offen" % (srd(SWS), sT0))
    a("s_endpgm")
    return P

D_P = 32
D_A, D_B, D_B2, D_TAB, D_FL, D_LA, D_ONE, D_ZERO, D_CC, D_POLL, D_LV = range(2, 13)
D_AT, D_POLL2, D_X, D_R = 13, 14, 15, 16
D_DV = 28
D_TCH = 20
def phase_info(ty):
    return [(kind, 3584, SG, SU) if e == "gu" else (kind, 3072, SQKV, SQKV) for kind, e, _ in PH[ty]]
def dma_setup(ty):
    P = []; b = lambda t, tag=None: P.append(I(t, tag))
    t0, t1, t2, t3, u0, u1, u2 = range(64, 71)
    b("v_mov_b32 v%d, 0" % D_ZERO); b("v_mov_b32 v%d, 0" % D_TAB)
    b("v_mov_b32 v%d, 1" % D_ONE); b("v_mov_b32 v%d, %d" % (D_FL, FL))
    b("v_and_b32 v%d, 3, v1" % D_LA); b("v_lshlrev_b32 v%d, 8, v%d" % (D_LA, D_LA)); b("v_add_u32 v%d, %d, v%d" % (D_LA, FL + F_DONE, D_LA))
    b("s_lshl_b32 s%d, s%d, 8" % (sLM, sW1)); b("s_add_u32 s%d, s%d, %d" % (sLM, sLM, FL + F_LAND))
    b("s_lshl_b32 s%d, s%d, 9" % (sCC, sTT)); b("v_mov_b32 v%d, s%d" % (D_CC, sCC))
    b("s_lshl_b32 s%d, s%d, 1" % (sT0, sTT)); b("s_add_u32 s%d, s%d, s%d" % (sT0, sT0, sW1))
    b("s_mul_i32 s%d, s%d, 147456" % (sT0, sT0)); b("s_add_u32 s%d, s%d, %d" % (sT0, sT0, WS_HO - 2048))
    if CFG["fakeA"]: b("s_lshr_b32 s%d, s%d, 3" % (sT0, sI)); b("s_lshl_b32 s%d, s%d, 20" % (sT0, sT0)); b("s_lshl_b32 s%d, s%d, 18" % (sT1, sW1)); b("s_add_u32 s%d, s%d, s%d" % (sT0, sT0, sT1))
    b("v_lshlrev_b32 v%d, 4, v1" % u0); b("v_add_u32 v%d, s%d, v%d" % (D_A, sT0, u0))
    b("v_lshlrev_b32 v%d, 7, v1" % u0); b("v_add_u32 v%d, s%d, v%d" % (D_AT, sT0, u0))
    b("v_lshrrev_b32 v%d, 3, v1" % u0); b("v_and_b32 v%d, 6, v%d" % (u1, u0))
    b("v_and_b32 v%d, 7, v1" % u2); b("v_xor_b32 v%d, v%d, v%d" % (u2, u2, u1))
    b("v_lshlrev_b32 v%d, 10, v%d" % (u0, u0)); b("v_lshl_add_u32 v%d, v%d, 4, v%d" % (D_B, u2, u0))
    b("s_lshl_b32 s%d, s%d, 15" % (sT0, sW1)); b("s_lshl_b32 s%d, s%d, 7" % (sT1, sCT)); b("s_add_u32 s%d, s%d, s%d" % (sT0, sT0, sT1))
    b("v_add_u32 v%d, s%d, v%d" % (D_B, sT0, D_B)); b("v_add_u32 v%d, %d, v%d" % (D_B2, 8192 - 1024, D_B))
    b("v_lshrrev_b32 v%d, 3, v1" % u0); b("v_lshlrev_b32 v%d, 10, v%d" % (u0, u0)); b("v_and_b32 v%d, 7, v1" % u2); b("v_lshl_add_u32 v%d, v%d, 4, v%d" % (D_X, u2, u0))
    b("s_lshl_b32 s%d, s%d, 16" % (sT1, sTT)); b("s_add_u32 s%d, s%d, s%d" % (sT0, sT0, sT1)); b("v_add_u32 v%d, s%d, v%d" % (D_X, sT0, D_X))
    b("s_lshl_b32 s%d, s%d, 8" % (sT1, sTT)); b("s_add_u32 s%d, s%d, %d" % (sT1, sT1, WS_RS)); b("v_lshlrev_b32 v%d, 2, v1" % D_R); b("v_add_u32 v%d, s%d, v%d" % (D_R, sT1, D_R))
    fcols(b, ty)
    gu = 0
    for pi, (kind, e, _) in enumerate(PH[ty]):
        stride = 3584 if e == "gu" else 3072
        (p4_voffs if kind == "P4" else p2_voffs)(b, u0, u1, stride, t0)
        if e == "gu": b("s_lshl_b32 s%d, s%d, 1" % (sT1, sKS + gu)); db = 0; gu += 1
        elif e == "kv": b("s_mov_b32 s%d, s%d" % (sT1, sKC)); db = 1024
        else: b("s_lshl_b32 s%d, s%d, 7" % (sT1, sGR)); db = 64
        step = (8 if kind == "P4" else 16) * stride
        b("v_add_u32 v%d, s%d, v%d" % (u0, sT1, u0)); b("v_add_u32 v%d, s%d, v%d" % (u1, sT1, u1))
        for p in range(4):
            b("v_add_u32 v%d, %d, v%d" % (D_P + 4 * pi + p, 4096 + (p >> 1) * step - p * 1024 + (db if p & 1 else 0), u1 if p & 2 else u0))
    b("s_lshl_b32 s%d, s%d, 13" % (sLA, sW1))
    nr = 32 if CFG["map"] == 84 else 64
    b("s_lshl_b32 s%d, s%d, 6" % (sT0, sXR)); b("s_mul_i32 s%d, s%d, %d" % (sT1, sW1, nr)); b("s_add_u32 s%d, s%d, s%d" % (sT0, sT0, sT1))
    b("v_add_u32 v%d, s%d, v1" % (t2, sT0)); b("v_mul_u32_u24 v%d, 3072, v%d" % (D_TCH + 3, t2)); b("v_mul_u32_u24 v%d, 3584, v%d" % (D_TCH + 2, t2))
    b("s_lshl_b32 s%d, s%d, 7" % (sT0, sGR)); b("s_add_u32 s%d, s%d, 4096" % (sT0, sT0)); b("v_add_u32 v%d, s%d, v%d" % (D_TCH + 3, sT0, D_TCH + 3))
    b("v_add_u32 v%d, 4096, v%d" % (D_TCH + 2, D_TCH + 2))
    b("s_lshl_b32 s%d, s%d, 1" % (sKS, sKS)); b("s_lshl_b32 s%d, s%d, 1" % (sKS + 1, sKS + 1))
    b("s_lshl_b32 s%d, s%d, 1" % (sT0, sSH)); b("s_add_u32 s%d, s%d, s%d" % (sT0, sT0, sW1))
    if CFG["map2"] == 48: b("v_lshlrev_b32 v%d, 7, v1" % t2)
    else:
        b("v_lshrrev_b32 v%d, 2, v1" % t2); b("v_lshlrev_b32 v%d, 10, v%d" % (t2, t2)); b("v_and_b32 v%d, 3, v1" % t3); b("v_lshl_add_u32 v%d, v%d, 7, v%d" % (t2, t3, t2))
        b("s_and_b32 s%d, s%d, 4" % (sT1, sCT)); b("s_lshl_b32 s%d, s%d, 7" % (sT1, sT1)); b("v_add_u32 v%d, s%d, v%d" % (t2, sT1, t2))
    k2 = 2 if CFG["aonly"] else 1
    b("s_mul_i32 s%d, s%d, %d" % (sT1, sT0, 28 * 1024 * k2)); b("v_add_u32 v%d, s%d, v%d" % (D_TCH, sT1, t2))
    b("s_mul_i32 s%d, s%d, %d" % (sT1, sT0, 8192 * k2)); b("v_add_u32 v%d, s%d, v%d" % (D_TCH + 1, sT1, t2))
    def seg(lo, items):
        for t in items: b(t)
        b("v_cmp_le_u32 vcc, %d, v1" % lo); b("v_cndmask_b32 v%d, v%d, v%d, vcc" % (D_TAB, D_TAB, t1))
    b("s_add_u32 s%d, s%d, s%d" % (sT0, sR1, sW1))
    n0 = 0
    for pi, (kind, e, _) in enumerate(PH[ty]):
        stride = 3584 if e == "gu" else 3072
        if kind == "P4":
            seg(n0, ["v_add_u32 v%d, s%d, v1" % (t1, sR1), "v_add_u32 v%d, %d, v%d" % (t1, (-n0) & 7, t1), "v_and_b32 v%d, 7, v%d" % (t1, t1),
                     "v_lshlrev_b32 v%d, 1, v%d" % (t1, t1), "v_add_u32 v%d, s%d, v%d" % (t1, sW1, t1), "v_mul_u32_u24 v%d, %d, v%d" % (t1, 32 * stride, t1)]); n0 += 8
        else:
            seg(n0, ["v_lshlrev_b32 v%d, 1, v1" % t1, "v_add_u32 v%d, s%d, v%d" % (t1, sT0, t1), "v_and_b32 v%d, 7, v%d" % (t1, t1),
                     "v_mul_u32_u24 v%d, %d, v%d" % (t1, 64 * stride, t1)]); n0 += 4
    b("v_add_u32 v%d, s%d, v1" % (t0, sR2)); b("v_and_b32 v%d, 7, v%d" % (t2, t0))
    seg(20, ["v_lshlrev_b32 v%d, 13, v%d" % (t1, t2)])
    seg(28, ["v_lshrrev_b32 v%d, 1, v%d" % (t3, t2), "v_lshlrev_b32 v%d, 1, v%d" % (t1, t2), "v_sub_u32 v%d, v%d, v%d" % (t1, t1, t3),
             "v_add_u32 v%d, 16, v%d" % (t1, t1), "v_lshlrev_b32 v%d, 12, v%d" % (t1, t1)])
    seg(36, ["v_lshlrev_b32 v%d, 13, v%d" % (t1, t2), "v_add_u32 v%d, 4096, v%d" % (t1, t1)])
    seg(44, ["v_and_b32 v%d, 3, v%d" % (t1, t0), "v_mul_u32_u24 v%d, 3, v%d" % (t1, t1), "v_add_u32 v%d, 17, v%d" % (t1, t1), "v_lshlrev_b32 v%d, 12, v%d" % (t1, t1)])
    seg(48, ["v_lshlrev_b32 v%d, 12, v%d" % (t1, t2)])
    return P

def dma_wave(ty):
    P = [M(("x", 1))] + dma_setup(ty); a = lambda t, tag=None: P.append(I(t, tag))
    stamp = lambda k: stamp_to(P, k)
    stamp_to(P, 1, H_STAMP2)
    NB = CFG["nb%d" % ty]; CH = checks(ty)
    sl = slabs_of(ty); info = phase_info(ty)
    def look(n):
        if n < 56: a("v_readlane_b32 s%d, v%d, %d" % (sPH + 2 * (n & 1), D_TAB, n))
    def part(n, which, nxt):
        so = sPH + 2 * (n & 1); cap = CFG["cap2"]; wb = srd(SWD if n < 48 else SWO)
        if which == "B": a("s_lshl_b32 s%d, s%d, 4" % (so, so))
        elif n == 48: a("v_add_u32 v%d, %d, v%d" % (D_A, 28 * 4096, D_A))
        for h in range(2):
            a("s_add_u32 m0, s%d, %d" % (sLA, slot_of(n) * SLOT + h * 4096))
            if h: a("s_add_u32 s%d, s%d, %d" % (so, so, 16384 if which == "B" else 2048))
            elif (nxt ^ n) & 1: look(nxt)
            room(16, cap)
            if which == "B":
                vm("buffer_load_dwordx4 v%d, %s, s%d offen lds" % (D_B, wb, so), 8)
                vm("buffer_load_dwordx4 v%d, %s, s%d offen offset:1024 lds" % (D_B2, wb, so), 8)
            else:
                vm("buffer_load_dwordx4 v%d, %s, s%d offen offset:2048 sc1 lds" % (D_A, srd(SX if CFG["fakeA"] else SWS), so), 8, ("slab", n))
                vm("buffer_load_dwordx4 v%d, %s, s%d offen offset:3072 sc1 lds" % (D_A, srd(SX if CFG["fakeA"] else SWS), so), 8, ("slab", n))
        if not (nxt ^ n) & 1: look(nxt)
    hist = []
    def room(w, cap):
        tot = w; k = 0
        while k < len(hist) and tot + hist[-1 - k] <= cap: tot += hist[-1 - k]; k += 1
        if k < len(hist): a("s_waitcnt vmcnt(%d)" % min(k, 63))
    def vm(t, w, tag=None): a(t, tag); hist.append(w)
    def dma(n):
        so = sPH + 2 * (n & 1); cap = CFG["cap1"] if n < CFG["capsw"] else CFG["cap2"]
        if n in CFG["soft%d" % ty]: cap = CFG["capsoft"]
        for h in range(2):
            a("s_add_u32 m0, s%d, %d" % (sLA, slot_of(n) * SLOT + h * 4096))
            if n < 20:
                pi, kind, sg = sl[n]; _, stride, sa, sb = info[pi]
                w = 16 if (kind == "P2" and PH[ty][pi][1] != "q") else 8
                if h: a("s_add_u32 s%d, s%d, %d" % (so, so, (16 if kind == "P4" else 32) * stride))
                else: look(n + 1)
                for p in range(4):
                    if p % 2 == 0: room(2 * w, cap)
                    vm("buffer_load_dwordx4 v%d, %s, s%d offen offset:%d lds" % (D_P + 4 * pi + p, srd(sb if p & 1 else sa), so, p * 1024), w, ("slab", n))
            else:
                if h: a("s_add_u32 s%d, s%d, 2048" % (so, so)); a("s_add_u32 s%d, s%d, 16384" % (so + 1, so + 1))
                else:
                    a("s_lshl_b32 s%d, s%d, 4" % (so + 1, so)); look(n + 1)
                    if n == 48: a("v_add_u32 v%d, %d, v%d" % (D_A, 28 * 4096, D_A))
                wb = srd(SWD if n < 48 else SWO)
                room(16, cap)
                vm("buffer_load_dwordx4 v%d, %s, s%d offen lds" % (D_B, wb, so + 1), 8, ("slab", n))
                vm("buffer_load_dwordx4 v%d, %s, s%d offen offset:1024 lds" % (D_B2, wb, so + 1), 8, ("slab", n))
                room(16, cap)
                vm("buffer_load_dwordx4 v%d, %s, s%d offen offset:2048 sc1 lds" % (D_A, srd(SX if CFG["fakeA"] else SWS), so), 8, ("slab", n))
                vm("buffer_load_dwordx4 v%d, %s, s%d offen offset:3072 sc1 lds" % (D_A, srd(SX if CFG["fakeA"] else SWS), so), 8, ("slab", n))
    def touch(which):
        nr = 32 if CFG["map"] == 84 else 64; dst = D_TCH + 4; cap = CFG["capt"]
        for w in which:
            if w == "x":
                a("s_lshr_b32 s%d, s%d, 1" % (sT0, sLA)); a("s_add_u32 m0, s%d, %d" % (sT0, LX))
                room(32, cap)
                for p in range(4):
                    a("s_movk_i32 s%d, %d" % (sT1, 7168 * p))
                    vm("buffer_load_dwordx4 v%d, %s, s%d offen offset:%d lds" % (D_X, srd(SX), sT1, 1024 * p), 8)
            elif w in ("q", "g0", "g1"):
                if nr == 32: a("s_mov_b32 exec_hi, 0")
                if w == "q": room(nr, cap); vm("buffer_load_dword v%d, v%d, %s, 0 offen" % (dst, D_TCH + 3, srd(SQKV)), nr)
                else:
                    for d in (SG, SU): room(nr, cap); vm("buffer_load_dword v%d, v%d, %s, s%d offen" % (dst, D_TCH + 2, srd(d), sKS + int(w[1])), nr)
            elif w == "o":
                k = 64 if (CFG["map2"] == 48 or CFG["aonly"]) else 32
                if k == 32: a("s_mov_b32 exec_hi, 0")
                room(k, cap); vm("buffer_load_dword v%d, v%d, %s, 0 offen" % (dst, D_TCH + 1, srd(SWO)), k)
            else:
                j = int(w[1])
                if j >= (4 if (CFG["map2"] == 48 or CFG["aonly"]) else 2): continue
                a("s_mov_b32 exec_hi, 0xffffff"); a("s_mov_b32 s%d, %d" % (sT0, j * 56 * (128 if CFG["map2"] == 48 else 256)))
                room(56, cap); vm("buffer_load_dword v%d, v%d, %s, s%d offen" % (dst, D_TCH, srd(SWD), sT0), 56)
            a("s_mov_b64 exec, -1")
    def publish(m):
        if m in CH.values():
            a("s_mov_b32 m0, s%d" % sLM); a("v_mov_b32 v%d, %d" % (D_LV, 4 * (m + 1)))
            vm("global_load_lds_dword v%d, %s" % (D_LV, s(sTB, 2)), 1)
        if CFG["stamps"] == 2 or (CFG["stamps"] and m % 4 == 0): stamp(m)
    for d in (SQKV, SG, SU):
        a("s_sub_u32 s%d, s%d, 4096" % (d, d)); a("s_subb_u32 s%d, s%d, 0" % (d + 1, d + 1)); a("s_add_u32 s%d, s%d, 4096" % (d + 2, d + 2))
    gates = {20: (C_H1A, 16), 28: (C_H1B, 16), 36: (C_H2, 32), 48: (C_O, 16)}
    def do_gate(n):
        if CFG["stamps"] == 2: stamp_to(P, 20 + 2 * list(gates).index(n), H_STAMP2)
        if n in CFG["nogate"]: pass
        elif CFG["spoll"]: sgate(P, sCC, gates[n][0] * 128, sPV, gates[n][1])
        else: gate(P, D_CC, SWS, gates[n][0] * 128, ("poll", n), D_POLL, gates[n][1])
        stamp_to(P, 21 + 2 * list(gates).index(n), H_STAMP2)
    def poll(gn):
        if CFG["spoll"]: a("s_load_dword s%d, %s, s%d offset:%d glc" % (sPV, s(SWS, 2), sCC, gates[gn][0] * 128))
        else: vm("buffer_load_dword v%d, v%d, %s, 0 offen offset:%d sc1" % (D_POLL, D_CC, srd(SWS), gates[gn][0] * 128), 1, ("poll", gn))
    nbf = CFG["bfirst"]
    def issue(n):
        if n in gates and not (n == 20 and nbf): do_gate(n)
        if n + CFG["pollat"] in gates and not (n + CFG["pollat"] == 20 and nbf): poll(n + CFG["pollat"])
        dma(n)
    def do_touch(n):
        tp = CFG["tplan%d" % ty].get(str(n))
        if tp:
            touch(tp.split())
    look(0)
    if CFG["dprio"]: a("s_setprio %d" % CFG["dprio"])
    hist += [16] * 8
    xstages(P, {CFG["s0at"]: lambda: (dma(0), publish(0), do_touch(0))})
    stamp(60)
    a("s_barrier")
    stamp(61); rstamp(P, 40)
    assert NB == 56
    seq = [(n, "F") for n in range(1, 20)] + [(n, "B") for n in range(20, 20 + nbf)]
    n = 20
    while n < 56:
        k = CFG["afirst"].get(str(n), 0)
        if n == 20: k = max(k, nbf)
        seq += [(m, "A") for m in range(n, n + k)] + [(m, "B") for m in range(n, n + k) if (m, "B") not in seq]
        if not k: seq.append((n, "F"))
        n += max(k, 1)
    started = set(); parts = {}; checked = -1; gated = set()
    firstA = {g: min(i for i, (m, w) in enumerate(seq) if m >= g and w != "B") for g in gates}
    gstart = {g: min(i for i, (m, w) in enumerate(seq) if m >= 20 + 4 * g and w != "B") for g in range(9)}
    def need_at(i):
        k = 1
        if CFG["spoll"] and any(i + CFG["pollat"] == firstA[g] for g in gates): k = CFG["pollat"]
        pu = max(prev_user(m) if m not in started else -1 for m, w in seq[i:i + k])
        while pu > checked and not marked(pu): pu += 1
        return pu - CFG["bigring"] if seq[i][0] < CFG["bigto"] else pu
    for i, (n, w) in enumerate(seq):
        if (n, w) in ((11, "F"), (15, "F"), (18, "F"), (30, "F"), (42, "F"), (54, "F")): rstamp(P, 42 + 2 * (11, 15, 18, 30, 42, 54).index(n))
        if w == "F" and n in CFG["exw%d" % ty]: count_wait(P, D_FL, D_DV + 1, F_EX + 4 * CFG["exw%d" % ty].index(n), 4)
        pu = need_at(i)
        if pu > checked:
            lb = newlbl()
            P.append(W(lg=[("dn", i)]))
            a("v_cmp_ge_u32 vcc, %d, v%d" % (pu, D_DV)); a("s_cbranch_vccz L_fr%d" % lb)
            raw(P, [I("s_movk_i32 s%d, %d" % (sSPIN + 1, pu + 1)), I("s_call_b64 %s, L_spin_d" % s(sRET, 2))]); P.append(L("L_fr%d:" % lb))
            checked = pu
        if n == 20 + CFG["ring2"].index(8) and n not in started: count_wait(P, D_FL, D_DV + 1, F_EXF, 2)
        if (n, w) == (4, "F"): a("s_movk_i32 m0, %d" % (FL + F_INIT)); vm("buffer_load_dword v%d, %s, 0 offen sc1 lds" % (D_ZERO, srd(SDBG)), 1)
        if (n, w) == (15, "F"): a("ds_read_b32 v%d, v%d offset:%d" % (D_POLL, D_FL, F_INIT), "init"); gate(P, D_ZERO, SDBG, 0, "init", D_POLL, 1)
        for g in gates:
            if i == firstA[g]:
                do_gate(g)
                if g == 20: a("s_movk_i32 m0, %d" % LR2); vm("buffer_load_dword v%d, %s, 0 offen sc1 lds" % (D_R, srd(SWS)), 2)
            if i + CFG["pollat"] == firstA[g]: poll(g)
        if CFG["lead"]:
            for g in range(1, 9):
                sec = max(x for x in gates if x <= 20 + 4 * g); newsec = sec == 20 + 4 * g
                at = gstart[g - 1]
                if newsec and i + CFG["pollat"] == at:
                    vm("buffer_load_dword v%d, v%d, %s, 0 offen offset:%d sc1" % (D_POLL2, D_CC, srd(SWS), gates[sec][0] * 128), 1, ("poll2", g))
                if i == at + CFG["leadoff"]:
                    lb = newlbl()
                    if newsec: P.append(W(vm=[("poll2", g)]))
                    a("s_cmp_lg_u32 s%d, %d" % (sLD, CFG["who"][g])); a("s_cbranch_scc1 L_nl%d" % lb)
                    X = []
                    if newsec: X += [I("v_cmp_eq_u32 vcc, %d, v%d" % (gates[sec][1], D_POLL2)), I("s_cbranch_vccz L_nl%d" % lb)]
                    for j in range(4): X.append(I("v_readlane_b32 s%d, v%d, %d" % (sG + j, D_TAB, 20 + 4 * g + j)))
                    X.append(I("s_mov_b32 exec_hi, 0"))
                    for j in range(4):
                        if g >= 7: X.append(I("s_add_u32 s%d, s%d, %d" % (sG + j, sG + j, 28 * 4096)))
                        X.append(I("buffer_load_dword v%d, v%d, %s, s%d offen offset:2048 sc1" % (D_TCH + 4, D_AT, srd(SWS), sG + j)))
                    X.append(I("s_mov_b64 exec, -1"))
                    raw(P, X); P.append(L("L_nl%d:" % lb))
        started.add(n)
        if i + 1 < len(seq) and need_at(i + 1) > checked: a("ds_read_b32 v%d, v%d" % (D_DV, D_LA), ("dn", i + 1))
        nxt = seq[i + 1][0] if i + 1 < len(seq) else 99
        if w == "F":
            assert nxt in (n + 1, 99); dma(n)
        else: part(n, w, nxt)
        parts.setdefault(n, set()).add(w)
        if parts[n] in ({"F"}, {"A", "B"}):
            assert all(parts.get(m) in ({"F"}, {"A", "B"}) for m in range(1, n))
            publish(n)
        if w == "F": do_touch(n)
    if CFG["stamps"]:
        count_wait(P, D_FL, D_DV, F_END, 4)
        stamp(62)
        a("s_memrealtime s[6:7]"); P.append(W(lg="all"))
        a("v_writelane_b32 v%d, s4, 62" % H_STAMP2); a("v_writelane_b32 v%d, s6, 63" % H_STAMP2)
        a("s_lshl_b32 s%d, s2, 8" % sT0); a("s_add_u32 s%d, s%d, %d" % (sT0, sT0, WS_ST))
        a("v_lshlrev_b32 v64, 2, v1")
        a("s_cmp_lg_u32 s%d, %d" % (sW1, CFG["stampw"] & 1)); a("s_cbranch_scc1 L_exit")
        a("buffer_store_dword v%d, v64, %s, s%d offen" % (H_STAMP, srd(SWS), sT0))
        a("s_add_u32 s%d, s%d, 0x10000" % (sT0, sT0))
        a("buffer_store_dword v%d, v64, %s, s%d offen" % (H_STAMP2, srd(SWS), sT0))
    a("s_endpgm")
    return P

A_ONE, A_ZERO, A_CM, A_CK, A_CQ, A_FL, A_RK, A_RV, A_ST, A_ZA, A_PL, A_ZL, A_OS, A_SGN = range(2, 16)
A_POLL, A_FV, A_TCH = 25, 27, 28
A_ID = 32
A_WP = 36
A_R = 16
A_ACC = 56
A_RAW = 72
A_T = 72
A_KF = 112
A_SD = 192; A_PHI = 208
A_PQ = 128
A_LD = 192
def softmax_unit(wp, kf, u, dst, Pm, R, scale_r):
    B = []; b = lambda t, tag=None: B.append(I(t, tag))
    C = A_R + 4 + u
    b("v_mfma_f32_32x32x16_bf16 %s, %s, %s, 0" % (v(Pm, 16), v(wp, 4), v(kf, 4)))
    for g in range(2): b("v_max3_f32 v%d, v%d, v%d, v%d" % (R + g, Pm + 8 * g, Pm + 8 * g + 1, Pm + 8 * g + 2))
    for g in range(2): b("v_max3_f32 v%d, v%d, v%d, v%d" % (R + 2 + g, Pm + 8 * g + 3, Pm + 8 * g + 4, Pm + 8 * g + 5))
    for g in range(2): b("v_max3_f32 v%d, v%d, v%d, v%d" % (R + g, R + g, Pm + 8 * g + 6, Pm + 8 * g + 7))
    for g in range(2): b("v_max_f32 v%d, v%d, v%d" % (R + g, R + g, R + 2 + g))
    def allred(op, mid):
        b("v_permlane32_swap_b32 v%d, v%d" % (R, R + 1))
        b("%s v%d, v%d, v%d" % (op, R, R, R + 1))
        for t in mid: b(t)
        b("v_mov_b32 v%d, v%d" % (R + 1, R))
        b("v_permlane32_swap_b32 v%d, v%d" % (R, R + 1))
    allred("v_max_f32", ["v_mul_f32 v%d, v%d, v%d" % (R, C, R)])
    for j in range(16): b("v_fma_f32 v%d, v%d, v%d, -v%d" % (Pm + j, Pm + j, C, R + j // 8))
    for j in range(16): b("v_exp_f32 v%d, v%d" % (Pm + j, Pm + j))
    if not scale_r and not CFG["qnorm"]:
        for j in range(8): b("v_cvt_pk_bf16_f32 v%d, v%d, v%d" % (dst + j, Pm + 2 * j, Pm + 2 * j + 1))
        return B
    for g in range(2):
        b("v_add_f32 v%d, v%d, v%d" % (R + g, Pm + 8 * g, Pm + 8 * g + 1)); b("v_add_f32 v%d, v%d, v%d" % (R + 2 + g, Pm + 8 * g + 2, Pm + 8 * g + 3))
    for k in (4, 6):
        for g in range(2):
            b("v_add_f32 v%d, v%d, v%d" % (R + g, R + g, Pm + 8 * g + k)); b("v_add_f32 v%d, v%d, v%d" % (R + 2 + g, R + 2 + g, Pm + 8 * g + k + 1))
    for g in range(2): b("v_add_f32 v%d, v%d, v%d" % (R + g, R + g, R + 2 + g))
    allred("v_add_f32", ["v_rcp_f32 v%d, v%d" % (R, R)] + (["v_mul_f32 v%d, v%d, v%d" % (R, R, A_R + u)] if scale_r else []))
    for j in range(16): b("v_mul_f32 v%d, v%d, v%d" % (Pm + j, Pm + j, R + j // 8))
    for j in range(8): b("v_cvt_pk_bf16_f32 v%d, v%d, v%d" % (dst + j, Pm + 2 * j, Pm + 2 * j + 1))
    return B
def zipper(x, y):
    out = []
    for i in range(max(len(x), len(y))):
        if i < len(x): out.append(x[i])
        if i < len(y): out.append(y[i])
    return out
def mprio(B, base=0):
    out = []; hi = False
    for it in B:
        m_ = isinstance(it, I) and it.t.startswith("v_mfma")
        if m_ and not hi: out.append(I("s_setprio 3")); hi = True
        if hi and not m_: out.append(I("s_setprio %d" % base)); hi = False
        out.append(it)
    return out

def attn_setup(ty):
    P = []; b = lambda t, tag=None: P.append(I(t, tag))
    t0, t1, t2, t3, u0 = range(100, 105)
    hk, hq = sT2, sT3
    if CFG["tlb"]:
        b("v_lshlrev_b32 v%d, 16, v1" % t0); b("s_mov_b64 exec, 0x%x" % CFG["tlbm"])
        for d in ((SQKV,), (SQKV, SG, SU), (SQKV, SG, SU, SWD, SWO))[CFG["tlb"] - 1]: b("buffer_load_dword v%d, v%d, %s, 0 offen" % (A_POLL + 1, t0, srd(d)))
        b("s_mov_b64 exec, -1")
    nr = 32 if CFG["map"] == 84 else 64
    b("s_lshl_b32 s%d, s%d, 6" % (sT0, sXR)); b("s_mul_i32 s%d, s%d, %d" % (sT1, sW1, nr)); b("s_add_u32 s%d, s%d, s%d" % (sT0, sT0, sT1))
    b("v_add_u32 v%d, s%d, v1" % (A_TCH + 2, sT0)); b("v_mul_u32_u24 v%d, 3072, v%d" % (A_TCH + 3, A_TCH + 2)); b("v_mul_u32_u24 v%d, 3584, v%d" % (A_TCH + 2, A_TCH + 2))
    if nr == 32: b("s_mov_b32 exec_hi, 0")
    if CFG["ftouch"] == 4: b("buffer_load_dword v%d, v%d, %s, s%d offen offset:%d" % (A_POLL + 1, A_TCH + 3, srd(SQKV), sKC, 1024 * ty))
    elif CFG["ftouch"] >= 5 or not CFG["ftouch"] & (1 << ty): pass
    elif ty == 0:
        for o_ in (0, 1024): b("buffer_load_dword v%d, v%d, %s, s%d offen offset:%d" % (A_POLL + 1, A_TCH + 3, srd(SQKV), sKC, o_))
    else:
        b("s_lshl_b32 s%d, s%d, 7" % (sT0, sGR)); b("buffer_load_dword v%d, v%d, %s, s%d offen" % (A_POLL + 1, A_TCH + 3, srd(SQKV), sT0))
    b("s_mov_b64 exec, -1")
    b("s_lshl_b32 s%d, s%d, 2" % (hq, sGR)); b("s_add_u32 s%d, s%d, s%d" % (hq, hq, sW1))
    b("s_add_u32 s%d, s%d, %d" % (hk, hq, 2 * ty))
    b("v_lshrrev_b32 v%d, 5, v1" % t3); b("v_and_b32 v%d, 15, v1" % t1); b("v_lshrrev_b32 v%d, 4, v1" % t0)
    b("v_lshlrev_b32 v%d, 7, v%d" % (t2, t3)); b("v_lshl_add_u32 v%d, v%d, 1, v%d" % (t2, t1, t2))
    b("s_lshl_b32 s%d, s%d, 9" % (sT0, hq))
    for hh in range(1 + ty):
        for j in range(8):
            b("buffer_load_ushort v%d, v%d, %s, s%d offen offset:%d" % (A_RAW + 8 * hh + j, t2, srd(SPHI), sT0, 1024 * hh + 32 * ((j & 3) + 8 * (j >> 2))), "wphi")
    b("v_mov_b32 v%d, 0" % A_ZERO); b("v_mov_b32 v34, 0")
    b("v_mov_b32 v%d, 1" % A_ONE); b("v_mov_b32 v%d, %d" % (A_FL, FL))
    if ty == 0:
        b("v_lshlrev_b32 v%d, 7, v1" % u0)
        b("s_add_u32 s%d, s2, s%d" % (sT0, sW1)); b("s_cmp_lg_u32 s%d, 0" % sT0); b("s_cbranch_scc1 L_noinit")
        raw(P, sum([[I("s_movk_i32 s%d, 0x%x" % (sT0, 0x2000 * k)), I("buffer_store_dword v%d, v%d, %s, s%d offen sc1" % (A_ZERO, u0, srd(SWS), sT0))] for k in range(3)], []))
        P.append(L("L_noinit:"))
    b("v_and_b32 v%d, 1, v%d" % (t2, t0)); b("v_mul_u32_u24 v%d, 0x8000, v%d" % (t2, t2)); b("v_lshl_or_b32 v%d, v%d, 16, v%d" % (A_SGN, t2, t2))
    b("s_lshl_b32 s%d, s%d, 10" % (sT0, sI)); b("v_lshlrev_b32 v%d, 9, v1" % A_CM); b("v_add_u32 v%d, s%d, v%d" % (A_CM, sT0, A_CM))
    b("v_lshl_add_u32 v%d, v1, 2, v%d" % (A_FV, A_FL))
    for k in range(8): b("ds_write_b32 v%d, v%d offset:%d" % (A_FV, A_ZERO, 256 * k))
    b("s_lshl_b32 s%d, s%d, 8" % (sT0, hk)); b("s_add_u32 s%d, s%d, 0x4000" % (sT0, sT0)); b("v_mov_b32 v%d, s%d" % (A_CK, sT0))
    b("s_lshl_b32 s%d, s%d, 8" % (sT0, hq)); b("s_add_u32 s%d, s%d, 0x4000" % (sCC, sT0))
    b("s_lshl_b32 s%d, s%d, 11" % (sT0, sW1)); b("s_add_u32 s%d, s%d, %d" % (sT0, sT0, EX))
    b("v_lshlrev_b32 v%d, 4, v1" % u0); b("v_add_u32 v%d, s%d, v%d" % (A_RK, sT0, u0))
    b("v_and_b32 v%d, 1, v1" % t2); b("v_lshlrev_b32 v%d, 9, v%d" % (A_RV, t2)); b("v_lshl_add_u32 v%d, v%d, 7, v%d" % (A_RV, t0, A_RV))
    b("v_bfe_u32 v%d, v1, 2, 2" % t2); b("v_lshl_add_u32 v%d, v%d, 4, v%d" % (A_RV, t2, A_RV))
    b("v_bfe_u32 v%d, v1, 1, 1" % t2); b("v_lshl_add_u32 v%d, v%d, 3, v%d" % (A_RV, t2, A_RV)); b("v_add_u32 v%d, s%d, v%d" % (A_RV, sT0, A_RV))
    b("s_lshl_b32 s%d, s%d, 4" % (sT0, hk)); b("s_add_u32 s%d, s%d, s%d" % (sT0, sT0, sI))
    b("s_lshl_b32 s%d, s%d, 10" % (sT1, sT0)); b("s_add_u32 s%d, s%d, %d" % (sT1, sT1, WS_KV)); b("v_add_u32 v%d, s%d, v%d" % (A_ST, sT1, u0))
    b("s_lshl_b32 s%d, s%d, 7" % (sT1, sT0)); b("s_add_u32 s%d, s%d, %d" % (sT1, sT1, WS_Z))
    b("v_lshlrev_b32 v%d, 6, v%d" % (A_ZA, t1)); b("v_lshl_add_u32 v%d, v%d, 4, v%d" % (A_ZA, t0, A_ZA)); b("v_add_u32 v%d, s%d, v%d" % (A_ZA, sT1, A_ZA))
    if ty == 0:
        b("s_lshl_b32 s%d, s%d, 1" % (sT0, sI)); b("s_add_u32 s%d, s%d, s%d" % (sT0, sT0, sW1)); b("s_and_b32 s%d, s%d, 7" % (sLD, sT0))
        b("s_lshr_b32 s%d, s%d, 3" % (sT0, sT0)); b("s_lshl_b32 s%d, s%d, 2" % (sT4, sGR)); b("s_add_u32 s%d, s%d, s%d" % (sT4, sT4, sT0))
        b("s_lshl_b32 s%d, s%d, 8" % (sT0, sT4)); b("s_add_u32 s%d, s%d, 0x4000" % (sCC, sT0)); b("v_mov_b32 v%d, s%d" % (A_CQ, sCC))
        b("s_lshl_b32 s%d, s%d, 7" % (sT5, sLD))
        b("s_lshl_b32 s%d, s%d, 14" % (sT1, sT4)); b("s_add_u32 s%d, s%d, s%d" % (sT1, sT1, sT5)); b("s_add_u32 s%d, s%d, %d" % (sT1, sT1, WS_KV))
        b("v_lshrrev_b32 v%d, 3, v1" % t2); b("v_lshlrev_b32 v%d, 10, v%d" % (A_PL, t2)); b("v_and_b32 v%d, 7, v1" % t2)
        b("v_lshl_add_u32 v%d, v%d, 4, v%d" % (A_PL, t2, A_PL)); b("v_add_u32 v%d, s%d, v%d" % (A_PL, sT1, A_PL))
        b("s_lshl_b32 s%d, s%d, 10" % (sT1, sT4)); b("s_add_u32 s%d, s%d, s%d" % (sT1, sT1, sT5)); b("s_add_u32 s%d, s%d, %d" % (sT1, sT1, WS_KVF))
        b("v_lshlrev_b32 v%d, 4, v%d" % (A_OS, t2)); b("v_lshl_add_u32 v%d, v%d, 2, v%d" % (A_OS, t3, A_OS))
        b("v_and_b32 v%d, 1, v%d" % (t2, t0)); b("v_lshl_add_u32 v%d, v%d, 3, v%d" % (A_OS, t2, A_OS)); b("v_add_u32 v%d, s%d, v%d" % (A_OS, sT1, A_OS))
        b("s_lshl_b32 s%d, s%d, 11" % (sT1, sT4)); b("s_add_u32 s%d, s%d, %d" % (sT1, sT1, WS_Z))
        b("v_lshlrev_b32 v%d, 7, v%d" % (A_ZL, t1)); b("v_lshl_add_u32 v%d, v%d, 4, v%d" % (A_ZL, t0, A_ZL)); b("v_add_u32 v%d, s%d, v%d" % (A_ZL, sT1, A_ZL))
        b("s_lshl_b32 s%d, s%d, 7" % (sT1, sT4)); b("s_add_u32 s%d, s%d, %d" % (sT1, sT1, WS_ZF))
        b("v_lshlrev_b32 v%d, 6, v%d" % (A_CM, t1)); b("v_lshl_add_u32 v%d, v%d, 4, v%d" % (A_CM, t0, A_CM)); b("v_add_u32 v%d, s%d, v%d" % (A_CM, sT1, A_CM))
        ident(b, A_ID, t1)
    if ty == 1:
        b("s_lshl_b32 s%d, s%d, 10" % (sT1, hq)); b("s_add_u32 s%d, s%d, %d" % (sT1, sT1, WS_KVF)); b("v_add_u32 v%d, s%d, v%d" % (A_PL, sT1, u0))
        b("s_lshl_b32 s%d, s%d, 7" % (sT1, hq)); b("s_add_u32 s%d, s%d, %d" % (sT1, sT1, WS_ZF))
        b("v_lshlrev_b32 v%d, 4, v%d" % (A_ZL, t0)); b("v_add_u32 v%d, s%d, v%d" % (A_ZL, sT1, A_ZL))
        b("s_mul_i32 s%d, s%d, 576" % (sT1, sI)); b("s_add_u32 s%d, s%d, s%d" % (sT1, sT1, hq)); b("s_add_u32 s%d, s%d, s%d" % (sT1, sT1, sW1)); b("s_add_u32 s%d, s%d, 112" % (sT1, sT1))
        b("s_lshl_b32 s%d, s%d, 10" % (sT1, sT1)); b("s_add_u32 s%d, s%d, %d" % (sT1, sT1, WS_HO))
        b("v_and_b32 v%d, 1, v%d" % (t2, t0)); b("v_lshlrev_b32 v%d, 10, v%d" % (A_OS, t2)); b("v_lshl_add_u32 v%d, v%d, 8, v%d" % (A_OS, t3, A_OS))
        b("v_lshl_add_u32 v%d, v%d, 4, v%d" % (A_OS, t1, A_OS)); b("v_add_u32 v%d, s%d, v%d" % (A_OS, sT1, A_OS))
    return P

def attn_wave(ty):
    P = [M(("x", 1))] + attn_setup(ty); a = lambda t, tag=None: P.append(I(t, tag))
    stamp = lambda k: stamp_to(P, k, 34)
    def signal(vaddr, off): one_lane(P, "buffer_atomic_add v%d, v%d, %s, 0 offen offset:%d sc1" % (A_ONE, vaddr, srd(SWS), off))
    def ft():
        a("s_mov_b32 exec_hi, 0"); a("buffer_load_dword v%d, v%d, %s, s%d offen offset:%d" % (A_POLL + 1, A_TCH + 3, srd(SQKV), sKC, 1024 * ty))
        if CFG["ftouch"] == 7:
            if ty: a("s_lshl_b32 s%d, s%d, 7" % (sT0, sGR)); a("buffer_load_dword v%d, v%d, %s, s%d offen" % (A_POLL + 1, A_TCH + 3, srd(SQKV), sT0))
            else:
                a("s_lshl_b32 s%d, s%d, 8" % (sT0, sGR))
                for d in (SG, SU): a("buffer_load_dword v%d, v%d, %s, s%d offen" % (A_POLL + 1, A_TCH + 2, srd(d), sT0))
        a("s_mov_b64 exec, -1")
    def after1():
        if CFG["ftouch"] in (5, 7): ft()
        if ty == 0:
            only(P, ["s_add_u32 s%d, s2, s%d" % (sT0, sW1), "s_cmp_lg_u32 s%d, 0" % sT0],
                 [I("buffer_store_dword v%d, v%d, %s, 0 offen sc1" % (A_ONE, A_ZERO, srd(SDBG)))])
    P.append(W(lg="all"))
    xstages(P, {1: after1, 0: (ft if CFG["ftouch"] == 6 else lambda: None)})
    a("s_barrier")
    if CFG["noattn"]:
        one_lane(P, "ds_add_u32 v%d, v%d offset:%d" % (A_FL, A_ONE, F_EXF)); a("s_endpgm"); return P
    P.append(W(vm=["wphi"]))
    for hh in range(1 + ty):
        for j in range(4): a("v_lshl_or_b32 v%d, v%d, 16, v%d" % (A_WP + 4 * hh + j, A_RAW + 8 * hh + 2 * j + 1, A_RAW + 8 * hh + 2 * j))
        for j in range(4): a("v_xor_b32 v%d, v%d, v%d" % (A_WP + 4 * hh + j, A_WP + 4 * hh + j, A_SGN))
    WK = A_WP + 4 * ty
    T = A_T
    a("v_and_b32 v%d, 31, v1" % T); a("v_lshlrev_b32 v%d, 2, v%d" % (T, T)); a("v_add_u32 v%d, %d, v%d" % (T, LRS, T))
    a("v_lshrrev_b32 v%d, 4, v1" % (T + 1)); a("v_lshlrev_b32 v%d, 4, v%d" % (T + 1, T + 1)); a("v_add_u32 v%d, %d, v%d" % (T + 1, LSD, T + 1))
    count_wait(P, A_FL, A_FV, F_EX, 4)
    stamp(11)
    for u in range(4): a("ds_read_b32 v%d, v%d offset:%d" % (A_R + u, T, u * 128))
    for u in range(4): a("ds_read_b128 %s, v%d offset:%d" % (v(A_SD + 4 * u, 4), T + 1, u * 64))
    for u in range(4): a("ds_read_b128 %s, v%d offset:%d" % (v(A_KF + 4 * u, 4), A_RK, u * 8192))
    P.append(W(lg="all"))
    for u in range(4): a("v_mul_f32 v%d, s%d, v%d" % (A_R + 4 + u, sL2E, A_R + u))
    PM = (T, T + 16); RR = (T + 32, T + 36)
    def qpair(hh, pr, src=None):
        src = A_KF + 8 * pr if src is None else src
        return mprio(zipper(softmax_unit(A_WP + 4 * hh, src, 2 * pr, A_PQ + 32 * hh + 16 * pr, PM[0], RR[0], False),
                            softmax_unit(A_WP + 4 * hh, src + 4, 2 * pr + 1, A_PQ + 32 * hh + 16 * pr + 8, PM[1], RR[1], False)), CFG["qprio"])
    KO = 0 if CFG["kvfirst"] else 4096 * ty
    if ty == 1 and not CFG["kvfirst"]:
        P += qpair(0, 0)
        if CFG["qpre"] == 2: P += qpair(0, 1)
        else:
            for j in range(8): a("v_mov_b32 v%d, v%d" % (A_PQ + 16 + j, A_KF + 8 + j))
        count_wait(P, A_FL, A_FV, F_EX + 4, 4)
        stamp(18)
        for u in range(4): a("ds_read_b128 %s, v%d offset:%d" % (v(A_KF + 4 * u, 4), A_RK, u * 8192 + KO))
        P.append(W(lg="all"))
    B = []; b = lambda t, tag=None: B.append(I(t, tag))
    def tail(u):
        X = []; x = lambda t, tag=None: X.append(I(t, tag))
        PHI = A_PHI + 8 * (u & 1); FR = A_PHI + 16 + 12 * (u & 1); so = (u & 1) * 16384 + KO
        for sg in range(2): x("ds_write_b128 v%d, %s offset:%d" % (A_RK, v(PHI + 4 * sg, 4), so + sg * 8192))
        for q in range(2): x("ds_read_b64_tr_b16 %s, v%d offset:%d" % (v(FR + 2 * q, 2), A_RV, u * 8192 + KO + 1024 + q * 64), ("pr", u))
        for sg in range(2):
            for q in range(2): x("ds_read_b64_tr_b16 %s, v%d offset:%d" % (v(FR + 4 + 4 * sg + 2 * q, 2), A_RV, so + sg * 8192 + q * 64), ("pr", u))
        return X
    def kvm(us):
        X = [W(lg=[("pr", us[-1])])]
        for u in us:
            FR = A_PHI + 16 + 12 * (u & 1)
            for sg in range(2):
                c = v(A_ACC + 4 * sg, 4); z = v(A_ACC + 8 + 4 * sg, 4)
                X.append(I("v_mfma_f32_16x16x32_bf16 %s, %s, %s, %s" % (c, v(FR + 4 + 4 * sg, 4), v(FR, 4), "0" if u == 0 else c)))
                X.append(I("v_mfma_f32_16x16x32_bf16 %s, %s, %s, %s" % (z, v(FR + 4 + 4 * sg, 4), v(A_SD + 4 * u, 4), "0" if u == 0 else z)))
        return X
    for pr in range(2):
        z = zipper(softmax_unit(WK, A_KF + 8 * pr, 2 * pr, A_PHI, PM[0], RR[0], True), softmax_unit(WK, A_KF + 8 * pr + 4, 2 * pr + 1, A_PHI + 8, PM[1], RR[1], True))
        t0_, t1_ = tail(2 * pr), tail(2 * pr + 1)
        if pr == 0: B += z + t0_[:2] + t1_[:2]; late = t0_[2:] + t1_[2:]
        else: B += z[:70] + late + z[70:120] + kvm((0, 1)) + z[120:] + t0_[:2] + t1_[:2] + t0_[2:] + t1_[2:]
    b("v_and_b32 v%d, 15, v1" % T); b("v_cmp_eq_u32 vcc, 1, v%d" % T)
    if ty == 0: one_lane(B, "ds_add_u32 v%d, v%d offset:%d" % (A_FL, A_ONE, F_EXF))
    B += kvm((2, 3))
    for j in range(4): b("v_cvt_pk_bf16_f32 v%d, v%d, v%d" % (A_ACC + j, A_ACC + 2 * j, A_ACC + 2 * j + 1))
    for j in range(4): b("v_cndmask_b32 v%d, v%d, v%d, vcc" % (A_ACC + 8 + j, A_ACC + 8 + j, A_ACC + 12 + j))
    b("buffer_store_dwordx4 %s, v%d, %s, 0 offen sc1" % (v(A_ACC, 4), A_ST, srd(SWS)), "part")
    b("s_mov_b32 exec_lo, 0x00030003"); b("s_mov_b32 exec_hi, 0x00030003")
    b("buffer_store_dwordx4 %s, v%d, %s, 0 offen sc1" % (v(A_ACC + 8, 4), A_ZA, srd(SWS)), "part"); b("s_mov_b64 exec, -1")
    P += mprio(B, CFG["kprio"]); a("s_setprio 0")
    stamp(12)
    def publish_k():
        a("ds_read_b32 v%d, v%d offset:%d" % (A_POLL, A_FL, F_INIT), "init"); gate(P, A_ZERO, SDBG, 0, "init", A_POLL, 1)
        P.append(W(vm=["part"])); signal(A_CK, 0)
        stamp(13)
    if ty == 0:
        publish_k()
        a(sload(SWS, sCC, 0, sG)); sgate(P, sCC, 0, sG, 16)
        stamp(14)
        LD = A_LD; S = T; Z = A_ACC
        a("buffer_load_dwordx4 %s, v%d, %s, 0 offen sc1" % (v(LD, 4), A_PL, srd(SWS))); a("s_movk_i32 s%d, 8192" % sT0)
        a("buffer_load_dwordx4 %s, v%d, %s, s%d offen sc1" % (v(LD + 4, 4), A_PL, srd(SWS), sT0))
        X = []; x = lambda t: X.append(I(t))
        x("buffer_load_dwordx4 %s, v%d, %s, 0 offen sc1" % (v(Z, 4), A_ZL, srd(SWS))); x("buffer_load_dwordx4 %s, v%d, %s, 0 offen offset:64 sc1" % (v(Z + 4, 4), A_ZL, srd(SWS)))
        x("v_and_b32 v%d, 15, v1" % S); x("v_cmp_eq_u32 vcc, 1, v%d" % S); x("s_waitcnt vmcnt(0)")
        for k in (8, 4, 2, 1):
            for j in range(8): x("v_add_f32_dpp v%d, v%d, v%d row_ror:%d row_mask:0xf bank_mask:0xf" % (Z + j, Z + j, Z + j, k))
        for j in range(4): x("v_cndmask_b32 v%d, v%d, v%d, vcc" % (Z + j, Z + j, Z + 4 + j))
        x("s_mov_b32 exec_lo, 0x00030003"); x("s_mov_b32 exec_hi, 0x00030003")
        x("buffer_store_dwordx4 %s, v%d, %s, 0 offen sc1" % (v(Z, 4), A_CM, srd(SWS))); x("s_mov_b64 exec, -1"); x("s_branch L_l2b")
        only(P, ["s_cmp_lg_u32 s%d, 0" % sLD], X)
        a("s_waitcnt vmcnt(0)"); P.append(L("L_l2b:"))
        B = []
        for t_ in range(2):
            for sg in range(2): b("v_mfma_f32_4x4x4_16b_bf16 %s, %s, %s, %s" % (v(S + 4 * sg, 4), v(A_ID, 2), v(LD + 4 * t_ + 2 * sg, 2), "0" if t_ == 0 else v(S + 4 * sg, 4)))
        for j in range(8): b("v_add_f32_dpp v%d, v%d, v%d row_ror:8 row_mask:0xf bank_mask:0xf" % (S + j, S + j, S + j))
        for j in range(4): b("v_permlane16_swap_b32 v%d, v%d" % (S + j, S + 4 + j))
        for j in range(4): b("v_add_f32 v%d, v%d, v%d" % (S + j, S + j, S + 4 + j))
        for j in range(2): b("v_permlane32_swap_b32 v%d, v%d" % (S + j, S + 2 + j))
        for j in range(2): b("v_add_f32 v%d, v%d, v%d" % (S + j, S + j, S + 2 + j))
        b("v_cvt_pk_bf16_f32 v%d, v%d, v%d" % (S, S, S + 1))
        b("s_mov_b32 exec_lo, 0x00ff00ff"); b("s_mov_b32 exec_hi, 0x00ff00ff")
        b("buffer_store_dword v%d, v%d, %s, 0 offen sc1" % (S, A_OS, srd(SWS))); b("s_mov_b64 exec, -1")
        P += mprio(B); P.append(W(vm="all")); signal(A_CQ, 128)
        stamp(15)
    else:
        assert CFG["kvfirst"]
        if CFG["qlate"]: publish_k()
        count_wait(P, A_FL, A_FV, F_EX + 4, 4)
        for hh in range(2):
            for u in range(4): a("ds_read_b128 %s, v%d offset:%d" % (v(A_PQ + 32 * hh + 16 * (u >> 1) + 4 * (u & 1), 4), A_RK, u * 8192 + 4096 + 1024 * hh), "qf")
        one_lane(P, "ds_add_u32 v%d, v%d offset:%d" % (A_FL, A_ONE, F_EXF))
        P.append(W(lg=["qf"]))
        z = qpair(0, 0, A_PQ) if CFG["kvfirst"] else qpair(1, 0)
        P += z[:CFG["kpub"]]
        if not CFG["qlate"]: publish_k()
        P += z[CFG["kpub"]:]
        if CFG["kvfirst"]: rest = [qpair(0, 1, A_PQ + 16), qpair(1, 0, A_PQ + 32), qpair(1, 1, A_PQ + 48)]
        else: rest = ([qpair(0, 1, A_PQ + 16)] if CFG["qpre"] == 1 else []) + [qpair(1, 1)]
        for z in rest: P += z
        Z = (A_ACC, A_ACC + 8); KVA = (A_WP, A_R); S = A_KF
        def finish(hh):
            B = []; b = lambda t, tag=None: B.append(I(t, tag))
            KV = KVA[hh]; PQ = A_PQ + 32 * hh
            for sg in range(2):
                for j in range(2):
                    b("v_mov_b32 v%d, v%d" % (KV + 4 * sg + j, S + 4 * hh + 2 * sg + j))
                    b("v_cvt_pk_bf16_f32 v%d, v%d, v%d" % (KV + 4 * sg + 2 + j, Z[hh] + 4 * sg + 2 * j, Z[hh] + 4 * sg + 2 * j + 1))
            for w in ("16", "32"):
                for sg in range(2):
                    for j in range(2): b("v_permlane%s_swap_b32 v%d, v%d" % (w, KV + 4 * sg + j, KV + 4 * sg + 2 + j))
            if CFG["qnorm"]:
                NN = [A_LD + 16 * u for u in range(4)]
                for u in range(4):
                    for sg in range(2): b("v_mfma_f32_32x32x16_bf16 %s, %s, %s, %s" % (v(NN[u], 16), v(KV + 4 * sg, 4), v(PQ + 8 * u + 4 * sg, 4), v(NN[u], 16) if sg else "0"))
                for u in range(4):
                    N = NN[u]
                    b("v_add_f32 v%d, 0x358637bd, v%d" % (N + 8, N + 8)); b("v_rcp_f32 v%d, v%d" % (N + 8, N + 8))
                    for j in range(8): b("v_mul_f32 v%d, v%d, v%d" % (N + j, N + j, N + 8))
                    for j in range(4): b("v_cvt_pk_bf16_f32 v%d, v%d, v%d" % (A_PQ + 8 * u + 4 * (j >> 1) + 2 * hh + (j & 1), N + 2 * j, N + 2 * j + 1))
                    if hh:
                        b("s_mov_b32 s%d, %d" % (sT5, u * 147456))
                        for h2 in range(2): b("buffer_store_dwordx4 %s, v%d, %s, s%d offen offset:%d sc1" % (v(A_PQ + 8 * u + 4 * h2, 4), A_OS, srd(SWS), sT5, 512 * h2), "ost")
                P.extend(mprio(B, CFG["fprio"])); return
            b("s_mov_b32 exec_lo, 0xff000000"); b("s_mov_b32 exec_hi, 0xff000000")
            for j in range(8): b("v_mov_b32 v%d, 0x3f803f80" % (KV + j))
            b("s_mov_b64 exec, -1")
            buf = [A_LD + 32, A_LD]
            def mm(u):
                for sg in range(2): b("v_mfma_f32_32x32x16_bf16 %s, %s, %s, 0" % (v(buf[u & 1] + 16 * sg, 16), v(KV + 4 * sg, 4), v(PQ + 8 * u + 4 * sg, 4)))
            mm(0)
            for u in range(4):
                if u < 3: mm(u + 1)
                N = buf[u & 1]; Q = N + 16; O = PQ + 8 * u
                b("v_rcp_f32 v%d, v%d" % (N + 12, N + 12)); b("v_rcp_f32 v%d, v%d" % (Q + 12, Q + 12))
                b("v_fmaak_f32 v%d, v%d, v%d, 0x358637bd" % (N + 8, N + 8, N + 12)); b("v_fmac_f32 v%d, v%d, v%d" % (N + 8, Q + 8, Q + 12))
                b("v_rcp_f32 v%d, v%d" % (N + 8, N + 8))
                b("v_mul_f32 v%d, v%d, v%d" % (N + 12, N + 12, N + 8)); b("v_mul_f32 v%d, v%d, v%d" % (Q + 12, Q + 12, N + 8))
                for j in range(8): b("v_mul_f32 v%d, v%d, v%d" % (N + j, N + j, N + 12))
                for j in range(8): b("v_fmac_f32 v%d, v%d, v%d" % (N + j, Q + j, Q + 12))
                for j in range(4): b("v_cvt_pk_bf16_f32 v%d, v%d, v%d" % (A_PQ + 8 * u + 4 * (j >> 1) + 2 * hh + (j & 1), N + 2 * j, N + 2 * j + 1))
            P.extend(mprio(B, CFG["fprio"]))
        def stores(hh):
            for u in range(4):
                a("s_mov_b32 s%d, %d" % (sT5, u * 147456))
                a("buffer_store_dwordx4 %s, v%d, %s, s%d offen offset:%d sc1" % (v(A_PQ + 8 * u + 4 * hh, 4), A_OS, srd(SWS), sT5, 512 * hh), "ost")
        stamp(14)
        for hh in range(2): a(sload(SWS, sCC, 512 * hh + 128, sG + hh))
        for hh in range(2): sgate(P, sCC, 512 * hh + 128, sG + hh, 8)
        stamp(15)
        for hh in range(2):
            a("buffer_load_dwordx4 %s, v%d, %s, 0 offen offset:%d sc1" % (v(S + 4 * hh, 4), A_PL, srd(SWS), 2048 * hh))
            for sg in range(2): a("buffer_load_dwordx4 %s, v%d, %s, 0 offen offset:%d sc1" % (v(Z[hh] + 4 * sg, 4), A_ZL, srd(SWS), 256 * hh + 64 * sg))
        P.append(W(vm="all"))
        finish(0); finish(1)
        if not CFG["qnorm"]: stores(0); stores(1)
        stamp(16)
        P.append(W(vm=["ost"]))
        a("s_mov_b64 exec, 3"); a("buffer_atomic_add v%d, v%d, %s, 0 offen offset:%d sc1" % (A_ONE, A_CM, srd(SWS), C_O * 128)); a("s_mov_b64 exec, -1")
        stamp(17)
    if CFG["stamps"]:
        a("s_lshl_b32 s%d, s2, 8" % sT0); a("s_add_u32 s%d, s%d, %d" % (sT0, sT0, WS_ST + 0x30000))
        a("v_lshlrev_b32 v64, 2, v1")
        a("s_cmp_lg_u32 s%d, %d" % (sW1, CFG["stampw"] & 1)); a("s_cbranch_scc1 L_exit")
        a("buffer_store_dword v34, v64, %s, s%d offen" % (srd(SWS), sT0))
    a("s_endpgm")
    return P

def main():
    hdr = open("cdna_kernels/%s.s.ref" % NAME).read().split("; Override launch geometry")[0]
    out = [hdr.rstrip(), "; @launch grid=(256,1,1) block=(512,1,1) lds=163840",
           '.amdgcn_target "amdgcn-amd-amdhsa--gfx950"', ".text", ".globl %s_kernel" % NAME, ".p2align 8",
           ".type %s_kernel,@function" % NAME, "%s_kernel:" % NAME]
    t, st = finalize(prologue()); out += t
    for nm, fn in (("attn", attn_wave), ("dma", dma_wave), ("comp", compute)):
        out.append("L_%s:" % nm)
        out += finalize([I("s_cmp_eq_u32 s%d, 1" % sTY), I("s_cbranch_scc1 L_%s1" % nm)] + fn(0), st.clone())[0]
        out.append("L_%s1:" % nm); out += finalize(fn(1), st.clone())[0]
    out += centre_sub() + STUBS
    out += lds_spin("c", 18, C_FV, CFG["cnap"]) + lds_spin("d", D_LA, D_DV, CFG["dnap"])
    out += ["L_exit:", "    s_endpgm", ".p2align 7", "L_tab:"] + ["    .long %d" % k for k in range(64)]
    out += ['.section .rodata,"a"', ".p2align 6", ".amdhsa_kernel %s_kernel" % NAME,
            "  .amdhsa_next_free_vgpr 256", "  .amdhsa_next_free_sgpr 100", "  .amdhsa_accum_offset 256",
            "  .amdhsa_group_segment_fixed_size 0", "  .amdhsa_kernarg_size 88", "  .amdhsa_user_sgpr_count 2",
            "  .amdhsa_user_sgpr_kernarg_segment_ptr 1", "  .amdhsa_system_sgpr_workgroup_id_x 1", ".end_amdhsa_kernel"]
    open(sys.argv[1], "w").write("\n".join(out) + "\n")
main()
```

```python
import sys, os, json
sys.path.insert(0, os.path.dirname(os.path.abspath(__file__)))
from asmir import I, W, L, M, v, s, finalize, State

NAME = "recurrent_scan__linear_kernel_hedgehog__glu_gated_bilinear__prompt"
CFG = dict(stamps=0, probe=0, probeat=-1, xprobe=0, outfl="", stampw=0, zoom=0, LA=6, LAF=3, erate=3, codepf=1, sleep=4, cnap=1, dnap=2, map=84, latin=1, share=1, join=1, st2=12, wrat=3, stspread=0, qlate=0, ring2=[8, 9, 7, 0, 2, 3, 4, 5, 6], soft0=[], soft1=[], capsoft=48, zstep=1, bigring=0, bigto=20, cen0=32, dprio=0, hfl="sc1", cenat=4, nods=0, nost=0, noattn=0, light=0, nogate=[], qnorm=1, inl=0, tlb=0, tlbm=0xfffffff, s0at=2, kprio=0, qprio=0, fprio=0, wait2=0, kvfirst=1, l2nap=16, qpre=1, qpost=1, ftouch=0, fakeA=0, fakeP=0, dstep=1, fake16=0, lead=0, spoll=1, leadoff=0, who=[0, 2, 0, 2, 1, 3, 0, 2, 1], kpub=40, dry=0, aonly=0, map2=84, h2now=1, chk2=0,
           cap1=128, capt=160, cap2=112, capsw=20, awin=-1, pollat=2, hwait1=16, hwait2=-6, nb0=56, nb1=56, ahead2=4,
           bfirst=2, p2chk=1,
           rsat=66, exw0=[], exw1=[], afirst={},
           tplan0={"8": "d0 x", "15": "d1 o"}, tplan1={"5": "d0 x", "11": "d1 o"})
for a_ in sys.argv[2:]:
    k_, x_ = a_.split("="); assert k_ in CFG, k_; CFG[k_] = json.loads(x_)

WS_RS = 0x8000
WS_KV = 0x10000
WS_Z = 0x120000
WS_KVF = 0x130000; WS_ZF = 0x138000
WS_ST = 0x140000
WS_HO = 0x200000
WS_BYTES = WS_HO + 64 * 144 * 1024
C_H1A, C_H1B, C_H2, C_O = 0, 1, 2, 3
SLOT = 16384; STG = 32768; EX = 131072; FL = SLOT; LRS = FL + 2048; LSD = LRS + 512; F_INIT = 1792; LR2 = FL + 3072; LX = FL + 4096
F_LAND, F_DONE = 256, 768
F_EX, F_H, F_EXF, F_END = 32, 44, 52, 56
SX, SQKV, SPHI, SWO, SG, SU, SWD, SOUT, SDBG, SWS = 8, 12, 16, 20, 24, 28, 32, 36, 40, 44
sW, sW1, sI, sGR, sTY, sR1, sXR, sTT, sCT, sR2 = range(56, 66)
sT0, sT1, sT2, sT3, sT4, sT5 = range(66, 72)
sL2E = 72; sKC = 73; sSH = 74; sXL = 75; sKS = 76; sLA = 78; sXB = 79
sSPIN = 80; sRET = 82; sPH = 84; sTB = 88; sTM = 90; sMK = 94; sLM = 48; sLD = 49; sG = 50; sCC = 54; sPV = 55
srd = lambda b: s(b, 4)
LOG2E = 0x3fb8aa3b
XR = 128; ACC = 64; WF = 32
L_T, L_SEL, L_ID, L_SM, L_CM, L_SQ = 192, 224, 228, 232, 236, 240
L_XO, L_RR, L_C, L_SB, L_C7, L_WA, L_VA, L_VB = 124, 245, 246, 247, 248, 249, 251, 252
L_TR = 244
K_SQ, K_DL, K_RA = 16, 20, 24
H_STAMP = 255; H_STAMP2 = 254
_lbl = [0]
def newlbl():
    _lbl[0] += 1; return _lbl[0]
STUBS = []

PH = {0: [("P2", "kv", (0, 1)), ("P4", "gu", (2, 3, 0, 1)), ("P4", "gu", (0, 1, 2, 3))],
      1: [("P2", "q", (0, 1)), ("P2", "kv", (2, 3)), ("P4", "gu", (0, 1, 2, 3)), ("P2", "gu", (0, 1))]}
if CFG["kvfirst"]: PH[1][0:2] = [("P2", "kv", (0, 1)), ("P2", "q", (2, 3))]
if CFG["qlate"]: PH[1] = [("P2", "kv", (0, 1)), ("P4", "gu", (2, 3, 0, 1)), ("P2", "q", (0, 1)), ("P2", "gu", (2, 3))]
def slabs_of(ty):
    return [(pi, k, sg) for pi, (k, e, _) in enumerate(PH[ty]) for sg in range(8 if k == "P4" else 4)]
def slot_of(n):
    return (0, 2, 3, 4, 5, 6, 7)[n % 7] if n < 20 else tuple(CFG["ring2"])[(n - 20) % 9]
def prev_user(n):
    p = [m for m in range(n) if slot_of(m) == slot_of(n)]
    return p[-1] if p else -1
def marked(n): return n < 20 or n % CFG["dstep"] == CFG["dstep"] - 1
def checks(ty):
    c = {0: 0, 1: 1}
    for n in range(2, CFG["nb%d" % ty], 2):
        if (CFG["chk2"] if n < 20 else CFG["p2chk"] == 2): c[n] = n + 1
        else: c[n] = n; c[n + 1] = n + 1
    return c

def stamp_to(P, k, reg=H_STAMP):
    if CFG["stamps"]:
        P.append(I("s_memtime %s" % s(sTM + 2, 2))); P.append(W(lg="all"))
        P.append(I("s_sub_u32 s%d, s%d, s%d" % (sTM + 2, sTM + 2, sTM))); P.append(I("v_writelane_b32 v%d, s%d, %d" % (reg, sTM + 2, k)))
def rstamp(P, k):
    if CFG["stamps"]:
        P.append(I("s_memrealtime s[6:7]")); stamp_to(P, k, H_STAMP2)
        P.append(I("s_sub_u32 s6, s6, s4")); P.append(I("v_writelane_b32 v%d, s6, %d" % (H_STAMP2, k + 1)))
def raw(P, items):
    for x in finalize(items)[0]: P.append(L(x))
def only(P, cond, items):
    n = newlbl()
    for t in cond: P.append(I(t))
    P.append(I("s_cbranch_scc1 L_sk%d" % n)); raw(P, items); P.append(L("L_sk%d:" % n))
def one_lane(X, t, tag=None):
    X.append(I("s_mov_b64 exec, 1")); X.append(I(t, tag)); X.append(I("s_mov_b64 exec, -1"))

def p4_voffs(a, va, vb, stride, t):
    a("v_lshrrev_b32 v%d, 3, v1" % t)
    a("v_and_b32 v%d, 2, v%d" % (t + 1, t)); a("v_lshlrev_b32 v%d, 1, v%d" % (t + 1, t + 1))
    a("v_and_b32 v%d, 7, v1" % (t + 2)); a("v_xor_b32 v%d, v%d, v%d" % (t + 2, t + 2, t + 1))
    a("v_mul_u32_u24 v%d, %d, v%d" % (t, stride, t))
    a("v_lshl_add_u32 v%d, v%d, 4, v%d" % (va, t + 2, t))
    a("v_xor_b32 v%d, 32, v%d" % (vb, va))
def p2_voffs(a, va, vb, stride, t):
    a("v_lshrrev_b32 v%d, 2, v1" % t)
    a("v_and_b32 v%d, 3, v1" % (t + 2)); a("v_lshrrev_b32 v%d, 4, v1" % (t + 1)); a("v_and_b32 v%d, 2, v%d" % (t + 1, t + 1)); a("v_xor_b32 v%d, v%d, v%d" % (t + 2, t + 2, t + 1))
    a("v_mul_u32_u24 v%d, %d, v%d" % (t, stride, t))
    a("v_lshl_add_u32 v%d, v%d, 4, v%d" % (va, t + 2, t))
    a("v_mov_b32 v%d, v%d" % (vb, va))
def ident(a, dst, t):
    a("v_and_b32 v%d, 3, v1" % t)
    a("v_and_b32 v%d, 1, v1" % (t + 1)); a("v_lshlrev_b32 v%d, 4, v%d" % (t + 1, t + 1)); a("v_mov_b32 v%d, 0x3f80" % (t + 2))
    a("v_lshlrev_b32 v%d, v%d, v%d" % (t + 1, t + 1, t + 2))
    a("v_cmp_gt_u32 vcc, 2, v%d" % t)
    a("v_cndmask_b32 v%d, 0, v%d, vcc" % (dst, t + 1)); a("v_sub_u32 v%d, v%d, v%d" % (dst + 1, t + 1, dst))

X_V = 48
def prologue():
    P = []; a = lambda t, tag=None: P.append(I(t, tag))
    a("s_cmp_ge_u32 s2, 256")
    a("s_cbranch_scc1 L_exit")
    a("s_load_dwordx2 %s, s[0:1], 0" % s(SX, 2)); a("s_load_dwordx2 %s, s[0:1], 8" % s(SQKV, 2))
    if CFG["probe"]: a("s_memrealtime s[4:5]")
    if CFG["light"]: a("s_memtime %s" % s(sTM, 2)); a("s_memrealtime s[4:5]")
    if CFG["stamps"]:
        a("s_memtime %s" % s(sTM, 2)); a("s_memrealtime s[4:5]")
    a("s_lshr_b32 s%d, s2, 3" % sSH)
    a("s_getpc_b64 %s" % s(sTB, 2)); P.append(L("L_pc:"))
    if CFG["codepf"]:
        a("s_mul_i32 s%d, s%d, 24" % (sT0, sSH))
        a("v_add_u32 v3, s%d, v0" % sT0); a("v_lshlrev_b32 v3, 7, v3"); a("v_min_u32 v3, L_tab-L_pc+252, v3")
        a("v_cmp_gt_u32 vcc, 24, v0"); a("s_and_saveexec_b64 s[48:49], vcc"); a("s_cbranch_execz L_nopf")
        P.append(L("    global_load_dword v%d, v3, %s" % (X_V + 5, s(sTB, 2))))
        P.append(L("L_nopf:")); a("s_mov_b64 exec, -1")
    a("v_lshrrev_b32 v2, 6, v0")
    a("v_and_b32 v1, 63, v0")
    a("v_readfirstlane_b32 s%d, v2" % sW)
    a("s_and_b32 s%d, s2, 7" % sT5)
    a("s_lshr_b32 s%d, s%d, 4" % (sTY, sSH))
    if CFG["map"] == 48:
        a("s_and_b32 s%d, s%d, 3" % (sT3, sSH)); a("s_lshl_b32 s%d, s%d, 1" % (sXR, sT3))
        a("s_lshr_b32 s%d, s%d, 1" % (sT2, sT5)); a("s_lshl_b32 s%d, s%d, 2" % (sT2, sT2)); a("s_add_u32 s%d, s%d, s%d" % (sI, sT2, sT3))
        a("s_lshr_b32 s%d, s%d, 2" % (sR1, sSH))
        a("s_and_b32 s%d, s%d, 1" % (sT2, sT5)); a("s_lshl_b32 s%d, s%d, 2" % (sT2, sT2)); a("s_and_b32 s%d, s%d, 3" % (sT3, sR1)); a("s_add_u32 s%d, s%d, s%d" % (sGR, sT2, sT3))
    else:
        a("s_and_b32 s%d, s%d, 7" % (sXR, sSH))
        a("s_lshr_b32 s%d, s%d, 2" % (sT2, sT5)); a("s_lshl_b32 s%d, s%d, 3" % (sT2, sT2)); a("s_add_u32 s%d, s%d, s%d" % (sI, sT2, sXR))
        a("s_lshr_b32 s%d, s%d, 3" % (sT3, sSH)); a("s_lshl_b32 s%d, s%d, 1" % (sR1, sT3))
        a("s_and_b32 s%d, s%d, 3" % (sT2, sT5)); a("s_lshl_b32 s%d, s%d, 1" % (sT2, sT2)); a("s_and_b32 s%d, s%d, 1" % (sT3, sT3)); a("s_add_u32 s%d, s%d, s%d" % (sGR, sT2, sT3))
    if CFG["latin"]: a("s_add_u32 s%d, s%d, s%d" % (sR1, sR1, sXR)); a("s_and_b32 s%d, s%d, 7" % (sR1, sR1))
    a("s_mov_b32 s%d, 2097152" % (SX + 2)); a("s_mov_b32 s%d, 0x20000" % (SX + 3))
    X = []; x = lambda t, tag=None: X.append(I(t, tag))
    x("v_lshrrev_b32 v4, 3, v1"); x("v_lshrrev_b32 v5, 4, v1"); x("v_and_b32 v6, 7, v1"); x("v_xor_b32 v5, v5, v6")
    x("v_lshlrev_b32 v4, 10, v4"); x("v_lshl_add_u32 v%d, v5, 4, v4" % X_V)
    x("v_xor_b32 v4, 64, v%d" % X_V)
    x("v_add_u32 v%d, 7168, v4" % (X_V + 1)); x("v_add_u32 v%d, 14336, v%d" % (X_V + 2, X_V)); x("v_add_u32 v%d, 21504, v4" % (X_V + 3))
    x("s_and_b32 s%d, s%d, 3" % (sT0, sW)); x("s_lshl_b32 s%d, s%d, 12" % (sXL, sT0)); x("s_add_u32 s%d, s%d, %d" % (sXL, sXL, STG))
    x("s_lshl_b32 s%d, s%d, 15" % (sT0, sT0)); x("s_lshl_b32 s%d, s%d, 17" % (sXB, sI)); x("s_add_u32 s%d, s%d, s%d" % (sXB, sXB, sT0))
    x("s_cmp_lt_u32 s%d, 4" % sW); x("s_cbranch_scc1 L_nox")
    x("s_waitcnt lgkmcnt(0)")
    xline(x, 0); xline(x, 1)
    raw(P, X); P.append(L("L_nox:"))
    if CFG["stamps"]:
        a("v_mov_b32 v%d, 0" % H_STAMP); a("v_mov_b32 v%d, 0" % H_STAMP2); P.append(W(lg="all"))
    stamp_to(P, 0, H_STAMP2)
    for b, off in ((SPHI, 16), (SWS, 80), (SG, 40), (SU, 48), (SWO, 24), (SWD, 56), (SOUT, 64), (SDBG, 72)):
        a("s_load_dwordx2 %s, s[0:1], %d" % (s(b, 2), off))
    for b, n in ((SQKV, 1572864), (SPHI, 16384), (SWO, 524288), (SG, 1835008), (SU, 1835008), (SWD, 1835008), (SOUT, 2097152), (SDBG, 256), (SWS, WS_BYTES)):
        a("s_mov_b32 s%d, %d" % (b + 2, n)); a("s_mov_b32 s%d, 0x20000" % (b + 3))
    a("s_lshl_b32 s%d, s%d, 7" % (sKC, sGR)); a("s_lshl_b32 s%d, s%d, 6" % (sT0, sTY)); a("s_add_u32 s%d, s%d, s%d" % (sKC, sKC, sT0)); a("s_add_u32 s%d, s%d, 1024" % (sKC, sKC))
    if CFG["map2"] == 48:
        a("s_lshr_b32 s%d, s%d, 2" % (sCT, sSH)); a("s_and_b32 s%d, s%d, 3" % (sT3, sSH))
        a("s_lshl_b32 s%d, s%d, 2" % (sT2, sT5)); a("s_add_u32 s%d, s%d, s%d" % (sTT, sT2, sT3))
        a("s_lshl_b32 s%d, s%d, 1" % (sT3, sT3)); a("s_add_u32 s%d, s%d, s%d" % (sR2, sT3, sCT))
    else:
        a("s_lshr_b32 s%d, s%d, 3" % (sT3, sSH)); a("s_and_b32 s%d, s%d, 1" % (sT2, sT5)); a("s_lshl_b32 s%d, s%d, 2" % (sT2, sT2)); a("s_add_u32 s%d, s%d, s%d" % (sCT, sT2, sT3))
        a("s_and_b32 s%d, s%d, 7" % (sT1, sSH)); a("s_lshr_b32 s%d, s%d, 1" % (sT2, sT5)); a("s_lshl_b32 s%d, s%d, 3" % (sT2, sT2)); a("s_add_u32 s%d, s%d, s%d" % (sTT, sT2, sT1))
        a("s_and_b32 s%d, s%d, 1" % (sT3, sT3)); a("s_lshl_b32 s%d, s%d, 1" % (sT3, sT3)); a("s_add_u32 s%d, s%d, s%d" % (sT3, sT3, sTY))
        if CFG["lead"]: a("s_mov_b32 s%d, s%d" % (sLD, sT3)); a("s_mov_b32 s%d, s%d" % (sR2, sT1))
        else: a("s_lshl_b32 s%d, s%d, 1" % (sT3, sT3)); a("s_add_u32 s%d, s%d, s%d" % (sR2, sT3, sT1))
    a("s_and_b32 s%d, s%d, 1" % (sW1, sW))
    a("s_mov_b32 s%d, 0x%x" % (sL2E, LOG2E))
    a("s_add_u32 s%d, s%d, L_tab-L_pc" % (sTB, sTB)); a("s_addc_u32 s%d, s%d, 0" % (sTB + 1, sTB + 1))
    P.append(W(lg="all"))
    a("s_cmp_lt_u32 s%d, 4" % sW); a("s_cbranch_scc1 L_comp")
    a("s_cmp_lt_u32 s%d, 6" % sW); a("s_cbranch_scc1 L_dma")
    return P

def xline(a, j):
    a("s_add_u32 s%d, s%d, %d" % (sT0, sR1, j)); a("s_and_b32 s%d, s%d, 7" % (sT0, sT0)); a("s_lshl_b32 s%d, s%d, 7" % (sT0, sT0)); a("s_add_u32 s%d, s%d, s%d" % (sT0, sT0, sXB))
    a("s_add_u32 m0, s%d, %d" % (sXL, j * 16384))
    for p in range(4): a("buffer_load_dwordx4 v%d, %s, s%d offen offset:%d lds" % (X_V + p, srd(SX), sT0, p * 1024), ("x", j))
def xstages(P, extra):
    a = lambda t, tag=None: P.append(I(t, tag))
    xline(a, 2); xline(a, 3)
    for j in range(4):
        P.append(W(vm=[("x", 2 * j + 1)]))
        a("s_barrier")
        if j == 0: stamp_to(P, 2, H_STAMP2)
        if j < 2: xline(a, 2 * j + 4); xline(a, 2 * j + 5)
        if j in extra: extra[j]()

def fcols(a, ty):
    if ty == 0:
        a("s_lshl_b32 s%d, s%d, 7" % (sKS, sGR)); a("s_add_u32 s%d, s%d, 64" % (sKS + 1, sKS))
    else:
        a("s_mul_i32 s%d, s%d, 96" % (sT0, sGR)); a("s_add_u32 s%d, s%d, 1024" % (sT0, sT0))
        a("s_and_b32 s%d, s%d, 1" % (sT1, sGR)); a("s_lshl_b32 s%d, s%d, 5" % (sT2, sT1))
        a("s_add_u32 s%d, s%d, s%d" % (sKS, sT0, sT2))
        a("s_xor_b32 s%d, s%d, 1" % (sT1, sT1)); a("s_lshl_b32 s%d, s%d, 6" % (sT1, sT1))
        a("s_add_u32 s%d, s%d, s%d" % (sKS + 1, sT0, sT1))

def clear_low(a, used):
    for k in range(2, 64):
        if k not in used: a("v_mov_b32 v%d, 0" % k)

def lds_spin(nm, va, vd, nap):
    X = ["L_spin_%s:" % nm, "    s_mov_b32 s%d, 0" % sSPIN, "L_spl_%s:" % nm]
    if nap: X.append("    s_sleep %d" % nap)
    X += ["    ds_read_b32 v%d, v%d" % (vd, va), "    s_add_u32 s%d, s%d, 1" % (sSPIN, sSPIN), "    s_waitcnt lgkmcnt(0)",
          "    s_cmp_ge_u32 s%d, 0x1000000" % sSPIN, "    s_cbranch_scc1 L_spr_%s" % nm,
          "    v_cmp_gt_u32 vcc, s%d, v%d" % (sSPIN + 1, vd), "    s_cbranch_vccnz L_spl_%s" % nm, "L_spr_%s:" % nm, "    s_setpc_b64 %s" % s(sRET, 2)]
    return X
def count_wait(P, vfl, vd, off, want):
    n = newlbl()
    P.append(W(lg="all"))
    for t in ["    s_mov_b32 s%d, 0" % sSPIN, "L_cw%d:" % n, "    ds_read_b32 v%d, v%d offset:%d" % (vd, vfl, off), "    s_add_u32 s%d, s%d, 1" % (sSPIN, sSPIN),
              "    s_waitcnt lgkmcnt(0)", "    v_cmp_le_u32 vcc, %d, v%d" % (want, vd), "    s_cbranch_vccnz L_cx%d" % n, "    s_sleep %d" % CFG["dnap"],
              "    s_cmp_lt_u32 s%d, 0x1000000" % sSPIN, "    s_cbranch_scc1 L_cw%d" % n, "L_cx%d:" % n]: P.append(L(t))

def sload(base, soff, off, sdst):
    return "s_load_dword s%d, %s, %s glc" % (sdst, s(base, 2), ("s%d offset:%d" % (soff, off)) if soff is not None else "%d" % off)
def sgate(P, soff, off, sdst, want, base=None):
    n = newlbl()
    P.append(W(lg="all"))
    P.append(I("s_cmp_eq_u32 s%d, %d" % (sdst, want))); P.append(I("s_cbranch_scc1 L_ok%d" % n))
    X = ["    s_mov_b32 s%d, 0" % sSPIN, "L_spin%d:" % n]
    if CFG["sleep"]: X.append("    s_sleep %d" % CFG["sleep"])
    X += ["    " + sload(SWS if base is None else base, soff, off, sdst), "    s_add_u32 s%d, s%d, 1" % (sSPIN, sSPIN),
          "    s_waitcnt lgkmcnt(0)", "    s_cmp_eq_u32 s%d, %d" % (sdst, want), "    s_cbranch_scc1 L_ok%d" % n,
          "    s_cmp_lt_u32 s%d, 0x80000" % sSPIN, "    s_cbranch_scc1 L_spin%d" % n, "L_ok%d:" % n]
    for t in X: P.append(L(t))

def gate(P, vaddr, srdb, off, tag, vdst, want, slow=None):
    n = newlbl()
    P.append(W(lg=[tag]) if tag == "init" else W(vm=[tag]))
    P.append(I("v_cmp_eq_u32 vcc, %d, v%d" % (want, vdst)))
    P.append(I("s_cbranch_vccnz L_ok%d" % n))
    if slow: raw(P, slow)
    X = ["    s_mov_b32 s%d, 0" % sSPIN, "L_spin%d:" % n]
    if CFG["sleep"]: X.append("    s_sleep %d" % CFG["sleep"])
    X += ["    buffer_load_dword v%d, v%d, %s, 0 offen offset:%d sc1" % (vdst, vaddr, srd(srdb), off), "    s_add_u32 s%d, s%d, 1" % (sSPIN, sSPIN),
          "    s_waitcnt vmcnt(0)", "    v_cmp_eq_u32 vcc, %d, v%d" % (want, vdst), "    s_cbranch_vccnz L_ok%d" % n,
          "    s_cmp_lt_u32 s%d, 0x80000" % sSPIN, "    s_cbranch_scc1 L_spin%d" % n, "L_ok%d:" % n]
    for t in X: P.append(L(t))

C_XA, N_ONES, N_SQ = ACC + 16, ACC + 20, ACC + 24
N_T, N_CM, N_ID, N_R, N_DL, N_TK = ACC + 32, ACC + 48, ACC + 56, ACC + 58, ACC + 62, ACC + 63
C_A2, C_B2, C_OUT, C_RO = 25, 28, 31, 0
C_FV, C_HC, C_FL, C_ONE, C_DV, C_CM = 16, 20, 21, 22, 23, 24
MM = "v_mfma_f32_16x16x32_bf16"
def compute_setup(ty):
    P = []; a = lambda t, tag=None: P.append(I(t, tag))
    t = list(range(32, 48))
    tk, G, r, c, g0, g1 = t[0:6]
    a("v_and_b32 v%d, 15, v1" % tk); a("v_lshrrev_b32 v%d, 4, v1" % G); a("v_and_b32 v%d, 1, v%d" % (g0, G)); a("v_lshrrev_b32 v%d, 5, v1" % g1)
    a("s_lshl_b32 s%d, s%d, 12" % (sT1, sW)); a("s_add_u32 s%d, s%d, %d" % (sT1, sT1, STG))
    a("v_lshlrev_b32 v%d, 7, v%d" % (t[6], tk)); a("v_add_u32 v%d, s%d, v%d" % (t[7], sT1, t[6]))
    a("v_lshrrev_b32 v%d, 1, v%d" % (t[8], tk)); a("v_xor_b32 v%d, v%d, v%d" % (t[8], t[8], G))
    a("v_lshl_add_u32 v%d, v%d, 4, v%d" % (C_XA, t[8], t[7])); a("v_xor_b32 v%d, 64, v%d" % (C_XA + 1, C_XA))
    for k in range(2): a("v_add_u32 v%d, 0x10000, v%d" % (C_XA + 2 + k, C_XA + k)); a("v_mov_b32 v%d, 0x3f803f80" % (N_ONES + k))
    ident(a, N_ID, t[13])
    for j in range(3): a("v_cmp_eq_u32 %s, %d, v%d" % (s(sMK + 2 * j, 2), j + 1, t[13]))
    a("v_mov_b32 v%d, %d" % (C_FL, FL)); a("v_mov_b32 v%d, 1" % C_ONE); a("s_lshl_b32 s%d, s%d, 1" % (sT4, sI)); a("s_lshr_b32 s%d, s%d, 1" % (sT3, sW)); a("s_add_u32 s%d, s%d, s%d" % (sT4, sT4, sT3))
    a("s_lshl_b32 s%d, s%d, 9" % (sT4, sT4)); a("v_mov_b32 v%d, s%d" % (C_CM, sT4))
    a("v_and_b32 v18, 1, v1"); a("v_lshlrev_b32 v18, 8, v18"); a("v_add_u32 v18, %d, v18" % (FL + F_LAND))
    a("s_lshl_b32 s%d, s%d, 8" % (sT4, sW)); a("s_add_u32 m0, s%d, %d" % (sT4, FL + F_DONE))
    a("s_lshl_b32 s%d, s%d, 5" % (sT4, sW)); a("v_and_b32 v%d, 31, v1" % N_TK); a("v_add_u32 v%d, s%d, v%d" % (N_TK, sT4, N_TK))
    a("v_bfe_u32 v%d, v1, 2, 2" % r); a("v_and_b32 v%d, 3, v1" % c); a("v_lshlrev_b32 v%d, 3, v%d" % (c, c))
    a("v_lshl_add_u32 v%d, v%d, 11, v%d" % (t[8], G, c)); a("v_lshl_add_u32 v%d, v%d, 7, v%d" % (t[8], r, t[8]))
    a("v_and_b32 v%d, 2, v%d" % (t[9], r)); a("v_xor_b32 v%d, v%d, v%d" % (t[9], t[9], g0))
    a("v_lshl_add_u32 v2, v%d, 5, v%d" % (t[9], t[8]))
    for k in range(1, 4): a("v_xor_b32 v%d, %d, v2" % (2 + k, 32 * k))
    for k in range(4): a("v_add_u32 v%d, 0x10000, v%d" % (6 + k, 2 + k))
    a("v_lshl_add_u32 v%d, v%d, 11, v%d" % (t[8], g1, c)); a("v_lshl_add_u32 v%d, v%d, 6, v%d" % (t[8], r, t[8]))
    a("v_mul_u32_u24 v%d, 544, v%d" % (t[9], g0)); a("v_add_u32 v10, v%d, v%d" % (t[8], t[9])); a("v_xor_b32 v11, 32, v10")
    for k in range(2): a("v_add_u32 v%d, 0x10000, v%d" % (12 + k, 10 + k))
    a("s_lshl_b32 s%d, s%d, 13" % (sT0, sW)); a("s_add_u32 s%d, s%d, %d" % (sT0, sT0, EX))
    a("v_lshlrev_b32 v15, 9, v%d" % g0); a("v_lshl_add_u32 v15, v%d, 4, v15" % tk); a("v_lshl_add_u32 v15, v%d, 3, v15" % g1); a("v_add_u32 v15, s%d, v15" % sT0)
    a("v_lshlrev_b32 v%d, 4, v1" % t[11])
    a("s_lshl_b32 s%d, s%d, 2" % (sT0, sI)); a("s_add_u32 s%d, s%d, s%d" % (sT0, sT0, sW)); a("s_mul_i32 s%d, s%d, %d" % (sT0, sT0, 147456))
    a("s_add_u32 s%d, s%d, %d" % (sT0, sT0, WS_HO)); a("v_add_u32 v14, s%d, v%d" % (sT0, t[11]))
    fcols(a, ty)
    a("s_lshl_b32 s%d, s%d, 6" % (sKS, sKS)); a("s_lshl_b32 s%d, s%d, 6" % (sKS + 1, sKS + 1))
    a("s_lshr_b32 s%d, s%d, 1" % (sT0, sW))
    a("s_lshl_b32 s%d, s%d, 13" % (sT2, sT0)); a("s_add_u32 s%d, s%d, 2048" % (sT2, sT2))
    a("v_add_u32 v%d, s%d, v%d" % (C_A2, sT2, t[11])); a("v_add_u32 v%d, 0x10000, v%d" % (C_A2 + 1, C_A2)); a("v_add_u32 v%d, 0x20000, v%d" % (C_A2 + 2, C_A2))
    u = t[12]
    a("v_bfe_u32 v%d, v1, 3, 2" % u); a("s_lshl_b32 s%d, s%d, 1" % (sT4, sW1)); a("v_xor_b32 v%d, s%d, v%d" % (u, sT4, u)); a("v_lshl_add_u32 v%d, v%d, 5, v%d" % (C_B2, u, c))
    a("v_lshrrev_b32 v%d, 2, v1" % u); a("v_lshl_add_u32 v%d, v%d, 7, v%d" % (C_B2, u, C_B2))
    a("v_add_u32 v%d, 0x10000, v%d" % (C_B2 + 1, C_B2)); a("v_add_u32 v%d, 0x20000, v%d" % (C_B2 + 2, C_B2))
    a("s_lshl_b32 s%d, s%d, 5" % (sT3, sT0)); a("v_add_u32 v%d, s%d, v%d" % (u, sT3, tk)); a("v_lshlrev_b32 v%d, 2, v%d" % (C_RO, u))
    a("s_lshl_b32 s%d, s%d, 6" % (sT4, sW1))
    a("v_lshlrev_b32 v17, 7, v%d" % u); a("v_lshl_add_u32 v17, v%d, 3, v17" % G); a("v_add_u32 v17, s%d, v17" % sT4)
    a("s_lshl_b32 s%d, s%d, 16" % (sT2, sTT)); a("s_lshl_b32 s%d, s%d, 7" % (sT3, sCT)); a("s_add_u32 s%d, s%d, s%d" % (sT3, sT3, sT4)); a("s_add_u32 s%d, s%d, s%d" % (sT3, sT3, sT2))
    a("v_lshlrev_b32 v%d, 10, v%d" % (u, u)); a("v_lshl_add_u32 v%d, v%d, 5, v%d" % (u, g0, u)); a("v_lshl_add_u32 v%d, v%d, 4, v%d" % (u, g1, u)); a("v_add_u32 v%d, s%d, v%d" % (C_OUT, sT3, u))
    return P

def centre(a, k0, k1):
    def cen(k, h): a("v_mfma_f32_4x4x4_16b_bf16 %s, %s, %s, %s" % (v(N_T + 8 * (k & 1) + 4 * h, 4), v(N_ID, 2), v(XR + 4 * k + 2 * h, 2), v(N_CM + 4 * (k & 1), 4)))
    cen(k0, 0); cen(k0, 1); cen(k0 + 1, 0)
    for k in range(k0, k1):
        for h in range(2):
            kn, hn = k + (h + 3) // 2, (h + 3) & 1
            if kn < k1: cen(kn, hn)
            for j in (2 * h, 2 * h + 1): a("v_cvt_pk_bf16_f32 v%d, v%d, v%d" % (XR + 4 * k + j, N_T + 8 * (k & 1) + 2 * j, N_T + 8 * (k & 1) + 2 * j + 1))
def centre_sub():
    P = []; centre(lambda t: P.append(I(t)), 0, 24); P.append(I("s_setpc_b64 %s" % s(sRET, 2)))
    return ["L_centre:"] + finalize(P)[0]
def fold4(x, p, q):
    x("v_permlane16_swap_b32 v%d, v%d" % (p, q)); x("v_add_f32 v%d, v%d, v%d" % (p, p, q))
    x("v_mov_b32 v%d, v%d" % (q, p)); x("v_permlane32_swap_b32 v%d, v%d" % (p, q)); x("v_add_f32 v%d, v%d, v%d" % (p, p, q))

def compute(ty):
    P = compute_setup(ty); a = lambda t, tag=None: P.append(I(t, tag))
    CH = checks(ty)
    ops = []; queue = []
    sl = slabs_of(ty); gu_seen = 0; ex_seen = 0
    firstuse = {}; epi = []; late_w = []
    def pair(acc, fa, fb2, zero):
        return ["%s %s, %s, %s, %s" % (MM, v(acc + 4 * h, 4), v(fa, 4), v(fb2 + 4 * h, 4), "0" if zero else v(acc + 4 * h, 4)) for h in range(2)]
    for n, (pi, kind, sg) in enumerate(sl):
        e, tiles = PH[ty][pi][1:]
        order = tiles if sg == 0 else sorted(tiles)
        nk = 2 if kind == "P4" else 4
        last = sg == (7 if kind == "P4" else 3)
        jn = CFG["join"] if kind == "P4" else 1
        if sg > 7 - jn and not last: continue
        for t in order:
            if sg == 0: firstuse[(pi, t)] = len(ops)
            for back in (range(jn - 1, -1, -1) if last else (0,)):
                slot = slot_of(n - back); win = slot >> 2; base = (slot & 3) * SLOT
                for u in range(nk):
                    for mat in range(2):
                        m = len(ops); fb = WF + 4 * (m & 7)
                        if kind == "P4": ar, off, dq = 2 + 4 * win + t, base + u * 8192 + mat * 1024, 512
                        else: ar, off, dq = 10 + 2 * win + (t & 1), base + u * 4096 + mat * 1024, 256
                        ops.append(dict(slab=n - back, reads=[("ds_read_b64_tr_b16 %s, v%d offset:%d" % (v(fb, 2), ar, off), ("f", m)),
                                                              ("ds_read_b64_tr_b16 %s, v%d offset:%d" % (v(fb + 2, 2), ar, off + dq), ("f", m))],
                                        la=CFG["LA"], mfma=pair(ACC + 16 * t + 8 * mat, fb, XR + 8 * ((sg - back) * nk + u), sg == 0 and u == 0)))
            if last:
                A = ACC + 16 * t; E = []; hold = [t]
                if e == "gu":
                    D = ACC + 16 * (t & ~1) + 8; hold = [t, t & ~1]
                    for j in range(8): E.append(I("v_mul_f32 v%d, v%d, v%d" % (A + j, A + j, A + j + 8)))
                    for j in range(4):
                        E.append(I("v_cvt_pk_bf16_f32 v%d, v%d, v%d" % (D + 4 * (j >> 1) + 2 * (t & 1) + (j & 1), A + 2 * j, A + 2 * j + 1)))
                        if t & 1 and j & 1:
                            E.append(I("buffer_store_dwordx4 %s, v14, %s, s%d offen offset:%d %s" % (v(D + 4 * (j >> 1), 4), srd(SWS), sKS + gu_seen, ((t - 1 if kind == "P4" else 0) + (j >> 1)) * 1024, CFG["hfl"]), ("h", gu_seen)))
                else:
                    for j in range(4):
                        for k in range(2): E.append(I("v_cvt_pk_bf16_f32 v%d, v%d, v%d" % (A + 4 * j + k, A + 4 * j + 2 * k, A + 4 * j + 2 * k + 1)))
                        E.append(I("ds_write_b64 v15, %s offset:%d" % (v(A + 4 * j, 2), ((t & 1) + 2 * (e == "q")) * 2048 + (j >> 1) * 1024 + (j & 1) * 256)))
                    if t == order[-1]:
                        g = []; one_lane(g, "ds_add_u32 v%d, v%d offset:%d" % (C_FL, C_ONE, F_EX + 4 * ex_seen)); E.append(g); ex_seen += 1
                if CFG["nods"]: E = [x_ for x_ in E if not (isinstance(x_, I) and x_.t.startswith("ds_write"))]
                if CFG["nost"]: E = [(M(x_.tag) if isinstance(x_, I) and x_.t.startswith("buffer_store") else x_) for x_ in E]
                if CFG["stspread"] and e == "gu" and t & 1:
                    st_ = [x_ for x_ in E if isinstance(x_, I) and x_.t.startswith("buffer_store")]
                    nst = 4 if kind == "P4" else 2; endp = (len(ops) + 15) // 16 * 16
                    for q_, x_ in enumerate(st_):
                        idx = (t - 1 if kind == "P4" else 0) + q_
                        if idx < nst - 1: E.remove(x_); epi.append((endp + 4 - (nst - 1 - idx) * CFG["stspread"], 99, [], [x_]))
                if CFG["wrat"] >= 0 and e != "gu":
                    wr = [x_ for x_ in E if not (isinstance(x_, I) and x_.t.startswith("v_"))]
                    E = [x_ for x_ in E if x_ not in wr]
                    late_w.append(((len(ops) + 15) // 16 * 16 + CFG["wrat"], pi, hold, [sum([x_ if isinstance(x_, list) else [x_] for x_ in wr], [])]))
                if e == "gu" and t == 1 and jn > 1: late_w.append((len(ops) + CFG["st2"], pi, hold, [E.pop()]))
                epi.append((len(ops), pi, hold, E))
        if last and e == "gu":
            kind_ = (C_H1B if ty else C_H1A) if gu_seen == 0 else C_H2
            g1 = [W(vm=[("h", gu_seen)])]; one_lane(g1, "buffer_atomic_add v%d, v%d, %s, 0 offen offset:%d sc1" % (C_ONE, C_CM, srd(SWS), kind_ * 128))
            epi.append((len(ops) + 6 + CFG["hwait1" if gu_seen == 0 else "hwait2"], 99, [], [g1]))
            gu_seen += 1
    n1 = len(ops)
    HB = XR; RES = XR + 32; R2 = XR + 40
    Y, S_ = XR + 48, XR + 64
    for n in range(20, 56):
        slot = slot_of(n); win = slot >> 2; base = (slot & 3) * SLOT
        for kk in range(4):
            u, nb = kk >> 1, kk & 1
            m = len(ops); fb = WF + 4 * (m & 7); hb = HB + 8 * ((m >> 1) & 3); br = (2 if nb else C_B2) + win
            blk = (lambda q: 2 * u + q) if n < 48 else (lambda q: u + 2 * q)
            rd = [("ds_read_b64_tr_b16 %s, v%d offset:%d" % (v(fb + 2 * q, 2), br, base + blk(q) * 4096), ("f", m)) for q in range(2)]
            if not nb: rd += [("ds_read_b128 %s, v%d offset:%d" % (v(hb + 4 * h, 4), C_A2 + win, base + u * 4096 + h * 1024), ("f", m)) for h in range(2)]
            ops.append(dict(slab=n, reads=rd, la=4 if n > 20 else kk + 1, mfma=pair((Y if n < 48 else S_) + 8 * nb, fb, hb, n in (20, 48) and u == 0)))
    for k in range(3): queue.append((n1 - 3, n1 - 1, I("v_xor_b32 v%d, 32, v%d" % (2 + k, C_B2 + k))))
    X = []; x = lambda t: X.append(I(t)); r = N_R
    fold4(x, r, r + 1)
    x("v_mul_f32 v%d, 0x3b000000, v%d" % (r, r)); x("v_fma_f32 v%d, -v%d, v%d, v%d" % (r, N_DL, N_DL, r)); x("v_max_f32 v%d, 0, v%d" % (r, r))
    def rnd(): x("v_cvt_pk_bf16_f32 v%d, v%d, v%d" % (r + 1, r, r)); x("v_and_b32 v%d, 0xffff0000, v%d" % (r, r + 1))
    rnd(); x("v_add_f32 v%d, 0x3727c5ac, v%d" % (r, r)); rnd(); x("v_sqrt_f32 v%d, v%d" % (r, r)); rnd()
    x("v_rcp_f32 v%d, v%d" % (r, r))
    x("v_lshl_add_u32 v%d, v%d, 1, v%d" % (r + 2, N_TK, C_FL)); x("v_lshl_add_u32 v%d, v%d, 2, v%d" % (r + 3, N_TK, C_FL))
    x("ds_write_b16 v%d, v%d offset:%d" % (r + 2, r + 1, LSD - FL)); x("ds_write_b32 v%d, v%d offset:%d" % (r + 3, r, LRS - FL))
    for j, it in enumerate(X[:-2]): queue.append((12 + j, 50, it))
    for it in X[-2:]:
        if not CFG["nods"]: queue.append((CFG["rsat"], 67, it))
    if ty == 0:
        g = []
        only(g, ["s_cmp_lg_u32 s%d, 0" % sGR], [I("s_lshl_b32 s%d, s%d, 9" % (sT4, sI)), I("s_add_u32 s%d, s%d, %d" % (sT4, sT4, WS_RS - FL)), I("s_mov_b32 exec_hi, 0"),
                                               I("buffer_store_dword v%d, v%d, %s, s%d offen sc1" % (r, r + 3, srd(SWS), sT4)), I("s_mov_b64 exec, -1")])
        queue.append((46, 60, g))
    queue.append((94, 96, I("ds_read_b32 v%d, v%d offset:%d" % (C_HC, C_FL, F_INIT), "init")))
    g = []; gate(g, C_DV, SDBG, 0, "init", C_HC, 1, slow=[I("v_mov_b32 v%d, 0" % C_DV)]); queue.append((100, 102, g))
    for e0, pi, hold, E in epi + late_w:
        dl = min([x_ for (p2, t2), x_ in firstuse.items() if p2 > pi and t2 in hold] + [10 ** 9]) - 1
        for it in E: queue.append((e0, dl, it))
    G = XR + 80; XF = XR + 96; E = []
    for j in range(4): E.append(I("ds_read_b64 %s, v17 offset:%d" % (v(RES + 2 * j, 2), LX + (j >> 1) * 32 + (j & 1) * 2048), "res"))
    for h in range(2): E.append(I("ds_read_b32 v%d, v%d offset:%d" % (R2 + h, C_RO, LR2 + 64 * h), "res"))
    for j, it in enumerate(E): queue.append((n1 + 21 * 4 + j, 10 ** 9, it))
    E = [W(lg=["res"])]
    for h in range(2): E.append(I("v_mul_f32 v%d, v%d, v%d" % (R2 + h, R2 + h, R2 + h)))
    for h in range(2): E.append(I("v_mul_f32 v%d, s%d, v%d" % (R2 + 2 + h, sL2E, R2 + h)))
    for j in range(8):
        E.append(I("v_lshlrev_b32 v%d, 16, v%d" % (XF + 2 * j, RES + j))); E.append(I("v_and_b32 v%d, 0xffff0000, v%d" % (XF + 2 * j + 1, RES + j)))
    for it in E: queue.append((n1 + 24 * 4, 10 ** 9, it))
    E = []
    for j in range(16): E.append(I("v_mul_f32 v%d, v%d, v%d" % (G + j, R2 + 2 + ((j >> 2) & 1), Y + j)))
    for j in range(16): E.append(I("v_exp_f32 v%d, -v%d" % (G + j, G + j)))
    for j in range(16): E.append(I("v_mul_f32 v%d, v%d, v%d" % (Y + j, R2 + ((j >> 2) & 1), Y + j)))
    for j in range(16): E.append(I("v_add_f32 v%d, 1.0, v%d" % (G + j, G + j)))
    for j in range(16): E.append(I("v_rcp_f32 v%d, v%d" % (G + j, G + j)))
    for j in range(16): E.append(I("v_mul_f32 v%d, v%d, v%d" % (G + j, G + j, Y + j)))
    for it in E: queue.append((n1 + 28 * 4 + 1, 10 ** 9, it))
    queue.sort(key=lambda x_: x_[0])
    first = {}
    lastop = {}
    for m, o in enumerate(ops): first.setdefault(o["slab"], m); lastop[o["slab"]] = m
    fread = {first[n] - ops[first[n]]["la"] - (CFG["LAF"] if n <= 20 else 3): n for n in CH if n}
    lastdone = prev_user(55)
    def done(n):
        a("v_mov_b32 v%d, %d" % (C_DV, 4 * (n + 1))); a("global_load_lds_dword v%d, %s" % (C_DV, s(sTB, 2)))
    issued = 0; cur = -1
    def issue_reads(upto_fn):
        nonlocal issued, cur
        while issued < len(ops) and upto_fn(issued):
            o = ops[issued]
            if o["slab"] > cur:
                cur = o["slab"]
                if cur in CH:
                    lb = newlbl()
                    if cur >= CFG["inl"] or cur < 2:
                        a("s_cbranch_vccz L_cb%d" % lb)
                        raw(P, [I("s_movk_i32 s%d, %d" % (sSPIN + 1, CH[cur] + 1)), I("s_call_b64 %s, L_spin_c" % s(sRET, 2))]); P.append(L("L_cb%d:" % lb))
                    else:
                        a("s_cbranch_vccnz L_cs%d" % lb); P.append(L("L_cb%d:" % lb))
                        STUBS.extend(["L_cs%d:" % lb, "    s_movk_i32 s%d, %d" % (sSPIN + 1, CH[cur] + 1),
                                  "    s_call_b64 %s, L_spin_c" % s(sRET, 2), "    s_branch L_cb%d" % lb])
            for t, tag in o["reads"]: a(t, tag)
            issued += 1
    def cstamp(k):
        r = sPH + 2 * (k & 1)
        if k > 2:
            a("s_sub_u32 s%d, s%d, s%d" % (r, r, sTM)); a("v_writelane_b32 v19, s%d, %d" % (r, k - 2))
        P.append(L("    s_memtime %s" % s(r, 2)))
    SM = ACC
    a("s_mov_b32 s%d, 0" % (sSPIN + 1)); a("s_call_b64 %s, L_spin_c" % s(sRET, 2))
    for j in range(4):
        a("s_barrier")
        for k in range(8 * j, 8 * j + 8):
            a("ds_read_b128 %s, v%d offset:%d" % (v(XR + 4 * k, 4), C_XA + ((k >> 1) & 1) + 2 * (k >> 4), ((k >> 2) & 3) * 16384 + (k & 1) * 2048), ("xn", k))
        for k in range(8 * j, 8 * j + 8, 2):
            P.append(W(lg=[("xn", k + 1)]))
            if k == 30: a("s_barrier")
            for h in range(2):
                for sq in range(2):
                    for t in range(2):
                        xx = v(XR + 4 * (k + t) + 2 * h, 2); c = v((N_SQ if sq else SM) + 4 * t, 4)
                        a("v_mfma_f32_4x4x4_16b_bf16 %s, %s, %s, %s" % (c, xx if sq else v(N_ONES, 2), xx, "0" if (k, h) == (0, 0) else c))
    a("s_waitcnt vmcnt(0)")
    fold4(a, SM, SM + 4)
    a("v_mul_f32 v%d, 0xbb000000, v%d" % (N_DL, SM))
    a("v_cvt_pk_bf16_f32 v%d, v%d, v%d" % (SM, N_DL, N_DL)); a("v_mov_b32 v%d, v%d" % (SM + 1, SM)); a("v_permlane16_swap_b32 v%d, v%d" % (SM, SM + 1))
    for j in range(8): a("v_and_b32 v%d, 0xffff0000, v%d" % (N_CM + j, SM + (j >> 2)))
    if CFG["stamps"]: a("v_mov_b32 v19, 0"); stamp_to(P, 59, 19)
    c0 = CFG["cen0"]
    if c0 == 32: a("s_nop 1"); a("s_call_b64 %s, L_centre" % s(sRET, 2))
    elif c0 > 8: centre(a, 0, c0 - 8)
    stamp_to(P, 60, 19)
    a("ds_read_b32 v%d, v18" % C_FV, ("fl", 0))
    for j in range(3):
        for h in range(2): a("v_cndmask_b32 v%d, v%d, v%d, %s" % (N_R + h, N_R + h if j else N_SQ + 4 * h, N_SQ + 4 * h + j + 1, s(sMK + 2 * j, 2)))
    centre(a, c0 - 8, c0 - 4)
    P.append(W(lg=[("fl", 0)])); a("v_cmp_ge_u32 vcc, 0, v%d" % C_FV)
    issue_reads(lambda m: m < CFG["LA"])
    centre(a, c0 - 4, c0)
    stamp_to(P, 61, 19)
    qi = 0
    for m, o in enumerate(ops):
        w2 = CFG["wait2"] and m < n1
        if not w2: P.append(W(lg=[("f", m)]))
        elif m % 2 == 0: P.append(W(lg=[("f", m + 1)]))
        a(o["mfma"][0]); at = len(P)
        if m == n1 - 1: a(o["mfma"][1])
        if m == lastop[o["slab"]] and o["slab"] <= lastdone + 1 and marked(o["slab"]): done(o["slab"])
        LP = [0, 64, 192, n1 - 1, n1 + 32, n1 + 112]
        if CFG["light"] and m in LP:
            P.append(L("    s_memtime %s" % s(12 + 4 * LP.index(m), 2))); P.append(L("    s_memrealtime %s" % s(14 + 4 * LP.index(m), 2)))
        if CFG["probe"] and m == CFG["probeat"]: P.append(L("    s_memrealtime s[6:7]"))
        if m == n1 - 1:
            while queue[qi][0] <= n1 + 1:
                it = queue[qi][2]; P += it if isinstance(it, list) else [it]; qi += 1
        issue_reads(lambda k: k - ops[k]["la"] <= m)
        for n in range(1, 56):
            d = m - (first[n] - ops[first[n]]["la"])
            if d == -1 and n in CH:
                P.append(W(lg=[("fl", n)])); a("v_cmp_ge_u32 vcc, %d, v%d" % (CH[n], C_FV))
            if d == (2 if n <= 20 else 0) and CFG["stamps"] and not CFG["zoom"]: cstamp(n)
            if CFG["zoom"] and m == CFG["zoom"] + n * CFG["zstep"]: cstamp(n)
        if m in fread: a("ds_read_b32 v%d, v18" % C_FV, ("fl", fread[m]))
        rate = CFG["erate"] if m < n1 else 5
        cnt = 0
        while qi < len(queue) and queue[qi][0] <= m and cnt < rate:
            assert m <= queue[qi][1], ("filler past its deadline", ty, m, queue[qi][1])
            it = queue[qi][2]
            if isinstance(it, list): P += it; cnt += 2
            else: P.append(it)
            qi += 1; cnt += 1
        if m != n1 - 1:
            mid = P[at:]; k = 0
            while k < (len(mid) + 1) // 2 and isinstance(mid[k], I) and not mid[k].t.startswith("s_"): k += 1
            P.insert(at + k, I(o["mfma"][1]))
        if m % 16 == CFG["cenat"] and c0 + m // 16 * 8 < 32: centre(a, c0 + m // 16 * 8, c0 + m // 16 * 8 + 8)
    assert qi == len(queue)
    for j in range(16): a("v_fma_f32 v%d, v%d, v%d, v%d" % (G + j, S_ + j, G + j, XF + j))
    for j in range(8): a("v_cvt_pk_bf16_f32 v%d, v%d, v%d" % (XF + 4 * ((j >> 1) & 1) + 2 * (j >> 2) + (j & 1), G + 2 * j, G + 2 * j + 1))
    for h in range(2):
        for i in range(2): a("v_permlane16_swap_b32 v%d, v%d" % (XF + 4 * h + i, XF + 4 * h + 2 + i))
    if CFG["probe"]:
        lb = newlbl()
        if CFG["probeat"] < 0: a("s_memrealtime s[6:7]")
        P.append(W(lg="all")); a("s_sub_u32 s6, s6, s4")
        a("s_cmp_le_u32 s6, %d" % CFG["probe"]); a("s_cbranch_scc1 L_xp%d" % lb)
        for _ in range(6): a("s_sleep 127")
        P.append(L("L_xp%d:" % lb))
    a("s_movk_i32 s%d, 16384" % sT0)
    a("buffer_store_dwordx4 %s, v%d, %s, 0 offen%s" % (v(XF, 4), C_OUT, srd(SOUT), CFG["outfl"]))
    a("buffer_store_dwordx4 %s, v%d, %s, s%d offen%s" % (v(XF + 4, 4), C_OUT, srd(SOUT), sT0, CFG["outfl"]))
    if CFG["light"]:
        a("s_waitcnt vmcnt(0)"); a("s_memtime s[84:85]"); a("s_memrealtime s[86:87]"); P.append(W(lg="all")); a("v_mov_b32 v19, 0")
        for j, r_ in enumerate([sTM, 4] + list(range(12, 36, 2)) + [84, 86]): a("v_writelane_b32 v19, s%d, %d" % (r_, j))
        a("s_lshl_b32 s%d, s2, 10" % sT0); a("s_lshl_b32 s%d, s%d, 8" % (sT1, sW)); a("s_add_u32 s%d, s%d, s%d" % (sT0, sT0, sT1)); a("s_add_u32 s%d, s%d, %d" % (sT0, sT0, WS_ST))
        a("v_lshlrev_b32 v18, 2, v1"); a("buffer_store_dword v19, v18, %s, s%d offen" % (srd(SWS), sT0))
    if CFG["stamps"]:
        one_lane(P, "ds_add_u32 v%d, v%d offset:%d" % (C_FL, C_ONE, F_END))
        cstamp(56); cstamp(57); P.append(W(lg="all")); cstamp(58)
        a("s_lshl_b32 s%d, s2, 8" % sT0); a("s_add_u32 s%d, s%d, %d" % (sT0, sT0, WS_ST + 0x20000))
        a("v_lshlrev_b32 v18, 2, v1")
        a("s_cmp_lg_u32 s%d, %d" % (sW, CFG["stampw"])); a("s_cbranch_scc1 L_exit")
        a("buffer_store_dword v19, v18, %s, s%d offen" % (srd(SWS), sT0))
    a("s_endpgm")
    return P

D_P = 32
D_A, D_B, D_B2, D_TAB, D_FL, D_LA, D_ONE, D_ZERO, D_CC, D_POLL, D_LV = range(2, 13)
D_AT, D_POLL2, D_X, D_R, D_M = 13, 14, 15, 16, 18
D_DV = 28
D_TCH = 20
def phase_info(ty):
    return [(kind, 3584, SG, SU) if e == "gu" else (kind, 3072, SQKV, SQKV) for kind, e, _ in PH[ty]]
def dma_setup(ty):
    P = []; b = lambda t, tag=None: P.append(I(t, tag))
    t0, t1, t2, t3, u0, u1, u2 = range(64, 71)
    b("v_mov_b32 v%d, 0" % D_ZERO); b("v_mov_b32 v%d, 0" % D_TAB)
    b("v_mov_b32 v%d, 1" % D_ONE); b("v_mov_b32 v%d, %d" % (D_FL, FL))
    b("v_and_b32 v%d, 3, v1" % D_LA); b("v_lshlrev_b32 v%d, 8, v%d" % (D_LA, D_LA)); b("v_add_u32 v%d, %d, v%d" % (D_LA, FL + F_DONE, D_LA))
    b("s_lshl_b32 s%d, s%d, 8" % (sLM, sW1)); b("s_add_u32 s%d, s%d, %d" % (sLM, sLM, FL + F_LAND))
    b("s_lshl_b32 s%d, s%d, 9" % (sCC, sTT)); b("v_mov_b32 v%d, s%d" % (D_CC, sCC))
    b("s_lshl_b32 s%d, s%d, 1" % (sT0, sTT)); b("s_add_u32 s%d, s%d, s%d" % (sT0, sT0, sW1))
    b("s_mul_i32 s%d, s%d, 147456" % (sT0, sT0)); b("s_add_u32 s%d, s%d, %d" % (sT0, sT0, WS_HO - 2048))
    if CFG["fakeA"]: b("s_lshr_b32 s%d, s%d, 3" % (sT0, sI)); b("s_lshl_b32 s%d, s%d, 20" % (sT0, sT0)); b("s_lshl_b32 s%d, s%d, 18" % (sT1, sW1)); b("s_add_u32 s%d, s%d, s%d" % (sT0, sT0, sT1))
    b("v_lshlrev_b32 v%d, 4, v1" % u0); b("v_add_u32 v%d, s%d, v%d" % (D_A, sT0, u0))
    b("v_lshlrev_b32 v%d, 7, v1" % u0); b("v_add_u32 v%d, s%d, v%d" % (D_AT, sT0, u0))
    b("v_lshrrev_b32 v%d, 3, v1" % u0); b("v_and_b32 v%d, 6, v%d" % (u1, u0))
    b("v_and_b32 v%d, 7, v1" % u2); b("v_xor_b32 v%d, v%d, v%d" % (u2, u2, u1))
    b("v_lshlrev_b32 v%d, 10, v%d" % (u0, u0)); b("v_lshl_add_u32 v%d, v%d, 4, v%d" % (D_B, u2, u0))
    b("s_lshl_b32 s%d, s%d, 15" % (sT0, sW1)); b("s_lshl_b32 s%d, s%d, 7" % (sT1, sCT)); b("s_add_u32 s%d, s%d, s%d" % (sT0, sT0, sT1))
    b("v_add_u32 v%d, s%d, v%d" % (D_B, sT0, D_B)); b("v_add_u32 v%d, %d, v%d" % (D_B2, 8192 - 1024, D_B))
    b("v_lshrrev_b32 v%d, 3, v1" % u0); b("v_lshlrev_b32 v%d, 10, v%d" % (u0, u0)); b("v_and_b32 v%d, 7, v1" % u2); b("v_lshl_add_u32 v%d, v%d, 4, v%d" % (D_X, u2, u0))
    b("s_lshl_b32 s%d, s%d, 16" % (sT1, sTT)); b("s_add_u32 s%d, s%d, s%d" % (sT0, sT0, sT1)); b("v_add_u32 v%d, s%d, v%d" % (D_X, sT0, D_X))
    b("s_lshl_b32 s%d, s%d, 8" % (sT1, sTT)); b("s_add_u32 s%d, s%d, %d" % (sT1, sT1, WS_RS)); b("v_lshlrev_b32 v%d, 2, v1" % D_R); b("v_add_u32 v%d, s%d, v%d" % (D_R, sT1, D_R))
    fcols(b, ty)
    gu = 0
    for pi, (kind, e, _) in enumerate(PH[ty]):
        stride = 3584 if e == "gu" else 3072
        (p4_voffs if kind == "P4" else p2_voffs)(b, u0, u1, stride, t0)
        if e == "gu": b("s_lshl_b32 s%d, s%d, 1" % (sT1, sKS + gu)); db = 0; gu += 1
        elif e == "kv": b("s_mov_b32 s%d, s%d" % (sT1, sKC)); db = 1024
        else: b("s_lshl_b32 s%d, s%d, 7" % (sT1, sGR)); db = 64
        step = (8 if kind == "P4" else 16) * stride
        b("v_add_u32 v%d, s%d, v%d" % (u0, sT1, u0)); b("v_add_u32 v%d, s%d, v%d" % (u1, sT1, u1))
        for p in range(4):
            b("v_add_u32 v%d, %d, v%d" % (D_P + 4 * pi + p, 4096 + (p >> 1) * step - p * 1024 + (db if p & 1 else 0), u1 if p & 2 else u0))
    b("s_lshl_b32 s%d, s%d, 13" % (sLA, sW1))
    nr = 32 if CFG["map"] == 84 else 64
    b("s_lshl_b32 s%d, s%d, 6" % (sT0, sXR)); b("s_mul_i32 s%d, s%d, %d" % (sT1, sW1, nr)); b("s_add_u32 s%d, s%d, s%d" % (sT0, sT0, sT1))
    b("v_add_u32 v%d, s%d, v1" % (t2, sT0)); b("v_mul_u32_u24 v%d, 3072, v%d" % (D_TCH + 3, t2)); b("v_mul_u32_u24 v%d, 3584, v%d" % (D_TCH + 2, t2))
    b("s_lshl_b32 s%d, s%d, 7" % (sT0, sGR)); b("s_add_u32 s%d, s%d, 4096" % (sT0, sT0)); b("v_add_u32 v%d, s%d, v%d" % (D_TCH + 3, sT0, D_TCH + 3))
    b("v_add_u32 v%d, 4096, v%d" % (D_TCH + 2, D_TCH + 2))
    b("s_lshl_b32 s%d, s%d, 1" % (sKS, sKS)); b("s_lshl_b32 s%d, s%d, 1" % (sKS + 1, sKS + 1))
    b("s_lshl_b32 s%d, s%d, 1" % (sT0, sSH)); b("s_add_u32 s%d, s%d, s%d" % (sT0, sT0, sW1))
    if CFG["map2"] == 48: b("v_lshlrev_b32 v%d, 7, v1" % t2)
    else:
        b("v_lshrrev_b32 v%d, 2, v1" % t2); b("v_lshlrev_b32 v%d, 10, v%d" % (t2, t2)); b("v_and_b32 v%d, 3, v1" % t3); b("v_lshl_add_u32 v%d, v%d, 7, v%d" % (t2, t3, t2))
        b("s_and_b32 s%d, s%d, 4" % (sT1, sCT)); b("s_lshl_b32 s%d, s%d, 7" % (sT1, sT1)); b("v_add_u32 v%d, s%d, v%d" % (t2, sT1, t2))
    k2 = 2 if CFG["aonly"] else 1
    b("s_mul_i32 s%d, s%d, %d" % (sT1, sT0, 28 * 1024 * k2)); b("v_add_u32 v%d, s%d, v%d" % (D_TCH, sT1, t2))
    b("s_mul_i32 s%d, s%d, %d" % (sT1, sT0, 8192 * k2)); b("v_add_u32 v%d, s%d, v%d" % (D_TCH + 1, sT1, t2))
    b("s_lshl_b32 s%d, s2, 1" % sT0); b("s_add_u32 s%d, s%d, s%d" % (sT0, sT0, sW1)); b("s_mul_i32 s%d, s%d, %d" % (sT1, sT0, 28 * 128))
    b("v_lshlrev_b32 v%d, 7, v1" % t2); b("v_add_u32 v%d, s%d, v%d" % (D_M, sT1, t2)); b("s_lshl_b32 s%d, s%d, 10" % (sT1, sT0)); b("v_add_u32 v%d, s%d, v%d" % (D_M + 1, sT1, t2))
    def seg(lo, items):
        for t in items: b(t)
        b("v_cmp_le_u32 vcc, %d, v1" % lo); b("v_cndmask_b32 v%d, v%d, v%d, vcc" % (D_TAB, D_TAB, t1))
    b("s_add_u32 s%d, s%d, s%d" % (sT0, sR1, sW1))
    n0 = 0
    for pi, (kind, e, _) in enumerate(PH[ty]):
        stride = 3584 if e == "gu" else 3072
        if kind == "P4":
            seg(n0, ["v_add_u32 v%d, s%d, v1" % (t1, sR1), "v_add_u32 v%d, %d, v%d" % (t1, (-n0) & 7, t1), "v_and_b32 v%d, 7, v%d" % (t1, t1),
                     "v_lshlrev_b32 v%d, 1, v%d" % (t1, t1), "v_add_u32 v%d, s%d, v%d" % (t1, sW1, t1), "v_mul_u32_u24 v%d, %d, v%d" % (t1, 32 * stride, t1)]); n0 += 8
        else:
            seg(n0, ["v_lshlrev_b32 v%d, 1, v1" % t1, "v_add_u32 v%d, s%d, v%d" % (t1, sT0, t1), "v_and_b32 v%d, 7, v%d" % (t1, t1),
                     "v_mul_u32_u24 v%d, %d, v%d" % (t1, 64 * stride, t1)]); n0 += 4
    b("v_add_u32 v%d, s%d, v1" % (t0, sR2)); b("v_and_b32 v%d, 7, v%d" % (t2, t0))
    seg(20, ["v_lshlrev_b32 v%d, 13, v%d" % (t1, t2)])
    seg(28, ["v_lshrrev_b32 v%d, 1, v%d" % (t3, t2), "v_lshlrev_b32 v%d, 1, v%d" % (t1, t2), "v_sub_u32 v%d, v%d, v%d" % (t1, t1, t3),
             "v_add_u32 v%d, 16, v%d" % (t1, t1), "v_lshlrev_b32 v%d, 12, v%d" % (t1, t1)])
    seg(36, ["v_lshlrev_b32 v%d, 13, v%d" % (t1, t2), "v_add_u32 v%d, 4096, v%d" % (t1, t1)])
    seg(44, ["v_and_b32 v%d, 3, v%d" % (t1, t0), "v_mul_u32_u24 v%d, 3, v%d" % (t1, t1), "v_add_u32 v%d, 17, v%d" % (t1, t1), "v_lshlrev_b32 v%d, 12, v%d" % (t1, t1)])
    seg(48, ["v_lshlrev_b32 v%d, 12, v%d" % (t1, t2)])
    return P

def dma_wave(ty):
    P = [M(("x", 1))] + dma_setup(ty); a = lambda t, tag=None: P.append(I(t, tag))
    stamp = lambda k: stamp_to(P, k)
    stamp_to(P, 1, H_STAMP2)
    NB = CFG["nb%d" % ty]; CH = checks(ty)
    sl = slabs_of(ty); info = phase_info(ty)
    def look(n):
        if n < 56: a("v_readlane_b32 s%d, v%d, %d" % (sPH + 2 * (n & 1), D_TAB, n))
    def part(n, which, nxt):
        so = sPH + 2 * (n & 1); cap = CFG["cap2"]; wb = srd(SWD if n < 48 else SWO)
        if which == "B": a("s_lshl_b32 s%d, s%d, 4" % (so, so))
        elif n == 48: a("v_add_u32 v%d, %d, v%d" % (D_A, 28 * 4096, D_A))
        for h in range(2):
            a("s_add_u32 m0, s%d, %d" % (sLA, slot_of(n) * SLOT + h * 4096))
            if h: a("s_add_u32 s%d, s%d, %d" % (so, so, 16384 if which == "B" else 2048))
            elif (nxt ^ n) & 1: look(nxt)
            room(16, cap)
            if which == "B":
                vm("buffer_load_dwordx4 v%d, %s, s%d offen lds" % (D_B, wb, so), 8)
                vm("buffer_load_dwordx4 v%d, %s, s%d offen offset:1024 lds" % (D_B2, wb, so), 8)
            else:
                vm("buffer_load_dwordx4 v%d, %s, s%d offen offset:2048 sc1 lds" % (D_A, srd(SX if CFG["fakeA"] else SWS), so), 8, ("slab", n))
                vm("buffer_load_dwordx4 v%d, %s, s%d offen offset:3072 sc1 lds" % (D_A, srd(SX if CFG["fakeA"] else SWS), so), 8, ("slab", n))
        if not (nxt ^ n) & 1: look(nxt)
    hist = []
    def room(w, cap):
        tot = w; k = 0
        while k < len(hist) and tot + hist[-1 - k] <= cap: tot += hist[-1 - k]; k += 1
        if k < len(hist): a("s_waitcnt vmcnt(%d)" % min(k, 63))
    def vm(t, w, tag=None): a(t, tag); hist.append(w)
    def dma(n):
        so = sPH + 2 * (n & 1); cap = CFG["cap1"] if n < CFG["capsw"] else CFG["cap2"]
        if n in CFG["soft%d" % ty]: cap = CFG["capsoft"]
        for h in range(2):
            a("s_add_u32 m0, s%d, %d" % (sLA, slot_of(n) * SLOT + h * 4096))
            if n < 20:
                pi, kind, sg = sl[n]; _, stride, sa, sb = info[pi]
                w = 16 if (kind == "P2" and PH[ty][pi][1] != "q") else 8
                if h: a("s_add_u32 s%d, s%d, %d" % (so, so, (16 if kind == "P4" else 32) * stride))
                else: look(n + 1)
                for p in range(4):
                    if p % 2 == 0: room(2 * w, cap)
                    vm("buffer_load_dwordx4 v%d, %s, s%d offen offset:%d lds" % (D_P + 4 * pi + p, srd(sb if p & 1 else sa), so, p * 1024), w, ("slab", n))
            else:
                if h: a("s_add_u32 s%d, s%d, 2048" % (so, so)); a("s_add_u32 s%d, s%d, 16384" % (so + 1, so + 1))
                else:
                    a("s_lshl_b32 s%d, s%d, 4" % (so + 1, so)); look(n + 1)
                    if n == 48: a("v_add_u32 v%d, %d, v%d" % (D_A, 28 * 4096, D_A))
                wb = srd(SWD if n < 48 else SWO)
                room(16, cap)
                vm("buffer_load_dwordx4 v%d, %s, s%d offen lds" % (D_B, wb, so + 1), 8, ("slab", n))
                vm("buffer_load_dwordx4 v%d, %s, s%d offen offset:1024 lds" % (D_B2, wb, so + 1), 8, ("slab", n))
                room(16, cap)
                vm("buffer_load_dwordx4 v%d, %s, s%d offen offset:2048 sc1 lds" % (D_A, srd(SX if CFG["fakeA"] else SWS), so), 8, ("slab", n))
                vm("buffer_load_dwordx4 v%d, %s, s%d offen offset:3072 sc1 lds" % (D_A, srd(SX if CFG["fakeA"] else SWS), so), 8, ("slab", n))
    def touch(which):
        nr = 32 if CFG["map"] == 84 else 64; dst = D_TCH + 4; cap = CFG["capt"]
        for w in which:
            if w == "x":
                a("s_lshr_b32 s%d, s%d, 1" % (sT0, sLA)); a("s_add_u32 m0, s%d, %d" % (sT0, LX))
                room(32, cap)
                for p in range(4):
                    a("s_movk_i32 s%d, %d" % (sT1, 7168 * p))
                    vm("buffer_load_dwordx4 v%d, %s, s%d offen offset:%d lds" % (D_X, srd(SX), sT1, 1024 * p), 8)
            elif w == "m":
                room(36, cap)
                a("s_mov_b64 exec, 0xfffffff"); vm("buffer_load_dword v%d, v%d, %s, 0 offen" % (dst, D_M, srd(SWD)), 28)
                a("s_mov_b64 exec, 0xff"); vm("buffer_load_dword v%d, v%d, %s, 0 offen" % (dst, D_M + 1, srd(SWO)), 8)
            elif w in ("q", "g0", "g1"):
                if nr == 32: a("s_mov_b32 exec_hi, 0")
                if w == "q": room(nr, cap); vm("buffer_load_dword v%d, v%d, %s, 0 offen" % (dst, D_TCH + 3, srd(SQKV)), nr)
                else:
                    for d in (SG, SU): room(nr, cap); vm("buffer_load_dword v%d, v%d, %s, s%d offen" % (dst, D_TCH + 2, srd(d), sKS + int(w[1])), nr)
            elif w == "o":
                k = 64 if (CFG["map2"] == 48 or CFG["aonly"]) else 32
                if k == 32: a("s_mov_b32 exec_hi, 0")
                room(k, cap); vm("buffer_load_dword v%d, v%d, %s, 0 offen" % (dst, D_TCH + 1, srd(SWO)), k)
            else:
                j = int(w[1])
                if j >= (4 if (CFG["map2"] == 48 or CFG["aonly"]) else 2): continue
                a("s_mov_b32 exec_hi, 0xffffff"); a("s_mov_b32 s%d, %d" % (sT0, j * 56 * (128 if CFG["map2"] == 48 else 256)))
                room(56, cap); vm("buffer_load_dword v%d, v%d, %s, s%d offen" % (dst, D_TCH, srd(SWD), sT0), 56)
            a("s_mov_b64 exec, -1")
    def publish(m):
        if m in CH.values():
            a("s_mov_b32 m0, s%d" % sLM); a("v_mov_b32 v%d, %d" % (D_LV, 4 * (m + 1)))
            vm("global_load_lds_dword v%d, %s" % (D_LV, s(sTB, 2)), 1)
        if CFG["stamps"] == 2 or (CFG["stamps"] and m % 4 == 0): stamp(m)
    for d in (SQKV, SG, SU):
        a("s_sub_u32 s%d, s%d, 4096" % (d, d)); a("s_subb_u32 s%d, s%d, 0" % (d + 1, d + 1)); a("s_add_u32 s%d, s%d, 4096" % (d + 2, d + 2))
    gates = {20: (C_H1A, 16), 28: (C_H1B, 16), 36: (C_H2, 32), 48: (C_O, 16)}
    def do_gate(n):
        if CFG["stamps"] == 2: stamp_to(P, 20 + 2 * list(gates).index(n), H_STAMP2)
        if n in CFG["nogate"]: pass
        elif CFG["spoll"]: sgate(P, sCC, gates[n][0] * 128, sPV, gates[n][1])
        else: gate(P, D_CC, SWS, gates[n][0] * 128, ("poll", n), D_POLL, gates[n][1])
        stamp_to(P, 21 + 2 * list(gates).index(n), H_STAMP2)
    def poll(gn):
        if CFG["spoll"]: a("s_load_dword s%d, %s, s%d offset:%d glc" % (sPV, s(SWS, 2), sCC, gates[gn][0] * 128))
        else: vm("buffer_load_dword v%d, v%d, %s, 0 offen offset:%d sc1" % (D_POLL, D_CC, srd(SWS), gates[gn][0] * 128), 1, ("poll", gn))
    nbf = CFG["bfirst"]
    def issue(n):
        if n in gates and not (n == 20 and nbf): do_gate(n)
        if n + CFG["pollat"] in gates and not (n + CFG["pollat"] == 20 and nbf): poll(n + CFG["pollat"])
        dma(n)
    def do_touch(n):
        tp = CFG["tplan%d" % ty].get(str(n))
        if tp:
            touch(tp.split())
    look(0)
    if CFG["dprio"]: a("s_setprio %d" % CFG["dprio"])
    hist += [16] * 8
    xstages(P, {CFG["s0at"]: lambda: (dma(0), publish(0), do_touch(0))})
    stamp(60)
    a("s_barrier")
    stamp(61); rstamp(P, 40)
    assert NB == 56
    seq = [(n, "F") for n in range(1, 20)] + [(n, "B") for n in range(20, 20 + nbf)]
    n = 20
    while n < 56:
        k = CFG["afirst"].get(str(n), 0)
        if n == 20: k = max(k, nbf)
        seq += [(m, "A") for m in range(n, n + k)] + [(m, "B") for m in range(n, n + k) if (m, "B") not in seq]
        if not k: seq.append((n, "F"))
        n += max(k, 1)
    started = set(); parts = {}; checked = -1; gated = set()
    firstA = {g: min(i for i, (m, w) in enumerate(seq) if m >= g and w != "B") for g in gates}
    gstart = {g: min(i for i, (m, w) in enumerate(seq) if m >= 20 + 4 * g and w != "B") for g in range(9)}
    def need_at(i):
        k = 1
        if CFG["spoll"] and any(i + CFG["pollat"] == firstA[g] for g in gates): k = CFG["pollat"]
        pu = max(prev_user(m) if m not in started else -1 for m, w in seq[i:i + k])
        while pu > checked and not marked(pu): pu += 1
        return pu - CFG["bigring"] if seq[i][0] < CFG["bigto"] else pu
    for i, (n, w) in enumerate(seq):
        if (n, w) in ((11, "F"), (15, "F"), (18, "F"), (30, "F"), (42, "F"), (54, "F")): rstamp(P, 42 + 2 * (11, 15, 18, 30, 42, 54).index(n))
        if w == "F" and n in CFG["exw%d" % ty]: count_wait(P, D_FL, D_DV + 1, F_EX + 4 * CFG["exw%d" % ty].index(n), 4)
        pu = need_at(i)
        if pu > checked:
            lb = newlbl()
            P.append(W(lg=[("dn", i)]))
            a("v_cmp_ge_u32 vcc, %d, v%d" % (pu, D_DV)); a("s_cbranch_vccz L_fr%d" % lb)
            raw(P, [I("s_movk_i32 s%d, %d" % (sSPIN + 1, pu + 1)), I("s_call_b64 %s, L_spin_d" % s(sRET, 2))]); P.append(L("L_fr%d:" % lb))
            checked = pu
        if n == 20 + CFG["ring2"].index(8) and n not in started: count_wait(P, D_FL, D_DV + 1, F_EXF, 2)
        if (n, w) == (4, "F"): a("s_movk_i32 m0, %d" % (FL + F_INIT)); vm("buffer_load_dword v%d, %s, 0 offen sc1 lds" % (D_ZERO, srd(SDBG)), 1)
        if (n, w) == (15, "F"): a("ds_read_b32 v%d, v%d offset:%d" % (D_POLL, D_FL, F_INIT), "init"); gate(P, D_ZERO, SDBG, 0, "init", D_POLL, 1)
        for g in gates:
            if i == firstA[g]:
                do_gate(g)
                if g == 20: a("s_movk_i32 m0, %d" % LR2); vm("buffer_load_dword v%d, %s, 0 offen sc1 lds" % (D_R, srd(SWS)), 2)
            if i + CFG["pollat"] == firstA[g]: poll(g)
        if CFG["lead"]:
            for g in range(1, 9):
                sec = max(x for x in gates if x <= 20 + 4 * g); newsec = sec == 20 + 4 * g
                at = gstart[g - 1]
                if newsec and i + CFG["pollat"] == at:
                    vm("buffer_load_dword v%d, v%d, %s, 0 offen offset:%d sc1" % (D_POLL2, D_CC, srd(SWS), gates[sec][0] * 128), 1, ("poll2", g))
                if i == at + CFG["leadoff"]:
                    lb = newlbl()
                    if newsec: P.append(W(vm=[("poll2", g)]))
                    a("s_cmp_lg_u32 s%d, %d" % (sLD, CFG["who"][g])); a("s_cbranch_scc1 L_nl%d" % lb)
                    X = []
                    if newsec: X += [I("v_cmp_eq_u32 vcc, %d, v%d" % (gates[sec][1], D_POLL2)), I("s_cbranch_vccz L_nl%d" % lb)]
                    for j in range(4): X.append(I("v_readlane_b32 s%d, v%d, %d" % (sG + j, D_TAB, 20 + 4 * g + j)))
                    X.append(I("s_mov_b32 exec_hi, 0"))
                    for j in range(4):
                        if g >= 7: X.append(I("s_add_u32 s%d, s%d, %d" % (sG + j, sG + j, 28 * 4096)))
                        X.append(I("buffer_load_dword v%d, v%d, %s, s%d offen offset:2048 sc1" % (D_TCH + 4, D_AT, srd(SWS), sG + j)))
                    X.append(I("s_mov_b64 exec, -1"))
                    raw(P, X); P.append(L("L_nl%d:" % lb))
        started.add(n)
        if i + 1 < len(seq) and need_at(i + 1) > checked: a("ds_read_b32 v%d, v%d" % (D_DV, D_LA), ("dn", i + 1))
        nxt = seq[i + 1][0] if i + 1 < len(seq) else 99
        if w == "F":
            assert nxt in (n + 1, 99); dma(n)
        else: part(n, w, nxt)
        parts.setdefault(n, set()).add(w)
        if parts[n] in ({"F"}, {"A", "B"}):
            assert all(parts.get(m) in ({"F"}, {"A", "B"}) for m in range(1, n))
            publish(n)
        if w == "F": do_touch(n)
    if CFG["stamps"]:
        count_wait(P, D_FL, D_DV, F_END, 4)
        stamp(62)
        a("s_memrealtime s[6:7]"); P.append(W(lg="all"))
        a("v_writelane_b32 v%d, s4, 62" % H_STAMP2); a("v_writelane_b32 v%d, s6, 63" % H_STAMP2)
        a("s_lshl_b32 s%d, s2, 8" % sT0); a("s_add_u32 s%d, s%d, %d" % (sT0, sT0, WS_ST))
        a("v_lshlrev_b32 v64, 2, v1")
        a("s_cmp_lg_u32 s%d, %d" % (sW1, CFG["stampw"] & 1)); a("s_cbranch_scc1 L_exit")
        a("buffer_store_dword v%d, v64, %s, s%d offen" % (H_STAMP, srd(SWS), sT0))
        a("s_add_u32 s%d, s%d, 0x10000" % (sT0, sT0))
        a("buffer_store_dword v%d, v64, %s, s%d offen" % (H_STAMP2, srd(SWS), sT0))
    a("s_endpgm")
    return P

A_ONE, A_ZERO, A_CM, A_CK, A_CQ, A_FL, A_RK, A_RV, A_ST, A_ZA, A_PL, A_ZL, A_OS, A_SGN = range(2, 16)
A_POLL, A_FV, A_TCH = 25, 27, 28
A_ID = 32
A_WP = 36
A_R = 16
A_ACC = 56
A_RAW = 72
A_T = 72
A_KF = 112
A_SD = 192; A_PHI = 208
A_PQ = 128
A_LD = 192
def softmax_unit(wp, kf, u, dst, Pm, R, scale_r):
    B = []; b = lambda t, tag=None: B.append(I(t, tag))
    C = A_R + 4 + u
    b("v_mfma_f32_32x32x16_bf16 %s, %s, %s, 0" % (v(Pm, 16), v(wp, 4), v(kf, 4)))
    for g in range(2): b("v_max3_f32 v%d, v%d, v%d, v%d" % (R + g, Pm + 8 * g, Pm + 8 * g + 1, Pm + 8 * g + 2))
    for g in range(2): b("v_max3_f32 v%d, v%d, v%d, v%d" % (R + 2 + g, Pm + 8 * g + 3, Pm + 8 * g + 4, Pm + 8 * g + 5))
    for g in range(2): b("v_max3_f32 v%d, v%d, v%d, v%d" % (R + g, R + g, Pm + 8 * g + 6, Pm + 8 * g + 7))
    for g in range(2): b("v_max_f32 v%d, v%d, v%d" % (R + g, R + g, R + 2 + g))
    def allred(op, mid):
        b("v_permlane32_swap_b32 v%d, v%d" % (R, R + 1))
        b("%s v%d, v%d, v%d" % (op, R, R, R + 1))
        for t in mid: b(t)
        b("v_mov_b32 v%d, v%d" % (R + 1, R))
        b("v_permlane32_swap_b32 v%d, v%d" % (R, R + 1))
    allred("v_max_f32", ["v_mul_f32 v%d, v%d, v%d" % (R, C, R)])
    for j in range(16): b("v_fma_f32 v%d, v%d, v%d, -v%d" % (Pm + j, Pm + j, C, R + j // 8))
    for j in range(16): b("v_exp_f32 v%d, v%d" % (Pm + j, Pm + j))
    if not scale_r and not CFG["qnorm"]:
        for j in range(8): b("v_cvt_pk_bf16_f32 v%d, v%d, v%d" % (dst + j, Pm + 2 * j, Pm + 2 * j + 1))
        return B
    for g in range(2):
        b("v_add_f32 v%d, v%d, v%d" % (R + g, Pm + 8 * g, Pm + 8 * g + 1)); b("v_add_f32 v%d, v%d, v%d" % (R + 2 + g, Pm + 8 * g + 2, Pm + 8 * g + 3))
    for k in (4, 6):
        for g in range(2):
            b("v_add_f32 v%d, v%d, v%d" % (R + g, R + g, Pm + 8 * g + k)); b("v_add_f32 v%d, v%d, v%d" % (R + 2 + g, R + 2 + g, Pm + 8 * g + k + 1))
    for g in range(2): b("v_add_f32 v%d, v%d, v%d" % (R + g, R + g, R + 2 + g))
    allred("v_add_f32", ["v_rcp_f32 v%d, v%d" % (R, R)] + (["v_mul_f32 v%d, v%d, v%d" % (R, R, A_R + u)] if scale_r else []))
    for j in range(16): b("v_mul_f32 v%d, v%d, v%d" % (Pm + j, Pm + j, R + j // 8))
    for j in range(8): b("v_cvt_pk_bf16_f32 v%d, v%d, v%d" % (dst + j, Pm + 2 * j, Pm + 2 * j + 1))
    return B
def zipper(x, y):
    out = []
    for i in range(max(len(x), len(y))):
        if i < len(x): out.append(x[i])
        if i < len(y): out.append(y[i])
    return out
def mprio(B, base=0):
    out = []; hi = False
    for it in B:
        m_ = isinstance(it, I) and it.t.startswith("v_mfma")
        if m_ and not hi: out.append(I("s_setprio 3")); hi = True
        if hi and not m_: out.append(I("s_setprio %d" % base)); hi = False
        out.append(it)
    return out

def attn_setup(ty):
    P = []; b = lambda t, tag=None: P.append(I(t, tag))
    t0, t1, t2, t3, u0 = range(100, 105)
    hk, hq = sT2, sT3
    if CFG["tlb"]:
        b("v_lshlrev_b32 v%d, 16, v1" % t0); b("s_mov_b64 exec, 0x%x" % CFG["tlbm"])
        for d in ((SQKV,), (SQKV, SG, SU), (SQKV, SG, SU, SWD, SWO))[CFG["tlb"] - 1]: b("buffer_load_dword v%d, v%d, %s, 0 offen" % (A_POLL + 1, t0, srd(d)))
        b("s_mov_b64 exec, -1")
    nr = 32 if CFG["map"] == 84 else 64
    b("s_lshl_b32 s%d, s%d, 6" % (sT0, sXR)); b("s_mul_i32 s%d, s%d, %d" % (sT1, sW1, nr)); b("s_add_u32 s%d, s%d, s%d" % (sT0, sT0, sT1))
    b("v_add_u32 v%d, s%d, v1" % (A_TCH + 2, sT0)); b("v_mul_u32_u24 v%d, 3072, v%d" % (A_TCH + 3, A_TCH + 2)); b("v_mul_u32_u24 v%d, 3584, v%d" % (A_TCH + 2, A_TCH + 2))
    if nr == 32: b("s_mov_b32 exec_hi, 0")
    if CFG["ftouch"] == 4: b("buffer_load_dword v%d, v%d, %s, s%d offen offset:%d" % (A_POLL + 1, A_TCH + 3, srd(SQKV), sKC, 1024 * ty))
    elif CFG["ftouch"] >= 5 or not CFG["ftouch"] & (1 << ty): pass
    elif ty == 0:
        for o_ in (0, 1024): b("buffer_load_dword v%d, v%d, %s, s%d offen offset:%d" % (A_POLL + 1, A_TCH + 3, srd(SQKV), sKC, o_))
    else:
        b("s_lshl_b32 s%d, s%d, 7" % (sT0, sGR)); b("buffer_load_dword v%d, v%d, %s, s%d offen" % (A_POLL + 1, A_TCH + 3, srd(SQKV), sT0))
    b("s_mov_b64 exec, -1")
    b("s_lshl_b32 s%d, s%d, 2" % (hq, sGR)); b("s_add_u32 s%d, s%d, s%d" % (hq, hq, sW1))
    b("s_add_u32 s%d, s%d, %d" % (hk, hq, 2 * ty))
    b("v_lshrrev_b32 v%d, 5, v1" % t3); b("v_and_b32 v%d, 15, v1" % t1); b("v_lshrrev_b32 v%d, 4, v1" % t0)
    b("v_lshlrev_b32 v%d, 7, v%d" % (t2, t3)); b("v_lshl_add_u32 v%d, v%d, 1, v%d" % (t2, t1, t2))
    b("s_lshl_b32 s%d, s%d, 9" % (sT0, hq))
    for hh in range(1 + ty):
        for j in range(8):
            b("buffer_load_ushort v%d, v%d, %s, s%d offen offset:%d" % (A_RAW + 8 * hh + j, t2, srd(SPHI), sT0, 1024 * hh + 32 * ((j & 3) + 8 * (j >> 2))), "wphi")
    b("v_mov_b32 v%d, 0" % A_ZERO); b("v_mov_b32 v34, 0")
    b("v_mov_b32 v%d, 1" % A_ONE); b("v_mov_b32 v%d, %d" % (A_FL, FL))
    if ty == 0:
        b("v_lshlrev_b32 v%d, 7, v1" % u0)
        b("s_add_u32 s%d, s2, s%d" % (sT0, sW1)); b("s_cmp_lg_u32 s%d, 0" % sT0); b("s_cbranch_scc1 L_noinit")
        raw(P, sum([[I("s_movk_i32 s%d, 0x%x" % (sT0, 0x2000 * k)), I("buffer_store_dword v%d, v%d, %s, s%d offen sc1" % (A_ZERO, u0, srd(SWS), sT0))] for k in range(3)], []))
        P.append(L("L_noinit:"))
    b("v_and_b32 v%d, 1, v%d" % (t2, t0)); b("v_mul_u32_u24 v%d, 0x8000, v%d" % (t2, t2)); b("v_lshl_or_b32 v%d, v%d, 16, v%d" % (A_SGN, t2, t2))
    b("s_lshl_b32 s%d, s%d, 10" % (sT0, sI)); b("v_lshlrev_b32 v%d, 9, v1" % A_CM); b("v_add_u32 v%d, s%d, v%d" % (A_CM, sT0, A_CM))
    b("v_lshl_add_u32 v%d, v1, 2, v%d" % (A_FV, A_FL))
    for k in range(8): b("ds_write_b32 v%d, v%d offset:%d" % (A_FV, A_ZERO, 256 * k))
    b("s_lshl_b32 s%d, s%d, 8" % (sT0, hk)); b("s_add_u32 s%d, s%d, 0x4000" % (sT0, sT0)); b("v_mov_b32 v%d, s%d" % (A_CK, sT0))
    b("s_lshl_b32 s%d, s%d, 8" % (sT0, hq)); b("s_add_u32 s%d, s%d, 0x4000" % (sCC, sT0))
    b("s_lshl_b32 s%d, s%d, 11" % (sT0, sW1)); b("s_add_u32 s%d, s%d, %d" % (sT0, sT0, EX))
    b("v_lshlrev_b32 v%d, 4, v1" % u0); b("v_add_u32 v%d, s%d, v%d" % (A_RK, sT0, u0))
    b("v_and_b32 v%d, 1, v1" % t2); b("v_lshlrev_b32 v%d, 9, v%d" % (A_RV, t2)); b("v_lshl_add_u32 v%d, v%d, 7, v%d" % (A_RV, t0, A_RV))
    b("v_bfe_u32 v%d, v1, 2, 2" % t2); b("v_lshl_add_u32 v%d, v%d, 4, v%d" % (A_RV, t2, A_RV))
    b("v_bfe_u32 v%d, v1, 1, 1" % t2); b("v_lshl_add_u32 v%d, v%d, 3, v%d" % (A_RV, t2, A_RV)); b("v_add_u32 v%d, s%d, v%d" % (A_RV, sT0, A_RV))
    b("s_lshl_b32 s%d, s%d, 4" % (sT0, hk)); b("s_add_u32 s%d, s%d, s%d" % (sT0, sT0, sI))
    b("s_lshl_b32 s%d, s%d, 10" % (sT1, sT0)); b("s_add_u32 s%d, s%d, %d" % (sT1, sT1, WS_KV)); b("v_add_u32 v%d, s%d, v%d" % (A_ST, sT1, u0))
    b("s_lshl_b32 s%d, s%d, 7" % (sT1, sT0)); b("s_add_u32 s%d, s%d, %d" % (sT1, sT1, WS_Z))
    b("v_lshlrev_b32 v%d, 6, v%d" % (A_ZA, t1)); b("v_lshl_add_u32 v%d, v%d, 4, v%d" % (A_ZA, t0, A_ZA)); b("v_add_u32 v%d, s%d, v%d" % (A_ZA, sT1, A_ZA))
    if ty == 0:
        b("s_lshl_b32 s%d, s%d, 1" % (sT0, sI)); b("s_add_u32 s%d, s%d, s%d" % (sT0, sT0, sW1)); b("s_and_b32 s%d, s%d, 7" % (sLD, sT0))
        b("s_lshr_b32 s%d, s%d, 3" % (sT0, sT0)); b("s_lshl_b32 s%d, s%d, 2" % (sT4, sGR)); b("s_add_u32 s%d, s%d, s%d" % (sT4, sT4, sT0))
        b("s_lshl_b32 s%d, s%d, 8" % (sT0, sT4)); b("s_add_u32 s%d, s%d, 0x4000" % (sCC, sT0)); b("v_mov_b32 v%d, s%d" % (A_CQ, sCC))
        b("s_lshl_b32 s%d, s%d, 7" % (sT5, sLD))
        b("s_lshl_b32 s%d, s%d, 14" % (sT1, sT4)); b("s_add_u32 s%d, s%d, s%d" % (sT1, sT1, sT5)); b("s_add_u32 s%d, s%d, %d" % (sT1, sT1, WS_KV))
        b("v_lshrrev_b32 v%d, 3, v1" % t2); b("v_lshlrev_b32 v%d, 10, v%d" % (A_PL, t2)); b("v_and_b32 v%d, 7, v1" % t2)
        b("v_lshl_add_u32 v%d, v%d, 4, v%d" % (A_PL, t2, A_PL)); b("v_add_u32 v%d, s%d, v%d" % (A_PL, sT1, A_PL))
        b("s_lshl_b32 s%d, s%d, 10" % (sT1, sT4)); b("s_add_u32 s%d, s%d, s%d" % (sT1, sT1, sT5)); b("s_add_u32 s%d, s%d, %d" % (sT1, sT1, WS_KVF))
        b("v_lshlrev_b32 v%d, 4, v%d" % (A_OS, t2)); b("v_lshl_add_u32 v%d, v%d, 2, v%d" % (A_OS, t3, A_OS))
        b("v_and_b32 v%d, 1, v%d" % (t2, t0)); b("v_lshl_add_u32 v%d, v%d, 3, v%d" % (A_OS, t2, A_OS)); b("v_add_u32 v%d, s%d, v%d" % (A_OS, sT1, A_OS))
        b("s_lshl_b32 s%d, s%d, 11" % (sT1, sT4)); b("s_add_u32 s%d, s%d, %d" % (sT1, sT1, WS_Z))
        b("v_lshlrev_b32 v%d, 7, v%d" % (A_ZL, t1)); b("v_lshl_add_u32 v%d, v%d, 4, v%d" % (A_ZL, t0, A_ZL)); b("v_add_u32 v%d, s%d, v%d" % (A_ZL, sT1, A_ZL))
        b("s_lshl_b32 s%d, s%d, 7" % (sT1, sT4)); b("s_add_u32 s%d, s%d, %d" % (sT1, sT1, WS_ZF))
        b("v_lshlrev_b32 v%d, 6, v%d" % (A_CM, t1)); b("v_lshl_add_u32 v%d, v%d, 4, v%d" % (A_CM, t0, A_CM)); b("v_add_u32 v%d, s%d, v%d" % (A_CM, sT1, A_CM))
        ident(b, A_ID, t1)
    if ty == 1:
        b("s_lshl_b32 s%d, s%d, 10" % (sT1, hq)); b("s_add_u32 s%d, s%d, %d" % (sT1, sT1, WS_KVF)); b("v_add_u32 v%d, s%d, v%d" % (A_PL, sT1, u0))
        b("s_lshl_b32 s%d, s%d, 7" % (sT1, hq)); b("s_add_u32 s%d, s%d, %d" % (sT1, sT1, WS_ZF))
        b("v_lshlrev_b32 v%d, 4, v%d" % (A_ZL, t0)); b("v_add_u32 v%d, s%d, v%d" % (A_ZL, sT1, A_ZL))
        b("s_mul_i32 s%d, s%d, 576" % (sT1, sI)); b("s_add_u32 s%d, s%d, s%d" % (sT1, sT1, hq)); b("s_add_u32 s%d, s%d, s%d" % (sT1, sT1, sW1)); b("s_add_u32 s%d, s%d, 112" % (sT1, sT1))
        b("s_lshl_b32 s%d, s%d, 10" % (sT1, sT1)); b("s_add_u32 s%d, s%d, %d" % (sT1, sT1, WS_HO))
        b("v_and_b32 v%d, 1, v%d" % (t2, t0)); b("v_lshlrev_b32 v%d, 10, v%d" % (A_OS, t2)); b("v_lshl_add_u32 v%d, v%d, 8, v%d" % (A_OS, t3, A_OS))
        b("v_lshl_add_u32 v%d, v%d, 4, v%d" % (A_OS, t1, A_OS)); b("v_add_u32 v%d, s%d, v%d" % (A_OS, sT1, A_OS))
    return P

def attn_wave(ty):
    P = [M(("x", 1))] + attn_setup(ty); a = lambda t, tag=None: P.append(I(t, tag))
    stamp = lambda k: stamp_to(P, k, 34)
    def signal(vaddr, off): one_lane(P, "buffer_atomic_add v%d, v%d, %s, 0 offen offset:%d sc1" % (A_ONE, vaddr, srd(SWS), off))
    def ft():
        a("s_mov_b32 exec_hi, 0"); a("buffer_load_dword v%d, v%d, %s, s%d offen offset:%d" % (A_POLL + 1, A_TCH + 3, srd(SQKV), sKC, 1024 * ty))
        if CFG["ftouch"] == 7:
            if ty: a("s_lshl_b32 s%d, s%d, 7" % (sT0, sGR)); a("buffer_load_dword v%d, v%d, %s, s%d offen" % (A_POLL + 1, A_TCH + 3, srd(SQKV), sT0))
            else:
                a("s_lshl_b32 s%d, s%d, 8" % (sT0, sGR))
                for d in (SG, SU): a("buffer_load_dword v%d, v%d, %s, s%d offen" % (A_POLL + 1, A_TCH + 2, srd(d), sT0))
        a("s_mov_b64 exec, -1")
    def after1():
        if CFG["ftouch"] in (5, 7): ft()
        if ty == 0:
            only(P, ["s_add_u32 s%d, s2, s%d" % (sT0, sW1), "s_cmp_lg_u32 s%d, 0" % sT0],
                 [I("buffer_store_dword v%d, v%d, %s, 0 offen sc1" % (A_ONE, A_ZERO, srd(SDBG)))])
    P.append(W(lg="all"))
    xstages(P, {1: after1, 0: (ft if CFG["ftouch"] == 6 else lambda: None)})
    a("s_barrier")
    if CFG["noattn"]:
        one_lane(P, "ds_add_u32 v%d, v%d offset:%d" % (A_FL, A_ONE, F_EXF)); a("s_endpgm"); return P
    P.append(W(vm=["wphi"]))
    for hh in range(1 + ty):
        for j in range(4): a("v_lshl_or_b32 v%d, v%d, 16, v%d" % (A_WP + 4 * hh + j, A_RAW + 8 * hh + 2 * j + 1, A_RAW + 8 * hh + 2 * j))
        for j in range(4): a("v_xor_b32 v%d, v%d, v%d" % (A_WP + 4 * hh + j, A_WP + 4 * hh + j, A_SGN))
    WK = A_WP + 4 * ty
    T = A_T
    a("v_and_b32 v%d, 31, v1" % T); a("v_lshlrev_b32 v%d, 2, v%d" % (T, T)); a("v_add_u32 v%d, %d, v%d" % (T, LRS, T))
    a("v_lshrrev_b32 v%d, 4, v1" % (T + 1)); a("v_lshlrev_b32 v%d, 4, v%d" % (T + 1, T + 1)); a("v_add_u32 v%d, %d, v%d" % (T + 1, LSD, T + 1))
    count_wait(P, A_FL, A_FV, F_EX, 4)
    stamp(11)
    for u in range(4): a("ds_read_b32 v%d, v%d offset:%d" % (A_R + u, T, u * 128))
    for u in range(4): a("ds_read_b128 %s, v%d offset:%d" % (v(A_SD + 4 * u, 4), T + 1, u * 64))
    for u in range(4): a("ds_read_b128 %s, v%d offset:%d" % (v(A_KF + 4 * u, 4), A_RK, u * 8192))
    P.append(W(lg="all"))
    for u in range(4): a("v_mul_f32 v%d, s%d, v%d" % (A_R + 4 + u, sL2E, A_R + u))
    PM = (T, T + 16); RR = (T + 32, T + 36)
    def qpair(hh, pr, src=None):
        src = A_KF + 8 * pr if src is None else src
        return mprio(zipper(softmax_unit(A_WP + 4 * hh, src, 2 * pr, A_PQ + 32 * hh + 16 * pr, PM[0], RR[0], False),
                            softmax_unit(A_WP + 4 * hh, src + 4, 2 * pr + 1, A_PQ + 32 * hh + 16 * pr + 8, PM[1], RR[1], False)), CFG["qprio"])
    KO = 0 if CFG["kvfirst"] else 4096 * ty
    if ty == 1 and not CFG["kvfirst"]:
        P += qpair(0, 0)
        if CFG["qpre"] == 2: P += qpair(0, 1)
        else:
            for j in range(8): a("v_mov_b32 v%d, v%d" % (A_PQ + 16 + j, A_KF + 8 + j))
        count_wait(P, A_FL, A_FV, F_EX + 4, 4)
        stamp(18)
        for u in range(4): a("ds_read_b128 %s, v%d offset:%d" % (v(A_KF + 4 * u, 4), A_RK, u * 8192 + KO))
        P.append(W(lg="all"))
    B = []; b = lambda t, tag=None: B.append(I(t, tag))
    def tail(u):
        X = []; x = lambda t, tag=None: X.append(I(t, tag))
        PHI = A_PHI + 8 * (u & 1); FR = A_PHI + 16 + 12 * (u & 1); so = (u & 1) * 16384 + KO
        for sg in range(2): x("ds_write_b128 v%d, %s offset:%d" % (A_RK, v(PHI + 4 * sg, 4), so + sg * 8192))
        for q in range(2): x("ds_read_b64_tr_b16 %s, v%d offset:%d" % (v(FR + 2 * q, 2), A_RV, u * 8192 + KO + 1024 + q * 64), ("pr", u))
        for sg in range(2):
            for q in range(2): x("ds_read_b64_tr_b16 %s, v%d offset:%d" % (v(FR + 4 + 4 * sg + 2 * q, 2), A_RV, so + sg * 8192 + q * 64), ("pr", u))
        return X
    def kvm(us):
        X = [W(lg=[("pr", us[-1])])]
        for u in us:
            FR = A_PHI + 16 + 12 * (u & 1)
            for sg in range(2):
                c = v(A_ACC + 4 * sg, 4); z = v(A_ACC + 8 + 4 * sg, 4)
                X.append(I("v_mfma_f32_16x16x32_bf16 %s, %s, %s, %s" % (c, v(FR + 4 + 4 * sg, 4), v(FR, 4), "0" if u == 0 else c)))
                X.append(I("v_mfma_f32_16x16x32_bf16 %s, %s, %s, %s" % (z, v(FR + 4 + 4 * sg, 4), v(A_SD + 4 * u, 4), "0" if u == 0 else z)))
        return X
    for pr in range(2):
        z = zipper(softmax_unit(WK, A_KF + 8 * pr, 2 * pr, A_PHI, PM[0], RR[0], True), softmax_unit(WK, A_KF + 8 * pr + 4, 2 * pr + 1, A_PHI + 8, PM[1], RR[1], True))
        t0_, t1_ = tail(2 * pr), tail(2 * pr + 1)
        if pr == 0: B += z + t0_[:2] + t1_[:2]; late = t0_[2:] + t1_[2:]
        else: B += z[:70] + late + z[70:120] + kvm((0, 1)) + z[120:] + t0_[:2] + t1_[:2] + t0_[2:] + t1_[2:]
    b("v_and_b32 v%d, 15, v1" % T); b("v_cmp_eq_u32 vcc, 1, v%d" % T)
    if ty == 0: one_lane(B, "ds_add_u32 v%d, v%d offset:%d" % (A_FL, A_ONE, F_EXF))
    B += kvm((2, 3))
    for j in range(4): b("v_cvt_pk_bf16_f32 v%d, v%d, v%d" % (A_ACC + j, A_ACC + 2 * j, A_ACC + 2 * j + 1))
    for j in range(4): b("v_cndmask_b32 v%d, v%d, v%d, vcc" % (A_ACC + 8 + j, A_ACC + 8 + j, A_ACC + 12 + j))
    b("buffer_store_dwordx4 %s, v%d, %s, 0 offen sc1" % (v(A_ACC, 4), A_ST, srd(SWS)), "part")
    b("s_mov_b32 exec_lo, 0x00030003"); b("s_mov_b32 exec_hi, 0x00030003")
    b("buffer_store_dwordx4 %s, v%d, %s, 0 offen sc1" % (v(A_ACC + 8, 4), A_ZA, srd(SWS)), "part"); b("s_mov_b64 exec, -1")
    P += mprio(B, CFG["kprio"]); a("s_setprio 0")
    stamp(12)
    def publish_k():
        a("ds_read_b32 v%d, v%d offset:%d" % (A_POLL, A_FL, F_INIT), "init"); gate(P, A_ZERO, SDBG, 0, "init", A_POLL, 1)
        P.append(W(vm=["part"])); signal(A_CK, 0)
        stamp(13)
    if ty == 0:
        publish_k()
        a(sload(SWS, sCC, 0, sG)); sgate(P, sCC, 0, sG, 16)
        stamp(14)
        LD = A_LD; S = T; Z = A_ACC
        a("buffer_load_dwordx4 %s, v%d, %s, 0 offen sc1" % (v(LD, 4), A_PL, srd(SWS))); a("s_movk_i32 s%d, 8192" % sT0)
        a("buffer_load_dwordx4 %s, v%d, %s, s%d offen sc1" % (v(LD + 4, 4), A_PL, srd(SWS), sT0))
        X = []; x = lambda t: X.append(I(t))
        x("buffer_load_dwordx4 %s, v%d, %s, 0 offen sc1" % (v(Z, 4), A_ZL, srd(SWS))); x("buffer_load_dwordx4 %s, v%d, %s, 0 offen offset:64 sc1" % (v(Z + 4, 4), A_ZL, srd(SWS)))
        x("v_and_b32 v%d, 15, v1" % S); x("v_cmp_eq_u32 vcc, 1, v%d" % S); x("s_waitcnt vmcnt(0)")
        for k in (8, 4, 2, 1):
            for j in range(8): x("v_add_f32_dpp v%d, v%d, v%d row_ror:%d row_mask:0xf bank_mask:0xf" % (Z + j, Z + j, Z + j, k))
        for j in range(4): x("v_cndmask_b32 v%d, v%d, v%d, vcc" % (Z + j, Z + j, Z + 4 + j))
        x("s_mov_b32 exec_lo, 0x00030003"); x("s_mov_b32 exec_hi, 0x00030003")
        x("buffer_store_dwordx4 %s, v%d, %s, 0 offen sc1" % (v(Z, 4), A_CM, srd(SWS))); x("s_mov_b64 exec, -1"); x("s_branch L_l2b")
        only(P, ["s_cmp_lg_u32 s%d, 0" % sLD], X)
        a("s_waitcnt vmcnt(0)"); P.append(L("L_l2b:"))
        B = []
        for t_ in range(2):
            for sg in range(2): b("v_mfma_f32_4x4x4_16b_bf16 %s, %s, %s, %s" % (v(S + 4 * sg, 4), v(A_ID, 2), v(LD + 4 * t_ + 2 * sg, 2), "0" if t_ == 0 else v(S + 4 * sg, 4)))
        for j in range(8): b("v_add_f32_dpp v%d, v%d, v%d row_ror:8 row_mask:0xf bank_mask:0xf" % (S + j, S + j, S + j))
        for j in range(4): b("v_permlane16_swap_b32 v%d, v%d" % (S + j, S + 4 + j))
        for j in range(4): b("v_add_f32 v%d, v%d, v%d" % (S + j, S + j, S + 4 + j))
        for j in range(2): b("v_permlane32_swap_b32 v%d, v%d" % (S + j, S + 2 + j))
        for j in range(2): b("v_add_f32 v%d, v%d, v%d" % (S + j, S + j, S + 2 + j))
        b("v_cvt_pk_bf16_f32 v%d, v%d, v%d" % (S, S, S + 1))
        b("s_mov_b32 exec_lo, 0x00ff00ff"); b("s_mov_b32 exec_hi, 0x00ff00ff")
        b("buffer_store_dword v%d, v%d, %s, 0 offen sc1" % (S, A_OS, srd(SWS))); b("s_mov_b64 exec, -1")
        P += mprio(B); P.append(W(vm="all")); signal(A_CQ, 128)
        stamp(15)
    else:
        assert CFG["kvfirst"]
        if CFG["qlate"]: publish_k()
        count_wait(P, A_FL, A_FV, F_EX + 4, 4)
        for hh in range(2):
            for u in range(4): a("ds_read_b128 %s, v%d offset:%d" % (v(A_PQ + 32 * hh + 16 * (u >> 1) + 4 * (u & 1), 4), A_RK, u * 8192 + 4096 + 1024 * hh), "qf")
        one_lane(P, "ds_add_u32 v%d, v%d offset:%d" % (A_FL, A_ONE, F_EXF))
        P.append(W(lg=["qf"]))
        z = qpair(0, 0, A_PQ) if CFG["kvfirst"] else qpair(1, 0)
        P += z[:CFG["kpub"]]
        if not CFG["qlate"]: publish_k()
        P += z[CFG["kpub"]:]
        if CFG["kvfirst"]: rest = [qpair(0, 1, A_PQ + 16), qpair(1, 0, A_PQ + 32), qpair(1, 1, A_PQ + 48)]
        else: rest = ([qpair(0, 1, A_PQ + 16)] if CFG["qpre"] == 1 else []) + [qpair(1, 1)]
        for z in rest: P += z
        Z = (A_ACC, A_ACC + 8); KVA = (A_WP, A_R); S = A_KF
        def finish(hh):
            B = []; b = lambda t, tag=None: B.append(I(t, tag))
            KV = KVA[hh]; PQ = A_PQ + 32 * hh
            for sg in range(2):
                for j in range(2):
                    b("v_mov_b32 v%d, v%d" % (KV + 4 * sg + j, S + 4 * hh + 2 * sg + j))
                    b("v_cvt_pk_bf16_f32 v%d, v%d, v%d" % (KV + 4 * sg + 2 + j, Z[hh] + 4 * sg + 2 * j, Z[hh] + 4 * sg + 2 * j + 1))
            for w in ("16", "32"):
                for sg in range(2):
                    for j in range(2): b("v_permlane%s_swap_b32 v%d, v%d" % (w, KV + 4 * sg + j, KV + 4 * sg + 2 + j))
            if CFG["qnorm"]:
                NN = [A_LD + 16 * u for u in range(4)]
                for u in range(4):
                    for sg in range(2): b("v_mfma_f32_32x32x16_bf16 %s, %s, %s, %s" % (v(NN[u], 16), v(KV + 4 * sg, 4), v(PQ + 8 * u + 4 * sg, 4), v(NN[u], 16) if sg else "0"))
                for u in range(4):
                    N = NN[u]
                    b("v_add_f32 v%d, 0x358637bd, v%d" % (N + 8, N + 8)); b("v_rcp_f32 v%d, v%d" % (N + 8, N + 8))
                    for j in range(8): b("v_mul_f32 v%d, v%d, v%d" % (N + j, N + j, N + 8))
                    for j in range(4): b("v_cvt_pk_bf16_f32 v%d, v%d, v%d" % (A_PQ + 8 * u + 4 * (j >> 1) + 2 * hh + (j & 1), N + 2 * j, N + 2 * j + 1))
                    if hh:
                        b("s_mov_b32 s%d, %d" % (sT5, u * 147456))
                        for h2 in range(2): b("buffer_store_dwordx4 %s, v%d, %s, s%d offen offset:%d sc1" % (v(A_PQ + 8 * u + 4 * h2, 4), A_OS, srd(SWS), sT5, 512 * h2), "ost")
                P.extend(mprio(B, CFG["fprio"])); return
            b("s_mov_b32 exec_lo, 0xff000000"); b("s_mov_b32 exec_hi, 0xff000000")
            for j in range(8): b("v_mov_b32 v%d, 0x3f803f80" % (KV + j))
            b("s_mov_b64 exec, -1")
            buf = [A_LD + 32, A_LD]
            def mm(u):
                for sg in range(2): b("v_mfma_f32_32x32x16_bf16 %s, %s, %s, 0" % (v(buf[u & 1] + 16 * sg, 16), v(KV + 4 * sg, 4), v(PQ + 8 * u + 4 * sg, 4)))
            mm(0)
            for u in range(4):
                if u < 3: mm(u + 1)
                N = buf[u & 1]; Q = N + 16; O = PQ + 8 * u
                b("v_rcp_f32 v%d, v%d" % (N + 12, N + 12)); b("v_rcp_f32 v%d, v%d" % (Q + 12, Q + 12))
                b("v_fmaak_f32 v%d, v%d, v%d, 0x358637bd" % (N + 8, N + 8, N + 12)); b("v_fmac_f32 v%d, v%d, v%d" % (N + 8, Q + 8, Q + 12))
                b("v_rcp_f32 v%d, v%d" % (N + 8, N + 8))
                b("v_mul_f32 v%d, v%d, v%d" % (N + 12, N + 12, N + 8)); b("v_mul_f32 v%d, v%d, v%d" % (Q + 12, Q + 12, N + 8))
                for j in range(8): b("v_mul_f32 v%d, v%d, v%d" % (N + j, N + j, N + 12))
                for j in range(8): b("v_fmac_f32 v%d, v%d, v%d" % (N + j, Q + j, Q + 12))
                for j in range(4): b("v_cvt_pk_bf16_f32 v%d, v%d, v%d" % (A_PQ + 8 * u + 4 * (j >> 1) + 2 * hh + (j & 1), N + 2 * j, N + 2 * j + 1))
            P.extend(mprio(B, CFG["fprio"]))
        def stores(hh):
            for u in range(4):
                a("s_mov_b32 s%d, %d" % (sT5, u * 147456))
                a("buffer_store_dwordx4 %s, v%d, %s, s%d offen offset:%d sc1" % (v(A_PQ + 8 * u + 4 * hh, 4), A_OS, srd(SWS), sT5, 512 * hh), "ost")
        stamp(14)
        for hh in range(2): a(sload(SWS, sCC, 512 * hh + 128, sG + hh))
        for hh in range(2): sgate(P, sCC, 512 * hh + 128, sG + hh, 8)
        stamp(15)
        for hh in range(2):
            a("buffer_load_dwordx4 %s, v%d, %s, 0 offen offset:%d sc1" % (v(S + 4 * hh, 4), A_PL, srd(SWS), 2048 * hh))
            for sg in range(2): a("buffer_load_dwordx4 %s, v%d, %s, 0 offen offset:%d sc1" % (v(Z[hh] + 4 * sg, 4), A_ZL, srd(SWS), 256 * hh + 64 * sg))
        P.append(W(vm="all"))
        finish(0); finish(1)
        if not CFG["qnorm"]: stores(0); stores(1)
        stamp(16)
        P.append(W(vm=["ost"]))
        a("s_mov_b64 exec, 3"); a("buffer_atomic_add v%d, v%d, %s, 0 offen offset:%d sc1" % (A_ONE, A_CM, srd(SWS), C_O * 128)); a("s_mov_b64 exec, -1")
        stamp(17)
    if CFG["stamps"]:
        a("s_lshl_b32 s%d, s2, 8" % sT0); a("s_add_u32 s%d, s%d, %d" % (sT0, sT0, WS_ST + 0x30000))
        a("v_lshlrev_b32 v64, 2, v1")
        a("s_cmp_lg_u32 s%d, %d" % (sW1, CFG["stampw"] & 1)); a("s_cbranch_scc1 L_exit")
        a("buffer_store_dword v34, v64, %s, s%d offen" % (srd(SWS), sT0))
    a("s_endpgm")
    return P

def main():
    hdr = open("cdna_kernels/%s.s.ref" % NAME).read().split("; Override launch geometry")[0]
    out = [hdr.rstrip(), "; @launch grid=(256,1,1) block=(512,1,1) lds=163840",
           '.amdgcn_target "amdgcn-amd-amdhsa--gfx950"', ".text", ".globl %s_kernel" % NAME, ".p2align 8",
           ".type %s_kernel,@function" % NAME, "%s_kernel:" % NAME]
    t, st = finalize(prologue()); out += t
    import re
    norm = lambda t: re.sub(r"(L_[a-z]+)\d+", r"\1", t)
    for nm, fn in (("attn", attn_wave), ("dma", dma_wave), ("comp", compute)):
        t0 = finalize([I("s_cmp_eq_u32 s%d, 1" % sTY), I("s_cbranch_scc1 L_%s1" % nm)] + fn(0), st.clone())[0]
        t1 = finalize(fn(1), st.clone())[0]
        k = 0
        while CFG["share"] and norm(t0[-1 - k]) == norm(t1[-1 - k]): k += 1
        while k > 0:
            defs = lambda T: set(x[:-1] for x in T if x.endswith(":"))
            head = " ".join(t0[:len(t0) - k])
            if not any(re.search(r"\b%s\b" % d, head) for d in defs(t0[len(t0) - k:])) and not any(re.search(r"\b%s\b" % d, " ".join(t1[len(t1) - k:])) for d in defs(t1[:len(t1) - k])): break
            k -= 1
        if k > 50:
            t0 = t0[:len(t0) - k] + ["    s_branch L_%sj" % nm]; t1 = t1[:len(t1) - k] + ["L_%sj:" % nm] + t1[len(t1) - k:]
        out += ["L_%s:" % nm] + t0 + ["L_%s1:" % nm] + t1
    out += centre_sub() + STUBS
    out += lds_spin("c", 18, C_FV, CFG["cnap"]) + lds_spin("d", D_LA, D_DV, CFG["dnap"])
    out += ["L_exit:", "    s_endpgm", ".p2align 7", "L_tab:"] + ["    .long %d" % k for k in range(64)]
    out += ['.section .rodata,"a"', ".p2align 6", ".amdhsa_kernel %s_kernel" % NAME,
            "  .amdhsa_next_free_vgpr 256", "  .amdhsa_next_free_sgpr 100", "  .amdhsa_accum_offset 256",
            "  .amdhsa_group_segment_fixed_size 0", "  .amdhsa_kernarg_size 88", "  .amdhsa_user_sgpr_count 2",
            "  .amdhsa_user_sgpr_kernarg_segment_ptr 1", "  .amdhsa_system_sgpr_workgroup_id_x 1", ".end_amdhsa_kernel"]
    open(sys.argv[1], "w").write("\n".join(out) + "\n")
main()
```

```python
import sys, os, json
sys.path.insert(0, os.path.dirname(os.path.abspath(__file__)))
from asmir import I, W, L, M, v, s, finalize, State

NAME = "recurrent_scan__linear_kernel_hedgehog__glu_gated_bilinear__prompt"
CFG = dict(stamps=0, probe=0, probeat=-1, xprobe=0, outfl=" sc0 sc1", stampw=0, zoom=0, LA=7, LAF=3, erate=3, codepf=1, sleep=4, cnap=1, dnap=2, map=48, latin=1, defer=3, nomark=[1, 3, 5, 7, 9, 11], pairs0=[6, 8, 10, 14, 16, 18], pairs1=[10, 12, 14], share=1, join=1, st2=12, wrat=3, stspread=0, qlate=0, ring2=[8, 9, 7, 0, 2, 3, 4, 5, 6], soft0=[], soft1=[], capsoft=48, zstep=1, bigring=0, bigto=20, cen0=32, dprio=0, hfl="sc1", cenat=4, nods=0, nost=0, noattn=0, light=0, nogate=[], qnorm=1, inl=0, tlb=0, tlbm=0xfffffff, s0at=2, kprio=0, qprio=0, fprio=0, wait2=1, kvfirst=1, l2nap=16, qpre=1, qpost=1, ftouch=0, fakeA=0, fakeP=0, dstep=2, fake16=0, lead=0, spoll=1, leadoff=0, who=[0, 2, 0, 2, 1, 3, 0, 2, 1], kpub=40, dry=0, aonly=0, map2=84, h2now=1, chk2=0,
           cap1=128, capt=160, cap2=112, capsw=20, awin=-1, pollat=2, hwait1=16, hwait2=-6, nb0=56, nb1=56, ahead2=4,
           bfirst=4, p2chk=1,
           rsat=66, exw0=[], exw1=[], afirst={},
           tplan0={"13": "m x"}, tplan1={"9": "m x"})
for a_ in sys.argv[2:]:
    k_, x_ = a_.split("="); assert k_ in CFG, k_; CFG[k_] = json.loads(x_)

WS_RS = 0x8000
WS_KV = 0x10000
WS_Z = 0x120000
WS_KVF = 0x130000; WS_ZF = 0x138000
WS_ST = 0x140000
WS_HO = 0x200000
WS_BYTES = WS_HO + 64 * 144 * 1024
C_H1A, C_H1B, C_H2, C_O = 0, 1, 2, 3
SLOT = 16384; STG = 32768; EX = 131072; FL = SLOT; LRS = FL + 2048; LSD = LRS + 512; F_INIT = 1792; LR2 = FL + 3072; LX = FL + 4096
F_LAND, F_DONE = 256, 768
F_EX, F_H, F_EXF, F_END = 32, 44, 52, 56
SX, SQKV, SPHI, SWO, SG, SU, SWD, SOUT, SDBG, SWS = 8, 12, 16, 20, 24, 28, 32, 36, 40, 44
sW, sW1, sI, sGR, sTY, sR1, sXR, sTT, sCT, sR2 = range(56, 66)
sT0, sT1, sT2, sT3, sT4, sT5 = range(66, 72)
sL2E = 72; sKC = 73; sSH = 74; sXL = 75; sKS = 76; sLA = 78; sXB = 79
sSPIN = 80; sRET = 82; sPH = 84; sTB = 88; sTM = 90; sMK = 94; sLM = 48; sLD = 49; sG = 50; sCC = 54; sPV = 55
srd = lambda b: s(b, 4)
LOG2E = 0x3fb8aa3b
XR = 128; ACC = 64; WF = 32
L_T, L_SEL, L_ID, L_SM, L_CM, L_SQ = 192, 224, 228, 232, 236, 240
L_XO, L_RR, L_C, L_SB, L_C7, L_WA, L_VA, L_VB = 124, 245, 246, 247, 248, 249, 251, 252
L_TR = 244
K_SQ, K_DL, K_RA = 16, 20, 24
H_STAMP = 255; H_STAMP2 = 254
_lbl = [0]
def newlbl():
    _lbl[0] += 1; return _lbl[0]
STUBS = []

PH = {0: [("P2", "kv", (0, 1)), ("P4", "gu", (2, 3, 0, 1)), ("P4", "gu", (0, 1, 2, 3))],
      1: [("P2", "q", (0, 1)), ("P2", "kv", (2, 3)), ("P4", "gu", (0, 1, 2, 3)), ("P2", "gu", (0, 1))]}
if CFG["kvfirst"]: PH[1][0:2] = [("P2", "kv", (0, 1)), ("P2", "q", (2, 3))]
if CFG["qlate"]: PH[1] = [("P2", "kv", (0, 1)), ("P4", "gu", (2, 3, 0, 1)), ("P2", "q", (0, 1)), ("P2", "gu", (2, 3))]
def slabs_of(ty):
    return [(pi, k, sg) for pi, (k, e, _) in enumerate(PH[ty]) for sg in range(8 if k == "P4" else 4)]
def slot_of(n):
    return (0, 2, 3, 4, 5, 6, 7)[n % 7] if n < 20 else tuple(CFG["ring2"])[(n - 20) % 9]
def prev_user(n):
    p = [m for m in range(n) if slot_of(m) == slot_of(n)]
    return p[-1] if p else -1
def marked(n): return (n not in CFG["nomark"]) if n < 20 else n % CFG["dstep"] == CFG["dstep"] - 1
def checks(ty):
    c = {0: 0, 1: 1}
    for n in range(2, CFG["nb%d" % ty], 2):
        if ((CFG["chk2"] or n in CFG["pairs%d" % ty]) if n < 20 else CFG["p2chk"] == 2): c[n] = n + 1
        else: c[n] = n; c[n + 1] = n + 1
    return c

def stamp_to(P, k, reg=H_STAMP):
    if CFG["stamps"]:
        P.append(I("s_memtime %s" % s(sTM + 2, 2))); P.append(W(lg="all"))
        P.append(I("s_sub_u32 s%d, s%d, s%d" % (sTM + 2, sTM + 2, sTM))); P.append(I("v_writelane_b32 v%d, s%d, %d" % (reg, sTM + 2, k)))
def rstamp(P, k):
    if CFG["stamps"]:
        P.append(I("s_memrealtime s[6:7]")); stamp_to(P, k, H_STAMP2)
        P.append(I("s_sub_u32 s6, s6, s4")); P.append(I("v_writelane_b32 v%d, s6, %d" % (H_STAMP2, k + 1)))
def raw(P, items):
    for x in finalize(items)[0]: P.append(L(x))
def only(P, cond, items):
    n = newlbl()
    for t in cond: P.append(I(t))
    P.append(I("s_cbranch_scc1 L_sk%d" % n)); raw(P, items); P.append(L("L_sk%d:" % n))
def one_lane(X, t, tag=None):
    X.append(I("s_mov_b64 exec, 1")); X.append(I(t, tag)); X.append(I("s_mov_b64 exec, -1"))

def p4_voffs(a, va, vb, stride, t):
    a("v_lshrrev_b32 v%d, 3, v1" % t)
    a("v_and_b32 v%d, 2, v%d" % (t + 1, t)); a("v_lshlrev_b32 v%d, 1, v%d" % (t + 1, t + 1))
    a("v_and_b32 v%d, 7, v1" % (t + 2)); a("v_xor_b32 v%d, v%d, v%d" % (t + 2, t + 2, t + 1))
    a("v_mul_u32_u24 v%d, %d, v%d" % (t, stride, t))
    a("v_lshl_add_u32 v%d, v%d, 4, v%d" % (va, t + 2, t))
    a("v_xor_b32 v%d, 32, v%d" % (vb, va))
def p2_voffs(a, va, vb, stride, t):
    a("v_lshrrev_b32 v%d, 2, v1" % t)
    a("v_and_b32 v%d, 3, v1" % (t + 2)); a("v_lshrrev_b32 v%d, 4, v1" % (t + 1)); a("v_and_b32 v%d, 2, v%d" % (t + 1, t + 1)); a("v_xor_b32 v%d, v%d, v%d" % (t + 2, t + 2, t + 1))
    a("v_mul_u32_u24 v%d, %d, v%d" % (t, stride, t))
    a("v_lshl_add_u32 v%d, v%d, 4, v%d" % (va, t + 2, t))
    a("v_mov_b32 v%d, v%d" % (vb, va))
def ident(a, dst, t):
    a("v_and_b32 v%d, 3, v1" % t)
    a("v_and_b32 v%d, 1, v1" % (t + 1)); a("v_lshlrev_b32 v%d, 4, v%d" % (t + 1, t + 1)); a("v_mov_b32 v%d, 0x3f80" % (t + 2))
    a("v_lshlrev_b32 v%d, v%d, v%d" % (t + 1, t + 1, t + 2))
    a("v_cmp_gt_u32 vcc, 2, v%d" % t)
    a("v_cndmask_b32 v%d, 0, v%d, vcc" % (dst, t + 1)); a("v_sub_u32 v%d, v%d, v%d" % (dst + 1, t + 1, dst))

X_V = 48
def prologue():
    P = []; a = lambda t, tag=None: P.append(I(t, tag))
    a("s_cmp_ge_u32 s2, 256")
    a("s_cbranch_scc1 L_exit")
    a("s_load_dwordx2 %s, s[0:1], 0" % s(SX, 2)); a("s_load_dwordx2 %s, s[0:1], 8" % s(SQKV, 2))
    if CFG["probe"]: a("s_memrealtime s[4:5]")
    if CFG["light"]: a("s_memtime %s" % s(sTM, 2)); a("s_memrealtime s[4:5]")
    if CFG["stamps"]:
        a("s_memtime %s" % s(sTM, 2)); a("s_memrealtime s[4:5]")
    a("s_lshr_b32 s%d, s2, 3" % sSH)
    a("s_getpc_b64 %s" % s(sTB, 2)); P.append(L("L_pc:"))
    if CFG["codepf"]:
        a("s_mul_i32 s%d, s%d, 24" % (sT0, sSH))
        a("v_add_u32 v3, s%d, v0" % sT0); a("v_lshlrev_b32 v3, 7, v3"); a("v_min_u32 v3, L_tab-L_pc+252, v3")
        a("v_cmp_gt_u32 vcc, 24, v0"); a("s_and_saveexec_b64 s[48:49], vcc"); a("s_cbranch_execz L_nopf")
        P.append(L("    global_load_dword v%d, v3, %s" % (X_V + 5, s(sTB, 2))))
        P.append(L("L_nopf:")); a("s_mov_b64 exec, -1")
    a("v_lshrrev_b32 v2, 6, v0")
    a("v_and_b32 v1, 63, v0")
    a("v_readfirstlane_b32 s%d, v2" % sW)
    a("s_and_b32 s%d, s2, 7" % sT5)
    a("s_lshr_b32 s%d, s%d, 4" % (sTY, sSH))
    if CFG["map"] == 48:
        a("s_and_b32 s%d, s%d, 3" % (sT3, sSH)); a("s_lshl_b32 s%d, s%d, 1" % (sXR, sT3))
        a("s_lshr_b32 s%d, s%d, 1" % (sT2, sT5)); a("s_lshl_b32 s%d, s%d, 2" % (sT2, sT2)); a("s_add_u32 s%d, s%d, s%d" % (sI, sT2, sT3))
        a("s_lshr_b32 s%d, s%d, 2" % (sR1, sSH))
        a("s_and_b32 s%d, s%d, 1" % (sT2, sT5)); a("s_lshl_b32 s%d, s%d, 2" % (sT2, sT2)); a("s_and_b32 s%d, s%d, 3" % (sT3, sR1)); a("s_add_u32 s%d, s%d, s%d" % (sGR, sT2, sT3))
    else:
        a("s_and_b32 s%d, s%d, 7" % (sXR, sSH))
        a("s_lshr_b32 s%d, s%d, 2" % (sT2, sT5)); a("s_lshl_b32 s%d, s%d, 3" % (sT2, sT2)); a("s_add_u32 s%d, s%d, s%d" % (sI, sT2, sXR))
        a("s_lshr_b32 s%d, s%d, 3" % (sT3, sSH)); a("s_lshl_b32 s%d, s%d, 1" % (sR1, sT3))
        a("s_and_b32 s%d, s%d, 3" % (sT2, sT5)); a("s_lshl_b32 s%d, s%d, 1" % (sT2, sT2)); a("s_and_b32 s%d, s%d, 1" % (sT3, sT3)); a("s_add_u32 s%d, s%d, s%d" % (sGR, sT2, sT3))
    if CFG["latin"]: a("s_add_u32 s%d, s%d, s%d" % (sR1, sR1, sXR)); a("s_and_b32 s%d, s%d, 7" % (sR1, sR1))
    a("s_mov_b32 s%d, 2097152" % (SX + 2)); a("s_mov_b32 s%d, 0x20000" % (SX + 3))
    X = []; x = lambda t, tag=None: X.append(I(t, tag))
    x("v_lshrrev_b32 v4, 3, v1"); x("v_lshrrev_b32 v5, 4, v1"); x("v_and_b32 v6, 7, v1"); x("v_xor_b32 v5, v5, v6")
    x("v_lshlrev_b32 v4, 10, v4"); x("v_lshl_add_u32 v%d, v5, 4, v4" % X_V)
    x("v_xor_b32 v4, 64, v%d" % X_V)
    x("v_add_u32 v%d, 7168, v4" % (X_V + 1)); x("v_add_u32 v%d, 14336, v%d" % (X_V + 2, X_V)); x("v_add_u32 v%d, 21504, v4" % (X_V + 3))
    x("s_and_b32 s%d, s%d, 3" % (sT0, sW)); x("s_lshl_b32 s%d, s%d, 12" % (sXL, sT0)); x("s_add_u32 s%d, s%d, %d" % (sXL, sXL, STG))
    x("s_lshl_b32 s%d, s%d, 15" % (sT0, sT0)); x("s_lshl_b32 s%d, s%d, 17" % (sXB, sI)); x("s_add_u32 s%d, s%d, s%d" % (sXB, sXB, sT0))
    x("s_cmp_lt_u32 s%d, 4" % sW); x("s_cbranch_scc1 L_nox")
    x("s_waitcnt lgkmcnt(0)")
    xline(x, 0); xline(x, 1)
    raw(P, X); P.append(L("L_nox:"))
    if CFG["stamps"]:
        a("v_mov_b32 v%d, 0" % H_STAMP); a("v_mov_b32 v%d, 0" % H_STAMP2); P.append(W(lg="all"))
    stamp_to(P, 0, H_STAMP2)
    for b, off in ((SPHI, 16), (SWS, 80), (SG, 40), (SU, 48), (SWO, 24), (SWD, 56), (SOUT, 64), (SDBG, 72)):
        a("s_load_dwordx2 %s, s[0:1], %d" % (s(b, 2), off))
    for b, n in ((SQKV, 1572864), (SPHI, 16384), (SWO, 524288), (SG, 1835008), (SU, 1835008), (SWD, 1835008), (SOUT, 2097152), (SDBG, 256), (SWS, WS_BYTES)):
        a("s_mov_b32 s%d, %d" % (b + 2, n)); a("s_mov_b32 s%d, 0x20000" % (b + 3))
    a("s_lshl_b32 s%d, s%d, 7" % (sKC, sGR)); a("s_lshl_b32 s%d, s%d, 6" % (sT0, sTY)); a("s_add_u32 s%d, s%d, s%d" % (sKC, sKC, sT0)); a("s_add_u32 s%d, s%d, 1024" % (sKC, sKC))
    if CFG["map2"] == 48:
        a("s_lshr_b32 s%d, s%d, 2" % (sCT, sSH)); a("s_and_b32 s%d, s%d, 3" % (sT3, sSH))
        a("s_lshl_b32 s%d, s%d, 2" % (sT2, sT5)); a("s_add_u32 s%d, s%d, s%d" % (sTT, sT2, sT3))
        a("s_lshl_b32 s%d, s%d, 1" % (sT3, sT3)); a("s_add_u32 s%d, s%d, s%d" % (sR2, sT3, sCT))
    else:
        a("s_lshr_b32 s%d, s%d, 3" % (sT3, sSH)); a("s_and_b32 s%d, s%d, 1" % (sT2, sT5)); a("s_lshl_b32 s%d, s%d, 2" % (sT2, sT2)); a("s_add_u32 s%d, s%d, s%d" % (sCT, sT2, sT3))
        a("s_and_b32 s%d, s%d, 7" % (sT1, sSH)); a("s_lshr_b32 s%d, s%d, 1" % (sT2, sT5)); a("s_lshl_b32 s%d, s%d, 3" % (sT2, sT2)); a("s_add_u32 s%d, s%d, s%d" % (sTT, sT2, sT1))
        a("s_and_b32 s%d, s%d, 1" % (sT3, sT3)); a("s_lshl_b32 s%d, s%d, 1" % (sT3, sT3)); a("s_add_u32 s%d, s%d, s%d" % (sT3, sT3, sTY))
        if CFG["lead"]: a("s_mov_b32 s%d, s%d" % (sLD, sT3)); a("s_mov_b32 s%d, s%d" % (sR2, sT1))
        else: a("s_lshl_b32 s%d, s%d, 1" % (sT3, sT3)); a("s_add_u32 s%d, s%d, s%d" % (sR2, sT3, sT1))
    a("s_and_b32 s%d, s%d, 1" % (sW1, sW))
    a("s_mov_b32 s%d, 0x%x" % (sL2E, LOG2E))
    a("s_add_u32 s%d, s%d, L_tab-L_pc" % (sTB, sTB)); a("s_addc_u32 s%d, s%d, 0" % (sTB + 1, sTB + 1))
    P.append(W(lg="all"))
    a("s_cmp_lt_u32 s%d, 4" % sW); a("s_cbranch_scc1 L_comp")
    a("s_cmp_lt_u32 s%d, 6" % sW); a("s_cbranch_scc1 L_dma")
    return P

def xline(a, j):
    a("s_add_u32 s%d, s%d, %d" % (sT0, sR1, j)); a("s_and_b32 s%d, s%d, 7" % (sT0, sT0)); a("s_lshl_b32 s%d, s%d, 7" % (sT0, sT0)); a("s_add_u32 s%d, s%d, s%d" % (sT0, sT0, sXB))
    a("s_add_u32 m0, s%d, %d" % (sXL, j * 16384))
    for p in range(4): a("buffer_load_dwordx4 v%d, %s, s%d offen offset:%d lds" % (X_V + p, srd(SX), sT0, p * 1024), ("x", j))
def xstages(P, extra):
    a = lambda t, tag=None: P.append(I(t, tag))
    xline(a, 2); xline(a, 3)
    for j in range(4):
        P.append(W(vm=[("x", 2 * j + 1)]))
        a("s_barrier")
        if j == 0: stamp_to(P, 2, H_STAMP2)
        if j < 2: xline(a, 2 * j + 4); xline(a, 2 * j + 5)
        if j in extra: extra[j]()

def fcols(a, ty):
    if ty == 0:
        a("s_lshl_b32 s%d, s%d, 7" % (sKS, sGR)); a("s_add_u32 s%d, s%d, 64" % (sKS + 1, sKS))
    else:
        a("s_mul_i32 s%d, s%d, 96" % (sT0, sGR)); a("s_add_u32 s%d, s%d, 1024" % (sT0, sT0))
        a("s_and_b32 s%d, s%d, 1" % (sT1, sGR)); a("s_lshl_b32 s%d, s%d, 5" % (sT2, sT1))
        a("s_add_u32 s%d, s%d, s%d" % (sKS, sT0, sT2))
        a("s_xor_b32 s%d, s%d, 1" % (sT1, sT1)); a("s_lshl_b32 s%d, s%d, 6" % (sT1, sT1))
        a("s_add_u32 s%d, s%d, s%d" % (sKS + 1, sT0, sT1))

def clear_low(a, used):
    for k in range(2, 64):
        if k not in used: a("v_mov_b32 v%d, 0" % k)

def lds_spin(nm, va, vd, nap):
    X = ["L_spin_%s:" % nm, "    s_mov_b32 s%d, 0" % sSPIN, "L_spl_%s:" % nm]
    if nap: X.append("    s_sleep %d" % nap)
    X += ["    ds_read_b32 v%d, v%d" % (vd, va), "    s_add_u32 s%d, s%d, 1" % (sSPIN, sSPIN), "    s_waitcnt lgkmcnt(0)",
          "    s_cmp_ge_u32 s%d, 0x1000000" % sSPIN, "    s_cbranch_scc1 L_spr_%s" % nm,
          "    v_cmp_gt_u32 vcc, s%d, v%d" % (sSPIN + 1, vd), "    s_cbranch_vccnz L_spl_%s" % nm, "L_spr_%s:" % nm, "    s_setpc_b64 %s" % s(sRET, 2)]
    return X
def count_wait(P, vfl, vd, off, want):
    n = newlbl()
    P.append(W(lg="all"))
    for t in ["    s_mov_b32 s%d, 0" % sSPIN, "L_cw%d:" % n, "    ds_read_b32 v%d, v%d offset:%d" % (vd, vfl, off), "    s_add_u32 s%d, s%d, 1" % (sSPIN, sSPIN),
              "    s_waitcnt lgkmcnt(0)", "    v_cmp_le_u32 vcc, %d, v%d" % (want, vd), "    s_cbranch_vccnz L_cx%d" % n, "    s_sleep %d" % CFG["dnap"],
              "    s_cmp_lt_u32 s%d, 0x1000000" % sSPIN, "    s_cbranch_scc1 L_cw%d" % n, "L_cx%d:" % n]: P.append(L(t))

def sload(base, soff, off, sdst):
    return "s_load_dword s%d, %s, %s glc" % (sdst, s(base, 2), ("s%d offset:%d" % (soff, off)) if soff is not None else "%d" % off)
def sgate(P, soff, off, sdst, want, base=None):
    n = newlbl()
    P.append(W(lg="all"))
    P.append(I("s_cmp_eq_u32 s%d, %d" % (sdst, want))); P.append(I("s_cbranch_scc1 L_ok%d" % n))
    X = ["    s_mov_b32 s%d, 0" % sSPIN, "L_spin%d:" % n]
    if CFG["sleep"]: X.append("    s_sleep %d" % CFG["sleep"])
    X += ["    " + sload(SWS if base is None else base, soff, off, sdst), "    s_add_u32 s%d, s%d, 1" % (sSPIN, sSPIN),
          "    s_waitcnt lgkmcnt(0)", "    s_cmp_eq_u32 s%d, %d" % (sdst, want), "    s_cbranch_scc1 L_ok%d" % n,
          "    s_cmp_lt_u32 s%d, 0x80000" % sSPIN, "    s_cbranch_scc1 L_spin%d" % n, "L_ok%d:" % n]
    for t in X: P.append(L(t))

def gate(P, vaddr, srdb, off, tag, vdst, want, slow=None):
    n = newlbl()
    P.append(W(lg=[tag]) if tag == "init" else W(vm=[tag]))
    P.append(I("v_cmp_eq_u32 vcc, %d, v%d" % (want, vdst)))
    P.append(I("s_cbranch_vccnz L_ok%d" % n))
    if slow: raw(P, slow)
    X = ["    s_mov_b32 s%d, 0" % sSPIN, "L_spin%d:" % n]
    if CFG["sleep"]: X.append("    s_sleep %d" % CFG["sleep"])
    X += ["    buffer_load_dword v%d, v%d, %s, 0 offen offset:%d sc1" % (vdst, vaddr, srd(srdb), off), "    s_add_u32 s%d, s%d, 1" % (sSPIN, sSPIN),
          "    s_waitcnt vmcnt(0)", "    v_cmp_eq_u32 vcc, %d, v%d" % (want, vdst), "    s_cbranch_vccnz L_ok%d" % n,
          "    s_cmp_lt_u32 s%d, 0x80000" % sSPIN, "    s_cbranch_scc1 L_spin%d" % n, "L_ok%d:" % n]
    for t in X: P.append(L(t))

C_XA, N_ONES, N_SQ = ACC + 16, ACC + 20, ACC + 24
N_T, N_CM, N_ID, N_R, N_DL, N_TK = ACC + 32, ACC + 48, ACC + 56, ACC + 58, ACC + 62, ACC + 63
C_A2, C_B2, C_OUT, C_RO = 25, 28, 31, 0
C_FV, C_HC, C_FL, C_ONE, C_DV, C_CM = 16, 20, 21, 22, 23, 24
MM = "v_mfma_f32_16x16x32_bf16"
def compute_setup(ty):
    P = []; a = lambda t, tag=None: P.append(I(t, tag))
    t = list(range(32, 48))
    tk, G, r, c, g0, g1 = t[0:6]
    a("v_and_b32 v%d, 15, v1" % tk); a("v_lshrrev_b32 v%d, 4, v1" % G); a("v_and_b32 v%d, 1, v%d" % (g0, G)); a("v_lshrrev_b32 v%d, 5, v1" % g1)
    a("s_lshl_b32 s%d, s%d, 12" % (sT1, sW)); a("s_add_u32 s%d, s%d, %d" % (sT1, sT1, STG))
    a("v_lshlrev_b32 v%d, 7, v%d" % (t[6], tk)); a("v_add_u32 v%d, s%d, v%d" % (t[7], sT1, t[6]))
    a("v_lshrrev_b32 v%d, 1, v%d" % (t[8], tk)); a("v_xor_b32 v%d, v%d, v%d" % (t[8], t[8], G))
    a("v_lshl_add_u32 v%d, v%d, 4, v%d" % (C_XA, t[8], t[7])); a("v_xor_b32 v%d, 64, v%d" % (C_XA + 1, C_XA))
    for k in range(2): a("v_add_u32 v%d, 0x10000, v%d" % (C_XA + 2 + k, C_XA + k)); a("v_mov_b32 v%d, 0x3f803f80" % (N_ONES + k))
    ident(a, N_ID, t[13])
    for j in range(3): a("v_cmp_eq_u32 %s, %d, v%d" % (s(sMK + 2 * j, 2), j + 1, t[13]))
    a("v_mov_b32 v%d, %d" % (C_FL, FL)); a("v_mov_b32 v%d, 1" % C_ONE); a("s_lshl_b32 s%d, s%d, 1" % (sT4, sI)); a("s_lshr_b32 s%d, s%d, 1" % (sT3, sW)); a("s_add_u32 s%d, s%d, s%d" % (sT4, sT4, sT3))
    a("s_lshl_b32 s%d, s%d, 9" % (sT4, sT4)); a("v_mov_b32 v%d, s%d" % (C_CM, sT4))
    a("v_and_b32 v18, 1, v1"); a("v_lshlrev_b32 v18, 8, v18"); a("v_add_u32 v18, %d, v18" % (FL + F_LAND))
    a("s_lshl_b32 s%d, s%d, 8" % (sT4, sW)); a("s_add_u32 m0, s%d, %d" % (sT4, FL + F_DONE))
    a("s_lshl_b32 s%d, s%d, 5" % (sT4, sW)); a("v_and_b32 v%d, 31, v1" % N_TK); a("v_add_u32 v%d, s%d, v%d" % (N_TK, sT4, N_TK))
    a("v_bfe_u32 v%d, v1, 2, 2" % r); a("v_and_b32 v%d, 3, v1" % c); a("v_lshlrev_b32 v%d, 3, v%d" % (c, c))
    a("v_lshl_add_u32 v%d, v%d, 11, v%d" % (t[8], G, c)); a("v_lshl_add_u32 v%d, v%d, 7, v%d" % (t[8], r, t[8]))
    a("v_and_b32 v%d, 2, v%d" % (t[9], r)); a("v_xor_b32 v%d, v%d, v%d" % (t[9], t[9], g0))
    a("v_lshl_add_u32 v2, v%d, 5, v%d" % (t[9], t[8]))
    for k in range(1, 4): a("v_xor_b32 v%d, %d, v2" % (2 + k, 32 * k))
    for k in range(4): a("v_add_u32 v%d, 0x10000, v%d" % (6 + k, 2 + k))
    a("v_lshl_add_u32 v%d, v%d, 11, v%d" % (t[8], g1, c)); a("v_lshl_add_u32 v%d, v%d, 6, v%d" % (t[8], r, t[8]))
    a("v_mul_u32_u24 v%d, 544, v%d" % (t[9], g0)); a("v_add_u32 v10, v%d, v%d" % (t[8], t[9])); a("v_xor_b32 v11, 32, v10")
    for k in range(2): a("v_add_u32 v%d, 0x10000, v%d" % (12 + k, 10 + k))
    a("s_lshl_b32 s%d, s%d, 13" % (sT0, sW)); a("s_add_u32 s%d, s%d, %d" % (sT0, sT0, EX))
    a("v_lshlrev_b32 v15, 9, v%d" % g0); a("v_lshl_add_u32 v15, v%d, 4, v15" % tk); a("v_lshl_add_u32 v15, v%d, 3, v15" % g1); a("v_add_u32 v15, s%d, v15" % sT0)
    a("v_lshlrev_b32 v%d, 4, v1" % t[11])
    a("s_lshl_b32 s%d, s%d, 2" % (sT0, sI)); a("s_add_u32 s%d, s%d, s%d" % (sT0, sT0, sW)); a("s_mul_i32 s%d, s%d, %d" % (sT0, sT0, 147456))
    a("s_add_u32 s%d, s%d, %d" % (sT0, sT0, WS_HO)); a("v_add_u32 v14, s%d, v%d" % (sT0, t[11]))
    fcols(a, ty)
    a("s_lshl_b32 s%d, s%d, 6" % (sKS, sKS)); a("s_lshl_b32 s%d, s%d, 6" % (sKS + 1, sKS + 1))
    a("s_lshr_b32 s%d, s%d, 1" % (sT0, sW))
    a("s_lshl_b32 s%d, s%d, 13" % (sT2, sT0)); a("s_add_u32 s%d, s%d, 2048" % (sT2, sT2))
    a("v_add_u32 v%d, s%d, v%d" % (C_A2, sT2, t[11])); a("v_add_u32 v%d, 0x10000, v%d" % (C_A2 + 1, C_A2)); a("v_add_u32 v%d, 0x20000, v%d" % (C_A2 + 2, C_A2))
    u = t[12]
    a("v_bfe_u32 v%d, v1, 3, 2" % u); a("s_lshl_b32 s%d, s%d, 1" % (sT4, sW1)); a("v_xor_b32 v%d, s%d, v%d" % (u, sT4, u)); a("v_lshl_add_u32 v%d, v%d, 5, v%d" % (C_B2, u, c))
    a("v_lshrrev_b32 v%d, 2, v1" % u); a("v_lshl_add_u32 v%d, v%d, 7, v%d" % (C_B2, u, C_B2))
    a("v_add_u32 v%d, 0x10000, v%d" % (C_B2 + 1, C_B2)); a("v_add_u32 v%d, 0x20000, v%d" % (C_B2 + 2, C_B2))
    a("s_lshl_b32 s%d, s%d, 5" % (sT3, sT0)); a("v_add_u32 v%d, s%d, v%d" % (u, sT3, tk)); a("v_lshlrev_b32 v%d, 2, v%d" % (C_RO, u))
    a("s_lshl_b32 s%d, s%d, 6" % (sT4, sW1))
    a("v_lshlrev_b32 v17, 7, v%d" % u); a("v_lshl_add_u32 v17, v%d, 3, v17" % G); a("v_add_u32 v17, s%d, v17" % sT4)
    a("s_lshl_b32 s%d, s%d, 16" % (sT2, sTT)); a("s_lshl_b32 s%d, s%d, 7" % (sT3, sCT)); a("s_add_u32 s%d, s%d, s%d" % (sT3, sT3, sT4)); a("s_add_u32 s%d, s%d, s%d" % (sT3, sT3, sT2))
    a("v_lshlrev_b32 v%d, 10, v%d" % (u, u)); a("v_lshl_add_u32 v%d, v%d, 5, v%d" % (u, g0, u)); a("v_lshl_add_u32 v%d, v%d, 4, v%d" % (u, g1, u)); a("v_add_u32 v%d, s%d, v%d" % (C_OUT, sT3, u))
    return P

def centre(a, k0, k1):
    def cen(k, h): a("v_mfma_f32_4x4x4_16b_bf16 %s, %s, %s, %s" % (v(N_T + 8 * (k & 1) + 4 * h, 4), v(N_ID, 2), v(XR + 4 * k + 2 * h, 2), v(N_CM + 4 * (k & 1), 4)))
    cen(k0, 0); cen(k0, 1); cen(k0 + 1, 0)
    for k in range(k0, k1):
        for h in range(2):
            kn, hn = k + (h + 3) // 2, (h + 3) & 1
            if kn < k1: cen(kn, hn)
            for j in (2 * h, 2 * h + 1): a("v_cvt_pk_bf16_f32 v%d, v%d, v%d" % (XR + 4 * k + j, N_T + 8 * (k & 1) + 2 * j, N_T + 8 * (k & 1) + 2 * j + 1))
def centre_sub():
    P = []; centre(lambda t: P.append(I(t)), 0, 24); P.append(I("s_setpc_b64 %s" % s(sRET, 2)))
    return ["L_centre:"] + finalize(P)[0]
def fold4(x, p, q):
    x("v_permlane16_swap_b32 v%d, v%d" % (p, q)); x("v_add_f32 v%d, v%d, v%d" % (p, p, q))
    x("v_mov_b32 v%d, v%d" % (q, p)); x("v_permlane32_swap_b32 v%d, v%d" % (p, q)); x("v_add_f32 v%d, v%d, v%d" % (p, p, q))

def compute(ty):
    P = compute_setup(ty); a = lambda t, tag=None: P.append(I(t, tag))
    CH = checks(ty)
    ops = []; queue = []
    sl = slabs_of(ty); gu_seen = 0; ex_seen = 0
    firstuse = {}; epi = []; late_w = []
    def pair(acc, fa, fb2, zero):
        return ["%s %s, %s, %s, %s" % (MM, v(acc + 4 * h, 4), v(fa, 4), v(fb2 + 4 * h, 4), "0" if zero else v(acc + 4 * h, 4)) for h in range(2)]
    for n, (pi, kind, sg) in enumerate(sl):
        e, tiles = PH[ty][pi][1:]
        order = tiles if sg == 0 else sorted(tiles)
        nk = 2 if kind == "P4" else 4
        last = sg == (7 if kind == "P4" else 3)
        jn = CFG["join"] if kind == "P4" else 1
        if sg > 7 - jn and not last: continue
        for t in order:
            if sg == 0: firstuse[(pi, t)] = len(ops)
            for back in (range(jn - 1, -1, -1) if last else (0,)):
                slot = slot_of(n - back); win = slot >> 2; base = (slot & 3) * SLOT
                for u in range(nk):
                    for mat in range(2):
                        m = len(ops); fb = WF + 4 * (m & 7)
                        if kind == "P4": ar, off, dq = 2 + 4 * win + t, base + u * 8192 + mat * 1024, 512
                        else: ar, off, dq = 10 + 2 * win + (t & 1), base + u * 4096 + mat * 1024, 256
                        ops.append(dict(slab=n - back, reads=[("ds_read_b64_tr_b16 %s, v%d offset:%d" % (v(fb, 2), ar, off), ("f", m)),
                                                              ("ds_read_b64_tr_b16 %s, v%d offset:%d" % (v(fb + 2, 2), ar, off + dq), ("f", m))],
                                        la=CFG["LA"], mfma=pair(ACC + 16 * t + 8 * mat, fb, XR + 8 * ((sg - back) * nk + u), sg == 0 and u == 0)))
            if last:
                A = ACC + 16 * t; E = []; hold = [t]
                if e == "gu":
                    D = ACC + 16 * (t & ~1) + 8; hold = [t, t & ~1]
                    for j in range(8): E.append(I("v_mul_f32 v%d, v%d, v%d" % (A + j, A + j, A + j + 8)))
                    for j in range(4):
                        E.append(I("v_cvt_pk_bf16_f32 v%d, v%d, v%d" % (D + 4 * (j >> 1) + 2 * (t & 1) + (j & 1), A + 2 * j, A + 2 * j + 1)))
                        if t & 1 and j & 1:
                            E.append(I("buffer_store_dwordx4 %s, v14, %s, s%d offen offset:%d %s" % (v(D + 4 * (j >> 1), 4), srd(SWS), sKS + gu_seen, ((t - 1 if kind == "P4" else 0) + (j >> 1)) * 1024, CFG["hfl"]), ("h", gu_seen)))
                else:
                    for j in range(4):
                        for k in range(2): E.append(I("v_cvt_pk_bf16_f32 v%d, v%d, v%d" % (A + 4 * j + k, A + 4 * j + 2 * k, A + 4 * j + 2 * k + 1)))
                        E.append(I("ds_write_b64 v15, %s offset:%d" % (v(A + 4 * j, 2), ((t & 1) + 2 * (e == "q")) * 2048 + (j >> 1) * 1024 + (j & 1) * 256)))
                    if t == order[-1]:
                        g = []; one_lane(g, "ds_add_u32 v%d, v%d offset:%d" % (C_FL, C_ONE, F_EX + 4 * ex_seen)); E.append(g); ex_seen += 1
                if CFG["nods"]: E = [x_ for x_ in E if not (isinstance(x_, I) and x_.t.startswith("ds_write"))]
                if CFG["nost"]: E = [(M(x_.tag) if isinstance(x_, I) and x_.t.startswith("buffer_store") else x_) for x_ in E]
                if CFG["stspread"] and e == "gu" and t & 1:
                    st_ = [x_ for x_ in E if isinstance(x_, I) and x_.t.startswith("buffer_store")]
                    nst = 4 if kind == "P4" else 2; endp = (len(ops) + 15) // 16 * 16
                    for q_, x_ in enumerate(st_):
                        idx = (t - 1 if kind == "P4" else 0) + q_
                        if idx < nst - 1: E.remove(x_); epi.append((endp + 4 - (nst - 1 - idx) * CFG["stspread"], 99, [], [x_]))
                if CFG["wrat"] >= 0 and e != "gu":
                    wr = [x_ for x_ in E if not (isinstance(x_, I) and x_.t.startswith("v_"))]
                    E = [x_ for x_ in E if x_ not in wr]
                    late_w.append(((len(ops) + 15) // 16 * 16 + CFG["wrat"], pi, hold, [sum([x_ if isinstance(x_, list) else [x_] for x_ in wr], [])]))
                if e == "gu" and t == 1 and jn > 1: late_w.append((len(ops) + CFG["st2"], pi, hold, [E.pop()]))
                epi.append((len(ops), pi, hold, E))
        if last and e == "gu":
            kind_ = (C_H1B if ty else C_H1A) if gu_seen == 0 else C_H2
            g1 = [W(vm=[("h", gu_seen)])]; one_lane(g1, "buffer_atomic_add v%d, v%d, %s, 0 offen offset:%d sc1" % (C_ONE, C_CM, srd(SWS), kind_ * 128))
            epi.append((len(ops) + 6 + CFG["hwait1" if gu_seen == 0 else "hwait2"], 99, [], [g1]))
            gu_seen += 1
    n1 = len(ops)
    HB = XR; RES = XR + 32; R2 = XR + 40
    Y, S_ = XR + 48, XR + 64
    for n in range(20, 56):
        slot = slot_of(n); win = slot >> 2; base = (slot & 3) * SLOT
        for kk in range(4):
            u, nb = kk >> 1, kk & 1
            m = len(ops); fb = WF + 4 * (m & 7); hb = HB + 8 * ((m >> 1) & 3); br = (2 if nb else C_B2) + win
            blk = (lambda q: 2 * u + q) if n < 48 else (lambda q: u + 2 * q)
            rd = [("ds_read_b64_tr_b16 %s, v%d offset:%d" % (v(fb + 2 * q, 2), br, base + blk(q) * 4096), ("f", m)) for q in range(2)]
            if not nb: rd += [("ds_read_b128 %s, v%d offset:%d" % (v(hb + 4 * h, 4), C_A2 + win, base + u * 4096 + h * 1024), ("f", m)) for h in range(2)]
            ops.append(dict(slab=n, reads=rd, la=4 if n > 20 else kk + 1, mfma=pair((Y if n < 48 else S_) + 8 * nb, fb, hb, n in (20, 48) and u == 0)))
    for k in range(3): queue.append((n1 - 3, n1 - 1, I("v_xor_b32 v%d, 32, v%d" % (2 + k, C_B2 + k))))
    X = []; x = lambda t: X.append(I(t)); r = N_R
    fold4(x, r, r + 1)
    x("v_mul_f32 v%d, 0x3b000000, v%d" % (r, r)); x("v_fma_f32 v%d, -v%d, v%d, v%d" % (r, N_DL, N_DL, r)); x("v_max_f32 v%d, 0, v%d" % (r, r))
    def rnd(): x("v_cvt_pk_bf16_f32 v%d, v%d, v%d" % (r + 1, r, r)); x("v_and_b32 v%d, 0xffff0000, v%d" % (r, r + 1))
    rnd(); x("v_add_f32 v%d, 0x3727c5ac, v%d" % (r, r)); rnd(); x("v_sqrt_f32 v%d, v%d" % (r, r)); rnd()
    x("v_rcp_f32 v%d, v%d" % (r, r))
    x("v_lshl_add_u32 v%d, v%d, 1, v%d" % (r + 2, N_TK, C_FL)); x("v_lshl_add_u32 v%d, v%d, 2, v%d" % (r + 3, N_TK, C_FL))
    x("ds_write_b16 v%d, v%d offset:%d" % (r + 2, r + 1, LSD - FL)); x("ds_write_b32 v%d, v%d offset:%d" % (r + 3, r, LRS - FL))
    for j, it in enumerate(X[:-2]): queue.append((12 + j, 50, it))
    for it in X[-2:]:
        if not CFG["nods"]: queue.append((CFG["rsat"], 67, it))
    if ty == 0:
        g = []
        only(g, ["s_cmp_lg_u32 s%d, 0" % sGR], [I("s_lshl_b32 s%d, s%d, 9" % (sT4, sI)), I("s_add_u32 s%d, s%d, %d" % (sT4, sT4, WS_RS - FL)), I("s_mov_b32 exec_hi, 0"),
                                               I("buffer_store_dword v%d, v%d, %s, s%d offen sc1" % (r, r + 3, srd(SWS), sT4)), I("s_mov_b64 exec, -1")])
        queue.append((46, 60, g))
    queue.append((94, 96, I("ds_read_b32 v%d, v%d offset:%d" % (C_HC, C_FL, F_INIT), "init")))
    g = []; gate(g, C_DV, SDBG, 0, "init", C_HC, 1, slow=[I("v_mov_b32 v%d, 0" % C_DV)]); queue.append((100, 102, g))
    for e0, pi, hold, E in epi + late_w:
        dl = min([x_ for (p2, t2), x_ in firstuse.items() if p2 > pi and t2 in hold] + [10 ** 9]) - 1
        for it in E: queue.append((e0, dl, it))
    G = XR + 80; XF = XR + 96; E = []
    for j in range(4): E.append(I("ds_read_b64 %s, v17 offset:%d" % (v(RES + 2 * j, 2), LX + (j >> 1) * 32 + (j & 1) * 2048), "res"))
    for h in range(2): E.append(I("ds_read_b32 v%d, v%d offset:%d" % (R2 + h, C_RO, LR2 + 64 * h), "res"))
    for j, it in enumerate(E): queue.append((n1 + 21 * 4 + j, 10 ** 9, it))
    E = [W(lg=["res"])]
    for h in range(2): E.append(I("v_mul_f32 v%d, v%d, v%d" % (R2 + h, R2 + h, R2 + h)))
    for h in range(2): E.append(I("v_mul_f32 v%d, s%d, v%d" % (R2 + 2 + h, sL2E, R2 + h)))
    for j in range(8):
        E.append(I("v_lshlrev_b32 v%d, 16, v%d" % (XF + 2 * j, RES + j))); E.append(I("v_and_b32 v%d, 0xffff0000, v%d" % (XF + 2 * j + 1, RES + j)))
    for it in E: queue.append((n1 + 24 * 4, 10 ** 9, it))
    E = []
    for j in range(16): E.append(I("v_mul_f32 v%d, v%d, v%d" % (G + j, R2 + 2 + ((j >> 2) & 1), Y + j)))
    for j in range(16): E.append(I("v_exp_f32 v%d, -v%d" % (G + j, G + j)))
    for j in range(16): E.append(I("v_mul_f32 v%d, v%d, v%d" % (Y + j, R2 + ((j >> 2) & 1), Y + j)))
    for j in range(16): E.append(I("v_add_f32 v%d, 1.0, v%d" % (G + j, G + j)))
    for j in range(16): E.append(I("v_rcp_f32 v%d, v%d" % (G + j, G + j)))
    for j in range(16): E.append(I("v_mul_f32 v%d, v%d, v%d" % (G + j, G + j, Y + j)))
    for it in E: queue.append((n1 + 28 * 4 + 1, 10 ** 9, it))
    queue.sort(key=lambda x_: x_[0])
    first = {}
    lastop = {}
    for m, o in enumerate(ops): first.setdefault(o["slab"], m); lastop[o["slab"]] = m
    fread = {first[n] - ops[first[n]]["la"] - (CFG["LAF"] if n <= 20 else 3): n for n in CH if n}
    lastdone = prev_user(55)
    def done(n):
        a("v_mov_b32 v%d, %d" % (C_DV, 4 * (n + 1))); a("global_load_lds_dword v%d, %s" % (C_DV, s(sTB, 2)))
    issued = 0; cur = -1
    def issue_reads(upto_fn):
        nonlocal issued, cur
        while issued < len(ops) and upto_fn(issued):
            o = ops[issued]
            if o["slab"] > cur:
                cur = o["slab"]
                if cur in CH:
                    lb = newlbl()
                    if cur >= CFG["inl"] or cur < 2:
                        a("s_cbranch_vccz L_cb%d" % lb)
                        raw(P, [I("s_movk_i32 s%d, %d" % (sSPIN + 1, CH[cur] + 1)), I("s_call_b64 %s, L_spin_c" % s(sRET, 2))]); P.append(L("L_cb%d:" % lb))
                    else:
                        a("s_cbranch_vccnz L_cs%d" % lb); P.append(L("L_cb%d:" % lb))
                        STUBS.extend(["L_cs%d:" % lb, "    s_movk_i32 s%d, %d" % (sSPIN + 1, CH[cur] + 1),
                                  "    s_call_b64 %s, L_spin_c" % s(sRET, 2), "    s_branch L_cb%d" % lb])
            for t, tag in o["reads"]: a(t, tag)
            issued += 1
    def cstamp(k):
        r = sPH + 2 * (k & 1)
        if k > 2:
            a("s_sub_u32 s%d, s%d, s%d" % (r, r, sTM)); a("v_writelane_b32 v19, s%d, %d" % (r, k - 2))
        P.append(L("    s_memtime %s" % s(r, 2)))
    SM = ACC
    a("s_mov_b32 s%d, 0" % (sSPIN + 1)); a("s_call_b64 %s, L_spin_c" % s(sRET, 2))
    for j in range(4):
        a("s_barrier")
        for k in range(8 * j, 8 * j + 8):
            a("ds_read_b128 %s, v%d offset:%d" % (v(XR + 4 * k, 4), C_XA + ((k >> 1) & 1) + 2 * (k >> 4), ((k >> 2) & 3) * 16384 + (k & 1) * 2048), ("xn", k))
        for k in range(8 * j, 8 * j + 8, 2):
            P.append(W(lg=[("xn", k + 1)]))
            if k == 30: a("s_barrier")
            for h in range(2):
                for sq in range(2):
                    for t in range(2):
                        xx = v(XR + 4 * (k + t) + 2 * h, 2); c = v((N_SQ if sq else SM) + 4 * t, 4)
                        a("v_mfma_f32_4x4x4_16b_bf16 %s, %s, %s, %s" % (c, xx if sq else v(N_ONES, 2), xx, "0" if (k, h) == (0, 0) else c))
    a("s_waitcnt vmcnt(0)")
    fold4(a, SM, SM + 4)
    a("v_mul_f32 v%d, 0xbb000000, v%d" % (N_DL, SM))
    a("v_cvt_pk_bf16_f32 v%d, v%d, v%d" % (SM, N_DL, N_DL)); a("v_mov_b32 v%d, v%d" % (SM + 1, SM)); a("v_permlane16_swap_b32 v%d, v%d" % (SM, SM + 1))
    for j in range(8): a("v_and_b32 v%d, 0xffff0000, v%d" % (N_CM + j, SM + (j >> 2)))
    if CFG["stamps"]: a("v_mov_b32 v19, 0"); stamp_to(P, 59, 19)
    c0 = CFG["cen0"]
    if c0 == 32: a("s_nop 1"); a("s_call_b64 %s, L_centre" % s(sRET, 2))
    elif c0 > 8: centre(a, 0, c0 - 8)
    stamp_to(P, 60, 19)
    a("ds_read_b32 v%d, v18" % C_FV, ("fl", 0))
    for j in range(3):
        for h in range(2): a("v_cndmask_b32 v%d, v%d, v%d, %s" % (N_R + h, N_R + h if j else N_SQ + 4 * h, N_SQ + 4 * h + j + 1, s(sMK + 2 * j, 2)))
    centre(a, c0 - 8, c0 - 4)
    P.append(W(lg=[("fl", 0)])); a("v_cmp_ge_u32 vcc, 0, v%d" % C_FV)
    issue_reads(lambda m: m < CFG["LA"])
    centre(a, c0 - 4, c0)
    stamp_to(P, 61, 19)
    qi = 0
    for m, o in enumerate(ops):
        w2 = CFG["wait2"] and m < n1
        if not w2: P.append(W(lg=[("f", m)]))
        elif m % 2 == 0: P.append(W(lg=[("f", m + 1)]))
        a(o["mfma"][0]); at = len(P)
        if m == n1 - 1: a(o["mfma"][1])
        if m == lastop[o["slab"]] and o["slab"] <= lastdone + 1 and marked(o["slab"]): done(o["slab"])
        LP = [0, 64, 192, n1 - 1, n1 + 32, n1 + 112]
        if CFG["light"] and m in LP:
            P.append(L("    s_memtime %s" % s(12 + 4 * LP.index(m), 2))); P.append(L("    s_memrealtime %s" % s(14 + 4 * LP.index(m), 2)))
        if CFG["probe"] and m == CFG["probeat"]: P.append(L("    s_memrealtime s[6:7]"))
        if m == n1 - 1:
            while queue[qi][0] <= n1 + 1:
                it = queue[qi][2]; P += it if isinstance(it, list) else [it]; qi += 1
        issue_reads(lambda k: k - ops[k]["la"] <= m)
        for n in range(1, 56):
            d = m - (first[n] - ops[first[n]]["la"])
            if d == -1 and n in CH:
                P.append(W(lg=[("fl", n)])); a("v_cmp_ge_u32 vcc, %d, v%d" % (CH[n], C_FV))
            if d == (2 if n <= 20 else 0) and CFG["stamps"] and not CFG["zoom"]: cstamp(n)
            if CFG["zoom"] and m == CFG["zoom"] + n * CFG["zstep"]: cstamp(n)
        if m in fread: a("ds_read_b32 v%d, v18" % C_FV, ("fl", fread[m]))
        rate = CFG["erate"] if m < n1 else 5
        cnt = 0
        while qi < len(queue) and queue[qi][0] <= m and cnt < rate:
            assert m <= queue[qi][1], ("filler past its deadline", ty, m, queue[qi][1])
            it = queue[qi][2]
            if isinstance(it, list): P += it; cnt += 2
            else: P.append(it)
            qi += 1; cnt += 1
        if m != n1 - 1:
            mid = P[at:]; k = 0
            while k < (len(mid) + 1) // 2 and isinstance(mid[k], I) and not mid[k].t.startswith("s_"): k += 1
            P.insert(at + k, I(o["mfma"][1]))
        if m % 16 == CFG["cenat"] and c0 + m // 16 * 8 < 32: centre(a, c0 + m // 16 * 8, c0 + m // 16 * 8 + 8)
    assert qi == len(queue)
    for j in range(16): a("v_fma_f32 v%d, v%d, v%d, v%d" % (G + j, S_ + j, G + j, XF + j))
    for j in range(8): a("v_cvt_pk_bf16_f32 v%d, v%d, v%d" % (XF + 4 * ((j >> 1) & 1) + 2 * (j >> 2) + (j & 1), G + 2 * j, G + 2 * j + 1))
    for h in range(2):
        for i in range(2): a("v_permlane16_swap_b32 v%d, v%d" % (XF + 4 * h + i, XF + 4 * h + 2 + i))
    if CFG["probe"]:
        lb = newlbl()
        if CFG["probeat"] < 0: a("s_memrealtime s[6:7]")
        P.append(W(lg="all")); a("s_sub_u32 s6, s6, s4")
        a("s_cmp_le_u32 s6, %d" % CFG["probe"]); a("s_cbranch_scc1 L_xp%d" % lb)
        for _ in range(6): a("s_sleep 127")
        P.append(L("L_xp%d:" % lb))
    a("s_movk_i32 s%d, 16384" % sT0)
    a("buffer_store_dwordx4 %s, v%d, %s, 0 offen%s" % (v(XF, 4), C_OUT, srd(SOUT), CFG["outfl"]))
    a("buffer_store_dwordx4 %s, v%d, %s, s%d offen%s" % (v(XF + 4, 4), C_OUT, srd(SOUT), sT0, CFG["outfl"]))
    if CFG["light"]:
        a("s_waitcnt vmcnt(0)"); a("s_memtime s[84:85]"); a("s_memrealtime s[86:87]"); P.append(W(lg="all")); a("v_mov_b32 v19, 0")
        for j, r_ in enumerate([sTM, 4] + list(range(12, 36, 2)) + [84, 86]): a("v_writelane_b32 v19, s%d, %d" % (r_, j))
        a("s_lshl_b32 s%d, s2, 10" % sT0); a("s_lshl_b32 s%d, s%d, 8" % (sT1, sW)); a("s_add_u32 s%d, s%d, s%d" % (sT0, sT0, sT1)); a("s_add_u32 s%d, s%d, %d" % (sT0, sT0, WS_ST))
        a("v_lshlrev_b32 v18, 2, v1"); a("buffer_store_dword v19, v18, %s, s%d offen" % (srd(SWS), sT0))
    if CFG["stamps"]:
        one_lane(P, "ds_add_u32 v%d, v%d offset:%d" % (C_FL, C_ONE, F_END))
        cstamp(56); cstamp(57); P.append(W(lg="all")); cstamp(58)
        a("s_lshl_b32 s%d, s2, 8" % sT0); a("s_add_u32 s%d, s%d, %d" % (sT0, sT0, WS_ST + 0x20000))
        a("v_lshlrev_b32 v18, 2, v1")
        a("s_cmp_lg_u32 s%d, %d" % (sW, CFG["stampw"])); a("s_cbranch_scc1 L_exit")
        a("buffer_store_dword v19, v18, %s, s%d offen" % (srd(SWS), sT0))
    a("s_endpgm")
    return P

D_P = 32
D_A, D_B, D_B2, D_TAB, D_FL, D_LA, D_ONE, D_ZERO, D_CC, D_POLL, D_LV = range(2, 13)
D_AT, D_POLL2, D_X, D_R, D_M = 13, 14, 15, 16, 18
D_DV = 28
D_TCH = 20
def phase_info(ty):
    return [(kind, 3584, SG, SU) if e == "gu" else (kind, 3072, SQKV, SQKV) for kind, e, _ in PH[ty]]
def dma_setup(ty):
    P = []; b = lambda t, tag=None: P.append(I(t, tag))
    t0, t1, t2, t3, u0, u1, u2 = range(64, 71)
    b("v_mov_b32 v%d, 0" % D_ZERO); b("v_mov_b32 v%d, 0" % D_TAB)
    b("v_mov_b32 v%d, 1" % D_ONE); b("v_mov_b32 v%d, %d" % (D_FL, FL))
    b("v_and_b32 v%d, 3, v1" % D_LA); b("v_lshlrev_b32 v%d, 8, v%d" % (D_LA, D_LA)); b("v_add_u32 v%d, %d, v%d" % (D_LA, FL + F_DONE, D_LA))
    b("s_lshl_b32 s%d, s%d, 8" % (sLM, sW1)); b("s_add_u32 s%d, s%d, %d" % (sLM, sLM, FL + F_LAND))
    b("s_lshl_b32 s%d, s%d, 9" % (sCC, sTT))
    if CFG["lead"] or not CFG["spoll"]: b("v_mov_b32 v%d, s%d" % (D_CC, sCC))
    P.append("cut")
    b("s_lshl_b32 s%d, s%d, 1" % (sT0, sTT)); b("s_add_u32 s%d, s%d, s%d" % (sT0, sT0, sW1))
    b("s_mul_i32 s%d, s%d, 147456" % (sT0, sT0)); b("s_add_u32 s%d, s%d, %d" % (sT0, sT0, WS_HO - 2048))
    if CFG["fakeA"]: b("s_lshr_b32 s%d, s%d, 3" % (sT0, sI)); b("s_lshl_b32 s%d, s%d, 20" % (sT0, sT0)); b("s_lshl_b32 s%d, s%d, 18" % (sT1, sW1)); b("s_add_u32 s%d, s%d, s%d" % (sT0, sT0, sT1))
    b("v_lshlrev_b32 v%d, 4, v1" % u0); b("v_add_u32 v%d, s%d, v%d" % (D_A, sT0, u0))
    if CFG["lead"]: b("v_lshlrev_b32 v%d, 7, v1" % u0); b("v_add_u32 v%d, s%d, v%d" % (D_AT, sT0, u0))
    b("v_lshrrev_b32 v%d, 3, v1" % u0); b("v_and_b32 v%d, 6, v%d" % (u1, u0))
    b("v_and_b32 v%d, 7, v1" % u2); b("v_xor_b32 v%d, v%d, v%d" % (u2, u2, u1))
    b("v_lshlrev_b32 v%d, 10, v%d" % (u0, u0)); b("v_lshl_add_u32 v%d, v%d, 4, v%d" % (D_B, u2, u0))
    b("s_lshl_b32 s%d, s%d, 15" % (sT0, sW1)); b("s_lshl_b32 s%d, s%d, 7" % (sT1, sCT)); b("s_add_u32 s%d, s%d, s%d" % (sT0, sT0, sT1))
    b("v_add_u32 v%d, s%d, v%d" % (D_B, sT0, D_B)); b("v_add_u32 v%d, %d, v%d" % (D_B2, 8192 - 1024, D_B))
    b("v_lshrrev_b32 v%d, 3, v1" % u0); b("v_lshlrev_b32 v%d, 10, v%d" % (u0, u0)); b("v_and_b32 v%d, 7, v1" % u2); b("v_lshl_add_u32 v%d, v%d, 4, v%d" % (D_X, u2, u0))
    b("s_lshl_b32 s%d, s%d, 16" % (sT1, sTT)); b("s_add_u32 s%d, s%d, s%d" % (sT0, sT0, sT1)); b("v_add_u32 v%d, s%d, v%d" % (D_X, sT0, D_X))
    b("s_lshl_b32 s%d, s%d, 8" % (sT1, sTT)); b("s_add_u32 s%d, s%d, %d" % (sT1, sT1, WS_RS)); b("v_lshlrev_b32 v%d, 2, v1" % D_R); b("v_add_u32 v%d, s%d, v%d" % (D_R, sT1, D_R))
    P.append("cut")
    fcols(b, ty)
    gu = 0
    for pi, (kind, e, _) in enumerate(PH[ty]):
        stride = 3584 if e == "gu" else 3072
        (p4_voffs if kind == "P4" else p2_voffs)(b, u0, u1, stride, t0)
        if e == "gu": b("s_lshl_b32 s%d, s%d, 1" % (sT1, sKS + gu)); db = 0; gu += 1
        elif e == "kv": b("s_mov_b32 s%d, s%d" % (sT1, sKC)); db = 1024
        else: b("s_lshl_b32 s%d, s%d, 7" % (sT1, sGR)); db = 64
        step = (8 if kind == "P4" else 16) * stride
        b("v_add_u32 v%d, s%d, v%d" % (u0, sT1, u0)); b("v_add_u32 v%d, s%d, v%d" % (u1, sT1, u1))
        for p in range(4):
            b("v_add_u32 v%d, %d, v%d" % (D_P + 4 * pi + p, 4096 + (p >> 1) * step - p * 1024 + (db if p & 1 else 0), u1 if p & 2 else u0))
    b("s_lshl_b32 s%d, s%d, 13" % (sLA, sW1))
    P.append("cut")
    nr = 32 if CFG["map"] == 84 else 64
    used = " ".join(CFG["tplan%d" % ty].values()).split()
    if set(used) & {"q", "g0", "g1"}:
        b("s_lshl_b32 s%d, s%d, 6" % (sT0, sXR)); b("s_mul_i32 s%d, s%d, %d" % (sT1, sW1, nr)); b("s_add_u32 s%d, s%d, s%d" % (sT0, sT0, sT1))
        b("v_add_u32 v%d, s%d, v1" % (t2, sT0)); b("v_mul_u32_u24 v%d, 3072, v%d" % (D_TCH + 3, t2)); b("v_mul_u32_u24 v%d, 3584, v%d" % (D_TCH + 2, t2))
        b("s_lshl_b32 s%d, s%d, 7" % (sT0, sGR)); b("s_add_u32 s%d, s%d, 4096" % (sT0, sT0)); b("v_add_u32 v%d, s%d, v%d" % (D_TCH + 3, sT0, D_TCH + 3))
        b("v_add_u32 v%d, 4096, v%d" % (D_TCH + 2, D_TCH + 2))
        b("s_lshl_b32 s%d, s%d, 1" % (sKS, sKS)); b("s_lshl_b32 s%d, s%d, 1" % (sKS + 1, sKS + 1))
    b("s_lshl_b32 s%d, s%d, 1" % (sT0, sSH)); b("s_add_u32 s%d, s%d, s%d" % (sT0, sT0, sW1))
    if CFG["map2"] == 48: b("v_lshlrev_b32 v%d, 7, v1" % t2)
    else:
        b("v_lshrrev_b32 v%d, 2, v1" % t2); b("v_lshlrev_b32 v%d, 10, v%d" % (t2, t2)); b("v_and_b32 v%d, 3, v1" % t3); b("v_lshl_add_u32 v%d, v%d, 7, v%d" % (t2, t3, t2))
        b("s_and_b32 s%d, s%d, 4" % (sT1, sCT)); b("s_lshl_b32 s%d, s%d, 7" % (sT1, sT1)); b("v_add_u32 v%d, s%d, v%d" % (t2, sT1, t2))
    k2 = 2 if CFG["aonly"] else 1
    b("s_mul_i32 s%d, s%d, %d" % (sT1, sT0, 28 * 1024 * k2)); b("v_add_u32 v%d, s%d, v%d" % (D_TCH, sT1, t2))
    b("s_mul_i32 s%d, s%d, %d" % (sT1, sT0, 8192 * k2)); b("v_add_u32 v%d, s%d, v%d" % (D_TCH + 1, sT1, t2))
    if "m" in used:
        b("s_lshl_b32 s%d, s2, 1" % sT0); b("s_add_u32 s%d, s%d, s%d" % (sT0, sT0, sW1)); b("s_mul_i32 s%d, s%d, %d" % (sT1, sT0, 28 * 128))
        b("v_lshlrev_b32 v%d, 7, v1" % t2); b("v_add_u32 v%d, s%d, v%d" % (D_M, sT1, t2)); b("s_lshl_b32 s%d, s%d, 10" % (sT1, sT0)); b("v_add_u32 v%d, s%d, v%d" % (D_M + 1, sT1, t2))
    P.append("cut")
    def seg(lo, items):
        for t in items: b(t)
        b("v_cmp_le_u32 vcc, %d, v1" % lo); b("v_cndmask_b32 v%d, v%d, v%d, vcc" % (D_TAB, D_TAB, t1))
    b("s_add_u32 s%d, s%d, s%d" % (sT0, sR1, sW1))
    n0 = 0
    for pi, (kind, e, _) in enumerate(PH[ty]):
        stride = 3584 if e == "gu" else 3072
        if kind == "P4":
            seg(n0, ["v_add_u32 v%d, s%d, v1" % (t1, sR1), "v_add_u32 v%d, %d, v%d" % (t1, (-n0) & 7, t1), "v_and_b32 v%d, 7, v%d" % (t1, t1),
                     "v_lshlrev_b32 v%d, 1, v%d" % (t1, t1), "v_add_u32 v%d, s%d, v%d" % (t1, sW1, t1), "v_mul_u32_u24 v%d, %d, v%d" % (t1, 32 * stride, t1)]); n0 += 8
        else:
            seg(n0, ["v_lshlrev_b32 v%d, 1, v1" % t1, "v_add_u32 v%d, s%d, v%d" % (t1, sT0, t1), "v_and_b32 v%d, 7, v%d" % (t1, t1),
                     "v_mul_u32_u24 v%d, %d, v%d" % (t1, 64 * stride, t1)]); n0 += 4
    P.append("cut")
    b("v_add_u32 v%d, s%d, v1" % (t0, sR2)); b("v_and_b32 v%d, 7, v%d" % (t2, t0))
    seg(20, ["v_lshlrev_b32 v%d, 13, v%d" % (t1, t2)])
    seg(28, ["v_lshrrev_b32 v%d, 1, v%d" % (t3, t2), "v_lshlrev_b32 v%d, 1, v%d" % (t1, t2), "v_sub_u32 v%d, v%d, v%d" % (t1, t1, t3),
             "v_add_u32 v%d, 16, v%d" % (t1, t1), "v_lshlrev_b32 v%d, 12, v%d" % (t1, t1)])
    seg(36, ["v_lshlrev_b32 v%d, 13, v%d" % (t1, t2), "v_add_u32 v%d, 4096, v%d" % (t1, t1)])
    seg(44, ["v_and_b32 v%d, 3, v%d" % (t1, t0), "v_mul_u32_u24 v%d, 3, v%d" % (t1, t1), "v_add_u32 v%d, 17, v%d" % (t1, t1), "v_lshlrev_b32 v%d, 12, v%d" % (t1, t1)])
    seg(48, ["v_lshlrev_b32 v%d, 12, v%d" % (t1, t2)])
    return P

def dma_wave(ty):
    pieces = [[]]
    for it in dma_setup(ty):
        if it == "cut": pieces.append([])
        else: pieces[-1].append(it)
    late_su = pieces[1] + pieces[3] + pieces[5]
    P = [M(("x", 1))] + pieces[0] + pieces[2] + pieces[4] + ([] if CFG["defer"] & 2 else late_su); a = lambda t, tag=None: P.append(I(t, tag))
    stamp = lambda k: stamp_to(P, k)
    stamp_to(P, 1, H_STAMP2)
    NB = CFG["nb%d" % ty]; CH = checks(ty)
    sl = slabs_of(ty); info = phase_info(ty)
    def look(n):
        if n < 56: a("v_readlane_b32 s%d, v%d, %d" % (sPH + 2 * (n & 1), D_TAB, n))
    def part(n, which, nxt):
        so = sPH + 2 * (n & 1); cap = CFG["cap2"]; wb = srd(SWD if n < 48 else SWO)
        if which == "B": a("s_lshl_b32 s%d, s%d, 4" % (so, so))
        elif n == 48: a("v_add_u32 v%d, %d, v%d" % (D_A, 28 * 4096, D_A))
        for h in range(2):
            a("s_add_u32 m0, s%d, %d" % (sLA, slot_of(n) * SLOT + h * 4096))
            if h: a("s_add_u32 s%d, s%d, %d" % (so, so, 16384 if which == "B" else 2048))
            elif (nxt ^ n) & 1: look(nxt)
            room(16, cap)
            if which == "B":
                vm("buffer_load_dwordx4 v%d, %s, s%d offen lds" % (D_B, wb, so), 8)
                vm("buffer_load_dwordx4 v%d, %s, s%d offen offset:1024 lds" % (D_B2, wb, so), 8)
            else:
                vm("buffer_load_dwordx4 v%d, %s, s%d offen offset:2048 sc1 lds" % (D_A, srd(SX if CFG["fakeA"] else SWS), so), 8, ("slab", n))
                vm("buffer_load_dwordx4 v%d, %s, s%d offen offset:3072 sc1 lds" % (D_A, srd(SX if CFG["fakeA"] else SWS), so), 8, ("slab", n))
        if not (nxt ^ n) & 1: look(nxt)
    hist = []
    def room(w, cap):
        tot = w; k = 0
        while k < len(hist) and tot + hist[-1 - k] <= cap: tot += hist[-1 - k]; k += 1
        if k < len(hist): a("s_waitcnt vmcnt(%d)" % min(k, 63))
    def vm(t, w, tag=None): a(t, tag); hist.append(w)
    def dma(n):
        so = sPH + 2 * (n & 1); cap = CFG["cap1"] if n < CFG["capsw"] else CFG["cap2"]
        if n in CFG["soft%d" % ty]: cap = CFG["capsoft"]
        for h in range(2):
            a("s_add_u32 m0, s%d, %d" % (sLA, slot_of(n) * SLOT + h * 4096))
            if n < 20:
                pi, kind, sg = sl[n]; _, stride, sa, sb = info[pi]
                w = 16 if (kind == "P2" and PH[ty][pi][1] != "q") else 8
                if h: a("s_add_u32 s%d, s%d, %d" % (so, so, (16 if kind == "P4" else 32) * stride))
                else: look(n + 1)
                for p in range(4):
                    if p % 2 == 0: room(2 * w, cap)
                    vm("buffer_load_dwordx4 v%d, %s, s%d offen offset:%d lds" % (D_P + 4 * pi + p, srd(sb if p & 1 else sa), so, p * 1024), w, ("slab", n))
            else:
                if h: a("s_add_u32 s%d, s%d, 2048" % (so, so)); a("s_add_u32 s%d, s%d, 16384" % (so + 1, so + 1))
                else:
                    a("s_lshl_b32 s%d, s%d, 4" % (so + 1, so)); look(n + 1)
                    if n == 48: a("v_add_u32 v%d, %d, v%d" % (D_A, 28 * 4096, D_A))
                wb = srd(SWD if n < 48 else SWO)
                room(16, cap)
                vm("buffer_load_dwordx4 v%d, %s, s%d offen lds" % (D_B, wb, so + 1), 8, ("slab", n))
                vm("buffer_load_dwordx4 v%d, %s, s%d offen offset:1024 lds" % (D_B2, wb, so + 1), 8, ("slab", n))
                room(16, cap)
                vm("buffer_load_dwordx4 v%d, %s, s%d offen offset:2048 sc1 lds" % (D_A, srd(SX if CFG["fakeA"] else SWS), so), 8, ("slab", n))
                vm("buffer_load_dwordx4 v%d, %s, s%d offen offset:3072 sc1 lds" % (D_A, srd(SX if CFG["fakeA"] else SWS), so), 8, ("slab", n))
    def touch(which):
        nr = 32 if CFG["map"] == 84 else 64; dst = D_TCH + 4; cap = CFG["capt"]
        for w in which:
            if w == "x":
                a("s_lshr_b32 s%d, s%d, 1" % (sT0, sLA)); a("s_add_u32 m0, s%d, %d" % (sT0, LX))
                room(32, cap)
                for p in range(4):
                    a("s_movk_i32 s%d, %d" % (sT1, 7168 * p))
                    vm("buffer_load_dwordx4 v%d, %s, s%d offen offset:%d lds" % (D_X, srd(SX), sT1, 1024 * p), 8)
            elif w == "m":
                room(36, cap)
                a("s_mov_b64 exec, 0xfffffff"); vm("buffer_load_dword v%d, v%d, %s, 0 offen" % (dst, D_M, srd(SWD)), 28)
                a("s_mov_b64 exec, 0xff"); vm("buffer_load_dword v%d, v%d, %s, 0 offen" % (dst, D_M + 1, srd(SWO)), 8)
            elif w in ("q", "g0", "g1"):
                if nr == 32: a("s_mov_b32 exec_hi, 0")
                if w == "q": room(nr, cap); vm("buffer_load_dword v%d, v%d, %s, 0 offen" % (dst, D_TCH + 3, srd(SQKV)), nr)
                else:
                    for d in (SG, SU): room(nr, cap); vm("buffer_load_dword v%d, v%d, %s, s%d offen" % (dst, D_TCH + 2, srd(d), sKS + int(w[1])), nr)
            elif w == "o":
                k = 64 if (CFG["map2"] == 48 or CFG["aonly"]) else 32
                if k == 32: a("s_mov_b32 exec_hi, 0")
                room(k, cap); vm("buffer_load_dword v%d, v%d, %s, 0 offen" % (dst, D_TCH + 1, srd(SWO)), k)
            else:
                j = int(w[1])
                if j >= (4 if (CFG["map2"] == 48 or CFG["aonly"]) else 2): continue
                a("s_mov_b32 exec_hi, 0xffffff"); a("s_mov_b32 s%d, %d" % (sT0, j * 56 * (128 if CFG["map2"] == 48 else 256)))
                room(56, cap); vm("buffer_load_dword v%d, v%d, %s, s%d offen" % (dst, D_TCH, srd(SWD), sT0), 56)
            a("s_mov_b64 exec, -1")
    def publish(m):
        if m in CH.values():
            a("s_mov_b32 m0, s%d" % sLM); a("v_mov_b32 v%d, %d" % (D_LV, 4 * (m + 1)))
            vm("global_load_lds_dword v%d, %s" % (D_LV, s(sTB, 2)), 1)
        if CFG["stamps"] == 2 or (CFG["stamps"] and m % 4 == 0): stamp(m)
    for d in (SQKV, SG, SU):
        a("s_sub_u32 s%d, s%d, 4096" % (d, d)); a("s_subb_u32 s%d, s%d, 0" % (d + 1, d + 1)); a("s_add_u32 s%d, s%d, 4096" % (d + 2, d + 2))
    gates = {20: (C_H1A, 16), 28: (C_H1B, 16), 36: (C_H2, 32), 48: (C_O, 16)}
    def do_gate(n):
        if CFG["stamps"] == 2: stamp_to(P, 20 + 2 * list(gates).index(n), H_STAMP2)
        if n in CFG["nogate"]: pass
        elif CFG["spoll"]: sgate(P, sCC, gates[n][0] * 128, sPV, gates[n][1])
        else: gate(P, D_CC, SWS, gates[n][0] * 128, ("poll", n), D_POLL, gates[n][1])
        stamp_to(P, 21 + 2 * list(gates).index(n), H_STAMP2)
    def poll(gn):
        if CFG["spoll"]: a("s_load_dword s%d, %s, s%d offset:%d glc" % (sPV, s(SWS, 2), sCC, gates[gn][0] * 128))
        else: vm("buffer_load_dword v%d, v%d, %s, 0 offen offset:%d sc1" % (D_POLL, D_CC, srd(SWS), gates[gn][0] * 128), 1, ("poll", gn))
    nbf = CFG["bfirst"]
    def issue(n):
        if n in gates and not (n == 20 and nbf): do_gate(n)
        if n + CFG["pollat"] in gates and not (n + CFG["pollat"] == 20 and nbf): poll(n + CFG["pollat"])
        dma(n)
    def do_touch(n):
        tp = CFG["tplan%d" % ty].get(str(n))
        if tp:
            touch(tp.split())
    look(0)
    if CFG["dprio"]: a("s_setprio %d" % CFG["dprio"])
    hist += [16] * 8
    xstages(P, {CFG["s0at"]: lambda: (dma(0), publish(0), do_touch(0))})
    stamp(60)
    a("s_barrier")
    stamp(61); rstamp(P, 40)
    assert NB == 56
    seq = [(n, "F") for n in range(1, 20)] + [(n, "B") for n in range(20, 20 + nbf)]
    n = 20
    while n < 56:
        k = CFG["afirst"].get(str(n), 0)
        if n == 20: k = max(k, nbf)
        seq += [(m, "A") for m in range(n, n + k)] + [(m, "B") for m in range(n, n + k) if (m, "B") not in seq]
        if not k: seq.append((n, "F"))
        n += max(k, 1)
    started = set(); parts = {}; checked = -1; gated = set()
    firstA = {g: min(i for i, (m, w) in enumerate(seq) if m >= g and w != "B") for g in gates}
    gstart = {g: min(i for i, (m, w) in enumerate(seq) if m >= 20 + 4 * g and w != "B") for g in range(9)}
    def need_at(i):
        k = 1
        if CFG["spoll"] and any(i + CFG["pollat"] == firstA[g] for g in gates): k = CFG["pollat"]
        pu = max(prev_user(m) if m not in started else -1 for m, w in seq[i:i + k])
        while pu > checked and not marked(pu): pu += 1
        return pu - CFG["bigring"] if seq[i][0] < CFG["bigto"] else pu
    for i, (n, w) in enumerate(seq):
        if (n, w) in ((11, "F"), (15, "F"), (18, "F"), (30, "F"), (42, "F"), (54, "F")): rstamp(P, 42 + 2 * (11, 15, 18, 30, 42, 54).index(n))
        if w == "F" and n in CFG["exw%d" % ty]: count_wait(P, D_FL, D_DV + 1, F_EX + 4 * CFG["exw%d" % ty].index(n), 4)
        pu = need_at(i)
        if pu > checked:
            lb = newlbl()
            P.append(W(lg=[("dn", i)]))
            a("v_cmp_ge_u32 vcc, %d, v%d" % (pu, D_DV)); a("s_cbranch_vccz L_fr%d" % lb)
            raw(P, [I("s_movk_i32 s%d, %d" % (sSPIN + 1, pu + 1)), I("s_call_b64 %s, L_spin_d" % s(sRET, 2))]); P.append(L("L_fr%d:" % lb))
            checked = pu
        if n == 20 + CFG["ring2"].index(8) and n not in started: count_wait(P, D_FL, D_DV + 1, F_EXF, 2)
        if (n, w) == (4, "F"): a("s_movk_i32 m0, %d" % (FL + F_INIT)); vm("buffer_load_dword v%d, %s, 0 offen sc1 lds" % (D_ZERO, srd(SDBG)), 1)
        if (n, w) == (15, "F"): a("ds_read_b32 v%d, v%d offset:%d" % (D_POLL, D_FL, F_INIT), "init"); gate(P, D_ZERO, SDBG, 0, "init", D_POLL, 1)
        for g in gates:
            if i == firstA[g]:
                do_gate(g)
                if g == 20: a("s_movk_i32 m0, %d" % LR2); vm("buffer_load_dword v%d, %s, 0 offen sc1 lds" % (D_R, srd(SWS)), 2)
            if i + CFG["pollat"] == firstA[g]: poll(g)
        if CFG["lead"]:
            for g in range(1, 9):
                sec = max(x for x in gates if x <= 20 + 4 * g); newsec = sec == 20 + 4 * g
                at = gstart[g - 1]
                if newsec and i + CFG["pollat"] == at:
                    vm("buffer_load_dword v%d, v%d, %s, 0 offen offset:%d sc1" % (D_POLL2, D_CC, srd(SWS), gates[sec][0] * 128), 1, ("poll2", g))
                if i == at + CFG["leadoff"]:
                    lb = newlbl()
                    if newsec: P.append(W(vm=[("poll2", g)]))
                    a("s_cmp_lg_u32 s%d, %d" % (sLD, CFG["who"][g])); a("s_cbranch_scc1 L_nl%d" % lb)
                    X = []
                    if newsec: X += [I("v_cmp_eq_u32 vcc, %d, v%d" % (gates[sec][1], D_POLL2)), I("s_cbranch_vccz L_nl%d" % lb)]
                    for j in range(4): X.append(I("v_readlane_b32 s%d, v%d, %d" % (sG + j, D_TAB, 20 + 4 * g + j)))
                    X.append(I("s_mov_b32 exec_hi, 0"))
                    for j in range(4):
                        if g >= 7: X.append(I("s_add_u32 s%d, s%d, %d" % (sG + j, sG + j, 28 * 4096)))
                        X.append(I("buffer_load_dword v%d, v%d, %s, s%d offen offset:2048 sc1" % (D_TCH + 4, D_AT, srd(SWS), sG + j)))
                    X.append(I("s_mov_b64 exec, -1"))
                    raw(P, X); P.append(L("L_nl%d:" % lb))
        started.add(n)
        if i + 1 < len(seq) and need_at(i + 1) > checked: a("ds_read_b32 v%d, v%d" % (D_DV, D_LA), ("dn", i + 1))
        nxt = seq[i + 1][0] if i + 1 < len(seq) else 99
        if w == "F":
            assert nxt in (n + 1, 99); dma(n)
        else: part(n, w, nxt)
        parts.setdefault(n, set()).add(w)
        if parts[n] in ({"F"}, {"A", "B"}):
            assert all(parts.get(m) in ({"F"}, {"A", "B"}) for m in range(1, n))
            publish(n)
        if (n, w) == (6, "F") and CFG["defer"] & 2: P += late_su
        if w == "F": do_touch(n)
    if CFG["stamps"]:
        count_wait(P, D_FL, D_DV, F_END, 4)
        stamp(62)
        a("s_memrealtime s[6:7]"); P.append(W(lg="all"))
        a("v_writelane_b32 v%d, s4, 62" % H_STAMP2); a("v_writelane_b32 v%d, s6, 63" % H_STAMP2)
        a("s_lshl_b32 s%d, s2, 8" % sT0); a("s_add_u32 s%d, s%d, %d" % (sT0, sT0, WS_ST))
        a("v_lshlrev_b32 v64, 2, v1")
        a("s_cmp_lg_u32 s%d, %d" % (sW1, CFG["stampw"] & 1)); a("s_cbranch_scc1 L_exit")
        a("buffer_store_dword v%d, v64, %s, s%d offen" % (H_STAMP, srd(SWS), sT0))
        a("s_add_u32 s%d, s%d, 0x10000" % (sT0, sT0))
        a("buffer_store_dword v%d, v64, %s, s%d offen" % (H_STAMP2, srd(SWS), sT0))
    a("s_endpgm")
    return P

A_ONE, A_ZERO, A_CM, A_CK, A_CQ, A_FL, A_RK, A_RV, A_ST, A_ZA, A_PL, A_ZL, A_OS, A_SGN = range(2, 16)
A_POLL, A_FV, A_TCH = 25, 27, 28
A_ID = 32
A_WP = 36
A_R = 16
A_ACC = 56
A_RAW = 72
A_T = 72
A_KF = 112
A_SD = 192; A_PHI = 208
A_PQ = 128
A_LD = 192
def softmax_unit(wp, kf, u, dst, Pm, R, scale_r):
    B = []; b = lambda t, tag=None: B.append(I(t, tag))
    C = A_R + 4 + u
    b("v_mfma_f32_32x32x16_bf16 %s, %s, %s, 0" % (v(Pm, 16), v(wp, 4), v(kf, 4)))
    for g in range(2): b("v_max3_f32 v%d, v%d, v%d, v%d" % (R + g, Pm + 8 * g, Pm + 8 * g + 1, Pm + 8 * g + 2))
    for g in range(2): b("v_max3_f32 v%d, v%d, v%d, v%d" % (R + 2 + g, Pm + 8 * g + 3, Pm + 8 * g + 4, Pm + 8 * g + 5))
    for g in range(2): b("v_max3_f32 v%d, v%d, v%d, v%d" % (R + g, R + g, Pm + 8 * g + 6, Pm + 8 * g + 7))
    for g in range(2): b("v_max_f32 v%d, v%d, v%d" % (R + g, R + g, R + 2 + g))
    def allred(op, mid):
        b("v_permlane32_swap_b32 v%d, v%d" % (R, R + 1))
        b("%s v%d, v%d, v%d" % (op, R, R, R + 1))
        for t in mid: b(t)
        b("v_mov_b32 v%d, v%d" % (R + 1, R))
        b("v_permlane32_swap_b32 v%d, v%d" % (R, R + 1))
    allred("v_max_f32", ["v_mul_f32 v%d, v%d, v%d" % (R, C, R)])
    for j in range(16): b("v_fma_f32 v%d, v%d, v%d, -v%d" % (Pm + j, Pm + j, C, R + j // 8))
    for j in range(16): b("v_exp_f32 v%d, v%d" % (Pm + j, Pm + j))
    if not scale_r and not CFG["qnorm"]:
        for j in range(8): b("v_cvt_pk_bf16_f32 v%d, v%d, v%d" % (dst + j, Pm + 2 * j, Pm + 2 * j + 1))
        return B
    for g in range(2):
        b("v_add_f32 v%d, v%d, v%d" % (R + g, Pm + 8 * g, Pm + 8 * g + 1)); b("v_add_f32 v%d, v%d, v%d" % (R + 2 + g, Pm + 8 * g + 2, Pm + 8 * g + 3))
    for k in (4, 6):
        for g in range(2):
            b("v_add_f32 v%d, v%d, v%d" % (R + g, R + g, Pm + 8 * g + k)); b("v_add_f32 v%d, v%d, v%d" % (R + 2 + g, R + 2 + g, Pm + 8 * g + k + 1))
    for g in range(2): b("v_add_f32 v%d, v%d, v%d" % (R + g, R + g, R + 2 + g))
    allred("v_add_f32", ["v_rcp_f32 v%d, v%d" % (R, R)] + (["v_mul_f32 v%d, v%d, v%d" % (R, R, A_R + u)] if scale_r else []))
    for j in range(16): b("v_mul_f32 v%d, v%d, v%d" % (Pm + j, Pm + j, R + j // 8))
    for j in range(8): b("v_cvt_pk_bf16_f32 v%d, v%d, v%d" % (dst + j, Pm + 2 * j, Pm + 2 * j + 1))
    return B
def zipper(x, y):
    out = []
    for i in range(max(len(x), len(y))):
        if i < len(x): out.append(x[i])
        if i < len(y): out.append(y[i])
    return out
def mprio(B, base=0):
    out = []; hi = False
    for it in B:
        m_ = isinstance(it, I) and it.t.startswith("v_mfma")
        if m_ and not hi: out.append(I("s_setprio 3")); hi = True
        if hi and not m_: out.append(I("s_setprio %d" % base)); hi = False
        out.append(it)
    return out

def attn_setup(ty):
    P = []; b = lambda t, tag=None: P.append(I(t, tag))
    t0, t1, t2, t3, u0 = range(100, 105)
    hk, hq = sT2, sT3
    if CFG["tlb"]:
        b("v_lshlrev_b32 v%d, 16, v1" % t0); b("s_mov_b64 exec, 0x%x" % CFG["tlbm"])
        for d in ((SQKV,), (SQKV, SG, SU), (SQKV, SG, SU, SWD, SWO))[CFG["tlb"] - 1]: b("buffer_load_dword v%d, v%d, %s, 0 offen" % (A_POLL + 1, t0, srd(d)))
        b("s_mov_b64 exec, -1")
    if CFG["ftouch"]:
        nr = 32 if CFG["map"] == 84 else 64
        b("s_lshl_b32 s%d, s%d, 6" % (sT0, sXR)); b("s_mul_i32 s%d, s%d, %d" % (sT1, sW1, nr)); b("s_add_u32 s%d, s%d, s%d" % (sT0, sT0, sT1))
        b("v_add_u32 v%d, s%d, v1" % (A_TCH + 2, sT0)); b("v_mul_u32_u24 v%d, 3072, v%d" % (A_TCH + 3, A_TCH + 2)); b("v_mul_u32_u24 v%d, 3584, v%d" % (A_TCH + 2, A_TCH + 2))
        if nr == 32: b("s_mov_b32 exec_hi, 0")
        if CFG["ftouch"] == 4: b("buffer_load_dword v%d, v%d, %s, s%d offen offset:%d" % (A_POLL + 1, A_TCH + 3, srd(SQKV), sKC, 1024 * ty))
        elif CFG["ftouch"] >= 5 or not CFG["ftouch"] & (1 << ty): pass
        elif ty == 0:
            for o_ in (0, 1024): b("buffer_load_dword v%d, v%d, %s, s%d offen offset:%d" % (A_POLL + 1, A_TCH + 3, srd(SQKV), sKC, o_))
        else:
            b("s_lshl_b32 s%d, s%d, 7" % (sT0, sGR)); b("buffer_load_dword v%d, v%d, %s, s%d offen" % (A_POLL + 1, A_TCH + 3, srd(SQKV), sT0))
        b("s_mov_b64 exec, -1")
    b("s_lshl_b32 s%d, s%d, 2" % (hq, sGR)); b("s_add_u32 s%d, s%d, s%d" % (hq, hq, sW1))
    b("s_add_u32 s%d, s%d, %d" % (hk, hq, 2 * ty))
    b("v_lshrrev_b32 v%d, 5, v1" % t3); b("v_and_b32 v%d, 15, v1" % t1); b("v_lshrrev_b32 v%d, 4, v1" % t0)
    b("v_lshlrev_b32 v%d, 7, v%d" % (t2, t3)); b("v_lshl_add_u32 v%d, v%d, 1, v%d" % (t2, t1, t2))
    b("s_lshl_b32 s%d, s%d, 9" % (sT0, hq))
    for hh in range(1 + ty):
        for j in range(8):
            b("buffer_load_ushort v%d, v%d, %s, s%d offen offset:%d" % (A_RAW + 8 * hh + j, t2, srd(SPHI), sT0, 1024 * hh + 32 * ((j & 3) + 8 * (j >> 2))), "wphi")
    b("v_mov_b32 v%d, 0" % A_ZERO); b("v_mov_b32 v34, 0")
    b("v_mov_b32 v%d, 1" % A_ONE); b("v_mov_b32 v%d, %d" % (A_FL, FL))
    if ty == 0:
        b("v_lshlrev_b32 v%d, 7, v1" % u0)
        b("s_add_u32 s%d, s2, s%d" % (sT0, sW1)); b("s_cmp_lg_u32 s%d, 0" % sT0); b("s_cbranch_scc1 L_noinit")
        raw(P, sum([[I("s_movk_i32 s%d, 0x%x" % (sT0, 0x2000 * k)), I("buffer_store_dword v%d, v%d, %s, s%d offen sc1" % (A_ZERO, u0, srd(SWS), sT0))] for k in range(3)], []))
        P.append(L("L_noinit:"))
    b("v_and_b32 v%d, 1, v%d" % (t2, t0)); b("v_mul_u32_u24 v%d, 0x8000, v%d" % (t2, t2)); b("v_lshl_or_b32 v%d, v%d, 16, v%d" % (A_SGN, t2, t2))
    b("s_lshl_b32 s%d, s%d, 10" % (sT0, sI)); b("v_lshlrev_b32 v%d, 9, v1" % A_CM); b("v_add_u32 v%d, s%d, v%d" % (A_CM, sT0, A_CM))
    b("v_lshl_add_u32 v%d, v1, 2, v%d" % (A_FV, A_FL))
    for k in range(8): b("ds_write_b32 v%d, v%d offset:%d" % (A_FV, A_ZERO, 256 * k))
    P.append("cut")
    b("s_lshl_b32 s%d, s%d, 8" % (sT0, hk)); b("s_add_u32 s%d, s%d, 0x4000" % (sT0, sT0)); b("v_mov_b32 v%d, s%d" % (A_CK, sT0))
    b("s_lshl_b32 s%d, s%d, 8" % (sT0, hq)); b("s_add_u32 s%d, s%d, 0x4000" % (sCC, sT0))
    b("s_lshl_b32 s%d, s%d, 11" % (sT0, sW1)); b("s_add_u32 s%d, s%d, %d" % (sT0, sT0, EX))
    b("v_lshlrev_b32 v%d, 4, v1" % u0); b("v_add_u32 v%d, s%d, v%d" % (A_RK, sT0, u0))
    b("v_and_b32 v%d, 1, v1" % t2); b("v_lshlrev_b32 v%d, 9, v%d" % (A_RV, t2)); b("v_lshl_add_u32 v%d, v%d, 7, v%d" % (A_RV, t0, A_RV))
    b("v_bfe_u32 v%d, v1, 2, 2" % t2); b("v_lshl_add_u32 v%d, v%d, 4, v%d" % (A_RV, t2, A_RV))
    b("v_bfe_u32 v%d, v1, 1, 1" % t2); b("v_lshl_add_u32 v%d, v%d, 3, v%d" % (A_RV, t2, A_RV)); b("v_add_u32 v%d, s%d, v%d" % (A_RV, sT0, A_RV))
    b("s_lshl_b32 s%d, s%d, 4" % (sT0, hk)); b("s_add_u32 s%d, s%d, s%d" % (sT0, sT0, sI))
    b("s_lshl_b32 s%d, s%d, 10" % (sT1, sT0)); b("s_add_u32 s%d, s%d, %d" % (sT1, sT1, WS_KV)); b("v_add_u32 v%d, s%d, v%d" % (A_ST, sT1, u0))
    b("s_lshl_b32 s%d, s%d, 7" % (sT1, sT0)); b("s_add_u32 s%d, s%d, %d" % (sT1, sT1, WS_Z))
    b("v_lshlrev_b32 v%d, 6, v%d" % (A_ZA, t1)); b("v_lshl_add_u32 v%d, v%d, 4, v%d" % (A_ZA, t0, A_ZA)); b("v_add_u32 v%d, s%d, v%d" % (A_ZA, sT1, A_ZA))
    if ty == 0:
        b("s_lshl_b32 s%d, s%d, 1" % (sT0, sI)); b("s_add_u32 s%d, s%d, s%d" % (sT0, sT0, sW1)); b("s_and_b32 s%d, s%d, 7" % (sLD, sT0))
        b("s_lshr_b32 s%d, s%d, 3" % (sT0, sT0)); b("s_lshl_b32 s%d, s%d, 2" % (sT4, sGR)); b("s_add_u32 s%d, s%d, s%d" % (sT4, sT4, sT0))
        b("s_lshl_b32 s%d, s%d, 8" % (sT0, sT4)); b("s_add_u32 s%d, s%d, 0x4000" % (sCC, sT0)); b("v_mov_b32 v%d, s%d" % (A_CQ, sCC))
        b("s_lshl_b32 s%d, s%d, 7" % (sT5, sLD))
        b("s_lshl_b32 s%d, s%d, 14" % (sT1, sT4)); b("s_add_u32 s%d, s%d, s%d" % (sT1, sT1, sT5)); b("s_add_u32 s%d, s%d, %d" % (sT1, sT1, WS_KV))
        b("v_lshrrev_b32 v%d, 3, v1" % t2); b("v_lshlrev_b32 v%d, 10, v%d" % (A_PL, t2)); b("v_and_b32 v%d, 7, v1" % t2)
        b("v_lshl_add_u32 v%d, v%d, 4, v%d" % (A_PL, t2, A_PL)); b("v_add_u32 v%d, s%d, v%d" % (A_PL, sT1, A_PL))
        b("s_lshl_b32 s%d, s%d, 10" % (sT1, sT4)); b("s_add_u32 s%d, s%d, s%d" % (sT1, sT1, sT5)); b("s_add_u32 s%d, s%d, %d" % (sT1, sT1, WS_KVF))
        b("v_lshlrev_b32 v%d, 4, v%d" % (A_OS, t2)); b("v_lshl_add_u32 v%d, v%d, 2, v%d" % (A_OS, t3, A_OS))
        b("v_and_b32 v%d, 1, v%d" % (t2, t0)); b("v_lshl_add_u32 v%d, v%d, 3, v%d" % (A_OS, t2, A_OS)); b("v_add_u32 v%d, s%d, v%d" % (A_OS, sT1, A_OS))
        b("s_lshl_b32 s%d, s%d, 11" % (sT1, sT4)); b("s_add_u32 s%d, s%d, %d" % (sT1, sT1, WS_Z))
        b("v_lshlrev_b32 v%d, 7, v%d" % (A_ZL, t1)); b("v_lshl_add_u32 v%d, v%d, 4, v%d" % (A_ZL, t0, A_ZL)); b("v_add_u32 v%d, s%d, v%d" % (A_ZL, sT1, A_ZL))
        b("s_lshl_b32 s%d, s%d, 7" % (sT1, sT4)); b("s_add_u32 s%d, s%d, %d" % (sT1, sT1, WS_ZF))
        b("v_lshlrev_b32 v%d, 6, v%d" % (A_CM, t1)); b("v_lshl_add_u32 v%d, v%d, 4, v%d" % (A_CM, t0, A_CM)); b("v_add_u32 v%d, s%d, v%d" % (A_CM, sT1, A_CM))
        ident(b, A_ID, t1)
    if ty == 1:
        b("s_lshl_b32 s%d, s%d, 10" % (sT1, hq)); b("s_add_u32 s%d, s%d, %d" % (sT1, sT1, WS_KVF)); b("v_add_u32 v%d, s%d, v%d" % (A_PL, sT1, u0))
        b("s_lshl_b32 s%d, s%d, 7" % (sT1, hq)); b("s_add_u32 s%d, s%d, %d" % (sT1, sT1, WS_ZF))
        b("v_lshlrev_b32 v%d, 4, v%d" % (A_ZL, t0)); b("v_add_u32 v%d, s%d, v%d" % (A_ZL, sT1, A_ZL))
        b("s_mul_i32 s%d, s%d, 576" % (sT1, sI)); b("s_add_u32 s%d, s%d, s%d" % (sT1, sT1, hq)); b("s_add_u32 s%d, s%d, s%d" % (sT1, sT1, sW1)); b("s_add_u32 s%d, s%d, 112" % (sT1, sT1))
        b("s_lshl_b32 s%d, s%d, 10" % (sT1, sT1)); b("s_add_u32 s%d, s%d, %d" % (sT1, sT1, WS_HO))
        b("v_and_b32 v%d, 1, v%d" % (t2, t0)); b("v_lshlrev_b32 v%d, 10, v%d" % (A_OS, t2)); b("v_lshl_add_u32 v%d, v%d, 8, v%d" % (A_OS, t3, A_OS))
        b("v_lshl_add_u32 v%d, v%d, 4, v%d" % (A_OS, t1, A_OS)); b("v_add_u32 v%d, s%d, v%d" % (A_OS, sT1, A_OS))
    return P

def attn_wave(ty):
    SU_ = attn_setup(ty); cut_ = SU_.index("cut"); late_su = SU_[cut_ + 1:] if CFG["defer"] & 1 else []
    P = [M(("x", 1))] + SU_[:cut_] + ([] if late_su else SU_[cut_ + 1:]); a = lambda t, tag=None: P.append(I(t, tag))
    stamp = lambda k: stamp_to(P, k, 34)
    def signal(vaddr, off): one_lane(P, "buffer_atomic_add v%d, v%d, %s, 0 offen offset:%d sc1" % (A_ONE, vaddr, srd(SWS), off))
    def ft():
        a("s_mov_b32 exec_hi, 0"); a("buffer_load_dword v%d, v%d, %s, s%d offen offset:%d" % (A_POLL + 1, A_TCH + 3, srd(SQKV), sKC, 1024 * ty))
        if CFG["ftouch"] == 7:
            if ty: a("s_lshl_b32 s%d, s%d, 7" % (sT0, sGR)); a("buffer_load_dword v%d, v%d, %s, s%d offen" % (A_POLL + 1, A_TCH + 3, srd(SQKV), sT0))
            else:
                a("s_lshl_b32 s%d, s%d, 8" % (sT0, sGR))
                for d in (SG, SU): a("buffer_load_dword v%d, v%d, %s, s%d offen" % (A_POLL + 1, A_TCH + 2, srd(d), sT0))
        a("s_mov_b64 exec, -1")
    def after1():
        if CFG["ftouch"] in (5, 7): ft()
        if ty == 0:
            only(P, ["s_add_u32 s%d, s2, s%d" % (sT0, sW1), "s_cmp_lg_u32 s%d, 0" % sT0],
                 [I("buffer_store_dword v%d, v%d, %s, 0 offen sc1" % (A_ONE, A_ZERO, srd(SDBG)))])
    P.append(W(lg="all"))
    xstages(P, {1: after1, 0: (ft if CFG["ftouch"] == 6 else lambda: None)})
    a("s_barrier")
    if CFG["noattn"]:
        one_lane(P, "ds_add_u32 v%d, v%d offset:%d" % (A_FL, A_ONE, F_EXF)); a("s_endpgm"); return P
    P += late_su
    P.append(W(vm=["wphi"]))
    for hh in range(1 + ty):
        for j in range(4): a("v_lshl_or_b32 v%d, v%d, 16, v%d" % (A_WP + 4 * hh + j, A_RAW + 8 * hh + 2 * j + 1, A_RAW + 8 * hh + 2 * j))
        for j in range(4): a("v_xor_b32 v%d, v%d, v%d" % (A_WP + 4 * hh + j, A_WP + 4 * hh + j, A_SGN))
    WK = A_WP + 4 * ty
    T = A_T
    a("v_and_b32 v%d, 31, v1" % T); a("v_lshlrev_b32 v%d, 2, v%d" % (T, T)); a("v_add_u32 v%d, %d, v%d" % (T, LRS, T))
    a("v_lshrrev_b32 v%d, 4, v1" % (T + 1)); a("v_lshlrev_b32 v%d, 4, v%d" % (T + 1, T + 1)); a("v_add_u32 v%d, %d, v%d" % (T + 1, LSD, T + 1))
    count_wait(P, A_FL, A_FV, F_EX, 4)
    stamp(11)
    for u in range(4): a("ds_read_b32 v%d, v%d offset:%d" % (A_R + u, T, u * 128))
    for u in range(4): a("ds_read_b128 %s, v%d offset:%d" % (v(A_SD + 4 * u, 4), T + 1, u * 64))
    for u in range(4): a("ds_read_b128 %s, v%d offset:%d" % (v(A_KF + 4 * u, 4), A_RK, u * 8192))
    P.append(W(lg="all"))
    for u in range(4): a("v_mul_f32 v%d, s%d, v%d" % (A_R + 4 + u, sL2E, A_R + u))
    PM = (T, T + 16); RR = (T + 32, T + 36)
    def qpair(hh, pr, src=None):
        src = A_KF + 8 * pr if src is None else src
        return mprio(zipper(softmax_unit(A_WP + 4 * hh, src, 2 * pr, A_PQ + 32 * hh + 16 * pr, PM[0], RR[0], False),
                            softmax_unit(A_WP + 4 * hh, src + 4, 2 * pr + 1, A_PQ + 32 * hh + 16 * pr + 8, PM[1], RR[1], False)), CFG["qprio"])
    KO = 0 if CFG["kvfirst"] else 4096 * ty
    if ty == 1 and not CFG["kvfirst"]:
        P += qpair(0, 0)
        if CFG["qpre"] == 2: P += qpair(0, 1)
        else:
            for j in range(8): a("v_mov_b32 v%d, v%d" % (A_PQ + 16 + j, A_KF + 8 + j))
        count_wait(P, A_FL, A_FV, F_EX + 4, 4)
        stamp(18)
        for u in range(4): a("ds_read_b128 %s, v%d offset:%d" % (v(A_KF + 4 * u, 4), A_RK, u * 8192 + KO))
        P.append(W(lg="all"))
    B = []; b = lambda t, tag=None: B.append(I(t, tag))
    def tail(u):
        X = []; x = lambda t, tag=None: X.append(I(t, tag))
        PHI = A_PHI + 8 * (u & 1); FR = A_PHI + 16 + 12 * (u & 1); so = (u & 1) * 16384 + KO
        for sg in range(2): x("ds_write_b128 v%d, %s offset:%d" % (A_RK, v(PHI + 4 * sg, 4), so + sg * 8192))
        for q in range(2): x("ds_read_b64_tr_b16 %s, v%d offset:%d" % (v(FR + 2 * q, 2), A_RV, u * 8192 + KO + 1024 + q * 64), ("pr", u))
        for sg in range(2):
            for q in range(2): x("ds_read_b64_tr_b16 %s, v%d offset:%d" % (v(FR + 4 + 4 * sg + 2 * q, 2), A_RV, so + sg * 8192 + q * 64), ("pr", u))
        return X
    def kvm(us):
        X = [W(lg=[("pr", us[-1])])]
        for u in us:
            FR = A_PHI + 16 + 12 * (u & 1)
            for sg in range(2):
                c = v(A_ACC + 4 * sg, 4); z = v(A_ACC + 8 + 4 * sg, 4)
                X.append(I("v_mfma_f32_16x16x32_bf16 %s, %s, %s, %s" % (c, v(FR + 4 + 4 * sg, 4), v(FR, 4), "0" if u == 0 else c)))
                X.append(I("v_mfma_f32_16x16x32_bf16 %s, %s, %s, %s" % (z, v(FR + 4 + 4 * sg, 4), v(A_SD + 4 * u, 4), "0" if u == 0 else z)))
        return X
    for pr in range(2):
        z = zipper(softmax_unit(WK, A_KF + 8 * pr, 2 * pr, A_PHI, PM[0], RR[0], True), softmax_unit(WK, A_KF + 8 * pr + 4, 2 * pr + 1, A_PHI + 8, PM[1], RR[1], True))
        t0_, t1_ = tail(2 * pr), tail(2 * pr + 1)
        if pr == 0: B += z + t0_[:2] + t1_[:2]; late = t0_[2:] + t1_[2:]
        else: B += z[:70] + late + z[70:120] + kvm((0, 1)) + z[120:] + t0_[:2] + t1_[:2] + t0_[2:] + t1_[2:]
    b("v_and_b32 v%d, 15, v1" % T); b("v_cmp_eq_u32 vcc, 1, v%d" % T)
    if ty == 0: one_lane(B, "ds_add_u32 v%d, v%d offset:%d" % (A_FL, A_ONE, F_EXF))
    B += kvm((2, 3))
    for j in range(4): b("v_cvt_pk_bf16_f32 v%d, v%d, v%d" % (A_ACC + j, A_ACC + 2 * j, A_ACC + 2 * j + 1))
    for j in range(4): b("v_cndmask_b32 v%d, v%d, v%d, vcc" % (A_ACC + 8 + j, A_ACC + 8 + j, A_ACC + 12 + j))
    b("buffer_store_dwordx4 %s, v%d, %s, 0 offen sc1" % (v(A_ACC, 4), A_ST, srd(SWS)), "part")
    b("s_mov_b32 exec_lo, 0x00030003"); b("s_mov_b32 exec_hi, 0x00030003")
    b("buffer_store_dwordx4 %s, v%d, %s, 0 offen sc1" % (v(A_ACC + 8, 4), A_ZA, srd(SWS)), "part"); b("s_mov_b64 exec, -1")
    P += mprio(B, CFG["kprio"]); a("s_setprio 0")
    stamp(12)
    def publish_k():
        a("ds_read_b32 v%d, v%d offset:%d" % (A_POLL, A_FL, F_INIT), "init"); gate(P, A_ZERO, SDBG, 0, "init", A_POLL, 1)
        P.append(W(vm=["part"])); signal(A_CK, 0)
        stamp(13)
    if ty == 0:
        publish_k()
        a(sload(SWS, sCC, 0, sG)); sgate(P, sCC, 0, sG, 16)
        stamp(14)
        LD = A_LD; S = T; Z = A_ACC
        a("buffer_load_dwordx4 %s, v%d, %s, 0 offen sc1" % (v(LD, 4), A_PL, srd(SWS))); a("s_movk_i32 s%d, 8192" % sT0)
        a("buffer_load_dwordx4 %s, v%d, %s, s%d offen sc1" % (v(LD + 4, 4), A_PL, srd(SWS), sT0))
        X = []; x = lambda t: X.append(I(t))
        x("buffer_load_dwordx4 %s, v%d, %s, 0 offen sc1" % (v(Z, 4), A_ZL, srd(SWS))); x("buffer_load_dwordx4 %s, v%d, %s, 0 offen offset:64 sc1" % (v(Z + 4, 4), A_ZL, srd(SWS)))
        x("v_and_b32 v%d, 15, v1" % S); x("v_cmp_eq_u32 vcc, 1, v%d" % S); x("s_waitcnt vmcnt(0)")
        for k in (8, 4, 2, 1):
            for j in range(8): x("v_add_f32_dpp v%d, v%d, v%d row_ror:%d row_mask:0xf bank_mask:0xf" % (Z + j, Z + j, Z + j, k))
        for j in range(4): x("v_cndmask_b32 v%d, v%d, v%d, vcc" % (Z + j, Z + j, Z + 4 + j))
        x("s_mov_b32 exec_lo, 0x00030003"); x("s_mov_b32 exec_hi, 0x00030003")
        x("buffer_store_dwordx4 %s, v%d, %s, 0 offen sc1" % (v(Z, 4), A_CM, srd(SWS))); x("s_mov_b64 exec, -1"); x("s_branch L_l2b")
        only(P, ["s_cmp_lg_u32 s%d, 0" % sLD], X)
        a("s_waitcnt vmcnt(0)"); P.append(L("L_l2b:"))
        B = []
        for t_ in range(2):
            for sg in range(2): b("v_mfma_f32_4x4x4_16b_bf16 %s, %s, %s, %s" % (v(S + 4 * sg, 4), v(A_ID, 2), v(LD + 4 * t_ + 2 * sg, 2), "0" if t_ == 0 else v(S + 4 * sg, 4)))
        for j in range(8): b("v_add_f32_dpp v%d, v%d, v%d row_ror:8 row_mask:0xf bank_mask:0xf" % (S + j, S + j, S + j))
        for j in range(4): b("v_permlane16_swap_b32 v%d, v%d" % (S + j, S + 4 + j))
        for j in range(4): b("v_add_f32 v%d, v%d, v%d" % (S + j, S + j, S + 4 + j))
        for j in range(2): b("v_permlane32_swap_b32 v%d, v%d" % (S + j, S + 2 + j))
        for j in range(2): b("v_add_f32 v%d, v%d, v%d" % (S + j, S + j, S + 2 + j))
        b("v_cvt_pk_bf16_f32 v%d, v%d, v%d" % (S, S, S + 1))
        b("s_mov_b32 exec_lo, 0x00ff00ff"); b("s_mov_b32 exec_hi, 0x00ff00ff")
        b("buffer_store_dword v%d, v%d, %s, 0 offen sc1" % (S, A_OS, srd(SWS))); b("s_mov_b64 exec, -1")
        P += mprio(B); P.append(W(vm="all")); signal(A_CQ, 128)
        stamp(15)
    else:
        assert CFG["kvfirst"]
        if CFG["qlate"]: publish_k()
        count_wait(P, A_FL, A_FV, F_EX + 4, 4)
        for hh in range(2):
            for u in range(4): a("ds_read_b128 %s, v%d offset:%d" % (v(A_PQ + 32 * hh + 16 * (u >> 1) + 4 * (u & 1), 4), A_RK, u * 8192 + 4096 + 1024 * hh), "qf")
        one_lane(P, "ds_add_u32 v%d, v%d offset:%d" % (A_FL, A_ONE, F_EXF))
        P.append(W(lg=["qf"]))
        z = qpair(0, 0, A_PQ) if CFG["kvfirst"] else qpair(1, 0)
        P += z[:CFG["kpub"]]
        if not CFG["qlate"]: publish_k()
        P += z[CFG["kpub"]:]
        if CFG["kvfirst"]: rest = [qpair(0, 1, A_PQ + 16), qpair(1, 0, A_PQ + 32), qpair(1, 1, A_PQ + 48)]
        else: rest = ([qpair(0, 1, A_PQ + 16)] if CFG["qpre"] == 1 else []) + [qpair(1, 1)]
        for z in rest: P += z
        Z = (A_ACC, A_ACC + 8); KVA = (A_WP, A_R); S = A_KF
        def finish(hh):
            B = []; b = lambda t, tag=None: B.append(I(t, tag))
            KV = KVA[hh]; PQ = A_PQ + 32 * hh
            for sg in range(2):
                for j in range(2):
                    b("v_mov_b32 v%d, v%d" % (KV + 4 * sg + j, S + 4 * hh + 2 * sg + j))
                    b("v_cvt_pk_bf16_f32 v%d, v%d, v%d" % (KV + 4 * sg + 2 + j, Z[hh] + 4 * sg + 2 * j, Z[hh] + 4 * sg + 2 * j + 1))
            for w in ("16", "32"):
                for sg in range(2):
                    for j in range(2): b("v_permlane%s_swap_b32 v%d, v%d" % (w, KV + 4 * sg + j, KV + 4 * sg + 2 + j))
            if CFG["qnorm"]:
                NN = [A_LD + 16 * u for u in range(4)]
                for u in range(4):
                    for sg in range(2): b("v_mfma_f32_32x32x16_bf16 %s, %s, %s, %s" % (v(NN[u], 16), v(KV + 4 * sg, 4), v(PQ + 8 * u + 4 * sg, 4), v(NN[u], 16) if sg else "0"))
                for u in range(4):
                    N = NN[u]
                    b("v_add_f32 v%d, 0x358637bd, v%d" % (N + 8, N + 8)); b("v_rcp_f32 v%d, v%d" % (N + 8, N + 8))
                    for j in range(8): b("v_mul_f32 v%d, v%d, v%d" % (N + j, N + j, N + 8))
                    for j in range(4): b("v_cvt_pk_bf16_f32 v%d, v%d, v%d" % (A_PQ + 8 * u + 4 * (j >> 1) + 2 * hh + (j & 1), N + 2 * j, N + 2 * j + 1))
                    if hh:
                        b("s_mov_b32 s%d, %d" % (sT5, u * 147456))
                        for h2 in range(2): b("buffer_store_dwordx4 %s, v%d, %s, s%d offen offset:%d sc1" % (v(A_PQ + 8 * u + 4 * h2, 4), A_OS, srd(SWS), sT5, 512 * h2), "ost")
                P.extend(mprio(B, CFG["fprio"])); return
            b("s_mov_b32 exec_lo, 0xff000000"); b("s_mov_b32 exec_hi, 0xff000000")
            for j in range(8): b("v_mov_b32 v%d, 0x3f803f80" % (KV + j))
            b("s_mov_b64 exec, -1")
            buf = [A_LD + 32, A_LD]
            def mm(u):
                for sg in range(2): b("v_mfma_f32_32x32x16_bf16 %s, %s, %s, 0" % (v(buf[u & 1] + 16 * sg, 16), v(KV + 4 * sg, 4), v(PQ + 8 * u + 4 * sg, 4)))
            mm(0)
            for u in range(4):
                if u < 3: mm(u + 1)
                N = buf[u & 1]; Q = N + 16; O = PQ + 8 * u
                b("v_rcp_f32 v%d, v%d" % (N + 12, N + 12)); b("v_rcp_f32 v%d, v%d" % (Q + 12, Q + 12))
                b("v_fmaak_f32 v%d, v%d, v%d, 0x358637bd" % (N + 8, N + 8, N + 12)); b("v_fmac_f32 v%d, v%d, v%d" % (N + 8, Q + 8, Q + 12))
                b("v_rcp_f32 v%d, v%d" % (N + 8, N + 8))
                b("v_mul_f32 v%d, v%d, v%d" % (N + 12, N + 12, N + 8)); b("v_mul_f32 v%d, v%d, v%d" % (Q + 12, Q + 12, N + 8))
                for j in range(8): b("v_mul_f32 v%d, v%d, v%d" % (N + j, N + j, N + 12))
                for j in range(8): b("v_fmac_f32 v%d, v%d, v%d" % (N + j, Q + j, Q + 12))
                for j in range(4): b("v_cvt_pk_bf16_f32 v%d, v%d, v%d" % (A_PQ + 8 * u + 4 * (j >> 1) + 2 * hh + (j & 1), N + 2 * j, N + 2 * j + 1))
            P.extend(mprio(B, CFG["fprio"]))
        def stores(hh):
            for u in range(4):
                a("s_mov_b32 s%d, %d" % (sT5, u * 147456))
                a("buffer_store_dwordx4 %s, v%d, %s, s%d offen offset:%d sc1" % (v(A_PQ + 8 * u + 4 * hh, 4), A_OS, srd(SWS), sT5, 512 * hh), "ost")
        stamp(14)
        for hh in range(2): a(sload(SWS, sCC, 512 * hh + 128, sG + hh))
        for hh in range(2): sgate(P, sCC, 512 * hh + 128, sG + hh, 8)
        stamp(15)
        for hh in range(2):
            a("buffer_load_dwordx4 %s, v%d, %s, 0 offen offset:%d sc1" % (v(S + 4 * hh, 4), A_PL, srd(SWS), 2048 * hh))
            for sg in range(2): a("buffer_load_dwordx4 %s, v%d, %s, 0 offen offset:%d sc1" % (v(Z[hh] + 4 * sg, 4), A_ZL, srd(SWS), 256 * hh + 64 * sg))
        P.append(W(vm="all"))
        finish(0); finish(1)
        if not CFG["qnorm"]: stores(0); stores(1)
        stamp(16)
        P.append(W(vm=["ost"]))
        a("s_mov_b64 exec, 3"); a("buffer_atomic_add v%d, v%d, %s, 0 offen offset:%d sc1" % (A_ONE, A_CM, srd(SWS), C_O * 128)); a("s_mov_b64 exec, -1")
        stamp(17)
    if CFG["stamps"]:
        a("s_lshl_b32 s%d, s2, 8" % sT0); a("s_add_u32 s%d, s%d, %d" % (sT0, sT0, WS_ST + 0x30000))
        a("v_lshlrev_b32 v64, 2, v1")
        a("s_cmp_lg_u32 s%d, %d" % (sW1, CFG["stampw"] & 1)); a("s_cbranch_scc1 L_exit")
        a("buffer_store_dword v34, v64, %s, s%d offen" % (srd(SWS), sT0))
    a("s_endpgm")
    return P

def main():
    hdr = open("cdna_kernels/%s.s.ref" % NAME).read().split("; Override launch geometry")[0]
    out = [hdr.rstrip(), "; @launch grid=(256,1,1) block=(512,1,1) lds=163840",
           '.amdgcn_target "amdgcn-amd-amdhsa--gfx950"', ".text", ".globl %s_kernel" % NAME, ".p2align 8",
           ".type %s_kernel,@function" % NAME, "%s_kernel:" % NAME]
    t, st = finalize(prologue()); out += t
    import re
    norm = lambda t: re.sub(r"(L_[a-z]+)\d+", r"\1", t)
    for nm, fn in (("attn", attn_wave), ("dma", dma_wave), ("comp", compute)):
        t0 = finalize([I("s_cmp_eq_u32 s%d, 1" % sTY), I("s_cbranch_scc1 L_%s1" % nm)] + fn(0), st.clone())[0]
        t1 = finalize(fn(1), st.clone())[0]
        k = 0
        while CFG["share"] and norm(t0[-1 - k]) == norm(t1[-1 - k]): k += 1
        while k > 0:
            defs = lambda T: set(x[:-1] for x in T if x.endswith(":"))
            head = " ".join(t0[:len(t0) - k])
            if not any(re.search(r"\b%s\b" % d, head) for d in defs(t0[len(t0) - k:])) and not any(re.search(r"\b%s\b" % d, " ".join(t1[len(t1) - k:])) for d in defs(t1[:len(t1) - k])): break
            k -= 1
        if k > 50:
            t0 = t0[:len(t0) - k] + ["    s_branch L_%sj" % nm]; t1 = t1[:len(t1) - k] + ["L_%sj:" % nm] + t1[len(t1) - k:]
        out += ["L_%s:" % nm] + t0 + ["L_%s1:" % nm] + t1
    out += centre_sub() + STUBS
    out += lds_spin("c", 18, C_FV, CFG["cnap"]) + lds_spin("d", D_LA, D_DV, CFG["dnap"])
    out += ["L_exit:", "    s_endpgm", ".p2align 7", "L_tab:"] + ["    .long %d" % k for k in range(64)]
    out += ['.section .rodata,"a"', ".p2align 6", ".amdhsa_kernel %s_kernel" % NAME,
            "  .amdhsa_next_free_vgpr 256", "  .amdhsa_next_free_sgpr 100", "  .amdhsa_accum_offset 256",
            "  .amdhsa_group_segment_fixed_size 0", "  .amdhsa_kernarg_size 88", "  .amdhsa_user_sgpr_count 2",
            "  .amdhsa_user_sgpr_kernarg_segment_ptr 1", "  .amdhsa_system_sgpr_workgroup_id_x 1", ".end_amdhsa_kernel"]
    open(sys.argv[1], "w").write("\n".join(out) + "\n")
main()
```

```python
import sys, os, json
sys.path.insert(0, os.path.dirname(os.path.abspath(__file__)))
from asmir import I, W, L, M, v, s, finalize, State

NAME = "recurrent_scan__linear_kernel_hedgehog__glu_gated_bilinear__prompt"
CFG = dict(stamps=0, probe=0, probeat=-1, xprobe=0, outfl=" sc0 sc1", stampw=0, zoom=0, LA=7, LAF=3, erate=3, codepf=1, sleep=4, cnap=1, dnap=2, map=48, latin=1, pack=0, defer=3, nomark=[1, 3, 5, 7, 9, 11], pairs0=[6, 8, 10, 14, 16, 18], pairs1=[10, 12, 14], share=1, join=1, st2=12, wrat=3, stspread=0, qlate=0, ring2=[8, 9, 7, 0, 2, 3, 4, 5, 6], soft0=[], soft1=[], capsoft=48, zstep=1, bigring=0, bigto=20, cen0=32, dprio=0, hfl="sc1", cenat=4, nods=0, nost=0, noattn=0, light=0, nogate=[], qnorm=1, inl=0, tlb=0, tlbm=0xfffffff, s0at=2, kprio=0, qprio=0, fprio=0, wait2=1, kvfirst=1, l2nap=16, qpre=1, qpost=1, ftouch=0, fakeA=0, fakeP=0, dstep=2, fake16=0, lead=0, spoll=1, leadoff=0, who=[0, 2, 0, 2, 1, 3, 0, 2, 1], kpub=40, dry=0, aonly=0, map2=84, h2now=1, chk2=0,
           cap1=128, capt=160, cap2=112, capsw=20, awin=-1, pollat=2, hwait1=16, hwait2=-6, nb0=56, nb1=56, ahead2=4,
           bfirst=4, p2chk=1,
           rsat=66, exw0=[], exw1=[], afirst={},
           tplan0={"13": "m x"}, tplan1={"9": "m x"})
for a_ in sys.argv[2:]:
    k_, x_ = a_.split("="); assert k_ in CFG, k_; CFG[k_] = json.loads(x_)

WS_RS = 0x8000
WS_KV = 0x10000
WS_Z = 0x120000
WS_KVF = 0x130000; WS_ZF = 0x138000
WS_ST = 0x140000
WS_HO = 0x200000
WS_BYTES = WS_HO + 64 * 144 * 1024
C_H1A, C_H1B, C_H2, C_O = 0, 1, 2, 3
SLOT = 16384; STG = 32768; EX = 131072; FL = SLOT; LRS = FL + 2048; LSD = LRS + 512; F_INIT = 1792; LR2 = FL + 3072; LX = FL + 4096
F_LAND, F_DONE = 256, 768
F_EX, F_H, F_EXF, F_END = 32, 44, 52, 56
SX, SQKV, SPHI, SWO, SG, SU, SWD, SOUT, SDBG, SWS = 8, 12, 16, 20, 24, 28, 32, 36, 40, 44
sW, sW1, sI, sGR, sTY, sR1, sXR, sTT, sCT, sR2 = range(56, 66)
sT0, sT1, sT2, sT3, sT4, sT5 = range(66, 72)
sL2E = 72; sKC = 73; sSH = 74; sXL = 75; sKS = 76; sLA = 78; sXB = 79
sSPIN = 80; sRET = 82; sPH = 84; sTB = 88; sTM = 90; sMK = 94; sLM = 48; sLD = 49; sG = 50; sCC = 54; sPV = 55
srd = lambda b: s(b, 4)
LOG2E = 0x3fb8aa3b
XR = 128; ACC = 64; WF = 32
L_T, L_SEL, L_ID, L_SM, L_CM, L_SQ = 192, 224, 228, 232, 236, 240
L_XO, L_RR, L_C, L_SB, L_C7, L_WA, L_VA, L_VB = 124, 245, 246, 247, 248, 249, 251, 252
L_TR = 244
K_SQ, K_DL, K_RA = 16, 20, 24
H_STAMP = 255; H_STAMP2 = 254
_lbl = [0]
def newlbl():
    _lbl[0] += 1; return _lbl[0]
STUBS = []

PH = {0: [("P2", "kv", (0, 1)), ("P4", "gu", (2, 3, 0, 1)), ("P4", "gu", (0, 1, 2, 3))],
      1: [("P2", "q", (0, 1)), ("P2", "kv", (2, 3)), ("P4", "gu", (0, 1, 2, 3)), ("P2", "gu", (0, 1))]}
if CFG["kvfirst"]: PH[1][0:2] = [("P2", "kv", (0, 1)), ("P2", "q", (2, 3))]
if CFG["qlate"]: PH[1] = [("P2", "kv", (0, 1)), ("P4", "gu", (2, 3, 0, 1)), ("P2", "q", (0, 1)), ("P2", "gu", (2, 3))]
def slabs_of(ty):
    return [(pi, k, sg) for pi, (k, e, _) in enumerate(PH[ty]) for sg in range(8 if k == "P4" else 4)]
def slot_of(n):
    return (0, 2, 3, 4, 5, 6, 7)[n % 7]
NPK = CFG["pack"]; R2_ = CFG["ring2"]; LOC = {}
for n_ in range(20, 20 + NPK):
    LOC[(n_, "B")] = (R2_[(n_ - 20) // 2], n_ & 1); LOC[(n_, "A")] = (R2_[NPK // 2 + (n_ - 20) // 2], n_ & 1)
R3_ = R2_[NPK:] + [R2_[k + h * (NPK // 2)] for k in range(NPK // 2) for h in range(2)]
for n_ in range(20 + NPK, 56):
    LOC[(n_, "B")] = (R3_[(n_ - 20 - NPK) % 9], 0); LOC[(n_, "A")] = (R3_[(n_ - 20 - NPK) % 9], 1)
def prev_user(n, w="F"):
    mine = {(slot_of(n), 0), (slot_of(n), 1)} if n < 20 else {LOC[(n, x)] for x in ("AB" if w == "F" else w)}
    p = [m for m in range(n) if mine & ({(slot_of(m), 0), (slot_of(m), 1)} if m < 20 else {LOC[(m, "A")], LOC[(m, "B")]})]
    return p[-1] if p else -1
def marked(n): return (n not in CFG["nomark"]) if n < 20 else n % CFG["dstep"] == CFG["dstep"] - 1
def checks(ty):
    c = {0: 0, 1: 1}
    for n in range(2, CFG["nb%d" % ty], 2):
        if ((CFG["chk2"] or n in CFG["pairs%d" % ty]) if n < 20 else CFG["p2chk"] == 2): c[n] = n + 1
        else: c[n] = n; c[n + 1] = n + 1
    return c

def stamp_to(P, k, reg=H_STAMP):
    if CFG["stamps"]:
        P.append(I("s_memtime %s" % s(sTM + 2, 2))); P.append(W(lg="all"))
        P.append(I("s_sub_u32 s%d, s%d, s%d" % (sTM + 2, sTM + 2, sTM))); P.append(I("v_writelane_b32 v%d, s%d, %d" % (reg, sTM + 2, k)))
def rstamp(P, k):
    if CFG["stamps"]:
        P.append(I("s_memrealtime s[6:7]")); stamp_to(P, k, H_STAMP2)
        P.append(I("s_sub_u32 s6, s6, s4")); P.append(I("v_writelane_b32 v%d, s6, %d" % (H_STAMP2, k + 1)))
def raw(P, items):
    for x in finalize(items)[0]: P.append(L(x))
def only(P, cond, items):
    n = newlbl()
    for t in cond: P.append(I(t))
    P.append(I("s_cbranch_scc1 L_sk%d" % n)); raw(P, items); P.append(L("L_sk%d:" % n))
def one_lane(X, t, tag=None):
    X.append(I("s_mov_b64 exec, 1")); X.append(I(t, tag)); X.append(I("s_mov_b64 exec, -1"))

def p4_voffs(a, va, vb, stride, t):
    a("v_lshrrev_b32 v%d, 3, v1" % t)
    a("v_and_b32 v%d, 2, v%d" % (t + 1, t)); a("v_lshlrev_b32 v%d, 1, v%d" % (t + 1, t + 1))
    a("v_and_b32 v%d, 7, v1" % (t + 2)); a("v_xor_b32 v%d, v%d, v%d" % (t + 2, t + 2, t + 1))
    a("v_mul_u32_u24 v%d, %d, v%d" % (t, stride, t))
    a("v_lshl_add_u32 v%d, v%d, 4, v%d" % (va, t + 2, t))
    a("v_xor_b32 v%d, 32, v%d" % (vb, va))
def p2_voffs(a, va, vb, stride, t):
    a("v_lshrrev_b32 v%d, 2, v1" % t)
    a("v_and_b32 v%d, 3, v1" % (t + 2)); a("v_lshrrev_b32 v%d, 4, v1" % (t + 1)); a("v_and_b32 v%d, 2, v%d" % (t + 1, t + 1)); a("v_xor_b32 v%d, v%d, v%d" % (t + 2, t + 2, t + 1))
    a("v_mul_u32_u24 v%d, %d, v%d" % (t, stride, t))
    a("v_lshl_add_u32 v%d, v%d, 4, v%d" % (va, t + 2, t))
    a("v_mov_b32 v%d, v%d" % (vb, va))
def ident(a, dst, t):
    a("v_and_b32 v%d, 3, v1" % t)
    a("v_and_b32 v%d, 1, v1" % (t + 1)); a("v_lshlrev_b32 v%d, 4, v%d" % (t + 1, t + 1)); a("v_mov_b32 v%d, 0x3f80" % (t + 2))
    a("v_lshlrev_b32 v%d, v%d, v%d" % (t + 1, t + 1, t + 2))
    a("v_cmp_gt_u32 vcc, 2, v%d" % t)
    a("v_cndmask_b32 v%d, 0, v%d, vcc" % (dst, t + 1)); a("v_sub_u32 v%d, v%d, v%d" % (dst + 1, t + 1, dst))

X_V = 48
def prologue():
    P = []; a = lambda t, tag=None: P.append(I(t, tag))
    a("s_cmp_ge_u32 s2, 256")
    a("s_cbranch_scc1 L_exit")
    a("s_load_dwordx2 %s, s[0:1], 0" % s(SX, 2)); a("s_load_dwordx2 %s, s[0:1], 8" % s(SQKV, 2))
    if CFG["probe"]: a("s_memrealtime s[4:5]")
    if CFG["light"]: a("s_memtime %s" % s(sTM, 2)); a("s_memrealtime s[4:5]")
    if CFG["stamps"]:
        a("s_memtime %s" % s(sTM, 2)); a("s_memrealtime s[4:5]")
    a("s_lshr_b32 s%d, s2, 3" % sSH)
    a("s_getpc_b64 %s" % s(sTB, 2)); P.append(L("L_pc:"))
    if CFG["codepf"]:
        a("s_mul_i32 s%d, s%d, 24" % (sT0, sSH))
        a("v_add_u32 v3, s%d, v0" % sT0); a("v_lshlrev_b32 v3, 7, v3"); a("v_min_u32 v3, L_tab-L_pc+252, v3")
        a("v_cmp_gt_u32 vcc, 24, v0"); a("s_and_saveexec_b64 s[48:49], vcc"); a("s_cbranch_execz L_nopf")
        P.append(L("    global_load_dword v%d, v3, %s" % (X_V + 5, s(sTB, 2))))
        P.append(L("L_nopf:")); a("s_mov_b64 exec, -1")
    a("v_lshrrev_b32 v2, 6, v0")
    a("v_and_b32 v1, 63, v0")
    a("v_readfirstlane_b32 s%d, v2" % sW)
    a("s_and_b32 s%d, s2, 7" % sT5)
    a("s_lshr_b32 s%d, s%d, 4" % (sTY, sSH))
    if CFG["map"] == 48:
        a("s_and_b32 s%d, s%d, 3" % (sT3, sSH)); a("s_lshl_b32 s%d, s%d, 1" % (sXR, sT3))
        a("s_lshr_b32 s%d, s%d, 1" % (sT2, sT5)); a("s_lshl_b32 s%d, s%d, 2" % (sT2, sT2)); a("s_add_u32 s%d, s%d, s%d" % (sI, sT2, sT3))
        a("s_lshr_b32 s%d, s%d, 2" % (sR1, sSH))
        a("s_and_b32 s%d, s%d, 1" % (sT2, sT5)); a("s_lshl_b32 s%d, s%d, 2" % (sT2, sT2)); a("s_and_b32 s%d, s%d, 3" % (sT3, sR1)); a("s_add_u32 s%d, s%d, s%d" % (sGR, sT2, sT3))
    else:
        a("s_and_b32 s%d, s%d, 7" % (sXR, sSH))
        a("s_lshr_b32 s%d, s%d, 2" % (sT2, sT5)); a("s_lshl_b32 s%d, s%d, 3" % (sT2, sT2)); a("s_add_u32 s%d, s%d, s%d" % (sI, sT2, sXR))
        a("s_lshr_b32 s%d, s%d, 3" % (sT3, sSH)); a("s_lshl_b32 s%d, s%d, 1" % (sR1, sT3))
        a("s_and_b32 s%d, s%d, 3" % (sT2, sT5)); a("s_lshl_b32 s%d, s%d, 1" % (sT2, sT2)); a("s_and_b32 s%d, s%d, 1" % (sT3, sT3)); a("s_add_u32 s%d, s%d, s%d" % (sGR, sT2, sT3))
    if CFG["latin"]: a("s_add_u32 s%d, s%d, s%d" % (sR1, sR1, sXR)); a("s_and_b32 s%d, s%d, 7" % (sR1, sR1))
    a("s_mov_b32 s%d, 2097152" % (SX + 2)); a("s_mov_b32 s%d, 0x20000" % (SX + 3))
    X = []; x = lambda t, tag=None: X.append(I(t, tag))
    x("v_lshrrev_b32 v4, 3, v1"); x("v_lshrrev_b32 v5, 4, v1"); x("v_and_b32 v6, 7, v1"); x("v_xor_b32 v5, v5, v6")
    x("v_lshlrev_b32 v4, 10, v4"); x("v_lshl_add_u32 v%d, v5, 4, v4" % X_V)
    x("v_xor_b32 v4, 64, v%d" % X_V)
    x("v_add_u32 v%d, 7168, v4" % (X_V + 1)); x("v_add_u32 v%d, 14336, v%d" % (X_V + 2, X_V)); x("v_add_u32 v%d, 21504, v4" % (X_V + 3))
    x("s_and_b32 s%d, s%d, 3" % (sT0, sW)); x("s_lshl_b32 s%d, s%d, 12" % (sXL, sT0)); x("s_add_u32 s%d, s%d, %d" % (sXL, sXL, STG))
    x("s_lshl_b32 s%d, s%d, 15" % (sT0, sT0)); x("s_lshl_b32 s%d, s%d, 17" % (sXB, sI)); x("s_add_u32 s%d, s%d, s%d" % (sXB, sXB, sT0))
    x("s_cmp_lt_u32 s%d, 4" % sW); x("s_cbranch_scc1 L_nox")
    x("s_waitcnt lgkmcnt(0)")
    xline(x, 0); xline(x, 1)
    raw(P, X); P.append(L("L_nox:"))
    if CFG["stamps"]:
        a("v_mov_b32 v%d, 0" % H_STAMP); a("v_mov_b32 v%d, 0" % H_STAMP2); P.append(W(lg="all"))
    stamp_to(P, 0, H_STAMP2)
    for b, off in ((SPHI, 16), (SWS, 80), (SG, 40), (SU, 48), (SWO, 24), (SWD, 56), (SOUT, 64), (SDBG, 72)):
        a("s_load_dwordx2 %s, s[0:1], %d" % (s(b, 2), off))
    for b, n in ((SQKV, 1572864), (SPHI, 16384), (SWO, 524288), (SG, 1835008), (SU, 1835008), (SWD, 1835008), (SOUT, 2097152), (SDBG, 256), (SWS, WS_BYTES)):
        a("s_mov_b32 s%d, %d" % (b + 2, n)); a("s_mov_b32 s%d, 0x20000" % (b + 3))
    a("s_lshl_b32 s%d, s%d, 7" % (sKC, sGR)); a("s_lshl_b32 s%d, s%d, 6" % (sT0, sTY)); a("s_add_u32 s%d, s%d, s%d" % (sKC, sKC, sT0)); a("s_add_u32 s%d, s%d, 1024" % (sKC, sKC))
    if CFG["map2"] == 48:
        a("s_lshr_b32 s%d, s%d, 2" % (sCT, sSH)); a("s_and_b32 s%d, s%d, 3" % (sT3, sSH))
        a("s_lshl_b32 s%d, s%d, 2" % (sT2, sT5)); a("s_add_u32 s%d, s%d, s%d" % (sTT, sT2, sT3))
        a("s_lshl_b32 s%d, s%d, 1" % (sT3, sT3)); a("s_add_u32 s%d, s%d, s%d" % (sR2, sT3, sCT))
    else:
        a("s_lshr_b32 s%d, s%d, 3" % (sT3, sSH)); a("s_and_b32 s%d, s%d, 1" % (sT2, sT5)); a("s_lshl_b32 s%d, s%d, 2" % (sT2, sT2)); a("s_add_u32 s%d, s%d, s%d" % (sCT, sT2, sT3))
        a("s_and_b32 s%d, s%d, 7" % (sT1, sSH)); a("s_lshr_b32 s%d, s%d, 1" % (sT2, sT5)); a("s_lshl_b32 s%d, s%d, 3" % (sT2, sT2)); a("s_add_u32 s%d, s%d, s%d" % (sTT, sT2, sT1))
        a("s_and_b32 s%d, s%d, 1" % (sT3, sT3)); a("s_lshl_b32 s%d, s%d, 1" % (sT3, sT3)); a("s_add_u32 s%d, s%d, s%d" % (sT3, sT3, sTY))
        if CFG["lead"]: a("s_mov_b32 s%d, s%d" % (sLD, sT3)); a("s_mov_b32 s%d, s%d" % (sR2, sT1))
        else: a("s_lshl_b32 s%d, s%d, 1" % (sT3, sT3)); a("s_add_u32 s%d, s%d, s%d" % (sR2, sT3, sT1))
    a("s_and_b32 s%d, s%d, 1" % (sW1, sW))
    a("s_mov_b32 s%d, 0x%x" % (sL2E, LOG2E))
    a("s_add_u32 s%d, s%d, L_tab-L_pc" % (sTB, sTB)); a("s_addc_u32 s%d, s%d, 0" % (sTB + 1, sTB + 1))
    P.append(W(lg="all"))
    a("s_cmp_lt_u32 s%d, 4" % sW); a("s_cbranch_scc1 L_comp")
    a("s_cmp_lt_u32 s%d, 6" % sW); a("s_cbranch_scc1 L_dma")
    return P

def xline(a, j):
    a("s_add_u32 s%d, s%d, %d" % (sT0, sR1, j)); a("s_and_b32 s%d, s%d, 7" % (sT0, sT0)); a("s_lshl_b32 s%d, s%d, 7" % (sT0, sT0)); a("s_add_u32 s%d, s%d, s%d" % (sT0, sT0, sXB))
    a("s_add_u32 m0, s%d, %d" % (sXL, j * 16384))
    for p in range(4): a("buffer_load_dwordx4 v%d, %s, s%d offen offset:%d lds" % (X_V + p, srd(SX), sT0, p * 1024), ("x", j))
def xstages(P, extra):
    a = lambda t, tag=None: P.append(I(t, tag))
    xline(a, 2); xline(a, 3)
    for j in range(4):
        P.append(W(vm=[("x", 2 * j + 1)]))
        a("s_barrier")
        if j == 0: stamp_to(P, 2, H_STAMP2)
        if j < 2: xline(a, 2 * j + 4); xline(a, 2 * j + 5)
        if j in extra: extra[j]()

def fcols(a, ty):
    if ty == 0:
        a("s_lshl_b32 s%d, s%d, 7" % (sKS, sGR)); a("s_add_u32 s%d, s%d, 64" % (sKS + 1, sKS))
    else:
        a("s_mul_i32 s%d, s%d, 96" % (sT0, sGR)); a("s_add_u32 s%d, s%d, 1024" % (sT0, sT0))
        a("s_and_b32 s%d, s%d, 1" % (sT1, sGR)); a("s_lshl_b32 s%d, s%d, 5" % (sT2, sT1))
        a("s_add_u32 s%d, s%d, s%d" % (sKS, sT0, sT2))
        a("s_xor_b32 s%d, s%d, 1" % (sT1, sT1)); a("s_lshl_b32 s%d, s%d, 6" % (sT1, sT1))
        a("s_add_u32 s%d, s%d, s%d" % (sKS + 1, sT0, sT1))

def clear_low(a, used):
    for k in range(2, 64):
        if k not in used: a("v_mov_b32 v%d, 0" % k)

def lds_spin(nm, va, vd, nap):
    X = ["L_spin_%s:" % nm, "    s_mov_b32 s%d, 0" % sSPIN, "L_spl_%s:" % nm]
    if nap: X.append("    s_sleep %d" % nap)
    X += ["    ds_read_b32 v%d, v%d" % (vd, va), "    s_add_u32 s%d, s%d, 1" % (sSPIN, sSPIN), "    s_waitcnt lgkmcnt(0)",
          "    s_cmp_ge_u32 s%d, 0x1000000" % sSPIN, "    s_cbranch_scc1 L_spr_%s" % nm,
          "    v_cmp_gt_u32 vcc, s%d, v%d" % (sSPIN + 1, vd), "    s_cbranch_vccnz L_spl_%s" % nm, "L_spr_%s:" % nm, "    s_setpc_b64 %s" % s(sRET, 2)]
    return X
def count_wait(P, vfl, vd, off, want):
    n = newlbl()
    P.append(W(lg="all"))
    for t in ["    s_mov_b32 s%d, 0" % sSPIN, "L_cw%d:" % n, "    ds_read_b32 v%d, v%d offset:%d" % (vd, vfl, off), "    s_add_u32 s%d, s%d, 1" % (sSPIN, sSPIN),
              "    s_waitcnt lgkmcnt(0)", "    v_cmp_le_u32 vcc, %d, v%d" % (want, vd), "    s_cbranch_vccnz L_cx%d" % n, "    s_sleep %d" % CFG["dnap"],
              "    s_cmp_lt_u32 s%d, 0x1000000" % sSPIN, "    s_cbranch_scc1 L_cw%d" % n, "L_cx%d:" % n]: P.append(L(t))

def sload(base, soff, off, sdst):
    return "s_load_dword s%d, %s, %s glc" % (sdst, s(base, 2), ("s%d offset:%d" % (soff, off)) if soff is not None else "%d" % off)
def sgate(P, soff, off, sdst, want, base=None):
    n = newlbl()
    P.append(W(lg="all"))
    P.append(I("s_cmp_eq_u32 s%d, %d" % (sdst, want))); P.append(I("s_cbranch_scc1 L_ok%d" % n))
    X = ["    s_mov_b32 s%d, 0" % sSPIN, "L_spin%d:" % n]
    if CFG["sleep"]: X.append("    s_sleep %d" % CFG["sleep"])
    X += ["    " + sload(SWS if base is None else base, soff, off, sdst), "    s_add_u32 s%d, s%d, 1" % (sSPIN, sSPIN),
          "    s_waitcnt lgkmcnt(0)", "    s_cmp_eq_u32 s%d, %d" % (sdst, want), "    s_cbranch_scc1 L_ok%d" % n,
          "    s_cmp_lt_u32 s%d, 0x80000" % sSPIN, "    s_cbranch_scc1 L_spin%d" % n, "L_ok%d:" % n]
    for t in X: P.append(L(t))

def gate(P, vaddr, srdb, off, tag, vdst, want, slow=None):
    n = newlbl()
    P.append(W(lg=[tag]) if tag == "init" else W(vm=[tag]))
    P.append(I("v_cmp_eq_u32 vcc, %d, v%d" % (want, vdst)))
    P.append(I("s_cbranch_vccnz L_ok%d" % n))
    if slow: raw(P, slow)
    X = ["    s_mov_b32 s%d, 0" % sSPIN, "L_spin%d:" % n]
    if CFG["sleep"]: X.append("    s_sleep %d" % CFG["sleep"])
    X += ["    buffer_load_dword v%d, v%d, %s, 0 offen offset:%d sc1" % (vdst, vaddr, srd(srdb), off), "    s_add_u32 s%d, s%d, 1" % (sSPIN, sSPIN),
          "    s_waitcnt vmcnt(0)", "    v_cmp_eq_u32 vcc, %d, v%d" % (want, vdst), "    s_cbranch_vccnz L_ok%d" % n,
          "    s_cmp_lt_u32 s%d, 0x80000" % sSPIN, "    s_cbranch_scc1 L_spin%d" % n, "L_ok%d:" % n]
    for t in X: P.append(L(t))

C_XA, N_ONES, N_SQ = ACC + 16, ACC + 20, ACC + 24
N_T, N_CM, N_ID, N_R, N_DL, N_TK = ACC + 32, ACC + 48, ACC + 56, ACC + 58, ACC + 62, ACC + 63
C_A2, C_B2, C_OUT, C_RO = 25, 28, 31, 0
C_FV, C_HC, C_FL, C_ONE, C_DV, C_CM = 16, 20, 21, 22, 23, 24
MM = "v_mfma_f32_16x16x32_bf16"
def compute_setup(ty):
    P = []; a = lambda t, tag=None: P.append(I(t, tag))
    t = list(range(32, 48))
    tk, G, r, c, g0, g1 = t[0:6]
    a("v_and_b32 v%d, 15, v1" % tk); a("v_lshrrev_b32 v%d, 4, v1" % G); a("v_and_b32 v%d, 1, v%d" % (g0, G)); a("v_lshrrev_b32 v%d, 5, v1" % g1)
    a("s_lshl_b32 s%d, s%d, 12" % (sT1, sW)); a("s_add_u32 s%d, s%d, %d" % (sT1, sT1, STG))
    a("v_lshlrev_b32 v%d, 7, v%d" % (t[6], tk)); a("v_add_u32 v%d, s%d, v%d" % (t[7], sT1, t[6]))
    a("v_lshrrev_b32 v%d, 1, v%d" % (t[8], tk)); a("v_xor_b32 v%d, v%d, v%d" % (t[8], t[8], G))
    a("v_lshl_add_u32 v%d, v%d, 4, v%d" % (C_XA, t[8], t[7])); a("v_xor_b32 v%d, 64, v%d" % (C_XA + 1, C_XA))
    for k in range(2): a("v_add_u32 v%d, 0x10000, v%d" % (C_XA + 2 + k, C_XA + k)); a("v_mov_b32 v%d, 0x3f803f80" % (N_ONES + k))
    ident(a, N_ID, t[13])
    for j in range(3): a("v_cmp_eq_u32 %s, %d, v%d" % (s(sMK + 2 * j, 2), j + 1, t[13]))
    a("v_mov_b32 v%d, %d" % (C_FL, FL)); a("v_mov_b32 v%d, 1" % C_ONE); a("s_lshl_b32 s%d, s%d, 1" % (sT4, sI)); a("s_lshr_b32 s%d, s%d, 1" % (sT3, sW)); a("s_add_u32 s%d, s%d, s%d" % (sT4, sT4, sT3))
    a("s_lshl_b32 s%d, s%d, 9" % (sT4, sT4)); a("v_mov_b32 v%d, s%d" % (C_CM, sT4))
    a("v_and_b32 v18, 1, v1"); a("v_lshlrev_b32 v18, 8, v18"); a("v_add_u32 v18, %d, v18" % (FL + F_LAND))
    a("s_lshl_b32 s%d, s%d, 8" % (sT4, sW)); a("s_add_u32 m0, s%d, %d" % (sT4, FL + F_DONE))
    a("s_lshl_b32 s%d, s%d, 5" % (sT4, sW)); a("v_and_b32 v%d, 31, v1" % N_TK); a("v_add_u32 v%d, s%d, v%d" % (N_TK, sT4, N_TK))
    a("v_bfe_u32 v%d, v1, 2, 2" % r); a("v_and_b32 v%d, 3, v1" % c); a("v_lshlrev_b32 v%d, 3, v%d" % (c, c))
    a("v_lshl_add_u32 v%d, v%d, 11, v%d" % (t[8], G, c)); a("v_lshl_add_u32 v%d, v%d, 7, v%d" % (t[8], r, t[8]))
    a("v_and_b32 v%d, 2, v%d" % (t[9], r)); a("v_xor_b32 v%d, v%d, v%d" % (t[9], t[9], g0))
    a("v_lshl_add_u32 v2, v%d, 5, v%d" % (t[9], t[8]))
    for k in range(1, 4): a("v_xor_b32 v%d, %d, v2" % (2 + k, 32 * k))
    for k in range(4): a("v_add_u32 v%d, 0x10000, v%d" % (6 + k, 2 + k))
    a("v_lshl_add_u32 v%d, v%d, 11, v%d" % (t[8], g1, c)); a("v_lshl_add_u32 v%d, v%d, 6, v%d" % (t[8], r, t[8]))
    a("v_mul_u32_u24 v%d, 544, v%d" % (t[9], g0)); a("v_add_u32 v10, v%d, v%d" % (t[8], t[9])); a("v_xor_b32 v11, 32, v10")
    for k in range(2): a("v_add_u32 v%d, 0x10000, v%d" % (12 + k, 10 + k))
    a("s_lshl_b32 s%d, s%d, 13" % (sT0, sW)); a("s_add_u32 s%d, s%d, %d" % (sT0, sT0, EX))
    a("v_lshlrev_b32 v15, 9, v%d" % g0); a("v_lshl_add_u32 v15, v%d, 4, v15" % tk); a("v_lshl_add_u32 v15, v%d, 3, v15" % g1); a("v_add_u32 v15, s%d, v15" % sT0)
    a("v_lshlrev_b32 v%d, 4, v1" % t[11])
    a("s_lshl_b32 s%d, s%d, 2" % (sT0, sI)); a("s_add_u32 s%d, s%d, s%d" % (sT0, sT0, sW)); a("s_mul_i32 s%d, s%d, %d" % (sT0, sT0, 147456))
    a("s_add_u32 s%d, s%d, %d" % (sT0, sT0, WS_HO)); a("v_add_u32 v14, s%d, v%d" % (sT0, t[11]))
    fcols(a, ty)
    a("s_lshl_b32 s%d, s%d, 6" % (sKS, sKS)); a("s_lshl_b32 s%d, s%d, 6" % (sKS + 1, sKS + 1))
    a("s_lshr_b32 s%d, s%d, 1" % (sT0, sW))
    a("s_lshl_b32 s%d, s%d, 13" % (sT2, sT0))
    a("v_add_u32 v%d, s%d, v%d" % (C_A2, sT2, t[11])); a("v_add_u32 v%d, 0x10000, v%d" % (C_A2 + 1, C_A2)); a("v_add_u32 v%d, 0x20000, v%d" % (C_A2 + 2, C_A2))
    u = t[12]
    a("v_bfe_u32 v%d, v1, 3, 2" % u); a("s_lshl_b32 s%d, s%d, 1" % (sT4, sW1)); a("v_xor_b32 v%d, s%d, v%d" % (u, sT4, u)); a("v_lshl_add_u32 v%d, v%d, 5, v%d" % (C_B2, u, c))
    a("v_lshrrev_b32 v%d, 2, v1" % u); a("v_lshl_add_u32 v%d, v%d, 7, v%d" % (C_B2, u, C_B2))
    a("v_add_u32 v%d, 0x10000, v%d" % (C_B2 + 1, C_B2)); a("v_add_u32 v%d, 0x20000, v%d" % (C_B2 + 2, C_B2))
    a("s_lshl_b32 s%d, s%d, 5" % (sT3, sT0)); a("v_add_u32 v%d, s%d, v%d" % (u, sT3, tk)); a("v_lshlrev_b32 v%d, 2, v%d" % (C_RO, u))
    a("s_lshl_b32 s%d, s%d, 6" % (sT4, sW1))
    a("v_lshlrev_b32 v17, 7, v%d" % u); a("v_lshl_add_u32 v17, v%d, 3, v17" % G); a("v_add_u32 v17, s%d, v17" % sT4)
    a("s_lshl_b32 s%d, s%d, 16" % (sT2, sTT)); a("s_lshl_b32 s%d, s%d, 7" % (sT3, sCT)); a("s_add_u32 s%d, s%d, s%d" % (sT3, sT3, sT4)); a("s_add_u32 s%d, s%d, s%d" % (sT3, sT3, sT2))
    a("v_lshlrev_b32 v%d, 10, v%d" % (u, u)); a("v_lshl_add_u32 v%d, v%d, 5, v%d" % (u, g0, u)); a("v_lshl_add_u32 v%d, v%d, 4, v%d" % (u, g1, u)); a("v_add_u32 v%d, s%d, v%d" % (C_OUT, sT3, u))
    return P

def centre(a, k0, k1):
    def cen(k, h): a("v_mfma_f32_4x4x4_16b_bf16 %s, %s, %s, %s" % (v(N_T + 8 * (k & 1) + 4 * h, 4), v(N_ID, 2), v(XR + 4 * k + 2 * h, 2), v(N_CM + 4 * (k & 1), 4)))
    cen(k0, 0); cen(k0, 1); cen(k0 + 1, 0)
    for k in range(k0, k1):
        for h in range(2):
            kn, hn = k + (h + 3) // 2, (h + 3) & 1
            if kn < k1: cen(kn, hn)
            for j in (2 * h, 2 * h + 1): a("v_cvt_pk_bf16_f32 v%d, v%d, v%d" % (XR + 4 * k + j, N_T + 8 * (k & 1) + 2 * j, N_T + 8 * (k & 1) + 2 * j + 1))
def centre_sub():
    P = []; centre(lambda t: P.append(I(t)), 0, 24); P.append(I("s_setpc_b64 %s" % s(sRET, 2)))
    return ["L_centre:"] + finalize(P)[0]
def fold4(x, p, q):
    x("v_permlane16_swap_b32 v%d, v%d" % (p, q)); x("v_add_f32 v%d, v%d, v%d" % (p, p, q))
    x("v_mov_b32 v%d, v%d" % (q, p)); x("v_permlane32_swap_b32 v%d, v%d" % (p, q)); x("v_add_f32 v%d, v%d, v%d" % (p, p, q))

def compute(ty):
    P = compute_setup(ty); a = lambda t, tag=None: P.append(I(t, tag))
    CH = checks(ty)
    ops = []; queue = []
    sl = slabs_of(ty); gu_seen = 0; ex_seen = 0
    firstuse = {}; epi = []; late_w = []
    def pair(acc, fa, fb2, zero):
        return ["%s %s, %s, %s, %s" % (MM, v(acc + 4 * h, 4), v(fa, 4), v(fb2 + 4 * h, 4), "0" if zero else v(acc + 4 * h, 4)) for h in range(2)]
    for n, (pi, kind, sg) in enumerate(sl):
        e, tiles = PH[ty][pi][1:]
        order = tiles if sg == 0 else sorted(tiles)
        nk = 2 if kind == "P4" else 4
        last = sg == (7 if kind == "P4" else 3)
        jn = CFG["join"] if kind == "P4" else 1
        if sg > 7 - jn and not last: continue
        for t in order:
            if sg == 0: firstuse[(pi, t)] = len(ops)
            for back in (range(jn - 1, -1, -1) if last else (0,)):
                slot = slot_of(n - back); win = slot >> 2; base = (slot & 3) * SLOT
                for u in range(nk):
                    for mat in range(2):
                        m = len(ops); fb = WF + 4 * (m & 7)
                        if kind == "P4": ar, off, dq = 2 + 4 * win + t, base + u * 8192 + mat * 1024, 512
                        else: ar, off, dq = 10 + 2 * win + (t & 1), base + u * 4096 + mat * 1024, 256
                        ops.append(dict(slab=n - back, reads=[("ds_read_b64_tr_b16 %s, v%d offset:%d" % (v(fb, 2), ar, off), ("f", m)),
                                                              ("ds_read_b64_tr_b16 %s, v%d offset:%d" % (v(fb + 2, 2), ar, off + dq), ("f", m))],
                                        la=CFG["LA"], mfma=pair(ACC + 16 * t + 8 * mat, fb, XR + 8 * ((sg - back) * nk + u), sg == 0 and u == 0)))
            if last:
                A = ACC + 16 * t; E = []; hold = [t]
                if e == "gu":
                    D = ACC + 16 * (t & ~1) + 8; hold = [t, t & ~1]
                    for j in range(8): E.append(I("v_mul_f32 v%d, v%d, v%d" % (A + j, A + j, A + j + 8)))
                    for j in range(4):
                        E.append(I("v_cvt_pk_bf16_f32 v%d, v%d, v%d" % (D + 4 * (j >> 1) + 2 * (t & 1) + (j & 1), A + 2 * j, A + 2 * j + 1)))
                        if t & 1 and j & 1:
                            E.append(I("buffer_store_dwordx4 %s, v14, %s, s%d offen offset:%d %s" % (v(D + 4 * (j >> 1), 4), srd(SWS), sKS + gu_seen, ((t - 1 if kind == "P4" else 0) + (j >> 1)) * 1024, CFG["hfl"]), ("h", gu_seen)))
                else:
                    for j in range(4):
                        for k in range(2): E.append(I("v_cvt_pk_bf16_f32 v%d, v%d, v%d" % (A + 4 * j + k, A + 4 * j + 2 * k, A + 4 * j + 2 * k + 1)))
                        E.append(I("ds_write_b64 v15, %s offset:%d" % (v(A + 4 * j, 2), ((t & 1) + 2 * (e == "q")) * 2048 + (j >> 1) * 1024 + (j & 1) * 256)))
                    if t == order[-1]:
                        g = []; one_lane(g, "ds_add_u32 v%d, v%d offset:%d" % (C_FL, C_ONE, F_EX + 4 * ex_seen)); E.append(g); ex_seen += 1
                if CFG["nods"]: E = [x_ for x_ in E if not (isinstance(x_, I) and x_.t.startswith("ds_write"))]
                if CFG["nost"]: E = [(M(x_.tag) if isinstance(x_, I) and x_.t.startswith("buffer_store") else x_) for x_ in E]
                if CFG["stspread"] and e == "gu" and t & 1:
                    st_ = [x_ for x_ in E if isinstance(x_, I) and x_.t.startswith("buffer_store")]
                    nst = 4 if kind == "P4" else 2; endp = (len(ops) + 15) // 16 * 16
                    for q_, x_ in enumerate(st_):
                        idx = (t - 1 if kind == "P4" else 0) + q_
                        if idx < nst - 1: E.remove(x_); epi.append((endp + 4 - (nst - 1 - idx) * CFG["stspread"], 99, [], [x_]))
                if CFG["wrat"] >= 0 and e != "gu":
                    wr = [x_ for x_ in E if not (isinstance(x_, I) and x_.t.startswith("v_"))]
                    E = [x_ for x_ in E if x_ not in wr]
                    late_w.append(((len(ops) + 15) // 16 * 16 + CFG["wrat"], pi, hold, [sum([x_ if isinstance(x_, list) else [x_] for x_ in wr], [])]))
                if e == "gu" and t == 1 and jn > 1: late_w.append((len(ops) + CFG["st2"], pi, hold, [E.pop()]))
                epi.append((len(ops), pi, hold, E))
        if last and e == "gu":
            kind_ = (C_H1B if ty else C_H1A) if gu_seen == 0 else C_H2
            g1 = [W(vm=[("h", gu_seen)])]; one_lane(g1, "buffer_atomic_add v%d, v%d, %s, 0 offen offset:%d sc1" % (C_ONE, C_CM, srd(SWS), kind_ * 128))
            epi.append((len(ops) + 6 + CFG["hwait1" if gu_seen == 0 else "hwait2"], 99, [], [g1]))
            gu_seen += 1
    n1 = len(ops)
    HB = XR; RES = XR + 32; R2 = XR + 40
    Y, S_ = XR + 48, XR + 64
    for n in range(20, 56):
        (sb_, hb_), (sa_, ha_) = LOC[(n, "B")], LOC[(n, "A")]
        win = sb_ >> 2; base = (sb_ & 3) * SLOT + hb_ * 2048; wina = sa_ >> 2; basea = (sa_ & 3) * SLOT + ha_ * 2048
        for kk in range(4):
            u, nb = kk >> 1, kk & 1
            m = len(ops); fb = WF + 4 * (m & 7); hb = HB + 8 * ((m >> 1) & 3); br = (2 if nb else C_B2) + win
            blk = (lambda q: 2 * u + q) if n < 48 else (lambda q: u + 2 * q)
            rd = [("ds_read_b64_tr_b16 %s, v%d offset:%d" % (v(fb + 2 * q, 2), br, base + blk(q) * 4096), ("f", m)) for q in range(2)]
            if not nb: rd += [("ds_read_b128 %s, v%d offset:%d" % (v(hb + 4 * h, 4), C_A2 + wina, basea + u * 4096 + h * 1024), ("f", m)) for h in range(2)]
            ops.append(dict(slab=n, reads=rd, la=4 if n > 20 else kk + 1, mfma=pair((Y if n < 48 else S_) + 8 * nb, fb, hb, n in (20, 48) and u == 0)))
    for k in range(3): queue.append((n1 - 3, n1 - 1, I("v_xor_b32 v%d, 32, v%d" % (2 + k, C_B2 + k))))
    X = []; x = lambda t: X.append(I(t)); r = N_R
    fold4(x, r, r + 1)
    x("v_mul_f32 v%d, 0x3b000000, v%d" % (r, r)); x("v_fma_f32 v%d, -v%d, v%d, v%d" % (r, N_DL, N_DL, r)); x("v_max_f32 v%d, 0, v%d" % (r, r))
    def rnd(): x("v_cvt_pk_bf16_f32 v%d, v%d, v%d" % (r + 1, r, r)); x("v_and_b32 v%d, 0xffff0000, v%d" % (r, r + 1))
    rnd(); x("v_add_f32 v%d, 0x3727c5ac, v%d" % (r, r)); rnd(); x("v_sqrt_f32 v%d, v%d" % (r, r)); rnd()
    x("v_rcp_f32 v%d, v%d" % (r, r))
    x("v_lshl_add_u32 v%d, v%d, 1, v%d" % (r + 2, N_TK, C_FL)); x("v_lshl_add_u32 v%d, v%d, 2, v%d" % (r + 3, N_TK, C_FL))
    x("ds_write_b16 v%d, v%d offset:%d" % (r + 2, r + 1, LSD - FL)); x("ds_write_b32 v%d, v%d offset:%d" % (r + 3, r, LRS - FL))
    for j, it in enumerate(X[:-2]): queue.append((12 + j, 50, it))
    for it in X[-2:]:
        if not CFG["nods"]: queue.append((CFG["rsat"], 67, it))
    if ty == 0:
        g = []
        only(g, ["s_cmp_lg_u32 s%d, 0" % sGR], [I("s_lshl_b32 s%d, s%d, 9" % (sT4, sI)), I("s_add_u32 s%d, s%d, %d" % (sT4, sT4, WS_RS - FL)), I("s_mov_b32 exec_hi, 0"),
                                               I("buffer_store_dword v%d, v%d, %s, s%d offen sc1" % (r, r + 3, srd(SWS), sT4)), I("s_mov_b64 exec, -1")])
        queue.append((46, 60, g))
    queue.append((94, 96, I("ds_read_b32 v%d, v%d offset:%d" % (C_HC, C_FL, F_INIT), "init")))
    g = []; gate(g, C_DV, SDBG, 0, "init", C_HC, 1, slow=[I("v_mov_b32 v%d, 0" % C_DV)]); queue.append((100, 102, g))
    for e0, pi, hold, E in epi + late_w:
        dl = min([x_ for (p2, t2), x_ in firstuse.items() if p2 > pi and t2 in hold] + [10 ** 9]) - 1
        for it in E: queue.append((e0, dl, it))
    G = XR + 80; XF = XR + 96; E = []
    for j in range(4): E.append(I("ds_read_b64 %s, v17 offset:%d" % (v(RES + 2 * j, 2), LX + (j >> 1) * 32 + (j & 1) * 2048), "res"))
    for h in range(2): E.append(I("ds_read_b32 v%d, v%d offset:%d" % (R2 + h, C_RO, LR2 + 64 * h), "res"))
    for j, it in enumerate(E): queue.append((n1 + 21 * 4 + j, 10 ** 9, it))
    E = [W(lg=["res"])]
    for h in range(2): E.append(I("v_mul_f32 v%d, v%d, v%d" % (R2 + h, R2 + h, R2 + h)))
    for h in range(2): E.append(I("v_mul_f32 v%d, s%d, v%d" % (R2 + 2 + h, sL2E, R2 + h)))
    for j in range(8):
        E.append(I("v_lshlrev_b32 v%d, 16, v%d" % (XF + 2 * j, RES + j))); E.append(I("v_and_b32 v%d, 0xffff0000, v%d" % (XF + 2 * j + 1, RES + j)))
    for it in E: queue.append((n1 + 24 * 4, 10 ** 9, it))
    E = []
    for j in range(16): E.append(I("v_mul_f32 v%d, v%d, v%d" % (G + j, R2 + 2 + ((j >> 2) & 1), Y + j)))
    for j in range(16): E.append(I("v_exp_f32 v%d, -v%d" % (G + j, G + j)))
    for j in range(16): E.append(I("v_mul_f32 v%d, v%d, v%d" % (Y + j, R2 + ((j >> 2) & 1), Y + j)))
    for j in range(16): E.append(I("v_add_f32 v%d, 1.0, v%d" % (G + j, G + j)))
    for j in range(16): E.append(I("v_rcp_f32 v%d, v%d" % (G + j, G + j)))
    for j in range(16): E.append(I("v_mul_f32 v%d, v%d, v%d" % (G + j, G + j, Y + j)))
    for it in E: queue.append((n1 + 28 * 4 + 1, 10 ** 9, it))
    queue.sort(key=lambda x_: x_[0])
    first = {}
    lastop = {}
    for m, o in enumerate(ops): first.setdefault(o["slab"], m); lastop[o["slab"]] = m
    fread = {first[n] - ops[first[n]]["la"] - (CFG["LAF"] if n <= 20 else 3): n for n in CH if n}
    lastdone = max(prev_user(n) for n in range(56))
    def done(n):
        a("v_mov_b32 v%d, %d" % (C_DV, 4 * (n + 1))); a("global_load_lds_dword v%d, %s" % (C_DV, s(sTB, 2)))
    issued = 0; cur = -1
    def issue_reads(upto_fn):
        nonlocal issued, cur
        while issued < len(ops) and upto_fn(issued):
            o = ops[issued]
            if o["slab"] > cur:
                cur = o["slab"]
                if cur in CH:
                    lb = newlbl()
                    if cur >= CFG["inl"] or cur < 2:
                        a("s_cbranch_vccz L_cb%d" % lb)
                        raw(P, [I("s_movk_i32 s%d, %d" % (sSPIN + 1, CH[cur] + 1)), I("s_call_b64 %s, L_spin_c" % s(sRET, 2))]); P.append(L("L_cb%d:" % lb))
                    else:
                        a("s_cbranch_vccnz L_cs%d" % lb); P.append(L("L_cb%d:" % lb))
                        STUBS.extend(["L_cs%d:" % lb, "    s_movk_i32 s%d, %d" % (sSPIN + 1, CH[cur] + 1),
                                  "    s_call_b64 %s, L_spin_c" % s(sRET, 2), "    s_branch L_cb%d" % lb])
            for t, tag in o["reads"]: a(t, tag)
            issued += 1
    def cstamp(k):
        r = sPH + 2 * (k & 1)
        if k > 2:
            a("s_sub_u32 s%d, s%d, s%d" % (r, r, sTM)); a("v_writelane_b32 v19, s%d, %d" % (r, k - 2))
        P.append(L("    s_memtime %s" % s(r, 2)))
    SM = ACC
    a("s_mov_b32 s%d, 0" % (sSPIN + 1)); a("s_call_b64 %s, L_spin_c" % s(sRET, 2))
    for j in range(4):
        a("s_barrier")
        for k in range(8 * j, 8 * j + 8):
            a("ds_read_b128 %s, v%d offset:%d" % (v(XR + 4 * k, 4), C_XA + ((k >> 1) & 1) + 2 * (k >> 4), ((k >> 2) & 3) * 16384 + (k & 1) * 2048), ("xn", k))
        for k in range(8 * j, 8 * j + 8, 2):
            P.append(W(lg=[("xn", k + 1)]))
            if k == 30: a("s_barrier")
            for h in range(2):
                for sq in range(2):
                    for t in range(2):
                        xx = v(XR + 4 * (k + t) + 2 * h, 2); c = v((N_SQ if sq else SM) + 4 * t, 4)
                        a("v_mfma_f32_4x4x4_16b_bf16 %s, %s, %s, %s" % (c, xx if sq else v(N_ONES, 2), xx, "0" if (k, h) == (0, 0) else c))
    a("s_waitcnt vmcnt(0)")
    fold4(a, SM, SM + 4)
    a("v_mul_f32 v%d, 0xbb000000, v%d" % (N_DL, SM))
    a("v_cvt_pk_bf16_f32 v%d, v%d, v%d" % (SM, N_DL, N_DL)); a("v_mov_b32 v%d, v%d" % (SM + 1, SM)); a("v_permlane16_swap_b32 v%d, v%d" % (SM, SM + 1))
    for j in range(8): a("v_and_b32 v%d, 0xffff0000, v%d" % (N_CM + j, SM + (j >> 2)))
    if CFG["stamps"]: a("v_mov_b32 v19, 0"); stamp_to(P, 59, 19)
    c0 = CFG["cen0"]
    if c0 == 32: a("s_nop 1"); a("s_call_b64 %s, L_centre" % s(sRET, 2))
    elif c0 > 8: centre(a, 0, c0 - 8)
    stamp_to(P, 60, 19)
    a("ds_read_b32 v%d, v18" % C_FV, ("fl", 0))
    for j in range(3):
        for h in range(2): a("v_cndmask_b32 v%d, v%d, v%d, %s" % (N_R + h, N_R + h if j else N_SQ + 4 * h, N_SQ + 4 * h + j + 1, s(sMK + 2 * j, 2)))
    centre(a, c0 - 8, c0 - 4)
    P.append(W(lg=[("fl", 0)])); a("v_cmp_ge_u32 vcc, 0, v%d" % C_FV)
    issue_reads(lambda m: m < CFG["LA"])
    centre(a, c0 - 4, c0)
    stamp_to(P, 61, 19)
    qi = 0
    for m, o in enumerate(ops):
        w2 = CFG["wait2"] and m < n1
        if not w2: P.append(W(lg=[("f", m)]))
        elif m % 2 == 0: P.append(W(lg=[("f", m + 1)]))
        a(o["mfma"][0]); at = len(P)
        if m == n1 - 1: a(o["mfma"][1])
        if m == lastop[o["slab"]] and o["slab"] <= lastdone + 1 and marked(o["slab"]): done(o["slab"])
        LP = [0, 64, 192, n1 - 1, n1 + 32, n1 + 112]
        if CFG["light"] and m in LP:
            P.append(L("    s_memtime %s" % s(12 + 4 * LP.index(m), 2))); P.append(L("    s_memrealtime %s" % s(14 + 4 * LP.index(m), 2)))
        if CFG["probe"] and m == CFG["probeat"]: P.append(L("    s_memrealtime s[6:7]"))
        if m == n1 - 1:
            while queue[qi][0] <= n1 + 1:
                it = queue[qi][2]; P += it if isinstance(it, list) else [it]; qi += 1
        issue_reads(lambda k: k - ops[k]["la"] <= m)
        for n in range(1, 56):
            d = m - (first[n] - ops[first[n]]["la"])
            if d == -1 and n in CH:
                P.append(W(lg=[("fl", n)])); a("v_cmp_ge_u32 vcc, %d, v%d" % (CH[n], C_FV))
            if d == (2 if n <= 20 else 0) and CFG["stamps"] and not CFG["zoom"]: cstamp(n)
            if CFG["zoom"] and m == CFG["zoom"] + n * CFG["zstep"]: cstamp(n)
        if m in fread: a("ds_read_b32 v%d, v18" % C_FV, ("fl", fread[m]))
        rate = CFG["erate"] if m < n1 else 5
        cnt = 0
        while qi < len(queue) and queue[qi][0] <= m and cnt < rate:
            assert m <= queue[qi][1], ("filler past its deadline", ty, m, queue[qi][1])
            it = queue[qi][2]
            if isinstance(it, list): P += it; cnt += 2
            else: P.append(it)
            qi += 1; cnt += 1
        if m != n1 - 1:
            mid = P[at:]; k = 0
            while k < (len(mid) + 1) // 2 and isinstance(mid[k], I) and not mid[k].t.startswith("s_"): k += 1
            P.insert(at + k, I(o["mfma"][1]))
        if m % 16 == CFG["cenat"] and c0 + m // 16 * 8 < 32: centre(a, c0 + m // 16 * 8, c0 + m // 16 * 8 + 8)
    assert qi == len(queue)
    for j in range(16): a("v_fma_f32 v%d, v%d, v%d, v%d" % (G + j, S_ + j, G + j, XF + j))
    for j in range(8): a("v_cvt_pk_bf16_f32 v%d, v%d, v%d" % (XF + 4 * ((j >> 1) & 1) + 2 * (j >> 2) + (j & 1), G + 2 * j, G + 2 * j + 1))
    for h in range(2):
        for i in range(2): a("v_permlane16_swap_b32 v%d, v%d" % (XF + 4 * h + i, XF + 4 * h + 2 + i))
    if CFG["probe"]:
        lb = newlbl()
        if CFG["probeat"] < 0: a("s_memrealtime s[6:7]")
        P.append(W(lg="all")); a("s_sub_u32 s6, s6, s4")
        a("s_cmp_le_u32 s6, %d" % CFG["probe"]); a("s_cbranch_scc1 L_xp%d" % lb)
        for _ in range(6): a("s_sleep 127")
        P.append(L("L_xp%d:" % lb))
    a("s_movk_i32 s%d, 16384" % sT0)
    a("buffer_store_dwordx4 %s, v%d, %s, 0 offen%s" % (v(XF, 4), C_OUT, srd(SOUT), CFG["outfl"]))
    a("buffer_store_dwordx4 %s, v%d, %s, s%d offen%s" % (v(XF + 4, 4), C_OUT, srd(SOUT), sT0, CFG["outfl"]))
    if CFG["light"]:
        a("s_waitcnt vmcnt(0)"); a("s_memtime s[84:85]"); a("s_memrealtime s[86:87]"); P.append(W(lg="all")); a("v_mov_b32 v19, 0")
        for j, r_ in enumerate([sTM, 4] + list(range(12, 36, 2)) + [84, 86]): a("v_writelane_b32 v19, s%d, %d" % (r_, j))
        a("s_lshl_b32 s%d, s2, 10" % sT0); a("s_lshl_b32 s%d, s%d, 8" % (sT1, sW)); a("s_add_u32 s%d, s%d, s%d" % (sT0, sT0, sT1)); a("s_add_u32 s%d, s%d, %d" % (sT0, sT0, WS_ST))
        a("v_lshlrev_b32 v18, 2, v1"); a("buffer_store_dword v19, v18, %s, s%d offen" % (srd(SWS), sT0))
    if CFG["stamps"]:
        one_lane(P, "ds_add_u32 v%d, v%d offset:%d" % (C_FL, C_ONE, F_END))
        cstamp(56); cstamp(57); P.append(W(lg="all")); cstamp(58)
        a("s_lshl_b32 s%d, s2, 8" % sT0); a("s_add_u32 s%d, s%d, %d" % (sT0, sT0, WS_ST + 0x20000))
        a("v_lshlrev_b32 v18, 2, v1")
        a("s_cmp_lg_u32 s%d, %d" % (sW, CFG["stampw"])); a("s_cbranch_scc1 L_exit")
        a("buffer_store_dword v19, v18, %s, s%d offen" % (srd(SWS), sT0))
    a("s_endpgm")
    return P

D_P = 32
D_A, D_B, D_B2, D_TAB, D_FL, D_LA, D_ONE, D_ZERO, D_CC, D_POLL, D_LV = range(2, 13)
D_AT, D_POLL2, D_X, D_R, D_M = 13, 14, 15, 16, 18
D_DV = 28
D_TCH = 20
def phase_info(ty):
    return [(kind, 3584, SG, SU) if e == "gu" else (kind, 3072, SQKV, SQKV) for kind, e, _ in PH[ty]]
def dma_setup(ty):
    P = []; b = lambda t, tag=None: P.append(I(t, tag))
    t0, t1, t2, t3, u0, u1, u2 = range(64, 71)
    b("v_mov_b32 v%d, 0" % D_ZERO); b("v_mov_b32 v%d, 0" % D_TAB)
    b("v_mov_b32 v%d, 1" % D_ONE); b("v_mov_b32 v%d, %d" % (D_FL, FL))
    b("v_and_b32 v%d, 3, v1" % D_LA); b("v_lshlrev_b32 v%d, 8, v%d" % (D_LA, D_LA)); b("v_add_u32 v%d, %d, v%d" % (D_LA, FL + F_DONE, D_LA))
    b("s_lshl_b32 s%d, s%d, 8" % (sLM, sW1)); b("s_add_u32 s%d, s%d, %d" % (sLM, sLM, FL + F_LAND))
    b("s_lshl_b32 s%d, s%d, 9" % (sCC, sTT))
    if CFG["lead"] or not CFG["spoll"]: b("v_mov_b32 v%d, s%d" % (D_CC, sCC))
    P.append("cut")
    b("s_lshl_b32 s%d, s%d, 1" % (sT0, sTT)); b("s_add_u32 s%d, s%d, s%d" % (sT0, sT0, sW1))
    b("s_mul_i32 s%d, s%d, 147456" % (sT0, sT0)); b("s_add_u32 s%d, s%d, %d" % (sT0, sT0, WS_HO - 2048))
    if CFG["fakeA"]: b("s_lshr_b32 s%d, s%d, 3" % (sT0, sI)); b("s_lshl_b32 s%d, s%d, 20" % (sT0, sT0)); b("s_lshl_b32 s%d, s%d, 18" % (sT1, sW1)); b("s_add_u32 s%d, s%d, s%d" % (sT0, sT0, sT1))
    b("v_lshlrev_b32 v%d, 4, v1" % u0); b("v_add_u32 v%d, s%d, v%d" % (D_A, sT0, u0))
    if CFG["lead"]: b("v_lshlrev_b32 v%d, 7, v1" % u0); b("v_add_u32 v%d, s%d, v%d" % (D_AT, sT0, u0))
    b("v_lshrrev_b32 v%d, 3, v1" % u0); b("v_and_b32 v%d, 6, v%d" % (u1, u0))
    b("v_and_b32 v%d, 7, v1" % u2); b("v_xor_b32 v%d, v%d, v%d" % (u2, u2, u1))
    b("v_lshlrev_b32 v%d, 10, v%d" % (u0, u0)); b("v_lshl_add_u32 v%d, v%d, 4, v%d" % (D_B, u2, u0))
    b("s_lshl_b32 s%d, s%d, 15" % (sT0, sW1)); b("s_lshl_b32 s%d, s%d, 7" % (sT1, sCT)); b("s_add_u32 s%d, s%d, s%d" % (sT0, sT0, sT1))
    b("v_add_u32 v%d, s%d, v%d" % (D_B, sT0, D_B)); b("v_add_u32 v%d, %d, v%d" % (D_B2, 8192 - 1024, D_B))
    b("v_lshrrev_b32 v%d, 3, v1" % u0); b("v_lshlrev_b32 v%d, 10, v%d" % (u0, u0)); b("v_and_b32 v%d, 7, v1" % u2); b("v_lshl_add_u32 v%d, v%d, 4, v%d" % (D_X, u2, u0))
    b("s_lshl_b32 s%d, s%d, 16" % (sT1, sTT)); b("s_add_u32 s%d, s%d, s%d" % (sT0, sT0, sT1)); b("v_add_u32 v%d, s%d, v%d" % (D_X, sT0, D_X))
    b("s_lshl_b32 s%d, s%d, 8" % (sT1, sTT)); b("s_add_u32 s%d, s%d, %d" % (sT1, sT1, WS_RS)); b("v_lshlrev_b32 v%d, 2, v1" % D_R); b("v_add_u32 v%d, s%d, v%d" % (D_R, sT1, D_R))
    P.append("cut")
    fcols(b, ty)
    gu = 0
    for pi, (kind, e, _) in enumerate(PH[ty]):
        stride = 3584 if e == "gu" else 3072
        (p4_voffs if kind == "P4" else p2_voffs)(b, u0, u1, stride, t0)
        if e == "gu": b("s_lshl_b32 s%d, s%d, 1" % (sT1, sKS + gu)); db = 0; gu += 1
        elif e == "kv": b("s_mov_b32 s%d, s%d" % (sT1, sKC)); db = 1024
        else: b("s_lshl_b32 s%d, s%d, 7" % (sT1, sGR)); db = 64
        step = (8 if kind == "P4" else 16) * stride
        b("v_add_u32 v%d, s%d, v%d" % (u0, sT1, u0)); b("v_add_u32 v%d, s%d, v%d" % (u1, sT1, u1))
        for p in range(4):
            b("v_add_u32 v%d, %d, v%d" % (D_P + 4 * pi + p, 4096 + (p >> 1) * step - p * 1024 + (db if p & 1 else 0), u1 if p & 2 else u0))
    b("s_lshl_b32 s%d, s%d, 13" % (sLA, sW1))
    P.append("cut")
    nr = 32 if CFG["map"] == 84 else 64
    used = " ".join(CFG["tplan%d" % ty].values()).split()
    if set(used) & {"q", "g0", "g1"}:
        b("s_lshl_b32 s%d, s%d, 6" % (sT0, sXR)); b("s_mul_i32 s%d, s%d, %d" % (sT1, sW1, nr)); b("s_add_u32 s%d, s%d, s%d" % (sT0, sT0, sT1))
        b("v_add_u32 v%d, s%d, v1" % (t2, sT0)); b("v_mul_u32_u24 v%d, 3072, v%d" % (D_TCH + 3, t2)); b("v_mul_u32_u24 v%d, 3584, v%d" % (D_TCH + 2, t2))
        b("s_lshl_b32 s%d, s%d, 7" % (sT0, sGR)); b("s_add_u32 s%d, s%d, 4096" % (sT0, sT0)); b("v_add_u32 v%d, s%d, v%d" % (D_TCH + 3, sT0, D_TCH + 3))
        b("v_add_u32 v%d, 4096, v%d" % (D_TCH + 2, D_TCH + 2))
        b("s_lshl_b32 s%d, s%d, 1" % (sKS, sKS)); b("s_lshl_b32 s%d, s%d, 1" % (sKS + 1, sKS + 1))
    b("s_lshl_b32 s%d, s%d, 1" % (sT0, sSH)); b("s_add_u32 s%d, s%d, s%d" % (sT0, sT0, sW1))
    if CFG["map2"] == 48: b("v_lshlrev_b32 v%d, 7, v1" % t2)
    else:
        b("v_lshrrev_b32 v%d, 2, v1" % t2); b("v_lshlrev_b32 v%d, 10, v%d" % (t2, t2)); b("v_and_b32 v%d, 3, v1" % t3); b("v_lshl_add_u32 v%d, v%d, 7, v%d" % (t2, t3, t2))
        b("s_and_b32 s%d, s%d, 4" % (sT1, sCT)); b("s_lshl_b32 s%d, s%d, 7" % (sT1, sT1)); b("v_add_u32 v%d, s%d, v%d" % (t2, sT1, t2))
    k2 = 2 if CFG["aonly"] else 1
    b("s_mul_i32 s%d, s%d, %d" % (sT1, sT0, 28 * 1024 * k2)); b("v_add_u32 v%d, s%d, v%d" % (D_TCH, sT1, t2))
    b("s_mul_i32 s%d, s%d, %d" % (sT1, sT0, 8192 * k2)); b("v_add_u32 v%d, s%d, v%d" % (D_TCH + 1, sT1, t2))
    if "m" in used:
        b("s_lshl_b32 s%d, s2, 1" % sT0); b("s_add_u32 s%d, s%d, s%d" % (sT0, sT0, sW1)); b("s_mul_i32 s%d, s%d, %d" % (sT1, sT0, 28 * 128))
        b("v_lshlrev_b32 v%d, 7, v1" % t2); b("v_add_u32 v%d, s%d, v%d" % (D_M, sT1, t2)); b("s_lshl_b32 s%d, s%d, 10" % (sT1, sT0)); b("v_add_u32 v%d, s%d, v%d" % (D_M + 1, sT1, t2))
    P.append("cut")
    def seg(lo, items):
        for t in items: b(t)
        b("v_cmp_le_u32 vcc, %d, v1" % lo); b("v_cndmask_b32 v%d, v%d, v%d, vcc" % (D_TAB, D_TAB, t1))
    b("s_add_u32 s%d, s%d, s%d" % (sT0, sR1, sW1))
    n0 = 0
    for pi, (kind, e, _) in enumerate(PH[ty]):
        stride = 3584 if e == "gu" else 3072
        if kind == "P4":
            seg(n0, ["v_add_u32 v%d, s%d, v1" % (t1, sR1), "v_add_u32 v%d, %d, v%d" % (t1, (-n0) & 7, t1), "v_and_b32 v%d, 7, v%d" % (t1, t1),
                     "v_lshlrev_b32 v%d, 1, v%d" % (t1, t1), "v_add_u32 v%d, s%d, v%d" % (t1, sW1, t1), "v_mul_u32_u24 v%d, %d, v%d" % (t1, 32 * stride, t1)]); n0 += 8
        else:
            seg(n0, ["v_lshlrev_b32 v%d, 1, v1" % t1, "v_add_u32 v%d, s%d, v%d" % (t1, sT0, t1), "v_and_b32 v%d, 7, v%d" % (t1, t1),
                     "v_mul_u32_u24 v%d, %d, v%d" % (t1, 64 * stride, t1)]); n0 += 4
    P.append("cut")
    b("v_add_u32 v%d, s%d, v1" % (t0, sR2)); b("v_and_b32 v%d, 7, v%d" % (t2, t0))
    seg(20, ["v_lshlrev_b32 v%d, 13, v%d" % (t1, t2)])
    seg(28, ["v_lshrrev_b32 v%d, 1, v%d" % (t3, t2), "v_lshlrev_b32 v%d, 1, v%d" % (t1, t2), "v_sub_u32 v%d, v%d, v%d" % (t1, t1, t3),
             "v_add_u32 v%d, 16, v%d" % (t1, t1), "v_lshlrev_b32 v%d, 12, v%d" % (t1, t1)])
    seg(36, ["v_lshlrev_b32 v%d, 13, v%d" % (t1, t2), "v_add_u32 v%d, 4096, v%d" % (t1, t1)])
    seg(44, ["v_and_b32 v%d, 3, v%d" % (t1, t0), "v_mul_u32_u24 v%d, 3, v%d" % (t1, t1), "v_add_u32 v%d, 17, v%d" % (t1, t1), "v_lshlrev_b32 v%d, 12, v%d" % (t1, t1)])
    seg(48, ["v_lshlrev_b32 v%d, 12, v%d" % (t1, t2)])
    return P

def dma_wave(ty):
    pieces = [[]]
    for it in dma_setup(ty):
        if it == "cut": pieces.append([])
        else: pieces[-1].append(it)
    late_su = pieces[1] + pieces[3] + pieces[5]
    P = [M(("x", 1))] + pieces[0] + pieces[2] + pieces[4] + ([] if CFG["defer"] & 2 else late_su); a = lambda t, tag=None: P.append(I(t, tag))
    stamp = lambda k: stamp_to(P, k)
    stamp_to(P, 1, H_STAMP2)
    NB = CFG["nb%d" % ty]; CH = checks(ty)
    sl = slabs_of(ty); info = phase_info(ty)
    def look(n):
        if n < 56: a("v_readlane_b32 s%d, v%d, %d" % (sPH + 2 * (n & 1), D_TAB, n))
    def part(n, which, nxt):
        so = sPH + 2 * (n & 1); cap = CFG["cap2"]; wb = srd(SWD if n < 48 else SWO)
        if which == "B": a("s_lshl_b32 s%d, s%d, 4" % (so, so))
        elif n == 48: a("v_add_u32 v%d, %d, v%d" % (D_A, 28 * 4096, D_A))
        for h in range(2):
            at = LOC[(n, which)][0] * SLOT + LOC[(n, which)][1] * 2048 - (2048 if which == "A" else 0) + h * 4096
            assert at >= 0
            a("s_add_u32 m0, s%d, %d" % (sLA, at))
            if h: a("s_add_u32 s%d, s%d, %d" % (so, so, 16384 if which == "B" else 2048))
            elif (nxt ^ n) & 1: look(nxt)
            room(16, cap)
            if which == "B":
                vm("buffer_load_dwordx4 v%d, %s, s%d offen lds" % (D_B, wb, so), 8)
                vm("buffer_load_dwordx4 v%d, %s, s%d offen offset:1024 lds" % (D_B2, wb, so), 8)
            else:
                vm("buffer_load_dwordx4 v%d, %s, s%d offen offset:2048 sc1 lds" % (D_A, srd(SX if CFG["fakeA"] else SWS), so), 8, ("slab", n))
                vm("buffer_load_dwordx4 v%d, %s, s%d offen offset:3072 sc1 lds" % (D_A, srd(SX if CFG["fakeA"] else SWS), so), 8, ("slab", n))
        if not (nxt ^ n) & 1: look(nxt)
    hist = []
    def room(w, cap):
        tot = w; k = 0
        while k < len(hist) and tot + hist[-1 - k] <= cap: tot += hist[-1 - k]; k += 1
        if k < len(hist): a("s_waitcnt vmcnt(%d)" % min(k, 63))
    def vm(t, w, tag=None): a(t, tag); hist.append(w)
    def dma(n):
        so = sPH + 2 * (n & 1); cap = CFG["cap1"] if n < CFG["capsw"] else CFG["cap2"]
        if n in CFG["soft%d" % ty]: cap = CFG["capsoft"]
        for h in range(2):
            assert n < 20 or n >= 20 + NPK
            a("s_add_u32 m0, s%d, %d" % (sLA, (slot_of(n) if n < 20 else LOC[(n, "B")][0]) * SLOT + h * 4096))
            if n < 20:
                pi, kind, sg = sl[n]; _, stride, sa, sb = info[pi]
                w = 16 if (kind == "P2" and PH[ty][pi][1] != "q") else 8
                if h: a("s_add_u32 s%d, s%d, %d" % (so, so, (16 if kind == "P4" else 32) * stride))
                else: look(n + 1)
                for p in range(4):
                    if p % 2 == 0: room(2 * w, cap)
                    vm("buffer_load_dwordx4 v%d, %s, s%d offen offset:%d lds" % (D_P + 4 * pi + p, srd(sb if p & 1 else sa), so, p * 1024), w, ("slab", n))
            else:
                if h: a("s_add_u32 s%d, s%d, 2048" % (so, so)); a("s_add_u32 s%d, s%d, 16384" % (so + 1, so + 1))
                else:
                    a("s_lshl_b32 s%d, s%d, 4" % (so + 1, so)); look(n + 1)
                    if n == 48: a("v_add_u32 v%d, %d, v%d" % (D_A, 28 * 4096, D_A))
                wb = srd(SWD if n < 48 else SWO)
                room(16, cap)
                vm("buffer_load_dwordx4 v%d, %s, s%d offen lds" % (D_B, wb, so + 1), 8, ("slab", n))
                vm("buffer_load_dwordx4 v%d, %s, s%d offen offset:1024 lds" % (D_B2, wb, so + 1), 8, ("slab", n))
                room(16, cap)
                vm("buffer_load_dwordx4 v%d, %s, s%d offen offset:2048 sc1 lds" % (D_A, srd(SX if CFG["fakeA"] else SWS), so), 8, ("slab", n))
                vm("buffer_load_dwordx4 v%d, %s, s%d offen offset:3072 sc1 lds" % (D_A, srd(SX if CFG["fakeA"] else SWS), so), 8, ("slab", n))
    def touch(which):
        nr = 32 if CFG["map"] == 84 else 64; dst = D_TCH + 4; cap = CFG["capt"]
        for w in which:
            if w == "x":
                a("s_lshr_b32 s%d, s%d, 1" % (sT0, sLA)); a("s_add_u32 m0, s%d, %d" % (sT0, LX))
                room(32, cap)
                for p in range(4):
                    a("s_movk_i32 s%d, %d" % (sT1, 7168 * p))
                    vm("buffer_load_dwordx4 v%d, %s, s%d offen offset:%d lds" % (D_X, srd(SX), sT1, 1024 * p), 8)
            elif w == "m":
                room(36, cap)
                a("s_mov_b64 exec, 0xfffffff"); vm("buffer_load_dword v%d, v%d, %s, 0 offen" % (dst, D_M, srd(SWD)), 28)
                a("s_mov_b64 exec, 0xff"); vm("buffer_load_dword v%d, v%d, %s, 0 offen" % (dst, D_M + 1, srd(SWO)), 8)
            elif w in ("q", "g0", "g1"):
                if nr == 32: a("s_mov_b32 exec_hi, 0")
                if w == "q": room(nr, cap); vm("buffer_load_dword v%d, v%d, %s, 0 offen" % (dst, D_TCH + 3, srd(SQKV)), nr)
                else:
                    for d in (SG, SU): room(nr, cap); vm("buffer_load_dword v%d, v%d, %s, s%d offen" % (dst, D_TCH + 2, srd(d), sKS + int(w[1])), nr)
            elif w == "o":
                k = 64 if (CFG["map2"] == 48 or CFG["aonly"]) else 32
                if k == 32: a("s_mov_b32 exec_hi, 0")
                room(k, cap); vm("buffer_load_dword v%d, v%d, %s, 0 offen" % (dst, D_TCH + 1, srd(SWO)), k)
            else:
                j = int(w[1])
                if j >= (4 if (CFG["map2"] == 48 or CFG["aonly"]) else 2): continue
                a("s_mov_b32 exec_hi, 0xffffff"); a("s_mov_b32 s%d, %d" % (sT0, j * 56 * (128 if CFG["map2"] == 48 else 256)))
                room(56, cap); vm("buffer_load_dword v%d, v%d, %s, s%d offen" % (dst, D_TCH, srd(SWD), sT0), 56)
            a("s_mov_b64 exec, -1")
    def publish(m):
        if m in CH.values():
            a("s_mov_b32 m0, s%d" % sLM); a("v_mov_b32 v%d, %d" % (D_LV, 4 * (m + 1)))
            vm("global_load_lds_dword v%d, %s" % (D_LV, s(sTB, 2)), 1)
        if CFG["stamps"] == 2 or (CFG["stamps"] and m % 4 == 0): stamp(m)
    for d in (SQKV, SG, SU):
        a("s_sub_u32 s%d, s%d, 4096" % (d, d)); a("s_subb_u32 s%d, s%d, 0" % (d + 1, d + 1)); a("s_add_u32 s%d, s%d, 4096" % (d + 2, d + 2))
    gates = {20: (C_H1A, 16), 28: (C_H1B, 16), 36: (C_H2, 32), 48: (C_O, 16)}
    def do_gate(n):
        if CFG["stamps"] == 2: stamp_to(P, 20 + 2 * list(gates).index(n), H_STAMP2)
        if n in CFG["nogate"]: pass
        elif CFG["spoll"]: sgate(P, sCC, gates[n][0] * 128, sPV, gates[n][1])
        else: gate(P, D_CC, SWS, gates[n][0] * 128, ("poll", n), D_POLL, gates[n][1])
        stamp_to(P, 21 + 2 * list(gates).index(n), H_STAMP2)
    def poll(gn):
        if CFG["spoll"]: a("s_load_dword s%d, %s, s%d offset:%d glc" % (sPV, s(SWS, 2), sCC, gates[gn][0] * 128))
        else: vm("buffer_load_dword v%d, v%d, %s, 0 offen offset:%d sc1" % (D_POLL, D_CC, srd(SWS), gates[gn][0] * 128), 1, ("poll", gn))
    nbf = CFG["bfirst"]
    def issue(n):
        if n in gates and not (n == 20 and nbf): do_gate(n)
        if n + CFG["pollat"] in gates and not (n + CFG["pollat"] == 20 and nbf): poll(n + CFG["pollat"])
        dma(n)
    def do_touch(n):
        tp = CFG["tplan%d" % ty].get(str(n))
        if tp:
            touch(tp.split())
    look(0)
    if CFG["dprio"]: a("s_setprio %d" % CFG["dprio"])
    hist += [16] * 8
    xstages(P, {CFG["s0at"]: lambda: (dma(0), publish(0), do_touch(0))})
    stamp(60)
    a("s_barrier")
    stamp(61); rstamp(P, 40)
    assert NB == 56
    seq = [(n, "F") for n in range(1, 20)] + [(n, "B") for n in range(20, 20 + nbf)]
    n = 20
    while n < 56:
        k = CFG["afirst"].get(str(n), 0)
        if n == 20: k = max(k, nbf)
        seq += [(m, "A") for m in range(n, n + k)] + [(m, "B") for m in range(n, n + k) if (m, "B") not in seq]
        if not k: seq.append((n, "F"))
        n += max(k, 1)
    started = set(); parts = {}; checked = -1; gated = set()
    firstA = {g: min(i for i, (m, w) in enumerate(seq) if m >= g and w != "B") for g in gates}
    gstart = {g: min(i for i, (m, w) in enumerate(seq) if m >= 20 + 4 * g and w != "B") for g in range(9)}
    exi = min(i for i, (m, w) in enumerate(seq) if m >= 20 and LOC[(m, "B" if w == "F" else w)][0] >= 8)
    def need_at(i):
        k = 1
        if CFG["spoll"] and any(i + CFG["pollat"] == firstA[g] for g in gates): k = CFG["pollat"]
        pu = max(prev_user(m, w) for m, w in seq[i:i + k])
        while pu > checked and not marked(pu): pu += 1
        return pu - CFG["bigring"] if seq[i][0] < CFG["bigto"] else pu
    for i, (n, w) in enumerate(seq):
        if (n, w) in ((11, "F"), (15, "F"), (18, "F"), (30, "F"), (42, "F"), (54, "F")): rstamp(P, 42 + 2 * (11, 15, 18, 30, 42, 54).index(n))
        if w == "F" and n in CFG["exw%d" % ty]: count_wait(P, D_FL, D_DV + 1, F_EX + 4 * CFG["exw%d" % ty].index(n), 4)
        pu = need_at(i)
        if pu > checked:
            lb = newlbl()
            P.append(W(lg=[("dn", i)]))
            a("v_cmp_ge_u32 vcc, %d, v%d" % (pu, D_DV)); a("s_cbranch_vccz L_fr%d" % lb)
            raw(P, [I("s_movk_i32 s%d, %d" % (sSPIN + 1, pu + 1)), I("s_call_b64 %s, L_spin_d" % s(sRET, 2))]); P.append(L("L_fr%d:" % lb))
            checked = pu
        if i == exi: count_wait(P, D_FL, D_DV + 1, F_EXF, 2)
        if (n, w) == (4, "F"): a("s_movk_i32 m0, %d" % (FL + F_INIT)); vm("buffer_load_dword v%d, %s, 0 offen sc1 lds" % (D_ZERO, srd(SDBG)), 1)
        if (n, w) == (15, "F"): a("ds_read_b32 v%d, v%d offset:%d" % (D_POLL, D_FL, F_INIT), "init"); gate(P, D_ZERO, SDBG, 0, "init", D_POLL, 1)
        for g in gates:
            if i == firstA[g]:
                do_gate(g)
                if g == 20: a("s_movk_i32 m0, %d" % LR2); vm("buffer_load_dword v%d, %s, 0 offen sc1 lds" % (D_R, srd(SWS)), 2)
            if i + CFG["pollat"] == firstA[g]: poll(g)
        if CFG["lead"]:
            for g in range(1, 9):
                sec = max(x for x in gates if x <= 20 + 4 * g); newsec = sec == 20 + 4 * g
                at = gstart[g - 1]
                if newsec and i + CFG["pollat"] == at:
                    vm("buffer_load_dword v%d, v%d, %s, 0 offen offset:%d sc1" % (D_POLL2, D_CC, srd(SWS), gates[sec][0] * 128), 1, ("poll2", g))
                if i == at + CFG["leadoff"]:
                    lb = newlbl()
                    if newsec: P.append(W(vm=[("poll2", g)]))
                    a("s_cmp_lg_u32 s%d, %d" % (sLD, CFG["who"][g])); a("s_cbranch_scc1 L_nl%d" % lb)
                    X = []
                    if newsec: X += [I("v_cmp_eq_u32 vcc, %d, v%d" % (gates[sec][1], D_POLL2)), I("s_cbranch_vccz L_nl%d" % lb)]
                    for j in range(4): X.append(I("v_readlane_b32 s%d, v%d, %d" % (sG + j, D_TAB, 20 + 4 * g + j)))
                    X.append(I("s_mov_b32 exec_hi, 0"))
                    for j in range(4):
                        if g >= 7: X.append(I("s_add_u32 s%d, s%d, %d" % (sG + j, sG + j, 28 * 4096)))
                        X.append(I("buffer_load_dword v%d, v%d, %s, s%d offen offset:2048 sc1" % (D_TCH + 4, D_AT, srd(SWS), sG + j)))
                    X.append(I("s_mov_b64 exec, -1"))
                    raw(P, X); P.append(L("L_nl%d:" % lb))
        started.add(n)
        if i + 1 < len(seq) and need_at(i + 1) > checked: a("ds_read_b32 v%d, v%d" % (D_DV, D_LA), ("dn", i + 1))
        nxt = seq[i + 1][0] if i + 1 < len(seq) else 99
        if w == "F":
            assert nxt in (n + 1, 99); dma(n)
        else: part(n, w, nxt)
        parts.setdefault(n, set()).add(w)
        if parts[n] in ({"F"}, {"A", "B"}):
            assert all(parts.get(m) in ({"F"}, {"A", "B"}) for m in range(1, n))
            publish(n)
        if (n, w) == (6, "F") and CFG["defer"] & 2: P += late_su
        if w == "F": do_touch(n)
    if CFG["stamps"]:
        count_wait(P, D_FL, D_DV, F_END, 4)
        stamp(62)
        a("s_memrealtime s[6:7]"); P.append(W(lg="all"))
        a("v_writelane_b32 v%d, s4, 62" % H_STAMP2); a("v_writelane_b32 v%d, s6, 63" % H_STAMP2)
        a("s_lshl_b32 s%d, s2, 8" % sT0); a("s_add_u32 s%d, s%d, %d" % (sT0, sT0, WS_ST))
        a("v_lshlrev_b32 v64, 2, v1")
        a("s_cmp_lg_u32 s%d, %d" % (sW1, CFG["stampw"] & 1)); a("s_cbranch_scc1 L_exit")
        a("buffer_store_dword v%d, v64, %s, s%d offen" % (H_STAMP, srd(SWS), sT0))
        a("s_add_u32 s%d, s%d, 0x10000" % (sT0, sT0))
        a("buffer_store_dword v%d, v64, %s, s%d offen" % (H_STAMP2, srd(SWS), sT0))
    a("s_endpgm")
    return P

A_ONE, A_ZERO, A_CM, A_CK, A_CQ, A_FL, A_RK, A_RV, A_ST, A_ZA, A_PL, A_ZL, A_OS, A_SGN = range(2, 16)
A_POLL, A_FV, A_TCH = 25, 27, 28
A_ID = 32
A_WP = 36
A_R = 16
A_ACC = 56
A_RAW = 72
A_T = 72
A_KF = 112
A_SD = 192; A_PHI = 208
A_PQ = 128
A_LD = 192
def softmax_unit(wp, kf, u, dst, Pm, R, scale_r):
    B = []; b = lambda t, tag=None: B.append(I(t, tag))
    C = A_R + 4 + u
    b("v_mfma_f32_32x32x16_bf16 %s, %s, %s, 0" % (v(Pm, 16), v(wp, 4), v(kf, 4)))
    for g in range(2): b("v_max3_f32 v%d, v%d, v%d, v%d" % (R + g, Pm + 8 * g, Pm + 8 * g + 1, Pm + 8 * g + 2))
    for g in range(2): b("v_max3_f32 v%d, v%d, v%d, v%d" % (R + 2 + g, Pm + 8 * g + 3, Pm + 8 * g + 4, Pm + 8 * g + 5))
    for g in range(2): b("v_max3_f32 v%d, v%d, v%d, v%d" % (R + g, R + g, Pm + 8 * g + 6, Pm + 8 * g + 7))
    for g in range(2): b("v_max_f32 v%d, v%d, v%d" % (R + g, R + g, R + 2 + g))
    def allred(op, mid):
        b("v_permlane32_swap_b32 v%d, v%d" % (R, R + 1))
        b("%s v%d, v%d, v%d" % (op, R, R, R + 1))
        for t in mid: b(t)
        b("v_mov_b32 v%d, v%d" % (R + 1, R))
        b("v_permlane32_swap_b32 v%d, v%d" % (R, R + 1))
    allred("v_max_f32", ["v_mul_f32 v%d, v%d, v%d" % (R, C, R)])
    for j in range(16): b("v_fma_f32 v%d, v%d, v%d, -v%d" % (Pm + j, Pm + j, C, R + j // 8))
    for j in range(16): b("v_exp_f32 v%d, v%d" % (Pm + j, Pm + j))
    if not scale_r and not CFG["qnorm"]:
        for j in range(8): b("v_cvt_pk_bf16_f32 v%d, v%d, v%d" % (dst + j, Pm + 2 * j, Pm + 2 * j + 1))
        return B
    for g in range(2):
        b("v_add_f32 v%d, v%d, v%d" % (R + g, Pm + 8 * g, Pm + 8 * g + 1)); b("v_add_f32 v%d, v%d, v%d" % (R + 2 + g, Pm + 8 * g + 2, Pm + 8 * g + 3))
    for k in (4, 6):
        for g in range(2):
            b("v_add_f32 v%d, v%d, v%d" % (R + g, R + g, Pm + 8 * g + k)); b("v_add_f32 v%d, v%d, v%d" % (R + 2 + g, R + 2 + g, Pm + 8 * g + k + 1))
    for g in range(2): b("v_add_f32 v%d, v%d, v%d" % (R + g, R + g, R + 2 + g))
    allred("v_add_f32", ["v_rcp_f32 v%d, v%d" % (R, R)] + (["v_mul_f32 v%d, v%d, v%d" % (R, R, A_R + u)] if scale_r else []))
    for j in range(16): b("v_mul_f32 v%d, v%d, v%d" % (Pm + j, Pm + j, R + j // 8))
    for j in range(8): b("v_cvt_pk_bf16_f32 v%d, v%d, v%d" % (dst + j, Pm + 2 * j, Pm + 2 * j + 1))
    return B
def zipper(x, y):
    out = []
    for i in range(max(len(x), len(y))):
        if i < len(x): out.append(x[i])
        if i < len(y): out.append(y[i])
    return out
def mprio(B, base=0):
    out = []; hi = False
    for it in B:
        m_ = isinstance(it, I) and it.t.startswith("v_mfma")
        if m_ and not hi: out.append(I("s_setprio 3")); hi = True
        if hi and not m_: out.append(I("s_setprio %d" % base)); hi = False
        out.append(it)
    return out

def attn_setup(ty):
    P = []; b = lambda t, tag=None: P.append(I(t, tag))
    t0, t1, t2, t3, u0 = range(100, 105)
    hk, hq = sT2, sT3
    if CFG["tlb"]:
        b("v_lshlrev_b32 v%d, 16, v1" % t0); b("s_mov_b64 exec, 0x%x" % CFG["tlbm"])
        for d in ((SQKV,), (SQKV, SG, SU), (SQKV, SG, SU, SWD, SWO))[CFG["tlb"] - 1]: b("buffer_load_dword v%d, v%d, %s, 0 offen" % (A_POLL + 1, t0, srd(d)))
        b("s_mov_b64 exec, -1")
    if CFG["ftouch"]:
        nr = 32 if CFG["map"] == 84 else 64
        b("s_lshl_b32 s%d, s%d, 6" % (sT0, sXR)); b("s_mul_i32 s%d, s%d, %d" % (sT1, sW1, nr)); b("s_add_u32 s%d, s%d, s%d" % (sT0, sT0, sT1))
        b("v_add_u32 v%d, s%d, v1" % (A_TCH + 2, sT0)); b("v_mul_u32_u24 v%d, 3072, v%d" % (A_TCH + 3, A_TCH + 2)); b("v_mul_u32_u24 v%d, 3584, v%d" % (A_TCH + 2, A_TCH + 2))
        if nr == 32: b("s_mov_b32 exec_hi, 0")
        if CFG["ftouch"] == 4: b("buffer_load_dword v%d, v%d, %s, s%d offen offset:%d" % (A_POLL + 1, A_TCH + 3, srd(SQKV), sKC, 1024 * ty))
        elif CFG["ftouch"] >= 5 or not CFG["ftouch"] & (1 << ty): pass
        elif ty == 0:
            for o_ in (0, 1024): b("buffer_load_dword v%d, v%d, %s, s%d offen offset:%d" % (A_POLL + 1, A_TCH + 3, srd(SQKV), sKC, o_))
        else:
            b("s_lshl_b32 s%d, s%d, 7" % (sT0, sGR)); b("buffer_load_dword v%d, v%d, %s, s%d offen" % (A_POLL + 1, A_TCH + 3, srd(SQKV), sT0))
        b("s_mov_b64 exec, -1")
    b("s_lshl_b32 s%d, s%d, 2" % (hq, sGR)); b("s_add_u32 s%d, s%d, s%d" % (hq, hq, sW1))
    b("s_add_u32 s%d, s%d, %d" % (hk, hq, 2 * ty))
    b("v_lshrrev_b32 v%d, 5, v1" % t3); b("v_and_b32 v%d, 15, v1" % t1); b("v_lshrrev_b32 v%d, 4, v1" % t0)
    b("v_lshlrev_b32 v%d, 7, v%d" % (t2, t3)); b("v_lshl_add_u32 v%d, v%d, 1, v%d" % (t2, t1, t2))
    b("s_lshl_b32 s%d, s%d, 9" % (sT0, hq))
    for hh in range(1 + ty):
        for j in range(8):
            b("buffer_load_ushort v%d, v%d, %s, s%d offen offset:%d" % (A_RAW + 8 * hh + j, t2, srd(SPHI), sT0, 1024 * hh + 32 * ((j & 3) + 8 * (j >> 2))), "wphi")
    b("v_mov_b32 v%d, 0" % A_ZERO); b("v_mov_b32 v34, 0")
    b("v_mov_b32 v%d, 1" % A_ONE); b("v_mov_b32 v%d, %d" % (A_FL, FL))
    if ty == 0:
        b("v_lshlrev_b32 v%d, 7, v1" % u0)
        b("s_add_u32 s%d, s2, s%d" % (sT0, sW1)); b("s_cmp_lg_u32 s%d, 0" % sT0); b("s_cbranch_scc1 L_noinit")
        raw(P, sum([[I("s_movk_i32 s%d, 0x%x" % (sT0, 0x2000 * k)), I("buffer_store_dword v%d, v%d, %s, s%d offen sc1" % (A_ZERO, u0, srd(SWS), sT0))] for k in range(3)], []))
        P.append(L("L_noinit:"))
    b("v_and_b32 v%d, 1, v%d" % (t2, t0)); b("v_mul_u32_u24 v%d, 0x8000, v%d" % (t2, t2)); b("v_lshl_or_b32 v%d, v%d, 16, v%d" % (A_SGN, t2, t2))
    b("s_lshl_b32 s%d, s%d, 10" % (sT0, sI)); b("v_lshlrev_b32 v%d, 9, v1" % A_CM); b("v_add_u32 v%d, s%d, v%d" % (A_CM, sT0, A_CM))
    b("v_lshl_add_u32 v%d, v1, 2, v%d" % (A_FV, A_FL))
    for k in range(8): b("ds_write_b32 v%d, v%d offset:%d" % (A_FV, A_ZERO, 256 * k))
    P.append("cut")
    b("s_lshl_b32 s%d, s%d, 8" % (sT0, hk)); b("s_add_u32 s%d, s%d, 0x4000" % (sT0, sT0)); b("v_mov_b32 v%d, s%d" % (A_CK, sT0))
    b("s_lshl_b32 s%d, s%d, 8" % (sT0, hq)); b("s_add_u32 s%d, s%d, 0x4000" % (sCC, sT0))
    b("s_lshl_b32 s%d, s%d, 11" % (sT0, sW1)); b("s_add_u32 s%d, s%d, %d" % (sT0, sT0, EX))
    b("v_lshlrev_b32 v%d, 4, v1" % u0); b("v_add_u32 v%d, s%d, v%d" % (A_RK, sT0, u0))
    b("v_and_b32 v%d, 1, v1" % t2); b("v_lshlrev_b32 v%d, 9, v%d" % (A_RV, t2)); b("v_lshl_add_u32 v%d, v%d, 7, v%d" % (A_RV, t0, A_RV))
    b("v_bfe_u32 v%d, v1, 2, 2" % t2); b("v_lshl_add_u32 v%d, v%d, 4, v%d" % (A_RV, t2, A_RV))
    b("v_bfe_u32 v%d, v1, 1, 1" % t2); b("v_lshl_add_u32 v%d, v%d, 3, v%d" % (A_RV, t2, A_RV)); b("v_add_u32 v%d, s%d, v%d" % (A_RV, sT0, A_RV))
    b("s_lshl_b32 s%d, s%d, 4" % (sT0, hk)); b("s_add_u32 s%d, s%d, s%d" % (sT0, sT0, sI))
    b("s_lshl_b32 s%d, s%d, 10" % (sT1, sT0)); b("s_add_u32 s%d, s%d, %d" % (sT1, sT1, WS_KV)); b("v_add_u32 v%d, s%d, v%d" % (A_ST, sT1, u0))
    b("s_lshl_b32 s%d, s%d, 7" % (sT1, sT0)); b("s_add_u32 s%d, s%d, %d" % (sT1, sT1, WS_Z))
    b("v_lshlrev_b32 v%d, 6, v%d" % (A_ZA, t1)); b("v_lshl_add_u32 v%d, v%d, 4, v%d" % (A_ZA, t0, A_ZA)); b("v_add_u32 v%d, s%d, v%d" % (A_ZA, sT1, A_ZA))
    if ty == 0:
        b("s_lshl_b32 s%d, s%d, 1" % (sT0, sI)); b("s_add_u32 s%d, s%d, s%d" % (sT0, sT0, sW1)); b("s_and_b32 s%d, s%d, 7" % (sLD, sT0))
        b("s_lshr_b32 s%d, s%d, 3" % (sT0, sT0)); b("s_lshl_b32 s%d, s%d, 2" % (sT4, sGR)); b("s_add_u32 s%d, s%d, s%d" % (sT4, sT4, sT0))
        b("s_lshl_b32 s%d, s%d, 8" % (sT0, sT4)); b("s_add_u32 s%d, s%d, 0x4000" % (sCC, sT0)); b("v_mov_b32 v%d, s%d" % (A_CQ, sCC))
        b("s_lshl_b32 s%d, s%d, 7" % (sT5, sLD))
        b("s_lshl_b32 s%d, s%d, 14" % (sT1, sT4)); b("s_add_u32 s%d, s%d, s%d" % (sT1, sT1, sT5)); b("s_add_u32 s%d, s%d, %d" % (sT1, sT1, WS_KV))
        b("v_lshrrev_b32 v%d, 3, v1" % t2); b("v_lshlrev_b32 v%d, 10, v%d" % (A_PL, t2)); b("v_and_b32 v%d, 7, v1" % t2)
        b("v_lshl_add_u32 v%d, v%d, 4, v%d" % (A_PL, t2, A_PL)); b("v_add_u32 v%d, s%d, v%d" % (A_PL, sT1, A_PL))
        b("s_lshl_b32 s%d, s%d, 10" % (sT1, sT4)); b("s_add_u32 s%d, s%d, s%d" % (sT1, sT1, sT5)); b("s_add_u32 s%d, s%d, %d" % (sT1, sT1, WS_KVF))
        b("v_lshlrev_b32 v%d, 4, v%d" % (A_OS, t2)); b("v_lshl_add_u32 v%d, v%d, 2, v%d" % (A_OS, t3, A_OS))
        b("v_and_b32 v%d, 1, v%d" % (t2, t0)); b("v_lshl_add_u32 v%d, v%d, 3, v%d" % (A_OS, t2, A_OS)); b("v_add_u32 v%d, s%d, v%d" % (A_OS, sT1, A_OS))
        b("s_lshl_b32 s%d, s%d, 11" % (sT1, sT4)); b("s_add_u32 s%d, s%d, %d" % (sT1, sT1, WS_Z))
        b("v_lshlrev_b32 v%d, 7, v%d" % (A_ZL, t1)); b("v_lshl_add_u32 v%d, v%d, 4, v%d" % (A_ZL, t0, A_ZL)); b("v_add_u32 v%d, s%d, v%d" % (A_ZL, sT1, A_ZL))
        b("s_lshl_b32 s%d, s%d, 7" % (sT1, sT4)); b("s_add_u32 s%d, s%d, %d" % (sT1, sT1, WS_ZF))
        b("v_lshlrev_b32 v%d, 6, v%d" % (A_CM, t1)); b("v_lshl_add_u32 v%d, v%d, 4, v%d" % (A_CM, t0, A_CM)); b("v_add_u32 v%d, s%d, v%d" % (A_CM, sT1, A_CM))
        ident(b, A_ID, t1)
    if ty == 1:
        b("s_lshl_b32 s%d, s%d, 10" % (sT1, hq)); b("s_add_u32 s%d, s%d, %d" % (sT1, sT1, WS_KVF)); b("v_add_u32 v%d, s%d, v%d" % (A_PL, sT1, u0))
        b("s_lshl_b32 s%d, s%d, 7" % (sT1, hq)); b("s_add_u32 s%d, s%d, %d" % (sT1, sT1, WS_ZF))
        b("v_lshlrev_b32 v%d, 4, v%d" % (A_ZL, t0)); b("v_add_u32 v%d, s%d, v%d" % (A_ZL, sT1, A_ZL))
        b("s_mul_i32 s%d, s%d, 576" % (sT1, sI)); b("s_add_u32 s%d, s%d, s%d" % (sT1, sT1, hq)); b("s_add_u32 s%d, s%d, s%d" % (sT1, sT1, sW1)); b("s_add_u32 s%d, s%d, 112" % (sT1, sT1))
        b("s_lshl_b32 s%d, s%d, 10" % (sT1, sT1)); b("s_add_u32 s%d, s%d, %d" % (sT1, sT1, WS_HO))
        b("v_and_b32 v%d, 1, v%d" % (t2, t0)); b("v_lshlrev_b32 v%d, 10, v%d" % (A_OS, t2)); b("v_lshl_add_u32 v%d, v%d, 8, v%d" % (A_OS, t3, A_OS))
        b("v_lshl_add_u32 v%d, v%d, 4, v%d" % (A_OS, t1, A_OS)); b("v_add_u32 v%d, s%d, v%d" % (A_OS, sT1, A_OS))
    return P

def attn_wave(ty):
    SU_ = attn_setup(ty); cut_ = SU_.index("cut"); late_su = SU_[cut_ + 1:] if CFG["defer"] & 1 else []
    P = [M(("x", 1))] + SU_[:cut_] + ([] if late_su else SU_[cut_ + 1:]); a = lambda t, tag=None: P.append(I(t, tag))
    stamp = lambda k: stamp_to(P, k, 34)
    def signal(vaddr, off): one_lane(P, "buffer_atomic_add v%d, v%d, %s, 0 offen offset:%d sc1" % (A_ONE, vaddr, srd(SWS), off))
    def ft():
        a("s_mov_b32 exec_hi, 0"); a("buffer_load_dword v%d, v%d, %s, s%d offen offset:%d" % (A_POLL + 1, A_TCH + 3, srd(SQKV), sKC, 1024 * ty))
        if CFG["ftouch"] == 7:
            if ty: a("s_lshl_b32 s%d, s%d, 7" % (sT0, sGR)); a("buffer_load_dword v%d, v%d, %s, s%d offen" % (A_POLL + 1, A_TCH + 3, srd(SQKV), sT0))
            else:
                a("s_lshl_b32 s%d, s%d, 8" % (sT0, sGR))
                for d in (SG, SU): a("buffer_load_dword v%d, v%d, %s, s%d offen" % (A_POLL + 1, A_TCH + 2, srd(d), sT0))
        a("s_mov_b64 exec, -1")
    def after1():
        if CFG["ftouch"] in (5, 7): ft()
        if ty == 0:
            only(P, ["s_add_u32 s%d, s2, s%d" % (sT0, sW1), "s_cmp_lg_u32 s%d, 0" % sT0],
                 [I("buffer_store_dword v%d, v%d, %s, 0 offen sc1" % (A_ONE, A_ZERO, srd(SDBG)))])
    P.append(W(lg="all"))
    xstages(P, {1: after1, 0: (ft if CFG["ftouch"] == 6 else lambda: None)})
    a("s_barrier")
    if CFG["noattn"]:
        one_lane(P, "ds_add_u32 v%d, v%d offset:%d" % (A_FL, A_ONE, F_EXF)); a("s_endpgm"); return P
    P += late_su
    P.append(W(vm=["wphi"]))
    for hh in range(1 + ty):
        for j in range(4): a("v_lshl_or_b32 v%d, v%d, 16, v%d" % (A_WP + 4 * hh + j, A_RAW + 8 * hh + 2 * j + 1, A_RAW + 8 * hh + 2 * j))
        for j in range(4): a("v_xor_b32 v%d, v%d, v%d" % (A_WP + 4 * hh + j, A_WP + 4 * hh + j, A_SGN))
    WK = A_WP + 4 * ty
    T = A_T
    a("v_and_b32 v%d, 31, v1" % T); a("v_lshlrev_b32 v%d, 2, v%d" % (T, T)); a("v_add_u32 v%d, %d, v%d" % (T, LRS, T))
    a("v_lshrrev_b32 v%d, 4, v1" % (T + 1)); a("v_lshlrev_b32 v%d, 4, v%d" % (T + 1, T + 1)); a("v_add_u32 v%d, %d, v%d" % (T + 1, LSD, T + 1))
    count_wait(P, A_FL, A_FV, F_EX, 4)
    stamp(11)
    for u in range(4): a("ds_read_b32 v%d, v%d offset:%d" % (A_R + u, T, u * 128))
    for u in range(4): a("ds_read_b128 %s, v%d offset:%d" % (v(A_SD + 4 * u, 4), T + 1, u * 64))
    for u in range(4): a("ds_read_b128 %s, v%d offset:%d" % (v(A_KF + 4 * u, 4), A_RK, u * 8192))
    P.append(W(lg="all"))
    for u in range(4): a("v_mul_f32 v%d, s%d, v%d" % (A_R + 4 + u, sL2E, A_R + u))
    PM = (T, T + 16); RR = (T + 32, T + 36)
    def qpair(hh, pr, src=None):
        src = A_KF + 8 * pr if src is None else src
        return mprio(zipper(softmax_unit(A_WP + 4 * hh, src, 2 * pr, A_PQ + 32 * hh + 16 * pr, PM[0], RR[0], False),
                            softmax_unit(A_WP + 4 * hh, src + 4, 2 * pr + 1, A_PQ + 32 * hh + 16 * pr + 8, PM[1], RR[1], False)), CFG["qprio"])
    KO = 0 if CFG["kvfirst"] else 4096 * ty
    if ty == 1 and not CFG["kvfirst"]:
        P += qpair(0, 0)
        if CFG["qpre"] == 2: P += qpair(0, 1)
        else:
            for j in range(8): a("v_mov_b32 v%d, v%d" % (A_PQ + 16 + j, A_KF + 8 + j))
        count_wait(P, A_FL, A_FV, F_EX + 4, 4)
        stamp(18)
        for u in range(4): a("ds_read_b128 %s, v%d offset:%d" % (v(A_KF + 4 * u, 4), A_RK, u * 8192 + KO))
        P.append(W(lg="all"))
    B = []; b = lambda t, tag=None: B.append(I(t, tag))
    def tail(u):
        X = []; x = lambda t, tag=None: X.append(I(t, tag))
        PHI = A_PHI + 8 * (u & 1); FR = A_PHI + 16 + 12 * (u & 1); so = (u & 1) * 16384 + KO
        for sg in range(2): x("ds_write_b128 v%d, %s offset:%d" % (A_RK, v(PHI + 4 * sg, 4), so + sg * 8192))
        for q in range(2): x("ds_read_b64_tr_b16 %s, v%d offset:%d" % (v(FR + 2 * q, 2), A_RV, u * 8192 + KO + 1024 + q * 64), ("pr", u))
        for sg in range(2):
            for q in range(2): x("ds_read_b64_tr_b16 %s, v%d offset:%d" % (v(FR + 4 + 4 * sg + 2 * q, 2), A_RV, so + sg * 8192 + q * 64), ("pr", u))
        return X
    def kvm(us):
        X = [W(lg=[("pr", us[-1])])]
        for u in us:
            FR = A_PHI + 16 + 12 * (u & 1)
            for sg in range(2):
                c = v(A_ACC + 4 * sg, 4); z = v(A_ACC + 8 + 4 * sg, 4)
                X.append(I("v_mfma_f32_16x16x32_bf16 %s, %s, %s, %s" % (c, v(FR + 4 + 4 * sg, 4), v(FR, 4), "0" if u == 0 else c)))
                X.append(I("v_mfma_f32_16x16x32_bf16 %s, %s, %s, %s" % (z, v(FR + 4 + 4 * sg, 4), v(A_SD + 4 * u, 4), "0" if u == 0 else z)))
        return X
    for pr in range(2):
        z = zipper(softmax_unit(WK, A_KF + 8 * pr, 2 * pr, A_PHI, PM[0], RR[0], True), softmax_unit(WK, A_KF + 8 * pr + 4, 2 * pr + 1, A_PHI + 8, PM[1], RR[1], True))
        t0_, t1_ = tail(2 * pr), tail(2 * pr + 1)
        if pr == 0: B += z + t0_[:2] + t1_[:2]; late = t0_[2:] + t1_[2:]
        else: B += z[:70] + late + z[70:120] + kvm((0, 1)) + z[120:] + t0_[:2] + t1_[:2] + t0_[2:] + t1_[2:]
    b("v_and_b32 v%d, 15, v1" % T); b("v_cmp_eq_u32 vcc, 1, v%d" % T)
    if ty == 0: one_lane(B, "ds_add_u32 v%d, v%d offset:%d" % (A_FL, A_ONE, F_EXF))
    B += kvm((2, 3))
    for j in range(4): b("v_cvt_pk_bf16_f32 v%d, v%d, v%d" % (A_ACC + j, A_ACC + 2 * j, A_ACC + 2 * j + 1))
    for j in range(4): b("v_cndmask_b32 v%d, v%d, v%d, vcc" % (A_ACC + 8 + j, A_ACC + 8 + j, A_ACC + 12 + j))
    b("buffer_store_dwordx4 %s, v%d, %s, 0 offen sc1" % (v(A_ACC, 4), A_ST, srd(SWS)), "part")
    b("s_mov_b32 exec_lo, 0x00030003"); b("s_mov_b32 exec_hi, 0x00030003")
    b("buffer_store_dwordx4 %s, v%d, %s, 0 offen sc1" % (v(A_ACC + 8, 4), A_ZA, srd(SWS)), "part"); b("s_mov_b64 exec, -1")
    P += mprio(B, CFG["kprio"]); a("s_setprio 0")
    stamp(12)
    def publish_k():
        a("ds_read_b32 v%d, v%d offset:%d" % (A_POLL, A_FL, F_INIT), "init"); gate(P, A_ZERO, SDBG, 0, "init", A_POLL, 1)
        P.append(W(vm=["part"])); signal(A_CK, 0)
        stamp(13)
    if ty == 0:
        publish_k()
        a(sload(SWS, sCC, 0, sG)); sgate(P, sCC, 0, sG, 16)
        stamp(14)
        LD = A_LD; S = T; Z = A_ACC
        a("buffer_load_dwordx4 %s, v%d, %s, 0 offen sc1" % (v(LD, 4), A_PL, srd(SWS))); a("s_movk_i32 s%d, 8192" % sT0)
        a("buffer_load_dwordx4 %s, v%d, %s, s%d offen sc1" % (v(LD + 4, 4), A_PL, srd(SWS), sT0))
        X = []; x = lambda t: X.append(I(t))
        x("buffer_load_dwordx4 %s, v%d, %s, 0 offen sc1" % (v(Z, 4), A_ZL, srd(SWS))); x("buffer_load_dwordx4 %s, v%d, %s, 0 offen offset:64 sc1" % (v(Z + 4, 4), A_ZL, srd(SWS)))
        x("v_and_b32 v%d, 15, v1" % S); x("v_cmp_eq_u32 vcc, 1, v%d" % S); x("s_waitcnt vmcnt(0)")
        for k in (8, 4, 2, 1):
            for j in range(8): x("v_add_f32_dpp v%d, v%d, v%d row_ror:%d row_mask:0xf bank_mask:0xf" % (Z + j, Z + j, Z + j, k))
        for j in range(4): x("v_cndmask_b32 v%d, v%d, v%d, vcc" % (Z + j, Z + j, Z + 4 + j))
        x("s_mov_b32 exec_lo, 0x00030003"); x("s_mov_b32 exec_hi, 0x00030003")
        x("buffer_store_dwordx4 %s, v%d, %s, 0 offen sc1" % (v(Z, 4), A_CM, srd(SWS))); x("s_mov_b64 exec, -1"); x("s_branch L_l2b")
        only(P, ["s_cmp_lg_u32 s%d, 0" % sLD], X)
        a("s_waitcnt vmcnt(0)"); P.append(L("L_l2b:"))
        B = []
        for t_ in range(2):
            for sg in range(2): b("v_mfma_f32_4x4x4_16b_bf16 %s, %s, %s, %s" % (v(S + 4 * sg, 4), v(A_ID, 2), v(LD + 4 * t_ + 2 * sg, 2), "0" if t_ == 0 else v(S + 4 * sg, 4)))
        for j in range(8): b("v_add_f32_dpp v%d, v%d, v%d row_ror:8 row_mask:0xf bank_mask:0xf" % (S + j, S + j, S + j))
        for j in range(4): b("v_permlane16_swap_b32 v%d, v%d" % (S + j, S + 4 + j))
        for j in range(4): b("v_add_f32 v%d, v%d, v%d" % (S + j, S + j, S + 4 + j))
        for j in range(2): b("v_permlane32_swap_b32 v%d, v%d" % (S + j, S + 2 + j))
        for j in range(2): b("v_add_f32 v%d, v%d, v%d" % (S + j, S + j, S + 2 + j))
        b("v_cvt_pk_bf16_f32 v%d, v%d, v%d" % (S, S, S + 1))
        b("s_mov_b32 exec_lo, 0x00ff00ff"); b("s_mov_b32 exec_hi, 0x00ff00ff")
        b("buffer_store_dword v%d, v%d, %s, 0 offen sc1" % (S, A_OS, srd(SWS))); b("s_mov_b64 exec, -1")
        P += mprio(B); P.append(W(vm="all")); signal(A_CQ, 128)
        stamp(15)
    else:
        assert CFG["kvfirst"]
        if CFG["qlate"]: publish_k()
        count_wait(P, A_FL, A_FV, F_EX + 4, 4)
        for hh in range(2):
            for u in range(4): a("ds_read_b128 %s, v%d offset:%d" % (v(A_PQ + 32 * hh + 16 * (u >> 1) + 4 * (u & 1), 4), A_RK, u * 8192 + 4096 + 1024 * hh), "qf")
        one_lane(P, "ds_add_u32 v%d, v%d offset:%d" % (A_FL, A_ONE, F_EXF))
        P.append(W(lg=["qf"]))
        z = qpair(0, 0, A_PQ) if CFG["kvfirst"] else qpair(1, 0)
        P += z[:CFG["kpub"]]
        if not CFG["qlate"]: publish_k()
        P += z[CFG["kpub"]:]
        if CFG["kvfirst"]: rest = [qpair(0, 1, A_PQ + 16), qpair(1, 0, A_PQ + 32), qpair(1, 1, A_PQ + 48)]
        else: rest = ([qpair(0, 1, A_PQ + 16)] if CFG["qpre"] == 1 else []) + [qpair(1, 1)]
        for z in rest: P += z
        Z = (A_ACC, A_ACC + 8); KVA = (A_WP, A_R); S = A_KF
        def finish(hh):
            B = []; b = lambda t, tag=None: B.append(I(t, tag))
            KV = KVA[hh]; PQ = A_PQ + 32 * hh
            for sg in range(2):
                for j in range(2):
                    b("v_mov_b32 v%d, v%d" % (KV + 4 * sg + j, S + 4 * hh + 2 * sg + j))
                    b("v_cvt_pk_bf16_f32 v%d, v%d, v%d" % (KV + 4 * sg + 2 + j, Z[hh] + 4 * sg + 2 * j, Z[hh] + 4 * sg + 2 * j + 1))
            for w in ("16", "32"):
                for sg in range(2):
                    for j in range(2): b("v_permlane%s_swap_b32 v%d, v%d" % (w, KV + 4 * sg + j, KV + 4 * sg + 2 + j))
            if CFG["qnorm"]:
                NN = [A_LD + 16 * u for u in range(4)]
                for u in range(4):
                    for sg in range(2): b("v_mfma_f32_32x32x16_bf16 %s, %s, %s, %s" % (v(NN[u], 16), v(KV + 4 * sg, 4), v(PQ + 8 * u + 4 * sg, 4), v(NN[u], 16) if sg else "0"))
                for u in range(4):
                    N = NN[u]
                    b("v_add_f32 v%d, 0x358637bd, v%d" % (N + 8, N + 8)); b("v_rcp_f32 v%d, v%d" % (N + 8, N + 8))
                    for j in range(8): b("v_mul_f32 v%d, v%d, v%d" % (N + j, N + j, N + 8))
                    for j in range(4): b("v_cvt_pk_bf16_f32 v%d, v%d, v%d" % (A_PQ + 8 * u + 4 * (j >> 1) + 2 * hh + (j & 1), N + 2 * j, N + 2 * j + 1))
                    if hh:
                        b("s_mov_b32 s%d, %d" % (sT5, u * 147456))
                        for h2 in range(2): b("buffer_store_dwordx4 %s, v%d, %s, s%d offen offset:%d sc1" % (v(A_PQ + 8 * u + 4 * h2, 4), A_OS, srd(SWS), sT5, 512 * h2), "ost")
                P.extend(mprio(B, CFG["fprio"])); return
            b("s_mov_b32 exec_lo, 0xff000000"); b("s_mov_b32 exec_hi, 0xff000000")
            for j in range(8): b("v_mov_b32 v%d, 0x3f803f80" % (KV + j))
            b("s_mov_b64 exec, -1")
            buf = [A_LD + 32, A_LD]
            def mm(u):
                for sg in range(2): b("v_mfma_f32_32x32x16_bf16 %s, %s, %s, 0" % (v(buf[u & 1] + 16 * sg, 16), v(KV + 4 * sg, 4), v(PQ + 8 * u + 4 * sg, 4)))
            mm(0)
            for u in range(4):
                if u < 3: mm(u + 1)
                N = buf[u & 1]; Q = N + 16; O = PQ + 8 * u
                b("v_rcp_f32 v%d, v%d" % (N + 12, N + 12)); b("v_rcp_f32 v%d, v%d" % (Q + 12, Q + 12))
                b("v_fmaak_f32 v%d, v%d, v%d, 0x358637bd" % (N + 8, N + 8, N + 12)); b("v_fmac_f32 v%d, v%d, v%d" % (N + 8, Q + 8, Q + 12))
                b("v_rcp_f32 v%d, v%d" % (N + 8, N + 8))
                b("v_mul_f32 v%d, v%d, v%d" % (N + 12, N + 12, N + 8)); b("v_mul_f32 v%d, v%d, v%d" % (Q + 12, Q + 12, N + 8))
                for j in range(8): b("v_mul_f32 v%d, v%d, v%d" % (N + j, N + j, N + 12))
                for j in range(8): b("v_fmac_f32 v%d, v%d, v%d" % (N + j, Q + j, Q + 12))
                for j in range(4): b("v_cvt_pk_bf16_f32 v%d, v%d, v%d" % (A_PQ + 8 * u + 4 * (j >> 1) + 2 * hh + (j & 1), N + 2 * j, N + 2 * j + 1))
            P.extend(mprio(B, CFG["fprio"]))
        def stores(hh):
            for u in range(4):
                a("s_mov_b32 s%d, %d" % (sT5, u * 147456))
                a("buffer_store_dwordx4 %s, v%d, %s, s%d offen offset:%d sc1" % (v(A_PQ + 8 * u + 4 * hh, 4), A_OS, srd(SWS), sT5, 512 * hh), "ost")
        stamp(14)
        for hh in range(2): a(sload(SWS, sCC, 512 * hh + 128, sG + hh))
        for hh in range(2): sgate(P, sCC, 512 * hh + 128, sG + hh, 8)
        stamp(15)
        for hh in range(2):
            a("buffer_load_dwordx4 %s, v%d, %s, 0 offen offset:%d sc1" % (v(S + 4 * hh, 4), A_PL, srd(SWS), 2048 * hh))
            for sg in range(2): a("buffer_load_dwordx4 %s, v%d, %s, 0 offen offset:%d sc1" % (v(Z[hh] + 4 * sg, 4), A_ZL, srd(SWS), 256 * hh + 64 * sg))
        P.append(W(vm="all"))
        finish(0); finish(1)
        if not CFG["qnorm"]: stores(0); stores(1)
        stamp(16)
        P.append(W(vm=["ost"]))
        a("s_mov_b64 exec, 3"); a("buffer_atomic_add v%d, v%d, %s, 0 offen offset:%d sc1" % (A_ONE, A_CM, srd(SWS), C_O * 128)); a("s_mov_b64 exec, -1")
        stamp(17)
    if CFG["stamps"]:
        a("s_lshl_b32 s%d, s2, 8" % sT0); a("s_add_u32 s%d, s%d, %d" % (sT0, sT0, WS_ST + 0x30000))
        a("v_lshlrev_b32 v64, 2, v1")
        a("s_cmp_lg_u32 s%d, %d" % (sW1, CFG["stampw"] & 1)); a("s_cbranch_scc1 L_exit")
        a("buffer_store_dword v34, v64, %s, s%d offen" % (srd(SWS), sT0))
    a("s_endpgm")
    return P

def main():
    hdr = open("cdna_kernels/%s.s.ref" % NAME).read().split("; Override launch geometry")[0]
    out = [hdr.rstrip(), "; @launch grid=(256,1,1) block=(512,1,1) lds=163840",
           "; Written by gen/gen.py. One launch, 256 workgroups (one per CU), 8 waves each:",
           ";   waves 0-3  matrix work: rows centred in registers, [k v | q | gate up] products, then y = h W_down and s = o W_o",
           ";   waves 4-5  LDS-DMA stream of 16 KB slabs through a ring; progress words travel as small DMA loads behind the data",
           ";   waves 6-7  feature maps (true row maxima), phi_k^T v and its sums over the row tiles, o = num / den",
           "; h, o, partial sums and row scales pass between workgroups through d_ws: write-through stores, then a counter",
           "; that workgroup 0 zeroes at the start of every launch (d_debug[0] says when).",
           '.amdgcn_target "amdgcn-amd-amdhsa--gfx950"', ".text", ".globl %s_kernel" % NAME, ".p2align 8",
           ".type %s_kernel,@function" % NAME, "%s_kernel:" % NAME]
    t, st = finalize(prologue()); out += t
    import re
    norm = lambda t: re.sub(r"(L_[a-z]+)\d+", r"\1", t)
    for nm, fn in (("attn", attn_wave), ("dma", dma_wave), ("comp", compute)):
        t0 = finalize([I("s_cmp_eq_u32 s%d, 1" % sTY), I("s_cbranch_scc1 L_%s1" % nm)] + fn(0), st.clone())[0]
        t1 = finalize(fn(1), st.clone())[0]
        k = 0
        while CFG["share"] and norm(t0[-1 - k]) == norm(t1[-1 - k]): k += 1
        while k > 0:
            defs = lambda T: set(x[:-1] for x in T if x.endswith(":"))
            head = " ".join(t0[:len(t0) - k])
            if not any(re.search(r"\b%s\b" % d, head) for d in defs(t0[len(t0) - k:])) and not any(re.search(r"\b%s\b" % d, " ".join(t1[len(t1) - k:])) for d in defs(t1[:len(t1) - k])): break
            k -= 1
        if k > 50:
            t0 = t0[:len(t0) - k] + ["    s_branch L_%sj" % nm]; t1 = t1[:len(t1) - k] + ["L_%sj:" % nm] + t1[len(t1) - k:]
        out += ["L_%s:" % nm] + t0 + ["L_%s1:" % nm] + t1
    out += centre_sub() + STUBS
    out += lds_spin("c", 18, C_FV, CFG["cnap"]) + lds_spin("d", D_LA, D_DV, CFG["dnap"])
    out += ["L_exit:", "    s_endpgm", ".p2align 7", "L_tab:"] + ["    .long %d" % k for k in range(64)]
    out += ['.section .rodata,"a"', ".p2align 6", ".amdhsa_kernel %s_kernel" % NAME,
            "  .amdhsa_next_free_vgpr 256", "  .amdhsa_next_free_sgpr 100", "  .amdhsa_accum_offset 256",
            "  .amdhsa_group_segment_fixed_size 0", "  .amdhsa_kernarg_size 88", "  .amdhsa_user_sgpr_count 2",
            "  .amdhsa_user_sgpr_kernarg_segment_ptr 1", "  .amdhsa_system_sgpr_workgroup_id_x 1", ".end_amdhsa_kernel"]
    open(sys.argv[1], "w").write("\n".join(out) + "\n")
main()
```

```python
import sys, os, json
sys.path.insert(0, os.path.dirname(os.path.abspath(__file__)))
from asmir import I, W, L, M, v, s, finalize, State

NAME = "recurrent_scan__linear_kernel_hedgehog__glu_gated_bilinear__prompt"
CFG = dict(stamps=0, probe=0, probeat=-1, xprobe=0, outfl=" sc0 sc1", stampw=0, zoom=0, LA=7, LAF=3, erate=3, codepf=1, sleep=4, cnap=1, dnap=2, map=48, latin=1, x23=0, spinwarm=0, lean=1, ceninl=1, wat=2, early=0, stops0=[], stops1=[], bf={}, silu0=33, nocheck=0, skipB=[], skipA=[], stage=[], stagefake=0, putahead=3, jitter=0, pack=0, defer=7, nomark=[1, 3, 5, 7, 9, 11], pairs0=[6, 8, 10, 14, 16, 18], pairs1=[10, 12, 14], share=1, join=1, st2=12, wrat=3, stspread=0, qlate=0, ring2=[8, 9, 7, 0, 2, 3, 4, 5, 6], soft0=[], soft1=[], capsoft=48, zstep=1, bigring=0, bigto=20, cen0=32, dprio=0, hfl="sc1", cenat=4, nods=0, nost=0, noattn=0, light=0, nogate=[], qnorm=1, inl=0, tlb=0, tlbm=0xfffffff, s0at=2, kprio=0, qprio=0, fprio=0, wait2=1, kvfirst=1, l2nap=16, qpre=1, qpost=1, ftouch=0, fakeA=0, fakeP=0, dstep=2, fake16=0, lead=0, spoll=1, leadoff=0, who=[0, 2, 0, 2, 1, 3, 0, 2, 1], kpub=40, dry=0, aonly=0, map2=84, h2now=1, chk2=0,
           cap1=128, capt=160, cap2=112, capsw=20, awin=-1, pollat=2, hwait1=16, hwait2=-6, nb0=56, nb1=56, ahead2=4,
           bfirst=4, p2chk=1,
           rsat=66, exw0=[], exw1=[], afirst={},
           tplan0={"13": "m x"}, tplan1={"9": "m x"})
for a_ in sys.argv[2:]:
    k_, x_ = a_.split("="); assert k_ in CFG, k_; CFG[k_] = json.loads(x_)

WS_RS = 0x8000
WS_KV = 0x10000
WS_Z = 0x120000
WS_KVF = 0x130000; WS_ZF = 0x138000
WS_ST = 0x140000
WS_HO = 0x200000
WS_BYTES = WS_HO + 64 * 144 * 1024
C_H1A, C_H1B, C_H2, C_O = 0, 1, 2, 3
SLOT = 16384; STG = 32768; EX = 131072; FL = SLOT; LRS = FL + 2048; LSD = LRS + 512; F_INIT = 1792; LR2 = FL + 3072; LX = FL + 4096
F_LAND, F_DONE = 256, 768
F_EX, F_H, F_EXF, F_END = 32, 44, 52, 56
SX, SQKV, SPHI, SWO, SG, SU, SWD, SOUT, SDBG, SWS = 8, 12, 16, 20, 24, 28, 32, 36, 40, 44
sW, sW1, sI, sGR, sTY, sR1, sXR, sTT, sCT, sR2 = range(56, 66)
sT0, sT1, sT2, sT3, sT4, sT5 = range(66, 72)
sL2E = 72; sKC = 73; sSH = 74; sXL = 75; sKS = 76; sLA = 78; sXB = 79
sSPIN = 80; sRET = 82; sPH = 84; sTB = 88; sTM = 90; sMK = 94; sLM = 48; sLD = 49; sG = 50; sCC = 54; sPV = 55
srd = lambda b: s(b, 4)
LOG2E = 0x3fb8aa3b
XR = 128; ACC = 64; WF = 32
L_T, L_SEL, L_ID, L_SM, L_CM, L_SQ = 192, 224, 228, 232, 236, 240
L_XO, L_RR, L_C, L_SB, L_C7, L_WA, L_VA, L_VB = 124, 245, 246, 247, 248, 249, 251, 252
L_TR = 244
K_SQ, K_DL, K_RA = 16, 20, 24
H_STAMP = 255; H_STAMP2 = 254
_lbl = [0]
def newlbl():
    _lbl[0] += 1; return _lbl[0]
STUBS = []

PH = {0: [("P2", "kv", (0, 1)), ("P4", "gu", (2, 3, 0, 1)), ("P4", "gu", (0, 1, 2, 3))],
      1: [("P2", "q", (0, 1)), ("P2", "kv", (2, 3)), ("P4", "gu", (0, 1, 2, 3)), ("P2", "gu", (0, 1))]}
if CFG["kvfirst"]: PH[1][0:2] = [("P2", "kv", (0, 1)), ("P2", "q", (2, 3))]
if CFG["qlate"]: PH[1] = [("P2", "kv", (0, 1)), ("P4", "gu", (2, 3, 0, 1)), ("P2", "q", (0, 1)), ("P2", "gu", (2, 3))]
def slabs_of(ty):
    return [(pi, k, sg) for pi, (k, e, _) in enumerate(PH[ty]) for sg in range(8 if k == "P4" else 4)]
def slot_of(n):
    return (0, 2, 3, 4, 5, 6, 7)[n % 7]
NPK = CFG["pack"]; R2_ = CFG["ring2"]; LOC = {}
for n_ in range(20, 20 + NPK):
    LOC[(n_, "B")] = (R2_[(n_ - 20) // 2], n_ & 1); LOC[(n_, "A")] = (R2_[NPK // 2 + (n_ - 20) // 2], n_ & 1)
R3_ = R2_[NPK:] + [R2_[k + h * (NPK // 2)] for k in range(NPK // 2) for h in range(2)]
for n_ in range(20 + NPK, 56):
    LOC[(n_, "B")] = (R3_[(n_ - 20 - NPK) % 9], 0); LOC[(n_, "A")] = (R3_[(n_ - 20 - NPK) % 9], 1)
def prev_user(n, w="F"):
    mine = {(slot_of(n), 0), (slot_of(n), 1)} if n < 20 else {LOC[(n, x)] for x in ("AB" if w == "F" else w)}
    p = [m for m in range(n) if mine & ({(slot_of(m), 0), (slot_of(m), 1)} if m < 20 else {LOC[(m, "A")], LOC[(m, "B")]})]
    return p[-1] if p else -1
def marked(n): return (n not in CFG["nomark"]) if n < 20 else n % CFG["dstep"] == CFG["dstep"] - 1
def checks(ty):
    c = {0: 0, 1: 1}
    for n in range(2, CFG["nb%d" % ty], 2):
        if ((CFG["chk2"] or n in CFG["pairs%d" % ty]) if n < 20 else CFG["p2chk"] == 2): c[n] = n + 1
        else: c[n] = n; c[n + 1] = n + 1
    return c

def stamp_to(P, k, reg=H_STAMP):
    if CFG["stamps"]:
        P.append(I("s_memtime %s" % s(sTM + 2, 2))); P.append(W(lg="all"))
        P.append(I("s_sub_u32 s%d, s%d, s%d" % (sTM + 2, sTM + 2, sTM))); P.append(I("v_writelane_b32 v%d, s%d, %d" % (reg, sTM + 2, k)))
def rstamp(P, k):
    if CFG["stamps"]:
        P.append(I("s_memrealtime s[6:7]")); stamp_to(P, k, H_STAMP2)
        P.append(I("s_sub_u32 s6, s6, s4")); P.append(I("v_writelane_b32 v%d, s6, %d" % (H_STAMP2, k + 1)))
def jit(P, mask, prob=3):
    if not CFG["jitter"]: return
    n = newlbl()
    for t in ["    s_memtime s[98:99]", "    s_waitcnt lgkmcnt(0)", "    s_mul_i32 s98, s98, 0x9E3779B1", "    s_lshr_b32 s99, s98, 28", "    s_and_b32 s99, s99, %d" % prob,
              "    s_cmp_lg_u32 s99, 0", "    s_cbranch_scc1 L_je%d" % n, "    s_lshr_b32 s98, s98, 16", "    s_and_b32 s98, s98, %d" % mask, "L_jl%d:" % n, "    s_sleep 4",
              "    s_sub_u32 s98, s98, 1", "    s_cbranch_scc0 L_jl%d" % n, "L_je%d:" % n]: P.append(L(t))
def raw(P, items):
    for x in finalize(items)[0]: P.append(L(x))
def only(P, cond, items):
    n = newlbl()
    for t in cond: P.append(I(t))
    P.append(I("s_cbranch_scc1 L_sk%d" % n)); raw(P, items); P.append(L("L_sk%d:" % n))
def one_lane(X, t, tag=None):
    X.append(I("s_mov_b64 exec, 1")); X.append(I(t, tag)); X.append(I("s_mov_b64 exec, -1"))

def p4_voffs(a, va, vb, stride, t):
    a("v_lshrrev_b32 v%d, 3, v1" % t)
    a("v_and_b32 v%d, 2, v%d" % (t + 1, t)); a("v_lshlrev_b32 v%d, 1, v%d" % (t + 1, t + 1))
    a("v_and_b32 v%d, 7, v1" % (t + 2)); a("v_xor_b32 v%d, v%d, v%d" % (t + 2, t + 2, t + 1))
    a("v_mul_u32_u24 v%d, %d, v%d" % (t, stride, t))
    a("v_lshl_add_u32 v%d, v%d, 4, v%d" % (va, t + 2, t))
    a("v_xor_b32 v%d, 32, v%d" % (vb, va))
def p2_voffs(a, va, vb, stride, t):
    a("v_lshrrev_b32 v%d, 2, v1" % t)
    a("v_and_b32 v%d, 3, v1" % (t + 2)); a("v_lshrrev_b32 v%d, 4, v1" % (t + 1)); a("v_and_b32 v%d, 2, v%d" % (t + 1, t + 1)); a("v_xor_b32 v%d, v%d, v%d" % (t + 2, t + 2, t + 1))
    a("v_mul_u32_u24 v%d, %d, v%d" % (t, stride, t))
    a("v_lshl_add_u32 v%d, v%d, 4, v%d" % (va, t + 2, t))
    a("v_mov_b32 v%d, v%d" % (vb, va))
def ident(a, dst, t):
    a("v_and_b32 v%d, 3, v1" % t)
    a("v_and_b32 v%d, 1, v1" % (t + 1)); a("v_lshlrev_b32 v%d, 4, v%d" % (t + 1, t + 1)); a("v_mov_b32 v%d, 0x3f80" % (t + 2))
    a("v_lshlrev_b32 v%d, v%d, v%d" % (t + 1, t + 1, t + 2))
    a("v_cmp_gt_u32 vcc, 2, v%d" % t)
    a("v_cndmask_b32 v%d, 0, v%d, vcc" % (dst, t + 1)); a("v_sub_u32 v%d, v%d, v%d" % (dst + 1, t + 1, dst))

X_V = 48
def prologue():
    P = []; a = lambda t, tag=None: P.append(I(t, tag))
    a("s_cmp_ge_u32 s2, 256")
    a("s_cbranch_scc1 L_exit")
    a("s_load_dwordx2 %s, s[0:1], 0" % s(SX, 2)); a("s_load_dwordx2 %s, s[0:1], 8" % s(SQKV, 2))
    if CFG["probe"]: a("s_memrealtime s[4:5]")
    if CFG["light"]: a("s_memtime %s" % s(sTM, 2)); a("s_memrealtime s[4:5]")
    if CFG["stamps"]:
        a("s_memtime %s" % s(sTM, 2)); a("s_memrealtime s[4:5]")
    if CFG["lean"]:
        a("s_getpc_b64 %s" % s(sTB, 2)); P.append(L("L_pc:"))
        a("s_and_b32 s%d, s2, 0xf8" % sT0); a("s_mul_i32 s%d, s%d, 3" % (sT0, sT0))
        a("v_cmp_gt_u32 vcc, 24, v0"); a("s_cbranch_vccz L_nopf")
        raw(P, [I("v_min_u32 v3, 23, v0"), I("v_add_lshl_u32 v3, v3, s%d, 7" % sT0), I("v_min_u32 v3, L_tab-L_pc+252, v3"), I("global_load_dword v%d, v3, %s" % (X_V + 5, s(sTB, 2)))])
        P.append(L("L_nopf:"))
        assert CFG["map"] == 48
        a("v_readfirstlane_b32 s%d, v0" % sW)
        a("v_and_b32 v1, 63, v0")
        a("s_bfe_u32 s%d, s2, 0x20003" % sT3); a("s_bfe_u32 s%d, s2, 0x20001" % sT2); a("s_lshr_b32 s%d, s2, 5" % sR1)
        a("s_lshl2_add_u32 s%d, s%d, s%d" % (sI, sT2, sT3)); a("s_lshl1_add_u32 s%d, s%d, s%d" % (sR1, sT3, sR1))
        a("s_lshr_b32 s%d, s%d, 6" % (sW, sW))
        a("v_lshrrev_b32 v4, 3, v1"); a("v_lshrrev_b32 v5, 4, v1"); a("v_and_b32 v6, 7, v1"); a("v_xor_b32 v5, v5, v6")
        a("v_lshlrev_b32 v4, 10, v4"); a("v_lshl_add_u32 v%d, v5, 4, v4" % X_V)
        a("s_mov_b32 s%d, 2097152" % (SX + 2)); a("s_mov_b32 s%d, 0x20000" % (SX + 3))
        a("s_and_b32 s%d, s%d, 3" % (sT0, sW)); a("s_add_u32 s%d, s%d, 8" % (sXL, sT0)); a("s_lshl_b32 s%d, s%d, 12" % (sXL, sXL))
        a("s_lshl2_add_u32 s%d, s%d, s%d" % (sXB, sI, sT0)); a("s_lshl_b32 s%d, s%d, 15" % (sXB, sXB))
        a("v_xor_b32 v4, 64, v%d" % X_V)
        a("v_add_u32 v%d, 7168, v4" % (X_V + 1)); a("v_add_u32 v%d, 14336, v%d" % (X_V + 2, X_V)); a("v_add_u32 v%d, 21504, v4" % (X_V + 3))
        X = []; x = lambda t, tag=None: X.append(I(t, tag))
        x("s_cmp_lt_u32 s%d, 4" % sW); x("s_cbranch_scc1 L_nox")
        x("s_waitcnt lgkmcnt(0)")
        xline(x, 0); xline(x, 1)
        raw(P, X); P.append(L("L_nox:"))
        a("s_lshr_b32 s%d, s2, 3" % sSH)
        a("s_and_b32 s%d, s2, 7" % sT5)
        a("s_lshr_b32 s%d, s%d, 4" % (sTY, sSH)); a("s_lshl_b32 s%d, s%d, 1" % (sXR, sT3))
        a("s_and_b32 s%d, s2, 1" % sT2); a("s_bfe_u32 s%d, s2, 0x20005" % sT3); a("s_lshl2_add_u32 s%d, s%d, s%d" % (sGR, sT2, sT3))
    else:
        a("s_lshr_b32 s%d, s2, 3" % sSH)
        a("s_getpc_b64 %s" % s(sTB, 2)); P.append(L("L_pc:"))
        if CFG["codepf"]:
            a("s_mul_i32 s%d, s%d, 24" % (sT0, sSH))
            a("v_add_u32 v3, s%d, v0" % sT0); a("v_lshlrev_b32 v3, 7, v3"); a("v_min_u32 v3, L_tab-L_pc+252, v3")
            a("v_cmp_gt_u32 vcc, 24, v0"); a("s_and_saveexec_b64 s[48:49], vcc"); a("s_cbranch_execz L_nopf")
            P.append(L("    global_load_dword v%d, v3, %s" % (X_V + 5, s(sTB, 2))))
            P.append(L("L_nopf:")); a("s_mov_b64 exec, -1")
        a("v_lshrrev_b32 v2, 6, v0")
        a("v_and_b32 v1, 63, v0")
        a("v_readfirstlane_b32 s%d, v2" % sW)
        a("s_and_b32 s%d, s2, 7" % sT5)
        a("s_lshr_b32 s%d, s%d, 4" % (sTY, sSH))
        if CFG["map"] == 48:
            a("s_and_b32 s%d, s%d, 3" % (sT3, sSH)); a("s_lshl_b32 s%d, s%d, 1" % (sXR, sT3))
            a("s_lshr_b32 s%d, s%d, 1" % (sT2, sT5)); a("s_lshl_b32 s%d, s%d, 2" % (sT2, sT2)); a("s_add_u32 s%d, s%d, s%d" % (sI, sT2, sT3))
            a("s_lshr_b32 s%d, s%d, 2" % (sR1, sSH))
            a("s_and_b32 s%d, s%d, 1" % (sT2, sT5)); a("s_lshl_b32 s%d, s%d, 2" % (sT2, sT2)); a("s_and_b32 s%d, s%d, 3" % (sT3, sR1)); a("s_add_u32 s%d, s%d, s%d" % (sGR, sT2, sT3))
        else:
            a("s_and_b32 s%d, s%d, 7" % (sXR, sSH))
            a("s_lshr_b32 s%d, s%d, 2" % (sT2, sT5)); a("s_lshl_b32 s%d, s%d, 3" % (sT2, sT2)); a("s_add_u32 s%d, s%d, s%d" % (sI, sT2, sXR))
            a("s_lshr_b32 s%d, s%d, 3" % (sT3, sSH)); a("s_lshl_b32 s%d, s%d, 1" % (sR1, sT3))
            a("s_and_b32 s%d, s%d, 3" % (sT2, sT5)); a("s_lshl_b32 s%d, s%d, 1" % (sT2, sT2)); a("s_and_b32 s%d, s%d, 1" % (sT3, sT3)); a("s_add_u32 s%d, s%d, s%d" % (sGR, sT2, sT3))
        if CFG["latin"]: a("s_add_u32 s%d, s%d, s%d" % (sR1, sR1, sXR)); a("s_and_b32 s%d, s%d, 7" % (sR1, sR1))
        a("s_mov_b32 s%d, 2097152" % (SX + 2)); a("s_mov_b32 s%d, 0x20000" % (SX + 3))
        X = []; x = lambda t, tag=None: X.append(I(t, tag))
        x("v_lshrrev_b32 v4, 3, v1"); x("v_lshrrev_b32 v5, 4, v1"); x("v_and_b32 v6, 7, v1"); x("v_xor_b32 v5, v5, v6")
        x("v_lshlrev_b32 v4, 10, v4"); x("v_lshl_add_u32 v%d, v5, 4, v4" % X_V)
        x("v_xor_b32 v4, 64, v%d" % X_V)
        x("v_add_u32 v%d, 7168, v4" % (X_V + 1)); x("v_add_u32 v%d, 14336, v%d" % (X_V + 2, X_V)); x("v_add_u32 v%d, 21504, v4" % (X_V + 3))
        x("s_and_b32 s%d, s%d, 3" % (sT0, sW)); x("s_lshl_b32 s%d, s%d, 12" % (sXL, sT0)); x("s_add_u32 s%d, s%d, %d" % (sXL, sXL, STG))
        x("s_lshl_b32 s%d, s%d, 15" % (sT0, sT0)); x("s_lshl_b32 s%d, s%d, 17" % (sXB, sI)); x("s_add_u32 s%d, s%d, s%d" % (sXB, sXB, sT0))
        x("s_cmp_lt_u32 s%d, 4" % sW); x("s_cbranch_scc1 L_nox")
        x("s_waitcnt lgkmcnt(0)")
        xline(x, 0); xline(x, 1)
        if CFG["early"]:
            x("s_branch L_nox2"); X.append(L("L_nox:"))
            x("s_lshl_b32 s%d, s%d, 6" % (sT0, sXR)); x("s_lshl_b32 s%d, s%d, 5" % (sT1, sW)); x("s_add_u32 s%d, s%d, s%d" % (sT0, sT0, sT1))
            x("v_add_u32 v4, s%d, v1" % sT0); x("v_mul_u32_u24 v4, 3072, v4")
            x("s_lshl_b32 s%d, s%d, 7" % (sT0, sGR)); x("s_lshl_b32 s%d, s%d, 10" % (sT1, sTY)); x("s_add_u32 s%d, s%d, s%d" % (sT0, sT0, sT1))
            x("s_mov_b32 s%d, 1572864" % (SQKV + 2)); x("s_mov_b32 s%d, 0x20000" % (SQKV + 3)); x("s_mov_b32 exec_hi, 0"); x("s_waitcnt lgkmcnt(0)")
            x("buffer_load_dword v%d, v4, %s, s%d offen offset:1024" % (X_V + 5, srd(SQKV), sT0)); x("s_mov_b64 exec, -1")
            raw(P, X); P.append(L("L_nox2:"))
        else: raw(P, X); P.append(L("L_nox:"))
    if CFG["stamps"]:
        a("v_mov_b32 v%d, 0" % H_STAMP); a("v_mov_b32 v%d, 0" % H_STAMP2); P.append(W(lg="all"))
    stamp_to(P, 0, H_STAMP2)
    for b, off in ((SPHI, 16), (SWS, 80), (SG, 40), (SU, 48), (SWO, 24), (SWD, 56), (SOUT, 64), (SDBG, 72)):
        a("s_load_dwordx2 %s, s[0:1], %d" % (s(b, 2), off))
    for b, n in ((SQKV, 1572864), (SPHI, 16384), (SWO, 524288), (SG, 1835008), (SU, 1835008), (SWD, 1835008), (SOUT, 2097152), (SDBG, 256), (SWS, WS_BYTES)):
        a("s_mov_b32 s%d, %d" % (b + 2, n)); a("s_mov_b32 s%d, 0x20000" % (b + 3))
    a("s_lshl_b32 s%d, s%d, 7" % (sKC, sGR)); a("s_lshl_b32 s%d, s%d, 6" % (sT0, sTY)); a("s_add_u32 s%d, s%d, s%d" % (sKC, sKC, sT0)); a("s_add_u32 s%d, s%d, 1024" % (sKC, sKC))
    if CFG["map2"] == 48:
        a("s_lshr_b32 s%d, s%d, 2" % (sCT, sSH)); a("s_and_b32 s%d, s%d, 3" % (sT3, sSH))
        a("s_lshl_b32 s%d, s%d, 2" % (sT2, sT5)); a("s_add_u32 s%d, s%d, s%d" % (sTT, sT2, sT3))
        a("s_lshl_b32 s%d, s%d, 1" % (sT3, sT3)); a("s_add_u32 s%d, s%d, s%d" % (sR2, sT3, sCT))
    else:
        a("s_lshr_b32 s%d, s%d, 3" % (sT3, sSH)); a("s_and_b32 s%d, s%d, 1" % (sT2, sT5)); a("s_lshl_b32 s%d, s%d, 2" % (sT2, sT2)); a("s_add_u32 s%d, s%d, s%d" % (sCT, sT2, sT3))
        a("s_and_b32 s%d, s%d, 7" % (sT1, sSH)); a("s_lshr_b32 s%d, s%d, 1" % (sT2, sT5)); a("s_lshl_b32 s%d, s%d, 3" % (sT2, sT2)); a("s_add_u32 s%d, s%d, s%d" % (sTT, sT2, sT1))
        a("s_and_b32 s%d, s%d, 1" % (sT3, sT3)); a("s_lshl_b32 s%d, s%d, 1" % (sT3, sT3)); a("s_add_u32 s%d, s%d, s%d" % (sT3, sT3, sTY))
        if CFG["lead"]: a("s_mov_b32 s%d, s%d" % (sLD, sT3)); a("s_mov_b32 s%d, s%d" % (sR2, sT1))
        else: a("s_lshl_b32 s%d, s%d, 1" % (sT3, sT3)); a("s_add_u32 s%d, s%d, s%d" % (sR2, sT3, sT1))
    a("s_and_b32 s%d, s%d, 1" % (sW1, sW))
    a("s_mov_b32 s%d, 0x%x" % (sL2E, LOG2E))
    a("s_add_u32 s%d, s%d, L_tab-L_pc" % (sTB, sTB)); a("s_addc_u32 s%d, s%d, 0" % (sTB + 1, sTB + 1))
    P.append(W(lg="all"))
    jit(P, 63)
    a("s_cmp_lt_u32 s%d, 4" % sW); a("s_cbranch_scc1 L_comp")
    a("s_cmp_lt_u32 s%d, 6" % sW); a("s_cbranch_scc1 L_dma")
    return P

def xline(a, j):
    a("s_add_u32 s%d, s%d, %d" % (sT0, sR1, j)); a("s_and_b32 s%d, s%d, 7" % (sT0, sT0)); a("s_lshl_b32 s%d, s%d, 7" % (sT0, sT0)); a("s_add_u32 s%d, s%d, s%d" % (sT0, sT0, sXB))
    a("s_add_u32 m0, s%d, %d" % (sXL, j * 16384))
    for p in range(4): a("buffer_load_dwordx4 v%d, %s, s%d offen offset:%d lds" % (X_V + p, srd(SX), sT0, p * 1024), ("x", j))
def xstages(P, extra):
    a = lambda t, tag=None: P.append(I(t, tag))
    if not CFG["x23"]: xline(a, 2); xline(a, 3)
    for j in range(4):
        if not (CFG["x23"] and j == 1): P.append(W(vm=[("x", 2 * j + 1)]))
        a("s_barrier")
        if j == 0: stamp_to(P, 2, H_STAMP2)
        if j < 2: xline(a, 2 * j + 4); xline(a, 2 * j + 5)
        if j in extra: extra[j]()

def fcols(a, ty):
    if ty == 0:
        a("s_lshl_b32 s%d, s%d, 7" % (sKS, sGR)); a("s_add_u32 s%d, s%d, 64" % (sKS + 1, sKS))
    else:
        a("s_mul_i32 s%d, s%d, 96" % (sT0, sGR)); a("s_add_u32 s%d, s%d, 1024" % (sT0, sT0))
        a("s_and_b32 s%d, s%d, 1" % (sT1, sGR)); a("s_lshl_b32 s%d, s%d, 5" % (sT2, sT1))
        a("s_add_u32 s%d, s%d, s%d" % (sKS, sT0, sT2))
        a("s_xor_b32 s%d, s%d, 1" % (sT1, sT1)); a("s_lshl_b32 s%d, s%d, 6" % (sT1, sT1))
        a("s_add_u32 s%d, s%d, s%d" % (sKS + 1, sT0, sT1))

def clear_low(a, used):
    for k in range(2, 64):
        if k not in used: a("v_mov_b32 v%d, 0" % k)

def lds_spin(nm, va, vd, nap):
    X = ["L_spin_%s:" % nm, "    s_mov_b32 s%d, 0" % sSPIN, "L_spl_%s:" % nm]
    if nap: X.append("    s_sleep %d" % nap)
    X += ["    ds_read_b32 v%d, v%d" % (vd, va), "    s_add_u32 s%d, s%d, 1" % (sSPIN, sSPIN), "    s_waitcnt lgkmcnt(0)",
          "    s_cmp_ge_u32 s%d, 0x1000000" % sSPIN, "    s_cbranch_scc1 L_spr_%s" % nm,
          "    v_cmp_gt_u32 vcc, s%d, v%d" % (sSPIN + 1, vd), "    s_cbranch_vccnz L_spl_%s" % nm, "L_spr_%s:" % nm, "    s_setpc_b64 %s" % s(sRET, 2)]
    return X
def count_wait(P, vfl, vd, off, want):
    n = newlbl()
    P.append(W(lg="all"))
    for t in ["    s_mov_b32 s%d, 0" % sSPIN, "L_cw%d:" % n, "    ds_read_b32 v%d, v%d offset:%d" % (vd, vfl, off), "    s_add_u32 s%d, s%d, 1" % (sSPIN, sSPIN),
              "    s_waitcnt lgkmcnt(0)", "    v_cmp_le_u32 vcc, %d, v%d" % (want, vd), "    s_cbranch_vccnz L_cx%d" % n, "    s_sleep %d" % CFG["dnap"],
              "    s_cmp_lt_u32 s%d, 0x1000000" % sSPIN, "    s_cbranch_scc1 L_cw%d" % n, "L_cx%d:" % n]: P.append(L(t))

def sload(base, soff, off, sdst):
    return "s_load_dword s%d, %s, %s glc" % (sdst, s(base, 2), ("s%d offset:%d" % (soff, off)) if soff is not None else "%d" % off)
def sgate(P, soff, off, sdst, want, base=None):
    n = newlbl()
    P.append(W(lg="all"))
    P.append(I("s_cmp_eq_u32 s%d, %d" % (sdst, want))); P.append(I("s_cbranch_scc1 L_ok%d" % n))
    X = ["    s_mov_b32 s%d, 0" % sSPIN, "L_spin%d:" % n]
    if CFG["sleep"]: X.append("    s_sleep %d" % CFG["sleep"])
    X += ["    " + sload(SWS if base is None else base, soff, off, sdst), "    s_add_u32 s%d, s%d, 1" % (sSPIN, sSPIN),
          "    s_waitcnt lgkmcnt(0)", "    s_cmp_eq_u32 s%d, %d" % (sdst, want), "    s_cbranch_scc1 L_ok%d" % n,
          "    s_cmp_lt_u32 s%d, 0x80000" % sSPIN, "    s_cbranch_scc1 L_spin%d" % n, "L_ok%d:" % n]
    for t in X: P.append(L(t))

def gate(P, vaddr, srdb, off, tag, vdst, want, slow=None):
    n = newlbl()
    P.append(W(lg=[tag]) if tag == "init" else W(vm=[tag]))
    P.append(I("v_cmp_eq_u32 vcc, %d, v%d" % (want, vdst)))
    P.append(I("s_cbranch_vccnz L_ok%d" % n))
    if slow: raw(P, slow)
    X = ["    s_mov_b32 s%d, 0" % sSPIN, "L_spin%d:" % n]
    if CFG["sleep"]: X.append("    s_sleep %d" % CFG["sleep"])
    X += ["    buffer_load_dword v%d, v%d, %s, 0 offen offset:%d sc1" % (vdst, vaddr, srd(srdb), off), "    s_add_u32 s%d, s%d, 1" % (sSPIN, sSPIN),
          "    s_waitcnt vmcnt(0)", "    v_cmp_eq_u32 vcc, %d, v%d" % (want, vdst), "    s_cbranch_vccnz L_ok%d" % n,
          "    s_cmp_lt_u32 s%d, 0x80000" % sSPIN, "    s_cbranch_scc1 L_spin%d" % n, "L_ok%d:" % n]
    for t in X: P.append(L(t))

C_XA, N_ONES, N_SQ = ACC + 16, ACC + 20, ACC + 24
N_T, N_CM, N_ID, N_R, N_DL, N_TK = ACC + 32, ACC + 48, ACC + 56, ACC + 58, ACC + 62, ACC + 63
C_A2, C_B2, C_OUT, C_RO = 25, 28, 31, 0
C_FV, C_HC, C_FL, C_ONE, C_DV, C_CM = 16, 20, 21, 22, 23, 24
MM = "v_mfma_f32_16x16x32_bf16"
def compute_setup(ty):
    P = []; a = lambda t, tag=None: P.append(I(t, tag))
    t = list(range(32, 48))
    tk, G, r, c, g0, g1 = t[0:6]
    a("v_and_b32 v%d, 15, v1" % tk); a("v_lshrrev_b32 v%d, 4, v1" % G); a("v_and_b32 v%d, 1, v%d" % (g0, G)); a("v_lshrrev_b32 v%d, 5, v1" % g1)
    a("s_lshl_b32 s%d, s%d, 12" % (sT1, sW)); a("s_add_u32 s%d, s%d, %d" % (sT1, sT1, STG))
    a("v_lshlrev_b32 v%d, 7, v%d" % (t[6], tk)); a("v_add_u32 v%d, s%d, v%d" % (t[7], sT1, t[6]))
    a("v_lshrrev_b32 v%d, 1, v%d" % (t[8], tk)); a("v_xor_b32 v%d, v%d, v%d" % (t[8], t[8], G))
    a("v_lshl_add_u32 v%d, v%d, 4, v%d" % (C_XA, t[8], t[7])); a("v_xor_b32 v%d, 64, v%d" % (C_XA + 1, C_XA))
    for k in range(2): a("v_add_u32 v%d, 0x10000, v%d" % (C_XA + 2 + k, C_XA + k)); a("v_mov_b32 v%d, 0x3f803f80" % (N_ONES + k))
    P.append("cut")
    ident(a, N_ID, t[13])
    for j in range(3): a("v_cmp_eq_u32 %s, %d, v%d" % (s(sMK + 2 * j, 2), j + 1, t[13]))
    a("v_mov_b32 v%d, %d" % (C_FL, FL)); a("v_mov_b32 v%d, 1" % C_ONE); a("s_lshl_b32 s%d, s%d, 1" % (sT4, sI)); a("s_lshr_b32 s%d, s%d, 1" % (sT3, sW)); a("s_add_u32 s%d, s%d, s%d" % (sT4, sT4, sT3))
    a("s_lshl_b32 s%d, s%d, 9" % (sT4, sT4)); a("v_mov_b32 v%d, s%d" % (C_CM, sT4))
    a("v_and_b32 v18, 1, v1"); a("v_lshlrev_b32 v18, 8, v18"); a("v_add_u32 v18, %d, v18" % (FL + F_LAND))
    a("s_lshl_b32 s%d, s%d, 8" % (sT4, sW)); a("s_add_u32 m0, s%d, %d" % (sT4, FL + F_DONE))
    a("s_lshl_b32 s%d, s%d, 5" % (sT4, sW)); a("v_and_b32 v%d, 31, v1" % N_TK); a("v_add_u32 v%d, s%d, v%d" % (N_TK, sT4, N_TK))
    a("v_bfe_u32 v%d, v1, 2, 2" % r); a("v_and_b32 v%d, 3, v1" % c); a("v_lshlrev_b32 v%d, 3, v%d" % (c, c))
    a("v_lshl_add_u32 v%d, v%d, 11, v%d" % (t[8], G, c)); a("v_lshl_add_u32 v%d, v%d, 7, v%d" % (t[8], r, t[8]))
    a("v_and_b32 v%d, 2, v%d" % (t[9], r)); a("v_xor_b32 v%d, v%d, v%d" % (t[9], t[9], g0))
    a("v_lshl_add_u32 v2, v%d, 5, v%d" % (t[9], t[8]))
    for k in range(1, 4): a("v_xor_b32 v%d, %d, v2" % (2 + k, 32 * k))
    for k in range(4): a("v_add_u32 v%d, 0x10000, v%d" % (6 + k, 2 + k))
    a("v_lshl_add_u32 v%d, v%d, 11, v%d" % (t[8], g1, c)); a("v_lshl_add_u32 v%d, v%d, 6, v%d" % (t[8], r, t[8]))
    a("v_mul_u32_u24 v%d, 544, v%d" % (t[9], g0)); a("v_add_u32 v10, v%d, v%d" % (t[8], t[9])); a("v_xor_b32 v11, 32, v10")
    for k in range(2): a("v_add_u32 v%d, 0x10000, v%d" % (12 + k, 10 + k))
    a("s_lshl_b32 s%d, s%d, 13" % (sT0, sW)); a("s_add_u32 s%d, s%d, %d" % (sT0, sT0, EX))
    a("v_lshlrev_b32 v15, 9, v%d" % g0); a("v_lshl_add_u32 v15, v%d, 4, v15" % tk); a("v_lshl_add_u32 v15, v%d, 3, v15" % g1); a("v_add_u32 v15, s%d, v15" % sT0)
    a("v_lshlrev_b32 v%d, 4, v1" % t[11])
    a("s_lshl_b32 s%d, s%d, 2" % (sT0, sI)); a("s_add_u32 s%d, s%d, s%d" % (sT0, sT0, sW)); a("s_mul_i32 s%d, s%d, %d" % (sT0, sT0, 147456))
    a("s_add_u32 s%d, s%d, %d" % (sT0, sT0, WS_HO)); a("v_add_u32 v14, s%d, v%d" % (sT0, t[11]))
    fcols(a, ty)
    a("s_lshl_b32 s%d, s%d, 6" % (sKS, sKS)); a("s_lshl_b32 s%d, s%d, 6" % (sKS + 1, sKS + 1))
    a("s_lshr_b32 s%d, s%d, 1" % (sT0, sW))
    a("s_lshl_b32 s%d, s%d, 13" % (sT2, sT0))
    a("v_add_u32 v%d, s%d, v%d" % (C_A2, sT2, t[11])); a("v_add_u32 v%d, 0x10000, v%d" % (C_A2 + 1, C_A2)); a("v_add_u32 v%d, 0x20000, v%d" % (C_A2 + 2, C_A2))
    u = t[12]
    a("v_bfe_u32 v%d, v1, 3, 2" % u); a("s_lshl_b32 s%d, s%d, 1" % (sT4, sW1)); a("v_xor_b32 v%d, s%d, v%d" % (u, sT4, u)); a("v_lshl_add_u32 v%d, v%d, 5, v%d" % (C_B2, u, c))
    a("v_lshrrev_b32 v%d, 2, v1" % u); a("v_lshl_add_u32 v%d, v%d, 7, v%d" % (C_B2, u, C_B2))
    a("v_add_u32 v%d, 0x10000, v%d" % (C_B2 + 1, C_B2)); a("v_add_u32 v%d, 0x20000, v%d" % (C_B2 + 2, C_B2))
    a("s_lshl_b32 s%d, s%d, 5" % (sT3, sT0)); a("v_add_u32 v%d, s%d, v%d" % (u, sT3, tk)); a("v_lshlrev_b32 v%d, 2, v%d" % (C_RO, u))
    a("s_lshl_b32 s%d, s%d, 6" % (sT4, sW1))
    a("v_lshlrev_b32 v17, 7, v%d" % u); a("v_lshl_add_u32 v17, v%d, 3, v17" % G); a("v_add_u32 v17, s%d, v17" % sT4)
    a("s_lshl_b32 s%d, s%d, 16" % (sT2, sTT)); a("s_lshl_b32 s%d, s%d, 7" % (sT3, sCT)); a("s_add_u32 s%d, s%d, s%d" % (sT3, sT3, sT4)); a("s_add_u32 s%d, s%d, s%d" % (sT3, sT3, sT2))
    a("v_lshlrev_b32 v%d, 10, v%d" % (u, u)); a("v_lshl_add_u32 v%d, v%d, 5, v%d" % (u, g0, u)); a("v_lshl_add_u32 v%d, v%d, 4, v%d" % (u, g1, u)); a("v_add_u32 v%d, s%d, v%d" % (C_OUT, sT3, u))
    return P

def centre(a, k0, k1):
    def cen(k, h): a("v_mfma_f32_4x4x4_16b_bf16 %s, %s, %s, %s" % (v(N_T + 8 * (k & 1) + 4 * h, 4), v(N_ID, 2), v(XR + 4 * k + 2 * h, 2), v(N_CM + 4 * (k & 1), 4)))
    cen(k0, 0); cen(k0, 1); cen(k0 + 1, 0)
    for k in range(k0, k1):
        for h in range(2):
            kn, hn = k + (h + 3) // 2, (h + 3) & 1
            if kn < k1: cen(kn, hn)
            for j in (2 * h, 2 * h + 1): a("v_cvt_pk_bf16_f32 v%d, v%d, v%d" % (XR + 4 * k + j, N_T + 8 * (k & 1) + 2 * j, N_T + 8 * (k & 1) + 2 * j + 1))
def centre_sub():
    P = []; centre(lambda t: P.append(I(t)), 0, 24); P.append(I("s_setpc_b64 %s" % s(sRET, 2)))
    return ["L_centre:"] + finalize(P)[0]
def fold4(x, p, q):
    x("v_permlane16_swap_b32 v%d, v%d" % (p, q)); x("v_add_f32 v%d, v%d, v%d" % (p, p, q))
    x("v_mov_b32 v%d, v%d" % (q, p)); x("v_permlane32_swap_b32 v%d, v%d" % (p, q)); x("v_add_f32 v%d, v%d, v%d" % (p, p, q))

def compute(ty):
    P = compute_setup(ty); a = lambda t, tag=None: P.append(I(t, tag))
    cut_ = P.index("cut"); late_su = P[cut_ + 1:]; del P[cut_:]
    if not CFG["defer"] & 4: P += late_su; late_su = []
    CH = checks(ty)
    ops = []; queue = []
    sl = slabs_of(ty); gu_seen = 0; ex_seen = 0
    firstuse = {}; epi = []; late_w = []
    def pair(acc, fa, fb2, zero):
        return ["%s %s, %s, %s, %s" % (MM, v(acc + 4 * h, 4), v(fa, 4), v(fb2 + 4 * h, 4), "0" if zero else v(acc + 4 * h, 4)) for h in range(2)]
    for n, (pi, kind, sg) in enumerate(sl):
        e, tiles = PH[ty][pi][1:]
        order = tiles if sg == 0 else sorted(tiles)
        nk = 2 if kind == "P4" else 4
        last = sg == (7 if kind == "P4" else 3)
        jn = CFG["join"] if kind == "P4" else 1
        if sg > 7 - jn and not last: continue
        for t in order:
            if sg == 0: firstuse[(pi, t)] = len(ops)
            for back in (range(jn - 1, -1, -1) if last else (0,)):
                slot = slot_of(n - back); win = slot >> 2; base = (slot & 3) * SLOT
                for u in range(nk):
                    for mat in range(2):
                        m = len(ops); fb = WF + 4 * (m & 7)
                        if kind == "P4": ar, off, dq = 2 + 4 * win + t, base + u * 8192 + mat * 1024, 512
                        else: ar, off, dq = 10 + 2 * win + (t & 1), base + u * 4096 + mat * 1024, 256
                        ops.append(dict(slab=n - back, reads=[("ds_read_b64_tr_b16 %s, v%d offset:%d" % (v(fb, 2), ar, off), ("f", m)),
                                                              ("ds_read_b64_tr_b16 %s, v%d offset:%d" % (v(fb + 2, 2), ar, off + dq), ("f", m))],
                                        la=CFG["LA"], mfma=pair(ACC + 16 * t + 8 * mat, fb, XR + 8 * ((sg - back) * nk + u), sg == 0 and u == 0)))
            if last:
                A = ACC + 16 * t; E = []; hold = [t]
                if e == "gu":
                    D = ACC + 16 * (t & ~1) + 8; hold = [t, t & ~1]
                    for j in range(8): E.append(I("v_mul_f32 v%d, v%d, v%d" % (A + j, A + j, A + j + 8)))
                    for j in range(4):
                        E.append(I("v_cvt_pk_bf16_f32 v%d, v%d, v%d" % (D + 4 * (j >> 1) + 2 * (t & 1) + (j & 1), A + 2 * j, A + 2 * j + 1)))
                        if t & 1 and j & 1:
                            E.append(I("buffer_store_dwordx4 %s, v14, %s, s%d offen offset:%d %s" % (v(D + 4 * (j >> 1), 4), srd(SWS), sKS + gu_seen, ((t - 1 if kind == "P4" else 0) + (j >> 1)) * 1024, CFG["hfl"]), ("h", gu_seen)))
                else:
                    for j in range(4):
                        for k in range(2): E.append(I("v_cvt_pk_bf16_f32 v%d, v%d, v%d" % (A + 4 * j + k, A + 4 * j + 2 * k, A + 4 * j + 2 * k + 1)))
                        E.append(I("ds_write_b64 v15, %s offset:%d" % (v(A + 4 * j, 2), ((t & 1) + 2 * (e == "q")) * 2048 + (j >> 1) * 1024 + (j & 1) * 256)))
                    if t == order[-1]:
                        g = []; one_lane(g, "ds_add_u32 v%d, v%d offset:%d" % (C_FL, C_ONE, F_EX + 4 * ex_seen)); E.append(g); ex_seen += 1
                if CFG["nods"]: E = [x_ for x_ in E if not (isinstance(x_, I) and x_.t.startswith("ds_write"))]
                if CFG["nost"]: E = [(M(x_.tag) if isinstance(x_, I) and x_.t.startswith("buffer_store") else x_) for x_ in E]
                if CFG["stspread"] and e == "gu" and t & 1:
                    st_ = [x_ for x_ in E if isinstance(x_, I) and x_.t.startswith("buffer_store")]
                    nst = 4 if kind == "P4" else 2; endp = (len(ops) + 15) // 16 * 16
                    for q_, x_ in enumerate(st_):
                        idx = (t - 1 if kind == "P4" else 0) + q_
                        if idx < nst - 1: E.remove(x_); epi.append((endp + 4 - (nst - 1 - idx) * CFG["stspread"], 99, [], [x_]))
                if CFG["wrat"] >= 0 and e != "gu":
                    wr = [x_ for x_ in E if not (isinstance(x_, I) and x_.t.startswith("v_"))]
                    E = [x_ for x_ in E if x_ not in wr]
                    late_w.append(((len(ops) + 15) // 16 * 16 + CFG["wrat"], pi, hold, [sum([x_ if isinstance(x_, list) else [x_] for x_ in wr], [])]))
                if e == "gu" and t == 1 and jn > 1: late_w.append((len(ops) + CFG["st2"], pi, hold, [E.pop()]))
                epi.append((len(ops), pi, hold, E))
        if last and e == "gu":
            kind_ = (C_H1B if ty else C_H1A) if gu_seen == 0 else C_H2
            g1 = [W(vm=[("h", gu_seen)])]; one_lane(g1, "buffer_atomic_add v%d, v%d, %s, 0 offen offset:%d sc1" % (C_ONE, C_CM, srd(SWS), kind_ * 128))
            epi.append((len(ops) + 6 + CFG["hwait1" if gu_seen == 0 else "hwait2"], 99, [], [g1]))
            gu_seen += 1
    n1 = len(ops)
    for e_ in CFG["stops%d" % ty]:
        for k in range(CFG["LA"]): ops[e_ + 1 + k]["la"] = k + 1
    HB = XR; RES = XR + 32; R2 = XR + 40
    Y, S_ = XR + 48, XR + 64
    for n in range(20, 56):
        (sb_, hb_), (sa_, ha_) = LOC[(n, "B")], LOC[(n, "A")]
        win = sb_ >> 2; base = (sb_ & 3) * SLOT + hb_ * 2048; wina = sa_ >> 2; basea = (sa_ & 3) * SLOT + ha_ * 2048
        for kk in range(4):
            u, nb = kk >> 1, kk & 1
            m = len(ops); fb = WF + 4 * (m & 7); hb = HB + 8 * ((m >> 1) & 3); br = (2 if nb else C_B2) + win
            blk = (lambda q: 2 * u + q) if n < 48 else (lambda q: u + 2 * q)
            rd = [("ds_read_b64_tr_b16 %s, v%d offset:%d" % (v(fb + 2 * q, 2), br, base + blk(q) * 4096), ("f", m)) for q in range(2)]
            if not nb: rd += [("ds_read_b128 %s, v%d offset:%d" % (v(hb + 4 * h, 4), C_A2 + wina, basea + u * 4096 + h * 1024), ("f", m)) for h in range(2)]
            ops.append(dict(slab=n, reads=rd, la=kk + 1 if n == 20 or (n == 48 and CFG["silu0"]) else 4, mfma=pair((Y if n < 48 else S_) + 8 * nb, fb, hb, n in (20, 48) and u == 0)))
    for k in range(3): queue.append((n1 - 3, n1 - 1, I("v_xor_b32 v%d, 32, v%d" % (2 + k, C_B2 + k))))
    X = []; x = lambda t: X.append(I(t)); r = N_R
    fold4(x, r, r + 1)
    x("v_mul_f32 v%d, 0x3b000000, v%d" % (r, r)); x("v_fma_f32 v%d, -v%d, v%d, v%d" % (r, N_DL, N_DL, r)); x("v_max_f32 v%d, 0, v%d" % (r, r))
    def rnd(): x("v_cvt_pk_bf16_f32 v%d, v%d, v%d" % (r + 1, r, r)); x("v_and_b32 v%d, 0xffff0000, v%d" % (r, r + 1))
    rnd(); x("v_add_f32 v%d, 0x3727c5ac, v%d" % (r, r)); rnd(); x("v_sqrt_f32 v%d, v%d" % (r, r)); rnd()
    x("v_rcp_f32 v%d, v%d" % (r, r))
    x("v_lshl_add_u32 v%d, v%d, 1, v%d" % (r + 2, N_TK, C_FL)); x("v_lshl_add_u32 v%d, v%d, 2, v%d" % (r + 3, N_TK, C_FL))
    x("ds_write_b16 v%d, v%d offset:%d" % (r + 2, r + 1, LSD - FL)); x("ds_write_b32 v%d, v%d offset:%d" % (r + 3, r, LRS - FL))
    for j, it in enumerate(X[:-2]): queue.append((12 + j, 50, it))
    for it in X[-2:]:
        if not CFG["nods"]: queue.append((CFG["rsat"], 67, it))
    if ty == 0:
        g = []
        only(g, ["s_cmp_lg_u32 s%d, 0" % sGR], [I("s_lshl_b32 s%d, s%d, 9" % (sT4, sI)), I("s_add_u32 s%d, s%d, %d" % (sT4, sT4, WS_RS - FL)), I("s_mov_b32 exec_hi, 0"),
                                               I("buffer_store_dword v%d, v%d, %s, s%d offen sc1" % (r, r + 3, srd(SWS), sT4)), I("s_mov_b64 exec, -1")])
        queue.append((46, 60, g))
    queue.append((94, 96, I("ds_read_b32 v%d, v%d offset:%d" % (C_HC, C_FL, F_INIT), "init")))
    g = []; gate(g, C_DV, SDBG, 0, "init", C_HC, 1, slow=[I("v_mov_b32 v%d, 0" % C_DV)]); queue.append((100, 102, g))
    for e0, pi, hold, E in epi + late_w:
        dl = min([x_ for (p2, t2), x_ in firstuse.items() if p2 > pi and t2 in hold] + [10 ** 9]) - 1
        for it in E: queue.append((e0, dl, it))
    G = XR + 80; XF = XR + 96; E = []
    for j in range(4): E.append(I("ds_read_b64 %s, v17 offset:%d" % (v(RES + 2 * j, 2), LX + (j >> 1) * 32 + (j & 1) * 2048), "res"))
    for h in range(2): E.append(I("ds_read_b32 v%d, v%d offset:%d" % (R2 + h, C_RO, LR2 + 64 * h), "res"))
    for j, it in enumerate(E): queue.append((n1 + 21 * 4 + j, 10 ** 9, it))
    E = [W(lg=["res"])]
    for h in range(2): E.append(I("v_mul_f32 v%d, v%d, v%d" % (R2 + h, R2 + h, R2 + h)))
    for h in range(2): E.append(I("v_mul_f32 v%d, s%d, v%d" % (R2 + 2 + h, sL2E, R2 + h)))
    for j in range(8):
        E.append(I("v_lshlrev_b32 v%d, 16, v%d" % (XF + 2 * j, RES + j))); E.append(I("v_and_b32 v%d, 0xffff0000, v%d" % (XF + 2 * j + 1, RES + j)))
    for it in E: queue.append((n1 + 24 * 4, 10 ** 9, it))
    E = []
    for j in range(16): E.append(I("v_mul_f32 v%d, v%d, v%d" % (G + j, R2 + 2 + ((j >> 2) & 1), Y + j)))
    for j in range(16): E.append(I("v_exp_f32 v%d, -v%d" % (G + j, G + j)))
    for j in range(16): E.append(I("v_mul_f32 v%d, v%d, v%d" % (Y + j, R2 + ((j >> 2) & 1), Y + j)))
    for j in range(16): E.append(I("v_add_f32 v%d, 1.0, v%d" % (G + j, G + j)))
    for j in range(16): E.append(I("v_rcp_f32 v%d, v%d" % (G + j, G + j)))
    for j in range(16): E.append(I("v_mul_f32 v%d, v%d, v%d" % (G + j, G + j, Y + j)))
    for it in E: queue.append((n1 + 28 * 4 + 1, 10 ** 9, it))
    queue.sort(key=lambda x_: x_[0])
    first = {}
    lastop = {}
    for m, o in enumerate(ops): first.setdefault(o["slab"], m); lastop[o["slab"]] = m
    fread = {first[n] - ops[first[n]]["la"] - (CFG["LAF"] if n <= 20 else 3): n for n in CH if n}
    lastdone = max(prev_user(n) for n in range(56))
    def done(n):
        a("v_mov_b32 v%d, %d" % (C_DV, 4 * (n + 1))); a("global_load_lds_dword v%d, %s" % (C_DV, s(sTB, 2)))
    issued = 0; cur = -1
    def issue_reads(upto_fn):
        nonlocal issued, cur
        while issued < len(ops) and upto_fn(issued):
            o = ops[issued]
            if o["slab"] > cur:
                cur = o["slab"]
                if cur in CH and not (CFG["nocheck"] and cur >= 20):
                    lb = newlbl()
                    if cur >= CFG["inl"] or cur < 2:
                        a("s_cbranch_vccz L_cb%d" % lb)
                        raw(P, [I("s_movk_i32 s%d, %d" % (sSPIN + 1, CH[cur] + 1)), I("s_call_b64 %s, L_spin_c" % s(sRET, 2))]); P.append(L("L_cb%d:" % lb))
                    else:
                        a("s_cbranch_vccnz L_cs%d" % lb); P.append(L("L_cb%d:" % lb))
                        STUBS.extend(["L_cs%d:" % lb, "    s_movk_i32 s%d, %d" % (sSPIN + 1, CH[cur] + 1),
                                  "    s_call_b64 %s, L_spin_c" % s(sRET, 2), "    s_branch L_cb%d" % lb])
            for t, tag in o["reads"]: a(t, tag)
            issued += 1
    def cstamp(k):
        r = sPH + 2 * (k & 1)
        if k > 2:
            a("s_sub_u32 s%d, s%d, s%d" % (r, r, sTM)); a("v_writelane_b32 v19, s%d, %d" % (r, k - 2))
        P.append(L("    s_memtime %s" % s(r, 2)))
    SM = ACC
    if CFG["spinwarm"]: a("s_mov_b32 s%d, 0" % (sSPIN + 1)); a("s_call_b64 %s, L_spin_c" % s(sRET, 2))
    if CFG["x23"]: xline(a, 2); xline(a, 3)
    for j in range(4):
        if CFG["x23"] and j == 1: P.append(W(vm="all"))
        a("s_barrier")
        for k in range(8 * j, 8 * j + 8):
            a("ds_read_b128 %s, v%d offset:%d" % (v(XR + 4 * k, 4), C_XA + ((k >> 1) & 1) + 2 * (k >> 4), ((k >> 2) & 3) * 16384 + (k & 1) * 2048), ("xn", k))
        for k in range(8 * j, 8 * j + 8, 2):
            P.append(W(lg=[("xn", k + 1)]))
            if k == 30: a("s_barrier")
            for h in range(2):
                for sq in range(2):
                    for t in range(2):
                        xx = v(XR + 4 * (k + t) + 2 * h, 2); c = v((N_SQ if sq else SM) + 4 * t, 4)
                        a("v_mfma_f32_4x4x4_16b_bf16 %s, %s, %s, %s" % (c, xx if sq else v(N_ONES, 2), xx, "0" if (k, h) == (0, 0) else c))
        if j < 3: P += late_su[j * len(late_su) // 3:(j + 1) * len(late_su) // 3]
    a("s_waitcnt vmcnt(0)")
    fold4(a, SM, SM + 4)
    a("v_mul_f32 v%d, 0xbb000000, v%d" % (N_DL, SM))
    a("v_cvt_pk_bf16_f32 v%d, v%d, v%d" % (SM, N_DL, N_DL)); a("v_mov_b32 v%d, v%d" % (SM + 1, SM)); a("v_permlane16_swap_b32 v%d, v%d" % (SM, SM + 1))
    for j in range(8): a("v_and_b32 v%d, 0xffff0000, v%d" % (N_CM + j, SM + (j >> 2)))
    if CFG["stamps"]: a("v_mov_b32 v19, 0"); stamp_to(P, 59, 19)
    c0 = CFG["cen0"]
    if c0 == 32 and not CFG["ceninl"]: a("s_nop 1"); a("s_call_b64 %s, L_centre" % s(sRET, 2))
    elif c0 > 8: centre(a, 0, c0 - 8)
    stamp_to(P, 60, 19)
    a("ds_read_b32 v%d, v18" % C_FV, ("fl", 0))
    for j in range(3):
        for h in range(2): a("v_cndmask_b32 v%d, v%d, v%d, %s" % (N_R + h, N_R + h if j else N_SQ + 4 * h, N_SQ + 4 * h + j + 1, s(sMK + 2 * j, 2)))
    centre(a, c0 - 8, c0 - 4)
    P.append(W(lg=[("fl", 0)])); a("v_cmp_ge_u32 vcc, 0, v%d" % C_FV)
    issue_reads(lambda m: m < CFG["LA"])
    centre(a, c0 - 4, c0)
    stamp_to(P, 61, 19)
    qi = 0
    for m, o in enumerate(ops):
        if m % 23 == 22 and m > 44: jit(P, 31, 7)
        w2 = CFG["wait2"] and m < n1
        if not w2: P.append(W(lg=[("f", m)]))
        elif m % 2 == 0: P.append(W(lg=[("f", m + 1)]))
        a(o["mfma"][0]); at = len(P)
        stop = m == n1 - 1 or (m == n1 + 111 and CFG["silu0"]) or m in CFG["stops%d" % ty]
        if stop: a(o["mfma"][1])
        if m == lastop[o["slab"]] and o["slab"] <= lastdone + 1 and marked(o["slab"]): done(o["slab"])
        LP = [0, 64, 192, n1 - 1, n1 + 32, n1 + 112]
        if CFG["light"] and m in LP:
            P.append(L("    s_memtime %s" % s(12 + 4 * LP.index(m), 2))); P.append(L("    s_memrealtime %s" % s(14 + 4 * LP.index(m), 2)))
        if CFG["probe"] and m == CFG["probeat"]: P.append(L("    s_memrealtime s[6:7]"))
        if stop:
            while qi < len(queue) - (CFG["silu0"] - 1 if m > n1 else 0) and queue[qi][0] <= m + (2 if m >= n1 - 1 else 5):
                it = queue[qi][2]; P += it if isinstance(it, list) else [it]; qi += 1
            nn = ops[m + 1]["slab"]
            a("ds_read_b32 v%d, v18" % C_FV, ("fl2", nn)); P.append(W(lg=[("fl2", nn)])); a("v_cmp_ge_u32 vcc, %d, v%d" % (CH[nn], C_FV))
        issue_reads(lambda k: k - ops[k]["la"] <= m)
        for n in range(1, 56):
            d = m - (first[n] - ops[first[n]]["la"])
            if d == -1 and n in CH:
                P.append(W(lg=[("fl", n)])); a("v_cmp_ge_u32 vcc, %d, v%d" % (CH[n], C_FV))
            if d == (2 if n <= 20 else 0) and CFG["stamps"] and not CFG["zoom"]: cstamp(n)
            if CFG["zoom"] and m == CFG["zoom"] + n * CFG["zstep"]: cstamp(n)
        if m in fread: a("ds_read_b32 v%d, v18" % C_FV, ("fl", fread[m]))
        rate = CFG["erate"] if m < n1 else 5
        cnt = 0
        while qi < len(queue) and queue[qi][0] <= m and cnt < rate:
            assert m <= queue[qi][1], ("filler past its deadline", ty, m, queue[qi][1])
            it = queue[qi][2]
            if isinstance(it, list): P += it; cnt += 2
            else: P.append(it)
            qi += 1; cnt += 1
        if not stop:
            mid = P[at:]; k = 0
            while k < (len(mid) + 1) // 2 and isinstance(mid[k], I) and not mid[k].t.startswith("s_"): k += 1
            P.insert(at + k, I(o["mfma"][1]))
        if m % 16 == CFG["cenat"] and c0 + m // 16 * 8 < 32: centre(a, c0 + m // 16 * 8, c0 + m // 16 * 8 + 8)
    assert qi == len(queue)
    for j in range(16): a("v_fma_f32 v%d, v%d, v%d, v%d" % (G + j, S_ + j, G + j, XF + j))
    for j in range(8): a("v_cvt_pk_bf16_f32 v%d, v%d, v%d" % (XF + 4 * ((j >> 1) & 1) + 2 * (j >> 2) + (j & 1), G + 2 * j, G + 2 * j + 1))
    for h in range(2):
        for i in range(2): a("v_permlane16_swap_b32 v%d, v%d" % (XF + 4 * h + i, XF + 4 * h + 2 + i))
    if CFG["probe"]:
        lb = newlbl()
        if CFG["probeat"] < 0: a("s_memrealtime s[6:7]")
        P.append(W(lg="all")); a("s_sub_u32 s6, s6, s4")
        a("s_cmp_le_u32 s6, %d" % CFG["probe"]); a("s_cbranch_scc1 L_xp%d" % lb)
        for _ in range(6): a("s_sleep 127")
        P.append(L("L_xp%d:" % lb))
    a("s_movk_i32 s%d, 16384" % sT0)
    a("buffer_store_dwordx4 %s, v%d, %s, 0 offen%s" % (v(XF, 4), C_OUT, srd(SOUT), CFG["outfl"]))
    a("buffer_store_dwordx4 %s, v%d, %s, s%d offen%s" % (v(XF + 4, 4), C_OUT, srd(SOUT), sT0, CFG["outfl"]))
    if CFG["light"]:
        a("s_waitcnt vmcnt(0)"); a("s_memtime s[84:85]"); a("s_memrealtime s[86:87]"); P.append(W(lg="all")); a("v_mov_b32 v19, 0")
        for j, r_ in enumerate([sTM, 4] + list(range(12, 36, 2)) + [84, 86]): a("v_writelane_b32 v19, s%d, %d" % (r_, j))
        a("s_lshl_b32 s%d, s2, 10" % sT0); a("s_lshl_b32 s%d, s%d, 8" % (sT1, sW)); a("s_add_u32 s%d, s%d, s%d" % (sT0, sT0, sT1)); a("s_add_u32 s%d, s%d, %d" % (sT0, sT0, WS_ST))
        a("v_lshlrev_b32 v18, 2, v1"); a("buffer_store_dword v19, v18, %s, s%d offen" % (srd(SWS), sT0))
    if CFG["stamps"]:
        one_lane(P, "ds_add_u32 v%d, v%d offset:%d" % (C_FL, C_ONE, F_END))
        cstamp(56); cstamp(57); P.append(W(lg="all")); cstamp(58)
        a("s_lshl_b32 s%d, s2, 8" % sT0); a("s_add_u32 s%d, s%d, %d" % (sT0, sT0, WS_ST + 0x20000))
        a("v_lshlrev_b32 v18, 2, v1")
        a("s_cmp_lg_u32 s%d, %d" % (sW, CFG["stampw"])); a("s_cbranch_scc1 L_exit")
        a("buffer_store_dword v19, v18, %s, s%d offen" % (srd(SWS), sT0))
    a("s_endpgm")
    return P

D_P = 32
D_A, D_B, D_B2, D_TAB, D_FL, D_LA, D_ONE, D_ZERO, D_CC, D_POLL, D_LV = range(2, 13)
D_AT, D_POLL2, D_X, D_R, D_M = 13, 14, 15, 16, 18
D_SW = 26
D_DV = 28
D_TCH = 20
def phase_info(ty):
    return [(kind, 3584, SG, SU) if e == "gu" else (kind, 3072, SQKV, SQKV) for kind, e, _ in PH[ty]]
def dma_setup(ty):
    P = []; b = lambda t, tag=None: P.append(I(t, tag))
    t0, t1, t2, t3, u0, u1, u2 = range(64, 71)
    b("v_mov_b32 v%d, 0" % D_ZERO); b("v_mov_b32 v%d, 0" % D_TAB)
    b("v_mov_b32 v%d, 1" % D_ONE); b("v_mov_b32 v%d, %d" % (D_FL, FL))
    b("v_and_b32 v%d, 3, v1" % D_LA); b("v_lshlrev_b32 v%d, 8, v%d" % (D_LA, D_LA)); b("v_add_u32 v%d, %d, v%d" % (D_LA, FL + F_DONE, D_LA))
    b("s_lshl_b32 s%d, s%d, 8" % (sLM, sW1)); b("s_add_u32 s%d, s%d, %d" % (sLM, sLM, FL + F_LAND))
    b("s_lshl_b32 s%d, s%d, 9" % (sCC, sTT))
    if CFG["lead"] or not CFG["spoll"]: b("v_mov_b32 v%d, s%d" % (D_CC, sCC))
    P.append("cut")
    b("s_lshl_b32 s%d, s%d, 1" % (sT0, sTT)); b("s_add_u32 s%d, s%d, s%d" % (sT0, sT0, sW1))
    b("s_mul_i32 s%d, s%d, 147456" % (sT0, sT0)); b("s_add_u32 s%d, s%d, %d" % (sT0, sT0, WS_HO - 2048))
    if CFG["fakeA"]: b("s_lshr_b32 s%d, s%d, 3" % (sT0, sI)); b("s_lshl_b32 s%d, s%d, 20" % (sT0, sT0)); b("s_lshl_b32 s%d, s%d, 18" % (sT1, sW1)); b("s_add_u32 s%d, s%d, s%d" % (sT0, sT0, sT1))
    b("v_lshlrev_b32 v%d, 4, v1" % u0); b("v_add_u32 v%d, s%d, v%d" % (D_A, sT0, u0))
    if CFG["lead"]: b("v_lshlrev_b32 v%d, 7, v1" % u0); b("v_add_u32 v%d, s%d, v%d" % (D_AT, sT0, u0))
    b("v_lshrrev_b32 v%d, 3, v1" % u0); b("v_and_b32 v%d, 6, v%d" % (u1, u0))
    b("v_and_b32 v%d, 7, v1" % u2); b("v_xor_b32 v%d, v%d, v%d" % (u2, u2, u1))
    b("v_lshlrev_b32 v%d, 10, v%d" % (u0, u0)); b("v_lshl_add_u32 v%d, v%d, 4, v%d" % (D_B, u2, u0))
    b("s_lshl_b32 s%d, s%d, 15" % (sT0, sW1)); b("s_lshl_b32 s%d, s%d, 7" % (sT1, sCT)); b("s_add_u32 s%d, s%d, s%d" % (sT0, sT0, sT1))
    b("v_add_u32 v%d, s%d, v%d" % (D_B, sT0, D_B)); b("v_add_u32 v%d, %d, v%d" % (D_B2, 8192 - 1024, D_B))
    b("v_lshrrev_b32 v%d, 3, v1" % u0); b("v_lshlrev_b32 v%d, 10, v%d" % (u0, u0)); b("v_and_b32 v%d, 7, v1" % u2); b("v_lshl_add_u32 v%d, v%d, 4, v%d" % (D_X, u2, u0))
    b("s_lshl_b32 s%d, s%d, 16" % (sT1, sTT)); b("s_add_u32 s%d, s%d, s%d" % (sT0, sT0, sT1)); b("v_add_u32 v%d, s%d, v%d" % (D_X, sT0, D_X))
    b("s_lshl_b32 s%d, s%d, 8" % (sT1, sTT)); b("s_add_u32 s%d, s%d, %d" % (sT1, sT1, WS_RS)); b("v_lshlrev_b32 v%d, 2, v1" % D_R); b("v_add_u32 v%d, s%d, v%d" % (D_R, sT1, D_R))
    P.append("cut")
    fcols(b, ty)
    gu = 0
    for pi, (kind, e, _) in enumerate(PH[ty]):
        stride = 3584 if e == "gu" else 3072
        (p4_voffs if kind == "P4" else p2_voffs)(b, u0, u1, stride, t0)
        if e == "gu": b("s_lshl_b32 s%d, s%d, 1" % (sT1, sKS + gu)); db = 0; gu += 1
        elif e == "kv": b("s_mov_b32 s%d, s%d" % (sT1, sKC)); db = 1024
        else: b("s_lshl_b32 s%d, s%d, 7" % (sT1, sGR)); db = 64
        step = (8 if kind == "P4" else 16) * stride
        b("v_add_u32 v%d, s%d, v%d" % (u0, sT1, u0)); b("v_add_u32 v%d, s%d, v%d" % (u1, sT1, u1))
        for p in range(4):
            b("v_add_u32 v%d, %d, v%d" % (D_P + 4 * pi + p, 4096 + (p >> 1) * step - p * 1024 + (db if p & 1 else 0), u1 if p & 2 else u0))
    b("s_lshl_b32 s%d, s%d, 13" % (sLA, sW1))
    if CFG["stage"]: b("v_lshlrev_b32 v%d, 4, v1" % D_SW); b("v_add_u32 v%d, s%d, v%d" % (D_SW, sLA, D_SW))
    P.append("cut")
    nr = 32 if CFG["map"] == 84 else 64
    used = " ".join(CFG["tplan%d" % ty].values()).split()
    if set(used) & {"q", "g0", "g1"}:
        b("s_lshl_b32 s%d, s%d, 6" % (sT0, sXR)); b("s_mul_i32 s%d, s%d, %d" % (sT1, sW1, nr)); b("s_add_u32 s%d, s%d, s%d" % (sT0, sT0, sT1))
        b("v_add_u32 v%d, s%d, v1" % (t2, sT0)); b("v_mul_u32_u24 v%d, 3072, v%d" % (D_TCH + 3, t2)); b("v_mul_u32_u24 v%d, 3584, v%d" % (D_TCH + 2, t2))
        b("s_lshl_b32 s%d, s%d, 7" % (sT0, sGR)); b("s_add_u32 s%d, s%d, 4096" % (sT0, sT0)); b("v_add_u32 v%d, s%d, v%d" % (D_TCH + 3, sT0, D_TCH + 3))
        b("v_add_u32 v%d, 4096, v%d" % (D_TCH + 2, D_TCH + 2))
        b("s_lshl_b32 s%d, s%d, 1" % (sKS, sKS)); b("s_lshl_b32 s%d, s%d, 1" % (sKS + 1, sKS + 1))
    b("s_lshl_b32 s%d, s%d, 1" % (sT0, sSH)); b("s_add_u32 s%d, s%d, s%d" % (sT0, sT0, sW1))
    if CFG["map2"] == 48: b("v_lshlrev_b32 v%d, 7, v1" % t2)
    else:
        b("v_lshrrev_b32 v%d, 2, v1" % t2); b("v_lshlrev_b32 v%d, 10, v%d" % (t2, t2)); b("v_and_b32 v%d, 3, v1" % t3); b("v_lshl_add_u32 v%d, v%d, 7, v%d" % (t2, t3, t2))
        b("s_and_b32 s%d, s%d, 4" % (sT1, sCT)); b("s_lshl_b32 s%d, s%d, 7" % (sT1, sT1)); b("v_add_u32 v%d, s%d, v%d" % (t2, sT1, t2))
    k2 = 2 if CFG["aonly"] else 1
    b("s_mul_i32 s%d, s%d, %d" % (sT1, sT0, 28 * 1024 * k2)); b("v_add_u32 v%d, s%d, v%d" % (D_TCH, sT1, t2))
    b("s_mul_i32 s%d, s%d, %d" % (sT1, sT0, 8192 * k2)); b("v_add_u32 v%d, s%d, v%d" % (D_TCH + 1, sT1, t2))
    if "m" in used:
        b("s_lshl_b32 s%d, s2, 1" % sT0); b("s_add_u32 s%d, s%d, s%d" % (sT0, sT0, sW1)); b("s_mul_i32 s%d, s%d, %d" % (sT1, sT0, 28 * 128))
        b("v_lshlrev_b32 v%d, 7, v1" % t2); b("v_add_u32 v%d, s%d, v%d" % (D_M, sT1, t2)); b("s_lshl_b32 s%d, s%d, 10" % (sT1, sT0)); b("v_add_u32 v%d, s%d, v%d" % (D_M + 1, sT1, t2))
    P.append("cut")
    def seg(lo, items):
        for t in items: b(t)
        b("v_cmp_le_u32 vcc, %d, v1" % lo); b("v_cndmask_b32 v%d, v%d, v%d, vcc" % (D_TAB, D_TAB, t1))
    b("s_add_u32 s%d, s%d, s%d" % (sT0, sR1, sW1))
    n0 = 0
    for pi, (kind, e, _) in enumerate(PH[ty]):
        stride = 3584 if e == "gu" else 3072
        if kind == "P4":
            seg(n0, ["v_add_u32 v%d, s%d, v1" % (t1, sR1), "v_add_u32 v%d, %d, v%d" % (t1, (-n0) & 7, t1), "v_and_b32 v%d, 7, v%d" % (t1, t1),
                     "v_lshlrev_b32 v%d, 1, v%d" % (t1, t1), "v_add_u32 v%d, s%d, v%d" % (t1, sW1, t1), "v_mul_u32_u24 v%d, %d, v%d" % (t1, 32 * stride, t1)]); n0 += 8
        else:
            seg(n0, ["v_lshlrev_b32 v%d, 1, v1" % t1, "v_add_u32 v%d, s%d, v%d" % (t1, sT0, t1), "v_and_b32 v%d, 7, v%d" % (t1, t1),
                     "v_mul_u32_u24 v%d, %d, v%d" % (t1, 64 * stride, t1)]); n0 += 4
    P.append("cut")
    b("v_add_u32 v%d, s%d, v1" % (t0, sR2)); b("v_and_b32 v%d, 7, v%d" % (t2, t0))
    seg(20, ["v_lshlrev_b32 v%d, 13, v%d" % (t1, t2)])
    seg(28, ["v_lshrrev_b32 v%d, 1, v%d" % (t3, t2), "v_lshlrev_b32 v%d, 1, v%d" % (t1, t2), "v_sub_u32 v%d, v%d, v%d" % (t1, t1, t3),
             "v_add_u32 v%d, 16, v%d" % (t1, t1), "v_lshlrev_b32 v%d, 12, v%d" % (t1, t1)])
    seg(36, ["v_lshlrev_b32 v%d, 13, v%d" % (t1, t2), "v_add_u32 v%d, 4096, v%d" % (t1, t1)])
    seg(44, ["v_and_b32 v%d, 3, v%d" % (t1, t0), "v_mul_u32_u24 v%d, 3, v%d" % (t1, t1), "v_add_u32 v%d, 17, v%d" % (t1, t1), "v_lshlrev_b32 v%d, 12, v%d" % (t1, t1)])
    seg(48, ["v_lshlrev_b32 v%d, 12, v%d" % (t1, t2)])
    return P

def dma_wave(ty):
    pieces = [[]]
    for it in dma_setup(ty):
        if it == "cut": pieces.append([])
        else: pieces[-1].append(it)
    late_su = pieces[1] + pieces[3] + pieces[5]
    P = [M(("x", 1))] + pieces[0] + pieces[2] + pieces[4] + ([] if CFG["defer"] & 2 else late_su); a = lambda t, tag=None: P.append(I(t, tag))
    stamp = lambda k: stamp_to(P, k)
    stamp_to(P, 1, H_STAMP2)
    NB = CFG["nb%d" % ty]; CH = checks(ty)
    sl = slabs_of(ty); info = phase_info(ty)
    def look(n):
        if n < 56: a("v_readlane_b32 s%d, v%d, %d" % (sPH + 2 * (n & 1), D_TAB, n))
    def part(n, which, nxt):
        so = sPH + 2 * (n & 1); cap = CFG["cap2"]; wb = srd(SWD if n < 48 else SWO)
        if which == "B": a("s_lshl_b32 s%d, s%d, 4" % (so, so))
        elif n == 48: a("v_add_u32 v%d, %d, v%d" % (D_A, 28 * 4096, D_A))
        for h in range(2):
            at = LOC[(n, which)][0] * SLOT + LOC[(n, which)][1] * 2048 - (2048 if which == "A" else 0) + h * 4096
            assert at >= 0
            a("s_add_u32 m0, s%d, %d" % (sLA, at))
            if h: a("s_add_u32 s%d, s%d, %d" % (so, so, 16384 if which == "B" else 2048))
            elif (nxt ^ n) & 1: look(nxt)
            room(16, cap)
            if which == "B":
                vm("buffer_load_dwordx4 v%d, %s, s%d offen lds" % (D_B, wb, so), 8)
                vm("buffer_load_dwordx4 v%d, %s, s%d offen offset:1024 lds" % (D_B2, wb, so), 8)
            else:
                vm("buffer_load_dwordx4 v%d, %s, s%d offen offset:2048 sc1 lds" % (D_A, srd(SX if CFG["fakeA"] else SWS), so), 8, ("slab", n))
                vm("buffer_load_dwordx4 v%d, %s, s%d offen offset:3072 sc1 lds" % (D_A, srd(SX if CFG["fakeA"] else SWS), so), 8, ("slab", n))
        if not (nxt ^ n) & 1: look(nxt)
    hist = []
    def room(w, cap):
        tot = w; k = 0
        while k < len(hist) and tot + hist[-1 - k] <= cap: tot += hist[-1 - k]; k += 1
        if k < len(hist): a("s_waitcnt vmcnt(%d)" % min(k, 63))
    def vm(t, w, tag=None): a(t, tag); hist.append(w)
    def dma(n):
        so = sPH + 2 * (n & 1); cap = CFG["cap1"] if n < CFG["capsw"] else CFG["cap2"]
        if n in CFG["soft%d" % ty]: cap = CFG["capsoft"]
        for h in range(2):
            assert n < 20 or n >= 20 + NPK
            a("s_add_u32 m0, s%d, %d" % (sLA, (slot_of(n) if n < 20 else LOC[(n, "B")][0]) * SLOT + h * 4096))
            if n < 20:
                pi, kind, sg = sl[n]; _, stride, sa, sb = info[pi]
                w = 16 if (kind == "P2" and PH[ty][pi][1] != "q") else 8
                if h: a("s_add_u32 s%d, s%d, %d" % (so, so, (16 if kind == "P4" else 32) * stride))
                else: look(n + 1)
                for p in range(4):
                    if p % 2 == 0: room(2 * w, cap)
                    vm("buffer_load_dwordx4 v%d, %s, s%d offen offset:%d lds" % (D_P + 4 * pi + p, srd(sb if p & 1 else sa), so, p * 1024), w, ("slab", n))
            else:
                if h: a("s_add_u32 s%d, s%d, 2048" % (so, so)); a("s_add_u32 s%d, s%d, 16384" % (so + 1, so + 1))
                else:
                    a("s_lshl_b32 s%d, s%d, 4" % (so + 1, so)); look(n + 1)
                    if n == 48: a("v_add_u32 v%d, %d, v%d" % (D_A, 28 * 4096, D_A))
                wb = srd(SWD if n < 48 else SWO)
                room(16, cap)
                vm("buffer_load_dwordx4 v%d, %s, s%d offen lds" % (D_B, wb, so + 1), 8, ("slab", n))
                vm("buffer_load_dwordx4 v%d, %s, s%d offen offset:1024 lds" % (D_B2, wb, so + 1), 8, ("slab", n))
                room(16, cap)
                vm("buffer_load_dwordx4 v%d, %s, s%d offen offset:2048 sc1 lds" % (D_A, srd(SX if CFG["fakeA"] else SWS), so), 8, ("slab", n))
                vm("buffer_load_dwordx4 v%d, %s, s%d offen offset:3072 sc1 lds" % (D_A, srd(SX if CFG["fakeA"] else SWS), so), 8, ("slab", n))
    STG_ = CFG["stage"]; SR = 64
    def stage_load(k):
        n = STG_[k]; wb = srd(SWD if n < 48 else SWO)
        a("v_readlane_b32 s%d, v%d, %d" % (sT2, D_TAB, n)); a("s_lshl_b32 s%d, s%d, 4" % (sT2, sT2)); a("s_add_u32 s%d, s%d, 16384" % (sT3, sT2))
        room(32, CFG["capt"])
        for h in range(2):
            vm("buffer_load_dwordx4 %s, v%d, %s, s%d offen" % (v(SR + 16 * k + 8 * h, 4), D_B, wb, sT2 + h), 8, ("stg", k))
            vm("buffer_load_dwordx4 %s, v%d, %s, s%d offen offset:1024" % (v(SR + 16 * k + 8 * h + 4, 4), D_B2, wb, sT2 + h), 8, ("stg", k))
    def stage_put(n):
        k = STG_.index(n); sl_, hf = LOC[(n, "B")]
        if CFG["stagefake"]: return
        P.append(W(vm=[("stg", k)]))
        a("v_add_u32 v%d, %d, v%d" % (D_SW + 1, sl_ * SLOT + hf * 2048, D_SW))
        for q in range(4): a("ds_write_b128 v%d, %s offset:%d" % (D_SW + 1, v(SR + 16 * k + 4 * q, 4), (q >> 1) * 4096 + (q & 1) * 1024), ("put", n))
    def touch(which):
        nr = 32 if CFG["map"] == 84 else 64; dst = D_TCH + 4; cap = CFG["capt"]
        for w in which:
            if w == "x":
                a("s_lshr_b32 s%d, s%d, 1" % (sT0, sLA)); a("s_add_u32 m0, s%d, %d" % (sT0, LX))
                room(32, cap)
                for p in range(4):
                    a("s_movk_i32 s%d, %d" % (sT1, 7168 * p))
                    vm("buffer_load_dwordx4 v%d, %s, s%d offen offset:%d lds" % (D_X, srd(SX), sT1, 1024 * p), 8)
            elif w[0] == "s":
                for k in range(*[int(x_) for x_ in w[1:].split("-")]): stage_load(k)
            elif w == "m":
                room(36, cap)
                a("s_mov_b64 exec, 0xfffffff"); vm("buffer_load_dword v%d, v%d, %s, 0 offen" % (dst, D_M, srd(SWD)), 28)
                a("s_mov_b64 exec, 0xff"); vm("buffer_load_dword v%d, v%d, %s, 0 offen" % (dst, D_M + 1, srd(SWO)), 8)
            elif w in ("q", "g0", "g1"):
                if nr == 32: a("s_mov_b32 exec_hi, 0")
                if w == "q": room(nr, cap); vm("buffer_load_dword v%d, v%d, %s, 0 offen" % (dst, D_TCH + 3, srd(SQKV)), nr)
                else:
                    for d in (SG, SU): room(nr, cap); vm("buffer_load_dword v%d, v%d, %s, s%d offen" % (dst, D_TCH + 2, srd(d), sKS + int(w[1])), nr)
            elif w == "o":
                k = 64 if (CFG["map2"] == 48 or CFG["aonly"]) else 32
                if k == 32: a("s_mov_b32 exec_hi, 0")
                room(k, cap); vm("buffer_load_dword v%d, v%d, %s, 0 offen" % (dst, D_TCH + 1, srd(SWO)), k)
            else:
                j = int(w[1])
                if j >= (4 if (CFG["map2"] == 48 or CFG["aonly"]) else 2): continue
                a("s_mov_b32 exec_hi, 0xffffff"); a("s_mov_b32 s%d, %d" % (sT0, j * 56 * (128 if CFG["map2"] == 48 else 256)))
                room(56, cap); vm("buffer_load_dword v%d, v%d, %s, s%d offen" % (dst, D_TCH, srd(SWD), sT0), 56)
            a("s_mov_b64 exec, -1")
    def publish(m):
        if m in CH.values():
            a("s_mov_b32 m0, s%d" % sLM); a("v_mov_b32 v%d, %d" % (D_LV, 4 * (m + 1)))
            vm("global_load_lds_dword v%d, %s" % (D_LV, s(sTB, 2)), 1)
        if CFG["stamps"] == 2 or (CFG["stamps"] and m % 4 == 0): stamp(m)
    for d in (SQKV, SG, SU):
        a("s_sub_u32 s%d, s%d, 4096" % (d, d)); a("s_subb_u32 s%d, s%d, 0" % (d + 1, d + 1)); a("s_add_u32 s%d, s%d, 4096" % (d + 2, d + 2))
    gates = {20: (C_H1A, 16), 28: (C_H1B, 16), 36: (C_H2, 32), 48: (C_O, 16)}
    def do_gate(n):
        if CFG["stamps"] == 2: stamp_to(P, 20 + 2 * list(gates).index(n), H_STAMP2)
        if n in CFG["nogate"]: pass
        elif CFG["spoll"]: sgate(P, sCC, gates[n][0] * 128, sPV, gates[n][1])
        else: gate(P, D_CC, SWS, gates[n][0] * 128, ("poll", n), D_POLL, gates[n][1])
        stamp_to(P, 21 + 2 * list(gates).index(n), H_STAMP2)
    def poll(gn):
        if CFG["spoll"]: a("s_load_dword s%d, %s, s%d offset:%d glc" % (sPV, s(SWS, 2), sCC, gates[gn][0] * 128))
        else: vm("buffer_load_dword v%d, v%d, %s, 0 offen offset:%d sc1" % (D_POLL, D_CC, srd(SWS), gates[gn][0] * 128), 1, ("poll", gn))
    nbf = CFG["bfirst"]
    def issue(n):
        if n in gates and not (n == 20 and nbf): do_gate(n)
        if n + CFG["pollat"] in gates and not (n + CFG["pollat"] == 20 and nbf): poll(n + CFG["pollat"])
        dma(n)
    def do_touch(n):
        tp = CFG["tplan%d" % ty].get(str(n))
        if tp:
            touch(tp.split())
    look(0)
    if CFG["dprio"]: a("s_setprio %d" % CFG["dprio"])
    hist += [16] * 8
    xstages(P, {CFG["s0at"]: lambda: (dma(0), publish(0), do_touch(0))})
    stamp(60)
    a("s_barrier")
    stamp(61); rstamp(P, 40)
    assert NB == 56
    seq = [(n, "F") for n in range(1, 20)] + [(n, "B") for n in range(20, 20 + nbf)]
    n = 20
    while n < 56:
        k = CFG["afirst"].get(str(n), 0)
        if n == 20: k = max(k, nbf)
        if str(n) in CFG["bf"]: k = CFG["bf"][str(n)]; seq += [(m, "B") for m in range(n, n + k)]
        seq += [(m, "A") for m in range(n, n + k)] + [(m, "B") for m in range(n, n + k) if (m, "B") not in seq]
        if not k: seq.append((n, "F"))
        n += max(k, 1)
    for n in STG_:
        i = seq.index((n, "F")); seq[i] = (n, "A"); seq.insert(i - CFG["putahead"], (n, "S"))
    started = set(); parts = {}; checked = -1; gated = set()
    firstA = {g: min(i for i, (m, w) in enumerate(seq) if m >= g and w in "AF") for g in gates}
    gstart = {g: min(i for i, (m, w) in enumerate(seq) if m >= 20 + 4 * g and w != "B") for g in range(9)}
    exi = min(i for i, (m, w) in enumerate(seq) if m >= 20 and LOC[(m, "A" if w == "A" else "B")][0] >= 8)
    def need_at(i):
        k = 1
        if CFG["spoll"] and any(i + CFG["pollat"] == firstA[g] for g in gates): k = CFG["pollat"]
        pu = max(prev_user(m, "B" if w == "S" else w) for m, w in seq[i:i + k])
        while pu > checked and not marked(pu): pu += 1
        return pu - CFG["bigring"] if seq[i][0] < CFG["bigto"] else pu
    for i, (n, w) in enumerate(seq):
        if (n, w) in ((11, "F"), (15, "F"), (18, "F"), (30, "F"), (42, "F"), (54, "F")): rstamp(P, 42 + 2 * (11, 15, 18, 30, 42, 54).index(n))
        if w == "F" and n in CFG["exw%d" % ty]: count_wait(P, D_FL, D_DV + 1, F_EX + 4 * CFG["exw%d" % ty].index(n), 4)
        if i % 3 == 1: jit(P, 31, 7)
        pu = need_at(i)
        if pu > checked:
            lb = newlbl()
            P.append(W(lg=[("dn", i)]))
            a("v_cmp_ge_u32 vcc, %d, v%d" % (pu, D_DV)); a("s_cbranch_vccz L_fr%d" % lb)
            raw(P, [I("s_movk_i32 s%d, %d" % (sSPIN + 1, pu + 1)), I("s_call_b64 %s, L_spin_d" % s(sRET, 2))]); P.append(L("L_fr%d:" % lb))
            checked = pu
        if i == exi: count_wait(P, D_FL, D_DV + 1, F_EXF, 2)
        if (n, w) == (4, "F"): a("s_movk_i32 m0, %d" % (FL + F_INIT)); vm("buffer_load_dword v%d, %s, 0 offen sc1 lds" % (D_ZERO, srd(SDBG)), 1)
        if (n, w) == (15, "F"): a("ds_read_b32 v%d, v%d offset:%d" % (D_POLL, D_FL, F_INIT), "init"); gate(P, D_ZERO, SDBG, 0, "init", D_POLL, 1)
        for g in gates:
            if i == firstA[g]:
                do_gate(g)
                if g == 20: a("s_movk_i32 m0, %d" % LR2); vm("buffer_load_dword v%d, %s, 0 offen sc1 lds" % (D_R, srd(SWS)), 2)
            if i + CFG["pollat"] == firstA[g]: poll(g)
        if CFG["lead"]:
            for g in range(1, 9):
                sec = max(x for x in gates if x <= 20 + 4 * g); newsec = sec == 20 + 4 * g
                at = gstart[g - 1]
                if newsec and i + CFG["pollat"] == at:
                    vm("buffer_load_dword v%d, v%d, %s, 0 offen offset:%d sc1" % (D_POLL2, D_CC, srd(SWS), gates[sec][0] * 128), 1, ("poll2", g))
                if i == at + CFG["leadoff"]:
                    lb = newlbl()
                    if newsec: P.append(W(vm=[("poll2", g)]))
                    a("s_cmp_lg_u32 s%d, %d" % (sLD, CFG["who"][g])); a("s_cbranch_scc1 L_nl%d" % lb)
                    X = []
                    if newsec: X += [I("v_cmp_eq_u32 vcc, %d, v%d" % (gates[sec][1], D_POLL2)), I("s_cbranch_vccz L_nl%d" % lb)]
                    for j in range(4): X.append(I("v_readlane_b32 s%d, v%d, %d" % (sG + j, D_TAB, 20 + 4 * g + j)))
                    X.append(I("s_mov_b32 exec_hi, 0"))
                    for j in range(4):
                        if g >= 7: X.append(I("s_add_u32 s%d, s%d, %d" % (sG + j, sG + j, 28 * 4096)))
                        X.append(I("buffer_load_dword v%d, v%d, %s, s%d offen offset:2048 sc1" % (D_TCH + 4, D_AT, srd(SWS), sG + j)))
                    X.append(I("s_mov_b64 exec, -1"))
                    raw(P, X); P.append(L("L_nl%d:" % lb))
        started.add(n)
        if i + 1 < len(seq) and need_at(i + 1) > checked: a("ds_read_b32 v%d, v%d" % (D_DV, D_LA), ("dn", i + 1))
        nxt = ([m for m, w_ in seq[i + 1:] if w_ != "S"] + [99])[0]
        if w == "F" and n in CFG["skipB"]: part(n, "A", nxt)
        elif w == "F" and n in CFG["skipA"]: part(n, "B", nxt)
        elif w == "F":
            assert nxt in (n + 1, 99); dma(n)
        elif w == "S": stage_put(n)
        else: part(n, w, nxt)
        if w == "A" and n in STG_ and not CFG["stagefake"]: P.append(W(lg=[("put", n)]))
        parts.setdefault(n, set()).add("B" if w == "S" else w)
        if parts[n] in ({"F"}, {"A", "B"}):
            assert all(parts.get(m) in ({"F"}, {"A", "B"}) for m in range(1, n))
            publish(n)
        if (n, w) == (6, "F") and CFG["defer"] & 2: P += late_su
        if w == "F": do_touch(n)
    if CFG["stamps"]:
        count_wait(P, D_FL, D_DV, F_END, 4)
        stamp(62)
        a("s_memrealtime s[6:7]"); P.append(W(lg="all"))
        a("v_writelane_b32 v%d, s4, 62" % H_STAMP2); a("v_writelane_b32 v%d, s6, 63" % H_STAMP2)
        a("s_lshl_b32 s%d, s2, 8" % sT0); a("s_add_u32 s%d, s%d, %d" % (sT0, sT0, WS_ST))
        a("v_lshlrev_b32 v64, 2, v1")
        a("s_cmp_lg_u32 s%d, %d" % (sW1, CFG["stampw"] & 1)); a("s_cbranch_scc1 L_exit")
        a("buffer_store_dword v%d, v64, %s, s%d offen" % (H_STAMP, srd(SWS), sT0))
        a("s_add_u32 s%d, s%d, 0x10000" % (sT0, sT0))
        a("buffer_store_dword v%d, v64, %s, s%d offen" % (H_STAMP2, srd(SWS), sT0))
    a("s_endpgm")
    return P

A_ONE, A_ZERO, A_CM, A_CK, A_CQ, A_FL, A_RK, A_RV, A_ST, A_ZA, A_PL, A_ZL, A_OS, A_SGN = range(2, 16)
A_POLL, A_FV, A_TCH = 25, 27, 28
A_ID = 32
A_WP = 36
A_R = 16
A_ACC = 56
A_RAW = 72
A_T = 72
A_KF = 112
A_SD = 192; A_PHI = 208
A_PQ = 128
A_LD = 192
def softmax_unit(wp, kf, u, dst, Pm, R, scale_r):
    B = []; b = lambda t, tag=None: B.append(I(t, tag))
    C = A_R + 4 + u
    b("v_mfma_f32_32x32x16_bf16 %s, %s, %s, 0" % (v(Pm, 16), v(wp, 4), v(kf, 4)))
    for g in range(2): b("v_max3_f32 v%d, v%d, v%d, v%d" % (R + g, Pm + 8 * g, Pm + 8 * g + 1, Pm + 8 * g + 2))
    for g in range(2): b("v_max3_f32 v%d, v%d, v%d, v%d" % (R + 2 + g, Pm + 8 * g + 3, Pm + 8 * g + 4, Pm + 8 * g + 5))
    for g in range(2): b("v_max3_f32 v%d, v%d, v%d, v%d" % (R + g, R + g, Pm + 8 * g + 6, Pm + 8 * g + 7))
    for g in range(2): b("v_max_f32 v%d, v%d, v%d" % (R + g, R + g, R + 2 + g))
    def allred(op, mid):
        b("v_permlane32_swap_b32 v%d, v%d" % (R, R + 1))
        b("%s v%d, v%d, v%d" % (op, R, R, R + 1))
        for t in mid: b(t)
        b("v_mov_b32 v%d, v%d" % (R + 1, R))
        b("v_permlane32_swap_b32 v%d, v%d" % (R, R + 1))
    allred("v_max_f32", ["v_mul_f32 v%d, v%d, v%d" % (R, C, R)])
    for j in range(16): b("v_fma_f32 v%d, v%d, v%d, -v%d" % (Pm + j, Pm + j, C, R + j // 8))
    for j in range(16): b("v_exp_f32 v%d, v%d" % (Pm + j, Pm + j))
    if not scale_r and not CFG["qnorm"]:
        for j in range(8): b("v_cvt_pk_bf16_f32 v%d, v%d, v%d" % (dst + j, Pm + 2 * j, Pm + 2 * j + 1))
        return B
    for g in range(2):
        b("v_add_f32 v%d, v%d, v%d" % (R + g, Pm + 8 * g, Pm + 8 * g + 1)); b("v_add_f32 v%d, v%d, v%d" % (R + 2 + g, Pm + 8 * g + 2, Pm + 8 * g + 3))
    for k in (4, 6):
        for g in range(2):
            b("v_add_f32 v%d, v%d, v%d" % (R + g, R + g, Pm + 8 * g + k)); b("v_add_f32 v%d, v%d, v%d" % (R + 2 + g, R + 2 + g, Pm + 8 * g + k + 1))
    for g in range(2): b("v_add_f32 v%d, v%d, v%d" % (R + g, R + g, R + 2 + g))
    allred("v_add_f32", ["v_rcp_f32 v%d, v%d" % (R, R)] + (["v_mul_f32 v%d, v%d, v%d" % (R, R, A_R + u)] if scale_r else []))
    for j in range(16): b("v_mul_f32 v%d, v%d, v%d" % (Pm + j, Pm + j, R + j // 8))
    for j in range(8): b("v_cvt_pk_bf16_f32 v%d, v%d, v%d" % (dst + j, Pm + 2 * j, Pm + 2 * j + 1))
    return B
def zipper(x, y):
    out = []
    for i in range(max(len(x), len(y))):
        if i < len(x): out.append(x[i])
        if i < len(y): out.append(y[i])
    return out
def mprio(B, base=0):
    out = []; hi = False
    for it in B:
        m_ = isinstance(it, I) and it.t.startswith("v_mfma")
        if m_ and not hi: out.append(I("s_setprio 3")); hi = True
        if hi and not m_: out.append(I("s_setprio %d" % base)); hi = False
        out.append(it)
    return out

def attn_setup(ty):
    P = []; b = lambda t, tag=None: P.append(I(t, tag))
    t0, t1, t2, t3, u0 = range(100, 105)
    hk, hq = sT2, sT3
    if CFG["tlb"]:
        b("v_lshlrev_b32 v%d, 16, v1" % t0); b("s_mov_b64 exec, 0x%x" % CFG["tlbm"])
        for d in ((SQKV,), (SQKV, SG, SU), (SQKV, SG, SU, SWD, SWO))[CFG["tlb"] - 1]: b("buffer_load_dword v%d, v%d, %s, 0 offen" % (A_POLL + 1, t0, srd(d)))
        b("s_mov_b64 exec, -1")
    if CFG["ftouch"]:
        nr = 32 if CFG["map"] == 84 else 64
        b("s_lshl_b32 s%d, s%d, 6" % (sT0, sXR)); b("s_mul_i32 s%d, s%d, %d" % (sT1, sW1, nr)); b("s_add_u32 s%d, s%d, s%d" % (sT0, sT0, sT1))
        b("v_add_u32 v%d, s%d, v1" % (A_TCH + 2, sT0)); b("v_mul_u32_u24 v%d, 3072, v%d" % (A_TCH + 3, A_TCH + 2)); b("v_mul_u32_u24 v%d, 3584, v%d" % (A_TCH + 2, A_TCH + 2))
        if nr == 32: b("s_mov_b32 exec_hi, 0")
        if CFG["ftouch"] == 4: b("buffer_load_dword v%d, v%d, %s, s%d offen offset:%d" % (A_POLL + 1, A_TCH + 3, srd(SQKV), sKC, 1024 * ty))
        elif CFG["ftouch"] >= 5 or not CFG["ftouch"] & (1 << ty): pass
        elif ty == 0:
            for o_ in (0, 1024): b("buffer_load_dword v%d, v%d, %s, s%d offen offset:%d" % (A_POLL + 1, A_TCH + 3, srd(SQKV), sKC, o_))
        else:
            b("s_lshl_b32 s%d, s%d, 7" % (sT0, sGR)); b("buffer_load_dword v%d, v%d, %s, s%d offen" % (A_POLL + 1, A_TCH + 3, srd(SQKV), sT0))
        b("s_mov_b64 exec, -1")
    b("s_lshl_b32 s%d, s%d, 2" % (hq, sGR)); b("s_add_u32 s%d, s%d, s%d" % (hq, hq, sW1))
    b("s_add_u32 s%d, s%d, %d" % (hk, hq, 2 * ty))
    b("v_lshrrev_b32 v%d, 5, v1" % t3); b("v_and_b32 v%d, 15, v1" % t1); b("v_lshrrev_b32 v%d, 4, v1" % t0)
    b("v_lshlrev_b32 v%d, 7, v%d" % (t2, t3)); b("v_lshl_add_u32 v%d, v%d, 1, v%d" % (t2, t1, t2))
    b("s_lshl_b32 s%d, s%d, 9" % (sT4, hq)); b("v_mov_b32 v105, v%d" % t2)
    for hh in range(1 + ty):
        for j in range(8):
            b("buffer_load_ushort v%d, v%d, %s, s%d offen offset:%d" % (A_RAW + 8 * hh + j, 105, srd(SPHI), sT4, 1024 * hh + 32 * ((j & 3) + 8 * (j >> 2))), "wphi")
    b("v_mov_b32 v%d, 0" % A_ZERO); b("v_mov_b32 v34, 0")
    b("v_mov_b32 v%d, 1" % A_ONE); b("v_mov_b32 v%d, %d" % (A_FL, FL))
    if ty == 0:
        b("v_lshlrev_b32 v%d, 7, v1" % u0)
        b("s_add_u32 s%d, s2, s%d" % (sT0, sW1)); b("s_cmp_lg_u32 s%d, 0" % sT0); b("s_cbranch_scc1 L_noinit")
        raw(P, sum([[I("s_movk_i32 s%d, 0x%x" % (sT0, 0x2000 * k)), I("buffer_store_dword v%d, v%d, %s, s%d offen sc1" % (A_ZERO, u0, srd(SWS), sT0))] for k in range(3)], []))
        P.append(L("L_noinit:"))
    b("v_and_b32 v%d, 1, v%d" % (t2, t0)); b("v_mul_u32_u24 v%d, 0x8000, v%d" % (t2, t2)); b("v_lshl_or_b32 v%d, v%d, 16, v%d" % (A_SGN, t2, t2))
    b("s_lshl_b32 s%d, s%d, 10" % (sT0, sI)); b("v_lshlrev_b32 v%d, 9, v1" % A_CM); b("v_add_u32 v%d, s%d, v%d" % (A_CM, sT0, A_CM))
    b("v_lshl_add_u32 v%d, v1, 2, v%d" % (A_FV, A_FL))
    for k in range(8): b("ds_write_b32 v%d, v%d offset:%d" % (A_FV, A_ZERO, 256 * k))
    P.append("cut")
    b("s_lshl_b32 s%d, s%d, 8" % (sT0, hk)); b("s_add_u32 s%d, s%d, 0x4000" % (sT0, sT0)); b("v_mov_b32 v%d, s%d" % (A_CK, sT0))
    b("s_lshl_b32 s%d, s%d, 8" % (sT0, hq)); b("s_add_u32 s%d, s%d, 0x4000" % (sCC, sT0))
    b("s_lshl_b32 s%d, s%d, 11" % (sT0, sW1)); b("s_add_u32 s%d, s%d, %d" % (sT0, sT0, EX))
    b("v_lshlrev_b32 v%d, 4, v1" % u0); b("v_add_u32 v%d, s%d, v%d" % (A_RK, sT0, u0))
    b("v_and_b32 v%d, 1, v1" % t2); b("v_lshlrev_b32 v%d, 9, v%d" % (A_RV, t2)); b("v_lshl_add_u32 v%d, v%d, 7, v%d" % (A_RV, t0, A_RV))
    b("v_bfe_u32 v%d, v1, 2, 2" % t2); b("v_lshl_add_u32 v%d, v%d, 4, v%d" % (A_RV, t2, A_RV))
    b("v_bfe_u32 v%d, v1, 1, 1" % t2); b("v_lshl_add_u32 v%d, v%d, 3, v%d" % (A_RV, t2, A_RV)); b("v_add_u32 v%d, s%d, v%d" % (A_RV, sT0, A_RV))
    b("s_lshl_b32 s%d, s%d, 4" % (sT0, hk)); b("s_add_u32 s%d, s%d, s%d" % (sT0, sT0, sI))
    b("s_lshl_b32 s%d, s%d, 10" % (sT1, sT0)); b("s_add_u32 s%d, s%d, %d" % (sT1, sT1, WS_KV)); b("v_add_u32 v%d, s%d, v%d" % (A_ST, sT1, u0))
    b("s_lshl_b32 s%d, s%d, 7" % (sT1, sT0)); b("s_add_u32 s%d, s%d, %d" % (sT1, sT1, WS_Z))
    b("v_lshlrev_b32 v%d, 6, v%d" % (A_ZA, t1)); b("v_lshl_add_u32 v%d, v%d, 4, v%d" % (A_ZA, t0, A_ZA)); b("v_add_u32 v%d, s%d, v%d" % (A_ZA, sT1, A_ZA))
    if ty == 0:
        b("s_lshl_b32 s%d, s%d, 1" % (sT0, sI)); b("s_add_u32 s%d, s%d, s%d" % (sT0, sT0, sW1)); b("s_and_b32 s%d, s%d, 7" % (sLD, sT0))
        b("s_lshr_b32 s%d, s%d, 3" % (sT0, sT0)); b("s_lshl_b32 s%d, s%d, 2" % (sT4, sGR)); b("s_add_u32 s%d, s%d, s%d" % (sT4, sT4, sT0))
        b("s_lshl_b32 s%d, s%d, 8" % (sT0, sT4)); b("s_add_u32 s%d, s%d, 0x4000" % (sCC, sT0)); b("v_mov_b32 v%d, s%d" % (A_CQ, sCC))
        b("s_lshl_b32 s%d, s%d, 7" % (sT5, sLD))
        b("s_lshl_b32 s%d, s%d, 14" % (sT1, sT4)); b("s_add_u32 s%d, s%d, s%d" % (sT1, sT1, sT5)); b("s_add_u32 s%d, s%d, %d" % (sT1, sT1, WS_KV))
        b("v_lshrrev_b32 v%d, 3, v1" % t2); b("v_lshlrev_b32 v%d, 10, v%d" % (A_PL, t2)); b("v_and_b32 v%d, 7, v1" % t2)
        b("v_lshl_add_u32 v%d, v%d, 4, v%d" % (A_PL, t2, A_PL)); b("v_add_u32 v%d, s%d, v%d" % (A_PL, sT1, A_PL))
        b("s_lshl_b32 s%d, s%d, 10" % (sT1, sT4)); b("s_add_u32 s%d, s%d, s%d" % (sT1, sT1, sT5)); b("s_add_u32 s%d, s%d, %d" % (sT1, sT1, WS_KVF))
        b("v_lshlrev_b32 v%d, 4, v%d" % (A_OS, t2)); b("v_lshl_add_u32 v%d, v%d, 2, v%d" % (A_OS, t3, A_OS))
        b("v_and_b32 v%d, 1, v%d" % (t2, t0)); b("v_lshl_add_u32 v%d, v%d, 3, v%d" % (A_OS, t2, A_OS)); b("v_add_u32 v%d, s%d, v%d" % (A_OS, sT1, A_OS))
        b("s_lshl_b32 s%d, s%d, 11" % (sT1, sT4)); b("s_add_u32 s%d, s%d, %d" % (sT1, sT1, WS_Z))
        b("v_lshlrev_b32 v%d, 7, v%d" % (A_ZL, t1)); b("v_lshl_add_u32 v%d, v%d, 4, v%d" % (A_ZL, t0, A_ZL)); b("v_add_u32 v%d, s%d, v%d" % (A_ZL, sT1, A_ZL))
        b("s_lshl_b32 s%d, s%d, 7" % (sT1, sT4)); b("s_add_u32 s%d, s%d, %d" % (sT1, sT1, WS_ZF))
        b("v_lshlrev_b32 v%d, 6, v%d" % (A_CM, t1)); b("v_lshl_add_u32 v%d, v%d, 4, v%d" % (A_CM, t0, A_CM)); b("v_add_u32 v%d, s%d, v%d" % (A_CM, sT1, A_CM))
        ident(b, A_ID, t1)
    if ty == 1:
        b("s_lshl_b32 s%d, s%d, 10" % (sT1, hq)); b("s_add_u32 s%d, s%d, %d" % (sT1, sT1, WS_KVF)); b("v_add_u32 v%d, s%d, v%d" % (A_PL, sT1, u0))
        b("s_lshl_b32 s%d, s%d, 7" % (sT1, hq)); b("s_add_u32 s%d, s%d, %d" % (sT1, sT1, WS_ZF))
        b("v_lshlrev_b32 v%d, 4, v%d" % (A_ZL, t0)); b("v_add_u32 v%d, s%d, v%d" % (A_ZL, sT1, A_ZL))
        b("s_mul_i32 s%d, s%d, 576" % (sT1, sI)); b("s_add_u32 s%d, s%d, s%d" % (sT1, sT1, hq)); b("s_add_u32 s%d, s%d, s%d" % (sT1, sT1, sW1)); b("s_add_u32 s%d, s%d, 112" % (sT1, sT1))
        b("s_lshl_b32 s%d, s%d, 10" % (sT1, sT1)); b("s_add_u32 s%d, s%d, %d" % (sT1, sT1, WS_HO))
        b("v_and_b32 v%d, 1, v%d" % (t2, t0)); b("v_lshlrev_b32 v%d, 10, v%d" % (A_OS, t2)); b("v_lshl_add_u32 v%d, v%d, 8, v%d" % (A_OS, t3, A_OS))
        b("v_lshl_add_u32 v%d, v%d, 4, v%d" % (A_OS, t1, A_OS)); b("v_add_u32 v%d, s%d, v%d" % (A_OS, sT1, A_OS))
    return P

def attn_wave(ty):
    SU_ = attn_setup(ty); cut_ = SU_.index("cut"); late_su = SU_[cut_ + 1:] if CFG["defer"] & 1 else []
    P = [M(("x", 1))] + SU_[:cut_] + ([] if late_su else SU_[cut_ + 1:]); a = lambda t, tag=None: P.append(I(t, tag))
    wl = [x_ for x_ in P if isinstance(x_, I) and x_.tag == "wphi"] if CFG["wat"] >= 0 else []
    P[:] = [x_ for x_ in P if x_ not in wl]
    stamp = lambda k: (stamp_to(P, k, 34), jit(P, 63))
    def signal(vaddr, off): one_lane(P, "buffer_atomic_add v%d, v%d, %s, 0 offen offset:%d sc1" % (A_ONE, vaddr, srd(SWS), off))
    def ft():
        a("s_mov_b32 exec_hi, 0"); a("buffer_load_dword v%d, v%d, %s, s%d offen offset:%d" % (A_POLL + 1, A_TCH + 3, srd(SQKV), sKC, 1024 * ty))
        if CFG["ftouch"] == 7:
            if ty: a("s_lshl_b32 s%d, s%d, 7" % (sT0, sGR)); a("buffer_load_dword v%d, v%d, %s, s%d offen" % (A_POLL + 1, A_TCH + 3, srd(SQKV), sT0))
            else:
                a("s_lshl_b32 s%d, s%d, 8" % (sT0, sGR))
                for d in (SG, SU): a("buffer_load_dword v%d, v%d, %s, s%d offen" % (A_POLL + 1, A_TCH + 2, srd(d), sT0))
        a("s_mov_b64 exec, -1")
    def after1():
        jit(P, 255, 15)
        if CFG["ftouch"] in (5, 7): ft()
        if ty == 0:
            only(P, ["s_add_u32 s%d, s2, s%d" % (sT0, sW1), "s_cmp_lg_u32 s%d, 0" % sT0],
                 [I("buffer_store_dword v%d, v%d, %s, 0 offen sc1" % (A_ONE, A_ZERO, srd(SDBG)))])
    P.append(W(lg="all"))
    ex_ = {(3 if CFG["x23"] else 1): after1}
    if wl: ex_[CFG["wat"]] = lambda: P.extend(wl)
    xstages(P, ex_)
    a("s_barrier")
    if CFG["noattn"]:
        one_lane(P, "ds_add_u32 v%d, v%d offset:%d" % (A_FL, A_ONE, F_EXF)); a("s_endpgm"); return P
    P += late_su
    P.append(W(vm=["wphi"]))
    for hh in range(1 + ty):
        for j in range(4): a("v_lshl_or_b32 v%d, v%d, 16, v%d" % (A_WP + 4 * hh + j, A_RAW + 8 * hh + 2 * j + 1, A_RAW + 8 * hh + 2 * j))
        for j in range(4): a("v_xor_b32 v%d, v%d, v%d" % (A_WP + 4 * hh + j, A_WP + 4 * hh + j, A_SGN))
    WK = A_WP + 4 * ty
    T = A_T
    a("v_and_b32 v%d, 31, v1" % T); a("v_lshlrev_b32 v%d, 2, v%d" % (T, T)); a("v_add_u32 v%d, %d, v%d" % (T, LRS, T))
    a("v_lshrrev_b32 v%d, 4, v1" % (T + 1)); a("v_lshlrev_b32 v%d, 4, v%d" % (T + 1, T + 1)); a("v_add_u32 v%d, %d, v%d" % (T + 1, LSD, T + 1))
    count_wait(P, A_FL, A_FV, F_EX, 4)
    stamp(11)
    for u in range(4): a("ds_read_b32 v%d, v%d offset:%d" % (A_R + u, T, u * 128))
    for u in range(4): a("ds_read_b128 %s, v%d offset:%d" % (v(A_SD + 4 * u, 4), T + 1, u * 64))
    for u in range(4): a("ds_read_b128 %s, v%d offset:%d" % (v(A_KF + 4 * u, 4), A_RK, u * 8192))
    P.append(W(lg="all"))
    for u in range(4): a("v_mul_f32 v%d, s%d, v%d" % (A_R + 4 + u, sL2E, A_R + u))
    PM = (T, T + 16); RR = (T + 32, T + 36)
    def qpair(hh, pr, src=None):
        src = A_KF + 8 * pr if src is None else src
        return mprio(zipper(softmax_unit(A_WP + 4 * hh, src, 2 * pr, A_PQ + 32 * hh + 16 * pr, PM[0], RR[0], False),
                            softmax_unit(A_WP + 4 * hh, src + 4, 2 * pr + 1, A_PQ + 32 * hh + 16 * pr + 8, PM[1], RR[1], False)), CFG["qprio"])
    KO = 0 if CFG["kvfirst"] else 4096 * ty
    if ty == 1 and not CFG["kvfirst"]:
        P += qpair(0, 0)
        if CFG["qpre"] == 2: P += qpair(0, 1)
        else:
            for j in range(8): a("v_mov_b32 v%d, v%d" % (A_PQ + 16 + j, A_KF + 8 + j))
        count_wait(P, A_FL, A_FV, F_EX + 4, 4)
        stamp(18)
        for u in range(4): a("ds_read_b128 %s, v%d offset:%d" % (v(A_KF + 4 * u, 4), A_RK, u * 8192 + KO))
        P.append(W(lg="all"))
    B = []; b = lambda t, tag=None: B.append(I(t, tag))
    def tail(u):
        X = []; x = lambda t, tag=None: X.append(I(t, tag))
        PHI = A_PHI + 8 * (u & 1); FR = A_PHI + 16 + 12 * (u & 1); so = (u & 1) * 16384 + KO
        for sg in range(2): x("ds_write_b128 v%d, %s offset:%d" % (A_RK, v(PHI + 4 * sg, 4), so + sg * 8192))
        for q in range(2): x("ds_read_b64_tr_b16 %s, v%d offset:%d" % (v(FR + 2 * q, 2), A_RV, u * 8192 + KO + 1024 + q * 64), ("pr", u))
        for sg in range(2):
            for q in range(2): x("ds_read_b64_tr_b16 %s, v%d offset:%d" % (v(FR + 4 + 4 * sg + 2 * q, 2), A_RV, so + sg * 8192 + q * 64), ("pr", u))
        return X
    def kvm(us):
        X = [W(lg=[("pr", us[-1])])]
        for u in us:
            FR = A_PHI + 16 + 12 * (u & 1)
            for sg in range(2):
                c = v(A_ACC + 4 * sg, 4); z = v(A_ACC + 8 + 4 * sg, 4)
                X.append(I("v_mfma_f32_16x16x32_bf16 %s, %s, %s, %s" % (c, v(FR + 4 + 4 * sg, 4), v(FR, 4), "0" if u == 0 else c)))
                X.append(I("v_mfma_f32_16x16x32_bf16 %s, %s, %s, %s" % (z, v(FR + 4 + 4 * sg, 4), v(A_SD + 4 * u, 4), "0" if u == 0 else z)))
        return X
    for pr in range(2):
        z = zipper(softmax_unit(WK, A_KF + 8 * pr, 2 * pr, A_PHI, PM[0], RR[0], True), softmax_unit(WK, A_KF + 8 * pr + 4, 2 * pr + 1, A_PHI + 8, PM[1], RR[1], True))
        t0_, t1_ = tail(2 * pr), tail(2 * pr + 1)
        if pr == 0: B += z + t0_[:2] + t1_[:2]; late = t0_[2:] + t1_[2:]
        else: B += z[:70] + late + z[70:120] + kvm((0, 1)) + z[120:] + t0_[:2] + t1_[:2] + t0_[2:] + t1_[2:]
    b("v_and_b32 v%d, 15, v1" % T); b("v_cmp_eq_u32 vcc, 1, v%d" % T)
    if ty == 0: one_lane(B, "ds_add_u32 v%d, v%d offset:%d" % (A_FL, A_ONE, F_EXF))
    B += kvm((2, 3))
    for j in range(4): b("v_cvt_pk_bf16_f32 v%d, v%d, v%d" % (A_ACC + j, A_ACC + 2 * j, A_ACC + 2 * j + 1))
    for j in range(4): b("v_cndmask_b32 v%d, v%d, v%d, vcc" % (A_ACC + 8 + j, A_ACC + 8 + j, A_ACC + 12 + j))
    b("buffer_store_dwordx4 %s, v%d, %s, 0 offen sc1" % (v(A_ACC, 4), A_ST, srd(SWS)), "part")
    b("s_mov_b32 exec_lo, 0x00030003"); b("s_mov_b32 exec_hi, 0x00030003")
    b("buffer_store_dwordx4 %s, v%d, %s, 0 offen sc1" % (v(A_ACC + 8, 4), A_ZA, srd(SWS)), "part"); b("s_mov_b64 exec, -1")
    P += mprio(B, CFG["kprio"]); a("s_setprio 0")
    stamp(12)
    def publish_k():
        a("ds_read_b32 v%d, v%d offset:%d" % (A_POLL, A_FL, F_INIT), "init"); gate(P, A_ZERO, SDBG, 0, "init", A_POLL, 1)
        P.append(W(vm=["part"])); signal(A_CK, 0)
        stamp(13)
    if ty == 0:
        publish_k()
        a(sload(SWS, sCC, 0, sG)); sgate(P, sCC, 0, sG, 16)
        stamp(14)
        LD = A_LD; S = T; Z = A_ACC
        a("buffer_load_dwordx4 %s, v%d, %s, 0 offen sc1" % (v(LD, 4), A_PL, srd(SWS))); a("s_movk_i32 s%d, 8192" % sT0)
        a("buffer_load_dwordx4 %s, v%d, %s, s%d offen sc1" % (v(LD + 4, 4), A_PL, srd(SWS), sT0))
        X = []; x = lambda t: X.append(I(t))
        x("buffer_load_dwordx4 %s, v%d, %s, 0 offen sc1" % (v(Z, 4), A_ZL, srd(SWS))); x("buffer_load_dwordx4 %s, v%d, %s, 0 offen offset:64 sc1" % (v(Z + 4, 4), A_ZL, srd(SWS)))
        x("v_and_b32 v%d, 15, v1" % S); x("v_cmp_eq_u32 vcc, 1, v%d" % S); x("s_waitcnt vmcnt(0)")
        for k in (8, 4, 2, 1):
            for j in range(8): x("v_add_f32_dpp v%d, v%d, v%d row_ror:%d row_mask:0xf bank_mask:0xf" % (Z + j, Z + j, Z + j, k))
        for j in range(4): x("v_cndmask_b32 v%d, v%d, v%d, vcc" % (Z + j, Z + j, Z + 4 + j))
        x("s_mov_b32 exec_lo, 0x00030003"); x("s_mov_b32 exec_hi, 0x00030003")
        x("buffer_store_dwordx4 %s, v%d, %s, 0 offen sc1" % (v(Z, 4), A_CM, srd(SWS))); x("s_mov_b64 exec, -1"); x("s_branch L_l2b")
        only(P, ["s_cmp_lg_u32 s%d, 0" % sLD], X)
        a("s_waitcnt vmcnt(0)"); P.append(L("L_l2b:"))
        B = []
        for t_ in range(2):
            for sg in range(2): b("v_mfma_f32_4x4x4_16b_bf16 %s, %s, %s, %s" % (v(S + 4 * sg, 4), v(A_ID, 2), v(LD + 4 * t_ + 2 * sg, 2), "0" if t_ == 0 else v(S + 4 * sg, 4)))
        for j in range(8): b("v_add_f32_dpp v%d, v%d, v%d row_ror:8 row_mask:0xf bank_mask:0xf" % (S + j, S + j, S + j))
        for j in range(4): b("v_permlane16_swap_b32 v%d, v%d" % (S + j, S + 4 + j))
        for j in range(4): b("v_add_f32 v%d, v%d, v%d" % (S + j, S + j, S + 4 + j))
        for j in range(2): b("v_permlane32_swap_b32 v%d, v%d" % (S + j, S + 2 + j))
        for j in range(2): b("v_add_f32 v%d, v%d, v%d" % (S + j, S + j, S + 2 + j))
        b("v_cvt_pk_bf16_f32 v%d, v%d, v%d" % (S, S, S + 1))
        b("s_mov_b32 exec_lo, 0x00ff00ff"); b("s_mov_b32 exec_hi, 0x00ff00ff")
        b("buffer_store_dword v%d, v%d, %s, 0 offen sc1" % (S, A_OS, srd(SWS))); b("s_mov_b64 exec, -1")
        P += mprio(B); P.append(W(vm="all")); signal(A_CQ, 128)
        stamp(15)
    else:
        assert CFG["kvfirst"]
        if CFG["qlate"]: publish_k()
        count_wait(P, A_FL, A_FV, F_EX + 4, 4)
        for hh in range(2):
            for u in range(4): a("ds_read_b128 %s, v%d offset:%d" % (v(A_PQ + 32 * hh + 16 * (u >> 1) + 4 * (u & 1), 4), A_RK, u * 8192 + 4096 + 1024 * hh), "qf")
        one_lane(P, "ds_add_u32 v%d, v%d offset:%d" % (A_FL, A_ONE, F_EXF))
        P.append(W(lg=["qf"]))
        z = qpair(0, 0, A_PQ) if CFG["kvfirst"] else qpair(1, 0)
        P += z[:CFG["kpub"]]
        if not CFG["qlate"]: publish_k()
        P += z[CFG["kpub"]:]
        if CFG["kvfirst"]: rest = [qpair(0, 1, A_PQ + 16), qpair(1, 0, A_PQ + 32), qpair(1, 1, A_PQ + 48)]
        else: rest = ([qpair(0, 1, A_PQ + 16)] if CFG["qpre"] == 1 else []) + [qpair(1, 1)]
        for z in rest: P += z
        Z = (A_ACC, A_ACC + 8); KVA = (A_WP, A_R); S = A_KF
        def finish(hh):
            B = []; b = lambda t, tag=None: B.append(I(t, tag))
            KV = KVA[hh]; PQ = A_PQ + 32 * hh
            for sg in range(2):
                for j in range(2):
                    b("v_mov_b32 v%d, v%d" % (KV + 4 * sg + j, S + 4 * hh + 2 * sg + j))
                    b("v_cvt_pk_bf16_f32 v%d, v%d, v%d" % (KV + 4 * sg + 2 + j, Z[hh] + 4 * sg + 2 * j, Z[hh] + 4 * sg + 2 * j + 1))
            for w in ("16", "32"):
                for sg in range(2):
                    for j in range(2): b("v_permlane%s_swap_b32 v%d, v%d" % (w, KV + 4 * sg + j, KV + 4 * sg + 2 + j))
            if CFG["qnorm"]:
                NN = [A_LD + 16 * u for u in range(4)]
                for u in range(4):
                    for sg in range(2): b("v_mfma_f32_32x32x16_bf16 %s, %s, %s, %s" % (v(NN[u], 16), v(KV + 4 * sg, 4), v(PQ + 8 * u + 4 * sg, 4), v(NN[u], 16) if sg else "0"))
                for u in range(4):
                    N = NN[u]
                    b("v_add_f32 v%d, 0x358637bd, v%d" % (N + 8, N + 8)); b("v_rcp_f32 v%d, v%d" % (N + 8, N + 8))
                    for j in range(8): b("v_mul_f32 v%d, v%d, v%d" % (N + j, N + j, N + 8))
                    for j in range(4): b("v_cvt_pk_bf16_f32 v%d, v%d, v%d" % (A_PQ + 8 * u + 4 * (j >> 1) + 2 * hh + (j & 1), N + 2 * j, N + 2 * j + 1))
                    if hh:
                        b("s_mov_b32 s%d, %d" % (sT5, u * 147456))
                        for h2 in range(2): b("buffer_store_dwordx4 %s, v%d, %s, s%d offen offset:%d sc1" % (v(A_PQ + 8 * u + 4 * h2, 4), A_OS, srd(SWS), sT5, 512 * h2), "ost")
                P.extend(mprio(B, CFG["fprio"])); return
            b("s_mov_b32 exec_lo, 0xff000000"); b("s_mov_b32 exec_hi, 0xff000000")
            for j in range(8): b("v_mov_b32 v%d, 0x3f803f80" % (KV + j))
            b("s_mov_b64 exec, -1")
            buf = [A_LD + 32, A_LD]
            def mm(u):
                for sg in range(2): b("v_mfma_f32_32x32x16_bf16 %s, %s, %s, 0" % (v(buf[u & 1] + 16 * sg, 16), v(KV + 4 * sg, 4), v(PQ + 8 * u + 4 * sg, 4)))
            mm(0)
            for u in range(4):
                if u < 3: mm(u + 1)
                N = buf[u & 1]; Q = N + 16; O = PQ + 8 * u
                b("v_rcp_f32 v%d, v%d" % (N + 12, N + 12)); b("v_rcp_f32 v%d, v%d" % (Q + 12, Q + 12))
                b("v_fmaak_f32 v%d, v%d, v%d, 0x358637bd" % (N + 8, N + 8, N + 12)); b("v_fmac_f32 v%d, v%d, v%d" % (N + 8, Q + 8, Q + 12))
                b("v_rcp_f32 v%d, v%d" % (N + 8, N + 8))
                b("v_mul_f32 v%d, v%d, v%d" % (N + 12, N + 12, N + 8)); b("v_mul_f32 v%d, v%d, v%d" % (Q + 12, Q + 12, N + 8))
                for j in range(8): b("v_mul_f32 v%d, v%d, v%d" % (N + j, N + j, N + 12))
                for j in range(8): b("v_fmac_f32 v%d, v%d, v%d" % (N + j, Q + j, Q + 12))
                for j in range(4): b("v_cvt_pk_bf16_f32 v%d, v%d, v%d" % (A_PQ + 8 * u + 4 * (j >> 1) + 2 * hh + (j & 1), N + 2 * j, N + 2 * j + 1))
            P.extend(mprio(B, CFG["fprio"]))
        def stores(hh):
            for u in range(4):
                a("s_mov_b32 s%d, %d" % (sT5, u * 147456))
                a("buffer_store_dwordx4 %s, v%d, %s, s%d offen offset:%d sc1" % (v(A_PQ + 8 * u + 4 * hh, 4), A_OS, srd(SWS), sT5, 512 * hh), "ost")
        stamp(14)
        for hh in range(2): a(sload(SWS, sCC, 512 * hh + 128, sG + hh))
        for hh in range(2): sgate(P, sCC, 512 * hh + 128, sG + hh, 8)
        stamp(15)
        for hh in range(2):
            a("buffer_load_dwordx4 %s, v%d, %s, 0 offen offset:%d sc1" % (v(S + 4 * hh, 4), A_PL, srd(SWS), 2048 * hh))
            for sg in range(2): a("buffer_load_dwordx4 %s, v%d, %s, 0 offen offset:%d sc1" % (v(Z[hh] + 4 * sg, 4), A_ZL, srd(SWS), 256 * hh + 64 * sg))
        P.append(W(vm="all"))
        finish(0); finish(1)
        if not CFG["qnorm"]: stores(0); stores(1)
        stamp(16)
        P.append(W(vm=["ost"]))
        a("s_mov_b64 exec, 3"); a("buffer_atomic_add v%d, v%d, %s, 0 offen offset:%d sc1" % (A_ONE, A_CM, srd(SWS), C_O * 128)); a("s_mov_b64 exec, -1")
        stamp(17)
    if CFG["stamps"]:
        a("s_lshl_b32 s%d, s2, 8" % sT0); a("s_add_u32 s%d, s%d, %d" % (sT0, sT0, WS_ST + 0x30000))
        a("v_lshlrev_b32 v64, 2, v1")
        a("s_cmp_lg_u32 s%d, %d" % (sW1, CFG["stampw"] & 1)); a("s_cbranch_scc1 L_exit")
        a("buffer_store_dword v34, v64, %s, s%d offen" % (srd(SWS), sT0))
    a("s_endpgm")
    return P

def main():
    hdr = open("cdna_kernels/%s.s.ref" % NAME).read().split("; Override launch geometry")[0]
    out = [hdr.rstrip(), "; @launch grid=(256,1,1) block=(512,1,1) lds=163840",
           "; Written by gen/gen.py. One launch, 256 workgroups (one per CU), 8 waves each:",
           ";   waves 0-3  matrix work: rows centred in registers, [k v | q | gate up] products, then y = h W_down and s = o W_o",
           ";   waves 4-5  LDS-DMA stream of 16 KB slabs through a ring; progress words travel as small DMA loads behind the data",
           ";   waves 6-7  feature maps (true row maxima), phi_k^T v and its sums over the row tiles, o = num / den",
           "; h, o, partial sums and row scales pass between workgroups through d_ws: write-through stores, then a counter",
           "; that workgroup 0 zeroes at the start of every launch (d_debug[0] says when).",
           '.amdgcn_target "amdgcn-amd-amdhsa--gfx950"', ".text", ".globl %s_kernel" % NAME, ".p2align 8",
           ".type %s_kernel,@function" % NAME, "%s_kernel:" % NAME]
    t, st = finalize(prologue()); out += t
    import re
    norm = lambda t: re.sub(r"(L_[a-z]+)\d+", r"\1", t)
    for nm, fn in (("attn", attn_wave), ("dma", dma_wave), ("comp", compute)):
        t0 = finalize([I("s_cmp_eq_u32 s%d, 1" % sTY), I("s_cbranch_scc1 L_%s1" % nm)] + fn(0), st.clone())[0]
        t1 = finalize(fn(1), st.clone())[0]
        k = 0
        while CFG["share"] and norm(t0[-1 - k]) == norm(t1[-1 - k]): k += 1
        while k > 0:
            defs = lambda T: set(x[:-1] for x in T if x.endswith(":"))
            head = " ".join(t0[:len(t0) - k])
            if not any(re.search(r"\b%s\b" % d, head) for d in defs(t0[len(t0) - k:])) and not any(re.search(r"\b%s\b" % d, " ".join(t1[len(t1) - k:])) for d in defs(t1[:len(t1) - k])): break
            k -= 1
        if k > 50:
            t0 = t0[:len(t0) - k] + ["    s_branch L_%sj" % nm]; t1 = t1[:len(t1) - k] + ["L_%sj:" % nm] + t1[len(t1) - k:]
        out += ["L_%s:" % nm] + t0 + ["L_%s1:" % nm] + t1
    out += ([] if CFG["ceninl"] else centre_sub()) + STUBS
    out += lds_spin("c", 18, C_FV, CFG["cnap"]) + lds_spin("d", D_LA, D_DV, CFG["dnap"])
    out += ["L_exit:", "    s_endpgm", ".p2align 7", "L_tab:"] + ["    .long %d" % k for k in range(64)]
    out += ['.section .rodata,"a"', ".p2align 6", ".amdhsa_kernel %s_kernel" % NAME,
            "  .amdhsa_next_free_vgpr 256", "  .amdhsa_next_free_sgpr 100", "  .amdhsa_accum_offset 256",
            "  .amdhsa_group_segment_fixed_size 0", "  .amdhsa_kernarg_size 88", "  .amdhsa_user_sgpr_count 2",
            "  .amdhsa_user_sgpr_kernarg_segment_ptr 1", "  .amdhsa_system_sgpr_workgroup_id_x 1", ".end_amdhsa_kernel"]
    open(sys.argv[1], "w").write("\n".join(out) + "\n")
main()
```

```python
import sys, os, json
sys.path.insert(0, os.path.dirname(os.path.abspath(__file__)))
from asmir import I, W, L, M, v, s, finalize, State

NAME = "recurrent_scan__linear_kernel_hedgehog__glu_gated_bilinear__prompt"
CFG = dict(stamps=0, probe=0, probeat=-1, xprobe=0, outfl=" sc0 sc1", stampw=0, zoom=0, LA=7, LAF=3, erate=3, codepf=1, sleep=4, cnap=1, dnap=2, map=48, latin=1, bf={}, silu0=33, nocheck=0, skipB=[], skipA=[], stage=[], stagefake=0, putahead=3, jitter=0, pack=0, defer=3, nomark=[1, 3, 5, 7, 9, 11], pairs0=[6, 8, 10, 14, 16, 18], pairs1=[10, 12, 14], share=1, join=1, st2=12, wrat=3, stspread=0, qlate=0, ring2=[8, 9, 7, 0, 2, 3, 4, 5, 6], soft0=[], soft1=[], capsoft=48, zstep=1, bigring=0, bigto=20, cen0=32, dprio=0, hfl="sc1", cenat=4, nods=0, nost=0, noattn=0, light=0, nogate=[], qnorm=1, inl=0, tlb=0, tlbm=0xfffffff, s0at=2, kprio=0, qprio=0, fprio=0, wait2=1, kvfirst=1, l2nap=16, qpre=1, qpost=1, ftouch=0, fakeA=0, fakeP=0, dstep=2, fake16=0, lead=0, spoll=1, leadoff=0, who=[0, 2, 0, 2, 1, 3, 0, 2, 1], kpub=40, dry=0, aonly=0, map2=84, h2now=1, chk2=0,
           cap1=128, capt=160, cap2=112, capsw=20, awin=-1, pollat=2, hwait1=16, hwait2=-6, nb0=56, nb1=56, ahead2=4,
           bfirst=4, p2chk=1,
           rsat=66, exw0=[], exw1=[], afirst={},
           tplan0={"13": "m x"}, tplan1={"9": "m x"})
for a_ in sys.argv[2:]:
    k_, x_ = a_.split("="); assert k_ in CFG, k_; CFG[k_] = json.loads(x_)

WS_RS = 0x8000
WS_KV = 0x10000
WS_Z = 0x120000
WS_KVF = 0x130000; WS_ZF = 0x138000
WS_ST = 0x140000
WS_HO = 0x200000
WS_BYTES = WS_HO + 64 * 144 * 1024
C_H1A, C_H1B, C_H2, C_O = 0, 1, 2, 3
SLOT = 16384; STG = 32768; EX = 131072; FL = SLOT; LRS = FL + 2048; LSD = LRS + 512; F_INIT = 1792; LR2 = FL + 3072; LX = FL + 4096
F_LAND, F_DONE = 256, 768
F_EX, F_H, F_EXF, F_END = 32, 44, 52, 56
SX, SQKV, SPHI, SWO, SG, SU, SWD, SOUT, SDBG, SWS = 8, 12, 16, 20, 24, 28, 32, 36, 40, 44
sW, sW1, sI, sGR, sTY, sR1, sXR, sTT, sCT, sR2 = range(56, 66)
sT0, sT1, sT2, sT3, sT4, sT5 = range(66, 72)
sL2E = 72; sKC = 73; sSH = 74; sXL = 75; sKS = 76; sLA = 78; sXB = 79
sSPIN = 80; sRET = 82; sPH = 84; sTB = 88; sTM = 90; sMK = 94; sLM = 48; sLD = 49; sG = 50; sCC = 54; sPV = 55
srd = lambda b: s(b, 4)
LOG2E = 0x3fb8aa3b
XR = 128; ACC = 64; WF = 32
L_T, L_SEL, L_ID, L_SM, L_CM, L_SQ = 192, 224, 228, 232, 236, 240
L_XO, L_RR, L_C, L_SB, L_C7, L_WA, L_VA, L_VB = 124, 245, 246, 247, 248, 249, 251, 252
L_TR = 244
K_SQ, K_DL, K_RA = 16, 20, 24
H_STAMP = 255; H_STAMP2 = 254
_lbl = [0]
def newlbl():
    _lbl[0] += 1; return _lbl[0]
STUBS = []

PH = {0: [("P2", "kv", (0, 1)), ("P4", "gu", (2, 3, 0, 1)), ("P4", "gu", (0, 1, 2, 3))],
      1: [("P2", "q", (0, 1)), ("P2", "kv", (2, 3)), ("P4", "gu", (0, 1, 2, 3)), ("P2", "gu", (0, 1))]}
if CFG["kvfirst"]: PH[1][0:2] = [("P2", "kv", (0, 1)), ("P2", "q", (2, 3))]
if CFG["qlate"]: PH[1] = [("P2", "kv", (0, 1)), ("P4", "gu", (2, 3, 0, 1)), ("P2", "q", (0, 1)), ("P2", "gu", (2, 3))]
def slabs_of(ty):
    return [(pi, k, sg) for pi, (k, e, _) in enumerate(PH[ty]) for sg in range(8 if k == "P4" else 4)]
def slot_of(n):
    return (0, 2, 3, 4, 5, 6, 7)[n % 7]
NPK = CFG["pack"]; R2_ = CFG["ring2"]; LOC = {}
for n_ in range(20, 20 + NPK):
    LOC[(n_, "B")] = (R2_[(n_ - 20) // 2], n_ & 1); LOC[(n_, "A")] = (R2_[NPK // 2 + (n_ - 20) // 2], n_ & 1)
R3_ = R2_[NPK:] + [R2_[k + h * (NPK // 2)] for k in range(NPK // 2) for h in range(2)]
for n_ in range(20 + NPK, 56):
    LOC[(n_, "B")] = (R3_[(n_ - 20 - NPK) % 9], 0); LOC[(n_, "A")] = (R3_[(n_ - 20 - NPK) % 9], 1)
def prev_user(n, w="F"):
    mine = {(slot_of(n), 0), (slot_of(n), 1)} if n < 20 else {LOC[(n, x)] for x in ("AB" if w == "F" else w)}
    p = [m for m in range(n) if mine & ({(slot_of(m), 0), (slot_of(m), 1)} if m < 20 else {LOC[(m, "A")], LOC[(m, "B")]})]
    return p[-1] if p else -1
def marked(n): return (n not in CFG["nomark"]) if n < 20 else n % CFG["dstep"] == CFG["dstep"] - 1
def checks(ty):
    c = {0: 0, 1: 1}
    for n in range(2, CFG["nb%d" % ty], 2):
        if ((CFG["chk2"] or n in CFG["pairs%d" % ty]) if n < 20 else CFG["p2chk"] == 2): c[n] = n + 1
        else: c[n] = n; c[n + 1] = n + 1
    return c

def stamp_to(P, k, reg=H_STAMP):
    if CFG["stamps"]:
        P.append(I("s_memtime %s" % s(sTM + 2, 2))); P.append(W(lg="all"))
        P.append(I("s_sub_u32 s%d, s%d, s%d" % (sTM + 2, sTM + 2, sTM))); P.append(I("v_writelane_b32 v%d, s%d, %d" % (reg, sTM + 2, k)))
def rstamp(P, k):
    if CFG["stamps"]:
        P.append(I("s_memrealtime s[6:7]")); stamp_to(P, k, H_STAMP2)
        P.append(I("s_sub_u32 s6, s6, s4")); P.append(I("v_writelane_b32 v%d, s6, %d" % (H_STAMP2, k + 1)))
def jit(P, mask, prob=3):
    if not CFG["jitter"]: return
    n = newlbl()
    for t in ["    s_memtime s[98:99]", "    s_waitcnt lgkmcnt(0)", "    s_mul_i32 s98, s98, 0x9E3779B1", "    s_lshr_b32 s99, s98, 28", "    s_and_b32 s99, s99, %d" % prob,
              "    s_cmp_lg_u32 s99, 0", "    s_cbranch_scc1 L_je%d" % n, "    s_lshr_b32 s98, s98, 16", "    s_and_b32 s98, s98, %d" % mask, "L_jl%d:" % n, "    s_sleep 4",
              "    s_sub_u32 s98, s98, 1", "    s_cbranch_scc0 L_jl%d" % n, "L_je%d:" % n]: P.append(L(t))
def raw(P, items):
    for x in finalize(items)[0]: P.append(L(x))
def only(P, cond, items):
    n = newlbl()
    for t in cond: P.append(I(t))
    P.append(I("s_cbranch_scc1 L_sk%d" % n)); raw(P, items); P.append(L("L_sk%d:" % n))
def one_lane(X, t, tag=None):
    X.append(I("s_mov_b64 exec, 1")); X.append(I(t, tag)); X.append(I("s_mov_b64 exec, -1"))

def p4_voffs(a, va, vb, stride, t):
    a("v_lshrrev_b32 v%d, 3, v1" % t)
    a("v_and_b32 v%d, 2, v%d" % (t + 1, t)); a("v_lshlrev_b32 v%d, 1, v%d" % (t + 1, t + 1))
    a("v_and_b32 v%d, 7, v1" % (t + 2)); a("v_xor_b32 v%d, v%d, v%d" % (t + 2, t + 2, t + 1))
    a("v_mul_u32_u24 v%d, %d, v%d" % (t, stride, t))
    a("v_lshl_add_u32 v%d, v%d, 4, v%d" % (va, t + 2, t))
    a("v_xor_b32 v%d, 32, v%d" % (vb, va))
def p2_voffs(a, va, vb, stride, t):
    a("v_lshrrev_b32 v%d, 2, v1" % t)
    a("v_and_b32 v%d, 3, v1" % (t + 2)); a("v_lshrrev_b32 v%d, 4, v1" % (t + 1)); a("v_and_b32 v%d, 2, v%d" % (t + 1, t + 1)); a("v_xor_b32 v%d, v%d, v%d" % (t + 2, t + 2, t + 1))
    a("v_mul_u32_u24 v%d, %d, v%d" % (t, stride, t))
    a("v_lshl_add_u32 v%d, v%d, 4, v%d" % (va, t + 2, t))
    a("v_mov_b32 v%d, v%d" % (vb, va))
def ident(a, dst, t):
    a("v_and_b32 v%d, 3, v1" % t)
    a("v_and_b32 v%d, 1, v1" % (t + 1)); a("v_lshlrev_b32 v%d, 4, v%d" % (t + 1, t + 1)); a("v_mov_b32 v%d, 0x3f80" % (t + 2))
    a("v_lshlrev_b32 v%d, v%d, v%d" % (t + 1, t + 1, t + 2))
    a("v_cmp_gt_u32 vcc, 2, v%d" % t)
    a("v_cndmask_b32 v%d, 0, v%d, vcc" % (dst, t + 1)); a("v_sub_u32 v%d, v%d, v%d" % (dst + 1, t + 1, dst))

X_V = 48
def prologue():
    P = []; a = lambda t, tag=None: P.append(I(t, tag))
    a("s_cmp_ge_u32 s2, 256")
    a("s_cbranch_scc1 L_exit")
    a("s_load_dwordx2 %s, s[0:1], 0" % s(SX, 2)); a("s_load_dwordx2 %s, s[0:1], 8" % s(SQKV, 2))
    if CFG["probe"]: a("s_memrealtime s[4:5]")
    if CFG["light"]: a("s_memtime %s" % s(sTM, 2)); a("s_memrealtime s[4:5]")
    if CFG["stamps"]:
        a("s_memtime %s" % s(sTM, 2)); a("s_memrealtime s[4:5]")
    a("s_lshr_b32 s%d, s2, 3" % sSH)
    a("s_getpc_b64 %s" % s(sTB, 2)); P.append(L("L_pc:"))
    if CFG["codepf"]:
        a("s_mul_i32 s%d, s%d, 24" % (sT0, sSH))
        a("v_add_u32 v3, s%d, v0" % sT0); a("v_lshlrev_b32 v3, 7, v3"); a("v_min_u32 v3, L_tab-L_pc+252, v3")
        a("v_cmp_gt_u32 vcc, 24, v0"); a("s_and_saveexec_b64 s[48:49], vcc"); a("s_cbranch_execz L_nopf")
        P.append(L("    global_load_dword v%d, v3, %s" % (X_V + 5, s(sTB, 2))))
        P.append(L("L_nopf:")); a("s_mov_b64 exec, -1")
    a("v_lshrrev_b32 v2, 6, v0")
    a("v_and_b32 v1, 63, v0")
    a("v_readfirstlane_b32 s%d, v2" % sW)
    a("s_and_b32 s%d, s2, 7" % sT5)
    a("s_lshr_b32 s%d, s%d, 4" % (sTY, sSH))
    if CFG["map"] == 48:
        a("s_and_b32 s%d, s%d, 3" % (sT3, sSH)); a("s_lshl_b32 s%d, s%d, 1" % (sXR, sT3))
        a("s_lshr_b32 s%d, s%d, 1" % (sT2, sT5)); a("s_lshl_b32 s%d, s%d, 2" % (sT2, sT2)); a("s_add_u32 s%d, s%d, s%d" % (sI, sT2, sT3))
        a("s_lshr_b32 s%d, s%d, 2" % (sR1, sSH))
        a("s_and_b32 s%d, s%d, 1" % (sT2, sT5)); a("s_lshl_b32 s%d, s%d, 2" % (sT2, sT2)); a("s_and_b32 s%d, s%d, 3" % (sT3, sR1)); a("s_add_u32 s%d, s%d, s%d" % (sGR, sT2, sT3))
    else:
        a("s_and_b32 s%d, s%d, 7" % (sXR, sSH))
        a("s_lshr_b32 s%d, s%d, 2" % (sT2, sT5)); a("s_lshl_b32 s%d, s%d, 3" % (sT2, sT2)); a("s_add_u32 s%d, s%d, s%d" % (sI, sT2, sXR))
        a("s_lshr_b32 s%d, s%d, 3" % (sT3, sSH)); a("s_lshl_b32 s%d, s%d, 1" % (sR1, sT3))
        a("s_and_b32 s%d, s%d, 3" % (sT2, sT5)); a("s_lshl_b32 s%d, s%d, 1" % (sT2, sT2)); a("s_and_b32 s%d, s%d, 1" % (sT3, sT3)); a("s_add_u32 s%d, s%d, s%d" % (sGR, sT2, sT3))
    if CFG["latin"]: a("s_add_u32 s%d, s%d, s%d" % (sR1, sR1, sXR)); a("s_and_b32 s%d, s%d, 7" % (sR1, sR1))
    a("s_mov_b32 s%d, 2097152" % (SX + 2)); a("s_mov_b32 s%d, 0x20000" % (SX + 3))
    X = []; x = lambda t, tag=None: X.append(I(t, tag))
    x("v_lshrrev_b32 v4, 3, v1"); x("v_lshrrev_b32 v5, 4, v1"); x("v_and_b32 v6, 7, v1"); x("v_xor_b32 v5, v5, v6")
    x("v_lshlrev_b32 v4, 10, v4"); x("v_lshl_add_u32 v%d, v5, 4, v4" % X_V)
    x("v_xor_b32 v4, 64, v%d" % X_V)
    x("v_add_u32 v%d, 7168, v4" % (X_V + 1)); x("v_add_u32 v%d, 14336, v%d" % (X_V + 2, X_V)); x("v_add_u32 v%d, 21504, v4" % (X_V + 3))
    x("s_and_b32 s%d, s%d, 3" % (sT0, sW)); x("s_lshl_b32 s%d, s%d, 12" % (sXL, sT0)); x("s_add_u32 s%d, s%d, %d" % (sXL, sXL, STG))
    x("s_lshl_b32 s%d, s%d, 15" % (sT0, sT0)); x("s_lshl_b32 s%d, s%d, 17" % (sXB, sI)); x("s_add_u32 s%d, s%d, s%d" % (sXB, sXB, sT0))
    x("s_cmp_lt_u32 s%d, 4" % sW); x("s_cbranch_scc1 L_nox")
    x("s_waitcnt lgkmcnt(0)")
    xline(x, 0); xline(x, 1)
    raw(P, X); P.append(L("L_nox:"))
    if CFG["stamps"]:
        a("v_mov_b32 v%d, 0" % H_STAMP); a("v_mov_b32 v%d, 0" % H_STAMP2); P.append(W(lg="all"))
    stamp_to(P, 0, H_STAMP2)
    for b, off in ((SPHI, 16), (SWS, 80), (SG, 40), (SU, 48), (SWO, 24), (SWD, 56), (SOUT, 64), (SDBG, 72)):
        a("s_load_dwordx2 %s, s[0:1], %d" % (s(b, 2), off))
    for b, n in ((SQKV, 1572864), (SPHI, 16384), (SWO, 524288), (SG, 1835008), (SU, 1835008), (SWD, 1835008), (SOUT, 2097152), (SDBG, 256), (SWS, WS_BYTES)):
        a("s_mov_b32 s%d, %d" % (b + 2, n)); a("s_mov_b32 s%d, 0x20000" % (b + 3))
    a("s_lshl_b32 s%d, s%d, 7" % (sKC, sGR)); a("s_lshl_b32 s%d, s%d, 6" % (sT0, sTY)); a("s_add_u32 s%d, s%d, s%d" % (sKC, sKC, sT0)); a("s_add_u32 s%d, s%d, 1024" % (sKC, sKC))
    if CFG["map2"] == 48:
        a("s_lshr_b32 s%d, s%d, 2" % (sCT, sSH)); a("s_and_b32 s%d, s%d, 3" % (sT3, sSH))
        a("s_lshl_b32 s%d, s%d, 2" % (sT2, sT5)); a("s_add_u32 s%d, s%d, s%d" % (sTT, sT2, sT3))
        a("s_lshl_b32 s%d, s%d, 1" % (sT3, sT3)); a("s_add_u32 s%d, s%d, s%d" % (sR2, sT3, sCT))
    else:
        a("s_lshr_b32 s%d, s%d, 3" % (sT3, sSH)); a("s_and_b32 s%d, s%d, 1" % (sT2, sT5)); a("s_lshl_b32 s%d, s%d, 2" % (sT2, sT2)); a("s_add_u32 s%d, s%d, s%d" % (sCT, sT2, sT3))
        a("s_and_b32 s%d, s%d, 7" % (sT1, sSH)); a("s_lshr_b32 s%d, s%d, 1" % (sT2, sT5)); a("s_lshl_b32 s%d, s%d, 3" % (sT2, sT2)); a("s_add_u32 s%d, s%d, s%d" % (sTT, sT2, sT1))
        a("s_and_b32 s%d, s%d, 1" % (sT3, sT3)); a("s_lshl_b32 s%d, s%d, 1" % (sT3, sT3)); a("s_add_u32 s%d, s%d, s%d" % (sT3, sT3, sTY))
        if CFG["lead"]: a("s_mov_b32 s%d, s%d" % (sLD, sT3)); a("s_mov_b32 s%d, s%d" % (sR2, sT1))
        else: a("s_lshl_b32 s%d, s%d, 1" % (sT3, sT3)); a("s_add_u32 s%d, s%d, s%d" % (sR2, sT3, sT1))
    a("s_and_b32 s%d, s%d, 1" % (sW1, sW))
    a("s_mov_b32 s%d, 0x%x" % (sL2E, LOG2E))
    a("s_add_u32 s%d, s%d, L_tab-L_pc" % (sTB, sTB)); a("s_addc_u32 s%d, s%d, 0" % (sTB + 1, sTB + 1))
    P.append(W(lg="all"))
    jit(P, 63)
    a("s_cmp_lt_u32 s%d, 4" % sW); a("s_cbranch_scc1 L_comp")
    a("s_cmp_lt_u32 s%d, 6" % sW); a("s_cbranch_scc1 L_dma")
    return P

def xline(a, j):
    a("s_add_u32 s%d, s%d, %d" % (sT0, sR1, j)); a("s_and_b32 s%d, s%d, 7" % (sT0, sT0)); a("s_lshl_b32 s%d, s%d, 7" % (sT0, sT0)); a("s_add_u32 s%d, s%d, s%d" % (sT0, sT0, sXB))
    a("s_add_u32 m0, s%d, %d" % (sXL, j * 16384))
    for p in range(4): a("buffer_load_dwordx4 v%d, %s, s%d offen offset:%d lds" % (X_V + p, srd(SX), sT0, p * 1024), ("x", j))
def xstages(P, extra):
    a = lambda t, tag=None: P.append(I(t, tag))
    xline(a, 2); xline(a, 3)
    for j in range(4):
        P.append(W(vm=[("x", 2 * j + 1)]))
        a("s_barrier")
        if j == 0: stamp_to(P, 2, H_STAMP2)
        if j < 2: xline(a, 2 * j + 4); xline(a, 2 * j + 5)
        if j in extra: extra[j]()

def fcols(a, ty):
    if ty == 0:
        a("s_lshl_b32 s%d, s%d, 7" % (sKS, sGR)); a("s_add_u32 s%d, s%d, 64" % (sKS + 1, sKS))
    else:
        a("s_mul_i32 s%d, s%d, 96" % (sT0, sGR)); a("s_add_u32 s%d, s%d, 1024" % (sT0, sT0))
        a("s_and_b32 s%d, s%d, 1" % (sT1, sGR)); a("s_lshl_b32 s%d, s%d, 5" % (sT2, sT1))
        a("s_add_u32 s%d, s%d, s%d" % (sKS, sT0, sT2))
        a("s_xor_b32 s%d, s%d, 1" % (sT1, sT1)); a("s_lshl_b32 s%d, s%d, 6" % (sT1, sT1))
        a("s_add_u32 s%d, s%d, s%d" % (sKS + 1, sT0, sT1))

def clear_low(a, used):
    for k in range(2, 64):
        if k not in used: a("v_mov_b32 v%d, 0" % k)

def lds_spin(nm, va, vd, nap):
    X = ["L_spin_%s:" % nm, "    s_mov_b32 s%d, 0" % sSPIN, "L_spl_%s:" % nm]
    if nap: X.append("    s_sleep %d" % nap)
    X += ["    ds_read_b32 v%d, v%d" % (vd, va), "    s_add_u32 s%d, s%d, 1" % (sSPIN, sSPIN), "    s_waitcnt lgkmcnt(0)",
          "    s_cmp_ge_u32 s%d, 0x1000000" % sSPIN, "    s_cbranch_scc1 L_spr_%s" % nm,
          "    v_cmp_gt_u32 vcc, s%d, v%d" % (sSPIN + 1, vd), "    s_cbranch_vccnz L_spl_%s" % nm, "L_spr_%s:" % nm, "    s_setpc_b64 %s" % s(sRET, 2)]
    return X
def count_wait(P, vfl, vd, off, want):
    n = newlbl()
    P.append(W(lg="all"))
    for t in ["    s_mov_b32 s%d, 0" % sSPIN, "L_cw%d:" % n, "    ds_read_b32 v%d, v%d offset:%d" % (vd, vfl, off), "    s_add_u32 s%d, s%d, 1" % (sSPIN, sSPIN),
              "    s_waitcnt lgkmcnt(0)", "    v_cmp_le_u32 vcc, %d, v%d" % (want, vd), "    s_cbranch_vccnz L_cx%d" % n, "    s_sleep %d" % CFG["dnap"],
              "    s_cmp_lt_u32 s%d, 0x1000000" % sSPIN, "    s_cbranch_scc1 L_cw%d" % n, "L_cx%d:" % n]: P.append(L(t))

def sload(base, soff, off, sdst):
    return "s_load_dword s%d, %s, %s glc" % (sdst, s(base, 2), ("s%d offset:%d" % (soff, off)) if soff is not None else "%d" % off)
def sgate(P, soff, off, sdst, want, base=None):
    n = newlbl()
    P.append(W(lg="all"))
    P.append(I("s_cmp_eq_u32 s%d, %d" % (sdst, want))); P.append(I("s_cbranch_scc1 L_ok%d" % n))
    X = ["    s_mov_b32 s%d, 0" % sSPIN, "L_spin%d:" % n]
    if CFG["sleep"]: X.append("    s_sleep %d" % CFG["sleep"])
    X += ["    " + sload(SWS if base is None else base, soff, off, sdst), "    s_add_u32 s%d, s%d, 1" % (sSPIN, sSPIN),
          "    s_waitcnt lgkmcnt(0)", "    s_cmp_eq_u32 s%d, %d" % (sdst, want), "    s_cbranch_scc1 L_ok%d" % n,
          "    s_cmp_lt_u32 s%d, 0x80000" % sSPIN, "    s_cbranch_scc1 L_spin%d" % n, "L_ok%d:" % n]
    for t in X: P.append(L(t))

def gate(P, vaddr, srdb, off, tag, vdst, want, slow=None):
    n = newlbl()
    P.append(W(lg=[tag]) if tag == "init" else W(vm=[tag]))
    P.append(I("v_cmp_eq_u32 vcc, %d, v%d" % (want, vdst)))
    P.append(I("s_cbranch_vccnz L_ok%d" % n))
    if slow: raw(P, slow)
    X = ["    s_mov_b32 s%d, 0" % sSPIN, "L_spin%d:" % n]
    if CFG["sleep"]: X.append("    s_sleep %d" % CFG["sleep"])
    X += ["    buffer_load_dword v%d, v%d, %s, 0 offen offset:%d sc1" % (vdst, vaddr, srd(srdb), off), "    s_add_u32 s%d, s%d, 1" % (sSPIN, sSPIN),
          "    s_waitcnt vmcnt(0)", "    v_cmp_eq_u32 vcc, %d, v%d" % (want, vdst), "    s_cbranch_vccnz L_ok%d" % n,
          "    s_cmp_lt_u32 s%d, 0x80000" % sSPIN, "    s_cbranch_scc1 L_spin%d" % n, "L_ok%d:" % n]
    for t in X: P.append(L(t))

C_XA, N_ONES, N_SQ = ACC + 16, ACC + 20, ACC + 24
N_T, N_CM, N_ID, N_R, N_DL, N_TK = ACC + 32, ACC + 48, ACC + 56, ACC + 58, ACC + 62, ACC + 63
C_A2, C_B2, C_OUT, C_RO = 25, 28, 31, 0
C_FV, C_HC, C_FL, C_ONE, C_DV, C_CM = 16, 20, 21, 22, 23, 24
MM = "v_mfma_f32_16x16x32_bf16"
def compute_setup(ty):
    P = []; a = lambda t, tag=None: P.append(I(t, tag))
    t = list(range(32, 48))
    tk, G, r, c, g0, g1 = t[0:6]
    a("v_and_b32 v%d, 15, v1" % tk); a("v_lshrrev_b32 v%d, 4, v1" % G); a("v_and_b32 v%d, 1, v%d" % (g0, G)); a("v_lshrrev_b32 v%d, 5, v1" % g1)
    a("s_lshl_b32 s%d, s%d, 12" % (sT1, sW)); a("s_add_u32 s%d, s%d, %d" % (sT1, sT1, STG))
    a("v_lshlrev_b32 v%d, 7, v%d" % (t[6], tk)); a("v_add_u32 v%d, s%d, v%d" % (t[7], sT1, t[6]))
    a("v_lshrrev_b32 v%d, 1, v%d" % (t[8], tk)); a("v_xor_b32 v%d, v%d, v%d" % (t[8], t[8], G))
    a("v_lshl_add_u32 v%d, v%d, 4, v%d" % (C_XA, t[8], t[7])); a("v_xor_b32 v%d, 64, v%d" % (C_XA + 1, C_XA))
    for k in range(2): a("v_add_u32 v%d, 0x10000, v%d" % (C_XA + 2 + k, C_XA + k)); a("v_mov_b32 v%d, 0x3f803f80" % (N_ONES + k))
    ident(a, N_ID, t[13])
    for j in range(3): a("v_cmp_eq_u32 %s, %d, v%d" % (s(sMK + 2 * j, 2), j + 1, t[13]))
    a("v_mov_b32 v%d, %d" % (C_FL, FL)); a("v_mov_b32 v%d, 1" % C_ONE); a("s_lshl_b32 s%d, s%d, 1" % (sT4, sI)); a("s_lshr_b32 s%d, s%d, 1" % (sT3, sW)); a("s_add_u32 s%d, s%d, s%d" % (sT4, sT4, sT3))
    a("s_lshl_b32 s%d, s%d, 9" % (sT4, sT4)); a("v_mov_b32 v%d, s%d" % (C_CM, sT4))
    a("v_and_b32 v18, 1, v1"); a("v_lshlrev_b32 v18, 8, v18"); a("v_add_u32 v18, %d, v18" % (FL + F_LAND))
    a("s_lshl_b32 s%d, s%d, 8" % (sT4, sW)); a("s_add_u32 m0, s%d, %d" % (sT4, FL + F_DONE))
    a("s_lshl_b32 s%d, s%d, 5" % (sT4, sW)); a("v_and_b32 v%d, 31, v1" % N_TK); a("v_add_u32 v%d, s%d, v%d" % (N_TK, sT4, N_TK))
    a("v_bfe_u32 v%d, v1, 2, 2" % r); a("v_and_b32 v%d, 3, v1" % c); a("v_lshlrev_b32 v%d, 3, v%d" % (c, c))
    a("v_lshl_add_u32 v%d, v%d, 11, v%d" % (t[8], G, c)); a("v_lshl_add_u32 v%d, v%d, 7, v%d" % (t[8], r, t[8]))
    a("v_and_b32 v%d, 2, v%d" % (t[9], r)); a("v_xor_b32 v%d, v%d, v%d" % (t[9], t[9], g0))
    a("v_lshl_add_u32 v2, v%d, 5, v%d" % (t[9], t[8]))
    for k in range(1, 4): a("v_xor_b32 v%d, %d, v2" % (2 + k, 32 * k))
    for k in range(4): a("v_add_u32 v%d, 0x10000, v%d" % (6 + k, 2 + k))
    a("v_lshl_add_u32 v%d, v%d, 11, v%d" % (t[8], g1, c)); a("v_lshl_add_u32 v%d, v%d, 6, v%d" % (t[8], r, t[8]))
    a("v_mul_u32_u24 v%d, 544, v%d" % (t[9], g0)); a("v_add_u32 v10, v%d, v%d" % (t[8], t[9])); a("v_xor_b32 v11, 32, v10")
    for k in range(2): a("v_add_u32 v%d, 0x10000, v%d" % (12 + k, 10 + k))
    a("s_lshl_b32 s%d, s%d, 13" % (sT0, sW)); a("s_add_u32 s%d, s%d, %d" % (sT0, sT0, EX))
    a("v_lshlrev_b32 v15, 9, v%d" % g0); a("v_lshl_add_u32 v15, v%d, 4, v15" % tk); a("v_lshl_add_u32 v15, v%d, 3, v15" % g1); a("v_add_u32 v15, s%d, v15" % sT0)
    a("v_lshlrev_b32 v%d, 4, v1" % t[11])
    a("s_lshl_b32 s%d, s%d, 2" % (sT0, sI)); a("s_add_u32 s%d, s%d, s%d" % (sT0, sT0, sW)); a("s_mul_i32 s%d, s%d, %d" % (sT0, sT0, 147456))
    a("s_add_u32 s%d, s%d, %d" % (sT0, sT0, WS_HO)); a("v_add_u32 v14, s%d, v%d" % (sT0, t[11]))
    fcols(a, ty)
    a("s_lshl_b32 s%d, s%d, 6" % (sKS, sKS)); a("s_lshl_b32 s%d, s%d, 6" % (sKS + 1, sKS + 1))
    a("s_lshr_b32 s%d, s%d, 1" % (sT0, sW))
    a("s_lshl_b32 s%d, s%d, 13" % (sT2, sT0))
    a("v_add_u32 v%d, s%d, v%d" % (C_A2, sT2, t[11])); a("v_add_u32 v%d, 0x10000, v%d" % (C_A2 + 1, C_A2)); a("v_add_u32 v%d, 0x20000, v%d" % (C_A2 + 2, C_A2))
    u = t[12]
    a("v_bfe_u32 v%d, v1, 3, 2" % u); a("s_lshl_b32 s%d, s%d, 1" % (sT4, sW1)); a("v_xor_b32 v%d, s%d, v%d" % (u, sT4, u)); a("v_lshl_add_u32 v%d, v%d, 5, v%d" % (C_B2, u, c))
    a("v_lshrrev_b32 v%d, 2, v1" % u); a("v_lshl_add_u32 v%d, v%d, 7, v%d" % (C_B2, u, C_B2))
    a("v_add_u32 v%d, 0x10000, v%d" % (C_B2 + 1, C_B2)); a("v_add_u32 v%d, 0x20000, v%d" % (C_B2 + 2, C_B2))
    a("s_lshl_b32 s%d, s%d, 5" % (sT3, sT0)); a("v_add_u32 v%d, s%d, v%d" % (u, sT3, tk)); a("v_lshlrev_b32 v%d, 2, v%d" % (C_RO, u))
    a("s_lshl_b32 s%d, s%d, 6" % (sT4, sW1))
    a("v_lshlrev_b32 v17, 7, v%d" % u); a("v_lshl_add_u32 v17, v%d, 3, v17" % G); a("v_add_u32 v17, s%d, v17" % sT4)
    a("s_lshl_b32 s%d, s%d, 16" % (sT2, sTT)); a("s_lshl_b32 s%d, s%d, 7" % (sT3, sCT)); a("s_add_u32 s%d, s%d, s%d" % (sT3, sT3, sT4)); a("s_add_u32 s%d, s%d, s%d" % (sT3, sT3, sT2))
    a("v_lshlrev_b32 v%d, 10, v%d" % (u, u)); a("v_lshl_add_u32 v%d, v%d, 5, v%d" % (u, g0, u)); a("v_lshl_add_u32 v%d, v%d, 4, v%d" % (u, g1, u)); a("v_add_u32 v%d, s%d, v%d" % (C_OUT, sT3, u))
    return P

def centre(a, k0, k1):
    def cen(k, h): a("v_mfma_f32_4x4x4_16b_bf16 %s, %s, %s, %s" % (v(N_T + 8 * (k & 1) + 4 * h, 4), v(N_ID, 2), v(XR + 4 * k + 2 * h, 2), v(N_CM + 4 * (k & 1), 4)))
    cen(k0, 0); cen(k0, 1); cen(k0 + 1, 0)
    for k in range(k0, k1):
        for h in range(2):
            kn, hn = k + (h + 3) // 2, (h + 3) & 1
            if kn < k1: cen(kn, hn)
            for j in (2 * h, 2 * h + 1): a("v_cvt_pk_bf16_f32 v%d, v%d, v%d" % (XR + 4 * k + j, N_T + 8 * (k & 1) + 2 * j, N_T + 8 * (k & 1) + 2 * j + 1))
def centre_sub():
    P = []; centre(lambda t: P.append(I(t)), 0, 24); P.append(I("s_setpc_b64 %s" % s(sRET, 2)))
    return ["L_centre:"] + finalize(P)[0]
def fold4(x, p, q):
    x("v_permlane16_swap_b32 v%d, v%d" % (p, q)); x("v_add_f32 v%d, v%d, v%d" % (p, p, q))
    x("v_mov_b32 v%d, v%d" % (q, p)); x("v_permlane32_swap_b32 v%d, v%d" % (p, q)); x("v_add_f32 v%d, v%d, v%d" % (p, p, q))

def compute(ty):
    P = compute_setup(ty); a = lambda t, tag=None: P.append(I(t, tag))
    CH = checks(ty)
    ops = []; queue = []
    sl = slabs_of(ty); gu_seen = 0; ex_seen = 0
    firstuse = {}; epi = []; late_w = []
    def pair(acc, fa, fb2, zero):
        return ["%s %s, %s, %s, %s" % (MM, v(acc + 4 * h, 4), v(fa, 4), v(fb2 + 4 * h, 4), "0" if zero else v(acc + 4 * h, 4)) for h in range(2)]
    for n, (pi, kind, sg) in enumerate(sl):
        e, tiles = PH[ty][pi][1:]
        order = tiles if sg == 0 else sorted(tiles)
        nk = 2 if kind == "P4" else 4
        last = sg == (7 if kind == "P4" else 3)
        jn = CFG["join"] if kind == "P4" else 1
        if sg > 7 - jn and not last: continue
        for t in order:
            if sg == 0: firstuse[(pi, t)] = len(ops)
            for back in (range(jn - 1, -1, -1) if last else (0,)):
                slot = slot_of(n - back); win = slot >> 2; base = (slot & 3) * SLOT
                for u in range(nk):
                    for mat in range(2):
                        m = len(ops); fb = WF + 4 * (m & 7)
                        if kind == "P4": ar, off, dq = 2 + 4 * win + t, base + u * 8192 + mat * 1024, 512
                        else: ar, off, dq = 10 + 2 * win + (t & 1), base + u * 4096 + mat * 1024, 256
                        ops.append(dict(slab=n - back, reads=[("ds_read_b64_tr_b16 %s, v%d offset:%d" % (v(fb, 2), ar, off), ("f", m)),
                                                              ("ds_read_b64_tr_b16 %s, v%d offset:%d" % (v(fb + 2, 2), ar, off + dq), ("f", m))],
                                        la=CFG["LA"], mfma=pair(ACC + 16 * t + 8 * mat, fb, XR + 8 * ((sg - back) * nk + u), sg == 0 and u == 0)))
            if last:
                A = ACC + 16 * t; E = []; hold = [t]
                if e == "gu":
                    D = ACC + 16 * (t & ~1) + 8; hold = [t, t & ~1]
                    for j in range(8): E.append(I("v_mul_f32 v%d, v%d, v%d" % (A + j, A + j, A + j + 8)))
                    for j in range(4):
                        E.append(I("v_cvt_pk_bf16_f32 v%d, v%d, v%d" % (D + 4 * (j >> 1) + 2 * (t & 1) + (j & 1), A + 2 * j, A + 2 * j + 1)))
                        if t & 1 and j & 1:
                            E.append(I("buffer_store_dwordx4 %s, v14, %s, s%d offen offset:%d %s" % (v(D + 4 * (j >> 1), 4), srd(SWS), sKS + gu_seen, ((t - 1 if kind == "P4" else 0) + (j >> 1)) * 1024, CFG["hfl"]), ("h", gu_seen)))
                else:
                    for j in range(4):
                        for k in range(2): E.append(I("v_cvt_pk_bf16_f32 v%d, v%d, v%d" % (A + 4 * j + k, A + 4 * j + 2 * k, A + 4 * j + 2 * k + 1)))
                        E.append(I("ds_write_b64 v15, %s offset:%d" % (v(A + 4 * j, 2), ((t & 1) + 2 * (e == "q")) * 2048 + (j >> 1) * 1024 + (j & 1) * 256)))
                    if t == order[-1]:
                        g = []; one_lane(g, "ds_add_u32 v%d, v%d offset:%d" % (C_FL, C_ONE, F_EX + 4 * ex_seen)); E.append(g); ex_seen += 1
                if CFG["nods"]: E = [x_ for x_ in E if not (isinstance(x_, I) and x_.t.startswith("ds_write"))]
                if CFG["nost"]: E = [(M(x_.tag) if isinstance(x_, I) and x_.t.startswith("buffer_store") else x_) for x_ in E]
                if CFG["stspread"] and e == "gu" and t & 1:
                    st_ = [x_ for x_ in E if isinstance(x_, I) and x_.t.startswith("buffer_store")]
                    nst = 4 if kind == "P4" else 2; endp = (len(ops) + 15) // 16 * 16
                    for q_, x_ in enumerate(st_):
                        idx = (t - 1 if kind == "P4" else 0) + q_
                        if idx < nst - 1: E.remove(x_); epi.append((endp + 4 - (nst - 1 - idx) * CFG["stspread"], 99, [], [x_]))
                if CFG["wrat"] >= 0 and e != "gu":
                    wr = [x_ for x_ in E if not (isinstance(x_, I) and x_.t.startswith("v_"))]
                    E = [x_ for x_ in E if x_ not in wr]
                    late_w.append(((len(ops) + 15) // 16 * 16 + CFG["wrat"], pi, hold, [sum([x_ if isinstance(x_, list) else [x_] for x_ in wr], [])]))
                if e == "gu" and t == 1 and jn > 1: late_w.append((len(ops) + CFG["st2"], pi, hold, [E.pop()]))
                epi.append((len(ops), pi, hold, E))
        if last and e == "gu":
            kind_ = (C_H1B if ty else C_H1A) if gu_seen == 0 else C_H2
            g1 = [W(vm=[("h", gu_seen)])]; one_lane(g1, "buffer_atomic_add v%d, v%d, %s, 0 offen offset:%d sc1" % (C_ONE, C_CM, srd(SWS), kind_ * 128))
            epi.append((len(ops) + 6 + CFG["hwait1" if gu_seen == 0 else "hwait2"], 99, [], [g1]))
            gu_seen += 1
    n1 = len(ops)
    HB = XR; RES = XR + 32; R2 = XR + 40
    Y, S_ = XR + 48, XR + 64
    for n in range(20, 56):
        (sb_, hb_), (sa_, ha_) = LOC[(n, "B")], LOC[(n, "A")]
        win = sb_ >> 2; base = (sb_ & 3) * SLOT + hb_ * 2048; wina = sa_ >> 2; basea = (sa_ & 3) * SLOT + ha_ * 2048
        for kk in range(4):
            u, nb = kk >> 1, kk & 1
            m = len(ops); fb = WF + 4 * (m & 7); hb = HB + 8 * ((m >> 1) & 3); br = (2 if nb else C_B2) + win
            blk = (lambda q: 2 * u + q) if n < 48 else (lambda q: u + 2 * q)
            rd = [("ds_read_b64_tr_b16 %s, v%d offset:%d" % (v(fb + 2 * q, 2), br, base + blk(q) * 4096), ("f", m)) for q in range(2)]
            if not nb: rd += [("ds_read_b128 %s, v%d offset:%d" % (v(hb + 4 * h, 4), C_A2 + wina, basea + u * 4096 + h * 1024), ("f", m)) for h in range(2)]
            ops.append(dict(slab=n, reads=rd, la=kk + 1 if n == 20 or (n == 48 and CFG["silu0"]) else 4, mfma=pair((Y if n < 48 else S_) + 8 * nb, fb, hb, n in (20, 48) and u == 0)))
    for k in range(3): queue.append((n1 - 3, n1 - 1, I("v_xor_b32 v%d, 32, v%d" % (2 + k, C_B2 + k))))
    X = []; x = lambda t: X.append(I(t)); r = N_R
    fold4(x, r, r + 1)
    x("v_mul_f32 v%d, 0x3b000000, v%d" % (r, r)); x("v_fma_f32 v%d, -v%d, v%d, v%d" % (r, N_DL, N_DL, r)); x("v_max_f32 v%d, 0, v%d" % (r, r))
    def rnd(): x("v_cvt_pk_bf16_f32 v%d, v%d, v%d" % (r + 1, r, r)); x("v_and_b32 v%d, 0xffff0000, v%d" % (r, r + 1))
    rnd(); x("v_add_f32 v%d, 0x3727c5ac, v%d" % (r, r)); rnd(); x("v_sqrt_f32 v%d, v%d" % (r, r)); rnd()
    x("v_rcp_f32 v%d, v%d" % (r, r))
    x("v_lshl_add_u32 v%d, v%d, 1, v%d" % (r + 2, N_TK, C_FL)); x("v_lshl_add_u32 v%d, v%d, 2, v%d" % (r + 3, N_TK, C_FL))
    x("ds_write_b16 v%d, v%d offset:%d" % (r + 2, r + 1, LSD - FL)); x("ds_write_b32 v%d, v%d offset:%d" % (r + 3, r, LRS - FL))
    for j, it in enumerate(X[:-2]): queue.append((12 + j, 50, it))
    for it in X[-2:]:
        if not CFG["nods"]: queue.append((CFG["rsat"], 67, it))
    if ty == 0:
        g = []
        only(g, ["s_cmp_lg_u32 s%d, 0" % sGR], [I("s_lshl_b32 s%d, s%d, 9" % (sT4, sI)), I("s_add_u32 s%d, s%d, %d" % (sT4, sT4, WS_RS - FL)), I("s_mov_b32 exec_hi, 0"),
                                               I("buffer_store_dword v%d, v%d, %s, s%d offen sc1" % (r, r + 3, srd(SWS), sT4)), I("s_mov_b64 exec, -1")])
        queue.append((46, 60, g))
    queue.append((94, 96, I("ds_read_b32 v%d, v%d offset:%d" % (C_HC, C_FL, F_INIT), "init")))
    g = []; gate(g, C_DV, SDBG, 0, "init", C_HC, 1, slow=[I("v_mov_b32 v%d, 0" % C_DV)]); queue.append((100, 102, g))
    for e0, pi, hold, E in epi + late_w:
        dl = min([x_ for (p2, t2), x_ in firstuse.items() if p2 > pi and t2 in hold] + [10 ** 9]) - 1
        for it in E: queue.append((e0, dl, it))
    G = XR + 80; XF = XR + 96; E = []
    for j in range(4): E.append(I("ds_read_b64 %s, v17 offset:%d" % (v(RES + 2 * j, 2), LX + (j >> 1) * 32 + (j & 1) * 2048), "res"))
    for h in range(2): E.append(I("ds_read_b32 v%d, v%d offset:%d" % (R2 + h, C_RO, LR2 + 64 * h), "res"))
    for j, it in enumerate(E): queue.append((n1 + 21 * 4 + j, 10 ** 9, it))
    E = [W(lg=["res"])]
    for h in range(2): E.append(I("v_mul_f32 v%d, v%d, v%d" % (R2 + h, R2 + h, R2 + h)))
    for h in range(2): E.append(I("v_mul_f32 v%d, s%d, v%d" % (R2 + 2 + h, sL2E, R2 + h)))
    for j in range(8):
        E.append(I("v_lshlrev_b32 v%d, 16, v%d" % (XF + 2 * j, RES + j))); E.append(I("v_and_b32 v%d, 0xffff0000, v%d" % (XF + 2 * j + 1, RES + j)))
    for it in E: queue.append((n1 + 24 * 4, 10 ** 9, it))
    E = []
    for j in range(16): E.append(I("v_mul_f32 v%d, v%d, v%d" % (G + j, R2 + 2 + ((j >> 2) & 1), Y + j)))
    for j in range(16): E.append(I("v_exp_f32 v%d, -v%d" % (G + j, G + j)))
    for j in range(16): E.append(I("v_mul_f32 v%d, v%d, v%d" % (Y + j, R2 + ((j >> 2) & 1), Y + j)))
    for j in range(16): E.append(I("v_add_f32 v%d, 1.0, v%d" % (G + j, G + j)))
    for j in range(16): E.append(I("v_rcp_f32 v%d, v%d" % (G + j, G + j)))
    for j in range(16): E.append(I("v_mul_f32 v%d, v%d, v%d" % (G + j, G + j, Y + j)))
    for it in E: queue.append((n1 + 28 * 4 + 1, 10 ** 9, it))
    queue.sort(key=lambda x_: x_[0])
    first = {}
    lastop = {}
    for m, o in enumerate(ops): first.setdefault(o["slab"], m); lastop[o["slab"]] = m
    fread = {first[n] - ops[first[n]]["la"] - (CFG["LAF"] if n <= 20 else 3): n for n in CH if n}
    lastdone = max(prev_user(n) for n in range(56))
    def done(n):
        a("v_mov_b32 v%d, %d" % (C_DV, 4 * (n + 1))); a("global_load_lds_dword v%d, %s" % (C_DV, s(sTB, 2)))
    issued = 0; cur = -1
    def issue_reads(upto_fn):
        nonlocal issued, cur
        while issued < len(ops) and upto_fn(issued):
            o = ops[issued]
            if o["slab"] > cur:
                cur = o["slab"]
                if cur in CH and not (CFG["nocheck"] and cur >= 20):
                    lb = newlbl()
                    if cur >= CFG["inl"] or cur < 2:
                        a("s_cbranch_vccz L_cb%d" % lb)
                        raw(P, [I("s_movk_i32 s%d, %d" % (sSPIN + 1, CH[cur] + 1)), I("s_call_b64 %s, L_spin_c" % s(sRET, 2))]); P.append(L("L_cb%d:" % lb))
                    else:
                        a("s_cbranch_vccnz L_cs%d" % lb); P.append(L("L_cb%d:" % lb))
                        STUBS.extend(["L_cs%d:" % lb, "    s_movk_i32 s%d, %d" % (sSPIN + 1, CH[cur] + 1),
                                  "    s_call_b64 %s, L_spin_c" % s(sRET, 2), "    s_branch L_cb%d" % lb])
            for t, tag in o["reads"]: a(t, tag)
            issued += 1
    def cstamp(k):
        r = sPH + 2 * (k & 1)
        if k > 2:
            a("s_sub_u32 s%d, s%d, s%d" % (r, r, sTM)); a("v_writelane_b32 v19, s%d, %d" % (r, k - 2))
        P.append(L("    s_memtime %s" % s(r, 2)))
    SM = ACC
    a("s_mov_b32 s%d, 0" % (sSPIN + 1)); a("s_call_b64 %s, L_spin_c" % s(sRET, 2))
    for j in range(4):
        a("s_barrier")
        for k in range(8 * j, 8 * j + 8):
            a("ds_read_b128 %s, v%d offset:%d" % (v(XR + 4 * k, 4), C_XA + ((k >> 1) & 1) + 2 * (k >> 4), ((k >> 2) & 3) * 16384 + (k & 1) * 2048), ("xn", k))
        for k in range(8 * j, 8 * j + 8, 2):
            P.append(W(lg=[("xn", k + 1)]))
            if k == 30: a("s_barrier")
            for h in range(2):
                for sq in range(2):
                    for t in range(2):
                        xx = v(XR + 4 * (k + t) + 2 * h, 2); c = v((N_SQ if sq else SM) + 4 * t, 4)
                        a("v_mfma_f32_4x4x4_16b_bf16 %s, %s, %s, %s" % (c, xx if sq else v(N_ONES, 2), xx, "0" if (k, h) == (0, 0) else c))
    a("s_waitcnt vmcnt(0)")
    fold4(a, SM, SM + 4)
    a("v_mul_f32 v%d, 0xbb000000, v%d" % (N_DL, SM))
    a("v_cvt_pk_bf16_f32 v%d, v%d, v%d" % (SM, N_DL, N_DL)); a("v_mov_b32 v%d, v%d" % (SM + 1, SM)); a("v_permlane16_swap_b32 v%d, v%d" % (SM, SM + 1))
    for j in range(8): a("v_and_b32 v%d, 0xffff0000, v%d" % (N_CM + j, SM + (j >> 2)))
    if CFG["stamps"]: a("v_mov_b32 v19, 0"); stamp_to(P, 59, 19)
    c0 = CFG["cen0"]
    if c0 == 32: a("s_nop 1"); a("s_call_b64 %s, L_centre" % s(sRET, 2))
    elif c0 > 8: centre(a, 0, c0 - 8)
    stamp_to(P, 60, 19)
    a("ds_read_b32 v%d, v18" % C_FV, ("fl", 0))
    for j in range(3):
        for h in range(2): a("v_cndmask_b32 v%d, v%d, v%d, %s" % (N_R + h, N_R + h if j else N_SQ + 4 * h, N_SQ + 4 * h + j + 1, s(sMK + 2 * j, 2)))
    centre(a, c0 - 8, c0 - 4)
    P.append(W(lg=[("fl", 0)])); a("v_cmp_ge_u32 vcc, 0, v%d" % C_FV)
    issue_reads(lambda m: m < CFG["LA"])
    centre(a, c0 - 4, c0)
    stamp_to(P, 61, 19)
    qi = 0
    for m, o in enumerate(ops):
        if m % 23 == 22 and m > 44: jit(P, 31, 7)
        w2 = CFG["wait2"] and m < n1
        if not w2: P.append(W(lg=[("f", m)]))
        elif m % 2 == 0: P.append(W(lg=[("f", m + 1)]))
        a(o["mfma"][0]); at = len(P)
        stop = m == n1 - 1 or (m == n1 + 111 and CFG["silu0"])
        if stop: a(o["mfma"][1])
        if m == lastop[o["slab"]] and o["slab"] <= lastdone + 1 and marked(o["slab"]): done(o["slab"])
        LP = [0, 64, 192, n1 - 1, n1 + 32, n1 + 112]
        if CFG["light"] and m in LP:
            P.append(L("    s_memtime %s" % s(12 + 4 * LP.index(m), 2))); P.append(L("    s_memrealtime %s" % s(14 + 4 * LP.index(m), 2)))
        if CFG["probe"] and m == CFG["probeat"]: P.append(L("    s_memrealtime s[6:7]"))
        if stop:
            while qi < len(queue) - (CFG["silu0"] - 1 if m > n1 else 0) and queue[qi][0] <= m + 2:
                it = queue[qi][2]; P += it if isinstance(it, list) else [it]; qi += 1
            nn = ops[m + 1]["slab"]
            a("ds_read_b32 v%d, v18" % C_FV, ("fl2", nn)); P.append(W(lg=[("fl2", nn)])); a("v_cmp_ge_u32 vcc, %d, v%d" % (CH[nn], C_FV))
        issue_reads(lambda k: k - ops[k]["la"] <= m)
        for n in range(1, 56):
            d = m - (first[n] - ops[first[n]]["la"])
            if d == -1 and n in CH:
                P.append(W(lg=[("fl", n)])); a("v_cmp_ge_u32 vcc, %d, v%d" % (CH[n], C_FV))
            if d == (2 if n <= 20 else 0) and CFG["stamps"] and not CFG["zoom"]: cstamp(n)
            if CFG["zoom"] and m == CFG["zoom"] + n * CFG["zstep"]: cstamp(n)
        if m in fread: a("ds_read_b32 v%d, v18" % C_FV, ("fl", fread[m]))
        rate = CFG["erate"] if m < n1 else 5
        cnt = 0
        while qi < len(queue) and queue[qi][0] <= m and cnt < rate:
            assert m <= queue[qi][1], ("filler past its deadline", ty, m, queue[qi][1])
            it = queue[qi][2]
            if isinstance(it, list): P += it; cnt += 2
            else: P.append(it)
            qi += 1; cnt += 1
        if not stop:
            mid = P[at:]; k = 0
            while k < (len(mid) + 1) // 2 and isinstance(mid[k], I) and not mid[k].t.startswith("s_"): k += 1
            P.insert(at + k, I(o["mfma"][1]))
        if m % 16 == CFG["cenat"] and c0 + m // 16 * 8 < 32: centre(a, c0 + m // 16 * 8, c0 + m // 16 * 8 + 8)
    assert qi == len(queue)
    for j in range(16): a("v_fma_f32 v%d, v%d, v%d, v%d" % (G + j, S_ + j, G + j, XF + j))
    for j in range(8): a("v_cvt_pk_bf16_f32 v%d, v%d, v%d" % (XF + 4 * ((j >> 1) & 1) + 2 * (j >> 2) + (j & 1), G + 2 * j, G + 2 * j + 1))
    for h in range(2):
        for i in range(2): a("v_permlane16_swap_b32 v%d, v%d" % (XF + 4 * h + i, XF + 4 * h + 2 + i))
    if CFG["probe"]:
        lb = newlbl()
        if CFG["probeat"] < 0: a("s_memrealtime s[6:7]")
        P.append(W(lg="all")); a("s_sub_u32 s6, s6, s4")
        a("s_cmp_le_u32 s6, %d" % CFG["probe"]); a("s_cbranch_scc1 L_xp%d" % lb)
        for _ in range(6): a("s_sleep 127")
        P.append(L("L_xp%d:" % lb))
    a("s_movk_i32 s%d, 16384" % sT0)
    a("buffer_store_dwordx4 %s, v%d, %s, 0 offen%s" % (v(XF, 4), C_OUT, srd(SOUT), CFG["outfl"]))
    a("buffer_store_dwordx4 %s, v%d, %s, s%d offen%s" % (v(XF + 4, 4), C_OUT, srd(SOUT), sT0, CFG["outfl"]))
    if CFG["light"]:
        a("s_waitcnt vmcnt(0)"); a("s_memtime s[84:85]"); a("s_memrealtime s[86:87]"); P.append(W(lg="all")); a("v_mov_b32 v19, 0")
        for j, r_ in enumerate([sTM, 4] + list(range(12, 36, 2)) + [84, 86]): a("v_writelane_b32 v19, s%d, %d" % (r_, j))
        a("s_lshl_b32 s%d, s2, 10" % sT0); a("s_lshl_b32 s%d, s%d, 8" % (sT1, sW)); a("s_add_u32 s%d, s%d, s%d" % (sT0, sT0, sT1)); a("s_add_u32 s%d, s%d, %d" % (sT0, sT0, WS_ST))
        a("v_lshlrev_b32 v18, 2, v1"); a("buffer_store_dword v19, v18, %s, s%d offen" % (srd(SWS), sT0))
    if CFG["stamps"]:
        one_lane(P, "ds_add_u32 v%d, v%d offset:%d" % (C_FL, C_ONE, F_END))
        cstamp(56); cstamp(57); P.append(W(lg="all")); cstamp(58)
        a("s_lshl_b32 s%d, s2, 8" % sT0); a("s_add_u32 s%d, s%d, %d" % (sT0, sT0, WS_ST + 0x20000))
        a("v_lshlrev_b32 v18, 2, v1")
        a("s_cmp_lg_u32 s%d, %d" % (sW, CFG["stampw"])); a("s_cbranch_scc1 L_exit")
        a("buffer_store_dword v19, v18, %s, s%d offen" % (srd(SWS), sT0))
    a("s_endpgm")
    return P

D_P = 32
D_A, D_B, D_B2, D_TAB, D_FL, D_LA, D_ONE, D_ZERO, D_CC, D_POLL, D_LV = range(2, 13)
D_AT, D_POLL2, D_X, D_R, D_M = 13, 14, 15, 16, 18
D_SW = 26
D_DV = 28
D_TCH = 20
def phase_info(ty):
    return [(kind, 3584, SG, SU) if e == "gu" else (kind, 3072, SQKV, SQKV) for kind, e, _ in PH[ty]]
def dma_setup(ty):
    P = []; b = lambda t, tag=None: P.append(I(t, tag))
    t0, t1, t2, t3, u0, u1, u2 = range(64, 71)
    b("v_mov_b32 v%d, 0" % D_ZERO); b("v_mov_b32 v%d, 0" % D_TAB)
    b("v_mov_b32 v%d, 1" % D_ONE); b("v_mov_b32 v%d, %d" % (D_FL, FL))
    b("v_and_b32 v%d, 3, v1" % D_LA); b("v_lshlrev_b32 v%d, 8, v%d" % (D_LA, D_LA)); b("v_add_u32 v%d, %d, v%d" % (D_LA, FL + F_DONE, D_LA))
    b("s_lshl_b32 s%d, s%d, 8" % (sLM, sW1)); b("s_add_u32 s%d, s%d, %d" % (sLM, sLM, FL + F_LAND))
    b("s_lshl_b32 s%d, s%d, 9" % (sCC, sTT))
    if CFG["lead"] or not CFG["spoll"]: b("v_mov_b32 v%d, s%d" % (D_CC, sCC))
    P.append("cut")
    b("s_lshl_b32 s%d, s%d, 1" % (sT0, sTT)); b("s_add_u32 s%d, s%d, s%d" % (sT0, sT0, sW1))
    b("s_mul_i32 s%d, s%d, 147456" % (sT0, sT0)); b("s_add_u32 s%d, s%d, %d" % (sT0, sT0, WS_HO - 2048))
    if CFG["fakeA"]: b("s_lshr_b32 s%d, s%d, 3" % (sT0, sI)); b("s_lshl_b32 s%d, s%d, 20" % (sT0, sT0)); b("s_lshl_b32 s%d, s%d, 18" % (sT1, sW1)); b("s_add_u32 s%d, s%d, s%d" % (sT0, sT0, sT1))
    b("v_lshlrev_b32 v%d, 4, v1" % u0); b("v_add_u32 v%d, s%d, v%d" % (D_A, sT0, u0))
    if CFG["lead"]: b("v_lshlrev_b32 v%d, 7, v1" % u0); b("v_add_u32 v%d, s%d, v%d" % (D_AT, sT0, u0))
    b("v_lshrrev_b32 v%d, 3, v1" % u0); b("v_and_b32 v%d, 6, v%d" % (u1, u0))
    b("v_and_b32 v%d, 7, v1" % u2); b("v_xor_b32 v%d, v%d, v%d" % (u2, u2, u1))
    b("v_lshlrev_b32 v%d, 10, v%d" % (u0, u0)); b("v_lshl_add_u32 v%d, v%d, 4, v%d" % (D_B, u2, u0))
    b("s_lshl_b32 s%d, s%d, 15" % (sT0, sW1)); b("s_lshl_b32 s%d, s%d, 7" % (sT1, sCT)); b("s_add_u32 s%d, s%d, s%d" % (sT0, sT0, sT1))
    b("v_add_u32 v%d, s%d, v%d" % (D_B, sT0, D_B)); b("v_add_u32 v%d, %d, v%d" % (D_B2, 8192 - 1024, D_B))
    b("v_lshrrev_b32 v%d, 3, v1" % u0); b("v_lshlrev_b32 v%d, 10, v%d" % (u0, u0)); b("v_and_b32 v%d, 7, v1" % u2); b("v_lshl_add_u32 v%d, v%d, 4, v%d" % (D_X, u2, u0))
    b("s_lshl_b32 s%d, s%d, 16" % (sT1, sTT)); b("s_add_u32 s%d, s%d, s%d" % (sT0, sT0, sT1)); b("v_add_u32 v%d, s%d, v%d" % (D_X, sT0, D_X))
    b("s_lshl_b32 s%d, s%d, 8" % (sT1, sTT)); b("s_add_u32 s%d, s%d, %d" % (sT1, sT1, WS_RS)); b("v_lshlrev_b32 v%d, 2, v1" % D_R); b("v_add_u32 v%d, s%d, v%d" % (D_R, sT1, D_R))
    P.append("cut")
    fcols(b, ty)
    gu = 0
    for pi, (kind, e, _) in enumerate(PH[ty]):
        stride = 3584 if e == "gu" else 3072
        (p4_voffs if kind == "P4" else p2_voffs)(b, u0, u1, stride, t0)
        if e == "gu": b("s_lshl_b32 s%d, s%d, 1" % (sT1, sKS + gu)); db = 0; gu += 1
        elif e == "kv": b("s_mov_b32 s%d, s%d" % (sT1, sKC)); db = 1024
        else: b("s_lshl_b32 s%d, s%d, 7" % (sT1, sGR)); db = 64
        step = (8 if kind == "P4" else 16) * stride
        b("v_add_u32 v%d, s%d, v%d" % (u0, sT1, u0)); b("v_add_u32 v%d, s%d, v%d" % (u1, sT1, u1))
        for p in range(4):
            b("v_add_u32 v%d, %d, v%d" % (D_P + 4 * pi + p, 4096 + (p >> 1) * step - p * 1024 + (db if p & 1 else 0), u1 if p & 2 else u0))
    b("s_lshl_b32 s%d, s%d, 13" % (sLA, sW1))
    if CFG["stage"]: b("v_lshlrev_b32 v%d, 4, v1" % D_SW); b("v_add_u32 v%d, s%d, v%d" % (D_SW, sLA, D_SW))
    P.append("cut")
    nr = 32 if CFG["map"] == 84 else 64
    used = " ".join(CFG["tplan%d" % ty].values()).split()
    if set(used) & {"q", "g0", "g1"}:
        b("s_lshl_b32 s%d, s%d, 6" % (sT0, sXR)); b("s_mul_i32 s%d, s%d, %d" % (sT1, sW1, nr)); b("s_add_u32 s%d, s%d, s%d" % (sT0, sT0, sT1))
        b("v_add_u32 v%d, s%d, v1" % (t2, sT0)); b("v_mul_u32_u24 v%d, 3072, v%d" % (D_TCH + 3, t2)); b("v_mul_u32_u24 v%d, 3584, v%d" % (D_TCH + 2, t2))
        b("s_lshl_b32 s%d, s%d, 7" % (sT0, sGR)); b("s_add_u32 s%d, s%d, 4096" % (sT0, sT0)); b("v_add_u32 v%d, s%d, v%d" % (D_TCH + 3, sT0, D_TCH + 3))
        b("v_add_u32 v%d, 4096, v%d" % (D_TCH + 2, D_TCH + 2))
        b("s_lshl_b32 s%d, s%d, 1" % (sKS, sKS)); b("s_lshl_b32 s%d, s%d, 1" % (sKS + 1, sKS + 1))
    b("s_lshl_b32 s%d, s%d, 1" % (sT0, sSH)); b("s_add_u32 s%d, s%d, s%d" % (sT0, sT0, sW1))
    if CFG["map2"] == 48: b("v_lshlrev_b32 v%d, 7, v1" % t2)
    else:
        b("v_lshrrev_b32 v%d, 2, v1" % t2); b("v_lshlrev_b32 v%d, 10, v%d" % (t2, t2)); b("v_and_b32 v%d, 3, v1" % t3); b("v_lshl_add_u32 v%d, v%d, 7, v%d" % (t2, t3, t2))
        b("s_and_b32 s%d, s%d, 4" % (sT1, sCT)); b("s_lshl_b32 s%d, s%d, 7" % (sT1, sT1)); b("v_add_u32 v%d, s%d, v%d" % (t2, sT1, t2))
    k2 = 2 if CFG["aonly"] else 1
    b("s_mul_i32 s%d, s%d, %d" % (sT1, sT0, 28 * 1024 * k2)); b("v_add_u32 v%d, s%d, v%d" % (D_TCH, sT1, t2))
    b("s_mul_i32 s%d, s%d, %d" % (sT1, sT0, 8192 * k2)); b("v_add_u32 v%d, s%d, v%d" % (D_TCH + 1, sT1, t2))
    if "m" in used:
        b("s_lshl_b32 s%d, s2, 1" % sT0); b("s_add_u32 s%d, s%d, s%d" % (sT0, sT0, sW1)); b("s_mul_i32 s%d, s%d, %d" % (sT1, sT0, 28 * 128))
        b("v_lshlrev_b32 v%d, 7, v1" % t2); b("v_add_u32 v%d, s%d, v%d" % (D_M, sT1, t2)); b("s_lshl_b32 s%d, s%d, 10" % (sT1, sT0)); b("v_add_u32 v%d, s%d, v%d" % (D_M + 1, sT1, t2))
    P.append("cut")
    def seg(lo, items):
        for t in items: b(t)
        b("v_cmp_le_u32 vcc, %d, v1" % lo); b("v_cndmask_b32 v%d, v%d, v%d, vcc" % (D_TAB, D_TAB, t1))
    b("s_add_u32 s%d, s%d, s%d" % (sT0, sR1, sW1))
    n0 = 0
    for pi, (kind, e, _) in enumerate(PH[ty]):
        stride = 3584 if e == "gu" else 3072
        if kind == "P4":
            seg(n0, ["v_add_u32 v%d, s%d, v1" % (t1, sR1), "v_add_u32 v%d, %d, v%d" % (t1, (-n0) & 7, t1), "v_and_b32 v%d, 7, v%d" % (t1, t1),
                     "v_lshlrev_b32 v%d, 1, v%d" % (t1, t1), "v_add_u32 v%d, s%d, v%d" % (t1, sW1, t1), "v_mul_u32_u24 v%d, %d, v%d" % (t1, 32 * stride, t1)]); n0 += 8
        else:
            seg(n0, ["v_lshlrev_b32 v%d, 1, v1" % t1, "v_add_u32 v%d, s%d, v%d" % (t1, sT0, t1), "v_and_b32 v%d, 7, v%d" % (t1, t1),
                     "v_mul_u32_u24 v%d, %d, v%d" % (t1, 64 * stride, t1)]); n0 += 4
    P.append("cut")
    b("v_add_u32 v%d, s%d, v1" % (t0, sR2)); b("v_and_b32 v%d, 7, v%d" % (t2, t0))
    seg(20, ["v_lshlrev_b32 v%d, 13, v%d" % (t1, t2)])
    seg(28, ["v_lshrrev_b32 v%d, 1, v%d" % (t3, t2), "v_lshlrev_b32 v%d, 1, v%d" % (t1, t2), "v_sub_u32 v%d, v%d, v%d" % (t1, t1, t3),
             "v_add_u32 v%d, 16, v%d" % (t1, t1), "v_lshlrev_b32 v%d, 12, v%d" % (t1, t1)])
    seg(36, ["v_lshlrev_b32 v%d, 13, v%d" % (t1, t2), "v_add_u32 v%d, 4096, v%d" % (t1, t1)])
    seg(44, ["v_and_b32 v%d, 3, v%d" % (t1, t0), "v_mul_u32_u24 v%d, 3, v%d" % (t1, t1), "v_add_u32 v%d, 17, v%d" % (t1, t1), "v_lshlrev_b32 v%d, 12, v%d" % (t1, t1)])
    seg(48, ["v_lshlrev_b32 v%d, 12, v%d" % (t1, t2)])
    return P

def dma_wave(ty):
    pieces = [[]]
    for it in dma_setup(ty):
        if it == "cut": pieces.append([])
        else: pieces[-1].append(it)
    late_su = pieces[1] + pieces[3] + pieces[5]
    P = [M(("x", 1))] + pieces[0] + pieces[2] + pieces[4] + ([] if CFG["defer"] & 2 else late_su); a = lambda t, tag=None: P.append(I(t, tag))
    stamp = lambda k: stamp_to(P, k)
    stamp_to(P, 1, H_STAMP2)
    NB = CFG["nb%d" % ty]; CH = checks(ty)
    sl = slabs_of(ty); info = phase_info(ty)
    def look(n):
        if n < 56: a("v_readlane_b32 s%d, v%d, %d" % (sPH + 2 * (n & 1), D_TAB, n))
    def part(n, which, nxt):
        so = sPH + 2 * (n & 1); cap = CFG["cap2"]; wb = srd(SWD if n < 48 else SWO)
        if which == "B": a("s_lshl_b32 s%d, s%d, 4" % (so, so))
        elif n == 48: a("v_add_u32 v%d, %d, v%d" % (D_A, 28 * 4096, D_A))
        for h in range(2):
            at = LOC[(n, which)][0] * SLOT + LOC[(n, which)][1] * 2048 - (2048 if which == "A" else 0) + h * 4096
            assert at >= 0
            a("s_add_u32 m0, s%d, %d" % (sLA, at))
            if h: a("s_add_u32 s%d, s%d, %d" % (so, so, 16384 if which == "B" else 2048))
            elif (nxt ^ n) & 1: look(nxt)
            room(16, cap)
            if which == "B":
                vm("buffer_load_dwordx4 v%d, %s, s%d offen lds" % (D_B, wb, so), 8)
                vm("buffer_load_dwordx4 v%d, %s, s%d offen offset:1024 lds" % (D_B2, wb, so), 8)
            else:
                vm("buffer_load_dwordx4 v%d, %s, s%d offen offset:2048 sc1 lds" % (D_A, srd(SX if CFG["fakeA"] else SWS), so), 8, ("slab", n))
                vm("buffer_load_dwordx4 v%d, %s, s%d offen offset:3072 sc1 lds" % (D_A, srd(SX if CFG["fakeA"] else SWS), so), 8, ("slab", n))
        if not (nxt ^ n) & 1: look(nxt)
    hist = []
    def room(w, cap):
        tot = w; k = 0
        while k < len(hist) and tot + hist[-1 - k] <= cap: tot += hist[-1 - k]; k += 1
        if k < len(hist): a("s_waitcnt vmcnt(%d)" % min(k, 63))
    def vm(t, w, tag=None): a(t, tag); hist.append(w)
    def dma(n):
        so = sPH + 2 * (n & 1); cap = CFG["cap1"] if n < CFG["capsw"] else CFG["cap2"]
        if n in CFG["soft%d" % ty]: cap = CFG["capsoft"]
        for h in range(2):
            assert n < 20 or n >= 20 + NPK
            a("s_add_u32 m0, s%d, %d" % (sLA, (slot_of(n) if n < 20 else LOC[(n, "B")][0]) * SLOT + h * 4096))
            if n < 20:
                pi, kind, sg = sl[n]; _, stride, sa, sb = info[pi]
                w = 16 if (kind == "P2" and PH[ty][pi][1] != "q") else 8
                if h: a("s_add_u32 s%d, s%d, %d" % (so, so, (16 if kind == "P4" else 32) * stride))
                else: look(n + 1)
                for p in range(4):
                    if p % 2 == 0: room(2 * w, cap)
                    vm("buffer_load_dwordx4 v%d, %s, s%d offen offset:%d lds" % (D_P + 4 * pi + p, srd(sb if p & 1 else sa), so, p * 1024), w, ("slab", n))
            else:
                if h: a("s_add_u32 s%d, s%d, 2048" % (so, so)); a("s_add_u32 s%d, s%d, 16384" % (so + 1, so + 1))
                else:
                    a("s_lshl_b32 s%d, s%d, 4" % (so + 1, so)); look(n + 1)
                    if n == 48: a("v_add_u32 v%d, %d, v%d" % (D_A, 28 * 4096, D_A))
                wb = srd(SWD if n < 48 else SWO)
                room(16, cap)
                vm("buffer_load_dwordx4 v%d, %s, s%d offen lds" % (D_B, wb, so + 1), 8, ("slab", n))
                vm("buffer_load_dwordx4 v%d, %s, s%d offen offset:1024 lds" % (D_B2, wb, so + 1), 8, ("slab", n))
                room(16, cap)
                vm("buffer_load_dwordx4 v%d, %s, s%d offen offset:2048 sc1 lds" % (D_A, srd(SX if CFG["fakeA"] else SWS), so), 8, ("slab", n))
                vm("buffer_load_dwordx4 v%d, %s, s%d offen offset:3072 sc1 lds" % (D_A, srd(SX if CFG["fakeA"] else SWS), so), 8, ("slab", n))
    STG_ = CFG["stage"]; SR = 64
    def stage_load(k):
        n = STG_[k]; wb = srd(SWD if n < 48 else SWO)
        a("v_readlane_b32 s%d, v%d, %d" % (sT2, D_TAB, n)); a("s_lshl_b32 s%d, s%d, 4" % (sT2, sT2)); a("s_add_u32 s%d, s%d, 16384" % (sT3, sT2))
        room(32, CFG["capt"])
        for h in range(2):
            vm("buffer_load_dwordx4 %s, v%d, %s, s%d offen" % (v(SR + 16 * k + 8 * h, 4), D_B, wb, sT2 + h), 8, ("stg", k))
            vm("buffer_load_dwordx4 %s, v%d, %s, s%d offen offset:1024" % (v(SR + 16 * k + 8 * h + 4, 4), D_B2, wb, sT2 + h), 8, ("stg", k))
    def stage_put(n):
        k = STG_.index(n); sl_, hf = LOC[(n, "B")]
        if CFG["stagefake"]: return
        P.append(W(vm=[("stg", k)]))
        a("v_add_u32 v%d, %d, v%d" % (D_SW + 1, sl_ * SLOT + hf * 2048, D_SW))
        for q in range(4): a("ds_write_b128 v%d, %s offset:%d" % (D_SW + 1, v(SR + 16 * k + 4 * q, 4), (q >> 1) * 4096 + (q & 1) * 1024), ("put", n))
    def touch(which):
        nr = 32 if CFG["map"] == 84 else 64; dst = D_TCH + 4; cap = CFG["capt"]
        for w in which:
            if w == "x":
                a("s_lshr_b32 s%d, s%d, 1" % (sT0, sLA)); a("s_add_u32 m0, s%d, %d" % (sT0, LX))
                room(32, cap)
                for p in range(4):
                    a("s_movk_i32 s%d, %d" % (sT1, 7168 * p))
                    vm("buffer_load_dwordx4 v%d, %s, s%d offen offset:%d lds" % (D_X, srd(SX), sT1, 1024 * p), 8)
            elif w[0] == "s":
                for k in range(*[int(x_) for x_ in w[1:].split("-")]): stage_load(k)
            elif w == "m":
                room(36, cap)
                a("s_mov_b64 exec, 0xfffffff"); vm("buffer_load_dword v%d, v%d, %s, 0 offen" % (dst, D_M, srd(SWD)), 28)
                a("s_mov_b64 exec, 0xff"); vm("buffer_load_dword v%d, v%d, %s, 0 offen" % (dst, D_M + 1, srd(SWO)), 8)
            elif w in ("q", "g0", "g1"):
                if nr == 32: a("s_mov_b32 exec_hi, 0")
                if w == "q": room(nr, cap); vm("buffer_load_dword v%d, v%d, %s, 0 offen" % (dst, D_TCH + 3, srd(SQKV)), nr)
                else:
                    for d in (SG, SU): room(nr, cap); vm("buffer_load_dword v%d, v%d, %s, s%d offen" % (dst, D_TCH + 2, srd(d), sKS + int(w[1])), nr)
            elif w == "o":
                k = 64 if (CFG["map2"] == 48 or CFG["aonly"]) else 32
                if k == 32: a("s_mov_b32 exec_hi, 0")
                room(k, cap); vm("buffer_load_dword v%d, v%d, %s, 0 offen" % (dst, D_TCH + 1, srd(SWO)), k)
            else:
                j = int(w[1])
                if j >= (4 if (CFG["map2"] == 48 or CFG["aonly"]) else 2): continue
                a("s_mov_b32 exec_hi, 0xffffff"); a("s_mov_b32 s%d, %d" % (sT0, j * 56 * (128 if CFG["map2"] == 48 else 256)))
                room(56, cap); vm("buffer_load_dword v%d, v%d, %s, s%d offen" % (dst, D_TCH, srd(SWD), sT0), 56)
            a("s_mov_b64 exec, -1")
    def publish(m):
        if m in CH.values():
            a("s_mov_b32 m0, s%d" % sLM); a("v_mov_b32 v%d, %d" % (D_LV, 4 * (m + 1)))
            vm("global_load_lds_dword v%d, %s" % (D_LV, s(sTB, 2)), 1)
        if CFG["stamps"] == 2 or (CFG["stamps"] and m % 4 == 0): stamp(m)
    for d in (SQKV, SG, SU):
        a("s_sub_u32 s%d, s%d, 4096" % (d, d)); a("s_subb_u32 s%d, s%d, 0" % (d + 1, d + 1)); a("s_add_u32 s%d, s%d, 4096" % (d + 2, d + 2))
    gates = {20: (C_H1A, 16), 28: (C_H1B, 16), 36: (C_H2, 32), 48: (C_O, 16)}
    def do_gate(n):
        if CFG["stamps"] == 2: stamp_to(P, 20 + 2 * list(gates).index(n), H_STAMP2)
        if n in CFG["nogate"]: pass
        elif CFG["spoll"]: sgate(P, sCC, gates[n][0] * 128, sPV, gates[n][1])
        else: gate(P, D_CC, SWS, gates[n][0] * 128, ("poll", n), D_POLL, gates[n][1])
        stamp_to(P, 21 + 2 * list(gates).index(n), H_STAMP2)
    def poll(gn):
        if CFG["spoll"]: a("s_load_dword s%d, %s, s%d offset:%d glc" % (sPV, s(SWS, 2), sCC, gates[gn][0] * 128))
        else: vm("buffer_load_dword v%d, v%d, %s, 0 offen offset:%d sc1" % (D_POLL, D_CC, srd(SWS), gates[gn][0] * 128), 1, ("poll", gn))
    nbf = CFG["bfirst"]
    def issue(n):
        if n in gates and not (n == 20 and nbf): do_gate(n)
        if n + CFG["pollat"] in gates and not (n + CFG["pollat"] == 20 and nbf): poll(n + CFG["pollat"])
        dma(n)
    def do_touch(n):
        tp = CFG["tplan%d" % ty].get(str(n))
        if tp:
            touch(tp.split())
    look(0)
    if CFG["dprio"]: a("s_setprio %d" % CFG["dprio"])
    hist += [16] * 8
    xstages(P, {CFG["s0at"]: lambda: (dma(0), publish(0), do_touch(0))})
    stamp(60)
    a("s_barrier")
    stamp(61); rstamp(P, 40)
    assert NB == 56
    seq = [(n, "F") for n in range(1, 20)] + [(n, "B") for n in range(20, 20 + nbf)]
    n = 20
    while n < 56:
        k = CFG["afirst"].get(str(n), 0)
        if n == 20: k = max(k, nbf)
        if str(n) in CFG["bf"]: k = CFG["bf"][str(n)]; seq += [(m, "B") for m in range(n, n + k)]
        seq += [(m, "A") for m in range(n, n + k)] + [(m, "B") for m in range(n, n + k) if (m, "B") not in seq]
        if not k: seq.append((n, "F"))
        n += max(k, 1)
    for n in STG_:
        i = seq.index((n, "F")); seq[i] = (n, "A"); seq.insert(i - CFG["putahead"], (n, "S"))
    started = set(); parts = {}; checked = -1; gated = set()
    firstA = {g: min(i for i, (m, w) in enumerate(seq) if m >= g and w in "AF") for g in gates}
    gstart = {g: min(i for i, (m, w) in enumerate(seq) if m >= 20 + 4 * g and w != "B") for g in range(9)}
    exi = min(i for i, (m, w) in enumerate(seq) if m >= 20 and LOC[(m, "A" if w == "A" else "B")][0] >= 8)
    def need_at(i):
        k = 1
        if CFG["spoll"] and any(i + CFG["pollat"] == firstA[g] for g in gates): k = CFG["pollat"]
        pu = max(prev_user(m, "B" if w == "S" else w) for m, w in seq[i:i + k])
        while pu > checked and not marked(pu): pu += 1
        return pu - CFG["bigring"] if seq[i][0] < CFG["bigto"] else pu
    for i, (n, w) in enumerate(seq):
        if (n, w) in ((11, "F"), (15, "F"), (18, "F"), (30, "F"), (42, "F"), (54, "F")): rstamp(P, 42 + 2 * (11, 15, 18, 30, 42, 54).index(n))
        if w == "F" and n in CFG["exw%d" % ty]: count_wait(P, D_FL, D_DV + 1, F_EX + 4 * CFG["exw%d" % ty].index(n), 4)
        if i % 3 == 1: jit(P, 31, 7)
        pu = need_at(i)
        if pu > checked:
            lb = newlbl()
            P.append(W(lg=[("dn", i)]))
            a("v_cmp_ge_u32 vcc, %d, v%d" % (pu, D_DV)); a("s_cbranch_vccz L_fr%d" % lb)
            raw(P, [I("s_movk_i32 s%d, %d" % (sSPIN + 1, pu + 1)), I("s_call_b64 %s, L_spin_d" % s(sRET, 2))]); P.append(L("L_fr%d:" % lb))
            checked = pu
        if i == exi: count_wait(P, D_FL, D_DV + 1, F_EXF, 2)
        if (n, w) == (4, "F"): a("s_movk_i32 m0, %d" % (FL + F_INIT)); vm("buffer_load_dword v%d, %s, 0 offen sc1 lds" % (D_ZERO, srd(SDBG)), 1)
        if (n, w) == (15, "F"): a("ds_read_b32 v%d, v%d offset:%d" % (D_POLL, D_FL, F_INIT), "init"); gate(P, D_ZERO, SDBG, 0, "init", D_POLL, 1)
        for g in gates:
            if i == firstA[g]:
                do_gate(g)
                if g == 20: a("s_movk_i32 m0, %d" % LR2); vm("buffer_load_dword v%d, %s, 0 offen sc1 lds" % (D_R, srd(SWS)), 2)
            if i + CFG["pollat"] == firstA[g]: poll(g)
        if CFG["lead"]:
            for g in range(1, 9):
                sec = max(x for x in gates if x <= 20 + 4 * g); newsec = sec == 20 + 4 * g
                at = gstart[g - 1]
                if newsec and i + CFG["pollat"] == at:
                    vm("buffer_load_dword v%d, v%d, %s, 0 offen offset:%d sc1" % (D_POLL2, D_CC, srd(SWS), gates[sec][0] * 128), 1, ("poll2", g))
                if i == at + CFG["leadoff"]:
                    lb = newlbl()
                    if newsec: P.append(W(vm=[("poll2", g)]))
                    a("s_cmp_lg_u32 s%d, %d" % (sLD, CFG["who"][g])); a("s_cbranch_scc1 L_nl%d" % lb)
                    X = []
                    if newsec: X += [I("v_cmp_eq_u32 vcc, %d, v%d" % (gates[sec][1], D_POLL2)), I("s_cbranch_vccz L_nl%d" % lb)]
                    for j in range(4): X.append(I("v_readlane_b32 s%d, v%d, %d" % (sG + j, D_TAB, 20 + 4 * g + j)))
                    X.append(I("s_mov_b32 exec_hi, 0"))
                    for j in range(4):
                        if g >= 7: X.append(I("s_add_u32 s%d, s%d, %d" % (sG + j, sG + j, 28 * 4096)))
                        X.append(I("buffer_load_dword v%d, v%d, %s, s%d offen offset:2048 sc1" % (D_TCH + 4, D_AT, srd(SWS), sG + j)))
                    X.append(I("s_mov_b64 exec, -1"))
                    raw(P, X); P.append(L("L_nl%d:" % lb))
        started.add(n)
        if i + 1 < len(seq) and need_at(i + 1) > checked: a("ds_read_b32 v%d, v%d" % (D_DV, D_LA), ("dn", i + 1))
        nxt = ([m for m, w_ in seq[i + 1:] if w_ != "S"] + [99])[0]
        if w == "F" and n in CFG["skipB"]: part(n, "A", nxt)
        elif w == "F" and n in CFG["skipA"]: part(n, "B", nxt)
        elif w == "F":
            assert nxt in (n + 1, 99); dma(n)
        elif w == "S": stage_put(n)
        else: part(n, w, nxt)
        if w == "A" and n in STG_ and not CFG["stagefake"]: P.append(W(lg=[("put", n)]))
        parts.setdefault(n, set()).add("B" if w == "S" else w)
        if parts[n] in ({"F"}, {"A", "B"}):
            assert all(parts.get(m) in ({"F"}, {"A", "B"}) for m in range(1, n))
            publish(n)
        if (n, w) == (6, "F") and CFG["defer"] & 2: P += late_su
        if w == "F": do_touch(n)
    if CFG["stamps"]:
        count_wait(P, D_FL, D_DV, F_END, 4)
        stamp(62)
        a("s_memrealtime s[6:7]"); P.append(W(lg="all"))
        a("v_writelane_b32 v%d, s4, 62" % H_STAMP2); a("v_writelane_b32 v%d, s6, 63" % H_STAMP2)
        a("s_lshl_b32 s%d, s2, 8" % sT0); a("s_add_u32 s%d, s%d, %d" % (sT0, sT0, WS_ST))
        a("v_lshlrev_b32 v64, 2, v1")
        a("s_cmp_lg_u32 s%d, %d" % (sW1, CFG["stampw"] & 1)); a("s_cbranch_scc1 L_exit")
        a("buffer_store_dword v%d, v64, %s, s%d offen" % (H_STAMP, srd(SWS), sT0))
        a("s_add_u32 s%d, s%d, 0x10000" % (sT0, sT0))
        a("buffer_store_dword v%d, v64, %s, s%d offen" % (H_STAMP2, srd(SWS), sT0))
    a("s_endpgm")
    return P

A_ONE, A_ZERO, A_CM, A_CK, A_CQ, A_FL, A_RK, A_RV, A_ST, A_ZA, A_PL, A_ZL, A_OS, A_SGN = range(2, 16)
A_POLL, A_FV, A_TCH = 25, 27, 28
A_ID = 32
A_WP = 36
A_R = 16
A_ACC = 56
A_RAW = 72
A_T = 72
A_KF = 112
A_SD = 192; A_PHI = 208
A_PQ = 128
A_LD = 192
def softmax_unit(wp, kf, u, dst, Pm, R, scale_r):
    B = []; b = lambda t, tag=None: B.append(I(t, tag))
    C = A_R + 4 + u
    b("v_mfma_f32_32x32x16_bf16 %s, %s, %s, 0" % (v(Pm, 16), v(wp, 4), v(kf, 4)))
    for g in range(2): b("v_max3_f32 v%d, v%d, v%d, v%d" % (R + g, Pm + 8 * g, Pm + 8 * g + 1, Pm + 8 * g + 2))
    for g in range(2): b("v_max3_f32 v%d, v%d, v%d, v%d" % (R + 2 + g, Pm + 8 * g + 3, Pm + 8 * g + 4, Pm + 8 * g + 5))
    for g in range(2): b("v_max3_f32 v%d, v%d, v%d, v%d" % (R + g, R + g, Pm + 8 * g + 6, Pm + 8 * g + 7))
    for g in range(2): b("v_max_f32 v%d, v%d, v%d" % (R + g, R + g, R + 2 + g))
    def allred(op, mid):
        b("v_permlane32_swap_b32 v%d, v%d" % (R, R + 1))
        b("%s v%d, v%d, v%d" % (op, R, R, R + 1))
        for t in mid: b(t)
        b("v_mov_b32 v%d, v%d" % (R + 1, R))
        b("v_permlane32_swap_b32 v%d, v%d" % (R, R + 1))
    allred("v_max_f32", ["v_mul_f32 v%d, v%d, v%d" % (R, C, R)])
    for j in range(16): b("v_fma_f32 v%d, v%d, v%d, -v%d" % (Pm + j, Pm + j, C, R + j // 8))
    for j in range(16): b("v_exp_f32 v%d, v%d" % (Pm + j, Pm + j))
    if not scale_r and not CFG["qnorm"]:
        for j in range(8): b("v_cvt_pk_bf16_f32 v%d, v%d, v%d" % (dst + j, Pm + 2 * j, Pm + 2 * j + 1))
        return B
    for g in range(2):
        b("v_add_f32 v%d, v%d, v%d" % (R + g, Pm + 8 * g, Pm + 8 * g + 1)); b("v_add_f32 v%d, v%d, v%d" % (R + 2 + g, Pm + 8 * g + 2, Pm + 8 * g + 3))
    for k in (4, 6):
        for g in range(2):
            b("v_add_f32 v%d, v%d, v%d" % (R + g, R + g, Pm + 8 * g + k)); b("v_add_f32 v%d, v%d, v%d" % (R + 2 + g, R + 2 + g, Pm + 8 * g + k + 1))
    for g in range(2): b("v_add_f32 v%d, v%d, v%d" % (R + g, R + g, R + 2 + g))
    allred("v_add_f32", ["v_rcp_f32 v%d, v%d" % (R, R)] + (["v_mul_f32 v%d, v%d, v%d" % (R, R, A_R + u)] if scale_r else []))
    for j in range(16): b("v_mul_f32 v%d, v%d, v%d" % (Pm + j, Pm + j, R + j // 8))
    for j in range(8): b("v_cvt_pk_bf16_f32 v%d, v%d, v%d" % (dst + j, Pm + 2 * j, Pm + 2 * j + 1))
    return B
def zipper(x, y):
    out = []
    for i in range(max(len(x), len(y))):
        if i < len(x): out.append(x[i])
        if i < len(y): out.append(y[i])
    return out
def mprio(B, base=0):
    out = []; hi = False
    for it in B:
        m_ = isinstance(it, I) and it.t.startswith("v_mfma")
        if m_ and not hi: out.append(I("s_setprio 3")); hi = True
        if hi and not m_: out.append(I("s_setprio %d" % base)); hi = False
        out.append(it)
    return out

def attn_setup(ty):
    P = []; b = lambda t, tag=None: P.append(I(t, tag))
    t0, t1, t2, t3, u0 = range(100, 105)
    hk, hq = sT2, sT3
    if CFG["tlb"]:
        b("v_lshlrev_b32 v%d, 16, v1" % t0); b("s_mov_b64 exec, 0x%x" % CFG["tlbm"])
        for d in ((SQKV,), (SQKV, SG, SU), (SQKV, SG, SU, SWD, SWO))[CFG["tlb"] - 1]: b("buffer_load_dword v%d, v%d, %s, 0 offen" % (A_POLL + 1, t0, srd(d)))
        b("s_mov_b64 exec, -1")
    if CFG["ftouch"]:
        nr = 32 if CFG["map"] == 84 else 64
        b("s_lshl_b32 s%d, s%d, 6" % (sT0, sXR)); b("s_mul_i32 s%d, s%d, %d" % (sT1, sW1, nr)); b("s_add_u32 s%d, s%d, s%d" % (sT0, sT0, sT1))
        b("v_add_u32 v%d, s%d, v1" % (A_TCH + 2, sT0)); b("v_mul_u32_u24 v%d, 3072, v%d" % (A_TCH + 3, A_TCH + 2)); b("v_mul_u32_u24 v%d, 3584, v%d" % (A_TCH + 2, A_TCH + 2))
        if nr == 32: b("s_mov_b32 exec_hi, 0")
        if CFG["ftouch"] == 4: b("buffer_load_dword v%d, v%d, %s, s%d offen offset:%d" % (A_POLL + 1, A_TCH + 3, srd(SQKV), sKC, 1024 * ty))
        elif CFG["ftouch"] >= 5 or not CFG["ftouch"] & (1 << ty): pass
        elif ty == 0:
            for o_ in (0, 1024): b("buffer_load_dword v%d, v%d, %s, s%d offen offset:%d" % (A_POLL + 1, A_TCH + 3, srd(SQKV), sKC, o_))
        else:
            b("s_lshl_b32 s%d, s%d, 7" % (sT0, sGR)); b("buffer_load_dword v%d, v%d, %s, s%d offen" % (A_POLL + 1, A_TCH + 3, srd(SQKV), sT0))
        b("s_mov_b64 exec, -1")
    b("s_lshl_b32 s%d, s%d, 2" % (hq, sGR)); b("s_add_u32 s%d, s%d, s%d" % (hq, hq, sW1))
    b("s_add_u32 s%d, s%d, %d" % (hk, hq, 2 * ty))
    b("v_lshrrev_b32 v%d, 5, v1" % t3); b("v_and_b32 v%d, 15, v1" % t1); b("v_lshrrev_b32 v%d, 4, v1" % t0)
    b("v_lshlrev_b32 v%d, 7, v%d" % (t2, t3)); b("v_lshl_add_u32 v%d, v%d, 1, v%d" % (t2, t1, t2))
    b("s_lshl_b32 s%d, s%d, 9" % (sT0, hq))
    for hh in range(1 + ty):
        for j in range(8):
            b("buffer_load_ushort v%d, v%d, %s, s%d offen offset:%d" % (A_RAW + 8 * hh + j, t2, srd(SPHI), sT0, 1024 * hh + 32 * ((j & 3) + 8 * (j >> 2))), "wphi")
    b("v_mov_b32 v%d, 0" % A_ZERO); b("v_mov_b32 v34, 0")
    b("v_mov_b32 v%d, 1" % A_ONE); b("v_mov_b32 v%d, %d" % (A_FL, FL))
    if ty == 0:
        b("v_lshlrev_b32 v%d, 7, v1" % u0)
        b("s_add_u32 s%d, s2, s%d" % (sT0, sW1)); b("s_cmp_lg_u32 s%d, 0" % sT0); b("s_cbranch_scc1 L_noinit")
        raw(P, sum([[I("s_movk_i32 s%d, 0x%x" % (sT0, 0x2000 * k)), I("buffer_store_dword v%d, v%d, %s, s%d offen sc1" % (A_ZERO, u0, srd(SWS), sT0))] for k in range(3)], []))
        P.append(L("L_noinit:"))
    b("v_and_b32 v%d, 1, v%d" % (t2, t0)); b("v_mul_u32_u24 v%d, 0x8000, v%d" % (t2, t2)); b("v_lshl_or_b32 v%d, v%d, 16, v%d" % (A_SGN, t2, t2))
    b("s_lshl_b32 s%d, s%d, 10" % (sT0, sI)); b("v_lshlrev_b32 v%d, 9, v1" % A_CM); b("v_add_u32 v%d, s%d, v%d" % (A_CM, sT0, A_CM))
    b("v_lshl_add_u32 v%d, v1, 2, v%d" % (A_FV, A_FL))
    for k in range(8): b("ds_write_b32 v%d, v%d offset:%d" % (A_FV, A_ZERO, 256 * k))
    P.append("cut")
    b("s_lshl_b32 s%d, s%d, 8" % (sT0, hk)); b("s_add_u32 s%d, s%d, 0x4000" % (sT0, sT0)); b("v_mov_b32 v%d, s%d" % (A_CK, sT0))
    b("s_lshl_b32 s%d, s%d, 8" % (sT0, hq)); b("s_add_u32 s%d, s%d, 0x4000" % (sCC, sT0))
    b("s_lshl_b32 s%d, s%d, 11" % (sT0, sW1)); b("s_add_u32 s%d, s%d, %d" % (sT0, sT0, EX))
    b("v_lshlrev_b32 v%d, 4, v1" % u0); b("v_add_u32 v%d, s%d, v%d" % (A_RK, sT0, u0))
    b("v_and_b32 v%d, 1, v1" % t2); b("v_lshlrev_b32 v%d, 9, v%d" % (A_RV, t2)); b("v_lshl_add_u32 v%d, v%d, 7, v%d" % (A_RV, t0, A_RV))
    b("v_bfe_u32 v%d, v1, 2, 2" % t2); b("v_lshl_add_u32 v%d, v%d, 4, v%d" % (A_RV, t2, A_RV))
    b("v_bfe_u32 v%d, v1, 1, 1" % t2); b("v_lshl_add_u32 v%d, v%d, 3, v%d" % (A_RV, t2, A_RV)); b("v_add_u32 v%d, s%d, v%d" % (A_RV, sT0, A_RV))
    b("s_lshl_b32 s%d, s%d, 4" % (sT0, hk)); b("s_add_u32 s%d, s%d, s%d" % (sT0, sT0, sI))
    b("s_lshl_b32 s%d, s%d, 10" % (sT1, sT0)); b("s_add_u32 s%d, s%d, %d" % (sT1, sT1, WS_KV)); b("v_add_u32 v%d, s%d, v%d" % (A_ST, sT1, u0))
    b("s_lshl_b32 s%d, s%d, 7" % (sT1, sT0)); b("s_add_u32 s%d, s%d, %d" % (sT1, sT1, WS_Z))
    b("v_lshlrev_b32 v%d, 6, v%d" % (A_ZA, t1)); b("v_lshl_add_u32 v%d, v%d, 4, v%d" % (A_ZA, t0, A_ZA)); b("v_add_u32 v%d, s%d, v%d" % (A_ZA, sT1, A_ZA))
    if ty == 0:
        b("s_lshl_b32 s%d, s%d, 1" % (sT0, sI)); b("s_add_u32 s%d, s%d, s%d" % (sT0, sT0, sW1)); b("s_and_b32 s%d, s%d, 7" % (sLD, sT0))
        b("s_lshr_b32 s%d, s%d, 3" % (sT0, sT0)); b("s_lshl_b32 s%d, s%d, 2" % (sT4, sGR)); b("s_add_u32 s%d, s%d, s%d" % (sT4, sT4, sT0))
        b("s_lshl_b32 s%d, s%d, 8" % (sT0, sT4)); b("s_add_u32 s%d, s%d, 0x4000" % (sCC, sT0)); b("v_mov_b32 v%d, s%d" % (A_CQ, sCC))
        b("s_lshl_b32 s%d, s%d, 7" % (sT5, sLD))
        b("s_lshl_b32 s%d, s%d, 14" % (sT1, sT4)); b("s_add_u32 s%d, s%d, s%d" % (sT1, sT1, sT5)); b("s_add_u32 s%d, s%d, %d" % (sT1, sT1, WS_KV))
        b("v_lshrrev_b32 v%d, 3, v1" % t2); b("v_lshlrev_b32 v%d, 10, v%d" % (A_PL, t2)); b("v_and_b32 v%d, 7, v1" % t2)
        b("v_lshl_add_u32 v%d, v%d, 4, v%d" % (A_PL, t2, A_PL)); b("v_add_u32 v%d, s%d, v%d" % (A_PL, sT1, A_PL))
        b("s_lshl_b32 s%d, s%d, 10" % (sT1, sT4)); b("s_add_u32 s%d, s%d, s%d" % (sT1, sT1, sT5)); b("s_add_u32 s%d, s%d, %d" % (sT1, sT1, WS_KVF))
        b("v_lshlrev_b32 v%d, 4, v%d" % (A_OS, t2)); b("v_lshl_add_u32 v%d, v%d, 2, v%d" % (A_OS, t3, A_OS))
        b("v_and_b32 v%d, 1, v%d" % (t2, t0)); b("v_lshl_add_u32 v%d, v%d, 3, v%d" % (A_OS, t2, A_OS)); b("v_add_u32 v%d, s%d, v%d" % (A_OS, sT1, A_OS))
        b("s_lshl_b32 s%d, s%d, 11" % (sT1, sT4)); b("s_add_u32 s%d, s%d, %d" % (sT1, sT1, WS_Z))
        b("v_lshlrev_b32 v%d, 7, v%d" % (A_ZL, t1)); b("v_lshl_add_u32 v%d, v%d, 4, v%d" % (A_ZL, t0, A_ZL)); b("v_add_u32 v%d, s%d, v%d" % (A_ZL, sT1, A_ZL))
        b("s_lshl_b32 s%d, s%d, 7" % (sT1, sT4)); b("s_add_u32 s%d, s%d, %d" % (sT1, sT1, WS_ZF))
        b("v_lshlrev_b32 v%d, 6, v%d" % (A_CM, t1)); b("v_lshl_add_u32 v%d, v%d, 4, v%d" % (A_CM, t0, A_CM)); b("v_add_u32 v%d, s%d, v%d" % (A_CM, sT1, A_CM))
        ident(b, A_ID, t1)
    if ty == 1:
        b("s_lshl_b32 s%d, s%d, 10" % (sT1, hq)); b("s_add_u32 s%d, s%d, %d" % (sT1, sT1, WS_KVF)); b("v_add_u32 v%d, s%d, v%d" % (A_PL, sT1, u0))
        b("s_lshl_b32 s%d, s%d, 7" % (sT1, hq)); b("s_add_u32 s%d, s%d, %d" % (sT1, sT1, WS_ZF))
        b("v_lshlrev_b32 v%d, 4, v%d" % (A_ZL, t0)); b("v_add_u32 v%d, s%d, v%d" % (A_ZL, sT1, A_ZL))
        b("s_mul_i32 s%d, s%d, 576" % (sT1, sI)); b("s_add_u32 s%d, s%d, s%d" % (sT1, sT1, hq)); b("s_add_u32 s%d, s%d, s%d" % (sT1, sT1, sW1)); b("s_add_u32 s%d, s%d, 112" % (sT1, sT1))
        b("s_lshl_b32 s%d, s%d, 10" % (sT1, sT1)); b("s_add_u32 s%d, s%d, %d" % (sT1, sT1, WS_HO))
        b("v_and_b32 v%d, 1, v%d" % (t2, t0)); b("v_lshlrev_b32 v%d, 10, v%d" % (A_OS, t2)); b("v_lshl_add_u32 v%d, v%d, 8, v%d" % (A_OS, t3, A_OS))
        b("v_lshl_add_u32 v%d, v%d, 4, v%d" % (A_OS, t1, A_OS)); b("v_add_u32 v%d, s%d, v%d" % (A_OS, sT1, A_OS))
    return P

def attn_wave(ty):
    SU_ = attn_setup(ty); cut_ = SU_.index("cut"); late_su = SU_[cut_ + 1:] if CFG["defer"] & 1 else []
    P = [M(("x", 1))] + SU_[:cut_] + ([] if late_su else SU_[cut_ + 1:]); a = lambda t, tag=None: P.append(I(t, tag))
    stamp = lambda k: (stamp_to(P, k, 34), jit(P, 63))
    def signal(vaddr, off): one_lane(P, "buffer_atomic_add v%d, v%d, %s, 0 offen offset:%d sc1" % (A_ONE, vaddr, srd(SWS), off))
    def ft():
        a("s_mov_b32 exec_hi, 0"); a("buffer_load_dword v%d, v%d, %s, s%d offen offset:%d" % (A_POLL + 1, A_TCH + 3, srd(SQKV), sKC, 1024 * ty))
        if CFG["ftouch"] == 7:
            if ty: a("s_lshl_b32 s%d, s%d, 7" % (sT0, sGR)); a("buffer_load_dword v%d, v%d, %s, s%d offen" % (A_POLL + 1, A_TCH + 3, srd(SQKV), sT0))
            else:
                a("s_lshl_b32 s%d, s%d, 8" % (sT0, sGR))
                for d in (SG, SU): a("buffer_load_dword v%d, v%d, %s, s%d offen" % (A_POLL + 1, A_TCH + 2, srd(d), sT0))
        a("s_mov_b64 exec, -1")
    def after1():
        jit(P, 255, 15)
        if CFG["ftouch"] in (5, 7): ft()
        if ty == 0:
            only(P, ["s_add_u32 s%d, s2, s%d" % (sT0, sW1), "s_cmp_lg_u32 s%d, 0" % sT0],
                 [I("buffer_store_dword v%d, v%d, %s, 0 offen sc1" % (A_ONE, A_ZERO, srd(SDBG)))])
    P.append(W(lg="all"))
    xstages(P, {1: after1, 0: (ft if CFG["ftouch"] == 6 else lambda: None)})
    a("s_barrier")
    if CFG["noattn"]:
        one_lane(P, "ds_add_u32 v%d, v%d offset:%d" % (A_FL, A_ONE, F_EXF)); a("s_endpgm"); return P
    P += late_su
    P.append(W(vm=["wphi"]))
    for hh in range(1 + ty):
        for j in range(4): a("v_lshl_or_b32 v%d, v%d, 16, v%d" % (A_WP + 4 * hh + j, A_RAW + 8 * hh + 2 * j + 1, A_RAW + 8 * hh + 2 * j))
        for j in range(4): a("v_xor_b32 v%d, v%d, v%d" % (A_WP + 4 * hh + j, A_WP + 4 * hh + j, A_SGN))
    WK = A_WP + 4 * ty
    T = A_T
    a("v_and_b32 v%d, 31, v1" % T); a("v_lshlrev_b32 v%d, 2, v%d" % (T, T)); a("v_add_u32 v%d, %d, v%d" % (T, LRS, T))
    a("v_lshrrev_b32 v%d, 4, v1" % (T + 1)); a("v_lshlrev_b32 v%d, 4, v%d" % (T + 1, T + 1)); a("v_add_u32 v%d, %d, v%d" % (T + 1, LSD, T + 1))
    count_wait(P, A_FL, A_FV, F_EX, 4)
    stamp(11)
    for u in range(4): a("ds_read_b32 v%d, v%d offset:%d" % (A_R + u, T, u * 128))
    for u in range(4): a("ds_read_b128 %s, v%d offset:%d" % (v(A_SD + 4 * u, 4), T + 1, u * 64))
    for u in range(4): a("ds_read_b128 %s, v%d offset:%d" % (v(A_KF + 4 * u, 4), A_RK, u * 8192))
    P.append(W(lg="all"))
    for u in range(4): a("v_mul_f32 v%d, s%d, v%d" % (A_R + 4 + u, sL2E, A_R + u))
    PM = (T, T + 16); RR = (T + 32, T + 36)
    def qpair(hh, pr, src=None):
        src = A_KF + 8 * pr if src is None else src
        return mprio(zipper(softmax_unit(A_WP + 4 * hh, src, 2 * pr, A_PQ + 32 * hh + 16 * pr, PM[0], RR[0], False),
                            softmax_unit(A_WP + 4 * hh, src + 4, 2 * pr + 1, A_PQ + 32 * hh + 16 * pr + 8, PM[1], RR[1], False)), CFG["qprio"])
    KO = 0 if CFG["kvfirst"] else 4096 * ty
    if ty == 1 and not CFG["kvfirst"]:
        P += qpair(0, 0)
        if CFG["qpre"] == 2: P += qpair(0, 1)
        else:
            for j in range(8): a("v_mov_b32 v%d, v%d" % (A_PQ + 16 + j, A_KF + 8 + j))
        count_wait(P, A_FL, A_FV, F_EX + 4, 4)
        stamp(18)
        for u in range(4): a("ds_read_b128 %s, v%d offset:%d" % (v(A_KF + 4 * u, 4), A_RK, u * 8192 + KO))
        P.append(W(lg="all"))
    B = []; b = lambda t, tag=None: B.append(I(t, tag))
    def tail(u):
        X = []; x = lambda t, tag=None: X.append(I(t, tag))
        PHI = A_PHI + 8 * (u & 1); FR = A_PHI + 16 + 12 * (u & 1); so = (u & 1) * 16384 + KO
        for sg in range(2): x("ds_write_b128 v%d, %s offset:%d" % (A_RK, v(PHI + 4 * sg, 4), so + sg * 8192))
        for q in range(2): x("ds_read_b64_tr_b16 %s, v%d offset:%d" % (v(FR + 2 * q, 2), A_RV, u * 8192 + KO + 1024 + q * 64), ("pr", u))
        for sg in range(2):
            for q in range(2): x("ds_read_b64_tr_b16 %s, v%d offset:%d" % (v(FR + 4 + 4 * sg + 2 * q, 2), A_RV, so + sg * 8192 + q * 64), ("pr", u))
        return X
    def kvm(us):
        X = [W(lg=[("pr", us[-1])])]
        for u in us:
            FR = A_PHI + 16 + 12 * (u & 1)
            for sg in range(2):
                c = v(A_ACC + 4 * sg, 4); z = v(A_ACC + 8 + 4 * sg, 4)
                X.append(I("v_mfma_f32_16x16x32_bf16 %s, %s, %s, %s" % (c, v(FR + 4 + 4 * sg, 4), v(FR, 4), "0" if u == 0 else c)))
                X.append(I("v_mfma_f32_16x16x32_bf16 %s, %s, %s, %s" % (z, v(FR + 4 + 4 * sg, 4), v(A_SD + 4 * u, 4), "0" if u == 0 else z)))
        return X
    for pr in range(2):
        z = zipper(softmax_unit(WK, A_KF + 8 * pr, 2 * pr, A_PHI, PM[0], RR[0], True), softmax_unit(WK, A_KF + 8 * pr + 4, 2 * pr + 1, A_PHI + 8, PM[1], RR[1], True))
        t0_, t1_ = tail(2 * pr), tail(2 * pr + 1)
        if pr == 0: B += z + t0_[:2] + t1_[:2]; late = t0_[2:] + t1_[2:]
        else: B += z[:70] + late + z[70:120] + kvm((0, 1)) + z[120:] + t0_[:2] + t1_[:2] + t0_[2:] + t1_[2:]
    b("v_and_b32 v%d, 15, v1" % T); b("v_cmp_eq_u32 vcc, 1, v%d" % T)
    if ty == 0: one_lane(B, "ds_add_u32 v%d, v%d offset:%d" % (A_FL, A_ONE, F_EXF))
    B += kvm((2, 3))
    for j in range(4): b("v_cvt_pk_bf16_f32 v%d, v%d, v%d" % (A_ACC + j, A_ACC + 2 * j, A_ACC + 2 * j + 1))
    for j in range(4): b("v_cndmask_b32 v%d, v%d, v%d, vcc" % (A_ACC + 8 + j, A_ACC + 8 + j, A_ACC + 12 + j))
    b("buffer_store_dwordx4 %s, v%d, %s, 0 offen sc1" % (v(A_ACC, 4), A_ST, srd(SWS)), "part")
    b("s_mov_b32 exec_lo, 0x00030003"); b("s_mov_b32 exec_hi, 0x00030003")
    b("buffer_store_dwordx4 %s, v%d, %s, 0 offen sc1" % (v(A_ACC + 8, 4), A_ZA, srd(SWS)), "part"); b("s_mov_b64 exec, -1")
    P += mprio(B, CFG["kprio"]); a("s_setprio 0")
    stamp(12)
    def publish_k():
        a("ds_read_b32 v%d, v%d offset:%d" % (A_POLL, A_FL, F_INIT), "init"); gate(P, A_ZERO, SDBG, 0, "init", A_POLL, 1)
        P.append(W(vm=["part"])); signal(A_CK, 0)
        stamp(13)
    if ty == 0:
        publish_k()
        a(sload(SWS, sCC, 0, sG)); sgate(P, sCC, 0, sG, 16)
        stamp(14)
        LD = A_LD; S = T; Z = A_ACC
        a("buffer_load_dwordx4 %s, v%d, %s, 0 offen sc1" % (v(LD, 4), A_PL, srd(SWS))); a("s_movk_i32 s%d, 8192" % sT0)
        a("buffer_load_dwordx4 %s, v%d, %s, s%d offen sc1" % (v(LD + 4, 4), A_PL, srd(SWS), sT0))
        X = []; x = lambda t: X.append(I(t))
        x("buffer_load_dwordx4 %s, v%d, %s, 0 offen sc1" % (v(Z, 4), A_ZL, srd(SWS))); x("buffer_load_dwordx4 %s, v%d, %s, 0 offen offset:64 sc1" % (v(Z + 4, 4), A_ZL, srd(SWS)))
        x("v_and_b32 v%d, 15, v1" % S); x("v_cmp_eq_u32 vcc, 1, v%d" % S); x("s_waitcnt vmcnt(0)")
        for k in (8, 4, 2, 1):
            for j in range(8): x("v_add_f32_dpp v%d, v%d, v%d row_ror:%d row_mask:0xf bank_mask:0xf" % (Z + j, Z + j, Z + j, k))
        for j in range(4): x("v_cndmask_b32 v%d, v%d, v%d, vcc" % (Z + j, Z + j, Z + 4 + j))
        x("s_mov_b32 exec_lo, 0x00030003"); x("s_mov_b32 exec_hi, 0x00030003")
        x("buffer_store_dwordx4 %s, v%d, %s, 0 offen sc1" % (v(Z, 4), A_CM, srd(SWS))); x("s_mov_b64 exec, -1"); x("s_branch L_l2b")
        only(P, ["s_cmp_lg_u32 s%d, 0" % sLD], X)
        a("s_waitcnt vmcnt(0)"); P.append(L("L_l2b:"))
        B = []
        for t_ in range(2):
            for sg in range(2): b("v_mfma_f32_4x4x4_16b_bf16 %s, %s, %s, %s" % (v(S + 4 * sg, 4), v(A_ID, 2), v(LD + 4 * t_ + 2 * sg, 2), "0" if t_ == 0 else v(S + 4 * sg, 4)))
        for j in range(8): b("v_add_f32_dpp v%d, v%d, v%d row_ror:8 row_mask:0xf bank_mask:0xf" % (S + j, S + j, S + j))
        for j in range(4): b("v_permlane16_swap_b32 v%d, v%d" % (S + j, S + 4 + j))
        for j in range(4): b("v_add_f32 v%d, v%d, v%d" % (S + j, S + j, S + 4 + j))
        for j in range(2): b("v_permlane32_swap_b32 v%d, v%d" % (S + j, S + 2 + j))
        for j in range(2): b("v_add_f32 v%d, v%d, v%d" % (S + j, S + j, S + 2 + j))
        b("v_cvt_pk_bf16_f32 v%d, v%d, v%d" % (S, S, S + 1))
        b("s_mov_b32 exec_lo, 0x00ff00ff"); b("s_mov_b32 exec_hi, 0x00ff00ff")
        b("buffer_store_dword v%d, v%d, %s, 0 offen sc1" % (S, A_OS, srd(SWS))); b("s_mov_b64 exec, -1")
        P += mprio(B); P.append(W(vm="all")); signal(A_CQ, 128)
        stamp(15)
    else:
        assert CFG["kvfirst"]
        if CFG["qlate"]: publish_k()
        count_wait(P, A_FL, A_FV, F_EX + 4, 4)
        for hh in range(2):
            for u in range(4): a("ds_read_b128 %s, v%d offset:%d" % (v(A_PQ + 32 * hh + 16 * (u >> 1) + 4 * (u & 1), 4), A_RK, u * 8192 + 4096 + 1024 * hh), "qf")
        one_lane(P, "ds_add_u32 v%d, v%d offset:%d" % (A_FL, A_ONE, F_EXF))
        P.append(W(lg=["qf"]))
        z = qpair(0, 0, A_PQ) if CFG["kvfirst"] else qpair(1, 0)
        P += z[:CFG["kpub"]]
        if not CFG["qlate"]: publish_k()
        P += z[CFG["kpub"]:]
        if CFG["kvfirst"]: rest = [qpair(0, 1, A_PQ + 16), qpair(1, 0, A_PQ + 32), qpair(1, 1, A_PQ + 48)]
        else: rest = ([qpair(0, 1, A_PQ + 16)] if CFG["qpre"] == 1 else []) + [qpair(1, 1)]
        for z in rest: P += z
        Z = (A_ACC, A_ACC + 8); KVA = (A_WP, A_R); S = A_KF
        def finish(hh):
            B = []; b = lambda t, tag=None: B.append(I(t, tag))
            KV = KVA[hh]; PQ = A_PQ + 32 * hh
            for sg in range(2):
                for j in range(2):
                    b("v_mov_b32 v%d, v%d" % (KV + 4 * sg + j, S + 4 * hh + 2 * sg + j))
                    b("v_cvt_pk_bf16_f32 v%d, v%d, v%d" % (KV + 4 * sg + 2 + j, Z[hh] + 4 * sg + 2 * j, Z[hh] + 4 * sg + 2 * j + 1))
            for w in ("16", "32"):
                for sg in range(2):
                    for j in range(2): b("v_permlane%s_swap_b32 v%d, v%d" % (w, KV + 4 * sg + j, KV + 4 * sg + 2 + j))
            if CFG["qnorm"]:
                NN = [A_LD + 16 * u for u in range(4)]
                for u in range(4):
                    for sg in range(2): b("v_mfma_f32_32x32x16_bf16 %s, %s, %s, %s" % (v(NN[u], 16), v(KV + 4 * sg, 4), v(PQ + 8 * u + 4 * sg, 4), v(NN[u], 16) if sg else "0"))
                for u in range(4):
                    N = NN[u]
                    b("v_add_f32 v%d, 0x358637bd, v%d" % (N + 8, N + 8)); b("v_rcp_f32 v%d, v%d" % (N + 8, N + 8))
                    for j in range(8): b("v_mul_f32 v%d, v%d, v%d" % (N + j, N + j, N + 8))
                    for j in range(4): b("v_cvt_pk_bf16_f32 v%d, v%d, v%d" % (A_PQ + 8 * u + 4 * (j >> 1) + 2 * hh + (j & 1), N + 2 * j, N + 2 * j + 1))
                    if hh:
                        b("s_mov_b32 s%d, %d" % (sT5, u * 147456))
                        for h2 in range(2): b("buffer_store_dwordx4 %s, v%d, %s, s%d offen offset:%d sc1" % (v(A_PQ + 8 * u + 4 * h2, 4), A_OS, srd(SWS), sT5, 512 * h2), "ost")
                P.extend(mprio(B, CFG["fprio"])); return
            b("s_mov_b32 exec_lo, 0xff000000"); b("s_mov_b32 exec_hi, 0xff000000")
            for j in range(8): b("v_mov_b32 v%d, 0x3f803f80" % (KV + j))
            b("s_mov_b64 exec, -1")
            buf = [A_LD + 32, A_LD]
            def mm(u):
                for sg in range(2): b("v_mfma_f32_32x32x16_bf16 %s, %s, %s, 0" % (v(buf[u & 1] + 16 * sg, 16), v(KV + 4 * sg, 4), v(PQ + 8 * u + 4 * sg, 4)))
            mm(0)
            for u in range(4):
                if u < 3: mm(u + 1)
                N = buf[u & 1]; Q = N + 16; O = PQ + 8 * u
                b("v_rcp_f32 v%d, v%d" % (N + 12, N + 12)); b("v_rcp_f32 v%d, v%d" % (Q + 12, Q + 12))
                b("v_fmaak_f32 v%d, v%d, v%d, 0x358637bd" % (N + 8, N + 8, N + 12)); b("v_fmac_f32 v%d, v%d, v%d" % (N + 8, Q + 8, Q + 12))
                b("v_rcp_f32 v%d, v%d" % (N + 8, N + 8))
                b("v_mul_f32 v%d, v%d, v%d" % (N + 12, N + 12, N + 8)); b("v_mul_f32 v%d, v%d, v%d" % (Q + 12, Q + 12, N + 8))
                for j in range(8): b("v_mul_f32 v%d, v%d, v%d" % (N + j, N + j, N + 12))
                for j in range(8): b("v_fmac_f32 v%d, v%d, v%d" % (N + j, Q + j, Q + 12))
                for j in range(4): b("v_cvt_pk_bf16_f32 v%d, v%d, v%d" % (A_PQ + 8 * u + 4 * (j >> 1) + 2 * hh + (j & 1), N + 2 * j, N + 2 * j + 1))
            P.extend(mprio(B, CFG["fprio"]))
        def stores(hh):
            for u in range(4):
                a("s_mov_b32 s%d, %d" % (sT5, u * 147456))
                a("buffer_store_dwordx4 %s, v%d, %s, s%d offen offset:%d sc1" % (v(A_PQ + 8 * u + 4 * hh, 4), A_OS, srd(SWS), sT5, 512 * hh), "ost")
        stamp(14)
        for hh in range(2): a(sload(SWS, sCC, 512 * hh + 128, sG + hh))
        for hh in range(2): sgate(P, sCC, 512 * hh + 128, sG + hh, 8)
        stamp(15)
        for hh in range(2):
            a("buffer_load_dwordx4 %s, v%d, %s, 0 offen offset:%d sc1" % (v(S + 4 * hh, 4), A_PL, srd(SWS), 2048 * hh))
            for sg in range(2): a("buffer_load_dwordx4 %s, v%d, %s, 0 offen offset:%d sc1" % (v(Z[hh] + 4 * sg, 4), A_ZL, srd(SWS), 256 * hh + 64 * sg))
        P.append(W(vm="all"))
        finish(0); finish(1)
        if not CFG["qnorm"]: stores(0); stores(1)
        stamp(16)
        P.append(W(vm=["ost"]))
        a("s_mov_b64 exec, 3"); a("buffer_atomic_add v%d, v%d, %s, 0 offen offset:%d sc1" % (A_ONE, A_CM, srd(SWS), C_O * 128)); a("s_mov_b64 exec, -1")
        stamp(17)
    if CFG["stamps"]:
        a("s_lshl_b32 s%d, s2, 8" % sT0); a("s_add_u32 s%d, s%d, %d" % (sT0, sT0, WS_ST + 0x30000))
        a("v_lshlrev_b32 v64, 2, v1")
        a("s_cmp_lg_u32 s%d, %d" % (sW1, CFG["stampw"] & 1)); a("s_cbranch_scc1 L_exit")
        a("buffer_store_dword v34, v64, %s, s%d offen" % (srd(SWS), sT0))
    a("s_endpgm")
    return P

def main():
    hdr = open("cdna_kernels/%s.s.ref" % NAME).read().split("; Override launch geometry")[0]
    out = [hdr.rstrip(), "; @launch grid=(256,1,1) block=(512,1,1) lds=163840",
           "; Written by gen/gen.py. One launch, 256 workgroups (one per CU), 8 waves each:",
           ";   waves 0-3  matrix work: rows centred in registers, [k v | q | gate up] products, then y = h W_down and s = o W_o",
           ";   waves 4-5  LDS-DMA stream of 16 KB slabs through a ring; progress words travel as small DMA loads behind the data",
           ";   waves 6-7  feature maps (true row maxima), phi_k^T v and its sums over the row tiles, o = num / den",
           "; h, o, partial sums and row scales pass between workgroups through d_ws: write-through stores, then a counter",
           "; that workgroup 0 zeroes at the start of every launch (d_debug[0] says when).",
           '.amdgcn_target "amdgcn-amd-amdhsa--gfx950"', ".text", ".globl %s_kernel" % NAME, ".p2align 8",
           ".type %s_kernel,@function" % NAME, "%s_kernel:" % NAME]
    t, st = finalize(prologue()); out += t
    import re
    norm = lambda t: re.sub(r"(L_[a-z]+)\d+", r"\1", t)
    for nm, fn in (("attn", attn_wave), ("dma", dma_wave), ("comp", compute)):
        t0 = finalize([I("s_cmp_eq_u32 s%d, 1" % sTY), I("s_cbranch_scc1 L_%s1" % nm)] + fn(0), st.clone())[0]
        t1 = finalize(fn(1), st.clone())[0]
        k = 0
        while CFG["share"] and norm(t0[-1 - k]) == norm(t1[-1 - k]): k += 1
        while k > 0:
            defs = lambda T: set(x[:-1] for x in T if x.endswith(":"))
            head = " ".join(t0[:len(t0) - k])
            if not any(re.search(r"\b%s\b" % d, head) for d in defs(t0[len(t0) - k:])) and not any(re.search(r"\b%s\b" % d, " ".join(t1[len(t1) - k:])) for d in defs(t1[:len(t1) - k])): break
            k -= 1
        if k > 50:
            t0 = t0[:len(t0) - k] + ["    s_branch L_%sj" % nm]; t1 = t1[:len(t1) - k] + ["L_%sj:" % nm] + t1[len(t1) - k:]
        out += ["L_%s:" % nm] + t0 + ["L_%s1:" % nm] + t1
    out += centre_sub() + STUBS
    out += lds_spin("c", 18, C_FV, CFG["cnap"]) + lds_spin("d", D_LA, D_DV, CFG["dnap"])
    out += ["L_exit:", "    s_endpgm", ".p2align 7", "L_tab:"] + ["    .long %d" % k for k in range(64)]
    out += ['.section .rodata,"a"', ".p2align 6", ".amdhsa_kernel %s_kernel" % NAME,
            "  .amdhsa_next_free_vgpr 256", "  .amdhsa_next_free_sgpr 100", "  .amdhsa_accum_offset 256",
            "  .amdhsa_group_segment_fixed_size 0", "  .amdhsa_kernarg_size 88", "  .amdhsa_user_sgpr_count 2",
            "  .amdhsa_user_sgpr_kernarg_segment_ptr 1", "  .amdhsa_system_sgpr_workgroup_id_x 1", ".end_amdhsa_kernel"]
    open(sys.argv[1], "w").write("\n".join(out) + "\n")
main()
```
